```python
import torch

def _softmax(x, axis=-1):
    return torch.softmax(x, dim=axis)

def _gelu(x):
    return torch.nn.functional.gelu(x, approximate='tanh')

def _silu(x):
    return torch.nn.functional.silu(x)

def _sigmoid(x):
    return torch.sigmoid(x)

def _layernorm(x, axis=-1, eps=1e-05):
    m = x.mean(dim=axis, keepdim=True)
    v = x.var(dim=axis, keepdim=True, unbiased=False)
    return (x - m) / torch.sqrt(v + eps)

def _scatter_add(tgt, idx, src, axis=0):
    return tgt.clone().index_add_(axis, idx, src)

def _segment_sum(src, seg, n):
    out = torch.zeros((n,) + src.shape[1:], dtype=src.dtype)
    return out.index_add_(0, seg, src)

def _pad(x, pw):
    flat = tuple((v for pair in reversed(pw) for v in pair))
    return torch.nn.functional.pad(x, flat)
kernel_name = 'adaLN_cond__mha_block__geglu_ffn__prompt'

def setup_inputs():

    _w = lambda a: (lambda t: t.to(torch.bfloat16) if t.is_floating_point() else t)(torch.as_tensor(a))

    def _A_setup():
        B, S, D, H = (1, 2048, 640, 32)
        return {'x': _w((lambda *s: torch.randn(*s, dtype=torch.bfloat16) * 0.05)(B, S, D)), 'wqkv': _w((lambda *s: torch.randn(*s, dtype=torch.bfloat16) * 0.05)(D, 3 * D)), 'wo': _w((lambda *s: torch.randn(*s, dtype=torch.bfloat16) * 0.05)(D, D))}
    _A_in = _A_setup()

    def _B_setup():
        B, S, D, F = (1, 2048, 640, 1536)
        return {'x': _w((lambda *s: torch.randn(*s, dtype=torch.bfloat16) * 0.05)(B, S, D)), 'w_gate': _w((lambda *s: torch.randn(*s, dtype=torch.bfloat16) * 0.05)(D, F)), 'w_up': _w((lambda *s: torch.randn(*s, dtype=torch.bfloat16) * 0.05)(D, F)), 'w_down': _w((lambda *s: torch.randn(*s, dtype=torch.bfloat16) * 0.05)(F, D))}
    _B_in = _B_setup()
    return {'A_x': _A_in['x'], 'A_wqkv': _A_in['wqkv'], 'A_wo': _A_in['wo'], 'B_x': _B_in['x'], 'B_w_gate': _B_in['w_gate'], 'B_w_up': _B_in['w_up'], 'B_w_down': _B_in['w_down'], 'c': _w((lambda *s: torch.randn(*s, dtype=torch.bfloat16) * 0.1)(1, 640) * 8.0), 'w_mod': _w((lambda *s: torch.randn(*s, dtype=torch.bfloat16) * 0.1)(640, 6 * 640) * 640 ** (-0.5) * 8.0)}

def reference(A_x, A_wqkv, A_wo, B_x, B_w_gate, B_w_up, B_w_down, c, w_mod):

    def _A_ref(x, wqkv, wo):
        B, S, D = x.shape
        H = 32
        Dh = D // H
        qkv = (lambda x, *d: x.permute(*d))((x @ wqkv).reshape(B, S, 3, H, Dh), 2, 0, 3, 1, 4)
        q, k, v = (qkv[0], qkv[1], qkv[2])
        scores = torch.einsum('bhqd,bhkd->bhqk', q, k) * Dh ** (-0.5)
        p = _softmax(scores, axis=-1)
        o = torch.einsum('bhqk,bhkd->bhqd', p, v)
        return (lambda x, *d: x.permute(*d))(o, 0, 2, 1, 3).reshape(B, S, D) @ wo

    def _B_ref(x, w_gate, w_up, w_down):
        return _gelu(x @ w_gate) * (x @ w_up) @ w_down
    x = A_x
    mod = (_silu(c) @ w_mod).reshape(c.shape[0], 6, 1, -1)
    sa, ca, ga, sb, cb, gb = (mod[:, 0].clone(), mod[:, 1].clone(), mod[:, 2].clone(), mod[:, 3].clone(), mod[:, 4].clone(), mod[:, 5].clone())
    h = _layernorm(x, axis=-1) * (1 + ca) + sa
    x = x + ga * _A_ref(h, A_wqkv, A_wo)
    h = _layernorm(x, axis=-1) * (1 + cb) + sb
    x = x + gb * _B_ref(h, B_w_gate, B_w_up, B_w_down)
    return x
```

```python
import re

TRANS = ("v_exp_f32", "v_log_f32", "v_rcp_f32", "v_rsq_f32", "v_sqrt_f32", "v_sin_f32", "v_cos_f32",
         "v_exp_f16", "v_rcp_f16", "v_rcp_iflag_f32")

def _regs(tok):
    tok = tok.strip()
    neg = tok.lstrip("-").replace("abs(", "").replace(")", "").strip("|")
    m = re.fullmatch(r"([vas])\[(\d+):(\d+)\]", neg)
    if m:
        return [m.group(1) + str(i) for i in range(int(m.group(2)), int(m.group(3)) + 1)]
    m = re.fullmatch(r"([vas])(\d+)", neg)
    if m:
        return [neg]
    if neg in ("vcc", "vcc_lo", "vcc_hi"):
        return ["vcc"]
    if neg in ("exec", "exec_lo", "exec_hi"):
        return ["exec"]
    if neg == "m0":
        return ["m0"]
    return []

class Ins:
    __slots__ = ("text", "op", "defs", "uses", "kind", "passes", "srcc", "states", "dpp", "storedata", "lds", "sdwa")
    def __init__(self, text):
        self.text = text
        t = text.split(";")[0].strip()
        parts = t.split(None, 1)
        self.op = parts[0]
        ops = []
        if len(parts) > 1:
            rest = parts[1]
            depth = 0; cur = ""
            for ch in rest:
                if ch == "[": depth += 1
                if ch == "]": depth -= 1
                if ch == "," and depth == 0:
                    ops.append(cur.strip()); cur = ""
                else:
                    cur += ch
            ops.append(cur.strip())
        mods = ""
        if ops:
            sp = ops[-1].split(None, 1)
            ops[-1] = sp[0]
            if len(sp) > 1: mods = sp[1]
        op = self.op
        self.defs, self.uses = [], []
        self.passes = 0; self.srcc = []; self.states = 1
        self.dpp = ("row_" in mods or "quad_perm" in mods or "wave_" in mods or "row_bcast" in mods)
        self.storedata = []; self.lds = False
        self.sdwa = "sdwa" in op or "op_sel" in mods
        R = _regs
        if op == "s_nop":
            self.kind = "nop"; self.states = int(ops[0], 0) + 1
        elif op.startswith("v_mfma"):
            self.kind = "mfma"
            self.defs = R(ops[0]); self.uses = R(ops[1]) + R(ops[2]); self.srcc = R(ops[3])
            self.uses += self.srcc
            self.passes = 8 if "32x32" in op else 4
        elif op.startswith("v_"):
            self.kind = "trans" if any(op.startswith(x) for x in TRANS) else "valu"
            base = op.replace("_e32", "").replace("_e64", "")
            if base.startswith("v_cmp"):
                self.defs = R(ops[0]); self.uses = sum((R(o) for o in ops[1:]), [])
                if base.startswith("v_cmpx"): self.defs += ["exec"]
            elif base.startswith(("v_add_co", "v_sub_co", "v_addc_co", "v_subb_co", "v_subrev_co", "v_mad_u64_u32")):
                self.defs = R(ops[0]) + R(ops[1]); self.uses = sum((R(o) for o in ops[2:]), [])
            elif base.startswith(("v_permlane32_swap", "v_permlane16_swap", "v_swap_b32")):
                self.defs = R(ops[0]) + R(ops[1]); self.uses = R(ops[0]) + R(ops[1])
            else:
                self.defs = R(ops[0]); self.uses = sum((R(o) for o in ops[1:]), [])
                if base.startswith(("v_fmac", "v_dot2c", "v_writelane", "v_pk_fmac")) or "UNUSED_PRESERVE" in mods or self.dpp:
                    self.uses += R(ops[0])
                if base.startswith("v_cndmask") and len(ops) == 3:
                    self.uses += ["vcc"]
        elif op.startswith("ds_"):
            self.kind = "ds"
            if op.startswith(("ds_read", "ds_bpermute", "ds_permute", "ds_swizzle")):
                self.defs = R(ops[0]); self.uses = sum((R(o) for o in ops[1:]), [])
            else:
                self.uses = sum((R(o) for o in ops), [])
                self.storedata = sum((R(o) for o in ops[1:]), [])
        elif op.startswith(("buffer_", "global_", "flat_")):
            self.kind = "vmem"
            self.lds = (" lds" in (" " + mods)) or "load_lds" in op
            allr = [R(o) for o in ops]
            if op.startswith("buffer_"):
                if "load" in op and not self.lds:
                    self.defs = allr[0]; self.uses = sum(allr[1:], [])
                elif "load" in op:
                    self.uses = sum(allr, []) + ["m0"]
                elif "store" in op:
                    self.uses = sum(allr, []); self.storedata = allr[0]
                elif "atomic" in op:
                    self.uses = sum(allr, []); self.storedata = allr[0]
                    if "sc0" in mods: self.defs = allr[0]
                else:
                    self.uses = sum(allr, [])
            else:
                if "load" in op and not self.lds:
                    self.defs = allr[0]; self.uses = sum(allr[1:], [])
                elif "load" in op:
                    self.uses = sum(allr, []) + ["m0"]
                elif "atomic" in op and "sc0" in mods:
                    self.defs = allr[0]; self.uses = sum(allr[1:], []); self.storedata = allr[2]
                else:
                    self.uses = sum(allr, []); self.storedata = allr[1] if len(allr) > 1 else []
        elif op.startswith("s_"):
            self.kind = "salu"
            if op.startswith(("s_cmp", "s_cbranch", "s_branch", "s_waitcnt", "s_barrier", "s_endpgm", "s_setprio", "s_sleep", "s_bitcmp")):
                self.uses = sum((R(o) for o in ops), [])
            else:
                self.defs = R(ops[0]) if ops else []
                self.uses = sum((R(o) for o in ops[1:]), [])
                if "saveexec" in op: self.defs += ["exec"]; self.uses += ["exec"]
        else:
            raise ValueError("unknown instruction: " + text)

def _isv(r): return r[0] in "va" and r not in ("vcc",)
def _iss(r): return (r[0] == "s" and r[1:].isdigit()) or r == "vcc"

def required(prod, cons):
    need = 0
    pd, cu, cd = set(prod.defs), set(cons.uses), set(cons.defs)
    valu_p = prod.kind in ("valu", "trans")
    valu_c = cons.kind in ("valu", "trans")
    if valu_p:
        vd = {r for r in pd if _isv(r)}
        sd = {r for r in pd if _iss(r)}
        if cons.kind == "mfma" and vd & cu: need = max(need, 2)
        if valu_c and vd & cu:
            if cons.op.startswith(("v_readfirstlane", "v_readlane")): need = max(need, 1)
            if cons.dpp: need = max(need, 2)
            if cons.op.startswith("v_permlane"): need = max(need, 2)
            if prod.kind == "trans": need = max(need, 1)
            if prod.sdwa: need = max(need, 1)
        if prod.kind == "trans" and cons.kind in ("ds", "vmem") and vd & cu: need = max(need, 1)
        if sd & cu:
            if valu_c:
                need = max(need, 4 if cons.op.startswith(("v_readlane", "v_writelane")) else 2)
            if cons.kind == "vmem": need = max(need, 5)
        if "exec" in pd:
            if cons.kind == "mfma" or cons.op.startswith("v_permlane") or cons.op.startswith(("v_readfirstlane", "v_readlane")): need = max(need, 4)
            if cons.dpp: need = max(need, 5)
    if prod.kind == "mfma":
        big = 12 if prod.passes == 8 else 8
        mid = 10 if prod.passes == 8 else 6
        if cons.kind == "mfma":
            ab = set(cons.uses) - set(cons.srcc)
            ab |= {r for r in cons.uses if cons.uses.count(r) > 1}
            if pd & ab: need = max(need, big)
            if pd & set(cons.srcc):
                if not (prod.defs == cons.srcc and prod.passes == cons.passes): need = max(need, mid)
            if pd & cd and not (pd & set(cons.srcc)):
                if prod.defs != cons.defs: need = max(need, mid)
        elif cons.kind in ("valu", "trans"):
            if pd & (cu | cd): need = max(need, big)
            if set(prod.srcc) & cd: need = max(need, 7 if prod.passes == 8 else 3)
        elif cons.kind in ("ds", "vmem"):
            if pd & (cu | cd): need = max(need, big)
    if prod.kind == "salu" and "m0" in pd and cons.kind == "vmem" and cons.lds: need = max(need, 1)
    if prod.kind == "vmem" and prod.storedata and len(prod.storedata) >= 3:
        if set(prod.storedata) & cd: need = max(need, 2 if valu_c else 1)
    return need

class K:
    def __init__(self):
        self.items = []
        self.nops = 0
    def __call__(self, text):
        for line in text.strip("\n").split("\n"):
            l = line.strip()
            if not l or l.startswith(";"):
                if l: self.items.append(("raw", "  " + l))
                continue
            if l.endswith(":"):
                self.items.append(("label", l[:-1]))
            elif l.startswith("."):
                self.items.append(("raw", l))
            else:
                self.items.append(("ins", Ins(l)))
    def label(self, n): self.items.append(("label", n))

    def fix_hazards(self, window=20):
        for _pass in range(4):
            inserted = 0
            i = 0
            branches = self._branch_map()
            while i < len(self.items):
                it = self.items[i]
                if it[0] == "ins" and it[1].kind not in ("nop",):
                    cons = it[1]
                    worst = 0
                    for prod, dist in self._preds(i, window, 0, frozenset(), branches):
                        n = required(prod, cons)
                        if n > dist: worst = max(worst, n - dist)
                    if worst > 0:
                        self.items.insert(i, ("ins", Ins("s_nop %d" % (worst - 1))))
                        self.nops += 1; inserted += 1
                        branches = self._branch_map()
                        i += 1
                i += 1
            if not inserted: break
    def _branch_map(self):
        branches = {}
        for i, it in enumerate(self.items):
            if it[0] == "ins" and it[1].op.startswith(("s_cbranch", "s_branch")):
                branches.setdefault(it[1].text.split()[1], []).append(i)
        return branches
    def _preds(self, i, budget, acc, path, branches, via_branch=False):
        j = i - 1; dist = acc
        first = True
        while j >= 0 and dist < budget:
            it = self.items[j]
            if it[0] == "label":
                for b in branches.get(it[1], []):
                    if b not in path:
                        yield from self._preds(b + 1, budget, dist, path | {b}, branches, True)
            elif it[0] == "ins":
                ins = it[1]
                if ins.op == "s_endpgm": return
                if ins.op == "s_branch" and not (first and via_branch): return
                yield ins, dist
                dist += ins.states
                first = False
            j -= 1
    def text(self):
        out = []
        for kind, x in self.items:
            if kind == "ins": out.append("  " + x.text)
            elif kind == "label": out.append(x + ":")
            else: out.append(x)
        return "\n".join(out) + "\n"

def descriptor(name, vgpr, acc_offset=None, sgpr=102):
    if acc_offset is None: acc_offset = (vgpr + 3) // 4 * 4
    return f""".section .rodata,"a"
.p2align 6
.amdhsa_kernel {name}
  .amdhsa_next_free_vgpr {vgpr}
  .amdhsa_next_free_sgpr {sgpr}
  .amdhsa_accum_offset {acc_offset}
  .amdhsa_group_segment_fixed_size 0
  .amdhsa_kernarg_size 96
  .amdhsa_user_sgpr_count 2
  .amdhsa_user_sgpr_kernarg_segment_ptr 1
  .amdhsa_system_sgpr_workgroup_id_x 1
  .amdhsa_float_denorm_mode_32 3
.end_amdhsa_kernel
.text
"""
def header(name):
    return f""".text
.globl {name}
.p2align 8
.type {name},@function
{name}:
"""
```

```python
from asmgen import *
from layout import *

def srd(k, s, ptr_lo, nbytes, off=0):
    if off:
        k(f"s_add_u32 s{s}, s{ptr_lo}, {off}")
        k(f"s_addc_u32 s{s+1}, s{ptr_lo+1}, 0")
    else:
        k(f"s_mov_b32 s{s}, s{ptr_lo}")
        k(f"s_mov_b32 s{s+1}, s{ptr_lo+1}")
    k(f"s_mov_b32 s{s+2}, {nbytes}")
    k(f"s_mov_b32 s{s+3}, 0x00020000")

def divconst(k, dst, src, d, tmp_s, maxval):
    magic = (1 << 32) // d + 1
    assert all((x * magic) >> 32 == x // d for x in (range(0, maxval + 1) if maxval < 300000 else [maxval]))
    k(f"s_mov_b32 s{tmp_s}, {magic}")
    k(f"v_mul_hi_u32 v{dst}, s{tmp_s}, v{src}")

def bf16_round_f32(k, dst, src, tmp):
    k(f"v_cvt_pk_bf16_f32 v{tmp}, v{src}, v{src}")
    k(f"v_lshlrev_b32 v{dst}, 16, v{tmp}")
```

```python
from common import *

STAGE = 16 * KV_TILE
Q1, Q2 = 112, 116
KA, KB = 12, 20
VF = 24
SS = 40
PP = 72
OO = 80
AK, AKB, AV = 96, 99, 102
VDMA = 105

def m16(d, a, b, c): return f"v_mfma_f32_32x32x16_bf16 v[{d}:{d+15}], v[{a}:{a+3}], v[{b}:{b+3}], {c}"
def m8(d, a, b, c): return f"v_mfma_f32_32x32x8bf16_1k v[{d}:{d+15}], v[{a}:{a+1}], v[{b}:{b+1}], {c}"

def gen_attn():
    name = "attn_kernel"
    k = K()
    k("s_cmp_ge_u32 s2, 256")
    k("s_cbranch_scc1 ATT_END")
    k(f"s_load_dwordx2 s[4:5], s[0:1], {KA_WS}")
    k("s_and_b32 s11, s2, 31            ; head")
    k("s_lshr_b32 s12, s2, 5")
    k("v_and_b32 v1, 63, v0")
    k("v_lshrrev_b32 v2, 6, v0")
    k("s_nop 0")
    k("v_readfirstlane_b32 s8, v2       ; wave")
    k("v_and_b32 v2, 31, v1")
    k("v_lshrrev_b32 v3, 5, v1          ; half")
    for sl in range(3):
        k(f"v_lshlrev_b32 v{AK+sl}, 4, v1")
        if sl: k(f"v_add_u32 v{AK+sl}, {sl*STAGE}, v{AK+sl}")
        k(f"v_lshlrev_b32 v{AKB+sl}, 3, v2")
        k(f"v_add_u32 v{AKB+sl}, {sl*STAGE + 1024}, v{AKB+sl}")
        k(f"v_mul_u32_u24 v{AV+sl}, 336, v3")
        k(f"v_lshl_add_u32 v{AV+sl}, v2, 4, v{AV+sl}")
        k(f"v_add_u32 v{AV+sl}, {sl*STAGE + 1280}, v{AV+sl}")
    k(f"s_mul_i32 s9, s11, {KV_HEAD}")
    k("s_mul_i32 s13, s8, 5120")
    k("s_add_u32 s9, s9, s13")
    k("v_lshlrev_b32 v4, 4, v1")
    k(f"v_add_u32 v{VDMA}, s9, v4")
    k(f"v_add_u32 v{VDMA+1}, 4096, v{VDMA}")
    k("s_lshl_b32 s9, s12, 8")
    k("s_lshl_b32 s10, s8, 5")
    k("s_add_u32 s9, s9, s10")
    k("v_add_u32 v4, s9, v2             ; token")
    k("v_mul_u32_u24 v4, 1280, v4")
    k("s_mul_i32 s9, s11, 40")
    k("v_add_u32 v4, s9, v4")
    k("v_lshl_add_u32 v10, v3, 4, v4")
    k("v_lshl_add_u32 v11, v3, 3, v4")
    k("s_waitcnt lgkmcnt(0)")
    srd(k, 16, 4, 32 * KV_HEAD, WS_KV)
    srd(k, 20, 4, S * D * 2, WS_Q)
    srd(k, 24, 4, S * D * 2, WS_O)
    k(f"buffer_load_dwordx4 v[{Q1}:{Q1+3}], v10, s[20:23], 0 offen")
    k(f"buffer_load_dwordx2 v[{Q2}:{Q2+1}], v4, s[20:23], 0 offen offset:32")
    def dma(st, slot):
        k(f"s_add_u32 m0, s13, {slot*STAGE}")
        k(f"s_mov_b32 s14, {st*STAGE}")
        for i in range(4):
            k(f"buffer_load_dwordx4 v{VDMA}, s[16:19], s14 offen offset:{i*1024} lds")
        k(f"s_add_u32 m0, s13, {slot*STAGE + 4096}")
        k("s_nop 0")
        for i in range(2):
            k(f"buffer_load_dwordx4 v{VDMA+1}, s[16:19], s14 offen offset:{i*1024} lds")
    dma(0, 0); dma(1, 1)
    FLAG = 3 * STAGE + 1024
    k("v_mov_b32 v2, 0")
    k(f"v_mov_b32 v5, {FLAG}")
    k("ds_write_b32 v5, v2")
    for r in range(16): k(f"v_mov_b32 v{OO+r}, 0")
    k("s_waitcnt vmcnt(6) lgkmcnt(0)")
    k("v_cmp_gt_u32 vcc, 32, v1")
    k(f"v_cndmask_b32 v{Q2}, 0, v{Q2}, vcc")
    k(f"v_cndmask_b32 v{Q2+1}, 0, v{Q2+1}, vcc")
    k("s_barrier")

    def rdK(t):
        st, tt = divmod(t, 16); sl = st % 3; b = t & 1
        return [f"ds_read_b128 v[{KA+4*b}:{KA+4*b+3}], v{AK+sl} offset:{tt*KV_TILE}",
                f"ds_read_b64 v[{KB+2*b}:{KB+2*b+1}], v{AKB+sl} offset:{tt*KV_TILE}"]
    def rdV(t):
        st, tt = divmod(t, 16); sl = st % 3; b = t & 1
        return [f"ds_read_b128 v[{VF+8*b+4*m}:{VF+8*b+4*m+3}], v{AV+sl} offset:{tt*KV_TILE + 672*m}" for m in range(2)]
    def M1(t): b = t & 1; return m16(SS + 16 * b, KA + 4 * b, Q1, "0")
    def M2(t): b = t & 1; d = SS + 16 * b; return m8(d, KB + 2 * b, Q2, f"v[{d}:{d+15}]")
    def PV(t, m): b = t & 1; return m16(OO, VF + 8 * b + 4 * m, PP + 4 * m, f"v[{OO}:{OO+15}]")
    NTL = 64
    for r in rdK(0) + rdK(1) + rdV(0): k(r)
    k("s_waitcnt lgkmcnt(4)")
    k(M1(0)); k(M2(0))
    for t in range(NTL):
        s = SS + 16 * (t & 1)
        st, tt = divmod(t, 16)
        if tt == 14 and st + 1 < 4:
            k("s_waitcnt vmcnt(0)")
            k("s_barrier")
            if st + 2 < 4: dma(st + 2, (st + 2) % 3)
        e = lambda i: k(f"v_exp_f32 v{s+i}, v{s+i}")
        c = lambda q: k(f"v_cvt_pk_bf16_f32 v{PP+q}, v{s+2*q}, v{s+2*q+1}")
        have_next = t + 1 < NTL
        if have_next:
            k("s_waitcnt lgkmcnt(2)")
            k(M1(t + 1))
        if t > 0: k(PV(t - 1, 1))
        for i in range(4): e(i)
        nreads = 0
        if have_next:
            k(M2(t + 1))
            rds = (rdK(t + 2) if t + 2 < NTL else []) + rdV(t + 1)
            for r in rds: k(r)
            nreads = len(rds)
        for i in range(4, 8): e(i)
        for q in range(4): c(q)
        e(8); e(9)
        k(f"s_waitcnt lgkmcnt({nreads})")
        k(PV(t, 0))
        for i in range(10, 16): e(i)
        for q in range(4, 8): c(q)
    k(PV(NTL - 1, 1))

    def finish(check):
        k(f"v_mov_b32 v2, v{OO+8}")
        k(f"v_mov_b32 v3, v{OO+8}")
        k("v_permlane32_swap_b32 v2, v3")
        if check:
            k("s_mov_b32 s9, 0x21800000         ; 2^-60")
            k("s_mov_b32 s10, 0x5d800000        ; 2^60")
            k("v_cmp_le_f32 vcc, s9, v3")
            k("v_cmp_ge_f32 s[28:29], s10, v3")
            k("s_and_b64 s[28:29], s[28:29], vcc")
            k("s_movk_i32 s9, 0x207")
            for r in range(8):
                k(f"v_cmp_class_f32 vcc, v{OO+r}, s9")
                k("s_andn2_b64 s[28:29], s[28:29], vcc")
            k("s_mov_b32 s30, -1")
            k("s_mov_b32 s31, 0")
            for r in range(8, 12):
                k(f"v_cmp_class_f32 vcc, v{OO+r}, s9")
                k("s_and_b64 vcc, vcc, s[30:31]")
                k("s_andn2_b64 s[28:29], s[28:29], vcc")
            k("s_cmp_eq_u64 s[28:29], -1")
            k("s_cbranch_scc1 ATT_OK")
            k("v_mov_b32 v2, 1")
            k(f"v_mov_b32 v5, {FLAG}")
            k("ds_write_b32 v5, v2")
            k.label("ATT_OK")
            k("s_waitcnt lgkmcnt(0)")
            k("s_barrier")
            k(f"v_mov_b32 v5, {FLAG}")
            k("ds_read_b32 v2, v5")
            k("s_waitcnt lgkmcnt(0)")
            k("v_readfirstlane_b32 s9, v2")
            k("s_cmp_lg_u32 s9, 0")
            k("s_cbranch_scc1 ATT_SLOW")
        k("v_rcp_f32 v3, v3")
        for r in range(12): k(f"v_mul_f32 v{OO+r}, v{OO+r}, v3")
        for q in range(6): k(f"v_cvt_pk_bf16_f32 v{PP+q}, v{OO+2*q}, v{OO+2*q+1}")
        k(f"buffer_store_dwordx2 v[{PP}:{PP+1}], v11, s[24:27], 0 offen")
        k(f"buffer_store_dwordx2 v[{PP+2}:{PP+3}], v11, s[24:27], 0 offen offset:16")
        k("s_mov_b32 exec_hi, 0")
        k(f"buffer_store_dwordx2 v[{PP+4}:{PP+5}], v11, s[24:27], 0 offen offset:32")
        k("s_endpgm")
    import os
    finish(not os.environ.get('ATT_NOCHECK'))

    k.label("ATT_SLOW")
    for r in range(16): k(f"v_mov_b32 v{OO+r}, 0")
    k("v_mov_b32 v2, 0xff7fffff")
    k("s_mov_b32 s15, 0")
    k.label("ATT_SLOW_STAGE")
    k("s_barrier")
    k(f"s_mul_i32 s14, s15, {STAGE}")
    k("s_mov_b32 m0, s13")
    k("s_nop 0")
    for i in range(4):
        k(f"buffer_load_dwordx4 v{VDMA}, s[16:19], s14 offen offset:{i*1024} lds")
    k("s_add_u32 m0, s13, 4096")
    k("s_nop 0")
    for i in range(2):
        k(f"buffer_load_dwordx4 v{VDMA+1}, s[16:19], s14 offen offset:{i*1024} lds")
    k("s_waitcnt vmcnt(0)")
    k("s_barrier")
    k(f"v_mov_b32 v5, v{AK}")
    k(f"v_mov_b32 v6, v{AKB}")
    k(f"v_mov_b32 v7, v{AV}")
    k("s_mov_b32 s9, 0")
    k.label("ATT_SLOW_TILE")
    k(f"ds_read_b128 v[{KA}:{KA+3}], v5")
    k(f"ds_read_b64 v[{KB}:{KB+1}], v6")
    k(f"ds_read_b128 v[{VF}:{VF+3}], v7")
    k(f"ds_read_b128 v[{VF+4}:{VF+7}], v7 offset:672")
    k("s_waitcnt lgkmcnt(0)")
    k(m16(SS, KA, Q1, "0"))
    k(m8(SS, KB, Q2, f"v[{SS}:{SS+15}]"))
    k(f"v_add_u32 v5, {KV_TILE}, v5")
    k(f"v_add_u32 v6, {KV_TILE}, v6")
    k(f"v_add_u32 v7, {KV_TILE}, v7")
    k(f"v_max_f32 v108, v{SS}, v{SS+1}")
    for r in range(2, 16): k(f"v_max_f32 v108, v108, v{SS+r}")
    k("v_mov_b32 v109, v108")
    k("v_permlane32_swap_b32 v108, v109")
    k("v_max_f32 v108, v108, v109")
    k("v_max_f32 v108, v108, v2")
    k("v_sub_f32 v109, v2, v108")
    k("v_exp_f32 v109, v109")
    k("v_mov_b32 v2, v108")
    for r in range(16): k(f"v_sub_f32 v{SS+r}, v{SS+r}, v108")
    for r in range(16): k(f"v_exp_f32 v{SS+r}, v{SS+r}")
    for r in range(16): k(f"v_mul_f32 v{OO+r}, v{OO+r}, v109")
    for q in range(8): k(f"v_cvt_pk_bf16_f32 v{PP+q}, v{SS+2*q}, v{SS+2*q+1}")
    k(m16(OO, VF, PP, f"v[{OO}:{OO+15}]"))
    k(m16(OO, VF + 4, PP + 4, f"v[{OO}:{OO+15}]"))
    k("s_add_u32 s9, s9, 1")
    k("s_cmp_lt_u32 s9, 16")
    k("s_cbranch_scc1 ATT_SLOW_TILE")
    k("s_add_u32 s15, s15, 1")
    k("s_cmp_lt_u32 s15, 4")
    k("s_cbranch_scc1 ATT_SLOW_STAGE")
    finish(False)
    k.label("ATT_END")
    k("s_endpgm")
    k.fix_hazards()
    return name, header(name) + k.text() + descriptor(name, 120), (256, 512, 3 * STAGE + 2048)
```

```python
from common import *
import struct
def f2u(x): return struct.unpack('<I', struct.pack('<f', x))[0]

VA_DMA = 8
VB_DMA = 12
VA_RD  = 18
VB_RD  = 22
AF     = 28
BF     = 36
def mfma(d, a, b, c=None):
    cc = f"v[{d}:{d+15}]" if c is None else c
    return f"v_mfma_f32_32x32x16_bf16 v[{d}:{d+15}], v[{a}:{a+3}], v[{b}:{b+3}], {cc}"

def wave_ids(k):
    k("v_and_b32 v1, 63, v0             ; lane")
    k("v_lshrrev_b32 v2, 6, v0")
    k("s_nop 0")
    k("v_readfirstlane_b32 s8, v2")

def a_dma_setup(k, rt_sgpr, lda):
    k("v_lshrrev_b32 v2, 3, v1")
    k("v_lshrrev_b32 v3, 4, v1")
    k("v_and_b32 v4, 7, v1")
    k(f"s_lshl_b32 s9, s{rt_sgpr}, 7")
    k("s_lshl_b32 s10, s8, 5")
    k("s_add_u32 s9, s9, s10")
    k("v_add_u32 v2, s9, v2")
    k(f"s_mov_b32 s10, {lda}")
    k("v_mul_lo_u32 v2, s10, v2")
    for i in range(4):
        k(f"v_xor_b32 v5, {(i&1)*4}, v3")
        k("v_xor_b32 v5, v5, v4")
        k("v_lshlrev_b32 v5, 4, v5")
        k(f"v_add_u32 v5, {i*8*lda - i*1024}, v5")
        k(f"v_add_u32 v{VA_DMA+i}, v2, v5")

def a_rd_setup(k):
    k("v_and_b32 v2, 31, v1             ; row")
    k("v_lshrrev_b32 v3, 5, v1          ; half")
    k("v_bfe_u32 v4, v2, 1, 3           ; swizzle")
    k("v_lshlrev_b32 v2, 7, v2")
    k("s_lshl_b32 s10, s8, 12")
    k("v_add_u32 v2, s10, v2")
    for ks in range(4):
        k(f"v_add_u32 v5, {2*ks}, v3")
        k("v_xor_b32 v5, v5, v4")
        k(f"v_lshl_add_u32 v{VA_RD+ks}, v5, 4, v2")

class Pipe:
    def __init__(self, k, NT, ACC, swap, rd_a, rd_b, dma, ndma, nslots=4):
        self.k, self.NT, self.ACC, self.swap = k, NT, ACC, swap
        self.rd_a, self.rd_b, self.dma, self.ndma = rd_a, rd_b, dma, ndma
    def frag_reads(self, step):
        st, ks = divmod(step, 4)
        setb = step & 1
        out = [self.rd_a(AF + 4 * setb, st, ks)]
        for nt in range(self.NT):
            base = BF + (setb * self.NT + nt) * 4
            out += self.rd_b(base, st, ks, nt)
        return out
    def run(self, nstages=10):
        k, NT = self.k, self.NT
        nd = self.ndma
        for st in range(3): self.dma(st)
        k(f"s_waitcnt vmcnt({2*nd})")
        k("s_barrier")
        for r in self.frag_reads(0): k(r)
        total = nstages * 4
        per_step = 1 + 2 * NT
        for step in range(total):
            st, ks = divmod(step, 4)
            setb = step & 1
            nxt = self.frag_reads(step + 1) if step + 1 < total else []
            issued_next = 0
            for nt in range(NT):
                outstanding = 2 * (NT - 1 - nt) + issued_next
                k(f"s_waitcnt lgkmcnt({min(outstanding, 15)})")
                af = AF + 4 * setb; bf = BF + (setb * NT + nt) * 4
                c = "0" if step == 0 else None
                d = self.ACC + 16 * nt
                k(mfma(d, af, bf, c) if self.swap(nt) else mfma(d, bf, af, c))
                if nxt:
                    grp = nxt[0:3] if nt == 0 else nxt[1 + 2 * nt: 3 + 2 * nt]
                    for r in grp: k(r)
                    issued_next += len(grp)
                if ks == 1 and nt == 0 and st + 1 < nstages:
                    left = nd if st + 2 < nstages else 0
                    k(f"s_waitcnt vmcnt({left})")
                    k("s_barrier")
                    if st + 3 < nstages: self.dma(st + 3)

def gen_qkv():
    name = "qkv_kernel"
    k = K()
    NT = 4; ACC = 72
    k("s_cmp_ge_u32 s2, 256")
    k("s_cbranch_scc1 QKV_END")
    k("s_and_b32 s3, s2, 7")
    k("s_lshr_b32 s4, s2, 3")
    k("s_and_b32 s5, s3, 3")
    k("s_lshl_b32 s5, s5, 2")
    k("s_and_b32 s6, s4, 3")
    k("s_add_u32 s11, s5, s6")
    k("s_lshr_b32 s5, s3, 2")
    k("s_lshl_b32 s5, s5, 3")
    k("s_lshr_b32 s6, s4, 2")
    k("s_add_u32 s12, s5, s6")
    k("s_cmp_ge_u32 s12, 15")
    k("s_cbranch_scc1 QKV_END")
    k(f"s_load_dwordx2 s[4:5], s[0:1], {KA_WS}")
    k(f"s_load_dwordx2 s[6:7], s[0:1], {KA_WQKV}")
    wave_ids(k)
    a_dma_setup(k, 11, 1280)
    a_rd_setup(k)
    k("v_lshrrev_b32 v2, 4, v1")
    k("v_bfe_u32 v3, v1, 2, 2")
    k("v_xor_b32 v3, v3, v2")
    k("v_lshlrev_b32 v3, 6, v3")
    k("v_and_b32 v4, 3, v1")
    k("v_lshl_add_u32 v3, v4, 4, v3")
    k("s_lshl_b32 s9, s8, 4")
    k("v_add_u32 v2, s9, v2")
    k("v_mul_u32_u24 v2, 3840, v2")
    k("s_lshl_b32 s9, s12, 8")
    k("v_add3_u32 v2, v2, v3, s9")
    for i in range(4):
        k(f"v_add_u32 v{VB_DMA+i}, {i*(4*3840-1024)}, v2")
    k("v_lshrrev_b32 v2, 5, v1          ; k half")
    k("v_bfe_u32 v3, v1, 2, 2           ; r4")
    k("v_lshl_add_u32 v2, v2, 3, v3")
    k("v_lshlrev_b32 v2, 8, v2")
    k("v_bfe_u32 v4, v1, 4, 1")
    k("v_lshl_add_u32 v2, v4, 5, v2")
    k("v_and_b32 v4, 3, v1")
    k("v_lshl_add_u32 v2, v4, 3, v2")
    k("v_add_u32 v2, 65536, v2")
    for nt in range(4):
        k(f"v_xor_b32 v4, {nt}, v3")
        k(f"v_lshl_add_u32 v{VB_RD+nt}, v4, 6, v2")
    k("s_waitcnt lgkmcnt(0)")
    srd(k, 16, 4, S * D * 2, WS_H)
    srd(k, 20, 6, 640 * 3840)
    k("s_lshl_b32 s13, s8, 12")
    def dma(st):
        slot = st % 4
        k(f"s_add_u32 m0, s13, {slot*16384}")
        k(f"s_mov_b32 s14, {st*128}")
        for i in range(4):
            k(f"buffer_load_dwordx4 v{VA_DMA+i}, s[16:19], s14 offen offset:{i*1024} lds")
        k(f"s_add_u32 m0, s13, {65536 + slot*16384}")
        k(f"s_mov_b32 s14, {st*64*3840}")
        for i in range(4):
            k(f"buffer_load_dwordx4 v{VB_DMA+i}, s[20:23], s14 offen offset:{i*1024} lds")
    rd_a = lambda dst, st, ks: f"ds_read_b128 v[{dst}:{dst+3}], v{VA_RD+ks} offset:{(st%4)*16384}"
    rd_b = lambda dst, st, ks, nt: [
        f"ds_read_b64_tr_b16 v[{dst+2*j}:{dst+2*j+1}], v{VB_RD+nt} offset:{(st%4)*16384 + (16*ks+4*j)*256}" for j in range(2)]
    k("s_cmp_ge_u32 s12, 10")
    k("s_cbranch_scc1 QKV_V")
    Pipe(k, NT, ACC, lambda nt: False, rd_a, rd_b, dma, 8).run()
    k("s_nop 7")
    k("s_cmp_ge_u32 s12, 5")
    k("s_cbranch_scc1 QKV_K")
    srd(k, 24, 4, S * D * 2, WS_Q)
    k("v_and_b32 v2, 31, v1")
    k("s_lshl_b32 s9, s11, 7")
    k("s_lshl_b32 s10, s8, 5")
    k("s_add_u32 s9, s9, s10")
    k("v_add_u32 v2, s9, v2             ; token")
    k("v_mul_u32_u24 v2, 1280, v2")
    k("v_lshrrev_b32 v3, 5, v1")
    k("v_lshlrev_b32 v3, 4, v3")
    k("s_lshl_b32 s9, s12, 8")
    k("v_add3_u32 v2, v2, v3, s9")
    qscale = 1.4426950408889634 / (20 ** 0.5)
    k(f"s_mov_b32 s10, {hex(f2u(qscale))}")
    for nt in range(4):
        for jp in range(2):
            a = ACC + 16 * nt + 8 * jp
            for r in range(8): k(f"v_mul_f32 v{a+r}, s10, v{a+r}")
            t = 28 + 4 * ((2 * nt + jp) % 2)
            k(f"v_cvt_pk_bf16_f32 v{t}, v{a}, v{a+1}")
            k(f"v_cvt_pk_bf16_f32 v{t+1}, v{a+2}, v{a+3}")
            k(f"v_cvt_pk_bf16_f32 v{t+2}, v{a+4}, v{a+5}")
            k(f"v_cvt_pk_bf16_f32 v{t+3}, v{a+6}, v{a+7}")
            k(f"v_permlane32_swap_b32 v{t}, v{t+2}")
            k(f"v_permlane32_swap_b32 v{t+1}, v{t+3}")
            k(f"buffer_store_dwordx4 v[{t}:{t+3}], v2, s[24:27], 0 offen offset:{64*nt + 32*jp}")
    k("s_endpgm")
    k.label("QKV_K")
    srd(k, 24, 4, 32 * KV_HEAD, WS_KV)
    k("s_lshl_b32 s9, s11, 2")
    k("s_add_u32 s9, s9, s8")
    k(f"s_mul_i32 s9, s9, {KV_TILE}")
    k("v_and_b32 v2, 31, v1             ; key")
    k("v_lshrrev_b32 v3, 5, v1          ; half")
    k("s_sub_u32 s10, s12, 5")
    k("s_lshl_b32 s10, s10, 5")
    k("v_add_u32 v3, s10, v3")
    for nt in range(4):
        for j in range(4):
            a = ACC + 16 * nt + 4 * j
            t = 28 + 2 * (j % 4)
            k(f"v_cvt_pk_bf16_f32 v{t}, v{a}, v{a+1}")
            k(f"v_cvt_pk_bf16_f32 v{t+1}, v{a+2}, v{a+3}")
            k(f"v_add_u32 v4, {8*nt+2*j}, v3")
            k("v_mul_u32_u24 v5, 205, v4")
            k("v_lshrrev_b32 v5, 10, v5            ; head")
            k("v_mul_u32_u24 v6, 5, v5")
            k("v_sub_u32 v6, v4, v6                ; dq")
            k("v_lshrrev_b32 v7, 1, v6")
            k("v_lshlrev_b32 v7, 9, v7")
            k("v_and_b32 v26, 1, v6")
            k("v_lshl_add_u32 v7, v26, 3, v7")
            k("v_cmp_eq_u32 vcc, 4, v6")
            k("v_lshlrev_b32 v26, 4, v2")
            k("v_lshlrev_b32 v27, 3, v2")
            k("v_cndmask_b32 v26, v26, v27, vcc")
            k(f"s_mov_b32 s10, {KV_HEAD}")
            k("v_mul_lo_u32 v5, s10, v5")
            k("v_add3_u32 v7, v7, v26, v5")
            k(f"buffer_store_dwordx2 v[{t}:{t+1}], v7, s[24:27], s9 offen")
    k("s_endpgm")
    k.label("QKV_V")
    Pipe(k, NT, ACC, lambda nt: True, rd_a, rd_b, dma, 8).run()
    k("s_nop 7")
    srd(k, 24, 4, 32 * KV_HEAD, WS_KV)
    k("s_lshl_b32 s9, s11, 2")
    k("s_add_u32 s9, s9, s8")
    k(f"s_mul_i32 s9, s9, {KV_TILE}")
    k("s_add_u32 s9, s9, 1280")
    k("v_and_b32 v2, 31, v1")
    k("v_lshrrev_b32 v3, 5, v1          ; half")
    k("v_mul_u32_u24 v3, 336, v3")
    k("s_sub_u32 s10, s12, 10")
    k("s_lshl_b32 s10, s10, 7")
    k("v_add_u32 v2, s10, v2")
    for nt in range(4):
        k(f"v_add_u32 v4, {32*nt}, v2")
        k("v_mul_u32_u24 v5, 3277, v4")
        k("v_lshrrev_b32 v5, 16, v5")
        k("v_mul_u32_u24 v6, 20, v5")
        k("v_sub_u32 v6, v4, v6                ; d")
        k(f"s_mov_b32 s10, {KV_HEAD}")
        k("v_mul_lo_u32 v5, s10, v5")
        k("v_lshlrev_b32 v6, 4, v6")
        k("v_add3_u32 v7, v5, v6, v3")
        for m in range(2):
            a = ACC + 16 * nt + 8 * m
            t = 28 + 4 * m
            for q in range(4):
                k(f"v_cvt_pk_bf16_f32 v{t+q}, v{a+2*q}, v{a+2*q+1}")
            k(f"buffer_store_dwordx4 v[{t}:{t+3}], v7, s[24:27], s9 offen offset:{672*m}")
    k.label("QKV_END")
    k("s_endpgm")
    k.fix_hazards()
    assert all((c * 3277) >> 16 == c // 20 for c in range(640))
    assert all((q * 205) >> 10 == q // 5 for q in range(170))
    return name, header(name) + k.text() + descriptor(name, ACC + 64), (256, 256, 131072)

def gen_up():
    name = "up_kernel"
    k = K()
    NT = 6; ACC = 88
    k("s_cmp_ge_u32 s2, 256")
    k("s_cbranch_scc1 UP_END")
    k("s_and_b32 s3, s2, 7")
    k("s_lshr_b32 s4, s2, 3")
    k("s_and_b32 s5, s3, 1")
    k("s_lshl_b32 s5, s5, 3")
    k("s_and_b32 s6, s4, 7")
    k("s_add_u32 s11, s5, s6")
    k("s_lshr_b32 s5, s3, 1")
    k("s_lshl_b32 s5, s5, 2")
    k("s_lshr_b32 s6, s4, 3")
    k("s_add_u32 s12, s5, s6")
    k(f"s_load_dwordx2 s[4:5], s[0:1], {KA_WS}")
    wave_ids(k)
    a_dma_setup(k, 11, 1280)
    a_rd_setup(k)
    k("v_lshlrev_b32 v2, 4, v1")
    k("s_mul_i32 s9, s8, 6144")
    k(f"s_mul_i32 s10, s12, {10*24576}")
    k("s_add_u32 s9, s9, s10")
    k(f"v_add_u32 v{VB_DMA}, s9, v2")
    k(f"v_add_u32 v{VB_DMA+1}, 4096, v{VB_DMA}")
    k("v_lshrrev_b32 v2, 5, v1")
    k("v_bfe_u32 v3, v1, 2, 2")
    k("v_lshl_add_u32 v2, v2, 3, v3")
    k("v_mul_u32_u24 v2, 192, v2")
    k("v_bfe_u32 v4, v1, 4, 1")
    k("v_lshl_add_u32 v2, v4, 5, v2")
    k("v_and_b32 v4, 3, v1")
    k("v_lshl_add_u32 v2, v4, 3, v2")
    k(f"v_add_u32 v{VB_RD}, 65536, v2")
    k(f"v_add_u32 v{VB_RD+1}, {65536+49152}, v2")
    k("s_waitcnt lgkmcnt(0)")
    srd(k, 16, 4, S * D * 2, WS_H)
    srd(k, 20, 4, 16 * 10 * 24576, WS_WUP)
    k("s_lshl_b32 s13, s8, 12")
    k("s_mul_i32 s15, s8, 6144")
    def dma(st):
        slot = st % 4
        k(f"s_add_u32 m0, s13, {slot*16384}")
        k(f"s_mov_b32 s14, {st*128}")
        for i in range(4):
            k(f"buffer_load_dwordx4 v{VA_DMA+i}, s[16:19], s14 offen offset:{i*1024} lds")
        k(f"s_add_u32 m0, s15, {65536 + slot*24576}")
        k(f"s_mov_b32 s14, {st*24576}")
        for i in range(4):
            k(f"buffer_load_dwordx4 v{VB_DMA}, s[20:23], s14 offen offset:{i*1024} lds")
        k(f"s_add_u32 m0, s15, {65536 + slot*24576 + 4096}")
        k("s_nop 0")
        for i in range(2):
            k(f"buffer_load_dwordx4 v{VB_DMA+1}, s[20:23], s14 offen offset:{i*1024} lds")
    rd_a = lambda dst, st, ks: f"ds_read_b128 v[{dst}:{dst+3}], v{VA_RD+ks} offset:{(st%4)*16384}"
    def rd_b(dst, st, ks, nt):
        slot = st % 4
        base = VB_RD + (slot >> 1)
        off = (slot & 1) * 24576 + (nt // 3) * 12288 + (nt % 3) * 64
        return [f"ds_read_b64_tr_b16 v[{dst+2*j}:{dst+2*j+1}], v{base} offset:{off + (16*ks+4*j)*192}" for j in range(2)]
    Pipe(k, NT, ACC, lambda nt: False, rd_a, rd_b, dma, 10).run()
    k("s_nop 7")
    srd(k, 24, 4, S * F * 2, WS_G)
    k("v_and_b32 v2, 31, v1")
    k("s_lshl_b32 s9, s11, 7")
    k("s_lshl_b32 s10, s8, 5")
    k("s_add_u32 s9, s9, s10")
    k("v_add_u32 v2, s9, v2             ; token")
    k("v_mul_u32_u24 v2, 3072, v2")
    k("v_lshrrev_b32 v3, 5, v1")
    k("v_lshlrev_b32 v3, 4, v3")
    k("s_mul_i32 s9, s12, 192")
    k("v_add3_u32 v2, v2, v3, s9")
    c1 = -2.0 * 0.7978845608028654 * 1.4426950408889634
    c2 = c1 * 0.044715
    k(f"s_mov_b32 s9, {hex(f2u(c1))}")
    k(f"s_mov_b32 s10, {hex(f2u(c2))}")
    k("v_mov_b32 v3, s9")
    for nt in range(3):
        for jp in range(2):
            g = ACC + 16 * nt + 8 * jp; u = g + 48
            T = 36
            for r in range(8): k(f"v_mul_f32 v{T+r}, v{g+r}, v{g+r}")
            for r in range(8): k(f"v_fma_f32 v{T+r}, v{T+r}, s10, v3")
            for r in range(8): k(f"v_mul_f32 v{T+r}, v{T+r}, v{g+r}")
            for r in range(8): k(f"v_exp_f32 v{T+r}, v{T+r}")
            for r in range(8): k(f"v_add_f32 v{T+r}, 1.0, v{T+r}")
            for r in range(8): k(f"v_rcp_f32 v{T+r}, v{T+r}")
            for r in range(8): k(f"v_mul_f32 v{g+r}, v{g+r}, v{u+r}")
            for r in range(8): k(f"v_mul_f32 v{T+r}, v{T+r}, v{g+r}")
            t = 28 + 4 * ((2 * nt + jp) % 2)
            for q in range(4): k(f"v_cvt_pk_bf16_f32 v{t+q}, v{T+2*q}, v{T+2*q+1}")
            k(f"v_permlane32_swap_b32 v{t}, v{t+2}")
            k(f"v_permlane32_swap_b32 v{t+1}, v{t+3}")
            k(f"buffer_store_dwordx4 v[{t}:{t+3}], v2, s[24:27], 0 offen offset:{64*nt + 32*jp}")
    k.label("UP_END")
    k("s_endpgm")
    k.fix_hazards()
    return name, header(name) + k.text() + descriptor(name, ACC + 96), (256, 256, 163840)
```

```python
from common import *

def mfma16(d, a, b, c=None):
    cc = f"v[{d}:{d+3}]" if c is None else c
    return f"v_mfma_f32_16x16x32_bf16 v[{d}:{d+3}], v[{a}:{a+3}], v[{b}:{b+3}], {cc}"

def gen_narrow(name, Kdim, a_off, b_off, resid_is_input, gate_idx, out_is_output):
    k = K()
    KH = Kdim // 2; NST = KH // 64; lda = Kdim * 2
    VA_DMA, VB_DMA, VA_RD, VB_RD = 8, 12, 14, 16
    AF, BF, ACC = 20, 36, 76
    RES, GT = 116, 128
    END = f"{name}_END"
    k("s_cmp_ge_u32 s2, 256")
    k(f"s_cbranch_scc1 {END}")
    k("s_and_b32 s3, s2, 7")
    k("s_lshr_b32 s4, s2, 3")
    k("s_and_b32 s5, s3, 3")
    k("s_lshl_b32 s5, s5, 3")
    k("s_and_b32 s6, s4, 7")
    k("s_add_u32 s11, s5, s6")
    k("s_lshr_b32 s5, s3, 2")
    k("s_lshl_b32 s5, s5, 2")
    k("s_lshr_b32 s6, s4, 3")
    k("s_add_u32 s12, s5, s6")
    k(f"s_load_dwordx2 s[4:5], s[0:1], {KA_WS}")
    if resid_is_input: k(f"s_load_dwordx2 s[6:7], s[0:1], {KA_X}")
    if out_is_output: k(f"s_load_dwordx2 s[6:7], s[0:1], {KA_OUT}")
    k("v_and_b32 v1, 63, v0")
    k("v_lshrrev_b32 v2, 6, v0")
    k("s_nop 0")
    k("v_readfirstlane_b32 s8, v2       ; wave")
    k("s_and_b32 s28, s8, 1")
    k("s_lshr_b32 s29, s8, 1            ; k half")
    k("v_lshrrev_b32 v2, 3, v1")
    k("v_lshrrev_b32 v3, 4, v1")
    k("v_and_b32 v4, 7, v1")
    k("s_lshl_b32 s9, s11, 6")
    k("s_lshl_b32 s10, s28, 5")
    k("s_add_u32 s30, s9, s10")
    k("v_add_u32 v2, s30, v2")
    k(f"s_mov_b32 s10, {lda}")
    k("v_mul_lo_u32 v2, s10, v2")
    k(f"s_mul_i32 s10, s29, {KH*2}")
    k("v_add_u32 v2, s10, v2")
    for i in range(4):
        k(f"v_xor_b32 v5, {(i&1)*4}, v3")
        k("v_xor_b32 v5, v5, v4")
        k("v_lshlrev_b32 v5, 4, v5")
        k(f"v_add_u32 v5, {i*8*lda - i*1024}, v5")
        k(f"v_add_u32 v{VA_DMA+i}, v2, v5")
    k("v_lshlrev_b32 v2, 4, v1")
    k(f"s_mul_i32 s9, s12, {Kdim*160}")
    k(f"s_mul_i32 s10, s29, {KH*160}")
    k("s_add_u32 s9, s9, s10")
    k("s_mul_i32 s10, s28, 5120")
    k("s_add_u32 s9, s9, s10")
    k(f"v_add_u32 v{VB_DMA}, s9, v2")
    k(f"v_add_u32 v{VB_DMA+1}, 4096, v{VB_DMA}")
    k("v_and_b32 v2, 15, v1")
    k("v_lshrrev_b32 v3, 4, v1          ; g")
    k("v_lshrrev_b32 v4, 1, v2          ; swizzle")
    k("v_lshlrev_b32 v2, 7, v2")
    k("s_lshl_b32 s13, s8, 12")
    k("v_add_u32 v2, s13, v2")
    for ks in range(2):
        k(f"v_add_u32 v5, {4*ks}, v3")
        k("v_xor_b32 v5, v5, v4")
        k(f"v_lshl_add_u32 v{VA_RD+ks}, v5, 4, v2")
    k("v_lshrrev_b32 v2, 5, v1")
    k("v_lshlrev_b32 v2, 4, v2")
    k("v_bfe_u32 v4, v1, 4, 1")
    k("v_lshl_add_u32 v2, v4, 2, v2")
    k("v_bfe_u32 v4, v1, 2, 2")
    k("v_add_u32 v2, v2, v4")
    k("v_mul_u32_u24 v2, 160, v2")
    k("v_and_b32 v4, 3, v1")
    k("v_lshl_add_u32 v2, v4, 3, v2")
    k("s_mul_i32 s10, s29, 10240")
    k("s_add_u32 s10, s10, 65536")
    k(f"v_add_u32 v{VB_RD}, s10, v2")
    k(f"v_add_u32 v{VB_RD+1}, 40960, v{VB_RD}")
    k("s_mul_i32 s15, s29, 10240")
    k("s_mul_i32 s10, s28, 5120")
    k("s_add_u32 s15, s15, s10")
    k("v_and_b32 v2, 15, v1")
    k("s_lshl_b32 s10, s29, 4")
    k("s_add_u32 s10, s10, s30")
    k("v_add_u32 v2, s10, v2")
    k("v_mul_u32_u24 v6, 1280, v2")
    k("s_mul_i32 s10, s12, 160")
    k("v_lshl_add_u32 v6, v3, 3, v6")
    k("v_add_u32 v6, s10, v6")
    k("s_mul_i32 s10, s12, 320")
    k("v_lshlrev_b32 v7, 4, v3")
    k("v_add_u32 v7, s10, v7")
    k("s_waitcnt lgkmcnt(0)")
    srd(k, 16, 4, S * Kdim * 2, a_off)
    srd(k, 20, 4, 8 * Kdim * 160, b_off)
    if resid_is_input: srd(k, 24, 6, S * D * 2)
    else: srd(k, 24, 4, S * D * 2, WS_X1)
    if out_is_output: srd(k, 32, 6, S * D * 2)
    else: srd(k, 32, 4, S * D * 2, WS_X1)
    srd(k, 36, 4, 6 * 640 * 4, WS_MODV)
    def dma(st):
        slot = st % 4
        k(f"s_add_u32 m0, s13, {slot*16384}")
        k(f"s_mov_b32 s14, {st*128}")
        for i in range(4):
            k(f"buffer_load_dwordx4 v{VA_DMA+i}, s[16:19], s14 offen offset:{i*1024} lds")
        k(f"s_add_u32 m0, s15, {65536 + slot*20480}")
        k(f"s_mov_b32 s14, {st*10240}")
        for i in range(4):
            k(f"buffer_load_dwordx4 v{VB_DMA}, s[20:23], s14 offen offset:{i*1024} lds")
        k(f"s_add_u32 m0, s15, {65536 + slot*20480 + 4096}")
        k("s_nop 0")
        k(f"buffer_load_dwordx4 v{VB_DMA+1}, s[20:23], s14 offen lds")
    ND = 9
    def reads(step):
        st, ks = divmod(step, 2); slot = st % 4; sb = step & 1
        out = []
        for mb in range(2):
            d = AF + (sb * 2 + mb) * 4
            out.append(f"ds_read_b128 v[{d}:{d+3}], v{VA_RD+ks} offset:{slot*16384 + mb*2048}")
        for nt in range(5):
            d = BF + (sb * 5 + nt) * 4
            base = VB_RD + (slot >> 1)
            for j in range(2):
                off = (slot & 1) * 20480 + (32 * ks + 8 * j) * 160 + nt * 32
                out.append(f"ds_read_b64_tr_b16 v[{d+2*j}:{d+2*j+1}], v{base} offset:{off}")
        return out
    for nt in range(5):
        k(f"buffer_load_dwordx2 v[{RES+2*nt}:{RES+2*nt+1}], v6, s[24:27], 0 offen offset:{32*nt}")
    k(f"s_mov_b32 s14, {gate_idx*2560}")
    for nt in range(5):
        k(f"buffer_load_dwordx4 v[{GT+4*nt}:{GT+4*nt+3}], v7, s[36:39], s14 offen offset:{64*nt}")
    for st in range(min(3, NST)): dma(st)
    k(f"s_waitcnt vmcnt({ND*(min(3,NST)-1)})")
    k("s_barrier")
    for r in reads(0): k(r)
    total = NST * 2
    for step in range(total):
        st, ks = divmod(step, 2); sb = step & 1
        nxt = reads(step + 1) if step + 1 < total else []
        issued = 0
        for nt in range(5):
            outstanding = 2 * (4 - nt) + issued
            k(f"s_waitcnt lgkmcnt({min(outstanding, 15)})")
            for mb in range(2):
                d = ACC + (nt * 2 + mb) * 4
                k(mfma16(d, BF + (sb * 5 + nt) * 4, AF + (sb * 2 + mb) * 4, "0" if step == 0 else None))
            if nxt:
                grp = nxt[0:4] if nt == 0 else nxt[2 + 2 * nt: 4 + 2 * nt]
                for r in grp: k(r)
                issued += len(grp)
            if ks == 0 and nt == 0 and st + 1 < NST:
                left = ND if st + 2 < NST else 0
                k(f"s_waitcnt vmcnt({left})")
                k("s_barrier")
                if st + 3 < NST: dma(st + 3)
    k("s_nop 7")
    k("s_barrier")
    k("v_lshlrev_b32 v2, 4, v1")
    k("s_mul_i32 s9, s8, 5120")
    k("v_add_u32 v3, s9, v2")
    k("s_xor_b32 s10, s8, 2")
    k("s_mul_i32 s10, s10, 5120")
    k("v_add_u32 v4, s10, v2")
    k("s_cmp_eq_u32 s29, 0")
    k(f"s_cbranch_scc1 {name}_KH0")
    for nt in range(5):
        d = ACC + (nt * 2 + 0) * 4
        k(f"ds_write_b128 v3, v[{d}:{d+3}] offset:{1024*nt}")
    for nt in range(5):
        for r in range(4): k(f"v_mov_b32 v{ACC+(nt*2)*4+r}, v{ACC+(nt*2+1)*4+r}")
    k(f"s_branch {name}_JOIN")
    k.label(f"{name}_KH0")
    for nt in range(5):
        d = ACC + (nt * 2 + 1) * 4
        k(f"ds_write_b128 v3, v[{d}:{d+3}] offset:{1024*nt}")
    k.label(f"{name}_JOIN")
    k("s_waitcnt lgkmcnt(0)")
    k("s_barrier")
    for nt in range(5):
        k(f"ds_read_b128 v[{BF+4*nt}:{BF+4*nt+3}], v4 offset:{1024*nt}")
    k("s_waitcnt lgkmcnt(0)")
    for nt in range(5):
        d = ACC + nt * 8
        for r in range(4): k(f"v_add_f32 v{d+r}, v{d+r}, v{BF+4*nt+r}")
        k(f"v_lshlrev_b32 v20, 16, v{RES+2*nt}")
        k(f"v_and_b32 v21, 0xffff0000, v{RES+2*nt}")
        k(f"v_lshlrev_b32 v22, 16, v{RES+2*nt+1}")
        k(f"v_and_b32 v23, 0xffff0000, v{RES+2*nt+1}")
        for r in range(4): k(f"v_fmac_f32 v{20+r}, v{d+r}, v{GT+4*nt+r}")
        k(f"v_cvt_pk_bf16_f32 v{24+2*(nt%2)}, v20, v21")
        k(f"v_cvt_pk_bf16_f32 v{25+2*(nt%2)}, v22, v23")
        k(f"buffer_store_dwordx2 v[{24+2*(nt%2)}:{25+2*(nt%2)}], v6, s[32:35], 0 offen offset:{32*nt}")
    k.label(END)
    k("s_endpgm")
    k.fix_hazards()
    return name, header(name) + k.text() + descriptor(name, 148), (256, 256, 147456)

def gen_wo(): return gen_narrow("wo_kernel", 640, WS_O, WS_WOP, True, 2, False)
def gen_down(): return gen_narrow("down_kernel", 1536, WS_G, WS_WDP, False, 5, True)
```

```python
from common import *

def gen_ln(name, src_is_input, mod_s, mod_g):
    k = K()
    k("s_cmp_ge_u32 s2, 256")
    k(f"s_cbranch_scc1 {name}_END")
    k(f"s_load_dwordx2 s[4:5], s[0:1], {KA_WS}")
    if src_is_input:
        k(f"s_load_dwordx2 s[6:7], s[0:1], {KA_X}")
    k("v_lshrrev_b32 v1, 4, v0")
    k("s_lshl_b32 s10, s2, 3")
    k("v_add_u32 v1, s10, v1")
    k("v_mul_u32_u24 v1, 1280, v1")
    k("v_and_b32 v2, 15, v0")
    k("v_lshlrev_b32 v3, 4, v2")
    k("v_add_u32 v1, v1, v3")
    k("v_lshlrev_b32 v4, 5, v2")
    k("s_waitcnt lgkmcnt(0)")
    if src_is_input:
        srd(k, 16, 6, S * D * 2)
    else:
        srd(k, 16, 4, S * D * 2, WS_X1)
    srd(k, 20, 4, 6 * 640 * 4, WS_MODV)
    srd(k, 24, 4, S * D * 2, WS_H)
    X = 8
    for i in range(5):
        k(f"buffer_load_dwordx4 v[{X+4*i}:{X+4*i+3}], v1, s[16:19], 0 offen offset:{256*i}")
    Gm, Sm = 80, 120
    for i in range(5):
        for hh in range(2):
            k(f"s_mov_b32 s11, {mod_g*2560 + 512*i + 16*hh}")
            k(f"buffer_load_dwordx4 v[{Gm+8*i+4*hh}:{Gm+8*i+4*hh+3}], v4, s[20:23], s11 offen")
            k(f"s_mov_b32 s11, {mod_s*2560 + 512*i + 16*hh}")
            k(f"buffer_load_dwordx4 v[{Sm+8*i+4*hh}:{Sm+8*i+4*hh+3}], v4, s[20:23], s11 offen")
    E = 32
    k("s_waitcnt vmcnt(20)")
    for r in range(20):
        k(f"v_lshlrev_b32 v{E+2*r}, 16, v{X+r}")
        k(f"v_and_b32 v{E+2*r+1}, 0xffff0000, v{X+r}")
    k(f"v_add_f32 v5, v{E}, v{E+1}")
    k(f"v_add_f32 v6, v{E+2}, v{E+3}")
    for r in range(4, 40, 2):
        k(f"v_add_f32 v5, v5, v{E+r}")
        k(f"v_add_f32 v6, v6, v{E+r+1}")
    k("v_add_f32 v5, v5, v6")
    for rot in (1, 2, 4, 8):
        k(f"v_add_f32_dpp v5, v5, v5 row_ror:{rot} row_mask:0xf bank_mask:0xf")
    k(f"s_mov_b32 s11, {hex(__import__('struct').unpack('<I', __import__('struct').pack('<f', 1.0/640))[0])}")
    k("v_mul_f32 v5, s11, v5            ; mean")
    for r in range(40):
        k(f"v_sub_f32 v{E+r}, v{E+r}, v5")
    k(f"v_mul_f32 v6, v{E}, v{E}")
    k(f"v_mul_f32 v7, v{E+1}, v{E+1}")
    for r in range(2, 40, 2):
        k(f"v_fmac_f32 v6, v{E+r}, v{E+r}")
        k(f"v_fmac_f32 v7, v{E+r+1}, v{E+r+1}")
    k("v_add_f32 v6, v6, v7")
    for rot in (1, 2, 4, 8):
        k(f"v_add_f32_dpp v6, v6, v6 row_ror:{rot} row_mask:0xf bank_mask:0xf")
    k("v_mov_b32 v7, 0x3727c5ac          ; eps 1e-5")
    k("v_fmac_f32 v7, s11, v6")
    k("v_rsq_f32 v7, v7")
    k("s_waitcnt vmcnt(0)")
    for r in range(40):
        k(f"v_mul_f32 v{E+r}, v{E+r}, v7")
    for r in range(40):
        k(f"v_fma_f32 v{E+r}, v{E+r}, v{Gm+r}, v{Sm+r}")
    for r in range(20):
        k(f"v_cvt_pk_bf16_f32 v{X+r}, v{E+2*r}, v{E+2*r+1}")
    for i in range(5):
        k(f"buffer_store_dwordx4 v[{X+4*i}:{X+4*i+3}], v1, s[24:27], 0 offen offset:{256*i}")
    k.label(f"{name}_END")
    k("s_endpgm")
    k.fix_hazards()
    return name, header(name) + k.text() + descriptor(name, 160), (256, 128, 0)
```

```python
from common import *

N_GEMV, N_WO, N_WD, N_WG, N_WU, N_ONES = 240, 25, 60, 60, 60, 4
PREP_GRID = N_GEMV + N_WO + N_WD + N_WG + N_WU + N_ONES

def gen_prep():
    name = "prep_kernel"
    k = K()
    k(f"s_cmp_ge_u32 s2, {PREP_GRID}")
    k("s_cbranch_scc1 PREP_END")
    k(f"s_load_dwordx2 s[4:5], s[0:1], {KA_WS}")
    k(f"s_cmp_ge_u32 s2, {N_GEMV}")
    k("s_cbranch_scc1 PREP_REPACK")
    k(f"s_load_dwordx2 s[6:7], s[0:1], {KA_C}")
    k(f"s_load_dwordx2 s[8:9], s[0:1], {KA_WMOD}")
    k("s_and_b32 s10, s2, 7")
    k("s_lshr_b32 s11, s2, 3")
    k("s_mul_i32 s10, s10, 30")
    k("s_add_u32 s10, s10, s11")
    k("v_lshrrev_b32 v1, 1, v0")
    k("v_and_b32 v2, 1, v0")
    k("v_lshlrev_b32 v3, 1, v1")
    k("v_mul_u32_u24 v4, 7680, v1")
    k("v_lshlrev_b32 v5, 4, v2")
    k("s_lshl_b32 s12, s10, 5")
    k("v_add3_u32 v4, v4, v5, s12")
    k("s_waitcnt lgkmcnt(0)")
    srd(k, 16, 6, 1280)
    srd(k, 20, 8, 640 * 7680)
    srd(k, 24, 4, 6 * 640 * 4, WS_MODV)
    for i in range(5):
        k(f"buffer_load_ushort v{8+i}, v3, s[16:19], 0 offen offset:{256*i}")
    for i in range(5):
        k(f"s_mov_b32 s13, {128*7680*i}")
        k(f"buffer_load_dwordx4 v[{16+4*i}:{19+4*i}], v4, s[20:23], s13 offen")
    for j in range(8): k(f"v_mov_b32 v{40+j}, 0")
    k("s_mov_b32 s14, 0xbfb8aa3b        ; -log2(e)")
    k("s_waitcnt vmcnt(5)")
    for i in range(5):
        k(f"v_lshlrev_b32 v{8+i}, 16, v{8+i}")
    for i in range(5):
        k(f"v_mul_f32 v{48+i}, s14, v{8+i}")
    for i in range(5):
        k(f"v_exp_f32 v{48+i}, v{48+i}")
    for i in range(5):
        k(f"v_add_f32 v{48+i}, 1.0, v{48+i}")
    for i in range(5):
        k(f"v_rcp_f32 v{48+i}, v{48+i}")
    for i in range(5):
        k(f"v_mul_f32 v{8+i}, v{8+i}, v{48+i}")
    for i in range(5):
        bf16_round_f32(k, 8 + i, 8 + i, 56)
    for i in range(5):
        k(f"s_waitcnt vmcnt({4-i})")
        for j in range(4):
            k(f"v_lshlrev_b32 v56, 16, v{16+4*i+j}")
            k(f"v_and_b32 v57, 0xffff0000, v{16+4*i+j}")
            k(f"v_fmac_f32 v{40+2*j}, v{8+i}, v56")
            k(f"v_fmac_f32 v{41+2*j}, v{8+i}, v57")
    for rot in (2, 4, 8):
        for j in range(8):
            k(f"v_add_f32_dpp v{40+j}, v{40+j}, v{40+j} row_ror:{rot} row_mask:0xf bank_mask:0xf")
    k("v_lshrrev_b32 v1, 4, v0")
    k("v_lshlrev_b32 v1, 6, v1")
    k("v_lshlrev_b32 v2, 5, v2")
    k("v_add_u32 v1, v1, v2")
    k("v_and_b32 v3, 15, v0")
    k("v_cmp_gt_u32 vcc, 2, v3")
    k("s_and_saveexec_b64 s[14:15], vcc")
    k("ds_write_b128 v1, v[40:43]")
    k("ds_write_b128 v1, v[44:47] offset:16")
    k("s_mov_b64 exec, s[14:15]")
    k("s_waitcnt lgkmcnt(0)")
    k("s_barrier")
    k("v_cmp_gt_u32 vcc, 16, v0")
    k("s_and_saveexec_b64 s[14:15], vcc")
    k("s_cbranch_execz PREP_END")
    k("v_lshlrev_b32 v1, 2, v0")
    for p in range(16):
        k(f"ds_read_b32 v{16+p}, v1 offset:{64*p}")
    k("s_waitcnt lgkmcnt(0)")
    for st in (8, 4, 2, 1):
        for p in range(st):
            k(f"v_add_f32 v{16+p}, v{16+p}, v{16+p+st}")
    bf16_round_f32(k, 16, 16, 56)
    divs = (1 << 32) // 40 + 1
    k(f"s_mul_hi_u32 s11, s10, {divs}    ; which = b / 40")
    k("s_cmp_eq_u32 s11, 1")
    k("s_cselect_b32 s12, 1, 0")
    k("s_cmp_eq_u32 s11, 4")
    k("s_cselect_b32 s12, 1, s12")
    k("s_cmp_eq_u32 s12, 0")
    k("s_cbranch_scc1 PREP_NOONE")
    k("v_add_f32 v16, 1.0, v16")
    bf16_round_f32(k, 16, 16, 56)
    k.label("PREP_NOONE")
    k("s_lshl_b32 s12, s10, 6")
    k("v_add_u32 v1, s12, v1")
    k("buffer_store_dword v16, v1, s[24:27], 0 offen")
    k("s_endpgm")
    k.label("PREP_REPACK")
    k(f"s_sub_u32 s10, s2, {N_GEMV}")
    k(f"s_cmp_lt_u32 s10, {N_WO}")
    k("s_cbranch_scc1 PREP_WO")
    k(f"s_cmp_lt_u32 s10, {N_WO+N_WD}")
    k("s_cbranch_scc1 PREP_WD")
    k(f"s_cmp_lt_u32 s10, {N_WO+N_WD+N_WG}")
    k("s_cbranch_scc1 PREP_WG")
    k(f"s_cmp_lt_u32 s10, {N_WO+N_WD+N_WG+N_WU}")
    k("s_cbranch_scc1 PREP_WU")
    k(f"s_sub_u32 s10, s10, {N_WO+N_WD+N_WG+N_WU}")
    k("s_waitcnt lgkmcnt(0)")
    srd(k, 24, 4, 32 * KV_HEAD, WS_KV)
    k("s_lshl_b32 s11, s10, 11")
    for j in range(4): k(f"v_mov_b32 v{8+j}, 0x3f803f80")
    for i in range(8):
        k(f"v_add_u32 v1, {256*i}, v0")
        k("v_add_u32 v1, s11, v1")
        k("v_lshrrev_b32 v2, 2, v1")
        k(f"v_mul_u32_u24 v2, {KV_TILE}, v2")
        k("v_and_b32 v3, 3, v1")
        k("v_mul_u32_u24 v3, 336, v3")
        k(f"v_add_u32 v2, {1280+320}, v2")
        k("v_add_u32 v2, v2, v3")
        k("buffer_store_dwordx4 v[8:11], v2, s[24:27], 0 offen")
        k("s_nop 1")
    k("s_endpgm")

    def repack(label, ka, first, rows, cpr, dst_off, dst_bytes, dstfn):
        k.label(label)
        k(f"s_load_dwordx2 s[6:7], s[0:1], {ka}")
        k(f"s_sub_u32 s10, s10, {first}")
        k("s_lshl_b32 s11, s10, 11")
        k("s_waitcnt lgkmcnt(0)")
        srd(k, 16, 6, rows * cpr * 16)
        srd(k, 24, 4, dst_bytes, dst_off)
        for i in range(8):
            k(f"v_add_u32 v{8+i}, {256*i}, v0")
            k(f"v_add_u32 v{8+i}, s11, v{8+i}")
            k(f"v_lshlrev_b32 v2, 4, v{8+i}")
            k(f"buffer_load_dwordx4 v[{32+4*i}:{35+4*i}], v2, s[16:19], 0 offen")
        for i in range(8):
            divconst(k, 2, 8 + i, cpr, 12, rows * cpr)
            k(f"v_mul_u32_u24 v3, {cpr}, v2")
            k(f"v_sub_u32 v3, v{8+i}, v3")
            dstfn(i)
        for i in range(8):
            k(f"s_waitcnt vmcnt({7-i})" if i == 0 else f"s_waitcnt vmcnt(7)")
            k(f"buffer_store_dwordx4 v[{32+4*i}:{35+4*i}], v{16+i}, s[24:27], 0 offen")
        k("s_endpgm")

    def dst_narrow(K_):
        def f(i):
            divconst(k, 4, 3, 10, 12, 80)
            k("v_mul_u32_u24 v5, 10, v4")
            k("v_sub_u32 v5, v3, v5                ; cc")
            k("v_and_b32 v6, 0xfffffff3, v2")
            k("v_bfe_u32 v7, v2, 2, 1")
            k("v_lshl_or_b32 v6, v7, 3, v6")
            k("v_bfe_u32 v7, v2, 3, 1")
            k("v_lshl_or_b32 v6, v7, 2, v6")
            k(f"s_mov_b32 s12, {K_*160}")
            k("v_mul_lo_u32 v4, s12, v4")
            k("v_mul_u32_u24 v6, 160, v6")
            k("v_lshlrev_b32 v5, 4, v5")
            k(f"v_add3_u32 v{16+i}, v4, v5, v6")
        return f
    def dst_up(which):
        def f(i):
            divconst(k, 4, 3, 12, 12, 192)
            k("v_mul_u32_u24 v5, 12, v4")
            k("v_sub_u32 v5, v3, v5                ; cc")
            k("v_lshrrev_b32 v6, 6, v2             ; stage")
            k("v_and_b32 v7, 63, v2")
            k(f"s_mov_b32 s12, {10*24576}")
            k("v_mul_lo_u32 v4, s12, v4")
            k("v_mul_u32_u24 v6, 24576, v6")
            k("v_mul_u32_u24 v7, 192, v7")
            k("v_lshlrev_b32 v5, 4, v5")
            k("v_add3_u32 v4, v4, v5, v6")
            if which: k(f"v_add_u32 v7, {12288}, v7")
            k(f"v_add_u32 v{16+i}, v4, v7")
        return f
    repack("PREP_WO", KA_WO, 0, 640, 80, WS_WOP, 8 * 640 * 160, dst_narrow(640))
    repack("PREP_WD", KA_WD, N_WO, 1536, 80, WS_WDP, 8 * 1536 * 160, dst_narrow(1536))
    repack("PREP_WG", KA_WG, N_WO + N_WD, 640, 192, WS_WUP, 16 * 10 * 24576, dst_up(0))
    repack("PREP_WU", KA_WU, N_WO + N_WD + N_WG, 640, 192, WS_WUP, 16 * 10 * 24576, dst_up(1))
    k.label("PREP_END")
    k("s_endpgm")
    k.fix_hazards()
    return name, header(name) + k.text() + descriptor(name, 64), (PREP_GRID, 256, 1024)
```

```python
S, D, H, DH, F = 2048, 640, 32, 20, 1536
WS_MODV = 0x0
WS_H    = 0x10000
WS_Q    = WS_H + 0x280000
WS_KV   = WS_Q + 0x280000
KV_TILE = 2624
KV_HEAD = 64 * KV_TILE
WS_O    = WS_KV + 0x520000
WS_X1   = WS_O + 0x280000
WS_G    = WS_X1 + 0x280000
WS_WOP  = WS_G + 0x600000
WS_WDP  = WS_WOP + 0xC8000
WS_WUP  = WS_WDP + 0x1E0000
WS_END  = WS_WUP + 0x3C0000
KA_X, KA_WQKV, KA_WO, KA_BX, KA_WG, KA_WU, KA_WD, KA_C, KA_WMOD, KA_OUT, KA_DBG, KA_WS = [8 * i for i in range(12)]
if __name__ == "__main__":
    print(hex(WS_END), WS_END)
```

```python
import sys; sys.path.insert(0, "work")
from k_prep import gen_prep
from k_ln import gen_ln
from k_gemm_big import gen_qkv, gen_up
from k_gemm_narrow import gen_wo, gen_down
from k_attn import gen_attn
from k_prep3 import gen_prep3
from k_gemm2 import gen_qkv2, gen_up2, gen_wo2, gen_down2
from layout import *

HEAD = open("adaLN_cond__mha_block__geglu_ffn__prompt.s.ref").read().split("; Override launch")[0]

def build():
    ks = [gen_prep3(), gen_qkv2(), gen_attn(), gen_wo2(), gen_up2(), gen_down2()]
    s = HEAD
    for n, _, (g, b, l) in ks:
        s += f"; @launch kernel={n} grid=({g},1,1) block=({b},1,1) lds={l}\n"
    s += '.amdgcn_target "amdgcn-amd-amdhsa--gfx950"\n'
    for n, t, _ in ks: s += t
    return s, [(n, g) for n, _, g in ks]

if __name__ == "__main__":
    s, ks = build()
    out = sys.argv[1] if len(sys.argv) > 1 else "adaLN_cond__mha_block__geglu_ffn__prompt.s"
    open(out, "w").write(s)
    print("wrote", out, len(s), "bytes", ks)
```

```python
import re

TRANS = ("v_exp_f32", "v_log_f32", "v_rcp_f32", "v_rsq_f32", "v_sqrt_f32", "v_sin_f32", "v_cos_f32",
         "v_exp_f16", "v_rcp_f16", "v_rcp_iflag_f32")

def _regs(tok):
    tok = tok.strip()
    neg = tok.lstrip("-").replace("abs(", "").replace(")", "").strip("|")
    m = re.fullmatch(r"([vas])\[(\d+):(\d+)\]", neg)
    if m:
        return [m.group(1) + str(i) for i in range(int(m.group(2)), int(m.group(3)) + 1)]
    m = re.fullmatch(r"([vas])(\d+)", neg)
    if m:
        return [neg]
    if neg in ("vcc", "vcc_lo", "vcc_hi"):
        return ["vcc"]
    if neg in ("exec", "exec_lo", "exec_hi"):
        return ["exec"]
    if neg == "m0":
        return ["m0"]
    return []

class Ins:
    __slots__ = ("text", "op", "defs", "uses", "kind", "passes", "srcc", "states", "dpp", "storedata", "lds", "sdwa")
    def __init__(self, text):
        self.text = text
        t = text.split(";")[0].strip()
        parts = t.split(None, 1)
        self.op = parts[0]
        ops = []
        if len(parts) > 1:
            rest = parts[1]
            depth = 0; cur = ""
            for ch in rest:
                if ch == "[": depth += 1
                if ch == "]": depth -= 1
                if ch == "," and depth == 0:
                    ops.append(cur.strip()); cur = ""
                else:
                    cur += ch
            ops.append(cur.strip())
        mods = ""
        if ops:
            sp = ops[-1].split(None, 1)
            ops[-1] = sp[0]
            if len(sp) > 1: mods = sp[1]
        op = self.op
        self.defs, self.uses = [], []
        self.passes = 0; self.srcc = []; self.states = 1
        self.dpp = ("row_" in mods or "quad_perm" in mods or "wave_" in mods or "row_bcast" in mods)
        self.storedata = []; self.lds = False
        self.sdwa = "sdwa" in op or "op_sel" in mods
        R = _regs
        if op == "s_nop":
            self.kind = "nop"; self.states = int(ops[0], 0) + 1
        elif op.startswith("v_mfma"):
            self.kind = "mfma"
            self.defs = R(ops[0]); self.uses = R(ops[1]) + R(ops[2]); self.srcc = R(ops[3])
            self.uses += self.srcc
            self.passes = 8 if "32x32" in op else 4
        elif op.startswith("v_"):
            self.kind = "trans" if any(op.startswith(x) for x in TRANS) else "valu"
            base = op.replace("_e32", "").replace("_e64", "")
            if base.startswith("v_cmp"):
                self.defs = R(ops[0]); self.uses = sum((R(o) for o in ops[1:]), [])
                if base.startswith("v_cmpx"): self.defs += ["exec"]
            elif base.startswith(("v_add_co", "v_sub_co", "v_addc_co", "v_subb_co", "v_subrev_co", "v_mad_u64_u32")):
                self.defs = R(ops[0]) + R(ops[1]); self.uses = sum((R(o) for o in ops[2:]), [])
            elif base.startswith(("v_permlane32_swap", "v_permlane16_swap", "v_swap_b32")):
                self.defs = R(ops[0]) + R(ops[1]); self.uses = R(ops[0]) + R(ops[1])
            else:
                self.defs = R(ops[0]); self.uses = sum((R(o) for o in ops[1:]), [])
                if base.startswith(("v_fmac", "v_dot2c", "v_writelane", "v_pk_fmac")) or "UNUSED_PRESERVE" in mods or self.dpp:
                    self.uses += R(ops[0])
                if base.startswith("v_cndmask") and len(ops) == 3:
                    self.uses += ["vcc"]
        elif op.startswith("ds_"):
            self.kind = "ds"
            if op.startswith(("ds_read", "ds_bpermute", "ds_permute", "ds_swizzle")):
                self.defs = R(ops[0]); self.uses = sum((R(o) for o in ops[1:]), [])
            else:
                self.uses = sum((R(o) for o in ops), [])
                self.storedata = sum((R(o) for o in ops[1:]), [])
        elif op.startswith(("buffer_", "global_", "flat_")):
            self.kind = "vmem"
            self.lds = (" lds" in (" " + mods)) or "load_lds" in op
            allr = [R(o) for o in ops]
            if op.startswith("buffer_"):
                if "load" in op and not self.lds:
                    self.defs = allr[0]; self.uses = sum(allr[1:], [])
                elif "load" in op:
                    self.uses = sum(allr, []) + ["m0"]
                elif "store" in op:
                    self.uses = sum(allr, []); self.storedata = allr[0]
                elif "atomic" in op:
                    self.uses = sum(allr, []); self.storedata = allr[0]
                    if "sc0" in mods: self.defs = allr[0]
                else:
                    self.uses = sum(allr, [])
            else:
                if "load" in op and not self.lds:
                    self.defs = allr[0]; self.uses = sum(allr[1:], [])
                elif "load" in op:
                    self.uses = sum(allr, []) + ["m0"]
                elif "atomic" in op and "sc0" in mods:
                    self.defs = allr[0]; self.uses = sum(allr[1:], []); self.storedata = allr[2]
                else:
                    self.uses = sum(allr, []); self.storedata = allr[1] if len(allr) > 1 else []
        elif op.startswith("s_"):
            self.kind = "salu"
            if op.startswith(("s_cmp", "s_cbranch", "s_branch", "s_waitcnt", "s_barrier", "s_endpgm", "s_setprio", "s_sleep", "s_bitcmp")):
                self.uses = sum((R(o) for o in ops), [])
            else:
                self.defs = R(ops[0]) if ops else []
                self.uses = sum((R(o) for o in ops[1:]), [])
                if "saveexec" in op: self.defs += ["exec"]; self.uses += ["exec"]
        else:
            raise ValueError("unknown instruction: " + text)

def _isv(r): return r[0] in "va" and r not in ("vcc",)
def _iss(r): return (r[0] == "s" and r[1:].isdigit()) or r == "vcc"

def required(prod, cons):
    need = 0
    pd, cu, cd = set(prod.defs), set(cons.uses), set(cons.defs)
    valu_p = prod.kind in ("valu", "trans")
    valu_c = cons.kind in ("valu", "trans")
    if valu_p:
        vd = {r for r in pd if _isv(r)}
        sd = {r for r in pd if _iss(r)}
        if cons.kind == "mfma" and vd & cu: need = max(need, 2)
        if valu_c and vd & cu:
            if cons.op.startswith(("v_readfirstlane", "v_readlane")): need = max(need, 1)
            if cons.dpp: need = max(need, 2)
            if cons.op.startswith("v_permlane"): need = max(need, 2)
            if prod.kind == "trans": need = max(need, 1)
            if prod.sdwa: need = max(need, 1)
        if prod.kind == "trans" and cons.kind in ("ds", "vmem") and vd & cu: need = max(need, 1)
        if sd & cu:
            if valu_c:
                need = max(need, 4 if cons.op.startswith(("v_readlane", "v_writelane")) else 2)
            if cons.kind == "vmem": need = max(need, 5)
        if "exec" in pd:
            if cons.kind == "mfma" or cons.op.startswith("v_permlane") or cons.op.startswith(("v_readfirstlane", "v_readlane")): need = max(need, 4)
            if cons.dpp: need = max(need, 5)
    if prod.kind == "mfma":
        big = 12 if prod.passes == 8 else 8
        mid = 10 if prod.passes == 8 else 6
        if cons.kind == "mfma":
            ab = set(cons.uses) - set(cons.srcc)
            ab |= {r for r in cons.uses if cons.uses.count(r) > 1}
            if pd & ab: need = max(need, big)
            if pd & set(cons.srcc):
                if not (prod.defs == cons.srcc and prod.passes == cons.passes): need = max(need, mid)
            if pd & cd and not (pd & set(cons.srcc)):
                if prod.defs != cons.defs: need = max(need, mid)
        elif cons.kind in ("valu", "trans"):
            if pd & (cu | cd): need = max(need, big)
            if set(prod.srcc) & cd: need = max(need, 7 if prod.passes == 8 else 3)
        elif cons.kind in ("ds", "vmem"):
            if pd & (cu | cd): need = max(need, big)
    if prod.op.startswith("v_dot2"):
        same = cons.op == prod.op
        if pd & (cu | cd):
            if same:
                srcab = set(cons.uses) - set(cons.defs) if cons.op.startswith("v_dot2c") else set(cons.uses[:2])
                if pd & srcab: need = max(need, 3)
            else:
                need = max(need, 3)
    if prod.kind == "salu" and "m0" in pd and cons.kind == "vmem" and cons.lds: need = max(need, 1)
    if prod.kind == "vmem" and prod.storedata and len(prod.storedata) >= 3:
        if set(prod.storedata) & cd: need = max(need, 2 if valu_c else 1)
    return need

class K:
    def __init__(self):
        self.items = []
        self.nops = 0
    def __call__(self, text):
        for line in text.strip("\n").split("\n"):
            l = line.strip()
            if not l or l.startswith(";"):
                if l: self.items.append(("raw", "  " + l))
                continue
            if l.endswith(":"):
                self.items.append(("label", l[:-1]))
            elif l.startswith("."):
                self.items.append(("raw", l))
            else:
                self.items.append(("ins", Ins(l)))
    def label(self, n): self.items.append(("label", n))

    def fix_hazards(self, window=20):
        for _pass in range(4):
            inserted = 0
            i = 0
            branches = self._branch_map()
            while i < len(self.items):
                it = self.items[i]
                if it[0] == "ins" and it[1].kind not in ("nop",):
                    cons = it[1]
                    worst = 0
                    for prod, dist in self._preds(i, window, 0, frozenset(), branches):
                        n = required(prod, cons)
                        if n > dist: worst = max(worst, n - dist)
                    if worst > 0:
                        self.items.insert(i, ("ins", Ins("s_nop %d" % (worst - 1))))
                        self.nops += 1; inserted += 1
                        branches = self._branch_map()
                        i += 1
                i += 1
            if not inserted: break
    def _branch_map(self):
        branches = {}
        for i, it in enumerate(self.items):
            if it[0] == "ins" and it[1].op.startswith(("s_cbranch", "s_branch")):
                branches.setdefault(it[1].text.split()[1], []).append(i)
        return branches
    def _preds(self, i, budget, acc, path, branches, via_branch=False):
        j = i - 1; dist = acc
        first = True
        while j >= 0 and dist < budget:
            it = self.items[j]
            if it[0] == "label":
                for b in branches.get(it[1], []):
                    if b not in path:
                        yield from self._preds(b + 1, budget, dist, path | {b}, branches, True)
            elif it[0] == "ins":
                ins = it[1]
                if ins.op == "s_endpgm": return
                if ins.op == "s_branch" and not (first and via_branch): return
                yield ins, dist
                dist += ins.states
                first = False
            j -= 1
    def text(self):
        out = []
        for kind, x in self.items:
            if kind == "ins": out.append("  " + x.text)
            elif kind == "label": out.append(x + ":")
            else: out.append(x)
        return "\n".join(out) + "\n"

def descriptor(name, vgpr, acc_offset=None, sgpr=102):
    if acc_offset is None: acc_offset = (vgpr + 3) // 4 * 4
    return f""".section .rodata,"a"
.p2align 6
.amdhsa_kernel {name}
  .amdhsa_next_free_vgpr {vgpr}
  .amdhsa_next_free_sgpr {sgpr}
  .amdhsa_accum_offset {acc_offset}
  .amdhsa_group_segment_fixed_size 0
  .amdhsa_kernarg_size 96
  .amdhsa_user_sgpr_count 2
  .amdhsa_user_sgpr_kernarg_segment_ptr 1
  .amdhsa_system_sgpr_workgroup_id_x 1
  .amdhsa_float_denorm_mode_32 3
.end_amdhsa_kernel
.text
"""
def header(name):
    return f""".text
.globl {name}
.p2align 8
.type {name},@function
{name}:
"""
```

```python
from common import *

STAGE = 16 * KV_TILE
Q1, Q2 = 112, 116
KA, KB = 12, 20
VF = 24
SS = 40
PP = 72
OO = 80
AK, AKB, AV = 96, 99, 102
VDMA = 105

def m16(d, a, b, c): return f"v_mfma_f32_32x32x16_bf16 v[{d}:{d+15}], v[{a}:{a+3}], v[{b}:{b+3}], {c}"
def m8(d, a, b, c): return f"v_mfma_f32_32x32x8bf16_1k v[{d}:{d+15}], v[{a}:{a+1}], v[{b}:{b+1}], {c}"

def gen_attn():
    name = "attn_kernel"
    k = K()
    k("s_cmp_ge_u32 s2, 256")
    k("s_cbranch_scc1 ATT_END")
    k(f"s_load_dwordx2 s[4:5], s[0:1], {KA_WS}")
    k("s_and_b32 s11, s2, 7")
    k("s_lshl_b32 s11, s11, 2")
    k("s_bfe_u32 s12, s2, 0x20003")
    k("s_add_u32 s11, s11, s12")
    k("s_lshr_b32 s12, s2, 5")
    k("v_and_b32 v1, 63, v0")
    k("v_lshrrev_b32 v2, 6, v0")
    k("s_nop 0")
    k("v_readfirstlane_b32 s8, v2       ; wave")
    k("v_and_b32 v2, 31, v1")
    k("v_lshrrev_b32 v3, 5, v1          ; half")
    for sl in range(3):
        k(f"v_lshlrev_b32 v{AK+sl}, 4, v1")
        if sl: k(f"v_add_u32 v{AK+sl}, {sl*STAGE}, v{AK+sl}")
        k(f"v_lshlrev_b32 v{AKB+sl}, 3, v2")
        k(f"v_add_u32 v{AKB+sl}, {sl*STAGE + 1024}, v{AKB+sl}")
        k(f"v_mul_u32_u24 v{AV+sl}, 336, v3")
        k(f"v_lshl_add_u32 v{AV+sl}, v2, 4, v{AV+sl}")
        k(f"v_add_u32 v{AV+sl}, {sl*STAGE + 1280}, v{AV+sl}")
    k(f"s_mul_i32 s9, s11, {KV_HEAD}")
    k("s_mul_i32 s13, s8, 5120")
    k("s_add_u32 s9, s9, s13")
    k("v_lshlrev_b32 v4, 4, v1")
    k(f"v_add_u32 v{VDMA}, s9, v4")
    k(f"v_add_u32 v{VDMA+1}, 4096, v{VDMA}")
    k("s_lshl_b32 s9, s12, 8")
    k("s_lshl_b32 s10, s8, 5")
    k("s_add_u32 s9, s9, s10")
    k("v_add_u32 v4, s9, v2             ; token")
    k("v_mul_u32_u24 v4, 1280, v4")
    k("s_mul_i32 s9, s11, 40")
    k("v_add_u32 v4, s9, v4")
    k("v_lshl_add_u32 v11, v3, 3, v4")
    k("s_lshl_b32 s9, s12, 3")
    k("s_add_u32 s9, s9, s8")
    k("s_mul_i32 s9, s9, 1280")
    k("s_mul_i32 s10, s11, 81920")
    k("s_add_u32 s9, s9, s10")
    k("v_lshlrev_b32 v10, 4, v1")
    k("v_add_u32 v10, s9, v10")
    k("v_lshlrev_b32 v4, 3, v2")
    k("v_add_u32 v4, s9, v4")
    k("; STAMP 3")
    k("s_waitcnt lgkmcnt(0)")
    srd(k, 16, 4, 32 * KV_HEAD, WS_KV)
    srd(k, 20, 4, S * D * 2, WS_Q)
    srd(k, 24, 4, S * D * 2, WS_O)
    k(f"buffer_load_dwordx4 v[{Q1}:{Q1+3}], v10, s[20:23], 0 offen")
    k(f"buffer_load_dwordx2 v[{Q2}:{Q2+1}], v4, s[20:23], 0 offen offset:1024")
    def dma(st, slot):
        k(f"s_add_u32 m0, s13, {slot*STAGE}")
        k(f"s_mov_b32 s14, {st*STAGE}")
        for i in range(4):
            k(f"buffer_load_dwordx4 v{VDMA}, s[16:19], s14 offen offset:{i*1024} lds")
        k(f"s_add_u32 m0, s13, {slot*STAGE + 4096}")
        k("s_nop 0")
        for i in range(2):
            k(f"buffer_load_dwordx4 v{VDMA+1}, s[16:19], s14 offen offset:{i*1024} lds")
    k("; STAMP 0")
    dma(0, 0); dma(1, 1)
    k(f"s_load_dwordx2 s[32:33], s[0:1], {KA_WD}")
    k("s_lshl_b32 s9, s2, 9")
    k("v_add_u32 v118, s9, v0")
    k("v_lshlrev_b32 v119, 4, v118")
    k("s_waitcnt lgkmcnt(0)")
    srd(k, 36, 32, 1536 * 1280)
    k("buffer_load_dwordx4 v[120:123], v119, s[36:39], 0 offen")
    divconst(k, 124, 118, 80, 9, 131072)
    k("v_mul_u32_u24 v125, 80, v124")
    k("v_sub_u32 v125, v118, v125")
    divconst(k, 126, 125, 10, 9, 80)
    k("v_mul_u32_u24 v127, 10, v126")
    k("v_sub_u32 v125, v125, v127")
    k("v_and_b32 v127, 0xfffffff3, v124")
    k("v_bfe_u32 v119, v124, 2, 1")
    k("v_lshl_or_b32 v127, v119, 3, v127")
    k("v_bfe_u32 v119, v124, 3, 1")
    k("v_lshl_or_b32 v127, v119, 2, v127")
    k(f"s_mov_b32 s9, {1536*160}")
    k("v_mul_lo_u32 v126, s9, v126")
    k("v_mul_u32_u24 v127, 160, v127")
    k("v_lshlrev_b32 v125, 4, v125")
    k("v_add3_u32 v119, v126, v125, v127")
    k("s_mov_b32 s9, 122880")
    k("v_cmp_gt_u32 vcc, s9, v118")
    k("v_mov_b32 v124, 0x7ffffff0")
    k("v_cndmask_b32 v119, v124, v119, vcc")
    srd(k, 36, 4, 8 * 1536 * 160, WS_WDP)
    FLAG = 3 * STAGE + 1024
    k("v_mov_b32 v2, 0")
    k(f"v_mov_b32 v5, {FLAG}")
    k("ds_write_b32 v5, v2")
    for r in range(16): k(f"v_mov_b32 v{OO+r}, 0")
    k("s_waitcnt vmcnt(7) lgkmcnt(0)")
    k("v_cmp_gt_u32 vcc, 32, v1")
    k(f"v_cndmask_b32 v{Q2}, 0, v{Q2}, vcc")
    k(f"v_cndmask_b32 v{Q2+1}, 0, v{Q2+1}, vcc")
    k("s_barrier")
    k("; STAMP 1")

    def rdK(t):
        st, tt = divmod(t, 16); sl = st % 3; b = t & 1
        return [f"ds_read_b128 v[{KA+4*b}:{KA+4*b+3}], v{AK+sl} offset:{tt*KV_TILE}",
                f"ds_read_b64 v[{KB+2*b}:{KB+2*b+1}], v{AKB+sl} offset:{tt*KV_TILE}"]
    def rdV(t):
        st, tt = divmod(t, 16); sl = st % 3; b = t & 1
        return [f"ds_read_b128 v[{VF+8*b+4*m}:{VF+8*b+4*m+3}], v{AV+sl} offset:{tt*KV_TILE + 672*m}" for m in range(2)]
    def M1(t): b = t & 1; return m16(SS + 16 * b, KA + 4 * b, Q1, "0")
    def M2(t): b = t & 1; d = SS + 16 * b; return m8(d, KB + 2 * b, Q2, f"v[{d}:{d+15}]")
    def PV(t, m): b = t & 1; return m16(OO, VF + 8 * b + 4 * m, PP + 4 * m, f"v[{OO}:{OO+15}]")
    NTL = 64
    import os
    if os.environ.get("ATT_HALF"):
        k("s_cmp_lt_u32 s8, 4")
        k("s_cbranch_scc1 ATT_MAIN")
        for st in range(3):
            k("s_waitcnt vmcnt(0)")
            k("s_barrier")
            if st + 2 < 4: dma(st + 2, (st + 2) % 3)
        k("s_barrier")
        k("s_endpgm")
        k.label("ATT_MAIN")
    for r in rdK(0) + rdK(1) + rdV(0): k(r)
    k("s_waitcnt lgkmcnt(4)")
    k(M1(0)); k(M2(0))
    import os
    SCHED = os.environ.get("ATT_SCHED", "E")
    for t in range(NTL):
        s = SS + 16 * (t & 1)
        st, tt = divmod(t, 16)
        if tt == 14 and st + 1 < 4:
            k("s_waitcnt vmcnt(0)")
            k("s_barrier")
            if st == 0: k("buffer_store_dwordx4 v[120:123], v119, s[36:39], 0 offen")
            if st + 2 < 4: dma(st + 2, (st + 2) % 3)
        have_next = t + 1 < NTL
        rds = ((rdK(t + 2) if t + 2 < NTL else []) + rdV(t + 1)) if have_next else []
        def op(tok):
            if tok[0] == "e": i = int(tok[1:]); k(f"v_exp_f32 v{s+i}, v{s+i}")
            elif tok[0] == "c": q = int(tok[1:]); k(f"v_cvt_pk_bf16_f32 v{PP+q}, v{s+2*q}, v{s+2*q+1}")
            elif tok == "W2":
                if have_next: k("s_waitcnt lgkmcnt(2)")
            elif tok == "M1":
                if have_next: k(M1(t + 1))
            elif tok == "M2":
                if have_next: k(M2(t + 1))
            elif tok == "R":
                for r in rds: k(r)
            elif tok == "WV": k(f"s_waitcnt lgkmcnt({len(rds)})")
            elif tok == "P0": k(PV(t, 0))
            elif tok == "P1":
                if t > 0: k(PV(t - 1, 1))
            else: raise ValueError(tok)
        E = lambda a_, b_: " ".join(f"e{i}" for i in range(a_, b_))
        C = lambda a_, b_: " ".join(f"c{i}" for i in range(a_, b_))
        seqs = {
         "A": f"W2 M1 P1 {E(0,4)} M2 R {E(4,8)} {C(0,4)} e8 e9 WV P0 {E(10,16)} {C(4,8)}",
         "B": f"W2 M1 e0 e1 P1 e2 e3 M2 R {E(4,8)} {C(0,4)} e8 e9 WV P0 {E(10,16)} {C(4,8)}",
         "C": f"W2 M1 R0 {E(0,4)} P1 {E(4,8)} M2 {C(0,4)} e8 e9 WV P0 {E(10,16)} {C(4,8)}",
         "D": f"W2 M1 e0 e1 e2 e3 P1 e4 e5 e6 e7 M2 R c0 c1 c2 c3 e8 e9 e10 e11 WV P0 e12 e13 e14 e15 c4 c5 c6 c7",
         "E": f"W2 M1 e0 e1 e2 c0 e3 P1 e4 c1 e5 e6 M2 R c2 e7 e8 c3 e9 e10 WV P0 c4 e11 e12 c5 e13 e14 e15 c6 c7",
         "F": f"W2 M1 e0 e1 e2 c0 e3 e4 c1 P1 e5 e6 c2 e7 e8 M2 R c3 e9 e10 c4 WV P0 e11 e12 c5 e13 e14 e15 c6 c7",
        }
        seq = seqs[SCHED].replace("R0", "")
        if SCHED == "C": seq = seq.replace("M2", "M2 R")
        toks = seq.split()
        if SCHED == "E":
            pass
        for tok in toks: op(tok)
    k(PV(NTL - 1, 1))
    k("; STAMP 2")

    def finish(check):
        k(f"v_mov_b32 v2, v{OO+8}")
        k(f"v_mov_b32 v3, v{OO+8}")
        k("v_permlane32_swap_b32 v2, v3")
        if check:
            k("s_mov_b32 s9, 0x21800000         ; 2^-60")
            k("s_mov_b32 s10, 0x5d800000        ; 2^60")
            k("v_cmp_le_f32 vcc, s9, v3")
            k("v_cmp_ge_f32 s[28:29], s10, v3")
            k("s_and_b64 s[28:29], s[28:29], vcc")
            k("s_movk_i32 s9, 0x207")
            for r in range(8):
                k(f"v_cmp_class_f32 vcc, v{OO+r}, s9")
                k("s_andn2_b64 s[28:29], s[28:29], vcc")
            k("s_mov_b32 s30, -1")
            k("s_mov_b32 s31, 0")
            for r in range(8, 12):
                k(f"v_cmp_class_f32 vcc, v{OO+r}, s9")
                k("s_and_b64 vcc, vcc, s[30:31]")
                k("s_andn2_b64 s[28:29], s[28:29], vcc")
            k("s_cmp_eq_u64 s[28:29], -1")
            k("s_cbranch_scc1 ATT_OK")
            k("v_mov_b32 v2, 1")
            k(f"v_mov_b32 v5, {FLAG}")
            k("ds_write_b32 v5, v2")
            k.label("ATT_OK")
            k("s_waitcnt lgkmcnt(0)")
            k("s_barrier")
            k(f"v_mov_b32 v5, {FLAG}")
            k("ds_read_b32 v2, v5")
            k("s_waitcnt lgkmcnt(0)")
            k("v_readfirstlane_b32 s9, v2")
            k("s_cmp_lg_u32 s9, 0")
            k("s_cbranch_scc1 ATT_SLOW")
        k("v_rcp_f32 v3, v3")
        for r in range(12): k(f"v_mul_f32 v{OO+r}, v{OO+r}, v3")
        for q in range(6): k(f"v_cvt_pk_bf16_f32 v{PP+q}, v{OO+2*q}, v{OO+2*q+1}")
        k(f"buffer_store_dwordx2 v[{PP}:{PP+1}], v11, s[24:27], 0 offen")
        k(f"buffer_store_dwordx2 v[{PP+2}:{PP+3}], v11, s[24:27], 0 offen offset:16")
        k("s_mov_b32 exec_hi, 0")
        k(f"buffer_store_dwordx2 v[{PP+4}:{PP+5}], v11, s[24:27], 0 offen offset:32")
        k("s_endpgm")
    import os
    finish(not os.environ.get('ATT_NOCHECK'))

    k.label("ATT_SLOW")
    for r in range(16): k(f"v_mov_b32 v{OO+r}, 0")
    k("v_mov_b32 v2, 0xff7fffff")
    k("s_mov_b32 s15, 0")
    k.label("ATT_SLOW_STAGE")
    k("s_barrier")
    k(f"s_mul_i32 s14, s15, {STAGE}")
    k("s_mov_b32 m0, s13")
    k("s_nop 0")
    for i in range(4):
        k(f"buffer_load_dwordx4 v{VDMA}, s[16:19], s14 offen offset:{i*1024} lds")
    k("s_add_u32 m0, s13, 4096")
    k("s_nop 0")
    for i in range(2):
        k(f"buffer_load_dwordx4 v{VDMA+1}, s[16:19], s14 offen offset:{i*1024} lds")
    k("s_waitcnt vmcnt(0)")
    k("s_barrier")
    k(f"v_mov_b32 v5, v{AK}")
    k(f"v_mov_b32 v6, v{AKB}")
    k(f"v_mov_b32 v7, v{AV}")
    k("s_mov_b32 s9, 0")
    k.label("ATT_SLOW_TILE")
    k(f"ds_read_b128 v[{KA}:{KA+3}], v5")
    k(f"ds_read_b64 v[{KB}:{KB+1}], v6")
    k(f"ds_read_b128 v[{VF}:{VF+3}], v7")
    k(f"ds_read_b128 v[{VF+4}:{VF+7}], v7 offset:672")
    k("s_waitcnt lgkmcnt(0)")
    k(m16(SS, KA, Q1, "0"))
    k(m8(SS, KB, Q2, f"v[{SS}:{SS+15}]"))
    k(f"v_add_u32 v5, {KV_TILE}, v5")
    k(f"v_add_u32 v6, {KV_TILE}, v6")
    k(f"v_add_u32 v7, {KV_TILE}, v7")
    k(f"v_max_f32 v108, v{SS}, v{SS+1}")
    for r in range(2, 16): k(f"v_max_f32 v108, v108, v{SS+r}")
    k("v_mov_b32 v109, v108")
    k("v_permlane32_swap_b32 v108, v109")
    k("v_max_f32 v108, v108, v109")
    k("v_max_f32 v108, v108, v2")
    k("v_sub_f32 v109, v2, v108")
    k("v_exp_f32 v109, v109")
    k("v_mov_b32 v2, v108")
    for r in range(16): k(f"v_sub_f32 v{SS+r}, v{SS+r}, v108")
    for r in range(16): k(f"v_exp_f32 v{SS+r}, v{SS+r}")
    for r in range(16): k(f"v_mul_f32 v{OO+r}, v{OO+r}, v109")
    for q in range(8): k(f"v_cvt_pk_bf16_f32 v{PP+q}, v{SS+2*q}, v{SS+2*q+1}")
    k(m16(OO, VF, PP, f"v[{OO}:{OO+15}]"))
    k(m16(OO, VF + 4, PP + 4, f"v[{OO}:{OO+15}]"))
    k("s_add_u32 s9, s9, 1")
    k("s_cmp_lt_u32 s9, 16")
    k("s_cbranch_scc1 ATT_SLOW_TILE")
    k("s_add_u32 s15, s15, 1")
    k("s_cmp_lt_u32 s15, 4")
    k("s_cbranch_scc1 ATT_SLOW_STAGE")
    finish(False)
    k.label("ATT_END")
    k("s_endpgm")
    k.fix_hazards()
    return name, header(name) + k.text() + descriptor(name, 128), (256, 512, 3 * STAGE + 2048)
```

```python
from common import *
import struct, os
def f2u(x): return struct.unpack('<I', struct.pack('<f', x))[0]

def mfma32(d, a, b, c=None):
    cc = f"v[{d}:{d+15}]" if c is None else c
    return f"v_mfma_f32_32x32x16_bf16 v[{d}:{d+15}], v[{a}:{a+3}], v[{b}:{b+3}], {cc}"
def mfma16(d, a, b, c=None):
    cc = f"v[{d}:{d+3}]" if c is None else c
    return f"v_mfma_f32_16x16x32_bf16 v[{d}:{d+3}], v[{a}:{a+3}], v[{b}:{b+3}], {cc}"

def loader_loop(k, nst, nslots, nd, dma, after_last=None, tail_issue=None):
    issued = 0; extra = 0
    for st in range(min(2, nst)):
        dma(st); issued += 1
    k(f"s_waitcnt vmcnt({nd*(issued-1)})")
    k("s_barrier")
    while issued < min(nslots - 1, nst):
        dma(issued); issued += 1
    for s in range(nst - 1):
        k(f"s_waitcnt vmcnt({min(63, nd*max(0, issued-(s+2)) + extra)})")
        k("s_barrier")
        if issued < nst:
            dma(issued); issued += 1
            if issued == nst and tail_issue: extra = tail_issue()
    if after_last: after_last()

def compute_loop(k, nst, ksteps, reads, mfmas, nreads_first, stamp=True):
    k("s_barrier")
    if stamp: k("; STAMP 1")
    first = reads(0)
    for g in first:
        for r in g: k(r)
    total = nst * ksteps
    for step in range(total):
        st, ks = divmod(step, ksteps)
        cur = reads(step)
        nxt = reads(step + 1) if step + 1 < total else None
        ng = len(cur)
        issued = 0
        for g in range(ng):
            if g == 0 and ks == ksteps - 1 and st + 1 < nst:
                k("s_barrier")
            later = sum(len(x) for x in cur[g + 1:])
            k(f"s_waitcnt lgkmcnt({min(later + issued, 15)})")
            ml = mfmas(step, g)
            for m in ml:
                if m.startswith("v_mfma"): k(m)
            if nxt is not None:
                for r in nxt[g]: k(r)
                issued += len(nxt[g])
            for m in ml:
                if not m.startswith("v_mfma"): k(m)
    if stamp: k("; STAMP 2")

def prologue_ids(k, end):
    k("s_cmp_ge_u32 s2, 256")
    k(f"s_cbranch_scc1 {end}")

def wave_ids(k):
    k("v_and_b32 v1, 63, v0             ; lane")
    k("v_lshrrev_b32 v2, 6, v0")
    k("s_nop 0")
    k("v_readfirstlane_b32 s8, v2")
    k("s_and_b32 s31, s8, 3")

def a_dma_setup32(k, VA, rt_sgpr, lda, rows_per_tile_log2=7):
    k("v_lshrrev_b32 v2, 3, v1")
    k("v_lshrrev_b32 v3, 4, v1")
    k("v_and_b32 v4, 7, v1")
    k(f"s_lshl_b32 s9, s{rt_sgpr}, {rows_per_tile_log2}")
    k("s_lshl_b32 s10, s31, 5")
    k("s_add_u32 s9, s9, s10")
    k("v_add_u32 v2, s9, v2")
    k(f"s_mov_b32 s10, {lda}")
    k("v_mul_lo_u32 v2, s10, v2")
    for i in range(4):
        k(f"v_xor_b32 v5, {(i&1)*4}, v3")
        k("v_xor_b32 v5, v5, v4")
        k("v_lshlrev_b32 v5, 4, v5")
        k(f"v_add_u32 v5, {i*8*lda - i*1024}, v5")
        k(f"v_add_u32 v{VA+i}, v2, v5")

def gen_qkv2():
    name = "qkv_kernel"
    k = K()
    NS = 5
    AF, BF, ACC = 40, 48, 80
    RA, RB = 4, 16
    prologue_ids(k, "QKV_END")
    k(f"s_load_dwordx2 s[4:5], s[0:1], {KA_WS}")
    k(f"s_load_dwordx2 s[6:7], s[0:1], {KA_WQKV}")
    k("s_and_b32 s3, s2, 7")
    k("s_lshr_b32 s13, s2, 3")
    k("s_and_b32 s14, s3, 3")
    k("s_lshl_b32 s14, s14, 2")
    k("s_and_b32 s15, s13, 3")
    k("s_add_u32 s11, s14, s15")
    k("s_lshr_b32 s14, s3, 2")
    k("s_lshl_b32 s14, s14, 3")
    k("s_lshr_b32 s15, s13, 2")
    k("s_add_u32 s12, s14, s15")
    wave_ids(k)
    k("s_cmp_ge_u32 s12, 15")
    k("s_cbranch_scc1 QKV_SIDE")
    k("s_cmp_lt_u32 s8, 4")
    k("s_cbranch_scc1 QKV_COMPUTE")
    VA, VB = 8, 12
    a_dma_setup32(k, VA, 11, 1280)
    k("v_lshrrev_b32 v2, 4, v1")
    k("v_bfe_u32 v3, v1, 2, 2")
    k("v_xor_b32 v3, v3, v2")
    k("v_lshlrev_b32 v3, 6, v3")
    k("v_and_b32 v4, 3, v1")
    k("v_lshl_add_u32 v3, v4, 4, v3")
    k("s_lshl_b32 s9, s31, 4")
    k("v_add_u32 v2, s9, v2")
    k("v_mul_u32_u24 v2, 3840, v2")
    k("s_lshl_b32 s9, s12, 8")
    k("v_add3_u32 v2, v2, v3, s9")
    for i in range(4):
        k(f"v_add_u32 v{VB+i}, {i*(4*3840-1024)}, v2")
    k("s_lshl_b32 s13, s31, 12")
    k("s_waitcnt lgkmcnt(0)")
    srd(k, 16, 4, S * D * 2, WS_H)
    srd(k, 20, 6, 640 * 3840)
    k("; STAMP 0")
    def dma(st):
        slot = st % NS
        k(f"s_add_u32 m0, s13, {slot*32768}")
        k(f"s_mov_b32 s14, {st*128}")
        for i in range(4):
            k(f"buffer_load_dwordx4 v{VA+i}, s[16:19], s14 offen offset:{i*1024} lds")
        k(f"s_add_u32 m0, s13, {slot*32768 + 16384}")
        k(f"s_mov_b32 s14, {st*64*3840}")
        for i in range(4):
            k(f"buffer_load_dwordx4 v{VB+i}, s[20:23], s14 offen offset:{i*1024} lds")
    WD_, GP, WOD = 32, 48, 56
    def tail_issue():
        k(f"s_load_dwordx4 s[44:47], s[0:1], {KA_WG}")
        k(f"s_load_dwordx2 s[48:49], s[0:1], {KA_WO}")
        k("s_lshl_b32 s33, s12, 4")
        k("s_add_u32 s33, s33, s11          ; job")
        k(f"s_mul_hi_u32 s34, s33, {(1<<32)//5+1}   ; lc")
        k("s_mul_i32 s35, s34, 5")
        k("s_sub_u32 s35, s33, s35          ; ks")
        k("s_cmp_ge_u32 s34, 24")
        k("s_cselect_b32 s36, 1, 0          ; matrix")
        k("s_mul_i32 s37, s36, 24")
        k("s_sub_u32 s37, s34, s37")
        k("v_and_b32 v20, 255, v0")
        k("v_and_b32 v21, 7, v20")
        k("v_lshrrev_b32 v22, 3, v20")
        k("s_lshl_b32 s38, s35, 7")
        k("v_add_u32 v22, s38, v22")
        k("v_mul_u32_u24 v23, 3072, v22")
        k("s_lshl_b32 s39, s37, 7")
        k("v_lshl_add_u32 v23, v21, 4, v23")
        k("v_add_u32 v23, s39, v23")
        k("v_bfe_u32 v24, v1, 3, 2")
        k("v_lshlrev_b32 v24, 5, v24")
        k("v_and_b32 v25, 7, v1")
        k("s_lshl_b32 s39, s31, 3")
        k("s_add_u32 s39, s39, s38")
        k("v_add3_u32 v24, v24, v25, s39")
        k("v_lshlrev_b32 v24, 2, v24")
        k("v_lshrrev_b32 v25, 5, v1")
        k("v_mul_u32_u24 v25, 2560, v25")
        k("v_add_u32 v24, v24, v25")
        k("v_add_u32 v24, 7680, v24")
        k("s_lshl_b32 s39, s33, 8")
        k("v_add_u32 v26, s39, v20")
        k("v_lshlrev_b32 v27, 4, v26")
        k("s_waitcnt lgkmcnt(0)")
        k("s_cmp_eq_u32 s36, 0")
        k("s_cselect_b32 s40, s44, s46")
        k("s_cselect_b32 s41, s45, s47")
        srd(k, 24, 40, 640 * 3072)
        srd(k, 52, 4, 4 * 3840 * 4, WS_MODP)
        srd(k, 56, 48, 640 * 1280)
        for q in range(4):
            k(f"s_mov_b32 s39, {q*15360}")
            k(f"buffer_load_dword v{GP+q}, v24, s[52:55], s39 offen")
        for i in range(4):
            k(f"s_mov_b32 s39, {i*32*3072}")
            k(f"buffer_load_dwordx4 v[{WD_+4*i}:{WD_+4*i+3}], v23, s[24:27], s39 offen")
        k(f"buffer_load_dwordx4 v[{WOD}:{WOD+3}], v27, s[56:59], 0 offen")
        return 9
    loader_loop(k, 10, NS, 8, dma, None, tail_issue)
    k("s_waitcnt vmcnt(5)")
    k(f"v_add_f32 v{GP}, v{GP}, v{GP+1}")
    k(f"v_add_f32 v{GP+2}, v{GP+2}, v{GP+3}")
    k(f"v_add_f32 v{GP}, v{GP}, v{GP+2}")
    bf16_round_f32(k, GP, GP, GP + 1)
    k(f"v_add_f32 v{GP+1}, 1.0, v{GP}")
    bf16_round_f32(k, GP + 1, GP + 1, GP + 2)
    k("v_cmp_gt_u32 vcc, 32, v1")
    k(f"v_cndmask_b32 v{GP}, v{GP+1}, v{GP}, vcc")
    SG = 60
    k("v_lshrrev_b32 v28, 3, v1")
    k("v_lshlrev_b32 v28, 2, v28")
    for i in range(4):
        k(f"v_add_u32 v29, {32*i}, v28")
        k(f"ds_bpermute_b32 v{SG+i}, v29, v{GP}")
        k(f"v_add_u32 v29, {32*i+128}, v28")
        k(f"ds_bpermute_b32 v{SG+4+i}, v29, v{GP}")
    UU, TT, TM = 68, 76, 84
    for r in range(16): k(f"v_mov_b32 v{UU+r}, 0")
    k("s_lshl_b32 s39, s37, 3")
    k("v_add_u32 v29, s39, v21")
    k("v_mul_u32_u24 v30, 5462, v29")
    k("v_lshrrev_b32 v30, 16, v30       ; ct")
    k("v_mul_u32_u24 v31, 12, v30")
    k("v_sub_u32 v31, v29, v31          ; cc")
    k("s_mov_b32 s39, 245760")
    k("v_mul_lo_u32 v92, s39, v30")
    k("s_mul_i32 s39, s36, 12288")
    k("v_lshl_add_u32 v92, v31, 4, v92")
    k("v_add_u32 v92, s39, v92")
    srd(k, 20, 4, 16 * 10 * 24576, WS_WUP)
    k("s_waitcnt lgkmcnt(0)")
    for i in range(4):
        d = WD_ + 4 * i
        k(f"s_waitcnt vmcnt({4 - i})" if i == 0 else "s_waitcnt vmcnt(4)")
        for q in range(4):
            k(f"v_lshlrev_b32 v{TM+2*q}, 16, v{d+q}")
            k(f"v_and_b32 v{TM+2*q+1}, 0xffff0000, v{d+q}")
        for q in range(8): k(f"v_fmac_f32 v{TT+q}, v{SG+i}, v{TM+q}")
        for q in range(8): k(f"v_mul_f32 v{TM+q}, v{SG+4+i}, v{TM+q}")
        for q in range(8): k(f"v_add_f32 v{UU+q}, v{UU+q}, v{TM+q}")
        for q in range(4): k(f"v_cvt_pk_bf16_f32 v{d+q}, v{TM+2*q}, v{TM+2*q+1}")
        k(f"v_add_u32 v93, {32*i}, v22")
        k("v_lshrrev_b32 v94, 6, v93")
        k("v_mul_u32_u24 v93, 192, v93")
        k("v_mul_u32_u24 v94, 12288, v94")
        k("v_add3_u32 v93, v93, v94, v92")
        k(f"buffer_store_dwordx4 v[{d}:{d+3}], v93, s[20:23], 0 offen")
    def rscatter(B):
        for e in range(4):
            k(f"v_permlane32_swap_b32 v{B+e}, v{B+e+4}")
            k(f"v_add_f32 v{B+e}, v{B+e}, v{B+e+4}")
        for e in range(2):
            k(f"v_permlane16_swap_b32 v{B+e}, v{B+e+2}")
            k(f"v_add_f32 v{B+e}, v{B+e}, v{B+e+2}")
        k(f"v_add_f32_dpp v{B}, v{B}, v{B} row_ror:8 row_mask:0xf bank_mask:0xf")
        k(f"v_add_f32_dpp v{B+1}, v{B+1}, v{B+1} row_ror:8 row_mask:0xf bank_mask:0xf")
        k(f"v_cndmask_b32 v{B}, v{B}, v{B+1}, vcc")
    k("v_and_b32 v93, 8, v1")
    k("v_cmp_ne_u32 vcc, 0, v93")
    rscatter(UU); rscatter(TT)
    k("v_mul_u32_u24 v93, 384, v30")
    k("v_lshl_add_u32 v93, v31, 3, v93")
    k("v_lshrrev_b32 v94, 3, v1")
    k("v_add_u32 v93, v93, v94")
    k("s_mul_i32 s39, s36, 96")
    k("v_add_u32 v93, s39, v93")
    k("v_lshlrev_b32 v93, 2, v93")
    srd(k, 24, 4, 16 * 384 * 4, WS_UT)
    k(f"buffer_atomic_add_f32 v{UU}, v93, s[24:27], 0 offen")
    k(f"buffer_atomic_add_f32 v{TT}, v93, s[24:27], 0 offen offset:768")
    divconst(k, 28, 26, 80, 39, 61440)
    k("v_mul_u32_u24 v29, 80, v28")
    k("v_sub_u32 v29, v26, v29")
    divconst(k, 30, 29, 10, 39, 80)
    k("v_mul_u32_u24 v31, 10, v30")
    k("v_sub_u32 v29, v29, v31           ; cc")
    k("v_and_b32 v31, 0xfffffff3, v28")
    k("v_bfe_u32 v93, v28, 2, 1")
    k("v_lshl_or_b32 v31, v93, 3, v31")
    k("v_bfe_u32 v93, v28, 3, 1")
    k("v_lshl_or_b32 v31, v93, 2, v31")
    k(f"s_mov_b32 s39, {640*160}")
    k("v_mul_lo_u32 v30, s39, v30")
    k("v_mul_u32_u24 v31, 160, v31")
    k("v_lshlrev_b32 v29, 4, v29")
    k("v_add3_u32 v30, v30, v29, v31")
    k("s_mov_b32 s39, 51200")
    k("v_cmp_gt_u32 vcc, s39, v26")
    k("v_mov_b32 v31, 0x7ffffff0")
    k("v_cndmask_b32 v30, v31, v30, vcc")
    srd(k, 20, 4, 8 * 640 * 160, WS_WOP)
    k("s_waitcnt vmcnt(6)")
    k(f"buffer_store_dwordx4 v[{WOD}:{WOD+3}], v30, s[20:23], 0 offen")
    k("s_endpgm")
    k.label("QKV_COMPUTE")
    k("v_and_b32 v2, 31, v1")
    k("v_lshrrev_b32 v3, 5, v1")
    k("v_bfe_u32 v28, v2, 1, 3")
    k("v_lshlrev_b32 v2, 7, v2")
    k("s_lshl_b32 s10, s8, 12")
    k("v_add_u32 v2, s10, v2")
    for ks in range(4):
        k(f"v_add_u32 v29, {2*ks}, v3")
        k("v_xor_b32 v29, v29, v28")
        k(f"v_lshl_add_u32 v{RA+ks}, v29, 4, v2")
        k(f"v_add_u32 v{RA+4+ks}, 65536, v{RA+ks}")
        k(f"v_add_u32 v{RA+8+ks}, 131072, v{RA+ks}")
    k("v_lshrrev_b32 v2, 5, v1")
    k("v_bfe_u32 v3, v1, 2, 2")
    k("v_lshl_add_u32 v2, v2, 3, v3")
    k("v_lshlrev_b32 v2, 8, v2")
    k("v_bfe_u32 v28, v1, 4, 1")
    k("v_lshl_add_u32 v2, v28, 5, v2")
    k("v_and_b32 v28, 3, v1")
    k("v_lshl_add_u32 v2, v28, 3, v2")
    k("v_add_u32 v2, 16384, v2")
    for nt in range(4):
        k(f"v_xor_b32 v28, {nt}, v3")
        k(f"v_lshl_add_u32 v{RB+nt}, v28, 6, v2")
        k(f"v_add_u32 v{RB+4+nt}, 65536, v{RB+nt}")
        k(f"v_add_u32 v{RB+8+nt}, 131072, v{RB+nt}")
    def reads(step):
        st, ks = divmod(step, 4); slot = st % NS; sb = step & 1
        bs, off = slot >> 1, (slot & 1) * 32768
        a = f"ds_read_b128 v[{AF+4*sb}:{AF+4*sb+3}], v{RA+4*bs+ks} offset:{off}"
        out = []
        for nt in range(4):
            d = BF + (sb * 4 + nt) * 4
            g = [f"ds_read_b64_tr_b16 v[{d+2*j}:{d+2*j+1}], v{RB+4*bs+nt} offset:{off + (16*ks+4*j)*256}" for j in range(2)]
            out.append(([a] if nt == 0 else []) + g)
        return out
    def mf(swap):
        def f(step, nt):
            sb = step & 1; a = AF + 4 * sb; b = BF + (sb * 4 + nt) * 4; d = ACC + 16 * nt
            c = "0" if step == 0 else None
            return [mfma32(d, a, b, c) if swap else mfma32(d, b, a, c)]
        return f
    k(f"s_load_dwordx4 s[44:47], s[0:1], {KA_WG}")
    k(f"s_load_dwordx2 s[48:49], s[0:1], {KA_WO}")
    k("s_lshl_b32 s9, s12, 4")
    k("s_add_u32 s9, s9, s11")
    k("s_lshl_b32 s9, s9, 6")
    k("v_add_u32 v28, s9, v1")
    k("v_lshlrev_b32 v28, 7, v28")
    k("s_waitcnt lgkmcnt(0)")
    if not os.environ.get("NO_TOUCH"):
        k("s_cmp_eq_u32 s8, 0")
        k("s_cselect_b32 s50, s44, s46")
        k("s_cselect_b32 s51, s45, s47")
        k("s_cmp_eq_u32 s8, 2")
        k("s_cselect_b32 s50, s48, s50")
        k("s_cselect_b32 s51, s49, s51")
        k(f"s_mov_b32 s10, {640*3072}")
        k(f"s_cselect_b32 s9, {640*1280}, s10")
        k("s_cmp_eq_u32 s8, 3")
        k("s_cselect_b32 s9, 0, s9")
        k("s_mov_b32 s52, s50")
        k("s_mov_b32 s53, s51")
        k("s_mov_b32 s54, s9")
        k("s_mov_b32 s55, 0x00020000")
        k("buffer_load_dword v29, v28, s[52:55], 0 offen")
    k("s_cmp_ge_u32 s12, 10")
    k("s_cbranch_scc1 QKV_V")
    compute_loop(k, 10, 4, reads, mf(False), 0)
    k("s_cmp_ge_u32 s12, 5")
    k("s_cbranch_scc1 QKV_K")
    srd(k, 24, 4, 32 * 64 * 1280, WS_Q)
    k(f"s_mov_b32 s16, {64*1280}")
    k("s_movk_i32 s17, 1280")
    k("s_lshl_b32 s10, s12, 5")
    qscale = 1.4426950408889634 / (20 ** 0.5)
    k(f"s_mov_b32 s18, {hex(f2u(qscale))}")
    for r in range(64): k(f"v_mul_f32 v{ACC+r}, s18, v{ACC+r}")
    k("s_branch QKV_QK")
    k.label("QKV_K")
    srd(k, 24, 4, 32 * KV_HEAD, WS_KV)
    k(f"s_mov_b32 s16, {KV_HEAD}")
    k(f"s_movk_i32 s17, {KV_TILE}")
    k("s_sub_u32 s10, s12, 5")
    k("s_lshl_b32 s10, s10, 5")
    k.label("QKV_QK")
    k("s_lshl_b32 s9, s11, 2")
    k("s_add_u32 s9, s9, s8")
    k("s_mul_i32 s9, s9, s17")
    k("v_and_b32 v2, 31, v1")
    k("v_lshrrev_b32 v3, 5, v1")
    k("v_add_u32 v3, s10, v3")
    k("v_lshlrev_b32 v26, 4, v2")
    k("v_lshlrev_b32 v27, 3, v2")
    k("v_add_u32 v27, 1024, v27")
    for nt in range(4):
        for j in range(4):
            a = ACC + 16 * nt + 4 * j
            t = 28 + 2 * (j % 4)
            k(f"v_cvt_pk_bf16_f32 v{t}, v{a}, v{a+1}")
            k(f"v_cvt_pk_bf16_f32 v{t+1}, v{a+2}, v{a+3}")
            k(f"v_add_u32 v4, {8*nt+2*j}, v3")
            k("v_mul_u32_u24 v5, 205, v4")
            k("v_lshrrev_b32 v5, 10, v5            ; head")
            k("v_mad_i32_i24 v6, v5, -5, v4        ; dq")
            k("v_lshrrev_b32 v7, 1, v6")
            k("v_lshl_add_u32 v7, v7, 9, v26")
            k("v_and_b32 v8, 1, v6")
            k("v_lshl_add_u32 v7, v8, 3, v7")
            k("v_cmp_eq_u32 vcc, 4, v6")
            k("v_mul_lo_u32 v5, s16, v5")
            k("v_cndmask_b32 v7, v7, v27, vcc")
            k("v_add_u32 v7, v7, v5")
            k(f"buffer_store_dwordx2 v[{t}:{t+1}], v7, s[24:27], s9 offen")
    k("s_endpgm")
    k.label("QKV_V")
    compute_loop(k, 10, 4, reads, mf(True), 0)
    srd(k, 24, 4, 32 * KV_HEAD, WS_KV)
    k("s_lshl_b32 s9, s11, 2")
    k("s_add_u32 s9, s9, s8")
    k(f"s_mul_i32 s9, s9, {KV_TILE}")
    k("s_add_u32 s9, s9, 1280")
    k("v_and_b32 v2, 31, v1")
    k("v_lshrrev_b32 v3, 5, v1")
    k("v_mul_u32_u24 v3, 336, v3")
    k("s_sub_u32 s10, s12, 10")
    k("s_lshl_b32 s10, s10, 7")
    k("v_add_u32 v2, s10, v2")
    k(f"s_mov_b32 s10, {KV_HEAD}")
    for nt in range(4):
        k(f"v_add_u32 v4, {32*nt}, v2")
        k("v_mul_u32_u24 v5, 3277, v4")
        k("v_lshrrev_b32 v5, 16, v5")
        k("v_mul_u32_u24 v6, 20, v5")
        k("v_sub_u32 v6, v4, v6")
        k("v_mul_lo_u32 v5, s10, v5")
        k("v_lshlrev_b32 v6, 4, v6")
        k("v_add3_u32 v7, v5, v6, v3")
        for m in range(2):
            a = ACC + 16 * nt + 8 * m
            t = 28 + 4 * m
            for q in range(4):
                k(f"v_cvt_pk_bf16_f32 v{t+q}, v{a+2*q}, v{a+2*q+1}")
            k(f"buffer_store_dwordx4 v[{t}:{t+3}], v7, s[24:27], s9 offen offset:{672*m}")
    k("s_endpgm")
    k.label("QKV_SIDE")
    k("s_cmp_ge_u32 s11, 2")
    k("s_cbranch_scc1 QKV_END")
    k("v_cmp_gt_u32 vcc, 160, v0")
    k("s_and_saveexec_b64 s[28:29], vcc")
    k("s_cbranch_execz QKV_END")
    k("s_mul_i32 s9, s11, 7680")
    k("s_add_u32 s9, s9, 5120")
    k("v_lshlrev_b32 v2, 4, v0")
    k("s_waitcnt lgkmcnt(0)")
    srd(k, 16, 4, 4 * 3840 * 4, WS_MODP)
    srd(k, 20, 4, 6 * 640 * 4, WS_MODV)
    for q in range(4):
        k(f"s_add_u32 s10, s9, {q*15360}")
        k(f"buffer_load_dwordx4 v[{8+4*q}:{11+4*q}], v2, s[16:19], s10 offen")
    k("s_waitcnt vmcnt(0)")
    for r in range(4):
        k(f"v_add_f32 v{8+r}, v{8+r}, v{12+r}")
        k(f"v_add_f32 v{16+r}, v{16+r}, v{20+r}")
    for r in range(4): k(f"v_add_f32 v{8+r}, v{8+r}, v{16+r}")
    for r in range(4): bf16_round_f32(k, 8 + r, 8 + r, 24)
    k("buffer_store_dwordx4 v[8:11], v2, s[20:23], s9 offen")
    k.label("QKV_END")
    k("s_endpgm")
    k.fix_hazards()
    return name, header(name) + k.text() + descriptor(name, ACC + 64), (256, 512, NS * 32768)

def gen_up2():
    name = "up_kernel"
    k = K()
    NS = 4
    AF, BF, ACC = 16, 24, 72
    RA, RB = 4, 8
    prologue_ids(k, "UP_END")
    k(f"s_load_dwordx2 s[4:5], s[0:1], {KA_WS}")
    k("s_and_b32 s3, s2, 7")
    k("s_lshr_b32 s13, s2, 3")
    k("s_and_b32 s14, s3, 1")
    k("s_lshl_b32 s14, s14, 3")
    k("s_and_b32 s15, s13, 7")
    k("s_add_u32 s11, s14, s15")
    k("s_lshr_b32 s14, s3, 1")
    k("s_lshl_b32 s14, s14, 2")
    k("s_lshr_b32 s15, s13, 3")
    k("s_add_u32 s12, s14, s15")
    wave_ids(k)
    k("s_cmp_lt_u32 s8, 4")
    k("s_cbranch_scc1 UP_COMPUTE")
    VA, VB = 8, 12
    a_dma_setup32(k, VA, 11, 1280)
    k("v_lshlrev_b32 v2, 4, v1")
    k("s_mul_i32 s9, s31, 6144")
    k(f"s_mul_i32 s10, s12, {10*24576}")
    k("s_add_u32 s9, s9, s10")
    k(f"v_add_u32 v{VB}, s9, v2")
    k(f"v_add_u32 v{VB+1}, 4096, v{VB}")
    k("s_lshl_b32 s13, s31, 12")
    k("s_mul_i32 s15, s31, 6144")
    k("s_waitcnt lgkmcnt(0)")
    srd(k, 16, 4, S * D * 2, WS_X1)
    srd(k, 20, 4, 16 * 10 * 24576, WS_WUP)
    k("; STAMP 0")
    def dma(st):
        slot = st % NS
        k(f"s_add_u32 m0, s13, {slot*16384}")
        k(f"s_mov_b32 s14, {st*128}")
        for i in range(4):
            k(f"buffer_load_dwordx4 v{VA+i}, s[16:19], s14 offen offset:{i*1024} lds")
        k(f"s_add_u32 m0, s15, {65536 + slot*24576}")
        k(f"s_mov_b32 s14, {st*24576}")
        for i in range(4):
            k(f"buffer_load_dwordx4 v{VB}, s[20:23], s14 offen offset:{i*1024} lds")
        k(f"s_add_u32 m0, s15, {65536 + slot*24576 + 4096}")
        k("s_nop 0")
        for i in range(2):
            k(f"buffer_load_dwordx4 v{VB+1}, s[20:23], s14 offen offset:{i*1024} lds")
    def ut_load():
        srd(k, 24, 4, 16 * 384 * 4, WS_UT)
        k("v_lshlrev_b32 v2, 4, v1")
        k("s_mul_i32 s14, s12, 1536")
        k("s_lshl_b32 s9, s31, 10")
        k("s_add_u32 s14, s14, s9")
        k("s_add_u32 m0, s9, 49152")
        k("s_cmp_ge_u32 s31, 2")
        k("s_cbranch_scc1 UP_UT_DONE")
        k("buffer_load_dwordx4 v2, s[24:27], s14 offen lds")
        k.label("UP_UT_DONE")
        k("s_waitcnt vmcnt(0)")
        k("s_barrier")
    loader_loop(k, 10, NS, 10, dma, ut_load)
    k("s_endpgm")
    k.label("UP_COMPUTE")
    k("v_and_b32 v2, 31, v1")
    k("v_lshrrev_b32 v3, 5, v1")
    k("v_bfe_u32 v14, v2, 1, 3")
    k("v_lshlrev_b32 v2, 7, v2")
    k("s_lshl_b32 s10, s8, 12")
    k("v_add_u32 v2, s10, v2")
    for ks in range(4):
        k(f"v_add_u32 v15, {2*ks}, v3")
        k("v_xor_b32 v15, v15, v14")
        k(f"v_lshl_add_u32 v{RA+ks}, v15, 4, v2")
    k("v_lshrrev_b32 v2, 5, v1")
    k("v_bfe_u32 v3, v1, 2, 2")
    k("v_lshl_add_u32 v2, v2, 3, v3")
    k("v_mul_u32_u24 v2, 192, v2")
    k("v_bfe_u32 v14, v1, 4, 1")
    k("v_lshl_add_u32 v2, v14, 5, v2")
    k("v_and_b32 v14, 3, v1")
    k("v_lshl_add_u32 v2, v14, 3, v2")
    k(f"v_add_u32 v{RB}, 65536, v2")
    k(f"v_add_u32 v{RB+1}, {65536+49152}, v2")
    def reads(step):
        st, ks = divmod(step, 4); slot = st % NS; sb = step & 1
        a = f"ds_read_b128 v[{AF+4*sb}:{AF+4*sb+3}], v{RA+ks} offset:{slot*16384}"
        out = []
        for nt in range(6):
            d = BF + (sb * 6 + nt) * 4
            off = (slot & 1) * 24576 + (nt // 3) * 12288 + (nt % 3) * 64
            g = [f"ds_read_b64_tr_b16 v[{d+2*j}:{d+2*j+1}], v{RB+(slot>>1)} offset:{off + (16*ks+4*j)*192}" for j in range(2)]
            out.append(([a] if nt == 0 else []) + g)
        return out
    k("v_and_b32 v2, 31, v1")
    k("s_lshl_b32 s9, s11, 7")
    k("s_lshl_b32 s10, s8, 5")
    k("s_add_u32 s9, s9, s10")
    k("v_add_u32 v2, s9, v2")
    k("v_lshlrev_b32 v2, 6, v2")
    k("s_waitcnt lgkmcnt(0)")
    srd(k, 28, 4, 2048 * 64, WS_STAT)
    STT = 168
    for q in range(4): k(f"buffer_load_dwordx4 v[{STT+4*q}:{STT+4*q+3}], v2, s[28:31], 0 offen offset:{16*q}")
    def mf(step, nt):
        sb = step & 1
        return [mfma32(ACC + 16 * nt, BF + (sb * 6 + nt) * 4, AF + 4 * sb, "0" if step == 0 else None)]
    compute_loop(k, 10, 4, reads, mf, 0)
    k("s_waitcnt vmcnt(0)")
    k(f"v_add_f32 v10, v{STT}, v{STT+2}")
    k(f"v_add_f32 v11, v{STT+1}, v{STT+3}")
    for q in range(2, 8):
        k(f"v_add_f32 v10, v10, v{STT+2*q}")
        k(f"v_add_f32 v11, v11, v{STT+2*q+1}")
    k("s_barrier")
    k(f"s_mov_b32 s9, {hex(f2u(1.0/640))}")
    k("v_mul_f32 v10, s9, v10            ; mean")
    k("v_mul_f32 v13, v10, v10")
    k("v_fma_f32 v11, v11, s9, -v13      ; variance")
    k("v_max_f32 v11, 0, v11")
    k("v_add_f32 v11, 0x3727c5ac, v11")
    k("v_rsq_f32 v11, v11")
    k("s_nop 0")
    k("v_mul_f32 v13, v10, v11")
    k("v_sub_f32 v12, 0, v13")
    k("v_mov_b32 v13, v12")
    k("v_mov_b32 v10, v11")
    k("v_lshrrev_b32 v14, 5, v1")
    k("v_lshlrev_b32 v14, 4, v14")
    k("v_add_u32 v14, 49152, v14")
    srd(k, 24, 4, S * F * 2, WS_G)
    k("v_and_b32 v2, 31, v1")
    k("s_lshl_b32 s9, s11, 7")
    k("s_lshl_b32 s10, s8, 5")
    k("s_add_u32 s9, s9, s10")
    k("v_add_u32 v2, s9, v2")
    k("v_mul_u32_u24 v2, 3072, v2")
    k("v_lshrrev_b32 v3, 5, v1")
    k("v_lshlrev_b32 v3, 4, v3")
    k("s_mul_i32 s9, s12, 192")
    k("v_add3_u32 v2, v2, v3, s9")
    c1 = -2.0 * 0.7978845608028654 * 1.4426950408889634
    c2 = c1 * 0.044715
    k(f"v_mov_b32 v4, {hex(f2u(c1))}")
    k(f"v_mov_b32 v5, {hex(f2u(c1))}")
    k(f"v_mov_b32 v6, {hex(f2u(c2))}")
    k(f"v_mov_b32 v7, {hex(f2u(c2))}")
    k("v_mov_b32 v8, 1.0")
    k("v_mov_b32 v9, 1.0")
    pk = lambda r: f"v[{r}:{r+1}]"
    for nt in range(3):
        for jp in range(2):
            g = ACC + 16 * nt + 8 * jp; u = g + 48
            T = 16 + 8 * ((2 * nt + jp) % 2)
            U = 40
            for mat in range(2):
                for jj in range(2):
                    col = 32 * nt + 16 * jp + 8 * jj
                    k(f"ds_read_b128 v[{U+8*mat+4*jj}:{U+8*mat+4*jj+3}], v14 offset:{(mat*96 + col)*4}")
                    k(f"ds_read_b128 v[{U+16+8*mat+4*jj}:{U+16+8*mat+4*jj+3}], v14 offset:{768 + (mat*96 + col)*4}")
            k("s_waitcnt lgkmcnt(0)")
            for mat in range(2):
                base = g if mat == 0 else u
                for r in range(0, 8, 2):
                    k(f"v_pk_fma_f32 {pk(U+16+8*mat+r)}, {pk(U+8*mat+r)}, v[12:13], {pk(U+16+8*mat+r)}")
                for r in range(0, 8, 2):
                    k(f"v_pk_fma_f32 {pk(base+r)}, {pk(base+r)}, v[10:11], {pk(U+16+8*mat+r)}")
            for r in range(0, 8, 2): k(f"v_pk_mul_f32 {pk(T+r)}, {pk(g+r)}, {pk(g+r)}")
            for r in range(0, 8, 2): k(f"v_pk_fma_f32 {pk(T+r)}, {pk(T+r)}, v[6:7], v[4:5]")
            for r in range(0, 8, 2): k(f"v_pk_mul_f32 {pk(T+r)}, {pk(T+r)}, {pk(g+r)}")
            for r in range(8): k(f"v_exp_f32 v{T+r}, v{T+r}")
            for r in range(0, 8, 2): k(f"v_pk_mul_f32 {pk(g+r)}, {pk(g+r)}, {pk(u+r)}")
            for r in range(0, 8, 2): k(f"v_pk_add_f32 {pk(T+r)}, {pk(T+r)}, v[8:9]")
            for r in range(8): k(f"v_rcp_f32 v{T+r}, v{T+r}")
            for r in range(0, 8, 2): k(f"v_pk_mul_f32 {pk(T+r)}, {pk(T+r)}, {pk(g+r)}")
            t = 32 + 4 * ((2 * nt + jp) % 2)
            for q in range(4): k(f"v_cvt_pk_bf16_f32 v{t+q}, v{T+2*q}, v{T+2*q+1}")
            k(f"v_permlane32_swap_b32 v{t}, v{t+2}")
            k(f"v_permlane32_swap_b32 v{t+1}, v{t+3}")
            k(f"buffer_store_dwordx4 v[{t}:{t+3}], v2, s[24:27], 0 offen offset:{64*nt + 32*jp}")
    k.label("UP_END")
    k("s_endpgm")
    k.fix_hazards()
    return name, header(name) + k.text() + descriptor(name, ACC + 96 + 16), (256, 512, 163840)

def gen_narrow2(name, Kdim, a_off, b_off, resid_is_input, gate_idx, out_is_output, stats=False):
    k = K()
    KH = Kdim // 2; NST = KH // 64; lda = Kdim * 2
    NS = 4
    RA, RB = 4, 6
    AF, BF, ACC = 12, 28, 68
    RES, GT = 108, 120
    END = f"{name}_END"
    prologue_ids(k, END)
    k(f"s_load_dwordx2 s[4:5], s[0:1], {KA_WS}")
    if resid_is_input: k(f"s_load_dwordx2 s[6:7], s[0:1], {KA_X}")
    if out_is_output: k(f"s_load_dwordx2 s[6:7], s[0:1], {KA_OUT}")
    k("s_and_b32 s3, s2, 7")
    k("s_lshr_b32 s13, s2, 3")
    k("s_and_b32 s14, s3, 3")
    k("s_lshl_b32 s14, s14, 3")
    k("s_and_b32 s15, s13, 7")
    k("s_add_u32 s11, s14, s15")
    k("s_lshr_b32 s14, s3, 2")
    k("s_lshl_b32 s14, s14, 2")
    k("s_lshr_b32 s15, s13, 3")
    k("s_add_u32 s12, s14, s15")
    wave_ids(k)
    k("s_and_b32 s28, s31, 1")
    k("s_lshr_b32 s29, s31, 1           ; k half")
    k("s_lshl_b32 s9, s11, 6")
    k("s_lshl_b32 s10, s28, 5")
    k("s_add_u32 s30, s9, s10")
    k("s_cmp_lt_u32 s8, 4")
    k(f"s_cbranch_scc1 {name}_COMPUTE")
    VA, VB = 8, 12
    k("v_lshrrev_b32 v2, 3, v1")
    k("v_lshrrev_b32 v3, 4, v1")
    k("v_and_b32 v4, 7, v1")
    k("v_add_u32 v2, s30, v2")
    k(f"s_mov_b32 s10, {lda}")
    k("v_mul_lo_u32 v2, s10, v2")
    k(f"s_mul_i32 s10, s29, {KH*2}")
    k("v_add_u32 v2, s10, v2")
    for i in range(4):
        k(f"v_xor_b32 v5, {(i&1)*4}, v3")
        k("v_xor_b32 v5, v5, v4")
        k("v_lshlrev_b32 v5, 4, v5")
        k(f"v_add_u32 v5, {i*8*lda - i*1024}, v5")
        k(f"v_add_u32 v{VA+i}, v2, v5")
    k("v_lshlrev_b32 v2, 4, v1")
    k(f"s_mul_i32 s9, s12, {Kdim*160}")
    k(f"s_mul_i32 s10, s29, {KH*160}")
    k("s_add_u32 s9, s9, s10")
    k("s_mul_i32 s10, s28, 5120")
    k("s_add_u32 s9, s9, s10")
    k(f"v_add_u32 v{VB}, s9, v2")
    k(f"v_add_u32 v{VB+1}, 4096, v{VB}")
    k("s_lshl_b32 s13, s31, 12")
    k("s_mul_i32 s15, s29, 10240")
    k("s_mul_i32 s10, s28, 5120")
    k("s_add_u32 s15, s15, s10")
    k("s_waitcnt lgkmcnt(0)")
    srd(k, 16, 4, S * Kdim * 2, a_off)
    srd(k, 20, 4, 8 * Kdim * 160, b_off)
    k("; STAMP 0")
    def dma(st):
        slot = st % NS
        k(f"s_add_u32 m0, s13, {slot*16384}")
        k(f"s_mov_b32 s14, {st*128}")
        for i in range(4):
            k(f"buffer_load_dwordx4 v{VA+i}, s[16:19], s14 offen offset:{i*1024} lds")
        k(f"s_add_u32 m0, s15, {65536 + slot*20480}")
        k(f"s_mov_b32 s14, {st*10240}")
        for i in range(4):
            k(f"buffer_load_dwordx4 v{VB}, s[20:23], s14 offen offset:{i*1024} lds")
        k(f"s_add_u32 m0, s15, {65536 + slot*20480 + 4096}")
        k("s_nop 0")
        k(f"buffer_load_dwordx4 v{VB+1}, s[20:23], s14 offen lds")
    loader_loop(k, NST, NS, 9, dma)
    k("s_barrier")
    k("s_barrier")
    k("s_endpgm")
    k.label(f"{name}_COMPUTE")
    k("v_and_b32 v2, 15, v1")
    k("v_lshrrev_b32 v3, 4, v1          ; g")
    k("v_lshrrev_b32 v10, 1, v2")
    k("v_lshlrev_b32 v2, 7, v2")
    k("s_lshl_b32 s13, s8, 12")
    k("v_add_u32 v2, s13, v2")
    for ks in range(2):
        k(f"v_add_u32 v11, {4*ks}, v3")
        k("v_xor_b32 v11, v11, v10")
        k(f"v_lshl_add_u32 v{RA+ks}, v11, 4, v2")
    k("v_lshrrev_b32 v2, 5, v1")
    k("v_lshlrev_b32 v2, 4, v2")
    k("v_bfe_u32 v10, v1, 4, 1")
    k("v_lshl_add_u32 v2, v10, 2, v2")
    k("v_bfe_u32 v10, v1, 2, 2")
    k("v_add_u32 v2, v2, v10")
    k("v_mul_u32_u24 v2, 160, v2")
    k("v_and_b32 v10, 3, v1")
    k("v_lshl_add_u32 v2, v10, 3, v2")
    k("s_mul_i32 s10, s29, 10240")
    k("s_add_u32 s10, s10, 65536")
    k(f"v_add_u32 v{RB}, s10, v2")
    k(f"v_add_u32 v{RB+1}, 40960, v{RB}")
    k("v_and_b32 v2, 15, v1")
    k("s_lshl_b32 s10, s29, 4")
    k("s_add_u32 s10, s10, s30")
    k("v_add_u32 v2, s10, v2")
    k("v_mul_u32_u24 v8, 1280, v2")
    k("s_mul_i32 s10, s12, 160")
    k("v_lshl_add_u32 v8, v3, 3, v8")
    k("v_add_u32 v8, s10, v8")
    k("s_mul_i32 s10, s12, 320")
    k("v_lshlrev_b32 v9, 4, v3")
    k("v_add_u32 v9, s10, v9")
    k("s_waitcnt lgkmcnt(0)")
    if resid_is_input: srd(k, 24, 6, S * D * 2)
    else: srd(k, 24, 4, S * D * 2, WS_X1)
    if out_is_output: srd(k, 32, 6, S * D * 2)
    else: srd(k, 32, 4, S * D * 2, WS_X1)
    srd(k, 36, 4, 6 * 640 * 4, WS_MODV)
    for nt in range(5):
        k(f"buffer_load_dwordx2 v[{RES+2*nt}:{RES+2*nt+1}], v8, s[24:27], 0 offen offset:{32*nt}")
    k(f"s_mov_b32 s14, {gate_idx*2560}")
    for nt in range(5):
        k(f"buffer_load_dwordx4 v[{GT+4*nt}:{GT+4*nt+3}], v9, s[36:39], s14 offen offset:{64*nt}")
    def reads(step):
        st, ks = divmod(step, 2); slot = st % NS; sb = step & 1
        a = [f"ds_read_b128 v[{AF+(sb*2+mb)*4}:{AF+(sb*2+mb)*4+3}], v{RA+ks} offset:{slot*16384 + mb*2048}" for mb in range(2)]
        out = []
        for nt in range(5):
            d = BF + (sb * 5 + nt) * 4
            g = [f"ds_read_b64_tr_b16 v[{d+2*j}:{d+2*j+1}], v{RB+(slot>>1)} offset:{(slot&1)*20480 + (32*ks+8*j)*160 + nt*32}" for j in range(2)]
            out.append((a if nt == 0 else []) + g)
        return out
    def mf(step, nt):
        sb = step & 1
        return [mfma16(ACC + (nt * 2 + mb) * 4, BF + (sb * 5 + nt) * 4, AF + (sb * 2 + mb) * 4, "0" if step == 0 else None) for mb in range(2)]
    compute_loop(k, NST, 2, reads, mf, 0)
    k("s_barrier")
    k("v_lshlrev_b32 v2, 4, v1")
    k("s_mul_i32 s9, s8, 5120")
    k("v_add_u32 v3, s9, v2")
    k("s_xor_b32 s10, s8, 2")
    k("s_mul_i32 s10, s10, 5120")
    k("v_add_u32 v4, s10, v2")
    k("s_cmp_eq_u32 s29, 0")
    k(f"s_cbranch_scc1 {name}_KH0")
    for nt in range(5):
        d = ACC + (nt * 2 + 0) * 4
        k(f"ds_write_b128 v3, v[{d}:{d+3}] offset:{1024*nt}")
    for nt in range(5):
        for r in range(4): k(f"v_mov_b32 v{ACC+(nt*2)*4+r}, v{ACC+(nt*2+1)*4+r}")
    k(f"s_branch {name}_JOIN")
    k.label(f"{name}_KH0")
    for nt in range(5):
        d = ACC + (nt * 2 + 1) * 4
        k(f"ds_write_b128 v3, v[{d}:{d+3}] offset:{1024*nt}")
    k.label(f"{name}_JOIN")
    k("s_waitcnt lgkmcnt(0)")
    k("s_barrier")
    for nt in range(5):
        k(f"ds_read_b128 v[{BF+4*nt}:{BF+4*nt+3}], v4 offset:{1024*nt}")
    k("s_waitcnt vmcnt(0) lgkmcnt(0)")
    for nt in range(5):
        d = ACC + nt * 8
        for r in range(4): k(f"v_add_f32 v{d+r}, v{d+r}, v{BF+4*nt+r}")
        k(f"v_lshlrev_b32 v12, 16, v{RES+2*nt}")
        k(f"v_and_b32 v13, 0xffff0000, v{RES+2*nt}")
        k(f"v_lshlrev_b32 v14, 16, v{RES+2*nt+1}")
        k(f"v_and_b32 v15, 0xffff0000, v{RES+2*nt+1}")
        for r in range(4): k(f"v_fmac_f32 v{12+r}, v{d+r}, v{GT+4*nt+r}")
        k(f"v_cvt_pk_bf16_f32 v{16+2*(nt%2)}, v12, v13")
        k(f"v_cvt_pk_bf16_f32 v{17+2*(nt%2)}, v14, v15")
        k(f"buffer_store_dwordx2 v[{16+2*(nt%2)}:{17+2*(nt%2)}], v8, s[32:35], 0 offen offset:{32*nt}")
        if stats:
            t = 16 + 2 * (nt % 2)
            k(f"v_lshlrev_b32 v12, 16, v{t}")
            k(f"v_and_b32 v13, 0xffff0000, v{t}")
            k(f"v_lshlrev_b32 v14, 16, v{t+1}")
            k(f"v_and_b32 v15, 0xffff0000, v{t+1}")
            if nt == 0:
                k("v_add_f32 v20, v12, v13"); k("v_add_f32 v21, v14, v15")
                k("v_mul_f32 v22, v12, v12"); k("v_mul_f32 v23, v13, v13")
            else:
                k("v_add_f32 v20, v20, v12"); k("v_add_f32 v21, v21, v13")
                k("v_fmac_f32 v22, v12, v12"); k("v_fmac_f32 v23, v13, v13")
                k("v_add_f32 v20, v20, v14"); k("v_add_f32 v21, v21, v15")
            k("v_fmac_f32 v22, v14, v14"); k("v_fmac_f32 v23, v15, v15")
    if stats:
        k("v_add_f32 v20, v20, v21")
        k("v_add_f32 v21, v22, v23")
        for sw in ("v_permlane32_swap_b32", "v_permlane16_swap_b32"):
            k("v_mov_b32 v22, v20"); k("v_mov_b32 v23, v21")
            k(f"{sw} v20, v22"); k(f"{sw} v21, v23")
            k("v_add_f32 v20, v20, v22"); k("v_add_f32 v21, v21, v23")
        srd(k, 24, 4, 2048 * 64, WS_STAT)
        k("v_and_b32 v2, 15, v1")
        k("s_lshl_b32 s10, s29, 4")
        k("s_add_u32 s10, s10, s30")
        k("v_add_u32 v2, s10, v2")
        k("v_lshlrev_b32 v2, 6, v2")
        k("s_lshl_b32 s10, s12, 3")
        k("s_mov_b64 exec, 0xffff")
        k("buffer_store_dwordx2 v[20:21], v2, s[24:27], s10 offen")
    k.label(END)
    k("s_endpgm")
    k.fix_hazards()
    return name, header(name) + k.text() + descriptor(name, 140), (256, 512, 147456)

def gen_wo2(): return gen_narrow2("wo_kernel", 640, WS_O, WS_WOP, True, 2, False, True)
def gen_down2(): return gen_narrow2("down_kernel", 1536, WS_G, WS_WDP, False, 5, True)
```

```python
from common import *
import struct
def f2u(x): return struct.unpack('<I', struct.pack('<f', x))[0]

VA_DMA = 8
VB_DMA = 12
VA_RD  = 18
VB_RD  = 22
AF     = 28
BF     = 36
def mfma(d, a, b, c=None):
    cc = f"v[{d}:{d+15}]" if c is None else c
    return f"v_mfma_f32_32x32x16_bf16 v[{d}:{d+15}], v[{a}:{a+3}], v[{b}:{b+3}], {cc}"

def wave_ids(k):
    k("v_and_b32 v1, 63, v0             ; lane")
    k("v_lshrrev_b32 v2, 6, v0")
    k("s_nop 0")
    k("v_readfirstlane_b32 s8, v2")

def a_dma_setup(k, rt_sgpr, lda):
    k("v_lshrrev_b32 v2, 3, v1")
    k("v_lshrrev_b32 v3, 4, v1")
    k("v_and_b32 v4, 7, v1")
    k(f"s_lshl_b32 s9, s{rt_sgpr}, 7")
    k("s_lshl_b32 s10, s8, 5")
    k("s_add_u32 s9, s9, s10")
    k("v_add_u32 v2, s9, v2")
    k(f"s_mov_b32 s10, {lda}")
    k("v_mul_lo_u32 v2, s10, v2")
    for i in range(4):
        k(f"v_xor_b32 v5, {(i&1)*4}, v3")
        k("v_xor_b32 v5, v5, v4")
        k("v_lshlrev_b32 v5, 4, v5")
        k(f"v_add_u32 v5, {i*8*lda - i*1024}, v5")
        k(f"v_add_u32 v{VA_DMA+i}, v2, v5")

def a_rd_setup(k):
    k("v_and_b32 v2, 31, v1             ; row")
    k("v_lshrrev_b32 v3, 5, v1          ; half")
    k("v_bfe_u32 v4, v2, 1, 3           ; swizzle")
    k("v_lshlrev_b32 v2, 7, v2")
    k("s_lshl_b32 s10, s8, 12")
    k("v_add_u32 v2, s10, v2")
    for ks in range(4):
        k(f"v_add_u32 v5, {2*ks}, v3")
        k("v_xor_b32 v5, v5, v4")
        k(f"v_lshl_add_u32 v{VA_RD+ks}, v5, 4, v2")

class Pipe:
    def __init__(self, k, NT, ACC, swap, rd_a, rd_b, dma, ndma, nslots=4):
        self.k, self.NT, self.ACC, self.swap = k, NT, ACC, swap
        self.rd_a, self.rd_b, self.dma, self.ndma = rd_a, rd_b, dma, ndma
    def frag_reads(self, step):
        st, ks = divmod(step, 4)
        setb = step & 1
        out = [self.rd_a(AF + 4 * setb, st, ks)]
        for nt in range(self.NT):
            base = BF + (setb * self.NT + nt) * 4
            out += self.rd_b(base, st, ks, nt)
        return out
    def run(self, nstages=10):
        k, NT = self.k, self.NT
        nd = self.ndma
        k("; STAMP 0")
        for st in range(3): self.dma(st)
        k("; STAMP 3")
        k(f"s_waitcnt vmcnt({2*nd})")
        k("s_barrier")
        k("; STAMP 1")
        for r in self.frag_reads(0): k(r)
        total = nstages * 4
        per_step = 1 + 2 * NT
        for step in range(total):
            st, ks = divmod(step, 4)
            setb = step & 1
            nxt = self.frag_reads(step + 1) if step + 1 < total else []
            issued_next = 0
            for nt in range(NT):
                outstanding = 2 * (NT - 1 - nt) + issued_next
                k(f"s_waitcnt lgkmcnt({min(outstanding, 15)})")
                af = AF + 4 * setb; bf = BF + (setb * NT + nt) * 4
                c = "0" if step == 0 else None
                d = self.ACC + 16 * nt
                k(mfma(d, af, bf, c) if self.swap(nt) else mfma(d, bf, af, c))
                if nxt:
                    grp = nxt[0:3] if nt == 0 else nxt[1 + 2 * nt: 3 + 2 * nt]
                    for r in grp: k(r)
                    issued_next += len(grp)
                if ks == 1 and nt == 0 and st + 1 < nstages:
                    left = nd if st + 2 < nstages else 0
                    k(f"s_waitcnt vmcnt({left})")
                    k("s_barrier")
                    if st + 3 < nstages: self.dma(st + 3)
        k("; STAMP 2")

def gen_qkv():
    name = "qkv_kernel"
    k = K()
    NT = 4; ACC = 72
    k("s_cmp_ge_u32 s2, 256")
    k("s_cbranch_scc1 QKV_END")
    k("s_and_b32 s3, s2, 7")
    k("s_lshr_b32 s4, s2, 3")
    k("s_and_b32 s5, s3, 3")
    k("s_lshl_b32 s5, s5, 2")
    k("s_and_b32 s6, s4, 3")
    k("s_add_u32 s11, s5, s6")
    k("s_lshr_b32 s5, s3, 2")
    k("s_lshl_b32 s5, s5, 3")
    k("s_lshr_b32 s6, s4, 2")
    k("s_add_u32 s12, s5, s6")
    k("s_cmp_ge_u32 s12, 15")
    k("s_cbranch_scc1 QKV_END")
    k(f"s_load_dwordx2 s[4:5], s[0:1], {KA_WS}")
    k(f"s_load_dwordx2 s[6:7], s[0:1], {KA_WQKV}")
    wave_ids(k)
    a_dma_setup(k, 11, 1280)
    a_rd_setup(k)
    k("v_lshrrev_b32 v2, 4, v1")
    k("v_bfe_u32 v3, v1, 2, 2")
    k("v_xor_b32 v3, v3, v2")
    k("v_lshlrev_b32 v3, 6, v3")
    k("v_and_b32 v4, 3, v1")
    k("v_lshl_add_u32 v3, v4, 4, v3")
    k("s_lshl_b32 s9, s8, 4")
    k("v_add_u32 v2, s9, v2")
    k("v_mul_u32_u24 v2, 3840, v2")
    k("s_lshl_b32 s9, s12, 8")
    k("v_add3_u32 v2, v2, v3, s9")
    for i in range(4):
        k(f"v_add_u32 v{VB_DMA+i}, {i*(4*3840-1024)}, v2")
    k("v_lshrrev_b32 v2, 5, v1          ; k half")
    k("v_bfe_u32 v3, v1, 2, 2           ; r4")
    k("v_lshl_add_u32 v2, v2, 3, v3")
    k("v_lshlrev_b32 v2, 8, v2")
    k("v_bfe_u32 v4, v1, 4, 1")
    k("v_lshl_add_u32 v2, v4, 5, v2")
    k("v_and_b32 v4, 3, v1")
    k("v_lshl_add_u32 v2, v4, 3, v2")
    k("v_add_u32 v2, 65536, v2")
    for nt in range(4):
        k(f"v_xor_b32 v4, {nt}, v3")
        k(f"v_lshl_add_u32 v{VB_RD+nt}, v4, 6, v2")
    k("s_waitcnt lgkmcnt(0)")
    srd(k, 16, 4, S * D * 2, WS_H)
    srd(k, 20, 6, 640 * 3840)
    k("s_lshl_b32 s13, s8, 12")
    def dma(st):
        slot = st % 4
        k(f"s_add_u32 m0, s13, {slot*16384}")
        k(f"s_mov_b32 s14, {st*128}")
        for i in range(4):
            k(f"buffer_load_dwordx4 v{VA_DMA+i}, s[16:19], s14 offen offset:{i*1024} lds")
        k(f"s_add_u32 m0, s13, {65536 + slot*16384}")
        k(f"s_mov_b32 s14, {st*64*3840}")
        for i in range(4):
            k(f"buffer_load_dwordx4 v{VB_DMA+i}, s[20:23], s14 offen offset:{i*1024} lds")
    rd_a = lambda dst, st, ks: f"ds_read_b128 v[{dst}:{dst+3}], v{VA_RD+ks} offset:{(st%4)*16384}"
    rd_b = lambda dst, st, ks, nt: [
        f"ds_read_b64_tr_b16 v[{dst+2*j}:{dst+2*j+1}], v{VB_RD+nt} offset:{(st%4)*16384 + (16*ks+4*j)*256}" for j in range(2)]
    k("s_cmp_ge_u32 s12, 10")
    k("s_cbranch_scc1 QKV_V")
    Pipe(k, NT, ACC, lambda nt: False, rd_a, rd_b, dma, 8).run()
    k("s_nop 7")
    k("s_cmp_ge_u32 s12, 5")
    k("s_cbranch_scc1 QKV_K")
    srd(k, 24, 4, S * D * 2, WS_Q)
    k("v_and_b32 v2, 31, v1")
    k("s_lshl_b32 s9, s11, 7")
    k("s_lshl_b32 s10, s8, 5")
    k("s_add_u32 s9, s9, s10")
    k("v_add_u32 v2, s9, v2             ; token")
    k("v_mul_u32_u24 v2, 1280, v2")
    k("v_lshrrev_b32 v3, 5, v1")
    k("v_lshlrev_b32 v3, 4, v3")
    k("s_lshl_b32 s9, s12, 8")
    k("v_add3_u32 v2, v2, v3, s9")
    qscale = 1.4426950408889634 / (20 ** 0.5)
    k(f"s_mov_b32 s10, {hex(f2u(qscale))}")
    for nt in range(4):
        for jp in range(2):
            a = ACC + 16 * nt + 8 * jp
            for r in range(8): k(f"v_mul_f32 v{a+r}, s10, v{a+r}")
            t = 28 + 4 * ((2 * nt + jp) % 2)
            k(f"v_cvt_pk_bf16_f32 v{t}, v{a}, v{a+1}")
            k(f"v_cvt_pk_bf16_f32 v{t+1}, v{a+2}, v{a+3}")
            k(f"v_cvt_pk_bf16_f32 v{t+2}, v{a+4}, v{a+5}")
            k(f"v_cvt_pk_bf16_f32 v{t+3}, v{a+6}, v{a+7}")
            k(f"v_permlane32_swap_b32 v{t}, v{t+2}")
            k(f"v_permlane32_swap_b32 v{t+1}, v{t+3}")
            k(f"buffer_store_dwordx4 v[{t}:{t+3}], v2, s[24:27], 0 offen offset:{64*nt + 32*jp}")
    k("s_endpgm")
    k.label("QKV_K")
    srd(k, 24, 4, 32 * KV_HEAD, WS_KV)
    k("s_lshl_b32 s9, s11, 2")
    k("s_add_u32 s9, s9, s8")
    k(f"s_mul_i32 s9, s9, {KV_TILE}")
    k("v_and_b32 v2, 31, v1             ; key")
    k("v_lshrrev_b32 v3, 5, v1          ; half")
    k("s_sub_u32 s10, s12, 5")
    k("s_lshl_b32 s10, s10, 5")
    k("v_add_u32 v3, s10, v3")
    for nt in range(4):
        for j in range(4):
            a = ACC + 16 * nt + 4 * j
            t = 28 + 2 * (j % 4)
            k(f"v_cvt_pk_bf16_f32 v{t}, v{a}, v{a+1}")
            k(f"v_cvt_pk_bf16_f32 v{t+1}, v{a+2}, v{a+3}")
            k(f"v_add_u32 v4, {8*nt+2*j}, v3")
            k("v_mul_u32_u24 v5, 205, v4")
            k("v_lshrrev_b32 v5, 10, v5            ; head")
            k("v_mul_u32_u24 v6, 5, v5")
            k("v_sub_u32 v6, v4, v6                ; dq")
            k("v_lshrrev_b32 v7, 1, v6")
            k("v_lshlrev_b32 v7, 9, v7")
            k("v_and_b32 v26, 1, v6")
            k("v_lshl_add_u32 v7, v26, 3, v7")
            k("v_cmp_eq_u32 vcc, 4, v6")
            k("v_lshlrev_b32 v26, 4, v2")
            k("v_lshlrev_b32 v27, 3, v2")
            k("v_cndmask_b32 v26, v26, v27, vcc")
            k(f"s_mov_b32 s10, {KV_HEAD}")
            k("v_mul_lo_u32 v5, s10, v5")
            k("v_add3_u32 v7, v7, v26, v5")
            k(f"buffer_store_dwordx2 v[{t}:{t+1}], v7, s[24:27], s9 offen")
    k("s_endpgm")
    k.label("QKV_V")
    Pipe(k, NT, ACC, lambda nt: True, rd_a, rd_b, dma, 8).run()
    k("s_nop 7")
    srd(k, 24, 4, 32 * KV_HEAD, WS_KV)
    k("s_lshl_b32 s9, s11, 2")
    k("s_add_u32 s9, s9, s8")
    k(f"s_mul_i32 s9, s9, {KV_TILE}")
    k("s_add_u32 s9, s9, 1280")
    k("v_and_b32 v2, 31, v1")
    k("v_lshrrev_b32 v3, 5, v1          ; half")
    k("v_mul_u32_u24 v3, 336, v3")
    k("s_sub_u32 s10, s12, 10")
    k("s_lshl_b32 s10, s10, 7")
    k("v_add_u32 v2, s10, v2")
    for nt in range(4):
        k(f"v_add_u32 v4, {32*nt}, v2")
        k("v_mul_u32_u24 v5, 3277, v4")
        k("v_lshrrev_b32 v5, 16, v5")
        k("v_mul_u32_u24 v6, 20, v5")
        k("v_sub_u32 v6, v4, v6                ; d")
        k(f"s_mov_b32 s10, {KV_HEAD}")
        k("v_mul_lo_u32 v5, s10, v5")
        k("v_lshlrev_b32 v6, 4, v6")
        k("v_add3_u32 v7, v5, v6, v3")
        for m in range(2):
            a = ACC + 16 * nt + 8 * m
            t = 28 + 4 * m
            for q in range(4):
                k(f"v_cvt_pk_bf16_f32 v{t+q}, v{a+2*q}, v{a+2*q+1}")
            k(f"buffer_store_dwordx4 v[{t}:{t+3}], v7, s[24:27], s9 offen offset:{672*m}")
    k.label("QKV_END")
    k("s_endpgm")
    k.fix_hazards()
    assert all((c * 3277) >> 16 == c // 20 for c in range(640))
    assert all((q * 205) >> 10 == q // 5 for q in range(170))
    return name, header(name) + k.text() + descriptor(name, ACC + 64), (256, 256, 131072)

def gen_up():
    name = "up_kernel"
    k = K()
    NT = 6; ACC = 88
    k("s_cmp_ge_u32 s2, 256")
    k("s_cbranch_scc1 UP_END")
    k("s_and_b32 s3, s2, 7")
    k("s_lshr_b32 s4, s2, 3")
    k("s_and_b32 s5, s3, 1")
    k("s_lshl_b32 s5, s5, 3")
    k("s_and_b32 s6, s4, 7")
    k("s_add_u32 s11, s5, s6")
    k("s_lshr_b32 s5, s3, 1")
    k("s_lshl_b32 s5, s5, 2")
    k("s_lshr_b32 s6, s4, 3")
    k("s_add_u32 s12, s5, s6")
    k(f"s_load_dwordx2 s[4:5], s[0:1], {KA_WS}")
    wave_ids(k)
    a_dma_setup(k, 11, 1280)
    a_rd_setup(k)
    k("v_lshlrev_b32 v2, 4, v1")
    k("s_mul_i32 s9, s8, 6144")
    k(f"s_mul_i32 s10, s12, {10*24576}")
    k("s_add_u32 s9, s9, s10")
    k(f"v_add_u32 v{VB_DMA}, s9, v2")
    k(f"v_add_u32 v{VB_DMA+1}, 4096, v{VB_DMA}")
    k("v_lshrrev_b32 v2, 5, v1")
    k("v_bfe_u32 v3, v1, 2, 2")
    k("v_lshl_add_u32 v2, v2, 3, v3")
    k("v_mul_u32_u24 v2, 192, v2")
    k("v_bfe_u32 v4, v1, 4, 1")
    k("v_lshl_add_u32 v2, v4, 5, v2")
    k("v_and_b32 v4, 3, v1")
    k("v_lshl_add_u32 v2, v4, 3, v2")
    k(f"v_add_u32 v{VB_RD}, 65536, v2")
    k(f"v_add_u32 v{VB_RD+1}, {65536+49152}, v2")
    k("s_waitcnt lgkmcnt(0)")
    srd(k, 16, 4, S * D * 2, WS_H)
    srd(k, 20, 4, 16 * 10 * 24576, WS_WUP)
    k("s_lshl_b32 s13, s8, 12")
    k("s_mul_i32 s15, s8, 6144")
    def dma(st):
        slot = st % 4
        k(f"s_add_u32 m0, s13, {slot*16384}")
        k(f"s_mov_b32 s14, {st*128}")
        for i in range(4):
            k(f"buffer_load_dwordx4 v{VA_DMA+i}, s[16:19], s14 offen offset:{i*1024} lds")
        k(f"s_add_u32 m0, s15, {65536 + slot*24576}")
        k(f"s_mov_b32 s14, {st*24576}")
        for i in range(4):
            k(f"buffer_load_dwordx4 v{VB_DMA}, s[20:23], s14 offen offset:{i*1024} lds")
        k(f"s_add_u32 m0, s15, {65536 + slot*24576 + 4096}")
        k("s_nop 0")
        for i in range(2):
            k(f"buffer_load_dwordx4 v{VB_DMA+1}, s[20:23], s14 offen offset:{i*1024} lds")
    rd_a = lambda dst, st, ks: f"ds_read_b128 v[{dst}:{dst+3}], v{VA_RD+ks} offset:{(st%4)*16384}"
    def rd_b(dst, st, ks, nt):
        slot = st % 4
        base = VB_RD + (slot >> 1)
        off = (slot & 1) * 24576 + (nt // 3) * 12288 + (nt % 3) * 64
        return [f"ds_read_b64_tr_b16 v[{dst+2*j}:{dst+2*j+1}], v{base} offset:{off + (16*ks+4*j)*192}" for j in range(2)]
    Pipe(k, NT, ACC, lambda nt: False, rd_a, rd_b, dma, 10).run()
    k("s_nop 7")
    srd(k, 24, 4, S * F * 2, WS_G)
    k("v_and_b32 v2, 31, v1")
    k("s_lshl_b32 s9, s11, 7")
    k("s_lshl_b32 s10, s8, 5")
    k("s_add_u32 s9, s9, s10")
    k("v_add_u32 v2, s9, v2             ; token")
    k("v_mul_u32_u24 v2, 3072, v2")
    k("v_lshrrev_b32 v3, 5, v1")
    k("v_lshlrev_b32 v3, 4, v3")
    k("s_mul_i32 s9, s12, 192")
    k("v_add3_u32 v2, v2, v3, s9")
    c1 = -2.0 * 0.7978845608028654 * 1.4426950408889634
    c2 = c1 * 0.044715
    k(f"s_mov_b32 s9, {hex(f2u(c1))}")
    k(f"s_mov_b32 s10, {hex(f2u(c2))}")
    k("v_mov_b32 v3, s9")
    for nt in range(3):
        for jp in range(2):
            g = ACC + 16 * nt + 8 * jp; u = g + 48
            T = 36
            for r in range(8): k(f"v_mul_f32 v{T+r}, v{g+r}, v{g+r}")
            for r in range(8): k(f"v_fma_f32 v{T+r}, v{T+r}, s10, v3")
            for r in range(8): k(f"v_mul_f32 v{T+r}, v{T+r}, v{g+r}")
            for r in range(8): k(f"v_exp_f32 v{T+r}, v{T+r}")
            for r in range(8): k(f"v_add_f32 v{T+r}, 1.0, v{T+r}")
            for r in range(8): k(f"v_rcp_f32 v{T+r}, v{T+r}")
            for r in range(8): k(f"v_mul_f32 v{g+r}, v{g+r}, v{u+r}")
            for r in range(8): k(f"v_mul_f32 v{T+r}, v{T+r}, v{g+r}")
            t = 28 + 4 * ((2 * nt + jp) % 2)
            for q in range(4): k(f"v_cvt_pk_bf16_f32 v{t+q}, v{T+2*q}, v{T+2*q+1}")
            k(f"v_permlane32_swap_b32 v{t}, v{t+2}")
            k(f"v_permlane32_swap_b32 v{t+1}, v{t+3}")
            k(f"buffer_store_dwordx4 v[{t}:{t+3}], v2, s[24:27], 0 offen offset:{64*nt + 32*jp}")
    k.label("UP_END")
    k("s_endpgm")
    k.fix_hazards()
    return name, header(name) + k.text() + descriptor(name, ACC + 96), (256, 256, 163840)
```

```python
from common import *

def mfma16(d, a, b, c=None):
    cc = f"v[{d}:{d+3}]" if c is None else c
    return f"v_mfma_f32_16x16x32_bf16 v[{d}:{d+3}], v[{a}:{a+3}], v[{b}:{b+3}], {cc}"

def gen_narrow(name, Kdim, a_off, b_off, resid_is_input, gate_idx, out_is_output):
    k = K()
    KH = Kdim // 2; NST = KH // 64; lda = Kdim * 2
    VA_DMA, VB_DMA, VA_RD, VB_RD = 8, 12, 14, 16
    AF, BF, ACC = 20, 36, 76
    RES, GT = 116, 128
    END = f"{name}_END"
    k("s_cmp_ge_u32 s2, 256")
    k(f"s_cbranch_scc1 {END}")
    k("s_and_b32 s3, s2, 7")
    k("s_lshr_b32 s4, s2, 3")
    k("s_and_b32 s5, s3, 3")
    k("s_lshl_b32 s5, s5, 3")
    k("s_and_b32 s6, s4, 7")
    k("s_add_u32 s11, s5, s6")
    k("s_lshr_b32 s5, s3, 2")
    k("s_lshl_b32 s5, s5, 2")
    k("s_lshr_b32 s6, s4, 3")
    k("s_add_u32 s12, s5, s6")
    k(f"s_load_dwordx2 s[4:5], s[0:1], {KA_WS}")
    if resid_is_input: k(f"s_load_dwordx2 s[6:7], s[0:1], {KA_X}")
    if out_is_output: k(f"s_load_dwordx2 s[6:7], s[0:1], {KA_OUT}")
    k("v_and_b32 v1, 63, v0")
    k("v_lshrrev_b32 v2, 6, v0")
    k("s_nop 0")
    k("v_readfirstlane_b32 s8, v2       ; wave")
    k("s_and_b32 s28, s8, 1")
    k("s_lshr_b32 s29, s8, 1            ; k half")
    k("v_lshrrev_b32 v2, 3, v1")
    k("v_lshrrev_b32 v3, 4, v1")
    k("v_and_b32 v4, 7, v1")
    k("s_lshl_b32 s9, s11, 6")
    k("s_lshl_b32 s10, s28, 5")
    k("s_add_u32 s30, s9, s10")
    k("v_add_u32 v2, s30, v2")
    k(f"s_mov_b32 s10, {lda}")
    k("v_mul_lo_u32 v2, s10, v2")
    k(f"s_mul_i32 s10, s29, {KH*2}")
    k("v_add_u32 v2, s10, v2")
    for i in range(4):
        k(f"v_xor_b32 v5, {(i&1)*4}, v3")
        k("v_xor_b32 v5, v5, v4")
        k("v_lshlrev_b32 v5, 4, v5")
        k(f"v_add_u32 v5, {i*8*lda - i*1024}, v5")
        k(f"v_add_u32 v{VA_DMA+i}, v2, v5")
    k("v_lshlrev_b32 v2, 4, v1")
    k(f"s_mul_i32 s9, s12, {Kdim*160}")
    k(f"s_mul_i32 s10, s29, {KH*160}")
    k("s_add_u32 s9, s9, s10")
    k("s_mul_i32 s10, s28, 5120")
    k("s_add_u32 s9, s9, s10")
    k(f"v_add_u32 v{VB_DMA}, s9, v2")
    k(f"v_add_u32 v{VB_DMA+1}, 4096, v{VB_DMA}")
    k("v_and_b32 v2, 15, v1")
    k("v_lshrrev_b32 v3, 4, v1          ; g")
    k("v_lshrrev_b32 v4, 1, v2          ; swizzle")
    k("v_lshlrev_b32 v2, 7, v2")
    k("s_lshl_b32 s13, s8, 12")
    k("v_add_u32 v2, s13, v2")
    for ks in range(2):
        k(f"v_add_u32 v5, {4*ks}, v3")
        k("v_xor_b32 v5, v5, v4")
        k(f"v_lshl_add_u32 v{VA_RD+ks}, v5, 4, v2")
    k("v_lshrrev_b32 v2, 5, v1")
    k("v_lshlrev_b32 v2, 4, v2")
    k("v_bfe_u32 v4, v1, 4, 1")
    k("v_lshl_add_u32 v2, v4, 2, v2")
    k("v_bfe_u32 v4, v1, 2, 2")
    k("v_add_u32 v2, v2, v4")
    k("v_mul_u32_u24 v2, 160, v2")
    k("v_and_b32 v4, 3, v1")
    k("v_lshl_add_u32 v2, v4, 3, v2")
    k("s_mul_i32 s10, s29, 10240")
    k("s_add_u32 s10, s10, 65536")
    k(f"v_add_u32 v{VB_RD}, s10, v2")
    k(f"v_add_u32 v{VB_RD+1}, 40960, v{VB_RD}")
    k("s_mul_i32 s15, s29, 10240")
    k("s_mul_i32 s10, s28, 5120")
    k("s_add_u32 s15, s15, s10")
    k("v_and_b32 v2, 15, v1")
    k("s_lshl_b32 s10, s29, 4")
    k("s_add_u32 s10, s10, s30")
    k("v_add_u32 v2, s10, v2")
    k("v_mul_u32_u24 v6, 1280, v2")
    k("s_mul_i32 s10, s12, 160")
    k("v_lshl_add_u32 v6, v3, 3, v6")
    k("v_add_u32 v6, s10, v6")
    k("s_mul_i32 s10, s12, 320")
    k("v_lshlrev_b32 v7, 4, v3")
    k("v_add_u32 v7, s10, v7")
    k("s_waitcnt lgkmcnt(0)")
    srd(k, 16, 4, S * Kdim * 2, a_off)
    srd(k, 20, 4, 8 * Kdim * 160, b_off)
    if resid_is_input: srd(k, 24, 6, S * D * 2)
    else: srd(k, 24, 4, S * D * 2, WS_X1)
    if out_is_output: srd(k, 32, 6, S * D * 2)
    else: srd(k, 32, 4, S * D * 2, WS_X1)
    srd(k, 36, 4, 6 * 640 * 4, WS_MODV)
    def dma(st):
        slot = st % 4
        k(f"s_add_u32 m0, s13, {slot*16384}")
        k(f"s_mov_b32 s14, {st*128}")
        for i in range(4):
            k(f"buffer_load_dwordx4 v{VA_DMA+i}, s[16:19], s14 offen offset:{i*1024} lds")
        k(f"s_add_u32 m0, s15, {65536 + slot*20480}")
        k(f"s_mov_b32 s14, {st*10240}")
        for i in range(4):
            k(f"buffer_load_dwordx4 v{VB_DMA}, s[20:23], s14 offen offset:{i*1024} lds")
        k(f"s_add_u32 m0, s15, {65536 + slot*20480 + 4096}")
        k("s_nop 0")
        k(f"buffer_load_dwordx4 v{VB_DMA+1}, s[20:23], s14 offen lds")
    ND = 9
    def reads(step):
        st, ks = divmod(step, 2); slot = st % 4; sb = step & 1
        out = []
        for mb in range(2):
            d = AF + (sb * 2 + mb) * 4
            out.append(f"ds_read_b128 v[{d}:{d+3}], v{VA_RD+ks} offset:{slot*16384 + mb*2048}")
        for nt in range(5):
            d = BF + (sb * 5 + nt) * 4
            base = VB_RD + (slot >> 1)
            for j in range(2):
                off = (slot & 1) * 20480 + (32 * ks + 8 * j) * 160 + nt * 32
                out.append(f"ds_read_b64_tr_b16 v[{d+2*j}:{d+2*j+1}], v{base} offset:{off}")
        return out
    k("; STAMP 0")
    for nt in range(5):
        k(f"buffer_load_dwordx2 v[{RES+2*nt}:{RES+2*nt+1}], v6, s[24:27], 0 offen offset:{32*nt}")
    k(f"s_mov_b32 s14, {gate_idx*2560}")
    for nt in range(5):
        k(f"buffer_load_dwordx4 v[{GT+4*nt}:{GT+4*nt+3}], v7, s[36:39], s14 offen offset:{64*nt}")
    for st in range(min(3, NST)): dma(st)
    k("; STAMP 3")
    k(f"s_waitcnt vmcnt({ND*(min(3,NST)-1)})")
    k("s_barrier")
    k("; STAMP 1")
    for r in reads(0): k(r)
    total = NST * 2
    for step in range(total):
        st, ks = divmod(step, 2); sb = step & 1
        nxt = reads(step + 1) if step + 1 < total else []
        issued = 0
        for nt in range(5):
            outstanding = 2 * (4 - nt) + issued
            k(f"s_waitcnt lgkmcnt({min(outstanding, 15)})")
            for mb in range(2):
                d = ACC + (nt * 2 + mb) * 4
                k(mfma16(d, BF + (sb * 5 + nt) * 4, AF + (sb * 2 + mb) * 4, "0" if step == 0 else None))
            if nxt:
                grp = nxt[0:4] if nt == 0 else nxt[2 + 2 * nt: 4 + 2 * nt]
                for r in grp: k(r)
                issued += len(grp)
            if ks == 0 and nt == 0 and st + 1 < NST:
                left = ND if st + 2 < NST else 0
                k(f"s_waitcnt vmcnt({left})")
                k("s_barrier")
                if st + 3 < NST: dma(st + 3)
    k("; STAMP 2")
    k("s_nop 7")
    k("s_barrier")
    k("v_lshlrev_b32 v2, 4, v1")
    k("s_mul_i32 s9, s8, 5120")
    k("v_add_u32 v3, s9, v2")
    k("s_xor_b32 s10, s8, 2")
    k("s_mul_i32 s10, s10, 5120")
    k("v_add_u32 v4, s10, v2")
    k("s_cmp_eq_u32 s29, 0")
    k(f"s_cbranch_scc1 {name}_KH0")
    for nt in range(5):
        d = ACC + (nt * 2 + 0) * 4
        k(f"ds_write_b128 v3, v[{d}:{d+3}] offset:{1024*nt}")
    for nt in range(5):
        for r in range(4): k(f"v_mov_b32 v{ACC+(nt*2)*4+r}, v{ACC+(nt*2+1)*4+r}")
    k(f"s_branch {name}_JOIN")
    k.label(f"{name}_KH0")
    for nt in range(5):
        d = ACC + (nt * 2 + 1) * 4
        k(f"ds_write_b128 v3, v[{d}:{d+3}] offset:{1024*nt}")
    k.label(f"{name}_JOIN")
    k("s_waitcnt lgkmcnt(0)")
    k("s_barrier")
    for nt in range(5):
        k(f"ds_read_b128 v[{BF+4*nt}:{BF+4*nt+3}], v4 offset:{1024*nt}")
    k("s_waitcnt lgkmcnt(0)")
    for nt in range(5):
        d = ACC + nt * 8
        for r in range(4): k(f"v_add_f32 v{d+r}, v{d+r}, v{BF+4*nt+r}")
        k(f"v_lshlrev_b32 v20, 16, v{RES+2*nt}")
        k(f"v_and_b32 v21, 0xffff0000, v{RES+2*nt}")
        k(f"v_lshlrev_b32 v22, 16, v{RES+2*nt+1}")
        k(f"v_and_b32 v23, 0xffff0000, v{RES+2*nt+1}")
        for r in range(4): k(f"v_fmac_f32 v{20+r}, v{d+r}, v{GT+4*nt+r}")
        k(f"v_cvt_pk_bf16_f32 v{24+2*(nt%2)}, v20, v21")
        k(f"v_cvt_pk_bf16_f32 v{25+2*(nt%2)}, v22, v23")
        k(f"buffer_store_dwordx2 v[{24+2*(nt%2)}:{25+2*(nt%2)}], v6, s[32:35], 0 offen offset:{32*nt}")
    k.label(END)
    k("s_endpgm")
    k.fix_hazards()
    return name, header(name) + k.text() + descriptor(name, 148), (256, 256, 147456)

def gen_wo(): return gen_narrow("wo_kernel", 640, WS_O, WS_WOP, True, 2, False)
def gen_down(): return gen_narrow("down_kernel", 1536, WS_G, WS_WDP, False, 5, True)
```

```python
from common import *

def gen_ln(name, src_is_input, mod_s, mod_g):
    k = K()
    k("s_cmp_ge_u32 s2, 256")
    k(f"s_cbranch_scc1 {name}_END")
    k(f"s_load_dwordx2 s[4:5], s[0:1], {KA_WS}")
    if src_is_input:
        k(f"s_load_dwordx2 s[6:7], s[0:1], {KA_X}")
    k("v_lshrrev_b32 v1, 4, v0")
    k("s_lshl_b32 s10, s2, 3")
    k("v_add_u32 v1, s10, v1")
    k("v_mul_u32_u24 v1, 1280, v1")
    k("v_and_b32 v2, 15, v0")
    k("v_lshlrev_b32 v3, 4, v2")
    k("v_add_u32 v1, v1, v3")
    k("v_lshlrev_b32 v4, 5, v2")
    k("s_waitcnt lgkmcnt(0)")
    if src_is_input:
        srd(k, 16, 6, S * D * 2)
    else:
        srd(k, 16, 4, S * D * 2, WS_X1)
    srd(k, 20, 4, 6 * 640 * 4, WS_MODV)
    srd(k, 24, 4, S * D * 2, WS_H)
    import os
    if src_is_input and os.environ.get("LN_PF"):
        k(f"s_load_dwordx2 s[28:29], s[0:1], {KA_WQKV}")
        k("s_waitcnt lgkmcnt(0)")
        srd(k, 32, 28, 640 * 3840)
        k("s_lshr_b32 s12, s2, 3")
        k("s_mul_i32 s12, s12, 320")
        k("s_bfe_u32 s13, s2, 0x10002")
        k("s_lshl_b32 s13, s13, 11")
        for i in range(3):
            k(f"v_add_u32 v160, {128*i}, v0")
            k("v_add_u32 v160, s12, v160")
            k("v_lshrrev_b32 v161, 4, v160")
            k("v_and_b32 v160, 15, v160")
            k("v_mul_u32_u24 v161, 3840, v161")
            k("v_lshl_add_u32 v161, v160, 7, v161")
            k(f"buffer_load_dword v{162+i}, v161, s[32:35], s13 offen")
    X = 8
    for i in range(5):
        k(f"buffer_load_dwordx4 v[{X+4*i}:{X+4*i+3}], v1, s[16:19], 0 offen offset:{256*i}")
    Gm, Sm = 80, 120
    for i in range(5):
        for hh in range(2):
            k(f"s_mov_b32 s11, {mod_g*2560 + 512*i + 16*hh}")
            k(f"buffer_load_dwordx4 v[{Gm+8*i+4*hh}:{Gm+8*i+4*hh+3}], v4, s[20:23], s11 offen")
            k(f"s_mov_b32 s11, {mod_s*2560 + 512*i + 16*hh}")
            k(f"buffer_load_dwordx4 v[{Sm+8*i+4*hh}:{Sm+8*i+4*hh+3}], v4, s[20:23], s11 offen")
    E = 32
    k("s_waitcnt vmcnt(20)")
    for r in range(20):
        k(f"v_lshlrev_b32 v{E+2*r}, 16, v{X+r}")
        k(f"v_and_b32 v{E+2*r+1}, 0xffff0000, v{X+r}")
    k(f"v_add_f32 v5, v{E}, v{E+1}")
    k(f"v_add_f32 v6, v{E+2}, v{E+3}")
    for r in range(4, 40, 2):
        k(f"v_add_f32 v5, v5, v{E+r}")
        k(f"v_add_f32 v6, v6, v{E+r+1}")
    k("v_add_f32 v5, v5, v6")
    for rot in (1, 2, 4, 8):
        k(f"v_add_f32_dpp v5, v5, v5 row_ror:{rot} row_mask:0xf bank_mask:0xf")
    k(f"s_mov_b32 s11, {hex(__import__('struct').unpack('<I', __import__('struct').pack('<f', 1.0/640))[0])}")
    k("v_mul_f32 v5, s11, v5            ; mean")
    for r in range(40):
        k(f"v_sub_f32 v{E+r}, v{E+r}, v5")
    k(f"v_mul_f32 v6, v{E}, v{E}")
    k(f"v_mul_f32 v7, v{E+1}, v{E+1}")
    for r in range(2, 40, 2):
        k(f"v_fmac_f32 v6, v{E+r}, v{E+r}")
        k(f"v_fmac_f32 v7, v{E+r+1}, v{E+r+1}")
    k("v_add_f32 v6, v6, v7")
    for rot in (1, 2, 4, 8):
        k(f"v_add_f32_dpp v6, v6, v6 row_ror:{rot} row_mask:0xf bank_mask:0xf")
    k("v_mov_b32 v7, 0x3727c5ac          ; eps 1e-5")
    k("v_fmac_f32 v7, s11, v6")
    k("v_rsq_f32 v7, v7")
    k("s_waitcnt vmcnt(0)")
    for r in range(40):
        k(f"v_mul_f32 v{E+r}, v{E+r}, v7")
    for r in range(40):
        k(f"v_fma_f32 v{E+r}, v{E+r}, v{Gm+r}, v{Sm+r}")
    for r in range(20):
        k(f"v_cvt_pk_bf16_f32 v{X+r}, v{E+2*r}, v{E+2*r+1}")
    for i in range(5):
        k(f"buffer_store_dwordx4 v[{X+4*i}:{X+4*i+3}], v1, s[24:27], 0 offen offset:{256*i}")
    k.label(f"{name}_END")
    k("s_endpgm")
    k.fix_hazards()
    return name, header(name) + k.text() + descriptor(name, 168), (256, 128, 0)
```

```python
from common import *
import struct
def f2u(x): return struct.unpack('<I', struct.pack('<f', x))[0]

import os
PF = os.environ.get('PREP_PF', 'late')
def gen_prep3():
    name = "prep_kernel"
    k = K()
    k("s_cmp_ge_u32 s2, 256")
    k("s_cbranch_scc1 PREP_END")
    k(f"s_load_dwordx2 s[4:5], s[0:1], {KA_WS}")
    k(f"s_load_dwordx2 s[6:7], s[0:1], {KA_X}")
    k(f"s_load_dwordx2 s[8:9], s[0:1], {KA_C}")
    k(f"s_load_dwordx2 s[10:11], s[0:1], {KA_WMOD}")
    k(f"s_load_dwordx2 s[28:29], s[0:1], {KA_DBG}")
    k(f"s_load_dwordx2 s[30:31], s[0:1], {KA_WQKV}")
    k("v_and_b32 v1, 63, v0")
    k("v_lshrrev_b32 v2, 6, v0")
    k("s_nop 0")
    k("v_readfirstlane_b32 s12, v2      ; wave")
    k("s_and_b32 s13, s2, 3             ; kq")
    k("s_lshr_b32 s14, s2, 2")
    k("v_lshrrev_b32 v5, 3, v0")
    k("v_and_b32 v6, 7, v0")
    k("s_mul_i32 s15, s13, 160")
    k("v_add_u32 v7, s15, v5")
    k("v_mul_u32_u24 v5, 7680, v7")
    k("v_lshlrev_b32 v6, 4, v6")
    k("s_lshl_b32 s15, s14, 7")
    k("v_add3_u32 v5, v5, v6, s15")
    k("v_subrev_u32 v3, 384, v0")
    k("v_lshrrev_b32 v3, 4, v3")
    k("s_lshl_b32 s15, s2, 3")
    k("v_add_u32 v3, s15, v3")
    k("v_mul_u32_u24 v3, 1280, v3")
    k("v_and_b32 v4, 15, v0")
    k("v_lshl_add_u32 v3, v4, 4, v3")
    k("s_waitcnt lgkmcnt(0)")
    def wqkv_prefetch():
        srd(k, 56, 30, 640 * 3840)
        k("s_lshr_b32 s36, s2, 3")
        k("s_mul_i32 s36, s36, 320")
        k("s_bfe_u32 s37, s2, 0x10002")
        k("s_lshl_b32 s37, s37, 11")
        k("v_add_u32 v28, s36, v0")
        k("v_lshrrev_b32 v29, 4, v28")
        k("v_and_b32 v28, 15, v28")
        k("v_mul_u32_u24 v29, 3840, v29")
        k("v_lshl_add_u32 v29, v28, 7, v29")
        k("buffer_load_dword v30, v29, s[56:59], s37 offen")
    X, C0, W0, AC, T = 8, 32, 40, 64, 72
    srd(k, 16, 6, S * D * 2)
    srd(k, 20, 4, 4 * 3840 * 4, WS_MODP)
    srd(k, 24, 4, S * D * 2, WS_H)
    k("s_cmp_ge_u32 s14, 60")
    k("s_cbranch_scc1 PREP_NOGEMV")
    srd(k, 32, 8, 1280)
    srd(k, 36, 10, 640 * 7680)
    k("v_lshlrev_b32 v6, 1, v7")
    k("v_mov_b32 v8, 0x7ffffff0")
    k("v_cmp_gt_u32 vcc, 256, v0")
    k("v_cndmask_b32 v9, v8, v5, vcc")
    k("v_cndmask_b32 v10, v8, v6, vcc")
    k(f"buffer_load_dwordx4 v[{W0}:{W0+3}], v5, s[36:39], 0 offen")
    k(f"s_mov_b32 s15, {64*7680}")
    k(f"buffer_load_dwordx4 v[{W0+4}:{W0+7}], v5, s[36:39], s15 offen")
    k(f"s_mov_b32 s15, {128*7680}")
    k(f"buffer_load_dwordx4 v[{W0+8}:{W0+11}], v9, s[36:39], s15 offen")
    k(f"buffer_load_ushort v{C0}, v6, s[32:35], 0 offen")
    k(f"buffer_load_ushort v{C0+1}, v6, s[32:35], 0 offen offset:128")
    k(f"buffer_load_ushort v{C0+2}, v10, s[32:35], 0 offen offset:256")
    k.label("PREP_NOGEMV")
    k("s_cmp_lt_u32 s12, 6")
    k("s_cbranch_scc1 PREP_NOX")
    for i in range(5):
        k(f"buffer_load_dwordx4 v[{X+4*i}:{X+4*i+3}], v3, s[16:19], 0 offen offset:{256*i}")
    k.label("PREP_NOX")
    if PF == "early":
        k("s_cmp_ge_u32 s12, 5")
        k("s_cbranch_scc1 PREP_NOPF")
        wqkv_prefetch()
        k.label("PREP_NOPF")
    k("s_cmp_ge_u32 s14, 60")
    k("s_cbranch_scc1 PREP_COMMON")
    k("; STAMP 0")
    k("s_cmp_lt_u32 s12, 6")
    k("s_cbranch_scc1 PREP_W0")
    k("s_waitcnt vmcnt(5)")
    k("s_branch PREP_W1")
    k.label("PREP_W0")
    if PF == "early":
        k("s_cmp_eq_u32 s12, 5")
        k("s_cbranch_scc1 PREP_W05")
        k("s_waitcnt vmcnt(1)")
        k("s_branch PREP_W1")
        k.label("PREP_W05")
    k("s_waitcnt vmcnt(0)")
    k.label("PREP_W1")
    k("; STAMP 1")
    k("s_mov_b32 s15, 0xbfb8aa3b")
    for i in range(3): k(f"v_lshlrev_b32 v{C0+i}, 16, v{C0+i}")
    for i in range(3): k(f"v_mul_f32 v{T+i}, s15, v{C0+i}")
    for i in range(3): k(f"v_exp_f32 v{T+i}, v{T+i}")
    for i in range(3): k(f"v_add_f32 v{T+i}, 1.0, v{T+i}")
    for i in range(3): k(f"v_rcp_f32 v{T+i}, v{T+i}")
    for i in range(3): k(f"v_mul_f32 v{C0+i}, v{C0+i}, v{T+i}")
    for i in range(3): bf16_round_f32(k, C0 + i, C0 + i, T)
    for i in range(3):
        for j in range(4):
            k(f"v_lshlrev_b32 v{T}, 16, v{W0+4*i+j}")
            k(f"v_and_b32 v{T+1}, 0xffff0000, v{W0+4*i+j}")
            if i == 0:
                k(f"v_mul_f32 v{AC+2*j}, v{C0+i}, v{T}")
                k(f"v_mul_f32 v{AC+2*j+1}, v{C0+i}, v{T+1}")
            else:
                k(f"v_fmac_f32 v{AC+2*j}, v{C0+i}, v{T}")
                k(f"v_fmac_f32 v{AC+2*j+1}, v{C0+i}, v{T+1}")
    for j in range(8):
        k(f"v_add_f32_dpp v{AC+j}, v{AC+j}, v{AC+j} row_ror:8 row_mask:0xf bank_mask:0xf")
    k("v_lshrrev_b32 v5, 4, v0")
    k("v_lshlrev_b32 v5, 8, v5")
    k("v_and_b32 v6, 7, v0")
    k("v_lshl_add_u32 v5, v6, 5, v5")
    k("v_and_b32 v6, 15, v0")
    k("v_cmp_gt_u32 vcc, 8, v6")
    k("s_and_saveexec_b64 s[34:35], vcc")
    k(f"ds_write_b128 v5, v[{AC}:{AC+3}]")
    k(f"ds_write_b128 v5, v[{AC+4}:{AC+7}] offset:16")
    k("s_mov_b64 exec, s[34:35]")
    k("s_waitcnt lgkmcnt(0)")
    k("s_barrier")
    k("s_cmp_lg_u32 s12, 0")
    k("s_cbranch_scc1 PREP_COMMON")
    k("v_lshlrev_b32 v7, 2, v1")
    for p in range(32): k(f"ds_read_b32 v{W0+p}, v7 offset:{256*p}")
    k("s_waitcnt lgkmcnt(0)")
    for st in (16, 8, 4, 2, 1):
        for p in range(st): k(f"v_add_f32 v{W0+p}, v{W0+p}, v{W0+p+st}")
    k("s_mul_i32 s15, s13, 15360")
    k("s_lshl_b32 s34, s14, 8")
    k("s_add_u32 s15, s15, s34")
    k(f"buffer_store_dword v{W0}, v7, s[20:23], s15 offen sc1")
    k("s_waitcnt vmcnt(0)")
    k("s_cmp_ge_u32 s14, 20")
    k("s_cbranch_scc1 PREP_COMMON")
    k("s_mov_b64 exec, 1")
    k("v_mov_b32 v5, 0")
    k("v_mov_b32 v6, 1")
    k("global_atomic_add v7, v5, v6, s[28:29] sc0 sc1")
    k("s_waitcnt vmcnt(0)")
    k("v_readfirstlane_b32 s15, v7")
    k("s_cmp_lg_u32 s15, 79")
    k("s_cbranch_scc1 PREP_NOFLAG")
    k("global_store_dword v5, v6, s[28:29] offset:128 sc1")
    k.label("PREP_NOFLAG")
    k("s_mov_b64 exec, -1")
    k.label("PREP_COMMON")
    k("s_cmp_ge_u32 s12, 6")
    k("s_cbranch_scc1 PREP_LN")
    k("s_cmp_eq_u32 s12, 5")
    k("s_cbranch_scc1 PREP_ONES")
    if PF == "late": wqkv_prefetch()
    k("s_endpgm")
    k.label("PREP_ONES")
    srd(k, 32, 4, 32 * KV_HEAD, WS_KV)
    k("s_lshl_b32 s13, s2, 5")
    k("v_add_u32 v5, s13, v1")
    k("v_lshrrev_b32 v6, 2, v5")
    k(f"v_mul_u32_u24 v6, {KV_TILE}, v6")
    k("v_and_b32 v7, 3, v5")
    k("v_mul_u32_u24 v7, 336, v7")
    k(f"v_add_u32 v6, {1280+320}, v6")
    k("v_add_u32 v6, v6, v7")
    for j in range(4): k(f"v_mov_b32 v{8+j}, 0x3f803f80")
    k("s_mov_b32 exec_hi, 0")
    k("buffer_store_dwordx4 v[8:11], v6, s[32:35], 0 offen")
    srd(k, 36, 4, 16 * 384 * 4, WS_UT)
    k("s_mul_i32 s13, s2, 96")
    k("v_lshlrev_b32 v5, 2, v1")
    k("v_mov_b32 v12, 0")
    k("s_mov_b32 exec_lo, 0xffffff")
    k("buffer_store_dword v12, v5, s[36:39], s13 offen")
    k("s_endpgm")
    k.label("PREP_LN")
    E = 32
    k("s_waitcnt vmcnt(0)")
    for r in range(20):
        k(f"v_lshlrev_b32 v{E+2*r}, 16, v{X+r}")
        k(f"v_and_b32 v{E+2*r+1}, 0xffff0000, v{X+r}")
    k(f"v_add_f32 v5, v{E}, v{E+1}")
    k(f"v_add_f32 v6, v{E+2}, v{E+3}")
    for r in range(4, 40, 2):
        k(f"v_add_f32 v5, v5, v{E+r}")
        k(f"v_add_f32 v6, v6, v{E+r+1}")
    k("v_add_f32 v5, v5, v6")
    for rot in (1, 2, 4, 8):
        k(f"v_add_f32_dpp v5, v5, v5 row_ror:{rot} row_mask:0xf bank_mask:0xf")
    k(f"s_mov_b32 s13, {hex(f2u(1.0/640))}")
    k("v_mul_f32 v5, s13, v5")
    for r in range(40): k(f"v_sub_f32 v{E+r}, v{E+r}, v5")
    k(f"v_mul_f32 v6, v{E}, v{E}")
    k(f"v_mul_f32 v7, v{E+1}, v{E+1}")
    for r in range(2, 40, 2):
        k(f"v_fmac_f32 v6, v{E+r}, v{E+r}")
        k(f"v_fmac_f32 v7, v{E+r+1}, v{E+r+1}")
    k("v_add_f32 v6, v6, v7")
    for rot in (1, 2, 4, 8):
        k(f"v_add_f32_dpp v6, v6, v6 row_ror:{rot} row_mask:0xf bank_mask:0xf")
    k("v_mov_b32 v7, 0x3727c5ac")
    k("v_fmac_f32 v7, s13, v6")
    k("v_rsq_f32 v7, v7")
    k("s_nop 0")
    for r in range(40): k(f"v_mul_f32 v{E+r}, v{E+r}, v7")
    k("v_mov_b32 v5, 0")
    k("s_mov_b32 s14, 0")
    k("; STAMP 2")
    k.label("PREP_POLL")
    k("s_mov_b64 exec, 1")
    k("global_load_dword v6, v5, s[28:29] offset:128 sc1")
    k("s_waitcnt vmcnt(0)")
    k("v_readfirstlane_b32 s15, v6")
    k("s_mov_b64 exec, -1")
    k("s_cmp_lg_u32 s15, 0")
    k("s_cbranch_scc1 PREP_READY")
    k("s_add_u32 s14, s14, 1")
    k("s_cmp_gt_u32 s14, 100000")
    k("s_cbranch_scc1 PREP_READY")
    k("s_sleep 8")
    k("s_branch PREP_POLL")
    k.label("PREP_READY")
    k("; STAMP 3")
    P = 80
    k("s_sub_u32 s15, s12, 6")
    k("s_mul_i32 s15, s15, 2560")
    k("v_lshlrev_b32 v5, 4, v1")
    k("v_mov_b32 v8, 0x7ffffff0")
    k("v_cmp_gt_u32 vcc, 32, v1")
    k("v_add_u32 v6, s15, v5")
    k("v_add_u32 v9, 2048, v6")
    k("v_cndmask_b32 v9, v8, v9, vcc")
    for q in range(4):
        k(f"s_mov_b32 s34, {q*15360}")
        k(f"buffer_load_dwordx4 v[{P+12*q}:{P+12*q+3}], v6, s[20:23], s34 offen sc1")
        k(f"buffer_load_dwordx4 v[{P+12*q+4}:{P+12*q+7}], v6, s[20:23], s34 offen offset:1024 sc1")
        k(f"buffer_load_dwordx4 v[{P+12*q+8}:{P+12*q+11}], v9, s[20:23], s34 offen sc1")
    k("s_waitcnt vmcnt(0)")
    for r in range(12):
        k(f"v_add_f32 v{P+r}, v{P+r}, v{P+12+r}")
        k(f"v_add_f32 v{P+24+r}, v{P+24+r}, v{P+36+r}")
    for r in range(12): k(f"v_add_f32 v{P+r}, v{P+r}, v{P+24+r}")
    for r in range(12): bf16_round_f32(k, P + r, P + r, P + 12)
    k("s_cmp_eq_u32 s12, 6")
    k("s_cbranch_scc1 PREP_NOONE")
    for r in range(12): k(f"v_add_f32 v{P+r}, 1.0, v{P+r}")
    for r in range(12): bf16_round_f32(k, P + r, P + r, P + 12)
    k.label("PREP_NOONE")
    k("s_sub_u32 s15, s12, 6")
    k("s_mul_i32 s15, s15, 2560")
    k("v_add_u32 v5, s15, v5")
    k("v_add_u32 v5, 8192, v5")
    k(f"ds_write_b128 v5, v[{P}:{P+3}]")
    k(f"ds_write_b128 v5, v[{P+4}:{P+7}] offset:1024")
    k("s_mov_b32 exec_hi, 0")
    k(f"ds_write_b128 v5, v[{P+8}:{P+11}] offset:2048")
    k("s_mov_b64 exec, -1")
    k("s_waitcnt lgkmcnt(0)")
    k("s_barrier")
    Gm, Sm = 96, 136
    k("v_and_b32 v4, 15, v0")
    k("v_lshlrev_b32 v4, 5, v4")
    for i in range(5):
        for hh in range(2):
            k(f"ds_read_b128 v[{Sm+8*i+4*hh}:{Sm+8*i+4*hh+3}], v4 offset:{8192 + 512*i + 16*hh}")
            k(f"ds_read_b128 v[{Gm+8*i+4*hh}:{Gm+8*i+4*hh+3}], v4 offset:{8192 + 2560 + 512*i + 16*hh}")
    k("s_waitcnt lgkmcnt(0)")
    for r in range(40): k(f"v_fma_f32 v{E+r}, v{E+r}, v{Gm+r}, v{Sm+r}")
    for r in range(20): k(f"v_cvt_pk_bf16_f32 v{X+r}, v{E+2*r}, v{E+2*r+1}")
    for i in range(5):
        k(f"buffer_store_dwordx4 v[{X+4*i}:{X+4*i+3}], v3, s[24:27], 0 offen offset:{256*i}")
    k.label("PREP_END")
    k("s_endpgm")
    k.fix_hazards()
    return name, header(name) + k.text() + descriptor(name, 176), (256, 512, 16384)
```

```python
S, D, H, DH, F = 2048, 640, 32, 20, 1536
WS_MODV = 0x0
WS_UT   = 0x4000
WS_H    = 0x10000
WS_Q    = WS_H + 0x280000
WS_KV   = WS_Q + 0x280000
KV_TILE = 2624
KV_HEAD = 64 * KV_TILE
WS_O    = WS_KV + 0x520000
WS_X1   = WS_O + 0x280000
WS_G    = WS_X1 + 0x280000
WS_WOP  = WS_G + 0x600000
WS_WDP  = WS_WOP + 0xC8000
WS_WUP  = WS_WDP + 0x1E0000
WS_MODP = WS_WUP + 0x3C0000
WS_UTP  = WS_MODP + 0x10000
WS_STAT = WS_UTP + 0x20000
WS_FLG  = WS_STAT + 0x20000
FL_H, FL_QKV, FL_T, FL_O, FL_X1, FL_G, FL_M = [i * 256 * 128 for i in range(7)]
WS_END  = WS_FLG + 7 * 256 * 128
KA_X, KA_WQKV, KA_WO, KA_BX, KA_WG, KA_WU, KA_WD, KA_C, KA_WMOD, KA_OUT, KA_DBG, KA_WS = [8 * i for i in range(12)]
if __name__ == "__main__":
    print(hex(WS_END), WS_END)
```

```python
from common import *
import os

STAGE = 16 * KV_TILE
Q1, Q2 = 112, 116
KA, KB = 12, 20
VF = 24
SS = 40
PP = 72
OO = 80
AK, AKB, AV = 96, 99, 102
VDMA = 105

def m16(d, a, b, c): return f"v_mfma_f32_32x32x16_bf16 v[{d}:{d+15}], v[{a}:{a+3}], v[{b}:{b+3}], {c}"
def m8(d, a, b, c): return f"v_mfma_f32_32x32x8bf16_1k v[{d}:{d+15}], v[{a}:{a+1}], v[{b}:{b+1}], {c}"

class VM:
    def __init__(self, k): self.k, self.ops = k, []
    def issue(self, line, tag): self.k(line); self.ops.append(tag)
    def wait(self, tags):
        last = max([i for i, t in enumerate(self.ops) if t in tags], default=-1)
        n = len(self.ops) - 1 - last
        self.k(f"s_waitcnt vmcnt({min(n, 63)})")

def gen_attn2():
    name = "attn_kernel"
    k = K(); vm = VM(k)
    k("s_cmp_ge_u32 s2, 256")
    k("s_cbranch_scc1 ATT_END")
    k(f"s_load_dwordx2 s[4:5], s[0:1], {KA_WS}")
    k(f"s_load_dwordx2 s[32:33], s[0:1], {KA_WD}")
    k("s_and_b32 s11, s2, 7")
    k("s_lshl_b32 s11, s11, 2")
    k("s_bfe_u32 s12, s2, 0x20003")
    k("s_add_u32 s11, s11, s12")
    k("s_lshr_b32 s12, s2, 5")
    k("v_and_b32 v1, 63, v0")
    k("v_lshrrev_b32 v2, 6, v0")
    k("s_nop 0")
    k("v_readfirstlane_b32 s8, v2       ; wave")
    k(f"s_mul_i32 s9, s11, {KV_HEAD}")
    k("s_lshl_b32 s13, s8, 10")
    k("s_add_u32 s9, s9, s13")
    k("v_lshlrev_b32 v4, 4, v1")
    k(f"v_add_u32 v{VDMA}, s9, v4")
    k("v_and_b32 v2, 31, v1")
    k("s_lshl_b32 s9, s12, 3")
    k("s_add_u32 s9, s9, s8")
    k("s_mul_i32 s9, s9, 1280")
    k("s_mul_i32 s10, s11, 81920")
    k("s_add_u32 s9, s9, s10")
    k("v_add_u32 v10, s9, v4")
    k("v_lshlrev_b32 v5, 3, v2")
    k("v_add_u32 v5, s9, v5")
    k("s_waitcnt lgkmcnt(0)")
    srd(k, 16, 4, 32 * KV_HEAD, WS_KV)
    srd(k, 20, 4, S * D * 2, WS_Q)
    k("; STAMP 0")
    def dma_item(st, slot, i):
        L = [f"s_add_u32 m0, s13, {slot*STAGE + 8192*i}", f"s_mov_b32 s14, {st*STAGE + 8192*i}"]
        ld = f"buffer_load_dwordx4 v{VDMA}, s[16:19], s14 offen lds"
        return L, ld
    def emit_dma(st, slot, i):
        L, ld = dma_item(st, slot, i)
        for l in L: k(l)
        vm.issue(ld, ("kv", st, i))
    vm.issue(f"buffer_load_dwordx4 v[{Q1}:{Q1+3}], v10, s[20:23], 0 offen", "q")
    vm.issue(f"buffer_load_dwordx2 v[{Q2}:{Q2+1}], v5, s[20:23], 0 offen offset:1024", "q")
    def emit_stage_first(st, slot):
        L, ld = dma_item(st, slot, 5)
        lab = f"ATT_NP_{st}"
        k("s_cmp_lg_u32 s8, 0")
        k(f"s_cbranch_scc1 {lab}")
        for l in L: k(l)
        k(ld)
        k.label(lab)
    emit_stage_first(0, 0)
    for i in range(5): emit_dma(0, 0, i)
    k("v_lshrrev_b32 v3, 5, v1          ; half")
    for sl in range(3):
        k(f"v_lshlrev_b32 v{AK+sl}, 4, v1")
        if sl: k(f"v_add_u32 v{AK+sl}, {sl*STAGE}, v{AK+sl}")
        k(f"v_lshlrev_b32 v{AKB+sl}, 3, v2")
        k(f"v_add_u32 v{AKB+sl}, {sl*STAGE + 1024}, v{AKB+sl}")
        k(f"v_mul_u32_u24 v{AV+sl}, 336, v3")
        k(f"v_lshl_add_u32 v{AV+sl}, v2, 4, v{AV+sl}")
        k(f"v_add_u32 v{AV+sl}, {sl*STAGE + 1280}, v{AV+sl}")
    k("s_lshl_b32 s9, s12, 8")
    k("s_lshl_b32 s10, s8, 5")
    k("s_add_u32 s9, s9, s10")
    k("v_add_u32 v4, s9, v2             ; token")
    k("v_mul_u32_u24 v4, 1280, v4")
    k("s_mul_i32 s9, s11, 40")
    k("v_add_u32 v4, s9, v4")
    k("v_lshl_add_u32 v11, v3, 3, v4")
    srd(k, 24, 4, S * D * 2, WS_O)
    FLAG = 3 * STAGE + 1024
    k("v_mov_b32 v2, 0")
    k(f"v_mov_b32 v6, {FLAG}")
    k("ds_write_b32 v6, v2")
    for r in range(16): k(f"v_mov_b32 v{OO+r}, 0")
    k("s_waitcnt lgkmcnt(0)")
    vm.wait({"q", ("kv", 0, 0), ("kv", 0, 1)})
    k("v_cmp_gt_u32 vcc, 32, v1")
    k(f"v_cndmask_b32 v{Q2}, 0, v{Q2}, vcc")
    k(f"v_cndmask_b32 v{Q2+1}, 0, v{Q2+1}, vcc")
    k("s_barrier")
    k("; STAMP 1")

    def rdK(t):
        st, tt = divmod(t, 16); sl = st % 3; b = t & 1
        return [f"ds_read_b128 v[{KA+4*b}:{KA+4*b+3}], v{AK+sl} offset:{tt*KV_TILE}",
                f"ds_read_b64 v[{KB+2*b}:{KB+2*b+1}], v{AKB+sl} offset:{tt*KV_TILE}"]
    def rdV(t):
        st, tt = divmod(t, 16); sl = st % 3; b = t & 1
        return [f"ds_read_b128 v[{VF+8*b+4*m}:{VF+8*b+4*m+3}], v{AV+sl} offset:{tt*KV_TILE + 672*m}" for m in range(2)]
    def M1(t): b = t & 1; return m16(SS + 16 * b, KA + 4 * b, Q1, "0")
    def M2(t): b = t & 1; d = SS + 16 * b; return m8(d, KB + 2 * b, Q2, f"v[{d}:{d+15}]")
    def PV(t, m): b = t & 1; return m16(OO, VF + 8 * b + 4 * m, PP + 4 * m, f"v[{OO}:{OO+15}]")
    NTL = 64

    bg = {}
    def put(t, f): bg.setdefault(t, []).append(f)
    def stage_items(st, t0, step):
        slot = st % 3
        put(t0, lambda: emit_stage_first(st, slot))
        for i in range(5): put(t0 + step * i, (lambda i=i: emit_dma(st, slot, i)))
    stage_items(1, 0, 2)
    stage_items(2, 14, 2)
    stage_items(3, 30, 2)
    def wd_addr():
        k("s_lshl_b32 s9, s2, 9")
        k("v_add_u32 v118, s9, v0")
        k("v_lshlrev_b32 v119, 4, v118")
        srd(k, 36, 32, 1536 * 1280)
        vm.issue("buffer_load_dwordx4 v[120:123], v119, s[36:39], 0 offen", "wd")
    def wd_dst():
        divconst(k, 124, 118, 80, 9, 131072)
        k("v_mul_u32_u24 v125, 80, v124")
        k("v_sub_u32 v125, v118, v125")
        divconst(k, 126, 125, 10, 9, 80)
        k("v_mul_u32_u24 v127, 10, v126")
        k("v_sub_u32 v125, v125, v127")
        k("v_and_b32 v127, 0xfffffff3, v124")
        k("v_bfe_u32 v119, v124, 2, 1")
        k("v_lshl_or_b32 v127, v119, 3, v127")
        k("v_bfe_u32 v119, v124, 3, 1")
        k("v_lshl_or_b32 v127, v119, 2, v127")
        k(f"s_mov_b32 s9, {1536*160}")
        k("v_mul_lo_u32 v126, s9, v126")
        k("v_mul_u32_u24 v127, 160, v127")
        k("v_lshlrev_b32 v125, 4, v125")
        k("v_add3_u32 v119, v126, v125, v127")
        k("s_mov_b32 s9, 122880")
        k("v_cmp_gt_u32 vcc, s9, v118")
        k("v_mov_b32 v124, 0x7ffffff0")
        k("v_cndmask_b32 v119, v124, v119, vcc")
        srd(k, 36, 4, 8 * 1536 * 160, WS_WDP)
    put(11, wd_addr); put(12, wd_dst)
    put(31, lambda: vm.issue("buffer_store_dwordx4 v[120:123], v119, s[36:39], 0 offen", "wdst"))
    def pf_wo():
        srd(k, 40, 4, 8 * 640 * 160, WS_WOP)
        k("s_lshr_b32 s9, s2, 3")
        k("s_mul_i32 s9, s9, 200")
        k("v_add_u32 v118, s9, v0")
        k("v_lshlrev_b32 v118, 7, v118")
        k("v_cmp_gt_u32 vcc, 200, v0")
        k("v_mov_b32 v124, 0x7ffffff0")
        k("v_cndmask_b32 v118, v124, v118, vcc")
        vm.issue("buffer_load_dword v125, v118, s[40:43], 0 offen", "pf")
    if not os.environ.get("NO_BPF_ATT"): put(50, pf_wo)

    SEQ = os.environ.get("ATT_SEQ",
        "W2 M1 RKa RKb e0 e1 e2 c0 e3 P1 RV0 RV1 e4 c1 e5 e6 M2 c2 e7 e8 c3 e9 e10 WV P0 BG c4 e11 e12 c5 e13 e14 e15 c6 c7")
    for r in rdK(0) + rdK(1) + rdV(0): k(r)
    k("s_waitcnt lgkmcnt(4)")
    k(M1(0)); k(M2(0))
    for t in range(NTL):
        s = SS + 16 * (t & 1)
        st, tt = divmod(t, 16)
        if t == 4:
            vm.wait({("kv", 0, i) for i in range(5)})
            k("s_barrier")
        if tt == 14 and st + 1 < 4:
            vm.wait({("kv", st + 1, i) for i in range(5)} | ({"wd"} if st == 1 else set()))
            k("s_barrier")
        have_next = t + 1 < NTL
        rk = rdK(t + 2) if t + 2 < NTL else []
        rv = rdV(t + 1) if have_next else []
        nrd = len(rk) + len(rv)
        for tok in SEQ.split():
            if tok[0] == "e": i = int(tok[1:]); k(f"v_exp_f32 v{s+i}, v{s+i}")
            elif tok[0] == "c": q = int(tok[1:]); k(f"v_cvt_pk_bf16_f32 v{PP+q}, v{s+2*q}, v{s+2*q+1}")
            elif tok == "W2":
                if have_next: k("s_waitcnt lgkmcnt(2)")
            elif tok == "M1":
                if have_next: k(M1(t + 1))
            elif tok == "M2":
                if have_next: k(M2(t + 1))
            elif tok == "RKa":
                if rk: k(rk[0])
            elif tok == "RKb":
                if rk: k(rk[1])
            elif tok == "RV0":
                if rv: k(rv[0])
            elif tok == "RV1":
                if rv: k(rv[1])
            elif tok == "WV": k(f"s_waitcnt lgkmcnt({nrd})")
            elif tok == "BG":
                for f in bg.get(t, []): f()
            elif tok == "P0": k(PV(t, 0))
            elif tok == "P1":
                if t > 0: k(PV(t - 1, 1))
            elif tok.startswith("PRIO"): k(f"s_setprio {tok[4:]}")
            else: raise ValueError(tok)
    k(PV(NTL - 1, 1))
    k("; STAMP 2")

    def finish(check):
        k(f"v_mov_b32 v2, v{OO+8}")
        k(f"v_mov_b32 v3, v{OO+8}")
        k("v_permlane32_swap_b32 v2, v3")
        if check:
            k("s_mov_b32 s9, 0x21800000         ; 2^-60")
            k("s_mov_b32 s10, 0x5d800000        ; 2^60")
            k("v_cmp_le_f32 vcc, s9, v3")
            k("v_cmp_ge_f32 s[28:29], s10, v3")
            k("s_and_b64 s[28:29], s[28:29], vcc")
            k("s_movk_i32 s9, 0x207")
            for r in range(8):
                k(f"v_cmp_class_f32 vcc, v{OO+r}, s9")
                k("s_andn2_b64 s[28:29], s[28:29], vcc")
            k("s_mov_b32 s30, -1")
            k("s_mov_b32 s31, 0")
            for r in range(8, 12):
                k(f"v_cmp_class_f32 vcc, v{OO+r}, s9")
                k("s_and_b64 vcc, vcc, s[30:31]")
                k("s_andn2_b64 s[28:29], s[28:29], vcc")
            k("s_cmp_eq_u64 s[28:29], -1")
            k("s_cbranch_scc1 ATT_OK")
            k("v_mov_b32 v2, 1")
            k(f"v_mov_b32 v5, {FLAG}")
            k("ds_write_b32 v5, v2")
            k.label("ATT_OK")
            k("s_waitcnt lgkmcnt(0)")
            k("s_barrier")
            k(f"v_mov_b32 v5, {FLAG}")
            k("ds_read_b32 v2, v5")
            k("s_waitcnt lgkmcnt(0)")
            k("v_readfirstlane_b32 s9, v2")
            k("s_cmp_lg_u32 s9, 0")
            k("s_cbranch_scc1 ATT_SLOW")
        k("v_rcp_f32 v3, v3")
        for r in range(12): k(f"v_mul_f32 v{OO+r}, v{OO+r}, v3")
        for q in range(6): k(f"v_cvt_pk_bf16_f32 v{PP+q}, v{OO+2*q}, v{OO+2*q+1}")
        k(f"buffer_store_dwordx2 v[{PP}:{PP+1}], v11, s[24:27], 0 offen")
        k(f"buffer_store_dwordx2 v[{PP+2}:{PP+3}], v11, s[24:27], 0 offen offset:16")
        k("s_mov_b32 exec_hi, 0")
        k(f"buffer_store_dwordx2 v[{PP+4}:{PP+5}], v11, s[24:27], 0 offen offset:32")
        k("s_endpgm")
    finish(True)

    k.label("ATT_SLOW")
    k("s_waitcnt vmcnt(0)")
    for r in range(16): k(f"v_mov_b32 v{OO+r}, 0")
    k("v_mov_b32 v2, 0xff7fffff")
    k("s_mov_b32 s15, 0")
    k.label("ATT_SLOW_STAGE")
    k("s_barrier")
    k(f"s_mul_i32 s10, s15, {STAGE}")
    for i in range(5):
        k(f"s_add_u32 m0, s13, {8192*i}")
        k(f"s_add_u32 s14, s10, {8192*i}")
        k(f"buffer_load_dwordx4 v{VDMA}, s[16:19], s14 offen lds")
    k("s_cmp_lg_u32 s8, 0")
    k("s_cbranch_scc1 ATT_SLOW_NP")
    k(f"s_add_u32 m0, s13, {8192*5}")
    k(f"s_add_u32 s14, s10, {8192*5}")
    k(f"buffer_load_dwordx4 v{VDMA}, s[16:19], s14 offen lds")
    k.label("ATT_SLOW_NP")
    k("s_waitcnt vmcnt(0)")
    k("s_barrier")
    k(f"v_mov_b32 v5, v{AK}")
    k(f"v_mov_b32 v6, v{AKB}")
    k(f"v_mov_b32 v7, v{AV}")
    k("s_mov_b32 s9, 0")
    k.label("ATT_SLOW_TILE")
    k(f"ds_read_b128 v[{KA}:{KA+3}], v5")
    k(f"ds_read_b64 v[{KB}:{KB+1}], v6")
    k(f"ds_read_b128 v[{VF}:{VF+3}], v7")
    k(f"ds_read_b128 v[{VF+4}:{VF+7}], v7 offset:672")
    k("s_waitcnt lgkmcnt(0)")
    k(m16(SS, KA, Q1, "0"))
    k(m8(SS, KB, Q2, f"v[{SS}:{SS+15}]"))
    k(f"v_add_u32 v5, {KV_TILE}, v5")
    k(f"v_add_u32 v6, {KV_TILE}, v6")
    k(f"v_add_u32 v7, {KV_TILE}, v7")
    k(f"v_max_f32 v108, v{SS}, v{SS+1}")
    for r in range(2, 16): k(f"v_max_f32 v108, v108, v{SS+r}")
    k("v_mov_b32 v109, v108")
    k("v_permlane32_swap_b32 v108, v109")
    k("v_max_f32 v108, v108, v109")
    k("v_max_f32 v108, v108, v2")
    k("v_sub_f32 v109, v2, v108")
    k("v_exp_f32 v109, v109")
    k("v_mov_b32 v2, v108")
    for r in range(16): k(f"v_sub_f32 v{SS+r}, v{SS+r}, v108")
    for r in range(16): k(f"v_exp_f32 v{SS+r}, v{SS+r}")
    for r in range(16): k(f"v_mul_f32 v{OO+r}, v{OO+r}, v109")
    for q in range(8): k(f"v_cvt_pk_bf16_f32 v{PP+q}, v{SS+2*q}, v{SS+2*q+1}")
    k(m16(OO, VF, PP, f"v[{OO}:{OO+15}]"))
    k(m16(OO, VF + 4, PP + 4, f"v[{OO}:{OO+15}]"))
    k("s_add_u32 s9, s9, 1")
    k("s_cmp_lt_u32 s9, 16")
    k("s_cbranch_scc1 ATT_SLOW_TILE")
    k("s_add_u32 s15, s15, 1")
    k("s_cmp_lt_u32 s15, 4")
    k("s_cbranch_scc1 ATT_SLOW_STAGE")
    finish(False)
    k.label("ATT_END")
    k("s_endpgm")
    k.fix_hazards()
    return name, header(name) + k.text() + descriptor(name, 128), (256, 512, 3 * STAGE + 2048)
```

```python
from common import *
import struct, os
DOWN84 = bool(os.environ.get('DOWN84'))
APF = os.environ.get('APF', 'start')
def f2u(x): return struct.unpack('<I', struct.pack('<f', x))[0]

def mfma32(d, a, b, c=None):
    cc = f"v[{d}:{d+15}]" if c is None else c
    return f"v_mfma_f32_32x32x16_bf16 v[{d}:{d+15}], v[{a}:{a+3}], v[{b}:{b+3}], {cc}"
def mfma16(d, a, b, c=None):
    cc = f"v[{d}:{d+3}]" if c is None else c
    return f"v_mfma_f32_16x16x32_bf16 v[{d}:{d+3}], v[{a}:{a+3}], v[{b}:{b+3}], {cc}"

def loader_loop(k, nst, nslots, nd, dma, after_last=None, tail_issue=None, tail_at=None, after_barrier=None):
    ops = []
    def issue(st):
        dma(st); ops.extend([st] * nd)
        if tail_issue and st + 1 == (tail_at or nst):
            ops.extend(["x"] * tail_issue())
    def wait(st):
        last = max(i for i, t in enumerate(ops) if t == st)
        k(f"s_waitcnt vmcnt({min(63, len(ops) - 1 - last)})")
    issued = 0
    for st in range(min(int(os.environ.get('UPFRONT', nslots - 1)), nslots - 1, nst)):
        issue(st); issued += 1
    wait(0)
    k("s_barrier")
    while issued < min(nslots - 1, nst):
        issue(issued); issued += 1
    for s in range(nst - 1):
        wait(s + 1)
        k("s_barrier")
        if issued < nst:
            issue(issued); issued += 1
        if after_barrier and (s + 1) in after_barrier:
            tag, fn = after_barrier[s + 1]
            ops.extend([tag] * fn())
    if after_last: after_last(ops, wait)

def compute_loop(k, nst, ksteps, reads, mfmas, nreads_first, stamp=True, hooks=None):
    hooks = hooks or {}
    if -2 in hooks: hooks[-2]()
    k("s_barrier")
    if stamp: k("; STAMP 1")
    first = reads(0)
    for g in first:
        for r in g: k(r)
    if -1 in hooks: hooks[-1]()
    total = nst * ksteps
    for step in range(total):
        st, ks = divmod(step, ksteps)
        cur = reads(step)
        nxt = reads(step + 1) if step + 1 < total else None
        ng = len(cur)
        issued = 0
        if step in hooks: hooks[step]()
        if os.environ.get("STAGE_STAMPS") and ks == 0:
            marks = {nst // 4: 0, nst // 2: 3}
            if st in marks: k(f"; STAMP {marks[st]}")
        for g in range(ng):
            if g == 0 and ks == ksteps - 1 and st + 1 < nst:
                k("s_barrier")
            later = sum(len(x) for x in cur[g + 1:])
            k(f"s_waitcnt lgkmcnt({min(later + issued, 15)})")
            ml = mfmas(step, g)
            for m in ml:
                if m.startswith("v_mfma"): k(m)
            if nxt is not None:
                for r in nxt[g]: k(r)
                issued += len(nxt[g])
            for m in ml:
                if not m.startswith("v_mfma"): k(m)
    if stamp: k("; STAMP 2")

def touch(k, srd_s, vaddr, vdst, soff="0"):
    k(f"buffer_load_dword v{vdst}, v{vaddr}, s[{srd_s}:{srd_s+3}], {soff} offen")

def tail_prefetch(k, off, nbytes, base_lines_expr, lines_per_wg, vtmp=20, vdst=24):
    srd(k, 56, 4, nbytes, off)
    base_lines_expr()
    k("s_lshr_b32 s10, s2, 3")
    k(f"s_mul_i32 s10, s10, {lines_per_wg}")
    k("s_add_u32 s9, s9, s10")
    k(f"v_and_b32 v{vtmp}, 255, v0")
    n = 0
    for i in range((lines_per_wg + 255) // 256):
        k(f"v_add_u32 v{vtmp+1}, {256*i}, v{vtmp}")
        k(f"v_add_u32 v{vtmp+2}, s9, v{vtmp+1}")
        k(f"v_lshlrev_b32 v{vtmp+2}, 7, v{vtmp+2}")
        if 256 * (i + 1) > lines_per_wg:
            k(f"v_cmp_gt_u32 vcc, {lines_per_wg}, v{vtmp+1}")
            k(f"v_mov_b32 v{vtmp+3}, 0x7ffffff0")
            k(f"v_cndmask_b32 v{vtmp+2}, v{vtmp+3}, v{vtmp+2}, vcc")
        k(f"buffer_load_dword v{vdst+i}, v{vtmp+2}, s[56:59], 0 offen")
        n += 1
    return n

def prologue_ids(k, end):
    k("s_cmp_ge_u32 s2, 256")
    k(f"s_cbranch_scc1 {end}")

def wave_ids(k):
    k("v_and_b32 v1, 63, v0             ; lane")
    k("v_lshrrev_b32 v2, 6, v0")
    k("s_nop 0")
    k("v_readfirstlane_b32 s8, v2")
    k("s_and_b32 s31, s8, 3")

def a_dma_setup32(k, VA, rt_sgpr, lda, rows_per_tile_log2=7):
    k("v_lshrrev_b32 v2, 3, v1")
    k("v_lshrrev_b32 v3, 4, v1")
    k("v_and_b32 v4, 7, v1")
    k(f"s_lshl_b32 s9, s{rt_sgpr}, {rows_per_tile_log2}")
    k("s_lshl_b32 s10, s31, 5")
    k("s_add_u32 s9, s9, s10")
    k("v_add_u32 v2, s9, v2")
    k(f"s_mov_b32 s10, {lda}")
    k("v_mul_lo_u32 v2, s10, v2")
    for i in range(4):
        k(f"v_xor_b32 v5, {(i&1)*4}, v3")
        k("v_xor_b32 v5, v5, v4")
        k("v_lshlrev_b32 v5, 4, v5")
        k(f"v_add_u32 v5, {i*8*lda - i*1024}, v5")
        k(f"v_add_u32 v{VA+i}, v2, v5")

def gen_qkv2():
    name = "qkv_kernel"
    k = K()
    NS = 5
    AF, BF, ACC = 40, 48, 80
    RA, RB = 4, 16
    prologue_ids(k, "QKV_END")
    k(f"s_load_dwordx2 s[4:5], s[0:1], {KA_WS}")
    k(f"s_load_dwordx2 s[6:7], s[0:1], {KA_WQKV}")
    k("s_and_b32 s3, s2, 7")
    k("s_lshr_b32 s13, s2, 3")
    k("s_and_b32 s14, s3, 3")
    k("s_lshl_b32 s14, s14, 2")
    k("s_and_b32 s15, s13, 3")
    k("s_add_u32 s11, s14, s15")
    k("s_lshr_b32 s14, s3, 2")
    k("s_lshl_b32 s14, s14, 3")
    k("s_lshr_b32 s15, s13, 2")
    k("s_add_u32 s12, s14, s15")
    wave_ids(k)
    k("s_cmp_ge_u32 s12, 15")
    k("s_cbranch_scc1 QKV_SIDE")
    k("s_cmp_lt_u32 s8, 4")
    k("s_cbranch_scc1 QKV_COMPUTE")
    VA, VB = 8, 12
    a_dma_setup32(k, VA, 11, 1280)
    k("v_lshrrev_b32 v2, 4, v1")
    k("v_bfe_u32 v3, v1, 2, 2")
    k("v_xor_b32 v3, v3, v2")
    k("v_lshlrev_b32 v3, 6, v3")
    k("v_and_b32 v4, 3, v1")
    k("v_lshl_add_u32 v3, v4, 4, v3")
    k("s_lshl_b32 s9, s31, 4")
    k("v_add_u32 v2, s9, v2")
    k("v_mul_u32_u24 v2, 3840, v2")
    k("s_lshl_b32 s9, s12, 8")
    k("v_add3_u32 v2, v2, v3, s9")
    for i in range(4):
        k(f"v_add_u32 v{VB+i}, {i*(4*3840-1024)}, v2")
    k("s_lshl_b32 s13, s31, 12")
    k("s_waitcnt lgkmcnt(0)")
    srd(k, 16, 4, S * D * 2, WS_H)
    srd(k, 20, 6, 640 * 3840)
    if not os.environ.get("STAGE_STAMPS"): k("; STAMP 0")
    def dma(st):
        slot = st % NS
        k(f"s_add_u32 m0, s13, {slot*32768}")
        k(f"s_mov_b32 s14, {st*128}")
        for i in range(4):
            k(f"buffer_load_dwordx4 v{VA+i}, s[16:19], s14 offen offset:{i*1024} lds")
        k(f"s_add_u32 m0, s13, {slot*32768 + 16384}")
        k(f"s_mov_b32 s14, {st*64*3840}")
        for i in range(4):
            k(f"buffer_load_dwordx4 v{VB+i}, s[20:23], s14 offen offset:{i*1024} lds")
    WD_, GP, WOD = 32, 48, 56
    def tail_issue():
        k(f"s_load_dwordx4 s[44:47], s[0:1], {KA_WG}")
        k(f"s_load_dwordx2 s[48:49], s[0:1], {KA_WO}")
        k("s_lshl_b32 s33, s12, 4")
        k("s_add_u32 s33, s33, s11          ; job")
        k(f"s_mul_hi_u32 s34, s33, {(1<<32)//5+1}   ; lc")
        k("s_mul_i32 s35, s34, 5")
        k("s_sub_u32 s35, s33, s35          ; ks")
        k("s_cmp_ge_u32 s34, 24")
        k("s_cselect_b32 s36, 1, 0          ; matrix")
        k("s_mul_i32 s37, s36, 24")
        k("s_sub_u32 s37, s34, s37")
        k("v_and_b32 v20, 255, v0")
        k("v_and_b32 v21, 7, v20")
        k("v_lshrrev_b32 v22, 3, v20")
        k("s_lshl_b32 s38, s35, 7")
        k("v_add_u32 v22, s38, v22")
        k("v_mul_u32_u24 v23, 3072, v22")
        k("s_lshl_b32 s39, s37, 7")
        k("v_lshl_add_u32 v23, v21, 4, v23")
        k("v_add_u32 v23, s39, v23")
        k("v_bfe_u32 v24, v1, 3, 2")
        k("v_lshlrev_b32 v24, 5, v24")
        k("v_and_b32 v25, 7, v1")
        k("s_lshl_b32 s39, s31, 3")
        k("s_add_u32 s39, s39, s38")
        k("v_add3_u32 v24, v24, v25, s39")
        k("v_lshlrev_b32 v24, 2, v24")
        k("v_lshrrev_b32 v25, 5, v1")
        k("v_mul_u32_u24 v25, 2560, v25")
        k("v_add_u32 v24, v24, v25")
        k("v_add_u32 v24, 7680, v24")
        k("s_lshl_b32 s39, s33, 8")
        k("v_add_u32 v26, s39, v20")
        k("v_lshlrev_b32 v27, 4, v26")
        k("s_waitcnt lgkmcnt(0)")
        k("s_cmp_eq_u32 s36, 0")
        k("s_cselect_b32 s40, s44, s46")
        k("s_cselect_b32 s41, s45, s47")
        srd(k, 24, 40, 640 * 3072)
        srd(k, 52, 4, 4 * 3840 * 4, WS_MODP)
        srd(k, 56, 48, 640 * 1280)
        for q in range(4):
            k(f"s_mov_b32 s39, {q*15360}")
            k(f"buffer_load_dword v{GP+q}, v24, s[52:55], s39 offen")
        for i in range(4):
            k(f"s_mov_b32 s39, {i*32*3072}")
            k(f"buffer_load_dwordx4 v[{WD_+4*i}:{WD_+4*i+3}], v23, s[24:27], s39 offen")
        k(f"buffer_load_dwordx4 v[{WOD}:{WOD+3}], v27, s[56:59], 0 offen")
        return 9
    loader_loop(k, 10, NS, 8, dma, None, tail_issue, int(os.environ.get('TAIL_AT', 10)))
    k("s_waitcnt vmcnt(5)")
    k(f"v_add_f32 v{GP}, v{GP}, v{GP+1}")
    k(f"v_add_f32 v{GP+2}, v{GP+2}, v{GP+3}")
    k(f"v_add_f32 v{GP}, v{GP}, v{GP+2}")
    bf16_round_f32(k, GP, GP, GP + 1)
    k(f"v_add_f32 v{GP+1}, 1.0, v{GP}")
    bf16_round_f32(k, GP + 1, GP + 1, GP + 2)
    k("v_cmp_gt_u32 vcc, 32, v1")
    k(f"v_cndmask_b32 v{GP}, v{GP+1}, v{GP}, vcc")
    SG = 60
    k("v_lshrrev_b32 v28, 3, v1")
    k("v_lshlrev_b32 v28, 2, v28")
    for i in range(4):
        k(f"v_add_u32 v29, {32*i}, v28")
        k(f"ds_bpermute_b32 v{SG+i}, v29, v{GP}")
        k(f"v_add_u32 v29, {32*i+128}, v28")
        k(f"ds_bpermute_b32 v{SG+4+i}, v29, v{GP}")
    UU, TT, TM = 68, 76, 84
    for r in range(16): k(f"v_mov_b32 v{UU+r}, 0")
    k("s_lshl_b32 s39, s37, 3")
    k("v_add_u32 v29, s39, v21")
    k("v_mul_u32_u24 v30, 5462, v29")
    k("v_lshrrev_b32 v30, 16, v30       ; ct")
    k("v_mul_u32_u24 v31, 12, v30")
    k("v_sub_u32 v31, v29, v31          ; cc")
    k("s_mov_b32 s39, 245760")
    k("v_mul_lo_u32 v92, s39, v30")
    k("s_mul_i32 s39, s36, 12288")
    k("v_lshl_add_u32 v92, v31, 4, v92")
    k("v_add_u32 v92, s39, v92")
    srd(k, 20, 4, 16 * 10 * 24576, WS_WUP)
    k("s_waitcnt lgkmcnt(0)")
    for i in range(4):
        d = WD_ + 4 * i
        k(f"s_waitcnt vmcnt({4 - i})" if i == 0 else "s_waitcnt vmcnt(4)")
        for q in range(4):
            k(f"v_lshlrev_b32 v{TM+2*q}, 16, v{d+q}")
            k(f"v_and_b32 v{TM+2*q+1}, 0xffff0000, v{d+q}")
        for q in range(8): k(f"v_fmac_f32 v{TT+q}, v{SG+i}, v{TM+q}")
        for q in range(8): k(f"v_mul_f32 v{TM+q}, v{SG+4+i}, v{TM+q}")
        for q in range(8): k(f"v_add_f32 v{UU+q}, v{UU+q}, v{TM+q}")
        for q in range(4): k(f"v_cvt_pk_bf16_f32 v{d+q}, v{TM+2*q}, v{TM+2*q+1}")
        k(f"v_add_u32 v93, {32*i}, v22")
        k("v_lshrrev_b32 v94, 6, v93")
        k("v_mul_u32_u24 v93, 192, v93")
        k("v_mul_u32_u24 v94, 12288, v94")
        k("v_add3_u32 v93, v93, v94, v92")
        k(f"buffer_store_dwordx4 v[{d}:{d+3}], v93, s[20:23], 0 offen")
    def rscatter(B):
        for e in range(4):
            k(f"v_permlane32_swap_b32 v{B+e}, v{B+e+4}")
            k(f"v_add_f32 v{B+e}, v{B+e}, v{B+e+4}")
        for e in range(2):
            k(f"v_permlane16_swap_b32 v{B+e}, v{B+e+2}")
            k(f"v_add_f32 v{B+e}, v{B+e}, v{B+e+2}")
        k(f"v_add_f32_dpp v{B}, v{B}, v{B} row_ror:8 row_mask:0xf bank_mask:0xf")
        k(f"v_add_f32_dpp v{B+1}, v{B+1}, v{B+1} row_ror:8 row_mask:0xf bank_mask:0xf")
        k(f"v_cndmask_b32 v{B}, v{B}, v{B+1}, vcc")
    k("v_and_b32 v93, 8, v1")
    k("v_cmp_ne_u32 vcc, 0, v93")
    rscatter(UU); rscatter(TT)
    k("v_mul_u32_u24 v93, 384, v30")
    k("v_lshl_add_u32 v93, v31, 3, v93")
    k("v_lshrrev_b32 v94, 3, v1")
    k("v_add_u32 v93, v93, v94")
    k("s_mul_i32 s39, s36, 96")
    k("v_add_u32 v93, s39, v93")
    k("v_lshlrev_b32 v93, 2, v93")
    srd(k, 24, 4, 16 * 384 * 4, WS_UT)
    k(f"buffer_atomic_add_f32 v{UU}, v93, s[24:27], 0 offen")
    k(f"buffer_atomic_add_f32 v{TT}, v93, s[24:27], 0 offen offset:768")
    divconst(k, 28, 26, 80, 39, 61440)
    k("v_mul_u32_u24 v29, 80, v28")
    k("v_sub_u32 v29, v26, v29")
    divconst(k, 30, 29, 10, 39, 80)
    k("v_mul_u32_u24 v31, 10, v30")
    k("v_sub_u32 v29, v29, v31           ; cc")
    k("v_and_b32 v31, 0xfffffff3, v28")
    k("v_bfe_u32 v93, v28, 2, 1")
    k("v_lshl_or_b32 v31, v93, 3, v31")
    k("v_bfe_u32 v93, v28, 3, 1")
    k("v_lshl_or_b32 v31, v93, 2, v31")
    k(f"s_mov_b32 s39, {640*160}")
    k("v_mul_lo_u32 v30, s39, v30")
    k("v_mul_u32_u24 v31, 160, v31")
    k("v_lshlrev_b32 v29, 4, v29")
    k("v_add3_u32 v30, v30, v29, v31")
    k("s_mov_b32 s39, 51200")
    k("v_cmp_gt_u32 vcc, s39, v26")
    k("v_mov_b32 v31, 0x7ffffff0")
    k("v_cndmask_b32 v30, v31, v30, vcc")
    srd(k, 20, 4, 8 * 640 * 160, WS_WOP)
    k("s_waitcnt vmcnt(6)")
    k(f"buffer_store_dwordx4 v[{WOD}:{WOD+3}], v30, s[20:23], 0 offen")
    k("s_endpgm")
    k.label("QKV_COMPUTE")
    k("v_and_b32 v2, 31, v1")
    k("v_lshrrev_b32 v3, 5, v1")
    k("v_bfe_u32 v28, v2, 1, 3")
    k("v_lshlrev_b32 v2, 7, v2")
    k("s_lshl_b32 s10, s8, 12")
    k("v_add_u32 v2, s10, v2")
    for ks in range(4):
        k(f"v_add_u32 v29, {2*ks}, v3")
        k("v_xor_b32 v29, v29, v28")
        k(f"v_lshl_add_u32 v{RA+ks}, v29, 4, v2")
        k(f"v_add_u32 v{RA+4+ks}, 65536, v{RA+ks}")
        k(f"v_add_u32 v{RA+8+ks}, 131072, v{RA+ks}")
    k("v_lshrrev_b32 v2, 5, v1")
    k("v_bfe_u32 v3, v1, 2, 2")
    k("v_lshl_add_u32 v2, v2, 3, v3")
    k("v_lshlrev_b32 v2, 8, v2")
    k("v_bfe_u32 v28, v1, 4, 1")
    k("v_lshl_add_u32 v2, v28, 5, v2")
    k("v_and_b32 v28, 3, v1")
    k("v_lshl_add_u32 v2, v28, 3, v2")
    k("v_add_u32 v2, 16384, v2")
    for nt in range(4):
        k(f"v_xor_b32 v28, {nt}, v3")
        k(f"v_lshl_add_u32 v{RB+nt}, v28, 6, v2")
        k(f"v_add_u32 v{RB+4+nt}, 65536, v{RB+nt}")
        k(f"v_add_u32 v{RB+8+nt}, 131072, v{RB+nt}")
    def reads(step):
        st, ks = divmod(step, 4); slot = st % NS; sb = step & 1
        bs, off = slot >> 1, (slot & 1) * 32768
        a = f"ds_read_b128 v[{AF+4*sb}:{AF+4*sb+3}], v{RA+4*bs+ks} offset:{off}"
        out = []
        for nt in range(4):
            d = BF + (sb * 4 + nt) * 4
            g = [f"ds_read_b64_tr_b16 v[{d+2*j}:{d+2*j+1}], v{RB+4*bs+nt} offset:{off + (16*ks+4*j)*256}" for j in range(2)]
            out.append(([a] if nt == 0 else []) + g)
        return out
    def mf(swap):
        def f(step, nt):
            sb = step & 1; a = AF + 4 * sb; b = BF + (sb * 4 + nt) * 4; d = ACC + 16 * nt
            c = "0" if step == 0 else None
            return [mfma32(d, a, b, c) if swap else mfma32(d, b, a, c)]
        return f
    PFD = 150
    def qkv_apf():
        if os.environ.get("NO_APF"): return
        first, per = (0, 160) if APF == "start" else (512, 96)
        k("s_and_b32 s9, s12, 7")
        k(f"s_mul_i32 s9, s9, {per}")
        k(f"s_add_u32 s9, s9, {first}")
        k("v_add_u32 v28, s9, v0")
        k("v_lshrrev_b32 v29, 7, v28         ; stage")
        k("v_and_b32 v28, 127, v28           ; row")
        k("s_lshl_b32 s9, s11, 7")
        k("v_add_u32 v28, s9, v28")
        k("v_mul_u32_u24 v28, 1280, v28")
        k("v_lshl_add_u32 v28, v29, 7, v28")
        k(f"v_cmp_gt_u32 vcc, {per}, v0")
        k("v_mov_b32 v29, 0x7ffffff0")
        k("v_cndmask_b32 v28, v29, v28, vcc")
        srd(k, 52, 4, S * D * 2, WS_H)
        touch(k, 52, 28, PFD)
    k(f"s_load_dwordx4 s[44:47], s[0:1], {KA_WG}")
    k(f"s_load_dwordx2 s[48:49], s[0:1], {KA_WO}")
    k("s_lshl_b32 s9, s12, 4")
    k("s_add_u32 s9, s9, s11")
    k("s_lshl_b32 s9, s9, 6")
    k("v_add_u32 v28, s9, v1")
    k("v_lshlrev_b32 v28, 7, v28")
    k("s_waitcnt lgkmcnt(0)")
    if not os.environ.get("NO_TOUCH"):
        k("s_cmp_eq_u32 s8, 0")
        k("s_cselect_b32 s50, s44, s46")
        k("s_cselect_b32 s51, s45, s47")
        k("s_cmp_eq_u32 s8, 2")
        k("s_cselect_b32 s50, s48, s50")
        k("s_cselect_b32 s51, s49, s51")
        k(f"s_mov_b32 s10, {640*3072}")
        k(f"s_cselect_b32 s9, {640*1280}, s10")
        k("s_cmp_eq_u32 s8, 3")
        k("s_cselect_b32 s9, 0, s9")
        k("s_mov_b32 s52, s50")
        k("s_mov_b32 s53, s51")
        k("s_mov_b32 s54, s9")
        k("s_mov_b32 s55, 0x00020000")
        k(f"buffer_load_dword v{PFD+1}, v28, s[52:55], 0 offen")
    EA = 152
    k("s_cmp_ge_u32 s12, 10")
    k("s_cbranch_scc1 QKV_V")
    k("s_cmp_ge_u32 s12, 5")
    k("s_cbranch_scc1 QKV_K")
    srd(k, 24, 4, 32 * 64 * 1280, WS_Q)
    k(f"s_mov_b32 s16, {64*1280}")
    k("s_movk_i32 s17, 1280")
    k("s_lshl_b32 s10, s12, 5")
    qscale = 1.4426950408889634 / (20 ** 0.5)
    k(f"s_mov_b32 s18, {hex(f2u(qscale))}")
    k("s_branch QKV_QK")
    k.label("QKV_K")
    srd(k, 24, 4, 32 * KV_HEAD, WS_KV)
    k(f"s_mov_b32 s16, {KV_HEAD}")
    k(f"s_movk_i32 s17, {KV_TILE}")
    k("s_sub_u32 s10, s12, 5")
    k("s_lshl_b32 s10, s10, 5")
    k("s_mov_b32 s18, 1.0")
    k.label("QKV_QK")
    k("s_lshl_b32 s19, s11, 2")
    k("s_add_u32 s19, s19, s8")
    k("s_mul_i32 s19, s19, s17")
    k("v_and_b32 v2, 31, v1")
    k("v_lshrrev_b32 v3, 5, v1")
    k("v_add_u32 v3, s10, v3")
    k("v_lshlrev_b32 v32, 4, v2")
    k("v_lshlrev_b32 v33, 3, v2")
    k("v_add_u32 v33, 1024, v33")
    for nt in range(4):
        for j in range(4):
            k(f"v_add_u32 v34, {8*nt+2*j}, v3")
            k("v_mul_u32_u24 v35, 205, v34")
            k("v_lshrrev_b32 v35, 10, v35          ; head")
            k("v_mad_i32_i24 v36, v35, -5, v34     ; dq")
            k("v_lshrrev_b32 v37, 1, v36")
            k("v_lshl_add_u32 v37, v37, 9, v32")
            k("v_and_b32 v38, 1, v36")
            k("v_lshl_add_u32 v37, v38, 3, v37")
            k("v_cmp_eq_u32 vcc, 4, v36")
            k("v_mul_lo_u32 v35, s16, v35")
            k("v_cndmask_b32 v37, v37, v33, vcc")
            k(f"v_add_u32 v{EA+4*nt+j}, v37, v35")
    compute_loop(k, 10, 4, reads, mf(False), 0, hooks={(-2 if APF == 'start' else -1): qkv_apf})
    k("v_mov_b32 v2, s18")
    k("v_mov_b32 v3, s18")
    for nt in range(4):
        for j in range(4):
            a_ = ACC + 16 * nt + 4 * j
            t = 28 + 2 * (j % 4)
            k(f"v_pk_mul_f32 v[{a_}:{a_+1}], v[{a_}:{a_+1}], v[2:3]")
            k(f"v_pk_mul_f32 v[{a_+2}:{a_+3}], v[{a_+2}:{a_+3}], v[2:3]")
            k(f"v_cvt_pk_bf16_f32 v{t}, v{a_}, v{a_+1}")
            k(f"v_cvt_pk_bf16_f32 v{t+1}, v{a_+2}, v{a_+3}")
            k(f"buffer_store_dwordx2 v[{t}:{t+1}], v{EA+4*nt+j}, s[24:27], s19 offen")
    k("s_endpgm")
    k.label("QKV_V")
    srd(k, 24, 4, 32 * KV_HEAD, WS_KV)
    k("s_lshl_b32 s19, s11, 2")
    k("s_add_u32 s19, s19, s8")
    k(f"s_mul_i32 s19, s19, {KV_TILE}")
    k("s_add_u32 s19, s19, 1280")
    k("v_and_b32 v2, 31, v1")
    k("v_lshrrev_b32 v3, 5, v1")
    k("v_mul_u32_u24 v3, 336, v3")
    k("s_sub_u32 s10, s12, 10")
    k("s_lshl_b32 s10, s10, 7")
    k("v_add_u32 v2, s10, v2")
    k(f"s_mov_b32 s10, {KV_HEAD}")
    for nt in range(4):
        k(f"v_add_u32 v34, {32*nt}, v2")
        k("v_mul_u32_u24 v35, 3277, v34")
        k("v_lshrrev_b32 v35, 16, v35")
        k("v_mul_u32_u24 v36, 20, v35")
        k("v_sub_u32 v36, v34, v36")
        k("v_mul_lo_u32 v35, s10, v35")
        k("v_lshlrev_b32 v36, 4, v36")
        k(f"v_add3_u32 v{EA+nt}, v35, v36, v3")
    compute_loop(k, 10, 4, reads, mf(True), 0, hooks={(-2 if APF == 'start' else -1): qkv_apf})
    for nt in range(4):
        for m in range(2):
            a_ = ACC + 16 * nt + 8 * m
            t = 28 + 4 * m
            for q in range(4):
                k(f"v_cvt_pk_bf16_f32 v{t+q}, v{a_+2*q}, v{a_+2*q+1}")
            k(f"buffer_store_dwordx4 v[{t}:{t+3}], v{EA+nt}, s[24:27], s19 offen offset:{672*m}")
    k("s_endpgm")
    k.label("QKV_SIDE")
    k("s_cmp_ge_u32 s11, 2")
    k("s_cbranch_scc1 QKV_END")
    k("v_cmp_gt_u32 vcc, 160, v0")
    k("s_and_saveexec_b64 s[28:29], vcc")
    k("s_cbranch_execz QKV_END")
    k("s_mul_i32 s9, s11, 7680")
    k("s_add_u32 s9, s9, 5120")
    k("v_lshlrev_b32 v2, 4, v0")
    k("s_waitcnt lgkmcnt(0)")
    srd(k, 16, 4, 4 * 3840 * 4, WS_MODP)
    srd(k, 20, 4, 6 * 640 * 4, WS_MODV)
    for q in range(4):
        k(f"s_add_u32 s10, s9, {q*15360}")
        k(f"buffer_load_dwordx4 v[{8+4*q}:{11+4*q}], v2, s[16:19], s10 offen")
    k("s_waitcnt vmcnt(0)")
    for r in range(4):
        k(f"v_add_f32 v{8+r}, v{8+r}, v{12+r}")
        k(f"v_add_f32 v{16+r}, v{16+r}, v{20+r}")
    for r in range(4): k(f"v_add_f32 v{8+r}, v{8+r}, v{16+r}")
    for r in range(4): bf16_round_f32(k, 8 + r, 8 + r, 24)
    k("buffer_store_dwordx4 v[8:11], v2, s[20:23], s9 offen")
    k.label("QKV_END")
    k("s_endpgm")
    k.fix_hazards()
    return name, header(name) + k.text() + descriptor(name, 168), (256, 512, NS * 32768)

def gen_up2():
    name = "up_kernel"
    k = K()
    NS = 4
    AF, BF, ACC = 16, 24, 72
    RA, RB = 4, 8
    prologue_ids(k, "UP_END")
    k(f"s_load_dwordx2 s[4:5], s[0:1], {KA_WS}")
    k("s_and_b32 s3, s2, 7")
    k("s_lshr_b32 s13, s2, 3")
    k("s_and_b32 s14, s3, 1")
    k("s_lshl_b32 s14, s14, 3")
    k("s_and_b32 s15, s13, 7")
    k("s_add_u32 s11, s14, s15")
    k("s_lshr_b32 s14, s3, 1")
    k("s_lshl_b32 s14, s14, 2")
    k("s_lshr_b32 s15, s13, 3")
    k("s_add_u32 s12, s14, s15")
    wave_ids(k)
    k("s_cmp_lt_u32 s8, 4")
    k("s_cbranch_scc1 UP_COMPUTE")
    VA, VB = 8, 12
    a_dma_setup32(k, VA, 11, 1280)
    k("v_lshlrev_b32 v2, 4, v1")
    k("s_mul_i32 s9, s31, 6144")
    k(f"s_mul_i32 s10, s12, {10*24576}")
    k("s_add_u32 s9, s9, s10")
    k(f"v_add_u32 v{VB}, s9, v2")
    k(f"v_add_u32 v{VB+1}, 4096, v{VB}")
    k("s_lshl_b32 s13, s31, 12")
    k("s_mul_i32 s15, s31, 6144")
    k("s_waitcnt lgkmcnt(0)")
    srd(k, 16, 4, S * D * 2, WS_X1)
    srd(k, 20, 4, 16 * 10 * 24576, WS_WUP)
    if not os.environ.get("STAGE_STAMPS"): k("; STAMP 0")
    def dma(st):
        slot = st % NS
        k(f"s_add_u32 m0, s13, {slot*16384}")
        k(f"s_mov_b32 s14, {st*128}")
        for i in range(4):
            k(f"buffer_load_dwordx4 v{VA+i}, s[16:19], s14 offen offset:{i*1024} lds")
        k(f"s_add_u32 m0, s15, {65536 + slot*24576}")
        k(f"s_mov_b32 s14, {st*24576}")
        for i in range(4):
            k(f"buffer_load_dwordx4 v{VB}, s[20:23], s14 offen offset:{i*1024} lds")
        k(f"s_add_u32 m0, s15, {65536 + slot*24576 + 4096}")
        k("s_nop 0")
        for i in range(2):
            k(f"buffer_load_dwordx4 v{VB+1}, s[20:23], s14 offen offset:{i*1024} lds")
    def ut_issue():
        srd(k, 24, 4, 16 * 384 * 4, WS_UT)
        k("v_lshlrev_b32 v2, 4, v1")
        k("s_mul_i32 s14, s12, 1536")
        k("s_and_b32 s9, s31, 1")
        k("s_lshl_b32 s9, s9, 10")
        k("s_add_u32 s14, s14, s9")
        k("s_add_u32 m0, s9, 32768")
        k("s_nop 0")
        k("buffer_load_dwordx4 v2, s[24:27], s14 offen lds")
        return 1
    npf = [0]
    def pf_issue():
        if os.environ.get("NO_TPF"): return 0
        if DOWN84:
            def base():
                k("s_bfe_u32 s9, s2, 0x10002")
                k("s_mul_i32 s9, s9, 7680")
            n = tail_prefetch(k, WS_WDP, 8 * 1536 * 160, base, 240)
        else:
            n = tail_prefetch(k, WS_WDP, 8 * 1536 * 160, lambda: k("s_mov_b32 s9, 0"), 480)
        npf[0] = n
        return n
    def both():
        return ut_issue() + pf_issue()
    def finish(ops, wait):
        k(f"s_waitcnt vmcnt({npf[0]})")
        k("s_barrier")
    loader_loop(k, 10, NS, 10, dma, finish, after_barrier={8: ("x", both)})
    k("s_endpgm")
    k.label("UP_COMPUTE")
    k("v_and_b32 v2, 31, v1")
    k("v_lshrrev_b32 v3, 5, v1")
    k("v_bfe_u32 v14, v2, 1, 3")
    k("v_lshlrev_b32 v2, 7, v2")
    k("s_lshl_b32 s10, s8, 12")
    k("v_add_u32 v2, s10, v2")
    for ks in range(4):
        k(f"v_add_u32 v15, {2*ks}, v3")
        k("v_xor_b32 v15, v15, v14")
        k(f"v_lshl_add_u32 v{RA+ks}, v15, 4, v2")
    k("v_lshrrev_b32 v2, 5, v1")
    k("v_bfe_u32 v3, v1, 2, 2")
    k("v_lshl_add_u32 v2, v2, 3, v3")
    k("v_mul_u32_u24 v2, 192, v2")
    k("v_bfe_u32 v14, v1, 4, 1")
    k("v_lshl_add_u32 v2, v14, 5, v2")
    k("v_and_b32 v14, 3, v1")
    k("v_lshl_add_u32 v2, v14, 3, v2")
    k(f"v_add_u32 v{RB}, 65536, v2")
    k(f"v_add_u32 v{RB+1}, {65536+49152}, v2")
    def reads(step):
        st, ks = divmod(step, 4); slot = st % NS; sb = step & 1
        a = f"ds_read_b128 v[{AF+4*sb}:{AF+4*sb+3}], v{RA+ks} offset:{slot*16384}"
        out = []
        for nt in range(6):
            d = BF + (sb * 6 + nt) * 4
            off = (slot & 1) * 24576 + (nt // 3) * 12288 + (nt % 3) * 64
            g = [f"ds_read_b64_tr_b16 v[{d+2*j}:{d+2*j+1}], v{RB+(slot>>1)} offset:{off + (16*ks+4*j)*192}" for j in range(2)]
            out.append(([a] if nt == 0 else []) + g)
        return out
    PFD = 200
    def up_apf():
        if os.environ.get("NO_APF") or os.environ.get("NO_APF_UP"): return
        srd(k, 52, 4, S * D * 2, WS_X1)
        first, per = (0, 320) if APF == "start" else (384, 224)
        for i in range((per + 255) // 256):
            k("s_and_b32 s9, s12, 3")
            k(f"s_mul_i32 s9, s9, {per}")
            k(f"s_add_u32 s9, s9, {first + 256 * i}")
            k("v_add_u32 v14, s9, v0")
            k("v_lshrrev_b32 v15, 7, v14")
            k("v_and_b32 v14, 127, v14")
            k("s_lshl_b32 s9, s11, 7")
            k("v_add_u32 v14, s9, v14")
            k("v_mul_u32_u24 v14, 1280, v14")
            k("v_lshl_add_u32 v14, v15, 7, v14")
            if 256 * (i + 1) > per:
                k(f"v_cmp_gt_u32 vcc, {per - 256 * i}, v0")
                k("v_mov_b32 v15, 0x7ffffff0")
                k("v_cndmask_b32 v14, v15, v14, vcc")
            touch(k, 52, 14, PFD + 2 + i)
    def up_bpf():
        if not os.environ.get("BPF_UP"): return
        srd(k, 56, 4, 8 * 1536 * 160, WS_WDP)
        k("s_lshr_b32 s9, s2, 3")
        k("s_mul_i32 s9, s9, 480")
        for i in range(2):
            k(f"v_add_u32 v14, {256*i}, v0")
            k("v_add_u32 v14, s9, v14")
            k("v_lshlrev_b32 v14, 7, v14")
            if i == 1:
                k("v_cmp_gt_u32 vcc, 224, v0")
                k("v_mov_b32 v15, 0x7ffffff0")
                k("v_cndmask_b32 v14, v15, v14, vcc")
            touch(k, 56, 14, PFD + 1 + i)
    k("v_and_b32 v2, 31, v1")
    k("s_lshl_b32 s9, s11, 7")
    k("s_lshl_b32 s10, s8, 5")
    k("s_add_u32 s9, s9, s10")
    k("v_add_u32 v2, s9, v2")
    k("v_lshlrev_b32 v2, 6, v2")
    k("s_waitcnt lgkmcnt(0)")
    srd(k, 28, 4, 2048 * 64, WS_STAT)
    STT = 168
    for q in range(4): k(f"buffer_load_dwordx4 v[{STT+4*q}:{STT+4*q+3}], v2, s[28:31], 0 offen offset:{16*q}")
    def mf(step, nt):
        sb = step & 1
        return [mfma32(ACC + 16 * nt, BF + (sb * 6 + nt) * 4, AF + 4 * sb, "0" if step == 0 else None)]
    compute_loop(k, 10, 4, reads, mf, 0, hooks={(-2 if APF == 'start' else -1): up_apf, 16: up_bpf})
    k("s_waitcnt vmcnt(0)")
    k(f"v_add_f32 v10, v{STT}, v{STT+2}")
    k(f"v_add_f32 v11, v{STT+1}, v{STT+3}")
    for q in range(2, 8):
        k(f"v_add_f32 v10, v10, v{STT+2*q}")
        k(f"v_add_f32 v11, v11, v{STT+2*q+1}")
    k("s_barrier")
    k(f"s_mov_b32 s9, {hex(f2u(1.0/640))}")
    k("v_mul_f32 v10, s9, v10            ; mean")
    k("v_mul_f32 v13, v10, v10")
    k("v_fma_f32 v11, v11, s9, -v13      ; variance")
    k("v_max_f32 v11, 0, v11")
    k("v_add_f32 v11, 0x3727c5ac, v11")
    k("v_rsq_f32 v11, v11")
    k("s_nop 0")
    k("v_mul_f32 v13, v10, v11")
    k("v_sub_f32 v12, 0, v13")
    k("v_mov_b32 v13, v12")
    k("v_mov_b32 v10, v11")
    k("v_lshrrev_b32 v14, 5, v1")
    k("v_lshlrev_b32 v14, 4, v14")
    k("v_add_u32 v14, 32768, v14")
    srd(k, 24, 4, S * F * 2, WS_G)
    k("v_and_b32 v2, 31, v1")
    k("s_lshl_b32 s9, s11, 7")
    k("s_lshl_b32 s10, s8, 5")
    k("s_add_u32 s9, s9, s10")
    k("v_add_u32 v2, s9, v2")
    k("v_mul_u32_u24 v2, 3072, v2")
    k("v_lshrrev_b32 v3, 5, v1")
    k("v_lshlrev_b32 v3, 4, v3")
    k("s_mul_i32 s9, s12, 192")
    k("v_add3_u32 v2, v2, v3, s9")
    c1 = -2.0 * 0.7978845608028654 * 1.4426950408889634
    c2 = c1 * 0.044715
    k(f"v_mov_b32 v4, {hex(f2u(c1))}")
    k(f"v_mov_b32 v5, {hex(f2u(c1))}")
    k(f"v_mov_b32 v6, {hex(f2u(c2))}")
    k(f"v_mov_b32 v7, {hex(f2u(c2))}")
    k("v_mov_b32 v8, 1.0")
    k("v_mov_b32 v9, 1.0")
    pk = lambda r: f"v[{r}:{r+1}]"
    U0, U1 = 40, 168
    def ut_reads(grp):
        nt, jp = divmod(grp, 2); U = (U0, U1)[grp & 1]
        for mat in range(2):
            for jj in range(2):
                col = 32 * nt + 16 * jp + 8 * jj
                k(f"ds_read_b128 v[{U+8*mat+4*jj}:{U+8*mat+4*jj+3}], v14 offset:{(mat*96 + col)*4}")
                k(f"ds_read_b128 v[{U+16+8*mat+4*jj}:{U+16+8*mat+4*jj+3}], v14 offset:{768 + (mat*96 + col)*4}")
    ut_reads(0)
    for grp in range(6):
        nt, jp = divmod(grp, 2); U = (U0, U1)[grp & 1]
        g = ACC + 16 * nt + 8 * jp; u = g + 48
        T = 16 + 8 * (grp % 2)
        if grp + 1 < 6: ut_reads(grp + 1)
        k(f"s_waitcnt lgkmcnt({8 if grp + 1 < 6 else 0})")
        for mat in range(2):
            for r in range(0, 8, 2):
                k(f"v_pk_fma_f32 {pk(U+16+8*mat+r)}, {pk(U+8*mat+r)}, v[12:13], {pk(U+16+8*mat+r)}")
        for mat in range(2):
            base = g if mat == 0 else u
            for r in range(0, 8, 2):
                k(f"v_pk_fma_f32 {pk(base+r)}, {pk(base+r)}, v[10:11], {pk(U+16+8*mat+r)}")
        for r in range(0, 8, 2): k(f"v_pk_mul_f32 {pk(T+r)}, {pk(g+r)}, {pk(g+r)}")
        for r in range(0, 8, 2): k(f"v_pk_fma_f32 {pk(T+r)}, {pk(T+r)}, v[6:7], v[4:5]")
        for r in range(0, 8, 2): k(f"v_pk_mul_f32 {pk(T+r)}, {pk(T+r)}, {pk(g+r)}")
        for r in range(8): k(f"v_exp_f32 v{T+r}, v{T+r}")
        for r in range(0, 8, 2): k(f"v_pk_mul_f32 {pk(g+r)}, {pk(g+r)}, {pk(u+r)}")
        for r in range(0, 8, 2): k(f"v_pk_add_f32 {pk(T+r)}, {pk(T+r)}, v[8:9]")
        for r in range(8): k(f"v_rcp_f32 v{T+r}, v{T+r}")
        for r in range(0, 8, 2): k(f"v_pk_mul_f32 {pk(T+r)}, {pk(T+r)}, {pk(g+r)}")
        t = 32 + 4 * (grp % 2)
        for q in range(4): k(f"v_cvt_pk_bf16_f32 v{t+q}, v{T+2*q}, v{T+2*q+1}")
        k(f"v_permlane32_swap_b32 v{t}, v{t+2}")
        k(f"v_permlane32_swap_b32 v{t+1}, v{t+3}")
        k(f"buffer_store_dwordx4 v[{t}:{t+3}], v2, s[24:27], 0 offen offset:{64*nt + 32*jp}")
    k.label("UP_END")
    k("s_endpgm")
    k.fix_hazards()
    return name, header(name) + k.text() + descriptor(name, 208), (256, 512, 163840)

def gen_narrow2(name, Kdim, a_off, b_off, resid_is_input, gate_idx, out_is_output, stats=False):
    k = K()
    KH = Kdim // 2; NST = KH // 64; lda = Kdim * 2
    NS = 4
    RA, RB = 4, 6
    AF, BF, ACC = 12, 28, 68
    RES, GT = 108, 120
    END = f"{name}_END"
    prologue_ids(k, END)
    k(f"s_load_dwordx2 s[4:5], s[0:1], {KA_WS}")
    if resid_is_input: k(f"s_load_dwordx2 s[6:7], s[0:1], {KA_X}")
    if out_is_output: k(f"s_load_dwordx2 s[6:7], s[0:1], {KA_OUT}")
    k("s_and_b32 s3, s2, 7")
    k("s_lshr_b32 s13, s2, 3")
    if out_is_output and DOWN84:
        k("s_and_b32 s14, s3, 3")
        k("s_lshl_b32 s14, s14, 3")
        k("s_and_b32 s15, s13, 7")
        k("s_add_u32 s11, s14, s15")
        k("s_lshr_b32 s14, s3, 2")
        k("s_lshl_b32 s14, s14, 2")
        k("s_lshr_b32 s15, s13, 3")
        k("s_add_u32 s12, s14, s15")
    else:
        k("s_lshl_b32 s14, s3, 2")
        k("s_and_b32 s15, s13, 3")
        k("s_add_u32 s11, s14, s15")
        k("s_lshr_b32 s12, s13, 2")
    wave_ids(k)
    k("s_and_b32 s28, s31, 1")
    k("s_lshr_b32 s29, s31, 1           ; k half")
    k("s_lshl_b32 s9, s11, 6")
    k("s_lshl_b32 s10, s28, 5")
    k("s_add_u32 s30, s9, s10")
    k("s_cmp_lt_u32 s8, 4")
    k(f"s_cbranch_scc1 {name}_COMPUTE")
    VA, VB = 8, 12
    k("v_lshrrev_b32 v2, 3, v1")
    k("v_lshrrev_b32 v3, 4, v1")
    k("v_and_b32 v4, 7, v1")
    k("v_add_u32 v2, s30, v2")
    k(f"s_mov_b32 s10, {lda}")
    k("v_mul_lo_u32 v2, s10, v2")
    k(f"s_mul_i32 s10, s29, {KH*2}")
    k("v_add_u32 v2, s10, v2")
    for i in range(4):
        k(f"v_xor_b32 v5, {(i&1)*4}, v3")
        k("v_xor_b32 v5, v5, v4")
        k("v_lshlrev_b32 v5, 4, v5")
        k(f"v_add_u32 v5, {i*8*lda - i*1024}, v5")
        k(f"v_add_u32 v{VA+i}, v2, v5")
    k("v_lshlrev_b32 v2, 4, v1")
    k(f"s_mul_i32 s9, s12, {Kdim*160}")
    k(f"s_mul_i32 s10, s29, {KH*160}")
    k("s_add_u32 s9, s9, s10")
    k("s_mul_i32 s10, s28, 5120")
    k("s_add_u32 s9, s9, s10")
    k(f"v_add_u32 v{VB}, s9, v2")
    k(f"v_add_u32 v{VB+1}, 4096, v{VB}")
    k("s_lshl_b32 s13, s31, 12")
    k("s_mul_i32 s15, s29, 10240")
    k("s_mul_i32 s10, s28, 5120")
    k("s_add_u32 s15, s15, s10")
    k("s_waitcnt lgkmcnt(0)")
    srd(k, 16, 4, S * Kdim * 2, a_off)
    srd(k, 20, 4, 8 * Kdim * 160, b_off)
    if not os.environ.get("STAGE_STAMPS"): k("; STAMP 0")
    def dma(st):
        slot = st % NS
        k(f"s_add_u32 m0, s13, {slot*16384}")
        k(f"s_mov_b32 s14, {st*128}")
        for i in range(4):
            k(f"buffer_load_dwordx4 v{VA+i}, s[16:19], s14 offen offset:{i*1024} lds")
        k(f"s_add_u32 m0, s15, {65536 + slot*20480}")
        k(f"s_mov_b32 s14, {st*10240}")
        for i in range(4):
            k(f"buffer_load_dwordx4 v{VB}, s[20:23], s14 offen offset:{i*1024} lds")
        k(f"s_add_u32 m0, s15, {65536 + slot*20480 + 4096}")
        k("s_nop 0")
        k(f"buffer_load_dwordx4 v{VB+1}, s[20:23], s14 offen lds")
    def nar_tail():
        if not stats or os.environ.get("NO_TPF"): return 0
        def base():
            k("s_bfe_u32 s9, s2, 0x20001")
            k("s_mul_i32 s9, s9, 7680")
        return tail_prefetch(k, WS_WUP, 16 * 10 * 24576, base, 240)
    loader_loop(k, NST, NS, 9, dma, None, nar_tail)
    k("s_barrier")
    k("s_barrier")
    k("s_endpgm")
    k.label(f"{name}_COMPUTE")
    k("v_and_b32 v2, 15, v1")
    k("v_lshrrev_b32 v3, 4, v1          ; g")
    k("v_lshrrev_b32 v10, 1, v2")
    k("v_lshlrev_b32 v2, 7, v2")
    k("s_lshl_b32 s13, s8, 12")
    k("v_add_u32 v2, s13, v2")
    for ks in range(2):
        k(f"v_add_u32 v11, {4*ks}, v3")
        k("v_xor_b32 v11, v11, v10")
        k(f"v_lshl_add_u32 v{RA+ks}, v11, 4, v2")
    k("v_lshrrev_b32 v2, 5, v1")
    k("v_lshlrev_b32 v2, 4, v2")
    k("v_bfe_u32 v10, v1, 4, 1")
    k("v_lshl_add_u32 v2, v10, 2, v2")
    k("v_bfe_u32 v10, v1, 2, 2")
    k("v_add_u32 v2, v2, v10")
    k("v_mul_u32_u24 v2, 160, v2")
    k("v_and_b32 v10, 3, v1")
    k("v_lshl_add_u32 v2, v10, 3, v2")
    k("s_mul_i32 s10, s29, 10240")
    k("s_add_u32 s10, s10, 65536")
    k(f"v_add_u32 v{RB}, s10, v2")
    k(f"v_add_u32 v{RB+1}, 40960, v{RB}")
    k("v_and_b32 v2, 15, v1")
    k("s_lshl_b32 s10, s29, 4")
    k("s_add_u32 s10, s10, s30")
    k("v_add_u32 v2, s10, v2")
    k("v_mul_u32_u24 v8, 1280, v2")
    k("s_mul_i32 s10, s12, 160")
    k("v_lshl_add_u32 v8, v3, 3, v8")
    k("v_add_u32 v8, s10, v8")
    k("s_mul_i32 s10, s12, 320")
    k("v_lshlrev_b32 v9, 4, v3")
    k("v_add_u32 v9, s10, v9")
    k("s_waitcnt lgkmcnt(0)")
    if resid_is_input: srd(k, 24, 6, S * D * 2)
    else: srd(k, 24, 4, S * D * 2, WS_X1)
    if out_is_output: srd(k, 32, 6, S * D * 2)
    else: srd(k, 32, 4, S * D * 2, WS_X1)
    srd(k, 36, 4, 6 * 640 * 4, WS_MODV)
    PFD = 140
    def nar_apf():
        if os.environ.get("NO_APF"): return
        f0 = 0 if APF == "start" else 3
        sharers = 4 if (out_is_output and DOWN84) else 8
        tot = 128 * (NST - f0); PER = tot // sharers
        srd(k, 52, 4, S * Kdim * 2, a_off)
        for i in range((PER + 255) // 256):
            k(f"s_and_b32 s9, s12, {sharers - 1}")
            k(f"s_mul_i32 s9, s9, {PER}")
            if i: k(f"s_add_u32 s9, s9, {256*i}")
            k("v_add_u32 v10, s9, v0")
            k("v_lshrrev_b32 v11, 7, v10         ; stage")
            k("v_bfe_u32 v144, v10, 6, 1         ; k half")
            k("v_and_b32 v10, 63, v10            ; row")
            k("s_lshl_b32 s9, s11, 6")
            k("v_add_u32 v10, s9, v10")
            k(f"s_mov_b32 s9, {lda}")
            k("v_mul_lo_u32 v10, s9, v10")
            if f0: k(f"v_add_u32 v11, {f0}, v11")
            k("v_lshl_add_u32 v10, v11, 7, v10")
            k(f"v_mul_u32_u24 v144, {KH*2}, v144")
            k("v_add_u32 v10, v10, v144")
            if 256 * (i + 1) > PER:
                k(f"v_cmp_gt_u32 vcc, {PER - 256*i}, v0")
                k("v_mov_b32 v11, 0x7ffffff0")
                k("v_cndmask_b32 v10, v11, v10, vcc")
            touch(k, 52, 10, PFD + i)
    for nt in range(5):
        k(f"buffer_load_dwordx2 v[{RES+2*nt}:{RES+2*nt+1}], v8, s[24:27], 0 offen offset:{32*nt}")
    k(f"s_mov_b32 s14, {gate_idx*2560}")
    for nt in range(5):
        k(f"buffer_load_dwordx4 v[{GT+4*nt}:{GT+4*nt+3}], v9, s[36:39], s14 offen offset:{64*nt}")
    def reads(step):
        st, ks = divmod(step, 2); slot = st % NS; sb = step & 1
        a = [f"ds_read_b128 v[{AF+(sb*2+mb)*4}:{AF+(sb*2+mb)*4+3}], v{RA+ks} offset:{slot*16384 + mb*2048}" for mb in range(2)]
        out = []
        for nt in range(5):
            d = BF + (sb * 5 + nt) * 4
            g = [f"ds_read_b64_tr_b16 v[{d+2*j}:{d+2*j+1}], v{RB+(slot>>1)} offset:{(slot&1)*20480 + (32*ks+8*j)*160 + nt*32}" for j in range(2)]
            out.append((a if nt == 0 else []) + g)
        return out
    def mf(step, nt):
        sb = step & 1
        return [mfma16(ACC + (nt * 2 + mb) * 4, BF + (sb * 5 + nt) * 4, AF + (sb * 2 + mb) * 4, "0" if step == 0 else None) for mb in range(2)]
    compute_loop(k, NST, 2, reads, mf, 0, hooks={(-2 if APF == 'start' else -1): nar_apf})
    k("s_barrier")
    k("v_lshlrev_b32 v2, 4, v1")
    k("s_mul_i32 s9, s8, 5120")
    k("v_add_u32 v3, s9, v2")
    k("s_xor_b32 s10, s8, 2")
    k("s_mul_i32 s10, s10, 5120")
    k("v_add_u32 v4, s10, v2")
    k("s_cmp_eq_u32 s29, 0")
    k(f"s_cbranch_scc1 {name}_KH0")
    for nt in range(5):
        d = ACC + (nt * 2 + 0) * 4
        k(f"ds_write_b128 v3, v[{d}:{d+3}] offset:{1024*nt}")
    for nt in range(5):
        for r in range(4): k(f"v_mov_b32 v{ACC+(nt*2)*4+r}, v{ACC+(nt*2+1)*4+r}")
    k(f"s_branch {name}_JOIN")
    k.label(f"{name}_KH0")
    for nt in range(5):
        d = ACC + (nt * 2 + 1) * 4
        k(f"ds_write_b128 v3, v[{d}:{d+3}] offset:{1024*nt}")
    k.label(f"{name}_JOIN")
    k("s_waitcnt lgkmcnt(0)")
    k("s_barrier")
    for nt in range(5):
        k(f"ds_read_b128 v[{BF+4*nt}:{BF+4*nt+3}], v4 offset:{1024*nt}")
    k("s_waitcnt vmcnt(0) lgkmcnt(0)")
    for nt in range(5):
        d = ACC + nt * 8
        for r in range(4): k(f"v_add_f32 v{d+r}, v{d+r}, v{BF+4*nt+r}")
        k(f"v_lshlrev_b32 v12, 16, v{RES+2*nt}")
        k(f"v_and_b32 v13, 0xffff0000, v{RES+2*nt}")
        k(f"v_lshlrev_b32 v14, 16, v{RES+2*nt+1}")
        k(f"v_and_b32 v15, 0xffff0000, v{RES+2*nt+1}")
        for r in range(4): k(f"v_fmac_f32 v{12+r}, v{d+r}, v{GT+4*nt+r}")
        k(f"v_cvt_pk_bf16_f32 v{16+2*(nt%2)}, v12, v13")
        k(f"v_cvt_pk_bf16_f32 v{17+2*(nt%2)}, v14, v15")
        k(f"buffer_store_dwordx2 v[{16+2*(nt%2)}:{17+2*(nt%2)}], v8, s[32:35], 0 offen offset:{32*nt}")
        if stats:
            t = 16 + 2 * (nt % 2)
            k(f"v_lshlrev_b32 v12, 16, v{t}")
            k(f"v_and_b32 v13, 0xffff0000, v{t}")
            k(f"v_lshlrev_b32 v14, 16, v{t+1}")
            k(f"v_and_b32 v15, 0xffff0000, v{t+1}")
            if nt == 0:
                k("v_add_f32 v20, v12, v13"); k("v_add_f32 v21, v14, v15")
                k("v_mul_f32 v22, v12, v12"); k("v_mul_f32 v23, v13, v13")
            else:
                k("v_add_f32 v20, v20, v12"); k("v_add_f32 v21, v21, v13")
                k("v_fmac_f32 v22, v12, v12"); k("v_fmac_f32 v23, v13, v13")
                k("v_add_f32 v20, v20, v14"); k("v_add_f32 v21, v21, v15")
            k("v_fmac_f32 v22, v14, v14"); k("v_fmac_f32 v23, v15, v15")
    if stats:
        k("v_add_f32 v20, v20, v21")
        k("v_add_f32 v21, v22, v23")
        for sw in ("v_permlane32_swap_b32", "v_permlane16_swap_b32"):
            k("v_mov_b32 v22, v20"); k("v_mov_b32 v23, v21")
            k(f"{sw} v20, v22"); k(f"{sw} v21, v23")
            k("v_add_f32 v20, v20, v22"); k("v_add_f32 v21, v21, v23")
        srd(k, 24, 4, 2048 * 64, WS_STAT)
        k("v_and_b32 v2, 15, v1")
        k("s_lshl_b32 s10, s29, 4")
        k("s_add_u32 s10, s10, s30")
        k("v_add_u32 v2, s10, v2")
        k("v_lshlrev_b32 v2, 6, v2")
        k("s_lshl_b32 s10, s12, 3")
        k("s_mov_b64 exec, 0xffff")
        k("buffer_store_dwordx2 v[20:21], v2, s[24:27], s10 offen")
    k.label(END)
    k("s_endpgm")
    k.fix_hazards()
    return name, header(name) + k.text() + descriptor(name, 148), (256, 512, 147456)

def gen_wo2(): return gen_narrow2("wo_kernel", 640, WS_O, WS_WOP, True, 2, False, True)
def gen_down2(): return gen_narrow2("down_kernel", 1536, WS_G, WS_WDP, False, 5, True)
```

```python
from common import *
from k_gemm2 import mfma32, mfma16, compute_loop, f2u
from k_attn2 import VM, m16, m8
import os, struct

NAME = "adaLN_cond__mha_block__geglu_ffn__prompt_kernel"
XP, WQKVP, WOP_, WGP, WUP_, WDP_, CP, WMODP, OUTP, DBGP, WSP = 64, 66, 68, 72, 74, 76, 78, 80, 82, 84, 86
NONCE = 60
CTL = 163584
SCR = 131072
STOP = int(os.environ.get("STOP", 99))
TIMEOUT = 30000

def wsrd(k, s, nbytes, off): srd(k, s, WSP, nbytes, off)
def mark(k, i): k(f"; MARK {i}")

def poll(k, tag, vaddr, mask, vtmp, waitall=True):
    k("s_mov_b32 s14, 0")
    k.label(f"{tag}_P")
    if mask == "lo32":
        k("s_mov_b32 exec_lo, -1"); k("s_mov_b32 exec_hi, 0")
    else:
        k(f"s_mov_b64 exec, {mask}")
    k(f"buffer_load_dword v{vtmp}, v{vaddr}, s[56:59], 0 offen sc1")
    k("s_waitcnt vmcnt(0)")
    k(f"v_cmp_ne_u32 vcc, s{NONCE}, v{vtmp}")
    k("s_mov_b64 exec, -1")
    k("s_cmp_eq_u64 vcc, 0")
    k(f"s_cbranch_scc1 {tag}_R")
    k("s_add_u32 s14, s14, 1")
    k(f"s_cmp_gt_u32 s14, {TIMEOUT}")
    k(f"s_cbranch_scc1 {tag}_R")
    k("s_sleep 2")
    k(f"s_branch {tag}_P")
    k.label(f"{tag}_R")

def flag_srd(k): wsrd(k, 56, 6 * 256 * 128, WS_FLG)

def poll_range(k, tag, base, first_sgpr_expr, n, v=20):
    flag_srd(k)
    first_sgpr_expr()
    k(f"v_and_b32 v{v}, 63, v0")
    k(f"v_add_u32 v{v}, s9, v{v}")
    k(f"v_lshlrev_b32 v{v}, 7, v{v}")
    if base: k(f"v_add_u32 v{v}, {base}, v{v}")
    poll(k, tag, v, "-1" if n == 64 else ("lo32" if n == 32 else hex((1 << n) - 1)), v + 1)

def poll_all(k, tag, base, v=20):
    flag_srd(k)
    for q in range(4):
        k(f"v_and_b32 v{v}, 63, v0")
        k(f"v_lshlrev_b32 v{v}, 7, v{v}")
        k(f"v_add_u32 v{v}, {base + q * 64 * 128}, v{v}")
        poll(k, f"{tag}{q}", v, "-1", v + 1)

def set_flag(k, base, idx_sgpr, v=20):
    flag_srd(k)
    k(f"s_lshl_b32 s9, s{idx_sgpr}, 7")
    k(f"s_add_u32 s9, s9, {base}")
    k(f"v_mov_b32 v{v}, s9")
    k(f"v_mov_b32 v{v+1}, s{NONCE}")
    k("s_mov_b64 exec, 1")
    k(f"buffer_store_dword v{v+1}, v{v}, s[56:59], 0 offen sc1")
    k("s_mov_b64 exec, -1")

class Loader:
    def __init__(self, k, nst, nslots, dmaA, dmaB, nA, nB):
        self.k, self.nst, self.ns, self.dmaA, self.dmaB, self.nA, self.nB = k, nst, nslots, dmaA, dmaB, nA, nB
        self.ops = []
    def A(self, st): self.dmaA(st); self.ops += [st] * self.nA
    def B(self, st): self.dmaB(st); self.ops += [st] * self.nB
    def extra(self, n): self.ops += ["x"] * n
    def drained(self): self.ops = ["done"] if False else []
    def wait(self, st):
        idx = [i for i, t in enumerate(self.ops) if t == st]
        n = len(self.ops) - 1 - max(idx) if idx else len(self.ops)
        self.k(f"s_waitcnt vmcnt({min(63, n)})")
    def preloadB(self):
        for st in range(min(self.ns - 1, self.nst)): self.B(st)
    def run(self, after_barrier=None, tail=None):
        k = self.k; up = min(self.ns - 1, self.nst)
        for st in range(up): self.A(st)
        issued = up
        self.wait(0)
        k("s_barrier")
        for s in range(self.nst - 1):
            self.wait(s + 1)
            k("s_barrier")
            if issued < self.nst:
                self.A(issued); self.B(issued); issued += 1
                if issued == self.nst and tail: self.extra(tail())
            if after_barrier and (s + 1) in after_barrier: self.extra(after_barrier[s + 1]())

def a_dma_rows32(k, VA, row0_sgpr, lda, koff_sgpr=None):
    k("v_lshrrev_b32 v2, 3, v1")
    k("v_lshrrev_b32 v3, 4, v1")
    k("v_and_b32 v4, 7, v1")
    k(f"v_add_u32 v2, s{row0_sgpr}, v2")
    k(f"s_mov_b32 s10, {lda}")
    k("v_mul_lo_u32 v2, s10, v2")
    if koff_sgpr is not None: k(f"v_add_u32 v2, s{koff_sgpr}, v2")
    for i in range(4):
        k(f"v_xor_b32 v5, {(i&1)*4}, v3")
        k("v_xor_b32 v5, v5, v4")
        k("v_lshlrev_b32 v5, 4, v5")
        k(f"v_add_u32 v5, {i*8*lda - i*1024}, v5")
        k(f"v_add_u32 v{VA+i}, v2, v5")

def phase01(k):
    X, C0, W0, AC, T = 8, 32, 40, 64, 72
    k("s_and_b32 s13, s2, 3             ; kq")
    k("s_lshr_b32 s14, s2, 2")
    k("v_lshrrev_b32 v5, 3, v0")
    k("v_and_b32 v6, 7, v0")
    k("s_mul_i32 s15, s13, 160")
    k("v_add_u32 v7, s15, v5")
    k("v_mul_u32_u24 v5, 7680, v7")
    k("v_lshlrev_b32 v6, 4, v6")
    k("s_lshl_b32 s15, s14, 7")
    k("v_add3_u32 v5, v5, v6, s15")
    k("v_lshrrev_b32 v3, 4, v0")
    k("s_lshl_b32 s15, s2, 3")
    k("v_add_u32 v3, s15, v3")
    k("v_mul_u32_u24 v3, 1280, v3")
    k("v_and_b32 v4, 15, v0")
    k("v_lshl_add_u32 v3, v4, 4, v3")
    k("s_waitcnt lgkmcnt(0)")
    srd(k, 16, XP, S * D * 2)
    wsrd(k, 20, 4 * 3840 * 4, WS_MODP)
    wsrd(k, 24, S * D * 2, WS_H)
    k("s_cmp_ge_u32 s14, 60")
    k("s_cbranch_scc1 P0_NOGEMV")
    srd(k, 32, CP, 1280)
    srd(k, 36, WMODP, 640 * 7680)
    k("v_lshlrev_b32 v6, 1, v7")
    k("v_mov_b32 v8, 0x7ffffff0")
    k("v_cmp_gt_u32 vcc, 256, v0")
    k("v_cndmask_b32 v9, v8, v5, vcc")
    k("v_cndmask_b32 v10, v8, v6, vcc")
    k(f"buffer_load_dwordx4 v[{W0}:{W0+3}], v5, s[36:39], 0 offen")
    k(f"s_mov_b32 s15, {64*7680}")
    k(f"buffer_load_dwordx4 v[{W0+4}:{W0+7}], v5, s[36:39], s15 offen")
    k(f"s_mov_b32 s15, {128*7680}")
    k(f"buffer_load_dwordx4 v[{W0+8}:{W0+11}], v9, s[36:39], s15 offen")
    k(f"buffer_load_ushort v{C0}, v6, s[32:35], 0 offen")
    k(f"buffer_load_ushort v{C0+1}, v6, s[32:35], 0 offen offset:128")
    k(f"buffer_load_ushort v{C0+2}, v10, s[32:35], 0 offen offset:256")
    k.label("P0_NOGEMV")
    k("s_cmp_ge_u32 s8, 2")
    k("s_cbranch_scc1 P0_NOX")
    for i in range(5):
        k(f"buffer_load_dwordx4 v[{X+4*i}:{X+4*i+3}], v3, s[16:19], 0 offen offset:{256*i}")
    k.label("P0_NOX")
    k("s_cmp_lg_u32 s8, 3")
    k("s_cbranch_scc1 P0_NOCTL")
    k(f"v_lshlrev_b32 v11, 2, v1")
    k(f"v_add_u32 v11, {CTL}, v11")
    k("v_mov_b32 v12, 0")
    k("ds_write_b32 v11, v12")
    k.label("P0_NOCTL")
    k("s_cmp_ge_u32 s14, 60")
    k("s_cbranch_scc1 P0_BA")
    k("s_cmp_ge_u32 s8, 2")
    k("s_cbranch_scc1 P0_W0")
    k("s_waitcnt vmcnt(5)")
    k("s_branch P0_W1")
    k.label("P0_W0")
    k("s_waitcnt vmcnt(0)")
    k.label("P0_W1")
    k("s_mov_b32 s15, 0xbfb8aa3b")
    for i in range(3): k(f"v_lshlrev_b32 v{C0+i}, 16, v{C0+i}")
    for i in range(3): k(f"v_mul_f32 v{T+i}, s15, v{C0+i}")
    for i in range(3): k(f"v_exp_f32 v{T+i}, v{T+i}")
    for i in range(3): k(f"v_add_f32 v{T+i}, 1.0, v{T+i}")
    for i in range(3): k(f"v_rcp_f32 v{T+i}, v{T+i}")
    for i in range(3): k(f"v_mul_f32 v{C0+i}, v{C0+i}, v{T+i}")
    for i in range(3): bf16_round_f32(k, C0 + i, C0 + i, T)
    for i in range(3):
        for j in range(4):
            k(f"v_lshlrev_b32 v{T}, 16, v{W0+4*i+j}")
            k(f"v_and_b32 v{T+1}, 0xffff0000, v{W0+4*i+j}")
            op = "v_mul_f32" if i == 0 else "v_fmac_f32"
            k(f"{op} v{AC+2*j}, v{C0+i}, v{T}")
            k(f"{op} v{AC+2*j+1}, v{C0+i}, v{T+1}")
    for j in range(8):
        k(f"v_add_f32_dpp v{AC+j}, v{AC+j}, v{AC+j} row_ror:8 row_mask:0xf bank_mask:0xf")
    k("v_lshrrev_b32 v5, 4, v0")
    k("v_lshlrev_b32 v5, 8, v5")
    k("v_and_b32 v6, 7, v0")
    k("v_lshl_add_u32 v5, v6, 5, v5")
    k(f"v_add_u32 v5, {SCR}, v5")
    k("v_and_b32 v6, 15, v0")
    k("v_cmp_gt_u32 vcc, 8, v6")
    k("s_and_saveexec_b64 s[34:35], vcc")
    k(f"ds_write_b128 v5, v[{AC}:{AC+3}]")
    k(f"ds_write_b128 v5, v[{AC+4}:{AC+7}] offset:16")
    k("s_mov_b64 exec, s[34:35]")
    k.label("P0_BA")
    k("s_waitcnt lgkmcnt(0)")
    k("s_barrier                        ; B_a")
    mark(k, 0)
    k("s_cmp_lt_u32 s8, 2")
    k("s_cbranch_scc1 P1_LN")
    k("s_cmp_eq_u32 s8, 2")
    k("s_cbranch_scc1 P0_FINAL")
    k("s_cmp_eq_u32 s8, 3")
    k("s_cbranch_scc1 P0_ONES")
    k("s_branch P0_LOADERS")
    k.label("P0_FINAL")
    k("s_cmp_ge_u32 s14, 60")
    k("s_cbranch_scc1 P1_BB")
    k("v_lshlrev_b32 v7, 2, v1")
    k(f"v_add_u32 v6, {SCR}, v7")
    for p in range(32): k(f"ds_read_b32 v{W0+p}, v6 offset:{256*p}")
    k("s_waitcnt lgkmcnt(0)")
    for st in (16, 8, 4, 2, 1):
        for p in range(st): k(f"v_add_f32 v{W0+p}, v{W0+p}, v{W0+p+st}")
    k("s_mul_i32 s15, s13, 15360")
    k("s_lshl_b32 s34, s14, 8")
    k("s_add_u32 s15, s15, s34")
    k(f"buffer_store_dword v{W0}, v7, s[20:23], s15 offen sc1")
    k("s_waitcnt vmcnt(0)")
    k("s_cmp_ge_u32 s14, 20")
    k("s_cbranch_scc1 P1_BB")
    k("s_mov_b64 exec, 1")
    k("v_mov_b32 v5, 0")
    k("v_mov_b32 v6, 1")
    k(f"global_atomic_add v7, v5, v6, s[{DBGP}:{DBGP+1}] sc0 sc1")
    k("s_waitcnt vmcnt(0)")
    k("v_readfirstlane_b32 s15, v7")
    k("s_cmp_lg_u32 s15, 79")
    k("s_cbranch_scc1 P0_NOFLAG")
    k("s_memrealtime s[34:35]")
    k("s_waitcnt lgkmcnt(0)")
    k("s_or_b32 s34, s34, 1")
    k("v_mov_b32 v6, s34")
    k(f"global_store_dword v5, v6, s[{DBGP}:{DBGP+1}] offset:128 sc1")
    k.label("P0_NOFLAG")
    k("s_mov_b64 exec, -1")
    k("s_branch P1_BB")
    k.label("P0_ONES")
    wsrd(k, 32, 32 * KV_HEAD, WS_KV)
    k("s_lshl_b32 s13, s2, 5")
    k("v_add_u32 v5, s13, v1")
    k("v_lshrrev_b32 v6, 2, v5")
    k(f"v_mul_u32_u24 v6, {KV_TILE}, v6")
    k("v_and_b32 v7, 3, v5")
    k("v_mul_u32_u24 v7, 336, v7")
    k(f"v_add_u32 v6, {1280+320}, v6")
    k("v_add_u32 v6, v6, v7")
    for j in range(4): k(f"v_mov_b32 v{8+j}, 0x3f803f80")
    k("s_mov_b32 exec_hi, 0")
    k("buffer_store_dwordx4 v[8:11], v6, s[32:35], 0 offen sc1")
    wsrd(k, 36, 16 * 384 * 4, WS_UT)
    k("s_mul_i32 s13, s2, 96")
    k("v_lshlrev_b32 v5, 2, v1")
    k("v_mov_b32 v12, 0")
    k("s_mov_b32 exec_lo, 0xffffff")
    k("buffer_store_dword v12, v5, s[36:39], s13 offen sc1")
    k("s_mov_b64 exec, -1")
    k("s_waitcnt vmcnt(0)")
    k("s_branch P1_BB")
    k.label("P1_LN")
    E = 32
    k("s_waitcnt vmcnt(0)")
    for r in range(20):
        k(f"v_lshlrev_b32 v{E+2*r}, 16, v{X+r}")
        k(f"v_and_b32 v{E+2*r+1}, 0xffff0000, v{X+r}")
    k(f"v_add_f32 v5, v{E}, v{E+1}")
    k(f"v_add_f32 v6, v{E+2}, v{E+3}")
    for r in range(4, 40, 2):
        k(f"v_add_f32 v5, v5, v{E+r}")
        k(f"v_add_f32 v6, v6, v{E+r+1}")
    k("v_add_f32 v5, v5, v6")
    for rot in (1, 2, 4, 8):
        k(f"v_add_f32_dpp v5, v5, v5 row_ror:{rot} row_mask:0xf bank_mask:0xf")
    k(f"s_mov_b32 s13, {hex(f2u(1.0/640))}")
    k("v_mul_f32 v5, s13, v5")
    for r in range(40): k(f"v_sub_f32 v{E+r}, v{E+r}, v5")
    k(f"v_mul_f32 v6, v{E}, v{E}")
    k(f"v_mul_f32 v7, v{E+1}, v{E+1}")
    for r in range(2, 40, 2):
        k(f"v_fmac_f32 v6, v{E+r}, v{E+r}")
        k(f"v_fmac_f32 v7, v{E+r+1}, v{E+r+1}")
    k("v_add_f32 v6, v6, v7")
    for rot in (1, 2, 4, 8):
        k(f"v_add_f32_dpp v6, v6, v6 row_ror:{rot} row_mask:0xf bank_mask:0xf")
    k("v_mov_b32 v7, 0x3727c5ac")
    k("v_fmac_f32 v7, s13, v6")
    k("v_rsq_f32 v7, v7")
    k("s_nop 0")
    for r in range(40): k(f"v_mul_f32 v{E+r}, v{E+r}, v7")
    k("v_mov_b32 v5, 0")
    k("s_mov_b32 s14, 0")
    k.label("P1_POLL")
    k("s_mov_b64 exec, 1")
    k(f"global_load_dword v6, v5, s[{DBGP}:{DBGP+1}] offset:128 sc1")
    k("s_waitcnt vmcnt(0)")
    k(f"v_readfirstlane_b32 s{NONCE}, v6")
    k("s_mov_b64 exec, -1")
    k(f"s_cmp_lg_u32 s{NONCE}, 0")
    k("s_cbranch_scc1 P1_READY")
    k("s_add_u32 s14, s14, 1")
    k(f"s_cmp_gt_u32 s14, {TIMEOUT}")
    k("s_cbranch_scc1 P1_READY")
    k("s_sleep 4")
    k("s_branch P1_POLL")
    k.label("P1_READY")
    mark(k, 1)
    P = 80
    k("s_mul_i32 s15, s8, 2560")
    k("v_lshlrev_b32 v5, 4, v1")
    k("v_mov_b32 v8, 0x7ffffff0")
    k("v_cmp_gt_u32 vcc, 32, v1")
    k("v_add_u32 v6, s15, v5")
    k("v_add_u32 v9, 2048, v6")
    k("v_cndmask_b32 v9, v8, v9, vcc")
    for q in range(4):
        k(f"s_mov_b32 s34, {q*15360}")
        k(f"buffer_load_dwordx4 v[{P+12*q}:{P+12*q+3}], v6, s[20:23], s34 offen sc1")
        k(f"buffer_load_dwordx4 v[{P+12*q+4}:{P+12*q+7}], v6, s[20:23], s34 offen offset:1024 sc1")
        k(f"buffer_load_dwordx4 v[{P+12*q+8}:{P+12*q+11}], v9, s[20:23], s34 offen sc1")
    k(f"v_mov_b32 v10, {CTL}")
    k(f"v_mov_b32 v11, s{NONCE}")
    k("ds_write_b32 v10, v11")
    k("s_waitcnt vmcnt(0)")
    for r in range(12):
        k(f"v_add_f32 v{P+r}, v{P+r}, v{P+12+r}")
        k(f"v_add_f32 v{P+24+r}, v{P+24+r}, v{P+36+r}")
    for r in range(12): k(f"v_add_f32 v{P+r}, v{P+r}, v{P+24+r}")
    for r in range(12): bf16_round_f32(k, P + r, P + r, P + 12)
    k("s_cmp_eq_u32 s8, 0")
    k("s_cbranch_scc1 P1_NOONE")
    for r in range(12): k(f"v_add_f32 v{P+r}, 1.0, v{P+r}")
    for r in range(12): bf16_round_f32(k, P + r, P + r, P + 12)
    k.label("P1_NOONE")
    k("s_mul_i32 s15, s8, 2560")
    k("v_add_u32 v5, s15, v5")
    k(f"v_add_u32 v5, {SCR + 8192}, v5")
    k(f"ds_write_b128 v5, v[{P}:{P+3}]")
    k(f"ds_write_b128 v5, v[{P+4}:{P+7}] offset:1024")
    k("s_mov_b32 exec_hi, 0")
    k(f"ds_write_b128 v5, v[{P+8}:{P+11}] offset:2048")
    k("s_mov_b64 exec, -1")
    k("s_waitcnt lgkmcnt(0)")
    k("s_barrier")
    Gm, Sm = 96, 136
    k("v_and_b32 v4, 15, v0")
    k("v_lshlrev_b32 v4, 5, v4")
    k(f"v_add_u32 v4, {SCR + 8192}, v4")
    for i in range(5):
        for hh in range(2):
            k(f"ds_read_b128 v[{Sm+8*i+4*hh}:{Sm+8*i+4*hh+3}], v4 offset:{512*i + 16*hh}")
            k(f"ds_read_b128 v[{Gm+8*i+4*hh}:{Gm+8*i+4*hh+3}], v4 offset:{2560 + 512*i + 16*hh}")
    k("s_waitcnt lgkmcnt(0)")
    for r in range(40): k(f"v_fma_f32 v{E+r}, v{E+r}, v{Gm+r}, v{Sm+r}")
    for r in range(20): k(f"v_cvt_pk_bf16_f32 v{X+r}, v{E+2*r}, v{E+2*r+1}")
    for i in range(5):
        k(f"buffer_store_dwordx4 v[{X+4*i}:{X+4*i+3}], v3, s[24:27], 0 offen offset:{256*i} sc1")
    k("s_waitcnt vmcnt(0)")
    k("s_barrier")
    k("s_cmp_lg_u32 s8, 0")
    k("s_cbranch_scc1 P2_START")
    set_flag(k, FL_H, 2)
    k("s_branch P2_START")
    k.label("P1_BB")
    k("s_barrier                        ; B_b")
    k(f"v_mov_b32 v10, {CTL}")
    k("ds_read_b32 v11, v10")
    k("s_waitcnt lgkmcnt(0)")
    k(f"v_readfirstlane_b32 s{NONCE}, v11")
    k("s_barrier                        ; B_c")
    k("s_branch P2_START")

def qkv_ids(k):
    k("s_and_b32 s3, s2, 7")
    k("s_lshr_b32 s13, s2, 3")
    k("s_and_b32 s14, s3, 3")
    k("s_lshl_b32 s14, s14, 2")
    k("s_and_b32 s15, s13, 3")
    k("s_add_u32 s11, s14, s15")
    k("s_lshr_b32 s14, s3, 2")
    k("s_lshl_b32 s14, s14, 3")
    k("s_lshr_b32 s15, s13, 2")
    k("s_add_u32 s12, s14, s15")

QNS = 4
def phase2_loader(k):
    k.label("P0_LOADERS")
    qkv_ids(k)
    VA, VB = 8, 12
    k("s_lshl_b32 s9, s11, 7")
    k("s_lshl_b32 s10, s31, 5")
    k("s_add_u32 s9, s9, s10")
    a_dma_rows32(k, VA, 9, 1280)
    k("v_lshrrev_b32 v2, 4, v1")
    k("v_bfe_u32 v3, v1, 2, 2")
    k("v_xor_b32 v3, v3, v2")
    k("v_lshlrev_b32 v3, 6, v3")
    k("v_and_b32 v4, 3, v1")
    k("v_lshl_add_u32 v3, v4, 4, v3")
    k("s_lshl_b32 s9, s31, 4")
    k("v_add_u32 v2, s9, v2")
    k("v_mul_u32_u24 v2, 3840, v2")
    k("s_lshl_b32 s9, s12, 8")
    k("v_add3_u32 v2, v2, v3, s9")
    for i in range(4):
        k(f"v_add_u32 v{VB+i}, {i*(4*3840-1024)}, v2")
    k("s_lshl_b32 s13, s31, 12")
    wsrd(k, 16, S * D * 2, WS_H)
    srd(k, 20, WQKVP, 640 * 3840)
    def dmaA(st):
        k(f"s_add_u32 m0, s13, {(st % QNS)*32768}")
        k(f"s_mov_b32 s14, {st*128}")
        for i in range(4):
            k(f"buffer_load_dwordx4 v{VA+i}, s[16:19], s14 offen offset:{i*1024} sc1 lds")
    def dmaB(st):
        k(f"s_add_u32 m0, s13, {(st % QNS)*32768 + 16384}")
        k(f"s_mov_b32 s14, {st*64*3840}")
        for i in range(4):
            k(f"buffer_load_dwordx4 v{VB+i}, s[20:23], s14 offen offset:{i*1024} lds")
    L = Loader(k, 10, QNS, dmaA, dmaB, 4, 4)
    k("s_cmp_ge_u32 s12, 15")
    k("s_cbranch_scc1 P2L_NOTILE")
    L.preloadB()
    k.label("P2L_NOTILE")
    k("s_barrier                        ; B_b")
    k(f"v_mov_b32 v16, {CTL}")
    k("ds_read_b32 v17, v16")
    k("s_waitcnt lgkmcnt(0)")
    k(f"v_readfirstlane_b32 s{NONCE}, v17")
    k("s_barrier                        ; B_c")
    k("s_cmp_ge_u32 s12, 15")
    k("s_cbranch_scc1 P2_SPARE")
    k("s_cmp_lg_u32 s8, 4")
    k("s_cbranch_scc1 P2L_GO")
    poll_range(k, "P2L_H", FL_H, lambda: k("s_lshl_b32 s9, s11, 4"), 16)
    k.label("P2L_GO")
    k("s_barrier                        ; B_d")
    mark(k, 2)
    WD_, GP, WOD = 32, 48, 56
    def tail_issue():
        k("s_lshl_b32 s33, s12, 4")
        k("s_add_u32 s33, s33, s11          ; job")
        k(f"s_mul_hi_u32 s34, s33, {(1<<32)//5+1}")
        k("s_mul_i32 s35, s34, 5")
        k("s_sub_u32 s35, s33, s35          ; k split")
        k("s_cmp_ge_u32 s34, 24")
        k("s_cselect_b32 s36, 1, 0          ; matrix")
        k("s_mul_i32 s37, s36, 24")
        k("s_sub_u32 s37, s34, s37")
        k("v_and_b32 v20, 255, v0")
        k("v_and_b32 v21, 7, v20")
        k("v_lshrrev_b32 v22, 3, v20")
        k("s_lshl_b32 s38, s35, 7")
        k("v_add_u32 v22, s38, v22")
        k("v_mul_u32_u24 v23, 3072, v22")
        k("s_lshl_b32 s39, s37, 7")
        k("v_lshl_add_u32 v23, v21, 4, v23")
        k("v_add_u32 v23, s39, v23")
        k("v_bfe_u32 v24, v1, 3, 2")
        k("v_lshlrev_b32 v24, 5, v24")
        k("v_and_b32 v25, 7, v1")
        k("s_lshl_b32 s39, s31, 3")
        k("s_add_u32 s39, s39, s38")
        k("v_add3_u32 v24, v24, v25, s39")
        k("v_lshlrev_b32 v24, 2, v24")
        k("v_lshrrev_b32 v25, 5, v1")
        k("v_mul_u32_u24 v25, 2560, v25")
        k("v_add_u32 v24, v24, v25")
        k("v_add_u32 v24, 7680, v24")
        k("s_lshl_b32 s39, s33, 8")
        k("v_add_u32 v26, s39, v20")
        k("v_lshlrev_b32 v27, 4, v26")
        k("s_cmp_eq_u32 s36, 0")
        k(f"s_cselect_b32 s40, s{WGP}, s{WUP_}")
        k(f"s_cselect_b32 s41, s{WGP+1}, s{WUP_+1}")
        srd(k, 24, 40, 640 * 3072)
        srd(k, 48, WOP_, 640 * 1280)
        for i in range(4):
            k(f"s_mov_b32 s39, {i*32*3072}")
            k(f"buffer_load_dwordx4 v[{WD_+4*i}:{WD_+4*i+3}], v23, s[24:27], s39 offen")
        k(f"buffer_load_dwordx4 v[{WOD}:{WOD+3}], v27, s[48:51], 0 offen")
        return 5
    L.run(tail=tail_issue)
    poll_all(k, "P2L_ALLH", FL_H, 60)
    wsrd(k, 52, 4 * 3840 * 4, WS_MODP)
    for q in range(4):
        k(f"s_mov_b32 s39, {q*15360}")
        k(f"buffer_load_dword v{GP+q}, v24, s[52:55], s39 offen sc1")
    k("s_waitcnt vmcnt(0)")
    k(f"v_add_f32 v{GP}, v{GP}, v{GP+1}")
    k(f"v_add_f32 v{GP+2}, v{GP+2}, v{GP+3}")
    k(f"v_add_f32 v{GP}, v{GP}, v{GP+2}")
    bf16_round_f32(k, GP, GP, GP + 1)
    k(f"v_add_f32 v{GP+1}, 1.0, v{GP}")
    bf16_round_f32(k, GP + 1, GP + 1, GP + 2)
    k("v_cmp_gt_u32 vcc, 32, v1")
    k(f"v_cndmask_b32 v{GP}, v{GP+1}, v{GP}, vcc")
    SG = 60
    k("v_lshrrev_b32 v28, 3, v1")
    k("v_lshlrev_b32 v28, 2, v28")
    for i in range(4):
        k(f"v_add_u32 v29, {32*i}, v28")
        k(f"ds_bpermute_b32 v{SG+i}, v29, v{GP}")
        k(f"v_add_u32 v29, {32*i+128}, v28")
        k(f"ds_bpermute_b32 v{SG+4+i}, v29, v{GP}")
    UU, TT, TM = 68, 76, 84
    for r in range(16): k(f"v_mov_b32 v{UU+r}, 0")
    k("s_lshl_b32 s39, s37, 3")
    k("v_add_u32 v29, s39, v21")
    k("v_mul_u32_u24 v30, 5462, v29")
    k("v_lshrrev_b32 v30, 16, v30       ; ct")
    k("v_mul_u32_u24 v31, 12, v30")
    k("v_sub_u32 v31, v29, v31          ; cc")
    k("s_mov_b32 s39, 245760")
    k("v_mul_lo_u32 v92, s39, v30")
    k("s_mul_i32 s39, s36, 12288")
    k("v_lshl_add_u32 v92, v31, 4, v92")
    k("v_add_u32 v92, s39, v92")
    wsrd(k, 20, 16 * 10 * 24576, WS_WUP)
    k("s_waitcnt lgkmcnt(0)")
    for i in range(4):
        d = WD_ + 4 * i
        for q in range(4):
            k(f"v_lshlrev_b32 v{TM+2*q}, 16, v{d+q}")
            k(f"v_and_b32 v{TM+2*q+1}, 0xffff0000, v{d+q}")
        for q in range(8): k(f"v_fmac_f32 v{TT+q}, v{SG+i}, v{TM+q}")
        for q in range(8): k(f"v_mul_f32 v{TM+q}, v{SG+4+i}, v{TM+q}")
        for q in range(8): k(f"v_add_f32 v{UU+q}, v{UU+q}, v{TM+q}")
        for q in range(4): k(f"v_cvt_pk_bf16_f32 v{d+q}, v{TM+2*q}, v{TM+2*q+1}")
        k(f"v_add_u32 v93, {32*i}, v22")
        k("v_lshrrev_b32 v94, 6, v93")
        k("v_mul_u32_u24 v93, 192, v93")
        k("v_mul_u32_u24 v94, 12288, v94")
        k("v_add3_u32 v93, v93, v94, v92")
        k(f"buffer_store_dwordx4 v[{d}:{d+3}], v93, s[20:23], 0 offen sc1")
    def rscatter(B):
        for e in range(4):
            k(f"v_permlane32_swap_b32 v{B+e}, v{B+e+4}")
            k(f"v_add_f32 v{B+e}, v{B+e}, v{B+e+4}")
        for e in range(2):
            k(f"v_permlane16_swap_b32 v{B+e}, v{B+e+2}")
            k(f"v_add_f32 v{B+e}, v{B+e}, v{B+e+2}")
        k(f"v_add_f32_dpp v{B}, v{B}, v{B} row_ror:8 row_mask:0xf bank_mask:0xf")
        k(f"v_add_f32_dpp v{B+1}, v{B+1}, v{B+1} row_ror:8 row_mask:0xf bank_mask:0xf")
        k(f"v_cndmask_b32 v{B}, v{B}, v{B+1}, vcc")
    k("v_and_b32 v93, 8, v1")
    k("v_cmp_ne_u32 vcc, 0, v93")
    rscatter(UU); rscatter(TT)
    k("v_mul_u32_u24 v93, 384, v30")
    k("v_lshl_add_u32 v93, v31, 3, v93")
    k("v_lshrrev_b32 v94, 3, v1")
    k("v_add_u32 v93, v93, v94")
    k("s_mul_i32 s39, s36, 96")
    k("v_add_u32 v93, s39, v93")
    k("v_lshlrev_b32 v93, 2, v93")
    wsrd(k, 24, 16 * 384 * 4, WS_UT)
    k(f"buffer_atomic_add_f32 v{UU}, v93, s[24:27], 0 offen")
    k(f"buffer_atomic_add_f32 v{TT}, v93, s[24:27], 0 offen offset:768")
    divconst(k, 28, 26, 80, 39, 61440)
    k("v_mul_u32_u24 v29, 80, v28")
    k("v_sub_u32 v29, v26, v29")
    divconst(k, 30, 29, 10, 39, 80)
    k("v_mul_u32_u24 v31, 10, v30")
    k("v_sub_u32 v29, v29, v31")
    k("v_and_b32 v31, 0xfffffff3, v28")
    k("v_bfe_u32 v93, v28, 2, 1")
    k("v_lshl_or_b32 v31, v93, 3, v31")
    k("v_bfe_u32 v93, v28, 3, 1")
    k("v_lshl_or_b32 v31, v93, 2, v31")
    k(f"s_mov_b32 s39, {640*160}")
    k("v_mul_lo_u32 v30, s39, v30")
    k("v_mul_u32_u24 v31, 160, v31")
    k("v_lshlrev_b32 v29, 4, v29")
    k("v_add3_u32 v30, v30, v29, v31")
    k("s_mov_b32 s39, 51200")
    k("v_cmp_gt_u32 vcc, s39, v26")
    k("v_mov_b32 v31, 0x7ffffff0")
    k("v_cndmask_b32 v30, v31, v30, vcc")
    wsrd(k, 20, 8 * 640 * 160, WS_WOP)
    k(f"buffer_store_dwordx4 v[{WOD}:{WOD+3}], v30, s[20:23], 0 offen sc1")
    k("s_waitcnt vmcnt(0)")
    last_arriver_flag(k, "P2L", CTL + 8, 3, FL_T, 2)
    k("s_branch P3_START")

def last_arriver_flag(k, tag, lds_word, last, base, idx_sgpr, v=20):
    k(f"v_mov_b32 v{v}, {lds_word}")
    k(f"v_mov_b32 v{v+1}, 1")
    k("s_mov_b64 exec, 1")
    k(f"ds_add_rtn_u32 v{v+2}, v{v}, v{v+1}")
    k("s_waitcnt lgkmcnt(0)")
    k(f"v_readfirstlane_b32 s9, v{v+2}")
    k("s_mov_b64 exec, -1")
    k(f"s_cmp_lg_u32 s9, {last}")
    k(f"s_cbranch_scc1 {tag}_NL")
    set_flag(k, base, idx_sgpr, v)
    k.label(f"{tag}_NL")

def phase2_spare(k):
    k.label("P2_SPARE")
    k("s_cmp_lg_u32 s8, 4")
    k("s_cbranch_scc1 P3_START")
    k("s_cmp_ge_u32 s11, 2")
    k("s_cbranch_scc1 P2S_FLAG")
    poll_all(k, "P2S_ALLH", FL_H, 20)
    k("s_mul_i32 s9, s11, 7680")
    k("s_add_u32 s9, s9, 5120")
    wsrd(k, 16, 4 * 3840 * 4, WS_MODP)
    wsrd(k, 20, 6 * 640 * 4, WS_MODV)
    for i in range(3):
        k(f"v_add_u32 v2, {64*i}, v1")
        k("v_lshlrev_b32 v3, 4, v2")
        if i == 2:
            k("v_cmp_gt_u32 vcc, 160, v2")
            k("v_mov_b32 v4, 0x7ffffff0")
            k("v_cndmask_b32 v3, v4, v3, vcc")
        for q in range(4):
            k(f"s_add_u32 s10, s9, {q*15360}")
            k(f"buffer_load_dwordx4 v[{8+4*q}:{11+4*q}], v3, s[16:19], s10 offen sc1")
        k("s_waitcnt vmcnt(0)")
        for r in range(4):
            k(f"v_add_f32 v{8+r}, v{8+r}, v{12+r}")
            k(f"v_add_f32 v{16+r}, v{16+r}, v{20+r}")
        for r in range(4): k(f"v_add_f32 v{8+r}, v{8+r}, v{16+r}")
        for r in range(4): bf16_round_f32(k, 8 + r, 8 + r, 24)
        k("buffer_store_dwordx4 v[8:11], v3, s[20:23], s9 offen sc1")
    k("s_waitcnt vmcnt(0)")
    k.label("P2S_FLAG")
    set_flag(k, FL_T, 2)
    k("s_branch P3_START")

def phase2_compute(k):
    k.label("P2_START")
    qkv_ids(k)
    k("s_cmp_ge_u32 s12, 15")
    k("s_cbranch_scc1 P3_START")
    AF, BF, ACC, RA, RB, EA = 40, 48, 80, 4, 12, 152
    k("v_and_b32 v2, 31, v1")
    k("v_lshrrev_b32 v3, 5, v1")
    k("v_bfe_u32 v28, v2, 1, 3")
    k("v_lshlrev_b32 v2, 7, v2")
    k("s_lshl_b32 s10, s8, 12")
    k("v_add_u32 v2, s10, v2")
    for ks in range(4):
        k(f"v_add_u32 v29, {2*ks}, v3")
        k("v_xor_b32 v29, v29, v28")
        k(f"v_lshl_add_u32 v{RA+ks}, v29, 4, v2")
        k(f"v_add_u32 v{RA+4+ks}, 65536, v{RA+ks}")
    k("v_lshrrev_b32 v2, 5, v1")
    k("v_bfe_u32 v3, v1, 2, 2")
    k("v_lshl_add_u32 v2, v2, 3, v3")
    k("v_lshlrev_b32 v2, 8, v2")
    k("v_bfe_u32 v28, v1, 4, 1")
    k("v_lshl_add_u32 v2, v28, 5, v2")
    k("v_and_b32 v28, 3, v1")
    k("v_lshl_add_u32 v2, v28, 3, v2")
    k("v_add_u32 v2, 16384, v2")
    for nt in range(4):
        k(f"v_xor_b32 v28, {nt}, v3")
        k(f"v_lshl_add_u32 v{RB+nt}, v28, 6, v2")
        k(f"v_add_u32 v{RB+4+nt}, 65536, v{RB+nt}")
    def reads(step):
        st, ks = divmod(step, 4); slot = st % QNS; sb = step & 1
        bs, off = slot >> 1, (slot & 1) * 32768
        a = f"ds_read_b128 v[{AF+4*sb}:{AF+4*sb+3}], v{RA+4*bs+ks} offset:{off}"
        out = []
        for nt in range(4):
            d = BF + (sb * 4 + nt) * 4
            g = [f"ds_read_b64_tr_b16 v[{d+2*j}:{d+2*j+1}], v{RB+4*bs+nt} offset:{off + (16*ks+4*j)*256}" for j in range(2)]
            out.append(([a] if nt == 0 else []) + g)
        return out
    def mf(swap):
        def f(step, nt):
            sb = step & 1; a = AF + 4 * sb; b = BF + (sb * 4 + nt) * 4; d = ACC + 16 * nt
            c = "0" if step == 0 else None
            return [mfma32(d, a, b, c) if swap else mfma32(d, b, a, c)]
        return f
    def done():
        k("s_waitcnt vmcnt(0)")
        k("s_lshl_b32 s34, s12, 4")
        k("s_add_u32 s34, s34, s11")
    k("s_cmp_ge_u32 s12, 10")
    k("s_cbranch_scc1 P2_V")
    k("s_cmp_ge_u32 s12, 5")
    k("s_cbranch_scc1 P2_K")
    wsrd(k, 24, 32 * 64 * 1280, WS_Q)
    k(f"s_mov_b32 s16, {64*1280}")
    k("s_movk_i32 s17, 1280")
    k("s_lshl_b32 s10, s12, 5")
    k(f"s_mov_b32 s18, {hex(f2u(1.4426950408889634 / (20 ** 0.5)))}")
    k("s_branch P2_QK")
    k.label("P2_K")
    wsrd(k, 24, 32 * KV_HEAD, WS_KV)
    k(f"s_mov_b32 s16, {KV_HEAD}")
    k(f"s_movk_i32 s17, {KV_TILE}")
    k("s_sub_u32 s10, s12, 5")
    k("s_lshl_b32 s10, s10, 5")
    k("s_mov_b32 s18, 1.0")
    k.label("P2_QK")
    k("s_lshl_b32 s19, s11, 2")
    k("s_add_u32 s19, s19, s8")
    k("s_mul_i32 s19, s19, s17")
    k("v_and_b32 v2, 31, v1")
    k("v_lshrrev_b32 v3, 5, v1")
    k("v_add_u32 v3, s10, v3")
    k("v_lshlrev_b32 v32, 4, v2")
    k("v_lshlrev_b32 v33, 3, v2")
    k("v_add_u32 v33, 1024, v33")
    for nt in range(4):
        for j in range(4):
            k(f"v_add_u32 v34, {8*nt+2*j}, v3")
            k("v_mul_u32_u24 v35, 205, v34")
            k("v_lshrrev_b32 v35, 10, v35")
            k("v_mad_i32_i24 v36, v35, -5, v34")
            k("v_lshrrev_b32 v37, 1, v36")
            k("v_lshl_add_u32 v37, v37, 9, v32")
            k("v_and_b32 v38, 1, v36")
            k("v_lshl_add_u32 v37, v38, 3, v37")
            k("v_cmp_eq_u32 vcc, 4, v36")
            k("v_mul_lo_u32 v35, s16, v35")
            k("v_cndmask_b32 v37, v37, v33, vcc")
            k(f"v_add_u32 v{EA+4*nt+j}, v37, v35")
    k("s_barrier                        ; B_d")
    compute_loop(k, 10, 4, reads, mf(False), 0, stamp=False)
    mark(k, 3)
    k("v_mov_b32 v2, s18")
    k("v_mov_b32 v3, s18")
    for nt in range(4):
        for j in range(4):
            a_ = ACC + 16 * nt + 4 * j
            t = 28 + 2 * (j % 4)
            k(f"v_pk_mul_f32 v[{a_}:{a_+1}], v[{a_}:{a_+1}], v[2:3]")
            k(f"v_pk_mul_f32 v[{a_+2}:{a_+3}], v[{a_+2}:{a_+3}], v[2:3]")
            k(f"v_cvt_pk_bf16_f32 v{t}, v{a_}, v{a_+1}")
            k(f"v_cvt_pk_bf16_f32 v{t+1}, v{a_+2}, v{a_+3}")
            k(f"buffer_store_dwordx2 v[{t}:{t+1}], v{EA+4*nt+j}, s[24:27], s19 offen sc1")
    k("s_branch P2_DONE")
    k.label("P2_V")
    wsrd(k, 24, 32 * KV_HEAD, WS_KV)
    k("s_lshl_b32 s19, s11, 2")
    k("s_add_u32 s19, s19, s8")
    k(f"s_mul_i32 s19, s19, {KV_TILE}")
    k("s_add_u32 s19, s19, 1280")
    k("v_and_b32 v2, 31, v1")
    k("v_lshrrev_b32 v3, 5, v1")
    k("v_mul_u32_u24 v3, 336, v3")
    k("s_sub_u32 s10, s12, 10")
    k("s_lshl_b32 s10, s10, 7")
    k("v_add_u32 v2, s10, v2")
    k(f"s_mov_b32 s10, {KV_HEAD}")
    for nt in range(4):
        k(f"v_add_u32 v34, {32*nt}, v2")
        k("v_mul_u32_u24 v35, 3277, v34")
        k("v_lshrrev_b32 v35, 16, v35")
        k("v_mul_u32_u24 v36, 20, v35")
        k("v_sub_u32 v36, v34, v36")
        k("v_mul_lo_u32 v35, s10, v35")
        k("v_lshlrev_b32 v36, 4, v36")
        k(f"v_add3_u32 v{EA+nt}, v35, v36, v3")
    k("s_barrier                        ; B_d")
    compute_loop(k, 10, 4, reads, mf(True), 0, stamp=False)
    mark(k, 3)
    for nt in range(4):
        for m in range(2):
            a_ = ACC + 16 * nt + 8 * m
            t = 28 + 4 * m
            for q in range(4):
                k(f"v_cvt_pk_bf16_f32 v{t+q}, v{a_+2*q}, v{a_+2*q+1}")
            k(f"buffer_store_dwordx4 v[{t}:{t+3}], v{EA+nt}, s[24:27], s19 offen offset:{672*m} sc1")
    k.label("P2_DONE")
    done()
    last_arriver_flag(k, "P2C", CTL + 4, 3, FL_QKV, 34)
    k("s_branch P3_START")

def phase3(k):
    from k_attn2 import STAGE, Q1, Q2, KA, KB, VF, SS, PP, OO, AK, AKB, AV, VDMA
    vm = VM(k)
    FLAG = CTL + 12
    k.label("P3_START")
    k("s_and_b32 s11, s2, 7")
    k("s_lshl_b32 s11, s11, 2")
    k("s_bfe_u32 s12, s2, 0x20003")
    k("s_add_u32 s11, s11, s12          ; head")
    k("s_lshr_b32 s12, s2, 5")
    k(f"s_mul_i32 s9, s11, {KV_HEAD}")
    k("s_lshl_b32 s13, s8, 10")
    k("s_add_u32 s9, s9, s13")
    k("v_lshlrev_b32 v4, 4, v1")
    k(f"v_add_u32 v{VDMA}, s9, v4")
    k("v_and_b32 v2, 31, v1")
    k("s_lshl_b32 s9, s12, 3")
    k("s_add_u32 s9, s9, s8")
    k("s_mul_i32 s9, s9, 1280")
    k("s_mul_i32 s10, s11, 81920")
    k("s_add_u32 s9, s9, s10")
    k("v_add_u32 v10, s9, v4")
    k("v_lshlrev_b32 v5, 3, v2")
    k("v_add_u32 v5, s9, v5")
    k("v_lshrrev_b32 v3, 5, v1          ; half")
    for sl in range(3):
        k(f"v_lshlrev_b32 v{AK+sl}, 4, v1")
        if sl: k(f"v_add_u32 v{AK+sl}, {sl*STAGE}, v{AK+sl}")
        k(f"v_lshlrev_b32 v{AKB+sl}, 3, v2")
        k(f"v_add_u32 v{AKB+sl}, {sl*STAGE + 1024}, v{AKB+sl}")
        k(f"v_mul_u32_u24 v{AV+sl}, 336, v3")
        k(f"v_lshl_add_u32 v{AV+sl}, v2, 4, v{AV+sl}")
        k(f"v_add_u32 v{AV+sl}, {sl*STAGE + 1280}, v{AV+sl}")
    k("s_lshl_b32 s9, s12, 8")
    k("s_lshl_b32 s10, s8, 5")
    k("s_add_u32 s9, s9, s10")
    k("v_add_u32 v4, s9, v2             ; token")
    k("v_mul_u32_u24 v4, 1280, v4")
    k("s_mul_i32 s9, s11, 40")
    k("v_add_u32 v4, s9, v4")
    k("v_lshl_add_u32 v11, v3, 3, v4")
    for r in range(16): k(f"v_mov_b32 v{OO+r}, 0")
    wsrd(k, 16, 32 * KV_HEAD, WS_KV)
    wsrd(k, 20, S * D * 2, WS_Q)
    wsrd(k, 24, S * D * 2, WS_O)
    k("s_cmp_lg_u32 s8, 0")
    k("s_cbranch_scc1 P3_GO")
    k("s_mul_i32 s9, s11, 20")
    k("s_lshr_b32 s10, s9, 7")
    k("s_add_u32 s9, s9, 19")
    k("s_lshr_b32 s9, s9, 7")
    k("v_bfe_u32 v20, v1, 4, 1")
    k("s_sub_u32 s15, s9, s10")
    k("v_mul_u32_u24 v20, s15, v20")
    k("v_add_u32 v20, s10, v20")
    k("v_lshrrev_b32 v21, 5, v1")
    k("v_mul_u32_u24 v21, 5, v21")
    k("v_add3_u32 v20, v20, v21, 5")
    k("v_and_b32 v21, 15, v1")
    k("v_lshl_add_u32 v20, v20, 4, v21")
    k("v_lshlrev_b32 v20, 7, v20")
    k(f"v_add_u32 v20, {FL_QKV}, v20")
    flag_srd(k)
    poll(k, "P3_KV", 20, "-1", 21)
    k("v_bfe_u32 v20, v1, 1, 1")
    k("v_mul_u32_u24 v20, s15, v20")
    k("v_add_u32 v20, s10, v20")
    k("v_and_b32 v21, 1, v1")
    k("s_lshl_b32 s9, s12, 1")
    k("v_add_u32 v21, s9, v21")
    k("v_lshl_add_u32 v20, v20, 4, v21")
    k("v_lshlrev_b32 v20, 7, v20")
    k(f"v_add_u32 v20, {FL_QKV}, v20")
    poll(k, "P3_Q", 20, "0xf", 21)
    k.label("P3_GO")
    k("s_barrier                        ; B_g")
    mark(k, 4)
    def dma_item(st, slot, i):
        L = [f"s_add_u32 m0, s13, {slot*STAGE + 8192*i}", f"s_mov_b32 s14, {st*STAGE + 8192*i}"]
        return L, f"buffer_load_dwordx4 v{VDMA}, s[16:19], s14 offen sc1 lds"
    def emit_dma(st, slot, i):
        L, ld = dma_item(st, slot, i)
        for l in L: k(l)
        vm.issue(ld, ("kv", st, i))
    def emit_stage_first(st, slot):
        L, ld = dma_item(st, slot, 5)
        lab = f"ATT_NP_{st}"
        k("s_cmp_lg_u32 s8, 0")
        k(f"s_cbranch_scc1 {lab}")
        for l in L: k(l)
        k(ld)
        k.label(lab)
    vm.issue(f"buffer_load_dwordx4 v[{Q1}:{Q1+3}], v10, s[20:23], 0 offen sc1", "q")
    vm.issue(f"buffer_load_dwordx2 v[{Q2}:{Q2+1}], v5, s[20:23], 0 offen offset:1024 sc1", "q")
    emit_stage_first(0, 0)
    for i in range(5): emit_dma(0, 0, i)
    vm.wait({"q", ("kv", 0, 0), ("kv", 0, 1)})
    k("v_cmp_gt_u32 vcc, 32, v1")
    k(f"v_cndmask_b32 v{Q2}, 0, v{Q2}, vcc")
    k(f"v_cndmask_b32 v{Q2+1}, 0, v{Q2+1}, vcc")
    k("s_barrier")
    mark(k, 5)
    def rdK(t):
        st, tt = divmod(t, 16); sl = st % 3; b = t & 1
        return [f"ds_read_b128 v[{KA+4*b}:{KA+4*b+3}], v{AK+sl} offset:{tt*KV_TILE}",
                f"ds_read_b64 v[{KB+2*b}:{KB+2*b+1}], v{AKB+sl} offset:{tt*KV_TILE}"]
    def rdV(t):
        st, tt = divmod(t, 16); sl = st % 3; b = t & 1
        return [f"ds_read_b128 v[{VF+8*b+4*m}:{VF+8*b+4*m+3}], v{AV+sl} offset:{tt*KV_TILE + 672*m}" for m in range(2)]
    def M1(t): b = t & 1; return m16(SS + 16 * b, KA + 4 * b, Q1, "0")
    def M2(t): b = t & 1; d = SS + 16 * b; return m8(d, KB + 2 * b, Q2, f"v[{d}:{d+15}]")
    def PV(t, m): b = t & 1; return m16(OO, VF + 8 * b + 4 * m, PP + 4 * m, f"v[{OO}:{OO+15}]")
    NTL = 64
    bg = {}
    def put(t, f): bg.setdefault(t, []).append(f)
    def stage_items(st, t0, step):
        slot = st % 3
        put(t0, lambda: emit_stage_first(st, slot))
        for i in range(5): put(t0 + step * i, (lambda i=i: emit_dma(st, slot, i)))
    stage_items(1, 0, 2); stage_items(2, 14, 2); stage_items(3, 30, 2)
    def wd_addr():
        k("s_lshl_b32 s9, s2, 9")
        k("v_add_u32 v118, s9, v0")
        k("v_lshlrev_b32 v119, 4, v118")
        srd(k, 36, WDP_, 1536 * 1280)
        vm.issue("buffer_load_dwordx4 v[120:123], v119, s[36:39], 0 offen", "wd")
    def wd_dst():
        divconst(k, 124, 118, 80, 9, 131072)
        k("v_mul_u32_u24 v125, 80, v124")
        k("v_sub_u32 v125, v118, v125")
        divconst(k, 126, 125, 10, 9, 80)
        k("v_mul_u32_u24 v127, 10, v126")
        k("v_sub_u32 v125, v125, v127")
        k("v_and_b32 v127, 0xfffffff3, v124")
        k("v_bfe_u32 v119, v124, 2, 1")
        k("v_lshl_or_b32 v127, v119, 3, v127")
        k("v_bfe_u32 v119, v124, 3, 1")
        k("v_lshl_or_b32 v127, v119, 2, v127")
        k(f"s_mov_b32 s9, {1536*160}")
        k("v_mul_lo_u32 v126, s9, v126")
        k("v_mul_u32_u24 v127, 160, v127")
        k("v_lshlrev_b32 v125, 4, v125")
        k("v_add3_u32 v119, v126, v125, v127")
        k("s_mov_b32 s9, 122880")
        k("v_cmp_gt_u32 vcc, s9, v118")
        k("v_mov_b32 v124, 0x7ffffff0")
        k("v_cndmask_b32 v119, v124, v119, vcc")
        wsrd(k, 36, 8 * 1536 * 160, WS_WDP)
    put(15, wd_addr); put(16, wd_dst)
    put(31, lambda: vm.issue("buffer_store_dwordx4 v[120:123], v119, s[36:39], 0 offen sc1", "wdst"))
    SEQ = "W2 M1 RKa RKb e0 e1 e2 c0 e3 P1 RV0 RV1 e4 c1 e5 e6 M2 c2 e7 e8 c3 e9 e10 WV P0 BG c4 e11 e12 c5 e13 e14 e15 c6 c7"
    for r in rdK(0) + rdK(1) + rdV(0): k(r)
    k("s_waitcnt lgkmcnt(4)")
    k(M1(0)); k(M2(0))
    for t in range(NTL):
        s = SS + 16 * (t & 1)
        st, tt = divmod(t, 16)
        if t == 4:
            vm.wait({("kv", 0, i) for i in range(5)})
            k("s_barrier")
        if tt == 14 and st + 1 < 4:
            vm.wait({("kv", st + 1, i) for i in range(5)} | ({"wd"} if st == 1 else set()))
            k("s_barrier")
        have_next = t + 1 < NTL
        rk = rdK(t + 2) if t + 2 < NTL else []
        rv = rdV(t + 1) if have_next else []
        nrd = len(rk) + len(rv)
        for tok in SEQ.split():
            if tok[0] == "e": i = int(tok[1:]); k(f"v_exp_f32 v{s+i}, v{s+i}")
            elif tok[0] == "c": q = int(tok[1:]); k(f"v_cvt_pk_bf16_f32 v{PP+q}, v{s+2*q}, v{s+2*q+1}")
            elif tok == "W2":
                if have_next: k("s_waitcnt lgkmcnt(2)")
            elif tok == "M1":
                if have_next: k(M1(t + 1))
            elif tok == "M2":
                if have_next: k(M2(t + 1))
            elif tok == "RKa":
                if rk: k(rk[0])
            elif tok == "RKb":
                if rk: k(rk[1])
            elif tok == "RV0":
                if rv: k(rv[0])
            elif tok == "RV1":
                if rv: k(rv[1])
            elif tok == "WV": k(f"s_waitcnt lgkmcnt({nrd})")
            elif tok == "BG":
                for f in bg.get(t, []): f()
            elif tok == "P0": k(PV(t, 0))
            elif tok == "P1":
                if t > 0: k(PV(t - 1, 1))
    k(PV(NTL - 1, 1))
    mark(k, 6)
    def finish(check):
        k(f"v_mov_b32 v2, v{OO+8}")
        k(f"v_mov_b32 v3, v{OO+8}")
        k("v_permlane32_swap_b32 v2, v3")
        if check:
            k("s_mov_b32 s9, 0x21800000         ; 2^-60")
            k("s_mov_b32 s10, 0x5d800000        ; 2^60")
            k("v_cmp_le_f32 vcc, s9, v3")
            k("v_cmp_ge_f32 s[28:29], s10, v3")
            k("s_and_b64 s[28:29], s[28:29], vcc")
            k("s_movk_i32 s9, 0x207")
            for r in range(8):
                k(f"v_cmp_class_f32 vcc, v{OO+r}, s9")
                k("s_andn2_b64 s[28:29], s[28:29], vcc")
            k("s_mov_b32 s34, -1")
            k("s_mov_b32 s35, 0")
            for r in range(8, 12):
                k(f"v_cmp_class_f32 vcc, v{OO+r}, s9")
                k("s_and_b64 vcc, vcc, s[34:35]")
                k("s_andn2_b64 s[28:29], s[28:29], vcc")
            k("s_cmp_eq_u64 s[28:29], -1")
            k("s_cbranch_scc1 ATT_OK")
            k("v_mov_b32 v2, 1")
            k(f"v_mov_b32 v5, {FLAG}")
            k("ds_write_b32 v5, v2")
            k.label("ATT_OK")
            k("s_waitcnt lgkmcnt(0)")
            k("s_barrier")
            k(f"v_mov_b32 v5, {FLAG}")
            k("ds_read_b32 v2, v5")
            k("s_waitcnt lgkmcnt(0)")
            k("v_readfirstlane_b32 s9, v2")
            k("s_cmp_lg_u32 s9, 0")
            k("s_cbranch_scc1 ATT_SLOW")
        k("v_rcp_f32 v3, v3")
        for r in range(12): k(f"v_mul_f32 v{OO+r}, v{OO+r}, v3")
        for q in range(6): k(f"v_cvt_pk_bf16_f32 v{PP+q}, v{OO+2*q}, v{OO+2*q+1}")
        k(f"buffer_store_dwordx2 v[{PP}:{PP+1}], v11, s[24:27], 0 offen sc1")
        k(f"buffer_store_dwordx2 v[{PP+2}:{PP+3}], v11, s[24:27], 0 offen offset:16 sc1")
        k("s_mov_b32 exec_hi, 0")
        k(f"buffer_store_dwordx2 v[{PP+4}:{PP+5}], v11, s[24:27], 0 offen offset:32 sc1")
        k("s_mov_b64 exec, -1")
        k("s_branch P4_START")
    finish(True)
    k.label("ATT_SLOW")
    k("s_waitcnt vmcnt(0)")
    for r in range(16): k(f"v_mov_b32 v{OO+r}, 0")
    k("v_mov_b32 v2, 0xff7fffff")
    k("s_mov_b32 s15, 0")
    k.label("ATT_SLOW_STAGE")
    k("s_barrier")
    k(f"s_mul_i32 s10, s15, {STAGE}")
    for i in range(5):
        k(f"s_add_u32 m0, s13, {8192*i}")
        k(f"s_add_u32 s14, s10, {8192*i}")
        k(f"buffer_load_dwordx4 v{VDMA}, s[16:19], s14 offen sc1 lds")
    k("s_cmp_lg_u32 s8, 0")
    k("s_cbranch_scc1 ATT_SLOW_NP")
    k(f"s_add_u32 m0, s13, {8192*5}")
    k(f"s_add_u32 s14, s10, {8192*5}")
    k(f"buffer_load_dwordx4 v{VDMA}, s[16:19], s14 offen sc1 lds")
    k.label("ATT_SLOW_NP")
    k("s_waitcnt vmcnt(0)")
    k("s_barrier")
    k(f"v_mov_b32 v5, v{AK}")
    k(f"v_mov_b32 v6, v{AKB}")
    k(f"v_mov_b32 v7, v{AV}")
    k("s_mov_b32 s9, 0")
    k.label("ATT_SLOW_TILE")
    k(f"ds_read_b128 v[{KA}:{KA+3}], v5")
    k(f"ds_read_b64 v[{KB}:{KB+1}], v6")
    k(f"ds_read_b128 v[{VF}:{VF+3}], v7")
    k(f"ds_read_b128 v[{VF+4}:{VF+7}], v7 offset:672")
    k("s_waitcnt lgkmcnt(0)")
    k(m16(SS, KA, Q1, "0"))
    k(m8(SS, KB, Q2, f"v[{SS}:{SS+15}]"))
    k(f"v_add_u32 v5, {KV_TILE}, v5")
    k(f"v_add_u32 v6, {KV_TILE}, v6")
    k(f"v_add_u32 v7, {KV_TILE}, v7")
    k(f"v_max_f32 v108, v{SS}, v{SS+1}")
    for r in range(2, 16): k(f"v_max_f32 v108, v108, v{SS+r}")
    k("v_mov_b32 v109, v108")
    k("v_permlane32_swap_b32 v108, v109")
    k("v_max_f32 v108, v108, v109")
    k("v_max_f32 v108, v108, v2")
    k("v_sub_f32 v109, v2, v108")
    k("v_exp_f32 v109, v109")
    k("v_mov_b32 v2, v108")
    for r in range(16): k(f"v_sub_f32 v{SS+r}, v{SS+r}, v108")
    for r in range(16): k(f"v_exp_f32 v{SS+r}, v{SS+r}")
    for r in range(16): k(f"v_mul_f32 v{OO+r}, v{OO+r}, v109")
    for q in range(8): k(f"v_cvt_pk_bf16_f32 v{PP+q}, v{SS+2*q}, v{SS+2*q+1}")
    k(m16(OO, VF, PP, f"v[{OO}:{OO+15}]"))
    k(m16(OO, VF + 4, PP + 4, f"v[{OO}:{OO+15}]"))
    k("s_add_u32 s9, s9, 1")
    k("s_cmp_lt_u32 s9, 16")
    k("s_cbranch_scc1 ATT_SLOW_TILE")
    k("s_add_u32 s15, s15, 1")
    k("s_cmp_lt_u32 s15, 4")
    k("s_cbranch_scc1 ATT_SLOW_STAGE")
    finish(False)

def narrow_ids(k):
    k("s_and_b32 s3, s2, 7")
    k("s_lshr_b32 s13, s2, 3")
    k("s_lshl_b32 s14, s3, 2")
    k("s_and_b32 s15, s13, 3")
    k("s_add_u32 s11, s14, s15")
    k("s_lshr_b32 s12, s13, 2")
    k("s_and_b32 s28, s31, 1")
    k("s_lshr_b32 s29, s31, 1           ; k half")
    k("s_lshl_b32 s9, s11, 6")
    k("s_lshl_b32 s10, s28, 5")
    k("s_add_u32 s30, s9, s10")

def narrow_loader_setup(k, Kdim, a_off, b_off):
    KH = Kdim // 2; NST = KH // 64; lda = Kdim * 2
    VA, VB, NS = 8, 12, 4
    k(f"s_mul_i32 s34, s29, {KH*2}")
    a_dma_rows32(k, VA, 30, lda, 34)
    k("v_lshlrev_b32 v2, 4, v1")
    k(f"s_mul_i32 s9, s12, {Kdim*160}")
    k(f"s_mul_i32 s10, s29, {KH*160}")
    k("s_add_u32 s9, s9, s10")
    k("s_mul_i32 s10, s28, 5120")
    k("s_add_u32 s9, s9, s10")
    k(f"v_add_u32 v{VB}, s9, v2")
    k(f"v_add_u32 v{VB+1}, 4096, v{VB}")
    k("s_lshl_b32 s13, s31, 12")
    k("s_mul_i32 s15, s29, 10240")
    k("s_mul_i32 s10, s28, 5120")
    k("s_add_u32 s15, s15, s10")
    wsrd(k, 16, S * Kdim * 2, a_off)
    wsrd(k, 20, 8 * Kdim * 160, b_off)
    def dmaA(st):
        k(f"s_add_u32 m0, s13, {(st % NS)*16384}")
        k(f"s_mov_b32 s14, {st*128}")
        for i in range(4):
            k(f"buffer_load_dwordx4 v{VA+i}, s[16:19], s14 offen offset:{i*1024} sc1 lds")
    def dmaB(st):
        slot = st % NS
        k(f"s_add_u32 m0, s15, {65536 + slot*20480}")
        k(f"s_mov_b32 s14, {st*10240}")
        for i in range(4):
            k(f"buffer_load_dwordx4 v{VB}, s[20:23], s14 offen offset:{i*1024} sc1 lds")
        k(f"s_add_u32 m0, s15, {65536 + slot*20480 + 4096}")
        k("s_nop 0")
        k(f"buffer_load_dwordx4 v{VB+1}, s[20:23], s14 offen sc1 lds")
    return Loader(k, NST, NS, dmaA, dmaB, 4, 5)

def narrow_compute(k, tag, Kdim, resid_is_input, gate_idx, final, pre_barrier):
    KH = Kdim // 2; NST = KH // 64; NS = 4
    RA, RB, AF, BF, ACC, RES, GT = 4, 6, 12, 28, 68, 108, 120
    k("v_and_b32 v2, 15, v1")
    k("v_lshrrev_b32 v3, 4, v1          ; g")
    k("v_lshrrev_b32 v10, 1, v2")
    k("v_lshlrev_b32 v2, 7, v2")
    k("s_lshl_b32 s13, s8, 12")
    k("v_add_u32 v2, s13, v2")
    for ks in range(2):
        k(f"v_add_u32 v11, {4*ks}, v3")
        k("v_xor_b32 v11, v11, v10")
        k(f"v_lshl_add_u32 v{RA+ks}, v11, 4, v2")
    k("v_lshrrev_b32 v2, 5, v1")
    k("v_lshlrev_b32 v2, 4, v2")
    k("v_bfe_u32 v10, v1, 4, 1")
    k("v_lshl_add_u32 v2, v10, 2, v2")
    k("v_bfe_u32 v10, v1, 2, 2")
    k("v_add_u32 v2, v2, v10")
    k("v_mul_u32_u24 v2, 160, v2")
    k("v_and_b32 v10, 3, v1")
    k("v_lshl_add_u32 v2, v10, 3, v2")
    k("s_mul_i32 s10, s29, 10240")
    k("s_add_u32 s10, s10, 65536")
    k(f"v_add_u32 v{RB}, s10, v2")
    k(f"v_add_u32 v{RB+1}, 40960, v{RB}")
    k("v_and_b32 v2, 15, v1")
    k("s_lshl_b32 s10, s29, 4")
    k("s_add_u32 s10, s10, s30")
    k("v_add_u32 v2, s10, v2")
    k("v_mul_u32_u24 v8, 1280, v2")
    k("s_mul_i32 s10, s12, 160")
    k("v_lshl_add_u32 v8, v3, 3, v8")
    k("v_add_u32 v8, s10, v8")
    k("s_mul_i32 s10, s12, 320")
    k("v_lshlrev_b32 v9, 4, v3")
    k("v_add_u32 v9, s10, v9")
    if resid_is_input: srd(k, 24, XP, S * D * 2)
    else: wsrd(k, 24, S * D * 2, WS_X1)
    if final: srd(k, 32, OUTP, S * D * 2)
    else: wsrd(k, 32, S * D * 2, WS_X1)
    wsrd(k, 36, 6 * 640 * 4, WS_MODV)
    pre_barrier()
    sc = " sc1"
    for nt in range(5):
        k(f"buffer_load_dwordx2 v[{RES+2*nt}:{RES+2*nt+1}], v8, s[24:27], 0 offen offset:{32*nt}{sc}")
    k(f"s_mov_b32 s14, {gate_idx*2560}")
    for nt in range(5):
        k(f"buffer_load_dwordx4 v[{GT+4*nt}:{GT+4*nt+3}], v9, s[36:39], s14 offen offset:{64*nt}{sc}")
    def reads(step):
        st, ks = divmod(step, 2); slot = st % NS; sb = step & 1
        a = [f"ds_read_b128 v[{AF+(sb*2+mb)*4}:{AF+(sb*2+mb)*4+3}], v{RA+ks} offset:{slot*16384 + mb*2048}" for mb in range(2)]
        out = []
        for nt in range(5):
            d = BF + (sb * 5 + nt) * 4
            g = [f"ds_read_b64_tr_b16 v[{d+2*j}:{d+2*j+1}], v{RB+(slot>>1)} offset:{(slot&1)*20480 + (32*ks+8*j)*160 + nt*32}" for j in range(2)]
            out.append((a if nt == 0 else []) + g)
        return out
    def mf(step, nt):
        sb = step & 1
        return [mfma16(ACC + (nt * 2 + mb) * 4, BF + (sb * 5 + nt) * 4, AF + (sb * 2 + mb) * 4, "0" if step == 0 else None) for mb in range(2)]
    compute_loop(k, NST, 2, reads, mf, 0, stamp=False)
    mark(k, 9 if not final else 15)
    k("s_barrier")
    k("v_lshlrev_b32 v2, 4, v1")
    k("s_mul_i32 s9, s8, 5120")
    k("v_add_u32 v3, s9, v2")
    k("s_xor_b32 s10, s8, 2")
    k("s_mul_i32 s10, s10, 5120")
    k("v_add_u32 v4, s10, v2")
    k("s_cmp_eq_u32 s29, 0")
    k(f"s_cbranch_scc1 {tag}_KH0")
    for nt in range(5):
        d = ACC + (nt * 2 + 0) * 4
        k(f"ds_write_b128 v3, v[{d}:{d+3}] offset:{1024*nt}")
    for nt in range(5):
        for r in range(4): k(f"v_mov_b32 v{ACC+(nt*2)*4+r}, v{ACC+(nt*2+1)*4+r}")
    k(f"s_branch {tag}_JOIN")
    k.label(f"{tag}_KH0")
    for nt in range(5):
        d = ACC + (nt * 2 + 1) * 4
        k(f"ds_write_b128 v3, v[{d}:{d+3}] offset:{1024*nt}")
    k.label(f"{tag}_JOIN")
    k("s_waitcnt lgkmcnt(0)")
    k("s_barrier")
    for nt in range(5):
        k(f"ds_read_b128 v[{BF+4*nt}:{BF+4*nt+3}], v4 offset:{1024*nt}")
    k("s_waitcnt vmcnt(0) lgkmcnt(0)")
    st_sc = "" if final else " sc1"
    for nt in range(5):
        d = ACC + nt * 8
        for r in range(4): k(f"v_add_f32 v{d+r}, v{d+r}, v{BF+4*nt+r}")
        k(f"v_lshlrev_b32 v12, 16, v{RES+2*nt}")
        k(f"v_and_b32 v13, 0xffff0000, v{RES+2*nt}")
        k(f"v_lshlrev_b32 v14, 16, v{RES+2*nt+1}")
        k(f"v_and_b32 v15, 0xffff0000, v{RES+2*nt+1}")
        for r in range(4): k(f"v_fmac_f32 v{12+r}, v{d+r}, v{GT+4*nt+r}")
        k(f"v_cvt_pk_bf16_f32 v{16+2*(nt%2)}, v12, v13")
        k(f"v_cvt_pk_bf16_f32 v{17+2*(nt%2)}, v14, v15")
        k(f"buffer_store_dwordx2 v[{16+2*(nt%2)}:{17+2*(nt%2)}], v8, s[32:35], 0 offen offset:{32*nt}{st_sc}")
        if not final:
            t = 16 + 2 * (nt % 2)
            k(f"v_lshlrev_b32 v12, 16, v{t}")
            k(f"v_and_b32 v13, 0xffff0000, v{t}")
            k(f"v_lshlrev_b32 v14, 16, v{t+1}")
            k(f"v_and_b32 v15, 0xffff0000, v{t+1}")
            if nt == 0:
                k("v_add_f32 v20, v12, v13"); k("v_add_f32 v21, v14, v15")
                k("v_mul_f32 v22, v12, v12"); k("v_mul_f32 v23, v13, v13")
            else:
                k("v_add_f32 v20, v20, v12"); k("v_add_f32 v21, v21, v13")
                k("v_fmac_f32 v22, v12, v12"); k("v_fmac_f32 v23, v13, v13")
                k("v_add_f32 v20, v20, v14"); k("v_add_f32 v21, v21, v15")
            k("v_fmac_f32 v22, v14, v14"); k("v_fmac_f32 v23, v15, v15")
    if not final:
        k("v_add_f32 v20, v20, v21")
        k("v_add_f32 v21, v22, v23")
        for sw in ("v_permlane32_swap_b32", "v_permlane16_swap_b32"):
            k("v_mov_b32 v22, v20"); k("v_mov_b32 v23, v21")
            k(f"{sw} v20, v22"); k(f"{sw} v21, v23")
            k("v_add_f32 v20, v20, v22"); k("v_add_f32 v21, v21, v23")
        wsrd(k, 24, 2048 * 64, WS_STAT)
        k("v_and_b32 v2, 15, v1")
        k("s_lshl_b32 s10, s29, 4")
        k("s_add_u32 s10, s10, s30")
        k("v_add_u32 v2, s10, v2")
        k("v_lshlrev_b32 v2, 6, v2")
        k("s_lshl_b32 s10, s12, 3")
        k("s_mov_b64 exec, 0xffff")
        k("buffer_store_dwordx2 v[20:21], v2, s[24:27], s10 offen sc1")
        k("s_mov_b64 exec, -1")

def up_ids(k):
    k("s_and_b32 s3, s2, 7")
    k("s_lshr_b32 s13, s2, 3")
    k("s_and_b32 s14, s3, 1")
    k("s_lshl_b32 s14, s14, 3")
    k("s_and_b32 s15, s13, 7")
    k("s_add_u32 s11, s14, s15")
    k("s_lshr_b32 s14, s3, 1")
    k("s_lshl_b32 s14, s14, 2")
    k("s_lshr_b32 s15, s13, 3")
    k("s_add_u32 s12, s14, s15")

def up_loader_setup(k):
    VA, VB, NS = 8, 12, 4
    k("s_lshl_b32 s9, s11, 7")
    k("s_lshl_b32 s10, s31, 5")
    k("s_add_u32 s9, s9, s10")
    a_dma_rows32(k, VA, 9, 1280)
    k("v_lshlrev_b32 v2, 4, v1")
    k("s_mul_i32 s9, s31, 6144")
    k(f"s_mul_i32 s10, s12, {10*24576}")
    k("s_add_u32 s9, s9, s10")
    k(f"v_add_u32 v{VB}, s9, v2")
    k(f"v_add_u32 v{VB+1}, 4096, v{VB}")
    k("s_lshl_b32 s13, s31, 12")
    k("s_mul_i32 s15, s31, 6144")
    wsrd(k, 16, S * D * 2, WS_X1)
    wsrd(k, 20, 16 * 10 * 24576, WS_WUP)
    def dmaA(st):
        k(f"s_add_u32 m0, s13, {(st % NS)*16384}")
        k(f"s_mov_b32 s14, {st*128}")
        for i in range(4):
            k(f"buffer_load_dwordx4 v{VA+i}, s[16:19], s14 offen offset:{i*1024} sc1 lds")
    def dmaB(st):
        slot = st % NS
        k(f"s_add_u32 m0, s15, {65536 + slot*24576}")
        k(f"s_mov_b32 s14, {st*24576}")
        for i in range(4):
            k(f"buffer_load_dwordx4 v{VB}, s[20:23], s14 offen offset:{i*1024} sc1 lds")
        k(f"s_add_u32 m0, s15, {65536 + slot*24576 + 4096}")
        k("s_nop 0")
        for i in range(2):
            k(f"buffer_load_dwordx4 v{VB+1}, s[20:23], s14 offen offset:{i*1024} sc1 lds")
    return Loader(k, 10, NS, dmaA, dmaB, 4, 6)

def up_compute(k, pre_barrier):
    AF, BF, ACC, RA, RB, NS = 16, 24, 72, 4, 8, 4
    k("v_and_b32 v2, 31, v1")
    k("v_lshrrev_b32 v3, 5, v1")
    k("v_bfe_u32 v14, v2, 1, 3")
    k("v_lshlrev_b32 v2, 7, v2")
    k("s_lshl_b32 s10, s8, 12")
    k("v_add_u32 v2, s10, v2")
    for ks in range(4):
        k(f"v_add_u32 v15, {2*ks}, v3")
        k("v_xor_b32 v15, v15, v14")
        k(f"v_lshl_add_u32 v{RA+ks}, v15, 4, v2")
    k("v_lshrrev_b32 v2, 5, v1")
    k("v_bfe_u32 v3, v1, 2, 2")
    k("v_lshl_add_u32 v2, v2, 3, v3")
    k("v_mul_u32_u24 v2, 192, v2")
    k("v_bfe_u32 v14, v1, 4, 1")
    k("v_lshl_add_u32 v2, v14, 5, v2")
    k("v_and_b32 v14, 3, v1")
    k("v_lshl_add_u32 v2, v14, 3, v2")
    k(f"v_add_u32 v{RB}, 65536, v2")
    k(f"v_add_u32 v{RB+1}, {65536+49152}, v2")
    k("v_and_b32 v2, 31, v1")
    k("s_lshl_b32 s9, s11, 7")
    k("s_lshl_b32 s10, s8, 5")
    k("s_add_u32 s9, s9, s10")
    k("v_add_u32 v2, s9, v2")
    k("v_lshlrev_b32 v2, 6, v2")
    wsrd(k, 44, 2048 * 64, WS_STAT)
    pre_barrier()
    STT = 168
    for q in range(4): k(f"buffer_load_dwordx4 v[{STT+4*q}:{STT+4*q+3}], v2, s[44:47], 0 offen offset:{16*q} sc1")
    def reads(step):
        st, ks = divmod(step, 4); slot = st % NS; sb = step & 1
        a = f"ds_read_b128 v[{AF+4*sb}:{AF+4*sb+3}], v{RA+ks} offset:{slot*16384}"
        out = []
        for nt in range(6):
            d = BF + (sb * 6 + nt) * 4
            off = (slot & 1) * 24576 + (nt // 3) * 12288 + (nt % 3) * 64
            g = [f"ds_read_b64_tr_b16 v[{d+2*j}:{d+2*j+1}], v{RB+(slot>>1)} offset:{off + (16*ks+4*j)*192}" for j in range(2)]
            out.append(([a] if nt == 0 else []) + g)
        return out
    def mf(step, nt):
        sb = step & 1
        return [mfma32(ACC + 16 * nt, BF + (sb * 6 + nt) * 4, AF + 4 * sb, "0" if step == 0 else None)]
    compute_loop(k, 10, 4, reads, mf, 0, stamp=False)
    mark(k, 12)
    k("s_waitcnt vmcnt(0)")
    k(f"v_add_f32 v10, v{STT}, v{STT+2}")
    k(f"v_add_f32 v11, v{STT+1}, v{STT+3}")
    for q in range(2, 8):
        k(f"v_add_f32 v10, v10, v{STT+2*q}")
        k(f"v_add_f32 v11, v11, v{STT+2*q+1}")
    k("s_barrier                        ; u', t landed")
    k(f"s_mov_b32 s9, {hex(f2u(1.0/640))}")
    k("v_mul_f32 v10, s9, v10            ; mean")
    k("v_mul_f32 v13, v10, v10")
    k("v_fma_f32 v11, v11, s9, -v13      ; variance")
    k("v_max_f32 v11, 0, v11")
    k("v_add_f32 v11, 0x3727c5ac, v11")
    k("v_rsq_f32 v11, v11")
    k("s_nop 0")
    k("v_mul_f32 v13, v10, v11")
    k("v_sub_f32 v12, 0, v13")
    k("v_mov_b32 v13, v12")
    k("v_mov_b32 v10, v11")
    k("v_lshrrev_b32 v14, 5, v1")
    k("v_lshlrev_b32 v14, 4, v14")
    k("v_add_u32 v14, 32768, v14")
    wsrd(k, 24, S * F * 2, WS_G)
    k("v_and_b32 v2, 31, v1")
    k("s_lshl_b32 s9, s11, 7")
    k("s_lshl_b32 s10, s8, 5")
    k("s_add_u32 s9, s9, s10")
    k("v_add_u32 v2, s9, v2")
    k("v_mul_u32_u24 v2, 3072, v2")
    k("v_lshrrev_b32 v3, 5, v1")
    k("v_lshlrev_b32 v3, 4, v3")
    k("s_mul_i32 s9, s12, 192")
    k("v_add3_u32 v2, v2, v3, s9")
    c1 = -2.0 * 0.7978845608028654 * 1.4426950408889634
    c2 = c1 * 0.044715
    for r, c in ((4, c1), (5, c1), (6, c2), (7, c2), (8, 1.0), (9, 1.0)): k(f"v_mov_b32 v{r}, {hex(f2u(c))}")
    pk = lambda r: f"v[{r}:{r+1}]"
    U0, U1 = 40, 168
    def ut_reads(grp):
        nt, jp = divmod(grp, 2); U = (U0, U1)[grp & 1]
        for mat in range(2):
            for jj in range(2):
                col = 32 * nt + 16 * jp + 8 * jj
                k(f"ds_read_b128 v[{U+8*mat+4*jj}:{U+8*mat+4*jj+3}], v14 offset:{(mat*96 + col)*4}")
                k(f"ds_read_b128 v[{U+16+8*mat+4*jj}:{U+16+8*mat+4*jj+3}], v14 offset:{768 + (mat*96 + col)*4}")
    ut_reads(0)
    for grp in range(6):
        nt, jp = divmod(grp, 2); U = (U0, U1)[grp & 1]
        g = ACC + 16 * nt + 8 * jp; u = g + 48
        T = 16 + 8 * (grp % 2)
        if grp + 1 < 6: ut_reads(grp + 1)
        k(f"s_waitcnt lgkmcnt({8 if grp + 1 < 6 else 0})")
        for mat in range(2):
            for r in range(0, 8, 2):
                k(f"v_pk_fma_f32 {pk(U+16+8*mat+r)}, {pk(U+8*mat+r)}, v[12:13], {pk(U+16+8*mat+r)}")
        for mat in range(2):
            base = g if mat == 0 else u
            for r in range(0, 8, 2):
                k(f"v_pk_fma_f32 {pk(base+r)}, {pk(base+r)}, v[10:11], {pk(U+16+8*mat+r)}")
        for r in range(0, 8, 2): k(f"v_pk_mul_f32 {pk(T+r)}, {pk(g+r)}, {pk(g+r)}")
        for r in range(0, 8, 2): k(f"v_pk_fma_f32 {pk(T+r)}, {pk(T+r)}, v[6:7], v[4:5]")
        for r in range(0, 8, 2): k(f"v_pk_mul_f32 {pk(T+r)}, {pk(T+r)}, {pk(g+r)}")
        for r in range(8): k(f"v_exp_f32 v{T+r}, v{T+r}")
        for r in range(0, 8, 2): k(f"v_pk_mul_f32 {pk(g+r)}, {pk(g+r)}, {pk(u+r)}")
        for r in range(0, 8, 2): k(f"v_pk_add_f32 {pk(T+r)}, {pk(T+r)}, v[8:9]")
        for r in range(8): k(f"v_rcp_f32 v{T+r}, v{T+r}")
        for r in range(0, 8, 2): k(f"v_pk_mul_f32 {pk(T+r)}, {pk(T+r)}, {pk(g+r)}")
        t = 32 + 4 * (grp % 2)
        for q in range(4): k(f"v_cvt_pk_bf16_f32 v{t+q}, v{T+2*q}, v{T+2*q+1}")
        k(f"v_permlane32_swap_b32 v{t}, v{t+2}")
        k(f"v_permlane32_swap_b32 v{t+1}, v{t+3}")
        k(f"buffer_store_dwordx4 v[{t}:{t+3}], v2, s[24:27], 0 offen offset:{64*nt + 32*jp} sc1")

def phases456(k):
    k.label("P4_START")
    k("s_waitcnt vmcnt(0)")
    k("s_barrier                        ; B_h")
    mark(k, 7)
    narrow_ids(k)
    k("s_cmp_lt_u32 s8, 4")
    k("s_cbranch_scc1 P4_COMPUTE")
    k("s_cmp_lg_u32 s8, 7")
    k("s_cbranch_scc1 P4L_NF")
    set_flag(k, FL_O, 2)
    k.label("P4L_NF")
    L = narrow_loader_setup(k, 640, WS_O, WS_WOP)
    poll_all(k, "P4L_T", FL_T, 20)
    L.preloadB()
    k("s_cmp_lg_u32 s8, 4")
    k("s_cbranch_scc1 P4L_GO")
    poll_range(k, "P4L_O", FL_O, lambda: k("s_lshl_b32 s9, s3, 5"), 32)
    k.label("P4L_GO")
    k("s_barrier                        ; B_i")
    mark(k, 8)
    L.run()
    k("s_barrier")
    k("s_barrier")
    k("s_lshr_b32 s35, s11, 1")
    k("s_lshl_b32 s35, s35, 4")
    k("s_and_b32 s36, s11, 1")
    k("s_lshl_b32 s36, s36, 3")
    k("s_add_u32 s35, s35, s36")
    k("s_add_u32 s35, s35, s12")
    up_ids(k)
    L = up_loader_setup(k)
    L.preloadB()
    k("s_barrier")
    k("s_cmp_lg_u32 s8, 4")
    k("s_cbranch_scc1 P5L_GO")
    set_flag(k, FL_X1, 35)
    poll_range(k, "P5L_X", FL_X1, lambda: k("s_lshl_b32 s9, s11, 4"), 16)
    k.label("P5L_GO")
    k("s_barrier                        ; B_k")
    mark(k, 11)
    def ut_issue():
        wsrd(k, 24, 16 * 384 * 4, WS_UT)
        k("v_lshlrev_b32 v2, 4, v1")
        k("s_mul_i32 s14, s12, 1536")
        k("s_and_b32 s9, s31, 1")
        k("s_lshl_b32 s9, s9, 10")
        k("s_add_u32 s14, s14, s9")
        k("s_add_u32 m0, s9, 32768")
        k("s_nop 0")
        k("buffer_load_dwordx4 v2, s[24:27], s14 offen sc1 lds")
        return 1
    L.run(after_barrier={8: ut_issue})
    k("s_waitcnt vmcnt(0)")
    k("s_barrier                        ; u', t landed")
    k("s_lshl_b32 s35, s11, 4")
    k("s_add_u32 s35, s35, s12")
    narrow_ids(k)
    L = narrow_loader_setup(k, 1536, WS_G, WS_WDP)
    poll_all(k, "P6L_O", FL_O, 20)
    L.preloadB()
    k("s_barrier")
    k("s_cmp_lg_u32 s8, 4")
    k("s_cbranch_scc1 P6L_GO")
    set_flag(k, FL_G, 35)
    def gfirst():
        k("s_lshr_b32 s9, s11, 1")
        k("s_lshl_b32 s9, s9, 4")
    poll_range(k, "P6L_G", FL_G, gfirst, 16)
    k.label("P6L_GO")
    k("s_barrier                        ; B_m")
    mark(k, 14)
    L.run()
    k("s_barrier")
    k("s_barrier")
    k("s_branch F_END")
    k.label("P4_COMPUTE")
    narrow_compute(k, "P4C", 640, True, 2, False, lambda: k("s_barrier                        ; B_i"))
    k("s_waitcnt vmcnt(0)")
    k("s_barrier                        ; B_j")
    mark(k, 10)
    up_ids(k)
    up_compute(k, lambda: k("s_barrier                        ; B_k"))
    k("s_waitcnt vmcnt(0)")
    k("s_barrier                        ; B_l")
    mark(k, 13)
    narrow_ids(k)
    narrow_compute(k, "P6C", 1536, False, 5, True, lambda: k("s_barrier                        ; B_m"))

def gen_fused():
    k = K()
    k("s_cmp_ge_u32 s2, 256")
    k("s_cbranch_scc1 F_END")
    k(f"s_load_dwordx8 s[64:71], s[0:1], 0")
    k(f"s_load_dwordx8 s[72:79], s[0:1], 32")
    k(f"s_load_dwordx8 s[80:87], s[0:1], 64")
    k("v_and_b32 v1, 63, v0")
    k("v_lshrrev_b32 v2, 6, v0")
    k("s_nop 0")
    k("v_readfirstlane_b32 s8, v2       ; wave")
    k("s_and_b32 s31, s8, 3")
    phase01(k)
    phase2_loader(k)
    phase2_spare(k)
    phase2_compute(k)
    phase3(k)
    phases456(k)
    k.label("F_END")
    k("s_endpgm")
    k.fix_hazards()
    return NAME, header(NAME) + k.text() + descriptor(NAME, 208), (256, 512, 163840)

if __name__ == "__main__":
    import sys
    HEAD = open("adaLN_cond__mha_block__geglu_ffn__prompt.s.ref").read().split("; Override launch")[0]
    n, t, (g, b, l) = gen_fused()
    s = HEAD + f"; @launch grid=({g},1,1) block=({b},1,1) lds={l}\n" + '.amdgcn_target "amdgcn-amd-amdhsa--gfx950"\n' + t
    out = sys.argv[1] if len(sys.argv) > 1 else "fused.s"
    open(out, "w").write(s)
    print("wrote", out, len(s))
```

```python
from common import *
from k_gemm2 import mfma32, mfma16, compute_loop, f2u
from k_attn2 import VM, m16, m8
import os, struct

NAME = "adaLN_cond__mha_block__geglu_ffn__prompt_kernel"
XP, WQKVP, WOP_, WGP, WUP_, WDP_, CP, WMODP, OUTP, DBGP, WSP = 64, 66, 68, 72, 74, 76, 78, 80, 82, 84, 86
NONCE = 60
CTL = 163584
SCR = 131072
STOP = int(os.environ.get("STOP", 99))
TIMEOUT = 30000

def wsrd(k, s, nbytes, off): srd(k, s, WSP, nbytes, off)
def mark(k, i): k(f"; MARK {i}")

def poll(k, tag, vaddr, mask, vtmp, waitall=True):
    k("s_mov_b32 s14, 0")
    k.label(f"{tag}_P")
    if mask == "lo32":
        k("s_mov_b32 exec_lo, -1"); k("s_mov_b32 exec_hi, 0")
    else:
        k(f"s_mov_b64 exec, {mask}")
    k(f"buffer_load_dword v{vtmp}, v{vaddr}, s[56:59], 0 offen sc1")
    k("s_waitcnt vmcnt(0)")
    k(f"v_cmp_ne_u32 vcc, s{NONCE}, v{vtmp}")
    k("s_mov_b64 exec, -1")
    k("s_cmp_eq_u64 vcc, 0")
    k(f"s_cbranch_scc1 {tag}_R")
    k("s_add_u32 s14, s14, 1")
    k(f"s_cmp_gt_u32 s14, {TIMEOUT}")
    k(f"s_cbranch_scc1 {tag}_R")
    k("s_sleep 2")
    k(f"s_branch {tag}_P")
    k.label(f"{tag}_R")

def flag_srd(k): wsrd(k, 56, 7 * 256 * 128, WS_FLG)

def poll_range(k, tag, base, first_sgpr_expr, n, v=20):
    flag_srd(k)
    first_sgpr_expr()
    k(f"v_and_b32 v{v}, 63, v0")
    k(f"v_add_u32 v{v}, s9, v{v}")
    k(f"v_lshlrev_b32 v{v}, 7, v{v}")
    if base: k(f"v_add_u32 v{v}, {base}, v{v}")
    poll(k, tag, v, "-1" if n == 64 else ("lo32" if n == 32 else hex((1 << n) - 1)), v + 1)

def poll_all(k, tag, base, v=20):
    flag_srd(k)
    k(f"v_and_b32 v{v}, 63, v0")
    k(f"v_lshlrev_b32 v{v}, 7, v{v}")
    k(f"v_add_u32 v{v}, {base}, v{v}")
    for q in range(1, 4): k(f"v_add_u32 v{v+q}, {q * 64 * 128}, v{v}")
    k("s_mov_b32 s14, 0")
    k.label(f"{tag}_P")
    for q in range(4): k(f"buffer_load_dword v{v+4+q}, v{v+q}, s[56:59], 0 offen sc1")
    k("s_waitcnt vmcnt(0)")
    k(f"v_cmp_ne_u32 vcc, s{NONCE}, v{v+4}")
    for q in range(1, 4):
        k(f"v_cmp_ne_u32 s[62:63], s{NONCE}, v{v+4+q}")
        k("s_or_b64 vcc, vcc, s[62:63]")
    k("s_cmp_eq_u64 vcc, 0")
    k(f"s_cbranch_scc1 {tag}_R")
    k("s_add_u32 s14, s14, 1")
    k(f"s_cmp_gt_u32 s14, {TIMEOUT}")
    k(f"s_cbranch_scc1 {tag}_R")
    k("s_sleep 2")
    k(f"s_branch {tag}_P")
    k.label(f"{tag}_R")

def set_flag(k, base, idx_sgpr, v=20):
    flag_srd(k)
    k(f"s_lshl_b32 s9, s{idx_sgpr}, 7")
    k(f"s_add_u32 s9, s9, {base}")
    k(f"v_mov_b32 v{v}, s9")
    k(f"v_mov_b32 v{v+1}, s{NONCE}")
    k("s_mov_b64 exec, 1")
    k(f"buffer_store_dword v{v+1}, v{v}, s[56:59], 0 offen sc1")
    k("s_mov_b64 exec, -1")

class Loader:
    def __init__(self, k, nst, nslots, dmaA, dmaB, nA, nB):
        self.k, self.nst, self.ns, self.dmaA, self.dmaB, self.nA, self.nB = k, nst, nslots, dmaA, dmaB, nA, nB
        self.ops = []
    def A(self, st): self.dmaA(st); self.ops += [st] * self.nA
    def B(self, st): self.dmaB(st); self.ops += [st] * self.nB
    def extra(self, n): self.ops += ["x"] * n
    def drained(self): self.ops = ["done"] if False else []
    def wait(self, st):
        idx = [i for i, t in enumerate(self.ops) if t == st]
        n = len(self.ops) - 1 - max(idx) if idx else len(self.ops)
        self.k(f"s_waitcnt vmcnt({min(63, n)})")
    def preloadB(self):
        for st in range(min(self.ns - 1, self.nst)): self.B(st)
    def run(self, after_barrier=None, tail=None):
        k = self.k; up = min(self.ns - 1, self.nst)
        for st in range(up): self.A(st)
        issued = up
        self.wait(0)
        k("s_barrier")
        for s in range(self.nst - 1):
            self.wait(s + 1)
            k("s_barrier")
            if issued < self.nst:
                self.A(issued); self.B(issued); issued += 1
                if issued == self.nst and tail: self.extra(tail())
            if after_barrier and (s + 1) in after_barrier: self.extra(after_barrier[s + 1]())

def a_dma_rows32(k, VA, row0_sgpr, lda, koff_sgpr=None):
    k("v_lshrrev_b32 v2, 3, v1")
    k("v_lshrrev_b32 v3, 4, v1")
    k("v_and_b32 v4, 7, v1")
    k(f"v_add_u32 v2, s{row0_sgpr}, v2")
    k(f"s_mov_b32 s10, {lda}")
    k("v_mul_lo_u32 v2, s10, v2")
    if koff_sgpr is not None: k(f"v_add_u32 v2, s{koff_sgpr}, v2")
    for i in range(4):
        k(f"v_xor_b32 v5, {(i&1)*4}, v3")
        k("v_xor_b32 v5, v5, v4")
        k("v_lshlrev_b32 v5, 4, v5")
        k(f"v_add_u32 v5, {i*8*lda - i*1024}, v5")
        k(f"v_add_u32 v{VA+i}, v2, v5")

def phase01(k):
    X, C0, W0, AC, T = 8, 32, 40, 64, 72
    k("s_and_b32 s13, s2, 3             ; kq")
    k("s_lshr_b32 s14, s2, 2")
    k("v_lshrrev_b32 v5, 3, v0")
    k("v_and_b32 v6, 7, v0")
    k("s_mul_i32 s15, s13, 160")
    k("v_add_u32 v7, s15, v5")
    k("v_mul_u32_u24 v5, 7680, v7")
    k("v_lshlrev_b32 v6, 4, v6")
    k("s_lshl_b32 s15, s14, 7")
    k("v_add3_u32 v5, v5, v6, s15")
    k("v_lshrrev_b32 v3, 4, v0")
    k("s_lshl_b32 s15, s2, 3")
    k("v_add_u32 v3, s15, v3")
    k("v_mul_u32_u24 v3, 1280, v3")
    k("v_and_b32 v4, 15, v0")
    k("v_lshl_add_u32 v3, v4, 4, v3")
    k("s_waitcnt lgkmcnt(0)")
    srd(k, 16, XP, S * D * 2)
    wsrd(k, 20, 4 * 3840 * 4, WS_MODP)
    wsrd(k, 24, S * D * 2, WS_H)
    k("s_cmp_ge_u32 s14, 60")
    k("s_cbranch_scc1 P0_NOGEMV")
    srd(k, 32, CP, 1280)
    srd(k, 36, WMODP, 640 * 7680)
    k("v_lshlrev_b32 v6, 1, v7")
    k("v_mov_b32 v8, 0x7ffffff0")
    k("v_cmp_gt_u32 vcc, 256, v0")
    k("v_cndmask_b32 v9, v8, v5, vcc")
    k("v_cndmask_b32 v10, v8, v6, vcc")
    k(f"buffer_load_dwordx4 v[{W0}:{W0+3}], v5, s[36:39], 0 offen")
    k(f"s_mov_b32 s15, {64*7680}")
    k(f"buffer_load_dwordx4 v[{W0+4}:{W0+7}], v5, s[36:39], s15 offen")
    k(f"s_mov_b32 s15, {128*7680}")
    k(f"buffer_load_dwordx4 v[{W0+8}:{W0+11}], v9, s[36:39], s15 offen")
    k(f"buffer_load_ushort v{C0}, v6, s[32:35], 0 offen")
    k(f"buffer_load_ushort v{C0+1}, v6, s[32:35], 0 offen offset:128")
    k(f"buffer_load_ushort v{C0+2}, v10, s[32:35], 0 offen offset:256")
    k.label("P0_NOGEMV")
    k("s_cmp_ge_u32 s8, 2")
    k("s_cbranch_scc1 P0_NOX")
    for i in range(5):
        k(f"buffer_load_dwordx4 v[{X+4*i}:{X+4*i+3}], v3, s[16:19], 0 offen offset:{256*i}")
    k.label("P0_NOX")
    k("s_cmp_lg_u32 s8, 3")
    k("s_cbranch_scc1 P0_NOCTL")
    k(f"v_lshlrev_b32 v11, 2, v1")
    k(f"v_add_u32 v11, {CTL}, v11")
    k("v_mov_b32 v12, 0")
    k("ds_write_b32 v11, v12")
    k.label("P0_NOCTL")
    k("s_cmp_ge_u32 s14, 60")
    k("s_cbranch_scc1 P0_BA")
    k("s_cmp_ge_u32 s8, 2")
    k("s_cbranch_scc1 P0_W0")
    k("s_waitcnt vmcnt(5)")
    k("s_branch P0_W1")
    k.label("P0_W0")
    k("s_waitcnt vmcnt(0)")
    k.label("P0_W1")
    k("s_mov_b32 s15, 0xbfb8aa3b")
    for i in range(3): k(f"v_lshlrev_b32 v{C0+i}, 16, v{C0+i}")
    for i in range(3): k(f"v_mul_f32 v{T+i}, s15, v{C0+i}")
    for i in range(3): k(f"v_exp_f32 v{T+i}, v{T+i}")
    for i in range(3): k(f"v_add_f32 v{T+i}, 1.0, v{T+i}")
    for i in range(3): k(f"v_rcp_f32 v{T+i}, v{T+i}")
    for i in range(3): k(f"v_mul_f32 v{C0+i}, v{C0+i}, v{T+i}")
    for i in range(3): bf16_round_f32(k, C0 + i, C0 + i, T)
    for i in range(3):
        for j in range(4):
            k(f"v_lshlrev_b32 v{T}, 16, v{W0+4*i+j}")
            k(f"v_and_b32 v{T+1}, 0xffff0000, v{W0+4*i+j}")
            op = "v_mul_f32" if i == 0 else "v_fmac_f32"
            k(f"{op} v{AC+2*j}, v{C0+i}, v{T}")
            k(f"{op} v{AC+2*j+1}, v{C0+i}, v{T+1}")
    for j in range(8):
        k(f"v_add_f32_dpp v{AC+j}, v{AC+j}, v{AC+j} row_ror:8 row_mask:0xf bank_mask:0xf")
    k("v_lshrrev_b32 v5, 4, v0")
    k("v_lshlrev_b32 v5, 8, v5")
    k("v_and_b32 v6, 7, v0")
    k("v_lshl_add_u32 v5, v6, 5, v5")
    k(f"v_add_u32 v5, {SCR}, v5")
    k("v_and_b32 v6, 15, v0")
    k("v_cmp_gt_u32 vcc, 8, v6")
    k("s_and_saveexec_b64 s[34:35], vcc")
    k(f"ds_write_b128 v5, v[{AC}:{AC+3}]")
    k(f"ds_write_b128 v5, v[{AC+4}:{AC+7}] offset:16")
    k("s_mov_b64 exec, s[34:35]")
    k.label("P0_BA")
    k("s_waitcnt lgkmcnt(0)")
    k("s_barrier                        ; B_a")
    mark(k, 0)
    k("s_cmp_lt_u32 s8, 2")
    k("s_cbranch_scc1 P2_SETUP")
    k("s_cmp_eq_u32 s8, 2")
    k("s_cbranch_scc1 P0_FINAL")
    k("s_cmp_eq_u32 s8, 3")
    k("s_cbranch_scc1 P0_ONES")
    k("s_branch P0_LOADERS")
    k.label("P0_FINAL")
    k("s_cmp_ge_u32 s14, 60")
    k("s_cbranch_scc1 P2_SETUP")
    k("v_lshlrev_b32 v7, 2, v1")
    k(f"v_add_u32 v6, {SCR}, v7")
    for p in range(32): k(f"ds_read_b32 v{W0+p}, v6 offset:{256*p}")
    k("s_waitcnt lgkmcnt(0)")
    for st in (16, 8, 4, 2, 1):
        for p in range(st): k(f"v_add_f32 v{W0+p}, v{W0+p}, v{W0+p+st}")
    k("s_mul_i32 s15, s13, 15360")
    k("s_lshl_b32 s34, s14, 8")
    k("s_add_u32 s15, s15, s34")
    k(f"buffer_store_dword v{W0}, v7, s[20:23], s15 offen sc1")
    k("s_waitcnt vmcnt(0)")
    k("s_cmp_ge_u32 s14, 20")
    k("s_cbranch_scc1 P2_SETUP")
    k("s_mov_b64 exec, 1")
    k("v_mov_b32 v5, 0")
    k("v_mov_b32 v6, 1")
    k(f"global_atomic_add v7, v5, v6, s[{DBGP}:{DBGP+1}] sc0 sc1")
    k("s_waitcnt vmcnt(0)")
    k("v_readfirstlane_b32 s15, v7")
    k("s_cmp_lg_u32 s15, 79")
    k("s_cbranch_scc1 P0_NOFLAG")
    k("s_memrealtime s[34:35]")
    k("s_waitcnt lgkmcnt(0)")
    k("s_or_b32 s34, s34, 1")
    k("v_mov_b32 v6, s34")
    k(f"global_store_dword v5, v6, s[{DBGP}:{DBGP+1}] offset:128 sc1")
    k.label("P0_NOFLAG")
    k("s_mov_b64 exec, -1")
    k("s_branch P2_SETUP")
    k.label("P0_ONES")
    wsrd(k, 32, 32 * KV_HEAD, WS_KV)
    k("s_lshl_b32 s13, s2, 5")
    k("v_add_u32 v5, s13, v1")
    k("v_lshrrev_b32 v6, 2, v5")
    k(f"v_mul_u32_u24 v6, {KV_TILE}, v6")
    k("v_and_b32 v7, 3, v5")
    k("v_mul_u32_u24 v7, 336, v7")
    k(f"v_add_u32 v6, {1280+320}, v6")
    k("v_add_u32 v6, v6, v7")
    for j in range(4): k(f"v_mov_b32 v{8+j}, 0x3f803f80")
    k("s_mov_b32 exec_hi, 0")
    k("buffer_store_dwordx4 v[8:11], v6, s[32:35], 0 offen sc1")
    wsrd(k, 36, 16 * 384 * 4, WS_UT)
    k("s_mul_i32 s13, s2, 96")
    k("v_lshlrev_b32 v5, 2, v1")
    k("v_mov_b32 v12, 0")
    k("s_mov_b32 exec_lo, 0xffffff")
    k("buffer_store_dword v12, v5, s[36:39], s13 offen sc1")
    k("s_mov_b64 exec, -1")
    k("s_waitcnt vmcnt(0)")
    k("s_branch P2_SETUP")
    k.label("P1_LN")
    E = 32
    k("s_waitcnt vmcnt(0)")
    for r in range(20):
        k(f"v_lshlrev_b32 v{E+2*r}, 16, v{X+r}")
        k(f"v_and_b32 v{E+2*r+1}, 0xffff0000, v{X+r}")
    k(f"v_add_f32 v5, v{E}, v{E+1}")
    k(f"v_add_f32 v6, v{E+2}, v{E+3}")
    for r in range(4, 40, 2):
        k(f"v_add_f32 v5, v5, v{E+r}")
        k(f"v_add_f32 v6, v6, v{E+r+1}")
    k("v_add_f32 v5, v5, v6")
    for rot in (1, 2, 4, 8):
        k(f"v_add_f32_dpp v5, v5, v5 row_ror:{rot} row_mask:0xf bank_mask:0xf")
    k(f"s_mov_b32 s13, {hex(f2u(1.0/640))}")
    k("v_mul_f32 v5, s13, v5")
    for r in range(40): k(f"v_sub_f32 v{E+r}, v{E+r}, v5")
    k(f"v_mul_f32 v6, v{E}, v{E}")
    k(f"v_mul_f32 v7, v{E+1}, v{E+1}")
    for r in range(2, 40, 2):
        k(f"v_fmac_f32 v6, v{E+r}, v{E+r}")
        k(f"v_fmac_f32 v7, v{E+r+1}, v{E+r+1}")
    k("v_add_f32 v6, v6, v7")
    for rot in (1, 2, 4, 8):
        k(f"v_add_f32_dpp v6, v6, v6 row_ror:{rot} row_mask:0xf bank_mask:0xf")
    k("v_mov_b32 v7, 0x3727c5ac")
    k("v_fmac_f32 v7, s13, v6")
    k("v_rsq_f32 v7, v7")
    k("s_nop 0")
    for r in range(40): k(f"v_mul_f32 v{E+r}, v{E+r}, v7")
    k("v_mov_b32 v5, 0")
    k("s_mov_b32 s14, 0")
    k.label("P1_POLL")
    k("s_mov_b64 exec, 1")
    k(f"global_load_dword v6, v5, s[{DBGP}:{DBGP+1}] offset:128 sc1")
    k("s_waitcnt vmcnt(0)")
    k(f"v_readfirstlane_b32 s{NONCE}, v6")
    k("s_mov_b64 exec, -1")
    k(f"s_cmp_lg_u32 s{NONCE}, 0")
    k("s_cbranch_scc1 P1_READY")
    k("s_add_u32 s14, s14, 1")
    k(f"s_cmp_gt_u32 s14, {TIMEOUT}")
    k("s_cbranch_scc1 P1_READY")
    k("s_sleep 4")
    k("s_branch P1_POLL")
    k.label("P1_READY")
    mark(k, 1)
    P = 80
    k("s_mul_i32 s15, s8, 2560")
    k("v_lshlrev_b32 v5, 4, v1")
    k("v_mov_b32 v8, 0x7ffffff0")
    k("v_cmp_gt_u32 vcc, 32, v1")
    k("v_add_u32 v6, s15, v5")
    k("v_add_u32 v9, 2048, v6")
    k("v_cndmask_b32 v9, v8, v9, vcc")
    for q in range(4):
        k(f"s_mov_b32 s34, {q*15360}")
        k(f"buffer_load_dwordx4 v[{P+12*q}:{P+12*q+3}], v6, s[20:23], s34 offen sc1")
        k(f"buffer_load_dwordx4 v[{P+12*q+4}:{P+12*q+7}], v6, s[20:23], s34 offen offset:1024 sc1")
        k(f"buffer_load_dwordx4 v[{P+12*q+8}:{P+12*q+11}], v9, s[20:23], s34 offen sc1")
    k(f"v_mov_b32 v10, {CTL}")
    k(f"v_mov_b32 v11, s{NONCE}")
    k("ds_write_b32 v10, v11")
    k("s_waitcnt vmcnt(0)")
    for r in range(12):
        k(f"v_add_f32 v{P+r}, v{P+r}, v{P+12+r}")
        k(f"v_add_f32 v{P+24+r}, v{P+24+r}, v{P+36+r}")
    for r in range(12): k(f"v_add_f32 v{P+r}, v{P+r}, v{P+24+r}")
    for r in range(12): bf16_round_f32(k, P + r, P + r, P + 12)
    k("s_cmp_eq_u32 s8, 0")
    k("s_cbranch_scc1 P1_NOONE")
    for r in range(12): k(f"v_add_f32 v{P+r}, 1.0, v{P+r}")
    for r in range(12): bf16_round_f32(k, P + r, P + r, P + 12)
    k.label("P1_NOONE")
    k("s_mul_i32 s15, s8, 2560")
    k("v_add_u32 v5, s15, v5")
    k(f"v_add_u32 v5, {SCR + 8192}, v5")
    k(f"ds_write_b128 v5, v[{P}:{P+3}]")
    k(f"ds_write_b128 v5, v[{P+4}:{P+7}] offset:1024")
    k("s_mov_b32 exec_hi, 0")
    k(f"ds_write_b128 v5, v[{P+8}:{P+11}] offset:2048")
    k("s_mov_b64 exec, -1")
    k("s_waitcnt lgkmcnt(0)")
    k("s_barrier")
    Gm, Sm = 96, 136
    k("v_and_b32 v4, 15, v0")
    k("v_lshlrev_b32 v4, 5, v4")
    k(f"v_add_u32 v4, {SCR + 8192}, v4")
    for i in range(5):
        for hh in range(2):
            k(f"ds_read_b128 v[{Sm+8*i+4*hh}:{Sm+8*i+4*hh+3}], v4 offset:{512*i + 16*hh}")
            k(f"ds_read_b128 v[{Gm+8*i+4*hh}:{Gm+8*i+4*hh+3}], v4 offset:{2560 + 512*i + 16*hh}")
    k("s_waitcnt lgkmcnt(0)")
    for r in range(40): k(f"v_fma_f32 v{E+r}, v{E+r}, v{Gm+r}, v{Sm+r}")
    for r in range(20): k(f"v_cvt_pk_bf16_f32 v{X+r}, v{E+2*r}, v{E+2*r+1}")
    for i in range(5):
        k(f"buffer_store_dwordx4 v[{X+4*i}:{X+4*i+3}], v3, s[24:27], 0 offen offset:{256*i} sc1")
    k("s_waitcnt vmcnt(0)")
    k("s_barrier")
    k("s_cmp_lg_u32 s8, 0")
    k("s_cbranch_scc1 P2_START")
    set_flag(k, FL_H, 2)
    k("s_branch P2_START")
    k.label("P1_BB")
    k("s_barrier                        ; B_b")
    k(f"v_mov_b32 v10, {CTL}")
    k("ds_read_b32 v11, v10")
    k("s_waitcnt lgkmcnt(0)")
    k(f"v_readfirstlane_b32 s{NONCE}, v11")
    k("s_barrier                        ; B_c")
    k("s_branch P2_START")

def qkv_ids(k):
    k("s_and_b32 s3, s2, 7")
    k("s_lshr_b32 s13, s2, 3")
    k("s_and_b32 s14, s3, 3")
    k("s_lshl_b32 s14, s14, 2")
    k("s_and_b32 s15, s13, 3")
    k("s_add_u32 s11, s14, s15")
    k("s_lshr_b32 s14, s3, 2")
    k("s_lshl_b32 s14, s14, 3")
    k("s_lshr_b32 s15, s13, 2")
    k("s_add_u32 s12, s14, s15")

QNS = 4
def phase2_loader(k):
    k.label("P0_LOADERS")
    if not os.environ.get("NO_CODEPF"):
        k("s_cmp_lg_u32 s8, 7")
        k("s_cbranch_scc1 F_NOCPF")
        k("s_getpc_b64 s[34:35]")
        k.label("F_PC")
        k("s_lshr_b32 s9, s2, 3")
        k("s_mul_i32 s9, s9, 18")
        k("v_add_u32 v2, s9, v1")
        k("v_lshlrev_b32 v2, 7, v2")
        k("v_cmp_gt_u32 vcc, 18, v1")
        k("s_mov_b32 s10, F_END-F_PC")
        k("v_cmp_gt_u32 s[36:37], s10, v2")
        k("s_and_b64 vcc, vcc, s[36:37]")
        k("s_and_saveexec_b64 s[36:37], vcc")
        k("s_cbranch_execz F_CPFX")
        k("global_load_dword v231, v2, s[34:35]")
        k.label("F_CPFX")
        k("s_mov_b64 exec, s[36:37]")
        k.label("F_NOCPF")
    if not os.environ.get("NO_TLB"):
        k("s_cmp_lg_u32 s8, 6")
        k("s_cbranch_scc1 F_NOTLB")
        wsrd(k, 16, WS_END, 0)
        srd(k, 20, OUTP, S * D * 2)
        k("s_lshr_b32 s9, s2, 3")
        k("s_lshl_b32 s9, s9, 4")
        k("v_add_u32 v2, s9, v1")
        k("v_lshlrev_b32 v2, 16, v2")
        k("s_mov_b64 exec, 0xffff")
        k("buffer_load_dword v229, v2, s[16:19], 0 offen")
        k("s_mov_b64 exec, -1")
        k("s_lshr_b32 s9, s2, 3")
        k("v_mov_b32 v2, s9")
        k("v_lshlrev_b32 v2, 17, v2")
        k("s_mov_b64 exec, 1")
        k("buffer_load_dword v228, v2, s[20:23], 0 offen")
        k("s_mov_b64 exec, -1")
        k.label("F_NOTLB")
    qkv_ids(k)
    VA, VB = 8, 12
    k("s_lshl_b32 s9, s11, 7")
    k("s_lshl_b32 s10, s31, 5")
    k("s_add_u32 s9, s9, s10")
    a_dma_rows32(k, VA, 9, 1280)
    k("v_lshrrev_b32 v2, 4, v1")
    k("v_bfe_u32 v3, v1, 2, 2")
    k("v_xor_b32 v3, v3, v2")
    k("v_lshlrev_b32 v3, 6, v3")
    k("v_and_b32 v4, 3, v1")
    k("v_lshl_add_u32 v3, v4, 4, v3")
    k("s_lshl_b32 s9, s31, 4")
    k("v_add_u32 v2, s9, v2")
    k("v_mul_u32_u24 v2, 3840, v2")
    k("s_lshl_b32 s9, s12, 8")
    k("v_add3_u32 v2, v2, v3, s9")
    for i in range(4):
        k(f"v_add_u32 v{VB+i}, {i*(4*3840-1024)}, v2")
    k("s_lshl_b32 s13, s31, 12")
    wsrd(k, 16, S * D * 2, WS_H)
    srd(k, 20, WQKVP, 640 * 3840)
    def dmaA(st):
        k(f"s_add_u32 m0, s13, {(st % QNS)*32768}")
        k(f"s_mov_b32 s14, {st*128}")
        for i in range(4):
            k(f"buffer_load_dwordx4 v{VA+i}, s[16:19], s14 offen offset:{i*1024} sc1 lds")
    def dmaB(st):
        k(f"s_add_u32 m0, s13, {(st % QNS)*32768 + 16384}")
        k(f"s_mov_b32 s14, {st*64*3840}")
        for i in range(4):
            k(f"buffer_load_dwordx4 v{VB+i}, s[20:23], s14 offen offset:{i*1024} lds")
    L = Loader(k, 10, QNS, dmaA, dmaB, 4, 4)
    k("s_cmp_ge_u32 s12, 15")
    k("s_cbranch_scc1 P2L_NOTILE")
    L.preloadB()
    if not os.environ.get("NO_WPF"):
        k("s_and_b32 s9, s11, 3")
        k("s_mul_i32 s9, s9, 224")
        k("s_mul_i32 s10, s31, 56")
        k("s_add_u32 s9, s9, s10")
        k("v_add_u32 v16, s9, v1")
        k("v_lshrrev_b32 v17, 1, v16")
        k("v_add_u32 v17, 192, v17")
        k("v_mul_u32_u24 v17, 3840, v17")
        k("v_and_b32 v16, 1, v16")
        k("v_lshl_add_u32 v17, v16, 7, v17")
        k("s_lshl_b32 s9, s12, 8")
        k("v_add_u32 v17, s9, v17")
        k("v_cmp_gt_u32 vcc, 56, v1")
        k("v_mov_b32 v16, 0x7ffffff0")
        k("v_cndmask_b32 v17, v16, v17, vcc")
        k("buffer_load_dword v231, v17, s[20:23], 0 offen")
    k.label("P2L_NOTILE")
    k("s_barrier                        ; B_b")
    k(f"v_mov_b32 v16, {CTL}")
    k("ds_read_b32 v17, v16")
    k("s_waitcnt lgkmcnt(0)")
    k(f"v_readfirstlane_b32 s{NONCE}, v17")
    k("s_barrier                        ; B_c")
    k("s_cmp_ge_u32 s12, 15")
    k("s_cbranch_scc1 P2_SPARE")
    k("s_cmp_lg_u32 s8, 4")
    k("s_cbranch_scc1 P2L_GO")
    poll_range(k, "P2L_H", FL_H, lambda: k("s_lshl_b32 s9, s11, 4"), 16)
    k.label("P2L_GO")
    k("s_barrier                        ; B_d")
    mark(k, 2)
    L.run()
    mark(k, 20)
    k("s_branch P3_START")

def last_arriver_flag(k, tag, lds_word, last, base, idx_sgpr, v=20):
    k(f"v_mov_b32 v{v}, {lds_word}")
    k(f"v_mov_b32 v{v+1}, 1")
    k("s_mov_b64 exec, 1")
    k(f"ds_add_rtn_u32 v{v+2}, v{v}, v{v+1}")
    k("s_waitcnt lgkmcnt(0)")
    k(f"v_readfirstlane_b32 s9, v{v+2}")
    k("s_mov_b64 exec, -1")
    k(f"s_cmp_lg_u32 s9, {last}")
    k(f"s_cbranch_scc1 {tag}_NL")
    set_flag(k, base, idx_sgpr, v)
    k.label(f"{tag}_NL")

def phase2_spare(k):
    k.label("P2_SPARE")
    k("s_cmp_lg_u32 s8, 4")
    k("s_cbranch_scc1 P3_START")
    k("s_cmp_ge_u32 s11, 4")
    k("s_cbranch_scc1 P2S_FLAG")
    poll_all(k, "P2S_ALLH", FL_H, 20)
    k("s_add_u32 s9, s11, 2")
    k("s_mul_i32 s9, s9, 2560")
    wsrd(k, 16, 4 * 3840 * 4, WS_MODP)
    wsrd(k, 20, 6 * 640 * 4, WS_MODV)
    for i in range(3):
        k(f"v_add_u32 v2, {64*i}, v1")
        k(f"v_lshlrev_b32 v{3+i}, 4, v2")
        if i == 2:
            k("v_cmp_gt_u32 vcc, 160, v2")
            k("v_mov_b32 v6, 0x7ffffff0")
            k(f"v_cndmask_b32 v{3+i}, v6, v{3+i}, vcc")
        for q in range(4):
            k(f"s_add_u32 s10, s9, {q*15360}")
            k(f"buffer_load_dwordx4 v[{8+16*i+4*q}:{11+16*i+4*q}], v{3+i}, s[16:19], s10 offen sc1")
    k("s_waitcnt vmcnt(0)")
    for i in range(3):
        B = 8 + 16 * i
        for r in range(4):
            k(f"v_add_f32 v{B+r}, v{B+r}, v{B+4+r}")
            k(f"v_add_f32 v{B+8+r}, v{B+8+r}, v{B+12+r}")
        for r in range(4): k(f"v_add_f32 v{B+r}, v{B+r}, v{B+8+r}")
        for r in range(4): bf16_round_f32(k, B + r, B + r, 60)
    k("s_cmp_lg_u32 s11, 2")
    k("s_cbranch_scc1 P2S_NOONE")
    for i in range(3):
        B = 8 + 16 * i
        for r in range(4): k(f"v_add_f32 v{B+r}, 1.0, v{B+r}")
        for r in range(4): bf16_round_f32(k, B + r, B + r, 60)
    k.label("P2S_NOONE")
    for i in range(3):
        k(f"buffer_store_dwordx4 v[{8+16*i}:{11+16*i}], v{3+i}, s[20:23], s9 offen sc1")
    k("s_waitcnt vmcnt(0)")
    set_flag(k, FL_M, 11)
    k.label("P2S_FLAG")
    k("s_branch P3_START")

QA = dict(AF=40, BF=48, ACC=80, RA=212, RB=220, EA=176, GA=192)
def phase2_setup(k):
    RA, RB, EA, GA = QA["RA"], QA["RB"], QA["EA"], QA["GA"]
    k.label("P2_SETUP")
    qkv_ids(k)
    for r in range(176, 228): k(f"v_mov_b32 v{r}, 0x7ffffff0")
    k("s_cmp_ge_u32 s12, 15")
    k("s_cbranch_scc1 P2_SETUP_END")
    k("v_and_b32 v31, 31, v1")
    k("v_lshrrev_b32 v30, 5, v1")
    k("v_bfe_u32 v28, v31, 1, 3")
    k("v_lshlrev_b32 v31, 7, v31")
    k("s_lshl_b32 s10, s8, 12")
    k("v_add_u32 v31, s10, v31")
    for ks in range(4):
        k(f"v_add_u32 v29, {2*ks}, v30")
        k("v_xor_b32 v29, v29, v28")
        k(f"v_lshl_add_u32 v{RA+ks}, v29, 4, v31")
        k(f"v_add_u32 v{RA+4+ks}, 65536, v{RA+ks}")
    k("v_lshrrev_b32 v31, 5, v1")
    k("v_bfe_u32 v30, v1, 2, 2")
    k("v_lshl_add_u32 v31, v31, 3, v30")
    k("v_lshlrev_b32 v31, 8, v31")
    k("v_bfe_u32 v28, v1, 4, 1")
    k("v_lshl_add_u32 v31, v28, 5, v31")
    k("v_and_b32 v28, 3, v1")
    k("v_lshl_add_u32 v31, v28, 3, v31")
    k("v_add_u32 v31, 16384, v31")
    for nt in range(4):
        k(f"v_xor_b32 v28, {nt}, v30")
        k(f"v_lshl_add_u32 v{RB+nt}, v28, 6, v31")
        k(f"v_add_u32 v{RB+4+nt}, 65536, v{RB+nt}")
    k("s_cmp_ge_u32 s12, 10")
    k("s_cbranch_scc1 P2S_V")
    k("s_cmp_ge_u32 s12, 5")
    k("s_cbranch_scc1 P2S_K")
    k(f"s_mov_b32 s16, {64*1280}")
    k("s_movk_i32 s17, 1280")
    k("s_lshl_b32 s10, s12, 5")
    k(f"s_mov_b32 s41, {hex(f2u(1.4426950408889634 / (20 ** 0.5)))}")
    k("s_branch P2S_QK")
    k.label("P2S_K")
    k(f"s_mov_b32 s16, {KV_HEAD}")
    k(f"s_movk_i32 s17, {KV_TILE}")
    k("s_sub_u32 s10, s12, 5")
    k("s_lshl_b32 s10, s10, 5")
    k("s_mov_b32 s41, 1.0")
    k.label("P2S_QK")
    k("s_lshl_b32 s42, s11, 2")
    k("s_add_u32 s42, s42, s8")
    k("s_mul_i32 s42, s42, s17")
    k(f"s_mul_hi_u32 s35, s10, {(1<<32)//5+1}")
    k("s_lshl_b32 s43, s8, 14")
    k("s_add_u32 s43, s43, 65536")
    k("v_and_b32 v31, 31, v1")
    k("v_lshrrev_b32 v30, 5, v1")
    k("v_add_u32 v30, s10, v30")
    k("v_lshlrev_b32 v32, 4, v31")
    k("v_lshlrev_b32 v33, 3, v31")
    k("v_add_u32 v33, 1024, v33")
    for nt in range(4):
        for j in range(4):
            k(f"v_add_u32 v34, {8*nt+2*j}, v30")
            k("v_mul_u32_u24 v35, 205, v34")
            k("v_lshrrev_b32 v35, 10, v35")
            k("v_mad_i32_i24 v36, v35, -5, v34")
            k("v_lshrrev_b32 v37, 1, v36")
            k("v_lshl_add_u32 v37, v37, 9, v32")
            k("v_and_b32 v38, 1, v36")
            k("v_lshl_add_u32 v37, v38, 3, v37")
            k("v_cmp_eq_u32 vcc, 4, v36")
            k("v_subrev_u32 v35, s35, v35")
            k("v_cndmask_b32 v37, v37, v33, vcc")
            k("v_mul_u32_u24 v35, 1280, v35")
            k(f"v_add3_u32 v{EA+4*nt+j}, v37, v35, s43")
    for i in range(20):
        k(f"v_add_u32 v34, {64*i}, v1")
        k("v_mul_u32_u24 v35, 52429, v34")
        k("v_lshrrev_b32 v35, 23, v35          ; hh")
        k("v_mul_u32_u24 v36, 160, v35")
        k("v_sub_u32 v36, v34, v36             ; w")
        k("v_lshrrev_b32 v37, 6, v36")
        k("v_lshlrev_b32 v37, 1, v37")
        k("v_and_b32 v38, 1, v36")
        k("v_add_u32 v37, v37, v38")
        k("v_min_u32 v37, 4, v37")
        k("v_add_u32 v35, s35, v35             ; head")
        k("v_mad_u32_u24 v37, v35, 5, v37")
        k("v_subrev_u32 v37, s10, v37")
        k("v_cmp_gt_u32 vcc, 32, v37")
        k("v_mul_lo_u32 v35, s16, v35")
        k("v_lshl_add_u32 v35, v36, 3, v35")
        k("v_mov_b32 v38, 0x7ffffff0")
        k(f"v_cndmask_b32 v{GA+i}, v38, v35, vcc")
    k("s_branch P2_SETUP_END")
    k.label("P2S_V")
    k("s_lshl_b32 s42, s11, 2")
    k("s_add_u32 s42, s42, s8")
    k(f"s_mul_i32 s42, s42, {KV_TILE}")
    k("s_add_u32 s42, s42, 1280")
    k("v_and_b32 v31, 31, v1")
    k("v_lshrrev_b32 v30, 5, v1")
    k("v_mul_u32_u24 v30, 336, v30")
    k("s_sub_u32 s10, s12, 10")
    k("s_lshl_b32 s10, s10, 7")
    k("v_add_u32 v31, s10, v31")
    k(f"s_mov_b32 s10, {KV_HEAD}")
    for nt in range(4):
        k(f"v_add_u32 v34, {32*nt}, v31")
        k("v_mul_u32_u24 v35, 3277, v34")
        k("v_lshrrev_b32 v35, 16, v35")
        k("v_mul_u32_u24 v36, 20, v35")
        k("v_sub_u32 v36, v34, v36")
        k("v_mul_lo_u32 v35, s10, v35")
        k("v_lshlrev_b32 v36, 4, v36")
        k(f"v_add3_u32 v{EA+nt}, v35, v36, v30")
    k.label("P2_SETUP_END")
    k("s_cmp_lt_u32 s8, 2")
    k("s_cbranch_scc1 P1_LN")
    k("s_branch P1_BB")

def phase2_compute(k):
    AF, BF, ACC, RA, RB, EA, GA = (QA[x] for x in ("AF", "BF", "ACC", "RA", "RB", "EA", "GA"))
    k.label("P2_START")
    k("s_cmp_ge_u32 s12, 15")
    k("s_cbranch_scc1 P3_START")
    def reads(step):
        st, ks = divmod(step, 4); slot = st % QNS; sb = step & 1
        bs, off = slot >> 1, (slot & 1) * 32768
        a = f"ds_read_b128 v[{AF+4*sb}:{AF+4*sb+3}], v{RA+4*bs+ks} offset:{off}"
        out = []
        for nt in range(4):
            d = BF + (sb * 4 + nt) * 4
            g = [f"ds_read_b64_tr_b16 v[{d+2*j}:{d+2*j+1}], v{RB+4*bs+nt} offset:{off + (16*ks+4*j)*256}" for j in range(2)]
            out.append(([a] if nt == 0 else []) + g)
        return out
    def mf(swap):
        def f(step, nt):
            sb = step & 1; a = AF + 4 * sb; b = BF + (sb * 4 + nt) * 4; d = ACC + 16 * nt
            c = "0" if step == 0 else None
            return [mfma32(d, a, b, c) if swap else mfma32(d, b, a, c)]
        return f
    k("s_cmp_ge_u32 s12, 10")
    k("s_cbranch_scc1 P2_V")
    k("s_cmp_ge_u32 s12, 5")
    k("s_cbranch_scc1 P2_K")
    wsrd(k, 24, 32 * 64 * 1280, WS_Q)
    k("s_branch P2_QK")
    k.label("P2_K")
    wsrd(k, 24, 32 * KV_HEAD, WS_KV)
    k.label("P2_QK")
    k("s_barrier                        ; B_d")
    compute_loop(k, 10, 4, reads, mf(False), 0, stamp=False)
    mark(k, 3)
    k("v_mov_b32 v2, s41")
    k("v_mov_b32 v3, s41")
    for nt in range(4):
        for j in range(4):
            a_ = ACC + 16 * nt + 4 * j
            t = 28 + 2 * (j % 4)
            k(f"v_pk_mul_f32 v[{a_}:{a_+1}], v[{a_}:{a_+1}], v[2:3]")
            k(f"v_pk_mul_f32 v[{a_+2}:{a_+3}], v[{a_+2}:{a_+3}], v[2:3]")
            k(f"v_cvt_pk_bf16_f32 v{t}, v{a_}, v{a_+1}")
            k(f"v_cvt_pk_bf16_f32 v{t+1}, v{a_+2}, v{a_+3}")
            k(f"ds_write_b64 v{EA+4*nt+j}, v[{t}:{t+1}]")
    k("v_lshlrev_b32 v2, 3, v1")
    k("v_add_u32 v2, s43, v2")
    k("s_waitcnt lgkmcnt(0)")
    for i in range(20):
        k(f"ds_read_b64 v[{ACC+2*i}:{ACC+2*i+1}], v2 offset:{512*i}")
        if i >= 9:
            k("s_waitcnt lgkmcnt(9)")
            k(f"buffer_store_dwordx2 v[{ACC+2*(i-9)}:{ACC+2*(i-9)+1}], v{GA+i-9}, s[24:27], s42 offen sc1")
    for i in range(11, 20):
        k(f"s_waitcnt lgkmcnt({19-i})")
        k(f"buffer_store_dwordx2 v[{ACC+2*i}:{ACC+2*i+1}], v{GA+i}, s[24:27], s42 offen sc1")
    k("s_branch P2_DONE")
    k.label("P2_V")
    wsrd(k, 24, 32 * KV_HEAD, WS_KV)
    k("s_barrier                        ; B_d")
    compute_loop(k, 10, 4, reads, mf(True), 0, stamp=False)
    mark(k, 3)
    for nt in range(4):
        for m in range(2):
            a_ = ACC + 16 * nt + 8 * m
            t = 28 + 4 * m
            for q in range(4):
                k(f"v_cvt_pk_bf16_f32 v{t+q}, v{a_+2*q}, v{a_+2*q+1}")
            k(f"buffer_store_dwordx4 v[{t}:{t+3}], v{EA+nt}, s[24:27], s42 offen offset:{672*m} sc1")
    k.label("P2_DONE")
    k("s_waitcnt vmcnt(0)")
    k("s_lshl_b32 s34, s12, 4")
    k("s_add_u32 s34, s34, s11")
    mark(k, 19)
    last_arriver_flag(k, "P2C", CTL + 4, 3, FL_QKV, 34)
    k("s_branch P3_START")

def phase3(k):
    from k_attn2 import STAGE, Q1, Q2, KA, KB, VF, SS, PP, OO, AK, AKB, AV, VDMA
    vm = VM(k)
    FLAG = CTL + 12
    k.label("P3_START")
    k("s_and_b32 s11, s2, 7")
    k("s_lshl_b32 s11, s11, 2")
    k("s_bfe_u32 s12, s2, 0x20003")
    k("s_add_u32 s11, s11, s12          ; head")
    k("s_lshr_b32 s12, s2, 5")
    k(f"s_mul_i32 s9, s11, {KV_HEAD}")
    k("s_lshl_b32 s13, s8, 10")
    k("s_add_u32 s9, s9, s13")
    k("v_lshlrev_b32 v4, 4, v1")
    k(f"v_add_u32 v{VDMA}, s9, v4")
    k("v_and_b32 v2, 31, v1")
    k("s_lshl_b32 s9, s12, 3")
    k("s_add_u32 s9, s9, s8")
    k("s_mul_i32 s9, s9, 1280")
    k("s_mul_i32 s10, s11, 81920")
    k("s_add_u32 s9, s9, s10")
    k("v_add_u32 v10, s9, v4")
    k("v_lshlrev_b32 v5, 3, v2")
    k("v_add_u32 v5, s9, v5")
    k("v_lshrrev_b32 v3, 5, v1          ; half")
    for sl in range(3):
        k(f"v_lshlrev_b32 v{AK+sl}, 4, v1")
        if sl: k(f"v_add_u32 v{AK+sl}, {sl*STAGE}, v{AK+sl}")
        k(f"v_lshlrev_b32 v{AKB+sl}, 3, v2")
        k(f"v_add_u32 v{AKB+sl}, {sl*STAGE + 1024}, v{AKB+sl}")
        k(f"v_mul_u32_u24 v{AV+sl}, 336, v3")
        k(f"v_lshl_add_u32 v{AV+sl}, v2, 4, v{AV+sl}")
        k(f"v_add_u32 v{AV+sl}, {sl*STAGE + 1280}, v{AV+sl}")
    k("s_lshl_b32 s9, s12, 8")
    k("s_lshl_b32 s10, s8, 5")
    k("s_add_u32 s9, s9, s10")
    k("v_add_u32 v4, s9, v2             ; token")
    k("v_mul_u32_u24 v4, 1280, v4")
    k("s_mul_i32 s9, s11, 40")
    k("v_add_u32 v4, s9, v4")
    k("v_lshl_add_u32 v11, v3, 3, v4")
    k("s_lshl_b32 s9, s12, 8")
    k("s_lshl_b32 s10, s8, 5")
    k("s_add_u32 s9, s9, s10")
    k("s_mul_i32 s10, s11, 40")
    for i in range(3):
        k(f"v_add_u32 v6, {64*i}, v1")
        k("v_mul_u32_u24 v7, 13108, v6")
        k("v_lshrrev_b32 v7, 16, v7")
        k("v_mul_u32_u24 v8, 5, v7")
        k("v_sub_u32 v8, v6, v8")
        k("v_add_u32 v7, s9, v7")
        k("v_mul_u32_u24 v7, 1280, v7")
        k("v_lshl_add_u32 v7, v8, 3, v7")
        k(f"v_add_u32 v{128+i}, s10, v7")
    k("v_cmp_gt_u32 vcc, 32, v1")
    k("v_mov_b32 v6, 0x7ffffff0")
    k("v_cndmask_b32 v130, v6, v130, vcc")
    for r in range(16): k(f"v_mov_b32 v{OO+r}, 0")
    wsrd(k, 16, 32 * KV_HEAD, WS_KV)
    wsrd(k, 20, S * D * 2, WS_Q)
    wsrd(k, 24, S * D * 2, WS_O)
    k("s_cmp_lg_u32 s8, 0")
    k("s_cbranch_scc1 P3_GO")
    k("s_mul_i32 s9, s11, 20")
    k("s_lshr_b32 s10, s9, 7")
    k("s_add_u32 s9, s9, 19")
    k("s_lshr_b32 s9, s9, 7")
    k("v_bfe_u32 v20, v1, 4, 1")
    k("s_sub_u32 s15, s9, s10")
    k("v_mul_u32_u24 v20, s15, v20")
    k("v_add_u32 v20, s10, v20")
    k("v_lshrrev_b32 v21, 5, v1")
    k("v_mul_u32_u24 v21, 5, v21")
    k("v_add3_u32 v20, v20, v21, 5")
    k("v_and_b32 v21, 15, v1")
    k("v_lshl_add_u32 v20, v20, 4, v21")
    k("v_lshlrev_b32 v20, 7, v20")
    k(f"v_add_u32 v20, {FL_QKV}, v20")
    flag_srd(k)
    poll(k, "P3_KV", 20, "-1", 21)
    k("v_bfe_u32 v20, v1, 1, 1")
    k("v_mul_u32_u24 v20, s15, v20")
    k("v_add_u32 v20, s10, v20")
    k("v_and_b32 v21, 1, v1")
    k("s_lshl_b32 s9, s12, 1")
    k("v_add_u32 v21, s9, v21")
    k("v_lshl_add_u32 v20, v20, 4, v21")
    k("v_lshlrev_b32 v20, 7, v20")
    k(f"v_add_u32 v20, {FL_QKV}, v20")
    poll(k, "P3_Q", 20, "0xf", 21)
    mark(k, 24)
    k.label("P3_GO")
    k("s_barrier                        ; B_g")
    mark(k, 4)
    def dma_item(st, slot, i):
        L = [f"s_add_u32 m0, s13, {slot*STAGE + 8192*i}", f"s_mov_b32 s14, {st*STAGE + 8192*i}"]
        return L, f"buffer_load_dwordx4 v{VDMA}, s[16:19], s14 offen sc1 lds"
    def emit_dma(st, slot, i):
        L, ld = dma_item(st, slot, i)
        for l in L: k(l)
        vm.issue(ld, ("kv", st, i))
    def emit_stage_first(st, slot):
        L, ld = dma_item(st, slot, 5)
        lab = f"ATT_NP_{st}"
        k("s_cmp_lg_u32 s8, 0")
        k(f"s_cbranch_scc1 {lab}")
        for l in L: k(l)
        k(ld)
        k.label(lab)
    vm.issue(f"buffer_load_dwordx4 v[{Q1}:{Q1+3}], v10, s[20:23], 0 offen sc1", "q")
    vm.issue(f"buffer_load_dwordx2 v[{Q2}:{Q2+1}], v5, s[20:23], 0 offen offset:1024 sc1", "q")
    emit_stage_first(0, 0)
    for i in range(5): emit_dma(0, 0, i)
    vm.wait({"q", ("kv", 0, 0), ("kv", 0, 1)})
    k("v_cmp_gt_u32 vcc, 32, v1")
    k(f"v_cndmask_b32 v{Q2}, 0, v{Q2}, vcc")
    k(f"v_cndmask_b32 v{Q2+1}, 0, v{Q2+1}, vcc")
    k("s_barrier")
    mark(k, 5)
    def rdK(t):
        st, tt = divmod(t, 16); sl = st % 3; b = t & 1
        return [f"ds_read_b128 v[{KA+4*b}:{KA+4*b+3}], v{AK+sl} offset:{tt*KV_TILE}",
                f"ds_read_b64 v[{KB+2*b}:{KB+2*b+1}], v{AKB+sl} offset:{tt*KV_TILE}"]
    def rdV(t):
        st, tt = divmod(t, 16); sl = st % 3; b = t & 1
        return [f"ds_read_b128 v[{VF+8*b+4*m}:{VF+8*b+4*m+3}], v{AV+sl} offset:{tt*KV_TILE + 672*m}" for m in range(2)]
    def M1(t): b = t & 1; return m16(SS + 16 * b, KA + 4 * b, Q1, "0")
    def M2(t): b = t & 1; d = SS + 16 * b; return m8(d, KB + 2 * b, Q2, f"v[{d}:{d+15}]")
    def PV(t, m): b = t & 1; return m16(OO, VF + 8 * b + 4 * m, PP + 4 * m, f"v[{OO}:{OO+15}]")
    NTL = 64
    bg = {}
    def put(t, f): bg.setdefault(t, []).append(f)
    def stage_items(st, t0, step):
        slot = st % 3
        put(t0, lambda: emit_stage_first(st, slot))
        for i in range(5): put(t0 + step * i, (lambda i=i: emit_dma(st, slot, i)))
    stage_items(1, 0, 2); stage_items(2, 14, 1); stage_items(3, 30, 2)
    def wd_addr():
        k("s_lshl_b32 s9, s2, 9")
        k("v_add_u32 v118, s9, v0")
        k("v_lshlrev_b32 v119, 4, v118")
        srd(k, 36, WDP_, 1536 * 1280)
        vm.issue("buffer_load_dwordx4 v[120:123], v119, s[36:39], 0 offen", "wd")
    def wd_dst():
        divconst(k, 124, 118, 80, 9, 131072)
        k("v_mul_u32_u24 v125, 80, v124")
        k("v_sub_u32 v125, v118, v125")
        divconst(k, 126, 125, 10, 9, 80)
        k("v_mul_u32_u24 v127, 10, v126")
        k("v_sub_u32 v125, v125, v127")
        k("v_and_b32 v127, 0xfffffff3, v124")
        k("v_bfe_u32 v119, v124, 2, 1")
        k("v_lshl_or_b32 v127, v119, 3, v127")
        k("v_bfe_u32 v119, v124, 3, 1")
        k("v_lshl_or_b32 v127, v119, 2, v127")
        k(f"s_mov_b32 s9, {1536*160}")
        k("v_mul_lo_u32 v126, s9, v126")
        k("v_mul_u32_u24 v127, 160, v127")
        k("v_lshlrev_b32 v125, 4, v125")
        k("v_add3_u32 v119, v126, v125, v127")
        k("s_mov_b32 s9, 122880")
        k("v_cmp_gt_u32 vcc, s9, v118")
        k("v_mov_b32 v124, 0x7ffffff0")
        k("v_cndmask_b32 v119, v124, v119, vcc")
        wsrd(k, 36, 8 * 1536 * 160, WS_WDP)
    put(15, wd_addr); put(20, wd_dst)
    put(31, lambda: vm.issue("buffer_store_dwordx4 v[120:123], v119, s[36:39], 0 offen sc1", "wdst"))
    WD_, SG, UU, TT, TM, WOD = 136, 152, 160, 168, 176, 184
    def only_job_waves(tag, f):
        def g():
            k("s_cmp_ge_u32 s8, 4")
            k(f"s_cbranch_scc1 P3_J{tag}")
            f()
            k.label(f"P3_J{tag}")
        return g
    def job_issue():
        k(f"s_mul_hi_u32 s55, s2, {(1<<32)//5+1}")
        k("s_mul_i32 s54, s55, 5")
        k("s_sub_u32 s54, s2, s54")
        k("s_lshl_b32 s54, s54, 7")
        k("s_cmp_ge_u32 s55, 24")
        k("s_cselect_b32 s52, 1, 0          ; matrix")
        k("s_mul_i32 s53, s52, 24")
        k("s_sub_u32 s53, s55, s53")
        k("v_and_b32 v188, 7, v0")
        k("v_lshrrev_b32 v189, 3, v0")
        k("v_add_u32 v189, s54, v189")
        k("v_mul_u32_u24 v190, 3072, v189")
        k("s_lshl_b32 s55, s53, 7")
        k("v_lshl_add_u32 v190, v188, 4, v190")
        k("v_add_u32 v190, s55, v190")
        k("s_cmp_ge_u32 s2, 240")
        k("s_cselect_b32 s55, 0, 1966080")
        k("s_cmp_eq_u32 s52, 0")
        k(f"s_cselect_b32 s44, s{WGP}, s{WUP_}")
        k(f"s_cselect_b32 s45, s{WGP+1}, s{WUP_+1}")
        k("s_mov_b32 s46, s55")
        k("s_mov_b32 s47, 0x00020000")
        for i in range(4):
            k(f"s_mov_b32 s55, {i*32*3072}")
            k(f"buffer_load_dwordx4 v[{WD_+4*i}:{WD_+4*i+3}], v190, s[44:47], s55 offen")
        k("s_lshl_b32 s55, s2, 8")
        k("v_add_u32 v191, s55, v0")
        k("v_lshlrev_b32 v190, 4, v191")
        srd(k, 48, WOP_, 640 * 1280)
        k(f"buffer_load_dwordx4 v[{WOD}:{WOD+3}], v190, s[48:51], 0 offen")
        flag_srd(k)
        k("v_and_b32 v192, 3, v1")
        k("v_lshlrev_b32 v192, 7, v192")
        k(f"v_add_u32 v192, {FL_M}, v192")
        k("buffer_load_dword v193, v192, s[56:59], 0 offen sc1")
    def job_mod():
        k(f"v_cmp_ne_u32 vcc, s{NONCE}, v193")
        k("s_cmp_eq_u64 vcc, 0")
        k("s_cbranch_scc1 P3_MOK")
        poll(k, "P3_M", 192, "-1", 193)
        k.label("P3_MOK")
        wsrd(k, 48, 6 * 640 * 4, WS_MODV)
        k("v_lshlrev_b32 v190, 2, v189")
        for i in range(4):
            k("s_movk_i32 s55, 7680")
            k(f"buffer_load_dword v{SG+2*i}, v190, s[48:51], s55 offen offset:{128*i} sc1")
            k("s_movk_i32 s55, 10240")
            k(f"buffer_load_dword v{SG+2*i+1}, v190, s[48:51], s55 offen offset:{128*i} sc1")
    def job_dst():
        k("s_waitcnt vmcnt(0)")
        for r in range(16): k(f"v_mov_b32 v{UU+r}, 0")
        k("s_lshl_b32 s55, s53, 3")
        k("v_add_u32 v190, s55, v188")
        k("v_mul_u32_u24 v194, 5462, v190")
        k("v_lshrrev_b32 v194, 16, v194     ; ct")
        k("v_mul_u32_u24 v195, 12, v194")
        k("v_sub_u32 v195, v190, v195       ; cc")
        k("s_mov_b32 s55, 245760")
        k("v_mul_lo_u32 v196, s55, v194")
        k("s_mul_i32 s55, s52, 12288")
        k("v_lshl_add_u32 v196, v195, 4, v196")
        k("v_add_u32 v196, s55, v196")
        k("s_cmp_ge_u32 s2, 240")
        k(f"s_cselect_b32 s55, 0, {16 * 10 * 24576}")
        k(f"s_add_u32 s44, s{WSP}, {WS_WUP}")
        k(f"s_addc_u32 s45, s{WSP+1}, 0")
        k("s_mov_b32 s46, s55")
        k("s_mov_b32 s47, 0x00020000")
    def job_chunk(i):
        def f():
            d = WD_ + 4 * i
            for q in range(4):
                k(f"v_lshlrev_b32 v{TM+2*q}, 16, v{d+q}")
                k(f"v_and_b32 v{TM+2*q+1}, 0xffff0000, v{d+q}")
            for q in range(8): k(f"v_fmac_f32 v{TT+q}, v{SG+2*i}, v{TM+q}")
            for q in range(8): k(f"v_mul_f32 v{TM+q}, v{SG+2*i+1}, v{TM+q}")
            for q in range(8): k(f"v_add_f32 v{UU+q}, v{UU+q}, v{TM+q}")
            for q in range(4): k(f"v_cvt_pk_bf16_f32 v{d+q}, v{TM+2*q}, v{TM+2*q+1}")
            k(f"v_add_u32 v190, {32*i}, v189")
            k("v_lshrrev_b32 v197, 6, v190")
            k("v_mul_u32_u24 v190, 192, v190")
            k("v_mul_u32_u24 v197, 12288, v197")
            k("v_add3_u32 v190, v190, v197, v196")
            k(f"buffer_store_dwordx4 v[{d}:{d+3}], v190, s[44:47], 0 offen sc1")
        return f
    def job_reduce():
        def rscatter(B):
            for e in range(4):
                k(f"v_permlane32_swap_b32 v{B+e}, v{B+e+4}")
                k(f"v_add_f32 v{B+e}, v{B+e}, v{B+e+4}")
            for e in range(2):
                k(f"v_permlane16_swap_b32 v{B+e}, v{B+e+2}")
                k(f"v_add_f32 v{B+e}, v{B+e}, v{B+e+2}")
            k(f"v_add_f32_dpp v{B}, v{B}, v{B} row_ror:8 row_mask:0xf bank_mask:0xf")
            k(f"v_add_f32_dpp v{B+1}, v{B+1}, v{B+1} row_ror:8 row_mask:0xf bank_mask:0xf")
            k(f"v_cndmask_b32 v{B}, v{B}, v{B+1}, vcc")
        k("v_and_b32 v190, 8, v1")
        k("v_cmp_ne_u32 vcc, 0, v190")
        rscatter(UU); rscatter(TT)
        k("v_mul_u32_u24 v190, 384, v194")
        k("v_lshl_add_u32 v190, v195, 3, v190")
        k("v_lshrrev_b32 v197, 3, v1")
        k("v_add_u32 v190, v190, v197")
        k("s_mul_i32 s55, s52, 96")
        k("v_add_u32 v190, s55, v190")
        k("v_lshlrev_b32 v190, 2, v190")
        k("s_cmp_ge_u32 s2, 240")
        k(f"s_cselect_b32 s55, 0, {16 * 384 * 4}")
        k(f"s_add_u32 s44, s{WSP}, {WS_UT}")
        k(f"s_addc_u32 s45, s{WSP+1}, 0")
        k("s_mov_b32 s46, s55")
        k("s_mov_b32 s47, 0x00020000")
        k(f"buffer_atomic_add_f32 v{UU}, v190, s[44:47], 0 offen")
        k(f"buffer_atomic_add_f32 v{TT}, v190, s[44:47], 0 offen offset:768")
    def job_wo():
        divconst(k, 190, 191, 80, 55, 65536)
        k("v_mul_u32_u24 v197, 80, v190")
        k("v_sub_u32 v197, v191, v197")
        divconst(k, 198, 197, 10, 55, 80)
        k("v_mul_u32_u24 v194, 10, v198")
        k("v_sub_u32 v197, v197, v194")
        k("v_and_b32 v194, 0xfffffff3, v190")
        k("v_bfe_u32 v195, v190, 2, 1")
        k("v_lshl_or_b32 v194, v195, 3, v194")
        k("v_bfe_u32 v195, v190, 3, 1")
        k("v_lshl_or_b32 v194, v195, 2, v194")
        k(f"s_mov_b32 s55, {640*160}")
        k("v_mul_lo_u32 v198, s55, v198")
        k("v_mul_u32_u24 v194, 160, v194")
        k("v_lshlrev_b32 v197, 4, v197")
        k("v_add3_u32 v198, v198, v197, v194")
        k("s_mov_b32 s55, 51200")
        k("v_cmp_gt_u32 vcc, s55, v191")
        k("v_mov_b32 v194, 0x7ffffff0")
        k("v_cndmask_b32 v198, v194, v198, vcc")
        wsrd(k, 48, 8 * 640 * 160, WS_WOP)
        k(f"buffer_store_dwordx4 v[{WOD}:{WOD+3}], v198, s[48:51], 0 offen sc1")
    def job_flag():
        k("s_cmp_lg_u32 s8, 0")
        k("s_cbranch_scc1 P3_NOTF")
        set_flag(k, FL_T, 2, 188)
        k.label("P3_NOTF")
    put(5, only_job_waves("a", job_issue)); put(14, only_job_waves("b", job_mod)); put(24, only_job_waves("c", job_dst))
    for i in range(4): put(25 + i, only_job_waves(f"d{i}", job_chunk(i)))
    put(29, only_job_waves("e", job_reduce)); put(31, only_job_waves("f", job_wo))
    put(47, job_flag)
    def pf_lines(off, nbytes, base_fn, per, vtag):
        def f():
            wsrd(k, 40, nbytes, off)
            base_fn()
            k("s_lshr_b32 s10, s2, 3")
            k(f"s_mul_i32 s10, s10, {per}")
            k("s_add_u32 s9, s9, s10")
            k("v_add_u32 v118, s9, v0")
            k("v_lshlrev_b32 v118, 7, v118")
            k(f"v_cmp_gt_u32 vcc, {per}, v0")
            k("v_mov_b32 v124, 0x7ffffff0")
            k("v_cndmask_b32 v118, v124, v118, vcc")
            vm.issue(f"buffer_load_dword v{vtag}, v118, s[40:43], 0 offen", "pf")
        return f
    if not os.environ.get("NO_WPF"):
        put(49, pf_lines(WS_WOP, 8 * 640 * 160, lambda: k("s_mov_b32 s9, 0"), 200, 231))
        def upbase():
            k("s_bfe_u32 s9, s2, 0x20001")
            k("s_mul_i32 s9, s9, 7680")
        put(53, pf_lines(WS_WUP, 16 * 10 * 24576, upbase, 240, 230))
    SEQ = "W2 M1 RKa RKb e0 e1 e2 c0 e3 P1 RV0 RV1 e4 c1 e5 e6 M2 c2 e7 e8 c3 e9 e10 WV P0 BG c4 e11 e12 c5 e13 e14 e15 c6 c7"
    for r in rdK(0) + rdK(1) + rdV(0): k(r)
    k("s_waitcnt lgkmcnt(4)")
    k(M1(0)); k(M2(0))
    for t in range(NTL):
        s = SS + 16 * (t & 1)
        st, tt = divmod(t, 16)
        if t == 4:
            vm.wait({("kv", 0, i) for i in range(5)})
            k("s_barrier")
        if tt == 14 and st + 1 < 4:
            k("s_waitcnt vmcnt(0)")
            k("s_barrier")
        have_next = t + 1 < NTL
        rk = rdK(t + 2) if t + 2 < NTL else []
        rv = rdV(t + 1) if have_next else []
        nrd = len(rk) + len(rv)
        for tok in SEQ.split():
            if tok[0] == "e": i = int(tok[1:]); k(f"v_exp_f32 v{s+i}, v{s+i}")
            elif tok[0] == "c": q = int(tok[1:]); k(f"v_cvt_pk_bf16_f32 v{PP+q}, v{s+2*q}, v{s+2*q+1}")
            elif tok == "W2":
                if have_next: k("s_waitcnt lgkmcnt(2)")
            elif tok == "M1":
                if have_next: k(M1(t + 1))
            elif tok == "M2":
                if have_next: k(M2(t + 1))
            elif tok == "RKa":
                if rk: k(rk[0])
            elif tok == "RKb":
                if rk: k(rk[1])
            elif tok == "RV0":
                if rv: k(rv[0])
            elif tok == "RV1":
                if rv: k(rv[1])
            elif tok == "WV": k(f"s_waitcnt lgkmcnt({nrd})")
            elif tok == "BG":
                for f in bg.get(t, []): f()
            elif tok == "P0": k(PV(t, 0))
            elif tok == "P1":
                if t > 0: k(PV(t - 1, 1))
    k(PV(NTL - 1, 1))
    mark(k, 6)
    def finish(check):
        k(f"v_mov_b32 v2, v{OO+8}")
        k(f"v_mov_b32 v3, v{OO+8}")
        k("v_permlane32_swap_b32 v2, v3")
        if check:
            k("s_mov_b32 s9, 0x21800000         ; 2^-60")
            k("s_mov_b32 s10, 0x5d800000        ; 2^60")
            k("v_cmp_le_f32 vcc, s9, v3")
            k("v_cmp_ge_f32 s[28:29], s10, v3")
            k("s_and_b64 s[28:29], s[28:29], vcc")
            k("s_movk_i32 s9, 0x207")
            for r in range(8):
                k(f"v_cmp_class_f32 vcc, v{OO+r}, s9")
                k("s_andn2_b64 s[28:29], s[28:29], vcc")
            k("s_mov_b32 s34, -1")
            k("s_mov_b32 s35, 0")
            for r in range(8, 12):
                k(f"v_cmp_class_f32 vcc, v{OO+r}, s9")
                k("s_and_b64 vcc, vcc, s[34:35]")
                k("s_andn2_b64 s[28:29], s[28:29], vcc")
            k("s_cmp_eq_u64 s[28:29], -1")
            k("s_cbranch_scc1 ATT_OK")
            k("v_mov_b32 v2, 1")
            k(f"v_mov_b32 v5, {FLAG}")
            k("ds_write_b32 v5, v2")
            k.label("ATT_OK")
            k("s_waitcnt lgkmcnt(0)")
            k("s_barrier")
            k(f"v_mov_b32 v5, {FLAG}")
            k("ds_read_b32 v2, v5")
            k("s_waitcnt lgkmcnt(0)")
            k("v_readfirstlane_b32 s9, v2")
            k("s_cmp_lg_u32 s9, 0")
            k("s_cbranch_scc1 ATT_SLOW")
        k("v_rcp_f32 v3, v3")
        for r in range(12): k(f"v_mul_f32 v{OO+r}, v{OO+r}, v3")
        for q in range(6): k(f"v_cvt_pk_bf16_f32 v{PP+q}, v{OO+2*q}, v{OO+2*q+1}")
        k("v_and_b32 v4, 31, v1")
        k("v_mul_u32_u24 v4, 40, v4")
        k("v_lshrrev_b32 v5, 5, v1")
        k("v_lshl_add_u32 v4, v5, 3, v4")
        k("s_lshl_b32 s9, s8, 11")
        k("v_add_u32 v4, s9, v4")
        k(f"ds_write_b64 v4, v[{PP}:{PP+1}]")
        k(f"ds_write_b64 v4, v[{PP+2}:{PP+3}] offset:16")
        k("s_mov_b32 exec_hi, 0")
        k(f"ds_write_b64 v4, v[{PP+4}:{PP+5}] offset:32")
        k("s_mov_b64 exec, -1")
        k("v_lshlrev_b32 v5, 3, v1")
        k("v_add_u32 v5, s9, v5")
        k("s_waitcnt lgkmcnt(0)")
        for i in range(3): k(f"ds_read_b64 v[{SS+2*i}:{SS+2*i+1}], v5 offset:{512*i}")
        for i in range(3):
            k(f"s_waitcnt lgkmcnt({2-i})")
            k(f"buffer_store_dwordx2 v[{SS+2*i}:{SS+2*i+1}], v{128+i}, s[24:27], 0 offen sc1")
        k("s_branch P4_START")
    finish(True)
    k.label("ATT_SLOW")
    k("s_waitcnt vmcnt(0)")
    for r in range(16): k(f"v_mov_b32 v{OO+r}, 0")
    k("v_mov_b32 v2, 0xff7fffff")
    k("s_mov_b32 s15, 0")
    k.label("ATT_SLOW_STAGE")
    k("s_barrier")
    k(f"s_mul_i32 s10, s15, {STAGE}")
    for i in range(5):
        k(f"s_add_u32 m0, s13, {8192*i}")
        k(f"s_add_u32 s14, s10, {8192*i}")
        k(f"buffer_load_dwordx4 v{VDMA}, s[16:19], s14 offen sc1 lds")
    k("s_cmp_lg_u32 s8, 0")
    k("s_cbranch_scc1 ATT_SLOW_NP")
    k(f"s_add_u32 m0, s13, {8192*5}")
    k(f"s_add_u32 s14, s10, {8192*5}")
    k(f"buffer_load_dwordx4 v{VDMA}, s[16:19], s14 offen sc1 lds")
    k.label("ATT_SLOW_NP")
    k("s_waitcnt vmcnt(0)")
    k("s_barrier")
    k(f"v_mov_b32 v5, v{AK}")
    k(f"v_mov_b32 v6, v{AKB}")
    k(f"v_mov_b32 v7, v{AV}")
    k("s_mov_b32 s9, 0")
    k.label("ATT_SLOW_TILE")
    k(f"ds_read_b128 v[{KA}:{KA+3}], v5")
    k(f"ds_read_b64 v[{KB}:{KB+1}], v6")
    k(f"ds_read_b128 v[{VF}:{VF+3}], v7")
    k(f"ds_read_b128 v[{VF+4}:{VF+7}], v7 offset:672")
    k("s_waitcnt lgkmcnt(0)")
    k(m16(SS, KA, Q1, "0"))
    k(m8(SS, KB, Q2, f"v[{SS}:{SS+15}]"))
    k(f"v_add_u32 v5, {KV_TILE}, v5")
    k(f"v_add_u32 v6, {KV_TILE}, v6")
    k(f"v_add_u32 v7, {KV_TILE}, v7")
    k(f"v_max_f32 v108, v{SS}, v{SS+1}")
    for r in range(2, 16): k(f"v_max_f32 v108, v108, v{SS+r}")
    k("v_mov_b32 v109, v108")
    k("v_permlane32_swap_b32 v108, v109")
    k("v_max_f32 v108, v108, v109")
    k("v_max_f32 v108, v108, v2")
    k("v_sub_f32 v109, v2, v108")
    k("v_exp_f32 v109, v109")
    k("v_mov_b32 v2, v108")
    for r in range(16): k(f"v_sub_f32 v{SS+r}, v{SS+r}, v108")
    for r in range(16): k(f"v_exp_f32 v{SS+r}, v{SS+r}")
    for r in range(16): k(f"v_mul_f32 v{OO+r}, v{OO+r}, v109")
    for q in range(8): k(f"v_cvt_pk_bf16_f32 v{PP+q}, v{SS+2*q}, v{SS+2*q+1}")
    k(m16(OO, VF, PP, f"v[{OO}:{OO+15}]"))
    k(m16(OO, VF + 4, PP + 4, f"v[{OO}:{OO+15}]"))
    k("s_add_u32 s9, s9, 1")
    k("s_cmp_lt_u32 s9, 16")
    k("s_cbranch_scc1 ATT_SLOW_TILE")
    k("s_add_u32 s15, s15, 1")
    k("s_cmp_lt_u32 s15, 4")
    k("s_cbranch_scc1 ATT_SLOW_STAGE")
    k("s_barrier")
    finish(False)

def narrow_ids(k):
    k("s_and_b32 s3, s2, 7")
    k("s_lshr_b32 s13, s2, 3")
    k("s_lshl_b32 s14, s3, 2")
    k("s_and_b32 s15, s13, 3")
    k("s_add_u32 s11, s14, s15")
    k("s_lshr_b32 s12, s13, 2")
    k("s_and_b32 s28, s31, 1")
    k("s_lshr_b32 s29, s31, 1           ; k half")
    k("s_lshl_b32 s9, s11, 6")
    k("s_lshl_b32 s10, s28, 5")
    k("s_add_u32 s30, s9, s10")

def narrow_loader_setup(k, Kdim, a_off, b_off):
    KH = Kdim // 2; NST = KH // 64; lda = Kdim * 2
    VA, VB, NS = 8, 12, 4
    k(f"s_mul_i32 s34, s29, {KH*2}")
    a_dma_rows32(k, VA, 30, lda, 34)
    k("v_lshlrev_b32 v2, 4, v1")
    k(f"s_mul_i32 s9, s12, {Kdim*160}")
    k(f"s_mul_i32 s10, s29, {KH*160}")
    k("s_add_u32 s9, s9, s10")
    k("s_mul_i32 s10, s28, 5120")
    k("s_add_u32 s9, s9, s10")
    k(f"v_add_u32 v{VB}, s9, v2")
    k(f"v_add_u32 v{VB+1}, 4096, v{VB}")
    k("s_lshl_b32 s13, s31, 12")
    k("s_mul_i32 s15, s29, 10240")
    k("s_mul_i32 s10, s28, 5120")
    k("s_add_u32 s15, s15, s10")
    wsrd(k, 16, S * Kdim * 2, a_off)
    wsrd(k, 20, 8 * Kdim * 160, b_off)
    def dmaA(st):
        k(f"s_add_u32 m0, s13, {(st % NS)*16384}")
        k(f"s_mov_b32 s14, {st*128}")
        for i in range(4):
            k(f"buffer_load_dwordx4 v{VA+i}, s[16:19], s14 offen offset:{i*1024} sc1 lds")
    def dmaB(st):
        slot = st % NS
        k(f"s_add_u32 m0, s15, {65536 + slot*20480}")
        k(f"s_mov_b32 s14, {st*10240}")
        for i in range(4):
            k(f"buffer_load_dwordx4 v{VB}, s[20:23], s14 offen offset:{i*1024} sc1 lds")
        k(f"s_add_u32 m0, s15, {65536 + slot*20480 + 4096}")
        k("s_nop 0")
        k(f"buffer_load_dwordx4 v{VB+1}, s[20:23], s14 offen sc1 lds")
    return Loader(k, NST, NS, dmaA, dmaB, 4, 5)

def narrow_compute(k, tag, Kdim, resid_is_input, gate_idx, final, pre_barrier):
    KH = Kdim // 2; NST = KH // 64; NS = 4
    RA, RB, AF, BF, ACC, RES, GT = 4, 6, 12, 28, 68, 108, 120
    k("v_and_b32 v2, 15, v1")
    k("v_lshrrev_b32 v3, 4, v1          ; g")
    k("v_lshrrev_b32 v10, 1, v2")
    k("v_lshlrev_b32 v2, 7, v2")
    k("s_lshl_b32 s13, s8, 12")
    k("v_add_u32 v2, s13, v2")
    for ks in range(2):
        k(f"v_add_u32 v11, {4*ks}, v3")
        k("v_xor_b32 v11, v11, v10")
        k(f"v_lshl_add_u32 v{RA+ks}, v11, 4, v2")
    k("v_lshrrev_b32 v2, 5, v1")
    k("v_lshlrev_b32 v2, 4, v2")
    k("v_bfe_u32 v10, v1, 4, 1")
    k("v_lshl_add_u32 v2, v10, 2, v2")
    k("v_bfe_u32 v10, v1, 2, 2")
    k("v_add_u32 v2, v2, v10")
    k("v_mul_u32_u24 v2, 160, v2")
    k("v_and_b32 v10, 3, v1")
    k("v_lshl_add_u32 v2, v10, 3, v2")
    k("s_mul_i32 s10, s29, 10240")
    k("s_add_u32 s10, s10, 65536")
    k(f"v_add_u32 v{RB}, s10, v2")
    k(f"v_add_u32 v{RB+1}, 40960, v{RB}")
    k("v_and_b32 v2, 15, v1")
    k("s_lshl_b32 s10, s29, 4")
    k("s_add_u32 s10, s10, s30")
    k("v_add_u32 v2, s10, v2")
    k("v_mul_u32_u24 v8, 1280, v2")
    k("s_mul_i32 s10, s12, 160")
    k("v_lshl_add_u32 v8, v3, 3, v8")
    k("v_add_u32 v8, s10, v8")
    k("s_mul_i32 s10, s12, 320")
    k("v_lshlrev_b32 v9, 4, v3")
    k("v_add_u32 v9, s10, v9")
    if resid_is_input: srd(k, 24, XP, S * D * 2)
    else: wsrd(k, 24, S * D * 2, WS_X1)
    if final: srd(k, 32, OUTP, S * D * 2)
    else: wsrd(k, 32, S * D * 2, WS_X1)
    wsrd(k, 36, 6 * 640 * 4, WS_MODV)
    XL, XG = 144, 148
    k("s_mul_i32 s9, s8, 3072")
    k("s_add_u32 s9, s9, 24576")
    k("s_lshl_b32 s10, s29, 4")
    k("s_add_u32 s10, s10, s30")
    k("s_mul_i32 s40, s12, 160")
    for i in range(3):
        k(f"v_add_u32 v10, {64*i}, v1")
        k("v_mul_u32_u24 v11, 6554, v10")
        k("v_lshrrev_b32 v11, 16, v11        ; row")
        k("v_mul_u32_u24 v140, 10, v11")
        k("v_sub_u32 v140, v10, v140         ; chunk")
        k("v_lshlrev_b32 v140, 4, v140")
        k("v_mul_u32_u24 v141, 176, v11")
        k(f"v_add3_u32 v{XL+i}, v141, v140, s9")
        k("v_add_u32 v11, s10, v11")
        k("v_mul_u32_u24 v11, 1280, v11")
        k(f"v_add3_u32 v{XG+i}, v11, v140, s40")
    k("v_cmp_gt_u32 vcc, 32, v1")
    k("v_mov_b32 v10, 0x7ffffff0")
    k(f"v_cndmask_b32 v{XG+2}, v10, v{XG+2}, vcc")
    k("v_and_b32 v10, 15, v1")
    k("v_mul_u32_u24 v10, 176, v10")
    k("v_lshrrev_b32 v11, 4, v1")
    k("v_lshlrev_b32 v11, 3, v11")
    k("v_add3_u32 v147, v10, v11, s9")
    pre_barrier()
    sc = " sc1"
    for nt in range(5):
        k(f"buffer_load_dwordx2 v[{RES+2*nt}:{RES+2*nt+1}], v8, s[24:27], 0 offen offset:{32*nt}{sc}")
    k(f"s_mov_b32 s14, {gate_idx*2560}")
    for nt in range(5):
        k(f"buffer_load_dwordx4 v[{GT+4*nt}:{GT+4*nt+3}], v9, s[36:39], s14 offen offset:{64*nt}{sc}")
    def reads(step):
        st, ks = divmod(step, 2); slot = st % NS; sb = step & 1
        a = [f"ds_read_b128 v[{AF+(sb*2+mb)*4}:{AF+(sb*2+mb)*4+3}], v{RA+ks} offset:{slot*16384 + mb*2048}" for mb in range(2)]
        out = []
        for nt in range(5):
            d = BF + (sb * 5 + nt) * 4
            g = [f"ds_read_b64_tr_b16 v[{d+2*j}:{d+2*j+1}], v{RB+(slot>>1)} offset:{(slot&1)*20480 + (32*ks+8*j)*160 + nt*32}" for j in range(2)]
            out.append((a if nt == 0 else []) + g)
        return out
    def mf(step, nt):
        sb = step & 1
        return [mfma16(ACC + (nt * 2 + mb) * 4, BF + (sb * 5 + nt) * 4, AF + (sb * 2 + mb) * 4, "0" if step == 0 else None) for mb in range(2)]
    compute_loop(k, NST, 2, reads, mf, 0, stamp=False)
    mark(k, 9 if not final else 15)
    k("s_barrier")
    k("v_lshlrev_b32 v2, 4, v1")
    k("s_mul_i32 s9, s8, 5120")
    k("v_add_u32 v3, s9, v2")
    k("s_xor_b32 s10, s8, 2")
    k("s_mul_i32 s10, s10, 5120")
    k("v_add_u32 v4, s10, v2")
    k("s_cmp_eq_u32 s29, 0")
    k(f"s_cbranch_scc1 {tag}_KH0")
    for nt in range(5):
        d = ACC + (nt * 2 + 0) * 4
        k(f"ds_write_b128 v3, v[{d}:{d+3}] offset:{1024*nt}")
    for nt in range(5):
        for r in range(4): k(f"v_mov_b32 v{ACC+(nt*2)*4+r}, v{ACC+(nt*2+1)*4+r}")
    k(f"s_branch {tag}_JOIN")
    k.label(f"{tag}_KH0")
    for nt in range(5):
        d = ACC + (nt * 2 + 1) * 4
        k(f"ds_write_b128 v3, v[{d}:{d+3}] offset:{1024*nt}")
    k.label(f"{tag}_JOIN")
    k("s_waitcnt lgkmcnt(0)")
    k("s_barrier")
    for nt in range(5):
        k(f"ds_read_b128 v[{BF+4*nt}:{BF+4*nt+3}], v4 offset:{1024*nt}")
    k("s_waitcnt vmcnt(0) lgkmcnt(0)")
    st_sc = "" if final else " sc1"
    for nt in range(5):
        d = ACC + nt * 8
        for r in range(4): k(f"v_add_f32 v{d+r}, v{d+r}, v{BF+4*nt+r}")
        k(f"v_lshlrev_b32 v12, 16, v{RES+2*nt}")
        k(f"v_and_b32 v13, 0xffff0000, v{RES+2*nt}")
        k(f"v_lshlrev_b32 v14, 16, v{RES+2*nt+1}")
        k(f"v_and_b32 v15, 0xffff0000, v{RES+2*nt+1}")
        for r in range(4): k(f"v_fmac_f32 v{12+r}, v{d+r}, v{GT+4*nt+r}")
        k(f"v_cvt_pk_bf16_f32 v{16+2*(nt%2)}, v12, v13")
        k(f"v_cvt_pk_bf16_f32 v{17+2*(nt%2)}, v14, v15")
        k(f"ds_write_b64 v147, v[{16+2*(nt%2)}:{17+2*(nt%2)}] offset:{32*nt}")
        if not final:
            t = 16 + 2 * (nt % 2)
            k(f"v_lshlrev_b32 v12, 16, v{t}")
            k(f"v_and_b32 v13, 0xffff0000, v{t}")
            k(f"v_lshlrev_b32 v14, 16, v{t+1}")
            k(f"v_and_b32 v15, 0xffff0000, v{t+1}")
            if nt == 0:
                k("v_add_f32 v20, v12, v13"); k("v_add_f32 v21, v14, v15")
                k("v_mul_f32 v22, v12, v12"); k("v_mul_f32 v23, v13, v13")
            else:
                k("v_add_f32 v20, v20, v12"); k("v_add_f32 v21, v21, v13")
                k("v_fmac_f32 v22, v12, v12"); k("v_fmac_f32 v23, v13, v13")
                k("v_add_f32 v20, v20, v14"); k("v_add_f32 v21, v21, v15")
            k("v_fmac_f32 v22, v14, v14"); k("v_fmac_f32 v23, v15, v15")
    k("s_waitcnt lgkmcnt(0)")
    for i in range(3): k(f"ds_read_b128 v[{BF+4*i}:{BF+4*i+3}], v{144+i}")
    for i in range(3):
        k(f"s_waitcnt lgkmcnt({2-i})")
        k(f"buffer_store_dwordx4 v[{BF+4*i}:{BF+4*i+3}], v{148+i}, s[32:35], 0 offen{st_sc}")
    if not final:
        k("v_add_f32 v20, v20, v21")
        k("v_add_f32 v21, v22, v23")
        for sw in ("v_permlane32_swap_b32", "v_permlane16_swap_b32"):
            k("v_mov_b32 v22, v20"); k("v_mov_b32 v23, v21")
            k(f"{sw} v20, v22"); k(f"{sw} v21, v23")
            k("v_add_f32 v20, v20, v22"); k("v_add_f32 v21, v21, v23")
        wsrd(k, 24, 2048 * 64, WS_STAT)
        k("v_and_b32 v2, 15, v1")
        k("s_lshl_b32 s10, s29, 4")
        k("s_add_u32 s10, s10, s30")
        k("v_add_u32 v2, s10, v2")
        k("v_lshlrev_b32 v2, 6, v2")
        k("s_lshl_b32 s10, s12, 3")
        k("s_mov_b64 exec, 0xffff")
        k("buffer_store_dwordx2 v[20:21], v2, s[24:27], s10 offen sc1")
        k("s_mov_b64 exec, -1")

def up_ids(k):
    k("s_and_b32 s3, s2, 7")
    k("s_lshr_b32 s13, s2, 3")
    k("s_and_b32 s14, s3, 1")
    k("s_lshl_b32 s14, s14, 3")
    k("s_and_b32 s15, s13, 7")
    k("s_add_u32 s11, s14, s15")
    k("s_lshr_b32 s14, s3, 1")
    k("s_lshl_b32 s14, s14, 2")
    k("s_lshr_b32 s15, s13, 3")
    k("s_add_u32 s12, s14, s15")

def up_loader_setup(k):
    VA, VB, NS = 8, 12, 4
    k("s_lshl_b32 s9, s11, 7")
    k("s_lshl_b32 s10, s31, 5")
    k("s_add_u32 s9, s9, s10")
    a_dma_rows32(k, VA, 9, 1280)
    k("v_lshlrev_b32 v2, 4, v1")
    k("s_mul_i32 s9, s31, 6144")
    k(f"s_mul_i32 s10, s12, {10*24576}")
    k("s_add_u32 s9, s9, s10")
    k(f"v_add_u32 v{VB}, s9, v2")
    k(f"v_add_u32 v{VB+1}, 4096, v{VB}")
    k("s_lshl_b32 s13, s31, 12")
    k("s_mul_i32 s15, s31, 6144")
    wsrd(k, 16, S * D * 2, WS_X1)
    wsrd(k, 20, 16 * 10 * 24576, WS_WUP)
    def dmaA(st):
        k(f"s_add_u32 m0, s13, {(st % NS)*16384}")
        k(f"s_mov_b32 s14, {st*128}")
        for i in range(4):
            k(f"buffer_load_dwordx4 v{VA+i}, s[16:19], s14 offen offset:{i*1024} sc1 lds")
    def dmaB(st):
        slot = st % NS
        k(f"s_add_u32 m0, s15, {65536 + slot*24576}")
        k(f"s_mov_b32 s14, {st*24576}")
        for i in range(4):
            k(f"buffer_load_dwordx4 v{VB}, s[20:23], s14 offen offset:{i*1024} sc1 lds")
        k(f"s_add_u32 m0, s15, {65536 + slot*24576 + 4096}")
        k("s_nop 0")
        for i in range(2):
            k(f"buffer_load_dwordx4 v{VB+1}, s[20:23], s14 offen offset:{i*1024} sc1 lds")
    return Loader(k, 10, NS, dmaA, dmaB, 4, 6)

def up_compute(k, pre_barrier):
    AF, BF, ACC, RA, RB, NS = 16, 24, 72, 4, 8, 4
    k("v_and_b32 v2, 31, v1")
    k("v_lshrrev_b32 v3, 5, v1")
    k("v_bfe_u32 v14, v2, 1, 3")
    k("v_lshlrev_b32 v2, 7, v2")
    k("s_lshl_b32 s10, s8, 12")
    k("v_add_u32 v2, s10, v2")
    for ks in range(4):
        k(f"v_add_u32 v15, {2*ks}, v3")
        k("v_xor_b32 v15, v15, v14")
        k(f"v_lshl_add_u32 v{RA+ks}, v15, 4, v2")
    k("v_lshrrev_b32 v2, 5, v1")
    k("v_bfe_u32 v3, v1, 2, 2")
    k("v_lshl_add_u32 v2, v2, 3, v3")
    k("v_mul_u32_u24 v2, 192, v2")
    k("v_bfe_u32 v14, v1, 4, 1")
    k("v_lshl_add_u32 v2, v14, 5, v2")
    k("v_and_b32 v14, 3, v1")
    k("v_lshl_add_u32 v2, v14, 3, v2")
    k(f"v_add_u32 v{RB}, 65536, v2")
    k(f"v_add_u32 v{RB+1}, {65536+49152}, v2")
    k("v_and_b32 v2, 31, v1")
    k("s_lshl_b32 s9, s11, 7")
    k("s_lshl_b32 s10, s8, 5")
    k("s_add_u32 s9, s9, s10")
    k("v_add_u32 v2, s9, v2")
    k("v_lshlrev_b32 v2, 6, v2")
    wsrd(k, 44, 2048 * 64, WS_STAT)
    GST, GL, GG = 131072, 200, 206
    k("s_mul_i32 s9, s8, 6656")
    k(f"s_add_u32 s9, s9, {GST}")
    k("s_lshl_b32 s10, s11, 7")
    k("s_lshl_b32 s34, s8, 5")
    k("s_add_u32 s10, s10, s34")
    k("s_mul_i32 s34, s12, 192")
    for i in range(6):
        k(f"v_add_u32 v14, {64*i}, v1")
        k("v_mul_u32_u24 v15, 5462, v14")
        k("v_lshrrev_b32 v15, 16, v15        ; row")
        k("v_mul_u32_u24 v16, 12, v15")
        k("v_sub_u32 v16, v14, v16           ; chunk")
        k("v_lshlrev_b32 v16, 4, v16")
        k("v_mul_u32_u24 v17, 208, v15")
        k(f"v_add3_u32 v{GL+i}, v17, v16, s9")
        k("v_add_u32 v15, s10, v15")
        k("v_mul_u32_u24 v15, 3072, v15")
        k(f"v_add3_u32 v{GG+i}, v15, v16, s34")
    k("v_and_b32 v14, 31, v1")
    k("v_mul_u32_u24 v14, 208, v14")
    k("v_lshrrev_b32 v15, 5, v1")
    k("v_lshlrev_b32 v15, 4, v15")
    k("v_add3_u32 v212, v14, v15, s9")
    pre_barrier()
    STT = 168
    for q in range(4): k(f"buffer_load_dwordx4 v[{STT+4*q}:{STT+4*q+3}], v2, s[44:47], 0 offen offset:{16*q} sc1")
    def reads(step):
        st, ks = divmod(step, 4); slot = st % NS; sb = step & 1
        a = f"ds_read_b128 v[{AF+4*sb}:{AF+4*sb+3}], v{RA+ks} offset:{slot*16384}"
        out = []
        for nt in range(6):
            d = BF + (sb * 6 + nt) * 4
            off = (slot & 1) * 24576 + (nt // 3) * 12288 + (nt % 3) * 64
            g = [f"ds_read_b64_tr_b16 v[{d+2*j}:{d+2*j+1}], v{RB+(slot>>1)} offset:{off + (16*ks+4*j)*192}" for j in range(2)]
            out.append(([a] if nt == 0 else []) + g)
        return out
    def mf(step, nt):
        sb = step & 1
        return [mfma32(ACC + 16 * nt, BF + (sb * 6 + nt) * 4, AF + 4 * sb, "0" if step == 0 else None)]
    compute_loop(k, 10, 4, reads, mf, 0, stamp=False)
    mark(k, 12)
    k("s_waitcnt vmcnt(0)")
    k(f"v_add_f32 v10, v{STT}, v{STT+2}")
    k(f"v_add_f32 v11, v{STT+1}, v{STT+3}")
    for q in range(2, 8):
        k(f"v_add_f32 v10, v10, v{STT+2*q}")
        k(f"v_add_f32 v11, v11, v{STT+2*q+1}")
    k("s_barrier                        ; u', t landed")
    k(f"s_mov_b32 s9, {hex(f2u(1.0/640))}")
    k("v_mul_f32 v10, s9, v10            ; mean")
    k("v_mul_f32 v13, v10, v10")
    k("v_fma_f32 v11, v11, s9, -v13      ; variance")
    k("v_max_f32 v11, 0, v11")
    k("v_add_f32 v11, 0x3727c5ac, v11")
    k("v_rsq_f32 v11, v11")
    k("s_nop 0")
    k("v_mul_f32 v13, v10, v11")
    k("v_sub_f32 v12, 0, v13")
    k("v_mov_b32 v13, v12")
    k("v_mov_b32 v10, v11")
    k("v_lshrrev_b32 v14, 5, v1")
    k("v_lshlrev_b32 v14, 4, v14")
    k("v_add_u32 v14, 32768, v14")
    wsrd(k, 24, S * F * 2, WS_G)
    k("v_and_b32 v2, 31, v1")
    k("s_lshl_b32 s9, s11, 7")
    k("s_lshl_b32 s10, s8, 5")
    k("s_add_u32 s9, s9, s10")
    k("v_add_u32 v2, s9, v2")
    k("v_mul_u32_u24 v2, 3072, v2")
    k("v_lshrrev_b32 v3, 5, v1")
    k("v_lshlrev_b32 v3, 4, v3")
    k("s_mul_i32 s9, s12, 192")
    k("v_add3_u32 v2, v2, v3, s9")
    c1 = -2.0 * 0.7978845608028654 * 1.4426950408889634
    c2 = c1 * 0.044715
    for r, c in ((4, c1), (5, c1), (6, c2), (7, c2), (8, 1.0), (9, 1.0)): k(f"v_mov_b32 v{r}, {hex(f2u(c))}")
    pk = lambda r: f"v[{r}:{r+1}]"
    U0, U1 = 40, 168
    def ut_reads(grp):
        nt, jp = divmod(grp, 2); U = (U0, U1)[grp & 1]
        for mat in range(2):
            for jj in range(2):
                col = 32 * nt + 16 * jp + 8 * jj
                k(f"ds_read_b128 v[{U+8*mat+4*jj}:{U+8*mat+4*jj+3}], v14 offset:{(mat*96 + col)*4}")
                k(f"ds_read_b128 v[{U+16+8*mat+4*jj}:{U+16+8*mat+4*jj+3}], v14 offset:{768 + (mat*96 + col)*4}")
    ut_reads(0)
    for grp in range(6):
        nt, jp = divmod(grp, 2); U = (U0, U1)[grp & 1]
        g = ACC + 16 * nt + 8 * jp; u = g + 48
        T = 16 + 8 * (grp % 2)
        if grp + 1 < 6: ut_reads(grp + 1)
        k(f"s_waitcnt lgkmcnt({8 if grp + 1 < 6 else 0})")
        for mat in range(2):
            for r in range(0, 8, 2):
                k(f"v_pk_fma_f32 {pk(U+16+8*mat+r)}, {pk(U+8*mat+r)}, v[12:13], {pk(U+16+8*mat+r)}")
        for mat in range(2):
            base = g if mat == 0 else u
            for r in range(0, 8, 2):
                k(f"v_pk_fma_f32 {pk(base+r)}, {pk(base+r)}, v[10:11], {pk(U+16+8*mat+r)}")
        for r in range(0, 8, 2): k(f"v_pk_mul_f32 {pk(T+r)}, {pk(g+r)}, {pk(g+r)}")
        for r in range(0, 8, 2): k(f"v_pk_fma_f32 {pk(T+r)}, {pk(T+r)}, v[6:7], v[4:5]")
        for r in range(0, 8, 2): k(f"v_pk_mul_f32 {pk(T+r)}, {pk(T+r)}, {pk(g+r)}")
        for r in range(8): k(f"v_exp_f32 v{T+r}, v{T+r}")
        for r in range(0, 8, 2): k(f"v_pk_mul_f32 {pk(g+r)}, {pk(g+r)}, {pk(u+r)}")
        for r in range(0, 8, 2): k(f"v_pk_add_f32 {pk(T+r)}, {pk(T+r)}, v[8:9]")
        for r in range(8): k(f"v_rcp_f32 v{T+r}, v{T+r}")
        for r in range(0, 8, 2): k(f"v_pk_mul_f32 {pk(T+r)}, {pk(T+r)}, {pk(g+r)}")
        t = 32 + 4 * (grp % 2)
        for q in range(4): k(f"v_cvt_pk_bf16_f32 v{t+q}, v{T+2*q}, v{T+2*q+1}")
        k(f"v_permlane32_swap_b32 v{t}, v{t+2}")
        k(f"v_permlane32_swap_b32 v{t+1}, v{t+3}")
        k(f"ds_write_b128 v212, v[{t}:{t+3}] offset:{64*nt + 32*jp}")
    k("s_waitcnt lgkmcnt(0)")
    for i in range(6): k(f"ds_read_b128 v[{ACC+4*i}:{ACC+4*i+3}], v{200+i}")
    for i in range(6):
        k(f"s_waitcnt lgkmcnt({5-i})")
        k(f"buffer_store_dwordx4 v[{ACC+4*i}:{ACC+4*i+3}], v{206+i}, s[24:27], 0 offen sc1")

def phases456(k):
    k.label("P4_START")
    mark(k, 25)
    k("s_waitcnt vmcnt(0)")
    mark(k, 26)
    k("s_barrier                        ; B_h")
    mark(k, 7)
    narrow_ids(k)
    k("s_cmp_lt_u32 s8, 4")
    k("s_cbranch_scc1 P4_COMPUTE")
    k("s_cmp_lg_u32 s8, 7")
    k("s_cbranch_scc1 P4L_NF")
    set_flag(k, FL_O, 2)
    k.label("P4L_NF")
    L = narrow_loader_setup(k, 640, WS_O, WS_WOP)
    poll_all(k, "P4L_T", FL_T, 20)
    L.preloadB()
    k("s_cmp_lg_u32 s8, 4")
    k("s_cbranch_scc1 P4L_GO")
    poll_range(k, "P4L_O", FL_O, lambda: k("s_lshl_b32 s9, s3, 5"), 32)
    k.label("P4L_GO")
    k("s_barrier                        ; B_i")
    mark(k, 8)
    L.run()
    k("s_barrier")
    k("s_barrier")
    k("s_lshr_b32 s35, s11, 1")
    k("s_lshl_b32 s35, s35, 4")
    k("s_and_b32 s36, s11, 1")
    k("s_lshl_b32 s36, s36, 3")
    k("s_add_u32 s35, s35, s36")
    k("s_add_u32 s35, s35, s12")
    up_ids(k)
    L = up_loader_setup(k)
    L.preloadB()
    k("s_barrier")
    k("s_cmp_lg_u32 s8, 4")
    k("s_cbranch_scc1 P5L_GO")
    set_flag(k, FL_X1, 35)
    poll_range(k, "P5L_X", FL_X1, lambda: k("s_lshl_b32 s9, s11, 4"), 16)
    k.label("P5L_GO")
    k("s_barrier                        ; B_k")
    mark(k, 11)
    def ut_issue():
        wsrd(k, 24, 16 * 384 * 4, WS_UT)
        k("v_lshlrev_b32 v2, 4, v1")
        k("s_mul_i32 s14, s12, 1536")
        k("s_and_b32 s9, s31, 1")
        k("s_lshl_b32 s9, s9, 10")
        k("s_add_u32 s14, s14, s9")
        k("s_add_u32 m0, s9, 32768")
        k("s_nop 0")
        k("buffer_load_dwordx4 v2, s[24:27], s14 offen sc1 lds")
        return 1
    L.run(after_barrier={8: ut_issue})
    k("s_waitcnt vmcnt(0)")
    k("s_barrier                        ; u', t landed")
    k("s_lshl_b32 s35, s11, 4")
    k("s_add_u32 s35, s35, s12")
    narrow_ids(k)
    L = narrow_loader_setup(k, 1536, WS_G, WS_WDP)
    poll_all(k, "P6L_O", FL_O, 20)
    L.preloadB()
    k("s_barrier")
    k("s_cmp_lg_u32 s8, 4")
    k("s_cbranch_scc1 P6L_GO")
    set_flag(k, FL_G, 35)
    def gfirst():
        k("s_lshr_b32 s9, s11, 1")
        k("s_lshl_b32 s9, s9, 4")
    poll_range(k, "P6L_G", FL_G, gfirst, 16)
    k.label("P6L_GO")
    k("s_barrier                        ; B_m")
    mark(k, 14)
    L.run()
    k("s_barrier")
    k("s_barrier")
    k("s_branch F_END")
    k.label("P4_COMPUTE")
    narrow_compute(k, "P4C", 640, True, 2, False, lambda: k("s_barrier                        ; B_i"))
    mark(k, 29)
    k("s_waitcnt vmcnt(0)")
    mark(k, 30)
    k("s_barrier                        ; B_j")
    mark(k, 10)
    up_ids(k)
    up_compute(k, lambda: k("s_barrier                        ; B_k"))
    mark(k, 27)
    k("s_waitcnt vmcnt(0)")
    mark(k, 28)
    k("s_barrier                        ; B_l")
    mark(k, 13)
    narrow_ids(k)
    narrow_compute(k, "P6C", 1536, False, 5, True, lambda: k("s_barrier                        ; B_m"))

def gen_fused():
    k = K()
    k("s_cmp_ge_u32 s2, 256")
    k("s_cbranch_scc1 F_END")
    k(f"s_load_dwordx8 s[64:71], s[0:1], 0")
    k(f"s_load_dwordx8 s[72:79], s[0:1], 32")
    k(f"s_load_dwordx8 s[80:87], s[0:1], 64")
    k("v_and_b32 v1, 63, v0")
    k("v_lshrrev_b32 v2, 6, v0")
    k("s_nop 0")
    k("v_readfirstlane_b32 s8, v2       ; wave")
    k("s_and_b32 s31, s8, 3")
    phase01(k)
    phase2_setup(k)
    phase2_loader(k)
    phase2_spare(k)
    phase2_compute(k)
    phase3(k)
    phases456(k)
    k.label("F_END")
    k("s_endpgm")
    k.fix_hazards()
    return NAME, header(NAME) + k.text() + descriptor(NAME, 232), (256, 512, 163840)

if __name__ == "__main__":
    import sys
    HEAD = open("adaLN_cond__mha_block__geglu_ffn__prompt.s.ref").read().split("; Override launch")[0]
    n, t, (g, b, l) = gen_fused()
    s = HEAD + f"; @launch grid=({g},1,1) block=({b},1,1) lds={l}\n" + '.amdgcn_target "amdgcn-amd-amdhsa--gfx950"\n' + t
    out = sys.argv[1] if len(sys.argv) > 1 else "fused.s"
    open(out, "w").write(s)
    print("wrote", out, len(s))
```

```python
from common import *
from k_gemm2 import mfma32, mfma16, compute_loop, f2u
from k_attn2 import VM, m16, m8
import os, struct

NAME = "adaLN_cond__mha_block__geglu_ffn__prompt_kernel"
XP, WQKVP, WOP_, WGP, WUP_, WDP_, CP, WMODP, OUTP, DBGP, WSP = 64, 66, 68, 72, 74, 76, 78, 80, 82, 84, 86
NONCE = 60
CTL = 163584
SCR = 131072
STOP = int(os.environ.get("STOP", 99))
TIMEOUT = 30000

def wsrd(k, s, nbytes, off): srd(k, s, WSP, nbytes, off)
def mark(k, i): k(f"; MARK {i}")

APF = bool(os.environ.get("APF"))
def apf_rows(k, off, nbytes, row0_fn, lda, nrows_log2, first_line, nlines, sharer_fn, per, vt, vdst, khalf=None, tid="v0"):
    wsrd(k, 52, nbytes, off)
    for i in range((per + 255) // 256):
        sharer_fn()
        k(f"s_mul_i32 s9, s9, {per}")
        if i: k(f"s_add_u32 s9, s9, {256 * i}")
        k(f"v_add_u32 v{vt}, s9, {tid}")
        sh = nrows_log2 + (1 if khalf else 0)
        k(f"v_lshrrev_b32 v{vt+1}, {sh}, v{vt}")
        if khalf: k(f"v_bfe_u32 v{vt+2}, v{vt}, {nrows_log2}, 1")
        k(f"v_and_b32 v{vt}, {(1 << nrows_log2) - 1}, v{vt}")
        row0_fn()
        k(f"v_add_u32 v{vt}, s9, v{vt}")
        k(f"s_mov_b32 s9, {lda}")
        k(f"v_mul_lo_u32 v{vt}, s9, v{vt}")
        if first_line: k(f"v_add_u32 v{vt+1}, {first_line}, v{vt+1}")
        k(f"v_lshl_add_u32 v{vt}, v{vt+1}, 7, v{vt}")
        if khalf:
            k(f"v_mul_u32_u24 v{vt+2}, {khalf}, v{vt+2}")
            k(f"v_add_u32 v{vt}, v{vt}, v{vt+2}")
        if 256 * (i + 1) > per:
            k(f"v_cmp_gt_u32 vcc, {per - 256 * i}, {tid}")
            k(f"v_mov_b32 v{vt+1}, 0x7ffffff0")
            k(f"v_cndmask_b32 v{vt}, v{vt+1}, v{vt}, vcc")
        k(f"buffer_load_dword v{vdst+i}, v{vt}, s[52:55], 0 offen sc1")

APF2 = os.environ.get("APF2", "0") != "0"
def apf_loader(k, *args, **kw):
    def f():
        per = args[8]
        k("v_and_b32 v16, 255, v0")
        apf_rows(k, *args, tid="v16", **kw)
        return (per + 255) // 256
    return f

OLDPOLL = bool(os.environ.get('OLDPOLL'))
def poll_old(k, tag, vaddr, mask, vtmp, waitall=True):
    k("s_mov_b32 s14, 0")
    k.label(f"{tag}_P")
    if mask == "lo32":
        k("s_mov_b32 exec_lo, -1"); k("s_mov_b32 exec_hi, 0")
    else:
        k(f"s_mov_b64 exec, {mask}")
    k(f"buffer_load_dword v{vtmp}, v{vaddr}, s[56:59], 0 offen sc1")
    k("s_waitcnt vmcnt(0)")
    k(f"v_cmp_ne_u32 vcc, s{NONCE}, v{vtmp}")
    k("s_mov_b64 exec, -1")
    k("s_cmp_eq_u64 vcc, 0")
    k(f"s_cbranch_scc1 {tag}_R")
    k("s_add_u32 s14, s14, 1")
    k(f"s_cmp_gt_u32 s14, {TIMEOUT}")
    k(f"s_cbranch_scc1 {tag}_R")
    k("s_sleep 2")
    k(f"s_branch {tag}_P")
    k.label(f"{tag}_R")

def poll_new(k, tag, vaddr, mask, vtmp, waitall=True):
    def setmask():
        if mask == "lo32":
            k("s_mov_b32 exec_lo, -1"); k("s_mov_b32 exec_hi, 0")
        else:
            k(f"s_mov_b64 exec, {mask}")
    k("s_mov_b32 s14, 0")
    setmask()
    k("s_waitcnt vmcnt(0)")
    k(f"buffer_load_dword v226, v{vaddr}, s[56:59], 0 offen sc1")
    k.label(f"{tag}_P")
    k(f"buffer_load_dword v227, v{vaddr}, s[56:59], 0 offen sc1")
    k("s_waitcnt vmcnt(1)")
    k(f"v_cmp_ne_u32 vcc, s{NONCE}, v226")
    k("s_cmp_eq_u64 vcc, 0")
    k(f"s_cbranch_scc1 {tag}_R")
    k(f"buffer_load_dword v226, v{vaddr}, s[56:59], 0 offen sc1")
    k("s_waitcnt vmcnt(1)")
    k(f"v_cmp_ne_u32 vcc, s{NONCE}, v227")
    k("s_cmp_eq_u64 vcc, 0")
    k(f"s_cbranch_scc1 {tag}_R")
    k("s_add_u32 s14, s14, 1")
    k(f"s_cmp_gt_u32 s14, {TIMEOUT}")
    k(f"s_cbranch_scc0 {tag}_P")
    k.label(f"{tag}_R")
    k("s_mov_b64 exec, -1")

def poll(k, *a, **kw): return (poll_old if OLDPOLL else poll_new)(k, *a, **kw)

def flag_srd(k): wsrd(k, 56, 7 * 256 * 128, WS_FLG)

def poll_range(k, tag, base, first_sgpr_expr, n, v=20):
    flag_srd(k)
    first_sgpr_expr()
    k(f"v_and_b32 v{v}, 63, v0")
    k(f"v_add_u32 v{v}, s9, v{v}")
    k(f"v_lshlrev_b32 v{v}, 7, v{v}")
    if base: k(f"v_add_u32 v{v}, {base}, v{v}")
    poll(k, tag, v, "-1" if n == 64 else ("lo32" if n == 32 else hex((1 << n) - 1)), v + 1)

def poll_all(k, tag, base, v=20):
    flag_srd(k)
    k(f"v_and_b32 v{v}, 63, v0")
    k(f"v_lshlrev_b32 v{v}, 7, v{v}")
    k(f"v_add_u32 v{v}, {base}, v{v}")
    for q in range(1, 4): k(f"v_add_u32 v{v+q}, {q * 64 * 128}, v{v}")
    k("s_mov_b32 s14, 0")
    k.label(f"{tag}_P")
    for q in range(4): k(f"buffer_load_dword v{v+4+q}, v{v+q}, s[56:59], 0 offen sc1")
    k("s_waitcnt vmcnt(0)")
    k(f"v_cmp_ne_u32 vcc, s{NONCE}, v{v+4}")
    for q in range(1, 4):
        k(f"v_cmp_ne_u32 s[62:63], s{NONCE}, v{v+4+q}")
        k("s_or_b64 vcc, vcc, s[62:63]")
    k("s_cmp_eq_u64 vcc, 0")
    k(f"s_cbranch_scc1 {tag}_R")
    k("s_add_u32 s14, s14, 1")
    k(f"s_cmp_gt_u32 s14, {TIMEOUT}")
    k(f"s_cbranch_scc1 {tag}_R")
    k("s_sleep 2")
    k(f"s_branch {tag}_P")
    k.label(f"{tag}_R")

def set_flag(k, base, idx_sgpr, v=20):
    flag_srd(k)
    k(f"s_lshl_b32 s9, s{idx_sgpr}, 7")
    k(f"s_add_u32 s9, s9, {base}")
    k(f"v_mov_b32 v{v}, s9")
    k(f"v_mov_b32 v{v+1}, s{NONCE}")
    k("s_mov_b64 exec, 1")
    k(f"buffer_store_dword v{v+1}, v{v}, s[56:59], 0 offen sc1")
    k("s_mov_b64 exec, -1")

LDIAG = [25, 26, 27]
class Loader:
    def __init__(self, k, nst, nslots, dmaA, dmaB, nA, nB):
        self.k, self.nst, self.ns, self.dmaA, self.dmaB, self.nA, self.nB = k, nst, nslots, dmaA, dmaB, nA, nB
        self.ops = []
    def A(self, st): self.dmaA(st); self.ops += [st] * self.nA
    def B(self, st): self.dmaB(st); self.ops += [st] * self.nB
    def extra(self, n): self.ops += ["x"] * n
    def drained(self): self.ops = ["done"] if False else []
    def wait(self, st):
        idx = [i for i, t in enumerate(self.ops) if t == st]
        n = len(self.ops) - 1 - max(idx) if idx else len(self.ops)
        self.k(f"s_waitcnt vmcnt({min(63, n)})")
    def preloadB(self):
        for st in range(min(self.ns - 1, self.nst)): self.B(st)
    def run(self, after_barrier=None, tail=None, prefetch=None):
        k = self.k; up = min(self.ns - 1, self.nst)
        if prefetch is not None and APF2:
            self.A(0)
            self.extra(prefetch())
            self.wait(0)
            k("s_barrier")
            k("s_waitcnt vmcnt(0)")
            if os.environ.get("LDIAG"): mark(k, LDIAG.pop(0))
            for st in range(1, up): self.A(st)
        else:
            for st in range(up): self.A(st)
            self.wait(0)
            k("s_barrier")
        issued = up
        for s in range(self.nst - 1):
            self.wait(s + 1)
            k("s_barrier")
            if issued < self.nst:
                self.A(issued); self.B(issued); issued += 1
                if issued == self.nst and tail: self.extra(tail())
            if after_barrier and (s + 1) in after_barrier: self.extra(after_barrier[s + 1]())

def a_dma_rows32(k, VA, row0_sgpr, lda, koff_sgpr=None):
    k("v_lshrrev_b32 v2, 3, v1")
    k("v_lshrrev_b32 v3, 4, v1")
    k("v_and_b32 v4, 7, v1")
    k(f"v_add_u32 v2, s{row0_sgpr}, v2")
    k(f"s_mov_b32 s10, {lda}")
    k("v_mul_lo_u32 v2, s10, v2")
    if koff_sgpr is not None: k(f"v_add_u32 v2, s{koff_sgpr}, v2")
    for i in range(4):
        k(f"v_xor_b32 v5, {(i&1)*4}, v3")
        k("v_xor_b32 v5, v5, v4")
        k("v_lshlrev_b32 v5, 4, v5")
        k(f"v_add_u32 v5, {i*8*lda - i*1024}, v5")
        k(f"v_add_u32 v{VA+i}, v2, v5")

def phase01(k):
    X, C0, W0, AC, T = 8, 32, 40, 64, 72
    k("s_and_b32 s13, s2, 3             ; kq")
    k("s_lshr_b32 s14, s2, 2")
    k("v_lshrrev_b32 v5, 3, v0")
    k("v_and_b32 v6, 7, v0")
    k("s_mul_i32 s15, s13, 160")
    k("v_add_u32 v7, s15, v5")
    k("v_mul_u32_u24 v5, 7680, v7")
    k("v_lshlrev_b32 v6, 4, v6")
    k("s_lshl_b32 s15, s14, 7")
    k("v_add3_u32 v5, v5, v6, s15")
    k("v_lshrrev_b32 v3, 4, v0")
    k("s_lshl_b32 s15, s2, 3")
    k("v_add_u32 v3, s15, v3")
    k("v_mul_u32_u24 v3, 1280, v3")
    k("v_and_b32 v4, 15, v0")
    k("v_lshl_add_u32 v3, v4, 4, v3")
    k("s_waitcnt lgkmcnt(0)")
    srd(k, 16, XP, S * D * 2)
    wsrd(k, 20, 4 * 3840 * 4, WS_MODP)
    wsrd(k, 24, S * D * 2, WS_H)
    srd(k, 32, CP, 1280)
    srd(k, 36, WMODP, 640 * 7680)
    k("v_lshlrev_b32 v6, 1, v7")
    k("v_mov_b32 v28, 0x7ffffff0")
    k("v_cmp_gt_u32 vcc, 256, v0")
    k("v_cndmask_b32 v29, v28, v5, vcc")
    k("v_cndmask_b32 v30, v28, v6, vcc")
    def gemv_loads():
        k(f"buffer_load_dwordx4 v[{W0}:{W0+3}], v5, s[36:39], 0 offen")
        k(f"s_mov_b32 s15, {64*7680}")
        k(f"buffer_load_dwordx4 v[{W0+4}:{W0+7}], v5, s[36:39], s15 offen")
        k(f"s_mov_b32 s15, {128*7680}")
        k(f"buffer_load_dwordx4 v[{W0+8}:{W0+11}], v29, s[36:39], s15 offen")
        k(f"buffer_load_ushort v{C0}, v6, s[32:35], 0 offen")
        k(f"buffer_load_ushort v{C0+1}, v6, s[32:35], 0 offen offset:128")
        k(f"buffer_load_ushort v{C0+2}, v30, s[32:35], 0 offen offset:256")
    def x_loads(tag):
        k("s_cmp_ge_u32 s8, 2")
        k(f"s_cbranch_scc1 {tag}")
        for i in range(5):
            k(f"buffer_load_dwordx4 v[{X+4*i}:{X+4*i+3}], v3, s[16:19], 0 offen offset:{256*i}")
        k.label(tag)
    k("s_cmp_ge_u32 s2, 80")
    k("s_cbranch_scc1 P0_LATE")
    gemv_loads()
    x_loads("P0_NOX1")
    k("s_branch P0_ISSUED")
    k.label("P0_LATE")
    x_loads("P0_NOX2")
    k("s_waitcnt vmcnt(0)")
    k("s_barrier")
    k("s_cmp_ge_u32 s14, 60")
    k("s_cbranch_scc1 P0_ISSUED")
    gemv_loads()
    k.label("P0_ISSUED")
    k("s_cmp_lg_u32 s8, 3")
    k("s_cbranch_scc1 P0_NOCTL")
    k(f"v_lshlrev_b32 v11, 2, v1")
    k(f"v_add_u32 v11, {CTL}, v11")
    k("v_mov_b32 v12, 0")
    k("ds_write_b32 v11, v12")
    k.label("P0_NOCTL")
    k("s_cmp_ge_u32 s8, 4")
    k("s_cbranch_scc1 P0_NOSETUP")
    phase2_setup(k)
    k.label("P0_NOSETUP")
    k("s_cmp_ge_u32 s14, 60")
    k("s_cbranch_scc1 P0_BA")
    k("s_cmp_ge_u32 s2, 80")
    k("s_cbranch_scc1 P0_W0")
    k("s_cmp_ge_u32 s8, 2")
    k("s_cbranch_scc1 P0_W0")
    k("s_waitcnt vmcnt(5)")
    k("s_branch P0_W1")
    k.label("P0_W0")
    k("s_waitcnt vmcnt(0)")
    k.label("P0_W1")
    k("s_mov_b32 s15, 0xbfb8aa3b")
    for i in range(3): k(f"v_lshlrev_b32 v{C0+i}, 16, v{C0+i}")
    for i in range(3): k(f"v_mul_f32 v{T+i}, s15, v{C0+i}")
    for i in range(3): k(f"v_exp_f32 v{T+i}, v{T+i}")
    for i in range(3): k(f"v_add_f32 v{T+i}, 1.0, v{T+i}")
    for i in range(3): k(f"v_rcp_f32 v{T+i}, v{T+i}")
    for i in range(3): k(f"v_mul_f32 v{C0+i}, v{C0+i}, v{T+i}")
    for i in range(3): bf16_round_f32(k, C0 + i, C0 + i, T)
    for i in range(3):
        for j in range(4):
            k(f"v_lshlrev_b32 v{T}, 16, v{W0+4*i+j}")
            k(f"v_and_b32 v{T+1}, 0xffff0000, v{W0+4*i+j}")
            op = "v_mul_f32" if i == 0 else "v_fmac_f32"
            k(f"{op} v{AC+2*j}, v{C0+i}, v{T}")
            k(f"{op} v{AC+2*j+1}, v{C0+i}, v{T+1}")
    for j in range(8):
        k(f"v_add_f32_dpp v{AC+j}, v{AC+j}, v{AC+j} row_ror:8 row_mask:0xf bank_mask:0xf")
    k("v_lshrrev_b32 v5, 4, v0")
    k("v_lshlrev_b32 v5, 8, v5")
    k("v_and_b32 v6, 7, v0")
    k("v_lshl_add_u32 v5, v6, 5, v5")
    k(f"v_add_u32 v5, {SCR}, v5")
    k("v_and_b32 v6, 15, v0")
    k("v_cmp_gt_u32 vcc, 8, v6")
    k("s_and_saveexec_b64 s[34:35], vcc")
    k(f"ds_write_b128 v5, v[{AC}:{AC+3}]")
    k(f"ds_write_b128 v5, v[{AC+4}:{AC+7}] offset:16")
    k("s_mov_b64 exec, s[34:35]")
    k.label("P0_BA")
    k("s_waitcnt lgkmcnt(0)")
    k("s_barrier                        ; B_a")
    mark(k, 0)
    k("s_cmp_lt_u32 s8, 2")
    k("s_cbranch_scc1 P1_LNA")
    k("s_cmp_eq_u32 s8, 2")
    k("s_cbranch_scc1 P0_FINAL")
    k("s_cmp_eq_u32 s8, 3")
    k("s_cbranch_scc1 P0_ONES")
    k("s_branch P0_LOADERS")
    k.label("P0_FINAL")
    k("s_cmp_ge_u32 s14, 60")
    k("s_cbranch_scc1 P1_BA2")
    k("v_lshlrev_b32 v7, 2, v1")
    k(f"v_add_u32 v6, {SCR}, v7")
    for p in range(32): k(f"ds_read_b32 v{W0+p}, v6 offset:{256*p}")
    k("s_waitcnt lgkmcnt(0)")
    for st in (16, 8, 4, 2, 1):
        for p in range(st): k(f"v_add_f32 v{W0+p}, v{W0+p}, v{W0+p+st}")
    k("s_mul_i32 s15, s13, 15360")
    k("s_lshl_b32 s34, s14, 8")
    k("s_add_u32 s15, s15, s34")
    if os.environ.get("P0DIAG"): mark(k, 25)
    k(f"buffer_store_dword v{W0}, v7, s[20:23], s15 offen sc1")
    k("s_waitcnt vmcnt(0)")
    if os.environ.get("P0DIAG"): mark(k, 26)
    k("s_cmp_ge_u32 s14, 20")
    k("s_cbranch_scc1 P1_BA2")
    k("s_mov_b64 exec, 1")
    k("v_mov_b32 v5, 0")
    k("v_mov_b32 v6, 1")
    k(f"global_atomic_add v7, v5, v6, s[{DBGP}:{DBGP+1}] sc0 sc1")
    k("s_waitcnt vmcnt(0)")
    k("v_readfirstlane_b32 s15, v7")
    if os.environ.get("P0DIAG"):
        k("s_mov_b64 exec, -1"); mark(k, 27); k("s_mov_b64 exec, 1")
    k("s_cmp_lg_u32 s15, 79")
    k("s_cbranch_scc1 P0_NOFLAG")
    k("s_memrealtime s[34:35]")
    k("s_waitcnt lgkmcnt(0)")
    k("s_or_b32 s34, s34, 1")
    k("v_mov_b32 v6, s34")
    k(f"global_store_dword v5, v6, s[{DBGP}:{DBGP+1}] offset:128 sc1")
    k.label("P0_NOFLAG")
    k("s_mov_b64 exec, -1")
    k("s_branch P1_BA2")
    k.label("P0_ONES")
    wsrd(k, 32, 32 * KV_HEAD, WS_KV)
    k("s_lshl_b32 s13, s2, 5")
    k("v_add_u32 v5, s13, v1")
    k("v_lshrrev_b32 v6, 2, v5")
    k(f"v_mul_u32_u24 v6, {KV_TILE}, v6")
    k("v_and_b32 v7, 3, v5")
    k("v_mul_u32_u24 v7, 336, v7")
    k(f"v_add_u32 v6, {1280+320}, v6")
    k("v_add_u32 v6, v6, v7")
    for j in range(4): k(f"v_mov_b32 v{8+j}, 0x3f803f80")
    k("s_mov_b32 exec_hi, 0")
    k("buffer_store_dwordx4 v[8:11], v6, s[32:35], 0 offen sc1")
    wsrd(k, 36, 16 * 384 * 4, WS_UT)
    k("s_mul_i32 s13, s2, 96")
    k("v_lshlrev_b32 v5, 2, v1")
    k("v_mov_b32 v12, 0")
    k("s_mov_b32 exec_lo, 0xffffff")
    k("buffer_store_dword v12, v5, s[36:39], s13 offen sc1")
    k("s_mov_b64 exec, -1")
    k("s_waitcnt vmcnt(0)")
    k("s_branch P1_BA2")
    k.label("P1_LNA")
    k("s_barrier                        ; B_a2 (waves 0, 1)")
    k.label("P1_LN")
    E = 32
    k("s_waitcnt vmcnt(0)")
    for r in range(20):
        k(f"v_lshlrev_b32 v{E+2*r}, 16, v{X+r}")
        k(f"v_and_b32 v{E+2*r+1}, 0xffff0000, v{X+r}")
    k(f"v_add_f32 v5, v{E}, v{E+1}")
    k(f"v_add_f32 v6, v{E+2}, v{E+3}")
    for r in range(4, 40, 2):
        k(f"v_add_f32 v5, v5, v{E+r}")
        k(f"v_add_f32 v6, v6, v{E+r+1}")
    k("v_add_f32 v5, v5, v6")
    for rot in (1, 2, 4, 8):
        k(f"v_add_f32_dpp v5, v5, v5 row_ror:{rot} row_mask:0xf bank_mask:0xf")
    k(f"s_mov_b32 s13, {hex(f2u(1.0/640))}")
    k("v_mul_f32 v5, s13, v5")
    for r in range(40): k(f"v_sub_f32 v{E+r}, v{E+r}, v5")
    k(f"v_mul_f32 v6, v{E}, v{E}")
    k(f"v_mul_f32 v7, v{E+1}, v{E+1}")
    for r in range(2, 40, 2):
        k(f"v_fmac_f32 v6, v{E+r}, v{E+r}")
        k(f"v_fmac_f32 v7, v{E+r+1}, v{E+r+1}")
    k("v_add_f32 v6, v6, v7")
    for rot in (1, 2, 4, 8):
        k(f"v_add_f32_dpp v6, v6, v6 row_ror:{rot} row_mask:0xf bank_mask:0xf")
    k("v_mov_b32 v7, 0x3727c5ac")
    k("v_fmac_f32 v7, s13, v6")
    k("v_rsq_f32 v7, v7")
    k("s_nop 0")
    for r in range(40): k(f"v_mul_f32 v{E+r}, v{E+r}, v7")
    k("v_mov_b32 v5, 0")
    k("s_mov_b32 s14, 0")
    k.label("P1_POLL")
    k("s_mov_b64 exec, 1")
    k(f"global_load_dword v6, v5, s[{DBGP}:{DBGP+1}] offset:128 sc1")
    k("s_waitcnt vmcnt(0)")
    k(f"v_readfirstlane_b32 s{NONCE}, v6")
    k("s_mov_b64 exec, -1")
    k(f"s_cmp_lg_u32 s{NONCE}, 0")
    k("s_cbranch_scc1 P1_READY")
    k("s_add_u32 s14, s14, 1")
    k(f"s_cmp_gt_u32 s14, {TIMEOUT}")
    k("s_cbranch_scc1 P1_READY")
    k("s_sleep 4")
    k("s_branch P1_POLL")
    k.label("P1_READY")
    mark(k, 1)
    P = 80
    k("s_mul_i32 s15, s8, 2560")
    k("v_lshlrev_b32 v5, 4, v1")
    k("v_mov_b32 v8, 0x7ffffff0")
    k("v_cmp_gt_u32 vcc, 32, v1")
    k("v_add_u32 v6, s15, v5")
    k("v_add_u32 v9, 2048, v6")
    k("v_cndmask_b32 v9, v8, v9, vcc")
    for q in range(4):
        k(f"s_mov_b32 s34, {q*15360}")
        k(f"buffer_load_dwordx4 v[{P+12*q}:{P+12*q+3}], v6, s[20:23], s34 offen sc1")
        k(f"buffer_load_dwordx4 v[{P+12*q+4}:{P+12*q+7}], v6, s[20:23], s34 offen offset:1024 sc1")
        k(f"buffer_load_dwordx4 v[{P+12*q+8}:{P+12*q+11}], v9, s[20:23], s34 offen sc1")
    k(f"v_mov_b32 v10, {CTL}")
    k(f"v_mov_b32 v11, s{NONCE}")
    k("ds_write_b32 v10, v11")
    k("s_waitcnt vmcnt(0)")
    for r in range(12):
        k(f"v_add_f32 v{P+r}, v{P+r}, v{P+12+r}")
        k(f"v_add_f32 v{P+24+r}, v{P+24+r}, v{P+36+r}")
    for r in range(12): k(f"v_add_f32 v{P+r}, v{P+r}, v{P+24+r}")
    for r in range(12): bf16_round_f32(k, P + r, P + r, P + 12)
    k("s_cmp_eq_u32 s8, 0")
    k("s_cbranch_scc1 P1_NOONE")
    for r in range(12): k(f"v_add_f32 v{P+r}, 1.0, v{P+r}")
    for r in range(12): bf16_round_f32(k, P + r, P + r, P + 12)
    k.label("P1_NOONE")
    k("s_mul_i32 s15, s8, 2560")
    k("v_add_u32 v5, s15, v5")
    k(f"v_add_u32 v5, {SCR + 8192}, v5")
    k(f"ds_write_b128 v5, v[{P}:{P+3}]")
    k(f"ds_write_b128 v5, v[{P+4}:{P+7}] offset:1024")
    k("s_mov_b32 exec_hi, 0")
    k(f"ds_write_b128 v5, v[{P+8}:{P+11}] offset:2048")
    k("s_mov_b64 exec, -1")
    k("s_waitcnt lgkmcnt(0)")
    if os.environ.get("P0DIAG"): mark(k, 28)
    k("s_barrier")
    Gm, Sm = 96, 136
    k("v_and_b32 v4, 15, v0")
    k("v_lshlrev_b32 v4, 5, v4")
    k(f"v_add_u32 v4, {SCR + 8192}, v4")
    for i in range(5):
        for hh in range(2):
            k(f"ds_read_b128 v[{Sm+8*i+4*hh}:{Sm+8*i+4*hh+3}], v4 offset:{512*i + 16*hh}")
            k(f"ds_read_b128 v[{Gm+8*i+4*hh}:{Gm+8*i+4*hh+3}], v4 offset:{2560 + 512*i + 16*hh}")
    k("s_waitcnt lgkmcnt(0)")
    for r in range(40): k(f"v_fma_f32 v{E+r}, v{E+r}, v{Gm+r}, v{Sm+r}")
    for r in range(20): k(f"v_cvt_pk_bf16_f32 v{X+r}, v{E+2*r}, v{E+2*r+1}")
    for i in range(5):
        k(f"buffer_store_dwordx4 v[{X+4*i}:{X+4*i+3}], v3, s[24:27], 0 offen offset:{256*i} sc1")
    if os.environ.get("P0DIAG"): mark(k, 29)
    k("s_waitcnt vmcnt(0)")
    if os.environ.get("P0DIAG"): mark(k, 30)
    k("s_barrier")
    k("s_cmp_lg_u32 s8, 0")
    k("s_cbranch_scc1 P2_START")
    set_flag(k, FL_H, 2)
    k("s_branch P2_START")
    k.label("P1_BA2")
    k("s_barrier")
    k.label("P1_BB")
    k("s_barrier                        ; B_b")
    k(f"v_mov_b32 v10, {CTL}")
    k("ds_read_b32 v11, v10")
    k("s_waitcnt lgkmcnt(0)")
    k(f"v_readfirstlane_b32 s{NONCE}, v11")
    k("s_barrier                        ; B_c")
    k("s_branch P2_START")

def qkv_ids(k):
    k("s_and_b32 s3, s2, 7")
    k("s_lshr_b32 s13, s2, 3")
    k("s_and_b32 s14, s3, 3")
    k("s_lshl_b32 s14, s14, 2")
    k("s_and_b32 s15, s13, 3")
    k("s_add_u32 s11, s14, s15")
    k("s_lshr_b32 s14, s3, 2")
    k("s_lshl_b32 s14, s14, 3")
    k("s_lshr_b32 s15, s13, 2")
    k("s_add_u32 s12, s14, s15")

QNS = 4
def phase2_loader(k):
    k.label("P0_LOADERS")
    k("s_barrier                        ; B_a2")
    if not os.environ.get("NO_CODEPF"):
        k("s_cmp_lg_u32 s8, 7")
        k("s_cbranch_scc1 F_NOCPF")
        k("s_getpc_b64 s[34:35]")
        k.label("F_PC")
        k("s_lshr_b32 s9, s2, 3")
        k("s_mul_i32 s9, s9, 18")
        k("v_add_u32 v2, s9, v1")
        k("v_lshlrev_b32 v2, 7, v2")
        k("v_cmp_gt_u32 vcc, 18, v1")
        k("s_mov_b32 s10, F_END-F_PC")
        k("v_cmp_gt_u32 s[36:37], s10, v2")
        k("s_and_b64 vcc, vcc, s[36:37]")
        k("s_and_saveexec_b64 s[36:37], vcc")
        k("s_cbranch_execz F_CPFX")
        k("global_load_dword v231, v2, s[34:35]")
        k.label("F_CPFX")
        k("s_mov_b64 exec, s[36:37]")
        k.label("F_NOCPF")
    if not os.environ.get("NO_TLB"):
        k("s_cmp_lg_u32 s8, 6")
        k("s_cbranch_scc1 F_NOTLB")
        wsrd(k, 16, WS_END, 0)
        srd(k, 20, OUTP, S * D * 2)
        k("s_lshr_b32 s9, s2, 3")
        k("s_lshl_b32 s9, s9, 4")
        k("v_add_u32 v2, s9, v1")
        k("v_lshlrev_b32 v2, 16, v2")
        k("s_mov_b64 exec, 0xffff")
        k("buffer_load_dword v229, v2, s[16:19], 0 offen")
        k("s_mov_b64 exec, -1")
        k("s_lshr_b32 s9, s2, 3")
        k("v_mov_b32 v2, s9")
        k("v_lshlrev_b32 v2, 17, v2")
        k("s_mov_b64 exec, 1")
        k("buffer_load_dword v228, v2, s[20:23], 0 offen")
        k("s_mov_b64 exec, -1")
        k.label("F_NOTLB")
    qkv_ids(k)
    VA, VB = 8, 12
    k("s_lshl_b32 s9, s11, 7")
    k("s_lshl_b32 s10, s31, 5")
    k("s_add_u32 s9, s9, s10")
    a_dma_rows32(k, VA, 9, 1280)
    k("v_lshrrev_b32 v2, 4, v1")
    k("v_bfe_u32 v3, v1, 2, 2")
    k("v_xor_b32 v3, v3, v2")
    k("v_lshlrev_b32 v3, 6, v3")
    k("v_and_b32 v4, 3, v1")
    k("v_lshl_add_u32 v3, v4, 4, v3")
    k("s_lshl_b32 s9, s31, 4")
    k("v_add_u32 v2, s9, v2")
    k("v_mul_u32_u24 v2, 3840, v2")
    k("s_lshl_b32 s9, s12, 8")
    k("v_add3_u32 v2, v2, v3, s9")
    for i in range(4):
        k(f"v_add_u32 v{VB+i}, {i*(4*3840-1024)}, v2")
    k("s_lshl_b32 s13, s31, 12")
    wsrd(k, 16, S * D * 2, WS_H)
    srd(k, 20, WQKVP, 640 * 3840)
    def dmaA(st):
        k(f"s_add_u32 m0, s13, {(st % QNS)*32768}")
        k(f"s_mov_b32 s14, {st*128}")
        for i in range(4):
            k(f"buffer_load_dwordx4 v{VA+i}, s[16:19], s14 offen offset:{i*1024} sc1 lds")
    def dmaB(st):
        k(f"s_add_u32 m0, s13, {(st % QNS)*32768 + 16384}")
        k(f"s_mov_b32 s14, {st*64*3840}")
        for i in range(4):
            k(f"buffer_load_dwordx4 v{VB+i}, s[20:23], s14 offen offset:{i*1024} lds")
    L = Loader(k, 10, QNS, dmaA, dmaB, 4, 4)
    k("s_cmp_ge_u32 s12, 15")
    k("s_cbranch_scc1 P2L_NOTILE")
    L.preloadB()
    if not os.environ.get("NO_WPF"):
        k("s_and_b32 s9, s11, 3")
        k("s_mul_i32 s9, s9, 224")
        k("s_mul_i32 s10, s31, 56")
        k("s_add_u32 s9, s9, s10")
        k("v_add_u32 v16, s9, v1")
        k("v_lshrrev_b32 v17, 1, v16")
        k("v_add_u32 v17, 192, v17")
        k("v_mul_u32_u24 v17, 3840, v17")
        k("v_and_b32 v16, 1, v16")
        k("v_lshl_add_u32 v17, v16, 7, v17")
        k("s_lshl_b32 s9, s12, 8")
        k("v_add_u32 v17, s9, v17")
        k("v_cmp_gt_u32 vcc, 56, v1")
        k("v_mov_b32 v16, 0x7ffffff0")
        k("v_cndmask_b32 v17, v16, v17, vcc")
        k("buffer_load_dword v231, v17, s[20:23], 0 offen")
    k.label("P2L_NOTILE")
    phase2_tables(k)
    k("s_barrier                        ; B_b")
    k(f"v_mov_b32 v16, {CTL}")
    k("ds_read_b32 v17, v16")
    k("s_waitcnt lgkmcnt(0)")
    k(f"v_readfirstlane_b32 s{NONCE}, v17")
    k("s_barrier                        ; B_c")
    k("s_cmp_ge_u32 s12, 15")
    k("s_cbranch_scc1 P2_SPARE")
    k("s_cmp_lg_u32 s8, 4")
    k("s_cbranch_scc1 P2L_GO")
    poll_range(k, "P2L_H", FL_H, lambda: k("s_lshl_b32 s9, s11, 4"), 16)
    k.label("P2L_GO")
    k("s_barrier                        ; B_d")
    mark(k, 2)
    L.run(prefetch=apf_loader(k, WS_H, S * D * 2, lambda: k("s_lshl_b32 s9, s11, 7"), 1280, 7, 1, 9, lambda: k("s_and_b32 s9, s12, 7"), 144, 17, 229))
    mark(k, 20)
    k("s_branch P3_START")

def last_arriver_flag(k, tag, lds_word, last, base, idx_sgpr, v=20):
    k(f"v_mov_b32 v{v}, {lds_word}")
    k(f"v_mov_b32 v{v+1}, 1")
    k("s_mov_b64 exec, 1")
    k(f"ds_add_rtn_u32 v{v+2}, v{v}, v{v+1}")
    k("s_waitcnt lgkmcnt(0)")
    k(f"v_readfirstlane_b32 s9, v{v+2}")
    k("s_mov_b64 exec, -1")
    k(f"s_cmp_lg_u32 s9, {last}")
    k(f"s_cbranch_scc1 {tag}_NL")
    set_flag(k, base, idx_sgpr, v)
    k.label(f"{tag}_NL")

def phase2_spare(k):
    k.label("P2_SPARE")
    k("s_cmp_lg_u32 s8, 4")
    k("s_cbranch_scc1 P3_START")
    k("s_cmp_ge_u32 s11, 4")
    k("s_cbranch_scc1 P2S_FLAG")
    poll_all(k, "P2S_ALLH", FL_H, 20)
    k("s_add_u32 s9, s11, 2")
    k("s_mul_i32 s9, s9, 2560")
    wsrd(k, 16, 4 * 3840 * 4, WS_MODP)
    wsrd(k, 20, 6 * 640 * 4, WS_MODV)
    for i in range(3):
        k(f"v_add_u32 v2, {64*i}, v1")
        k(f"v_lshlrev_b32 v{3+i}, 4, v2")
        if i == 2:
            k("v_cmp_gt_u32 vcc, 160, v2")
            k("v_mov_b32 v6, 0x7ffffff0")
            k(f"v_cndmask_b32 v{3+i}, v6, v{3+i}, vcc")
        for q in range(4):
            k(f"s_add_u32 s10, s9, {q*15360}")
            k(f"buffer_load_dwordx4 v[{8+16*i+4*q}:{11+16*i+4*q}], v{3+i}, s[16:19], s10 offen sc1")
    k("s_waitcnt vmcnt(0)")
    for i in range(3):
        B = 8 + 16 * i
        for r in range(4):
            k(f"v_add_f32 v{B+r}, v{B+r}, v{B+4+r}")
            k(f"v_add_f32 v{B+8+r}, v{B+8+r}, v{B+12+r}")
        for r in range(4): k(f"v_add_f32 v{B+r}, v{B+r}, v{B+8+r}")
        for r in range(4): bf16_round_f32(k, B + r, B + r, 60)
    k("s_cmp_lg_u32 s11, 2")
    k("s_cbranch_scc1 P2S_NOONE")
    for i in range(3):
        B = 8 + 16 * i
        for r in range(4): k(f"v_add_f32 v{B+r}, 1.0, v{B+r}")
        for r in range(4): bf16_round_f32(k, B + r, B + r, 60)
    k.label("P2S_NOONE")
    for i in range(3):
        k(f"buffer_store_dwordx4 v[{8+16*i}:{11+16*i}], v{3+i}, s[20:23], s9 offen sc1")
    k("s_waitcnt vmcnt(0)")
    set_flag(k, FL_M, 11)
    k.label("P2S_FLAG")
    k("s_branch P3_START")

QA = dict(AF=40, BF=48, ACC=80, RA=212, RB=220, EA=176, GA=192)
def phase2_setup(k):
    RA, RB, EA, GA = QA["RA"], QA["RB"], QA["EA"], QA["GA"]
    k.label("P2_SETUP")
    qkv_ids(k)
    k("s_cmp_ge_u32 s12, 15")
    k("s_cbranch_scc1 P2_SETUP_END")
    k("v_and_b32 v55, 31, v1")
    k("v_lshrrev_b32 v54, 5, v1")
    k("v_bfe_u32 v52, v55, 1, 3")
    k("v_lshlrev_b32 v55, 7, v55")
    k("s_lshl_b32 s10, s8, 12")
    k("v_add_u32 v55, s10, v55")
    for ks in range(4):
        k(f"v_add_u32 v53, {2*ks}, v54")
        k("v_xor_b32 v53, v53, v52")
        k(f"v_lshl_add_u32 v{RA+ks}, v53, 4, v55")
        k(f"v_add_u32 v{RA+4+ks}, 65536, v{RA+ks}")
    k("v_lshrrev_b32 v55, 5, v1")
    k("v_bfe_u32 v54, v1, 2, 2")
    k("v_lshl_add_u32 v55, v55, 3, v54")
    k("v_lshlrev_b32 v55, 8, v55")
    k("v_bfe_u32 v52, v1, 4, 1")
    k("v_lshl_add_u32 v55, v52, 5, v55")
    k("v_and_b32 v52, 3, v1")
    k("v_lshl_add_u32 v55, v52, 3, v55")
    k("v_add_u32 v55, 16384, v55")
    for nt in range(4):
        k(f"v_xor_b32 v52, {nt}, v54")
        k(f"v_lshl_add_u32 v{RB+nt}, v52, 6, v55")
        k(f"v_add_u32 v{RB+4+nt}, 65536, v{RB+nt}")
    k("s_cmp_ge_u32 s12, 10")
    k("s_cbranch_scc1 P2S_V")
    k("s_cmp_ge_u32 s12, 5")
    k("s_cbranch_scc1 P2S_K")
    k(f"s_mov_b32 s16, {64*1280}")
    k("s_movk_i32 s17, 1280")
    k("s_lshl_b32 s10, s12, 5")
    k(f"s_mov_b32 s41, {hex(f2u(1.4426950408889634 / (20 ** 0.5)))}")
    k("s_branch P2S_QK")
    k.label("P2S_K")
    k(f"s_mov_b32 s16, {KV_HEAD}")
    k(f"s_movk_i32 s17, {KV_TILE}")
    k("s_sub_u32 s10, s12, 5")
    k("s_lshl_b32 s10, s10, 5")
    k("s_mov_b32 s41, 1.0")
    k.label("P2S_QK")
    k("s_lshl_b32 s42, s11, 2")
    k("s_add_u32 s42, s42, s8")
    k("s_mul_i32 s42, s42, s17")
    k("s_lshl_b32 s43, s8, 14")
    k("s_add_u32 s43, s43, 65536")
    k("s_branch P2_SETUP_END")
    k.label("P2S_V")
    k("s_lshl_b32 s42, s11, 2")
    k("s_add_u32 s42, s42, s8")
    k(f"s_mul_i32 s42, s42, {KV_TILE}")
    k("s_add_u32 s42, s42, 1280")
    k.label("P2_SETUP_END")
    k("s_lshr_b32 s14, s2, 2")
    k("s_and_b32 s13, s2, 3")

TBL = 144384
def phase2_tables(k):
    k("s_cmp_ge_u32 s12, 15")
    k("s_cbranch_scc1 P2T_END")
    k("v_lshlrev_b32 v30, 4, v1")
    k(f"v_add_u32 v30, {TBL}, v30        ; lane*16")
    k("s_cmp_ge_u32 s12, 10")
    k("s_cbranch_scc1 P2T_V")
    k("s_cmp_ge_u32 s12, 5")
    k("s_cselect_b32 s10, 5, 0")
    k(f"s_cselect_b32 s44, {KV_HEAD}, 0")
    k(f"s_cselect_b32 s45, 0, {64*1280}")
    k("s_or_b32 s44, s44, s45")
    k("s_sub_u32 s10, s12, s10")
    k("s_lshl_b32 s10, s10, 5")
    k(f"s_mul_hi_u32 s35, s10, {(1<<32)//5+1}")
    k("v_and_b32 v25, 31, v1")
    k("v_lshrrev_b32 v24, 5, v1")
    k("v_add_u32 v24, s10, v24")
    k("v_lshlrev_b32 v26, 4, v25")
    k("v_lshlrev_b32 v27, 3, v25")
    k("v_add_u32 v27, 1024, v27")
    for n in range(4):
        k("s_lshl_b32 s9, s31, 3")
        k(f"s_add_u32 s9, s9, {2*n}")
        k("v_add_u32 v18, s9, v24")
        k("v_mul_u32_u24 v19, 205, v18")
        k("v_lshrrev_b32 v19, 10, v19")
        k("v_mad_i32_i24 v20, v19, -5, v18")
        k("v_lshrrev_b32 v21, 1, v20")
        k("v_lshl_add_u32 v21, v21, 9, v26")
        k("v_and_b32 v22, 1, v20")
        k("v_lshl_add_u32 v21, v22, 3, v21")
        k("v_cmp_eq_u32 vcc, 4, v20")
        k("v_subrev_u32 v19, s35, v19")
        k("v_cndmask_b32 v21, v21, v27, vcc")
        k("v_mul_u32_u24 v19, 1280, v19")
        k(f"v_add_u32 v{32+n}, v21, v19")
    k("s_lshl_b32 s9, s31, 10")
    k("v_add_u32 v31, s9, v30")
    k("ds_write_b128 v31, v[32:35]")
    for n in range(5):
        k("s_mul_i32 s9, s31, 5")
        k(f"s_add_u32 s9, s9, {n}")
        k("s_lshl_b32 s14, s9, 6")
        k("v_add_u32 v18, s14, v1")
        k("v_mul_u32_u24 v19, 52429, v18")
        k("v_lshrrev_b32 v19, 23, v19          ; hh")
        k("v_mul_u32_u24 v20, 160, v19")
        k("v_sub_u32 v20, v18, v20             ; w")
        k("v_lshrrev_b32 v21, 6, v20")
        k("v_lshlrev_b32 v21, 1, v21")
        k("v_and_b32 v22, 1, v20")
        k("v_add_u32 v21, v21, v22")
        k("v_min_u32 v21, 4, v21")
        k("v_add_u32 v19, s35, v19             ; head")
        k("v_mad_u32_u24 v21, v19, 5, v21")
        k("v_subrev_u32 v21, s10, v21")
        k("v_cmp_gt_u32 vcc, 32, v21")
        k("v_mul_lo_u32 v19, s44, v19")
        k("v_lshl_add_u32 v19, v20, 3, v19")
        k("v_mov_b32 v22, 0x7ffffff0")
        k("v_cndmask_b32 v19, v22, v19, vcc")
        k("s_add_u32 s9, s9, 16")
        k("s_lshr_b32 s14, s9, 2")
        k("s_lshl_b32 s14, s14, 10")
        k("s_and_b32 s9, s9, 3")
        k("s_lshl_b32 s9, s9, 2")
        k("s_add_u32 s9, s9, s14")
        k("v_add_u32 v31, s9, v30")
        k("ds_write_b32 v31, v19")
    k("s_branch P2T_END")
    k.label("P2T_V")
    k("v_and_b32 v25, 31, v1")
    k("v_lshrrev_b32 v24, 5, v1")
    k("v_mul_u32_u24 v24, 336, v24")
    k("s_sub_u32 s10, s12, 10")
    k("s_lshl_b32 s10, s10, 7")
    k("s_lshl_b32 s9, s31, 5")
    k("s_add_u32 s10, s10, s9")
    k("v_add_u32 v18, s10, v25")
    k("v_mul_u32_u24 v19, 3277, v18")
    k("v_lshrrev_b32 v19, 16, v19")
    k("v_mul_u32_u24 v20, 20, v19")
    k("v_sub_u32 v20, v18, v20")
    k(f"s_mov_b32 s10, {KV_HEAD}")
    k("v_mul_lo_u32 v19, s10, v19")
    k("v_lshlrev_b32 v20, 4, v20")
    k("v_add3_u32 v19, v19, v20, v24")
    k("s_lshl_b32 s9, s31, 2")
    k("v_add_u32 v31, s9, v30")
    k("ds_write_b32 v31, v19")
    k.label("P2T_END")
    k("s_waitcnt lgkmcnt(0)")

def phase2_compute(k):
    AF, BF, ACC, RA, RB, EA, GA = (QA[x] for x in ("AF", "BF", "ACC", "RA", "RB", "EA", "GA"))
    k.label("P2_START")
    k("s_cmp_ge_u32 s12, 15")
    k("s_cbranch_scc1 P3_START")
    def reads(step):
        st, ks = divmod(step, 4); slot = st % QNS; sb = step & 1
        bs, off = slot >> 1, (slot & 1) * 32768
        a = f"ds_read_b128 v[{AF+4*sb}:{AF+4*sb+3}], v{RA+4*bs+ks} offset:{off}"
        out = []
        for nt in range(4):
            d = BF + (sb * 4 + nt) * 4
            g = [f"ds_read_b64_tr_b16 v[{d+2*j}:{d+2*j+1}], v{RB+4*bs+nt} offset:{off + (16*ks+4*j)*256}" for j in range(2)]
            out.append(([a] if nt == 0 else []) + g)
        return out
    def mf(swap):
        def f(step, nt):
            sb = step & 1; a = AF + 4 * sb; b = BF + (sb * 4 + nt) * 4; d = ACC + 16 * nt
            c = "0" if step == 0 else None
            return [mfma32(d, a, b, c) if swap else mfma32(d, b, a, c)]
        return f
    k("v_lshlrev_b32 v2, 4, v1")
    k(f"v_add_u32 v2, {TBL}, v2")
    for g in range(9): k(f"ds_read_b128 v[{EA+4*g}:{EA+4*g+3}], v2 offset:{1024*g}")
    k("s_waitcnt lgkmcnt(0)")
    k("s_cmp_ge_u32 s12, 10")
    k("s_cbranch_scc1 P2_V")
    for r in range(16): k(f"v_add_u32 v{EA+r}, s43, v{EA+r}")
    k("s_cmp_ge_u32 s12, 5")
    k("s_cbranch_scc1 P2_K")
    wsrd(k, 24, 32 * 64 * 1280, WS_Q)
    k("s_branch P2_QK")
    k.label("P2_K")
    wsrd(k, 24, 32 * KV_HEAD, WS_KV)
    k.label("P2_QK")
    k("s_barrier                        ; B_d")
    def qapf():
        if APF: apf_rows(k, WS_H, S * D * 2, lambda: k("s_lshl_b32 s9, s11, 7"), 1280, 7, 0, 10, lambda: k("s_and_b32 s9, s12, 7"), 160, 28, 229)
    qapf()
    compute_loop(k, 10, 4, reads, mf(False), 0, stamp=False)
    mark(k, 3)
    k("v_mov_b32 v2, s41")
    k("v_mov_b32 v3, s41")
    for nt in range(4):
        for j in range(4):
            a_ = ACC + 16 * nt + 4 * j
            t = 28 + 2 * (j % 4)
            k(f"v_pk_mul_f32 v[{a_}:{a_+1}], v[{a_}:{a_+1}], v[2:3]")
            k(f"v_pk_mul_f32 v[{a_+2}:{a_+3}], v[{a_+2}:{a_+3}], v[2:3]")
            k(f"v_cvt_pk_bf16_f32 v{t}, v{a_}, v{a_+1}")
            k(f"v_cvt_pk_bf16_f32 v{t+1}, v{a_+2}, v{a_+3}")
            k(f"ds_write_b64 v{EA+4*nt+j}, v[{t}:{t+1}]")
    k("v_lshlrev_b32 v2, 3, v1")
    k("v_add_u32 v2, s43, v2")
    k("s_waitcnt lgkmcnt(0)")
    for i in range(20):
        k(f"ds_read_b64 v[{ACC+2*i}:{ACC+2*i+1}], v2 offset:{512*i}")
        if i >= 9:
            k("s_waitcnt lgkmcnt(9)")
            k(f"buffer_store_dwordx2 v[{ACC+2*(i-9)}:{ACC+2*(i-9)+1}], v{GA+i-9}, s[24:27], s42 offen sc1")
    for i in range(11, 20):
        k(f"s_waitcnt lgkmcnt({19-i})")
        k(f"buffer_store_dwordx2 v[{ACC+2*i}:{ACC+2*i+1}], v{GA+i}, s[24:27], s42 offen sc1")
    k("s_branch P2_DONE")
    k.label("P2_V")
    wsrd(k, 24, 32 * KV_HEAD, WS_KV)
    k("s_barrier                        ; B_d")
    qapf()
    compute_loop(k, 10, 4, reads, mf(True), 0, stamp=False)
    mark(k, 3)
    for nt in range(4):
        for m in range(2):
            a_ = ACC + 16 * nt + 8 * m
            t = 28 + 4 * m
            for q in range(4):
                k(f"v_cvt_pk_bf16_f32 v{t+q}, v{a_+2*q}, v{a_+2*q+1}")
            k(f"buffer_store_dwordx4 v[{t}:{t+3}], v{EA+nt}, s[24:27], s42 offen offset:{672*m} sc1")
    k.label("P2_DONE")
    k("s_waitcnt vmcnt(0)")
    k("s_lshl_b32 s34, s12, 4")
    k("s_add_u32 s34, s34, s11")
    mark(k, 19)
    last_arriver_flag(k, "P2C", CTL + 4, 3, FL_QKV, 34)
    k("s_branch P3_START")

def phase3(k):
    from k_attn2 import STAGE, Q1, Q2, KA, KB, VF, SS, PP, OO, AK, AKB, AV, VDMA
    vm = VM(k)
    FLAG = CTL + 12
    k.label("P3_START")
    k("s_and_b32 s11, s2, 7")
    k("s_lshl_b32 s11, s11, 2")
    k("s_bfe_u32 s12, s2, 0x20003")
    k("s_add_u32 s11, s11, s12          ; head")
    k("s_lshr_b32 s12, s2, 5")
    k(f"s_mul_i32 s9, s11, {KV_HEAD}")
    k("s_lshl_b32 s13, s8, 10")
    k("s_add_u32 s9, s9, s13")
    k("v_lshlrev_b32 v4, 4, v1")
    k(f"v_add_u32 v{VDMA}, s9, v4")
    k("v_and_b32 v2, 31, v1")
    k("s_lshl_b32 s9, s12, 3")
    k("s_add_u32 s9, s9, s8")
    k("s_mul_i32 s9, s9, 1280")
    k("s_mul_i32 s10, s11, 81920")
    k("s_add_u32 s9, s9, s10")
    k("v_add_u32 v10, s9, v4")
    k("v_lshlrev_b32 v5, 3, v2")
    k("v_add_u32 v5, s9, v5")
    k("v_lshrrev_b32 v3, 5, v1          ; half")
    for sl in range(3):
        k(f"v_lshlrev_b32 v{AK+sl}, 4, v1")
        if sl: k(f"v_add_u32 v{AK+sl}, {sl*STAGE}, v{AK+sl}")
        k(f"v_lshlrev_b32 v{AKB+sl}, 3, v2")
        k(f"v_add_u32 v{AKB+sl}, {sl*STAGE + 1024}, v{AKB+sl}")
        k(f"v_mul_u32_u24 v{AV+sl}, 336, v3")
        k(f"v_lshl_add_u32 v{AV+sl}, v2, 4, v{AV+sl}")
        k(f"v_add_u32 v{AV+sl}, {sl*STAGE + 1280}, v{AV+sl}")
    k("s_lshl_b32 s9, s12, 8")
    k("s_lshl_b32 s10, s8, 5")
    k("s_add_u32 s9, s9, s10")
    k("v_add_u32 v4, s9, v2             ; token")
    k("v_mul_u32_u24 v4, 1280, v4")
    k("s_mul_i32 s9, s11, 40")
    k("v_add_u32 v4, s9, v4")
    k("v_lshl_add_u32 v11, v3, 3, v4")
    k("s_lshl_b32 s9, s12, 8")
    k("s_lshl_b32 s10, s8, 5")
    k("s_add_u32 s9, s9, s10")
    k("s_mul_i32 s10, s11, 40")
    for i in range(3):
        k(f"v_add_u32 v6, {64*i}, v1")
        k("v_mul_u32_u24 v7, 13108, v6")
        k("v_lshrrev_b32 v7, 16, v7")
        k("v_mul_u32_u24 v8, 5, v7")
        k("v_sub_u32 v8, v6, v8")
        k("v_add_u32 v7, s9, v7")
        k("v_mul_u32_u24 v7, 1280, v7")
        k("v_lshl_add_u32 v7, v8, 3, v7")
        k(f"v_add_u32 v{128+i}, s10, v7")
    k("v_cmp_gt_u32 vcc, 32, v1")
    k("v_mov_b32 v6, 0x7ffffff0")
    k("v_cndmask_b32 v130, v6, v130, vcc")
    for r in range(16): k(f"v_mov_b32 v{OO+r}, 0")
    wsrd(k, 16, 32 * KV_HEAD, WS_KV)
    wsrd(k, 20, S * D * 2, WS_Q)
    wsrd(k, 24, S * D * 2, WS_O)
    k("s_cmp_lg_u32 s8, 0")
    k("s_cbranch_scc1 P3_GO")
    k("s_mul_i32 s9, s11, 20")
    k("s_lshr_b32 s10, s9, 7")
    k("s_add_u32 s9, s9, 19")
    k("s_lshr_b32 s9, s9, 7")
    k("v_bfe_u32 v20, v1, 4, 1")
    k("s_sub_u32 s15, s9, s10")
    k("v_mul_u32_u24 v20, s15, v20")
    k("v_add_u32 v20, s10, v20")
    k("v_lshrrev_b32 v21, 5, v1")
    k("v_mul_u32_u24 v21, 5, v21")
    k("v_add3_u32 v20, v20, v21, 5")
    k("v_and_b32 v21, 15, v1")
    k("v_lshl_add_u32 v20, v20, 4, v21")
    k("v_lshlrev_b32 v20, 7, v20")
    k(f"v_add_u32 v20, {FL_QKV}, v20")
    flag_srd(k)
    poll(k, "P3_KV", 20, "-1", 21)
    k("v_bfe_u32 v20, v1, 1, 1")
    k("v_mul_u32_u24 v20, s15, v20")
    k("v_add_u32 v20, s10, v20")
    k("v_and_b32 v21, 1, v1")
    k("s_lshl_b32 s9, s12, 1")
    k("v_add_u32 v21, s9, v21")
    k("v_lshl_add_u32 v20, v20, 4, v21")
    k("v_lshlrev_b32 v20, 7, v20")
    k(f"v_add_u32 v20, {FL_QKV}, v20")
    poll(k, "P3_Q", 20, "0xf", 21)
    mark(k, 24)
    k.label("P3_GO")
    k("s_barrier                        ; B_g")
    mark(k, 4)
    def dma_item(st, slot, i):
        L = [f"s_add_u32 m0, s13, {slot*STAGE + 8192*i}", f"s_mov_b32 s14, {st*STAGE + 8192*i}"]
        return L, f"buffer_load_dwordx4 v{VDMA}, s[16:19], s14 offen sc1 lds"
    def emit_dma(st, slot, i):
        L, ld = dma_item(st, slot, i)
        for l in L: k(l)
        vm.issue(ld, ("kv", st, i))
    def emit_stage_first(st, slot):
        L, ld = dma_item(st, slot, 5)
        lab = f"ATT_NP_{st}"
        k("s_cmp_lg_u32 s8, 0")
        k(f"s_cbranch_scc1 {lab}")
        for l in L: k(l)
        k(ld)
        k.label(lab)
    vm.issue(f"buffer_load_dwordx4 v[{Q1}:{Q1+3}], v10, s[20:23], 0 offen sc1", "q")
    vm.issue(f"buffer_load_dwordx2 v[{Q2}:{Q2+1}], v5, s[20:23], 0 offen offset:1024 sc1", "q")
    emit_stage_first(0, 0)
    for i in range(5): emit_dma(0, 0, i)
    vm.wait({"q", ("kv", 0, 0), ("kv", 0, 1)})
    k("v_cmp_gt_u32 vcc, 32, v1")
    k(f"v_cndmask_b32 v{Q2}, 0, v{Q2}, vcc")
    k(f"v_cndmask_b32 v{Q2+1}, 0, v{Q2+1}, vcc")
    k("s_barrier")
    mark(k, 5)
    def rdK(t):
        st, tt = divmod(t, 16); sl = st % 3; b = t & 1
        return [f"ds_read_b128 v[{KA+4*b}:{KA+4*b+3}], v{AK+sl} offset:{tt*KV_TILE}",
                f"ds_read_b64 v[{KB+2*b}:{KB+2*b+1}], v{AKB+sl} offset:{tt*KV_TILE}"]
    def rdV(t):
        st, tt = divmod(t, 16); sl = st % 3; b = t & 1
        return [f"ds_read_b128 v[{VF+8*b+4*m}:{VF+8*b+4*m+3}], v{AV+sl} offset:{tt*KV_TILE + 672*m}" for m in range(2)]
    def M1(t): b = t & 1; return m16(SS + 16 * b, KA + 4 * b, Q1, "0")
    def M2(t): b = t & 1; d = SS + 16 * b; return m8(d, KB + 2 * b, Q2, f"v[{d}:{d+15}]")
    def PV(t, m): b = t & 1; return m16(OO, VF + 8 * b + 4 * m, PP + 4 * m, f"v[{OO}:{OO+15}]")
    NTL = 64
    bg = {}
    def put(t, f): bg.setdefault(t, []).append(f)
    def stage_items(st, t0, step):
        slot = st % 3
        put(t0, lambda: emit_stage_first(st, slot))
        for i in range(5): put(t0 + step * i, (lambda i=i: emit_dma(st, slot, i)))
    stage_items(1, 0, 2); stage_items(2, 14, 1); stage_items(3, 30, 2)
    def wd_addr():
        k("s_lshl_b32 s9, s2, 9")
        k("v_add_u32 v118, s9, v0")
        k("v_lshlrev_b32 v119, 4, v118")
        srd(k, 36, WDP_, 1536 * 1280)
        vm.issue("buffer_load_dwordx4 v[120:123], v119, s[36:39], 0 offen", "wd")
    def wd_dst():
        divconst(k, 124, 118, 80, 9, 131072)
        k("v_mul_u32_u24 v125, 80, v124")
        k("v_sub_u32 v125, v118, v125")
        divconst(k, 126, 125, 10, 9, 80)
        k("v_mul_u32_u24 v127, 10, v126")
        k("v_sub_u32 v125, v125, v127")
        k("v_and_b32 v127, 0xfffffff3, v124")
        k("v_bfe_u32 v119, v124, 2, 1")
        k("v_lshl_or_b32 v127, v119, 3, v127")
        k("v_bfe_u32 v119, v124, 3, 1")
        k("v_lshl_or_b32 v127, v119, 2, v127")
        k(f"s_mov_b32 s9, {1536*160}")
        k("v_mul_lo_u32 v126, s9, v126")
        k("v_mul_u32_u24 v127, 160, v127")
        k("v_lshlrev_b32 v125, 4, v125")
        k("v_add3_u32 v119, v126, v125, v127")
        k("s_mov_b32 s9, 122880")
        k("v_cmp_gt_u32 vcc, s9, v118")
        k("v_mov_b32 v124, 0x7ffffff0")
        k("v_cndmask_b32 v119, v124, v119, vcc")
        wsrd(k, 36, 8 * 1536 * 160, WS_WDP)
    put(15, wd_addr); put(20, wd_dst)
    put(31, lambda: vm.issue("buffer_store_dwordx4 v[120:123], v119, s[36:39], 0 offen sc1", "wdst"))
    WD_, SG, UU, TT, TM, WOD = 136, 152, 160, 168, 176, 184
    def only_job_waves(tag, f):
        def g():
            k("s_cmp_ge_u32 s8, 4")
            k(f"s_cbranch_scc1 P3_J{tag}")
            f()
            k.label(f"P3_J{tag}")
        return g
    def job_issue():
        k(f"s_mul_hi_u32 s55, s2, {(1<<32)//5+1}")
        k("s_mul_i32 s54, s55, 5")
        k("s_sub_u32 s54, s2, s54")
        k("s_lshl_b32 s54, s54, 7")
        k("s_cmp_ge_u32 s55, 24")
        k("s_cselect_b32 s52, 1, 0          ; matrix")
        k("s_mul_i32 s53, s52, 24")
        k("s_sub_u32 s53, s55, s53")
        k("v_and_b32 v188, 7, v0")
        k("v_lshrrev_b32 v189, 3, v0")
        k("v_add_u32 v189, s54, v189")
        k("v_mul_u32_u24 v190, 3072, v189")
        k("s_lshl_b32 s55, s53, 7")
        k("v_lshl_add_u32 v190, v188, 4, v190")
        k("v_add_u32 v190, s55, v190")
        k("s_cmp_ge_u32 s2, 240")
        k("s_cselect_b32 s55, 0, 1966080")
        k("s_cmp_eq_u32 s52, 0")
        k(f"s_cselect_b32 s44, s{WGP}, s{WUP_}")
        k(f"s_cselect_b32 s45, s{WGP+1}, s{WUP_+1}")
        k("s_mov_b32 s46, s55")
        k("s_mov_b32 s47, 0x00020000")
        for i in range(4):
            k(f"s_mov_b32 s55, {i*32*3072}")
            k(f"buffer_load_dwordx4 v[{WD_+4*i}:{WD_+4*i+3}], v190, s[44:47], s55 offen")
        k("s_lshl_b32 s55, s2, 8")
        k("v_add_u32 v191, s55, v0")
        k("v_lshlrev_b32 v190, 4, v191")
        srd(k, 48, WOP_, 640 * 1280)
        k(f"buffer_load_dwordx4 v[{WOD}:{WOD+3}], v190, s[48:51], 0 offen")
        flag_srd(k)
        k("v_and_b32 v192, 3, v1")
        k("v_lshlrev_b32 v192, 7, v192")
        k(f"v_add_u32 v192, {FL_M}, v192")
        k("buffer_load_dword v193, v192, s[56:59], 0 offen sc1")
    def job_mod():
        k(f"v_cmp_ne_u32 vcc, s{NONCE}, v193")
        k("s_cmp_eq_u64 vcc, 0")
        k("s_cbranch_scc1 P3_MOK")
        poll(k, "P3_M", 192, "-1", 193)
        k.label("P3_MOK")
        wsrd(k, 48, 6 * 640 * 4, WS_MODV)
        k("v_lshlrev_b32 v190, 2, v189")
        for i in range(4):
            k("s_movk_i32 s55, 7680")
            k(f"buffer_load_dword v{SG+2*i}, v190, s[48:51], s55 offen offset:{128*i} sc1")
            k("s_movk_i32 s55, 10240")
            k(f"buffer_load_dword v{SG+2*i+1}, v190, s[48:51], s55 offen offset:{128*i} sc1")
    def job_dst():
        k("s_waitcnt vmcnt(0)")
        for r in range(16): k(f"v_mov_b32 v{UU+r}, 0")
        k("s_lshl_b32 s55, s53, 3")
        k("v_add_u32 v190, s55, v188")
        k("v_mul_u32_u24 v194, 5462, v190")
        k("v_lshrrev_b32 v194, 16, v194     ; ct")
        k("v_mul_u32_u24 v195, 12, v194")
        k("v_sub_u32 v195, v190, v195       ; cc")
        k("s_mov_b32 s55, 245760")
        k("v_mul_lo_u32 v196, s55, v194")
        k("s_mul_i32 s55, s52, 12288")
        k("v_lshl_add_u32 v196, v195, 4, v196")
        k("v_add_u32 v196, s55, v196")
        k("s_cmp_ge_u32 s2, 240")
        k(f"s_cselect_b32 s55, 0, {16 * 10 * 24576}")
        k(f"s_add_u32 s44, s{WSP}, {WS_WUP}")
        k(f"s_addc_u32 s45, s{WSP+1}, 0")
        k("s_mov_b32 s46, s55")
        k("s_mov_b32 s47, 0x00020000")
    def job_chunk(i):
        def f():
            d = WD_ + 4 * i
            for q in range(4):
                k(f"v_lshlrev_b32 v{TM+2*q}, 16, v{d+q}")
                k(f"v_and_b32 v{TM+2*q+1}, 0xffff0000, v{d+q}")
            for q in range(8): k(f"v_fmac_f32 v{TT+q}, v{SG+2*i}, v{TM+q}")
            for q in range(8): k(f"v_mul_f32 v{TM+q}, v{SG+2*i+1}, v{TM+q}")
            for q in range(8): k(f"v_add_f32 v{UU+q}, v{UU+q}, v{TM+q}")
            for q in range(4): k(f"v_cvt_pk_bf16_f32 v{d+q}, v{TM+2*q}, v{TM+2*q+1}")
            k(f"v_add_u32 v190, {32*i}, v189")
            k("v_lshrrev_b32 v197, 6, v190")
            k("v_mul_u32_u24 v190, 192, v190")
            k("v_mul_u32_u24 v197, 12288, v197")
            k("v_add3_u32 v190, v190, v197, v196")
            k(f"buffer_store_dwordx4 v[{d}:{d+3}], v190, s[44:47], 0 offen sc1")
        return f
    def job_reduce():
        def rscatter(B):
            for e in range(4):
                k(f"v_permlane32_swap_b32 v{B+e}, v{B+e+4}")
                k(f"v_add_f32 v{B+e}, v{B+e}, v{B+e+4}")
            for e in range(2):
                k(f"v_permlane16_swap_b32 v{B+e}, v{B+e+2}")
                k(f"v_add_f32 v{B+e}, v{B+e}, v{B+e+2}")
            k(f"v_add_f32_dpp v{B}, v{B}, v{B} row_ror:8 row_mask:0xf bank_mask:0xf")
            k(f"v_add_f32_dpp v{B+1}, v{B+1}, v{B+1} row_ror:8 row_mask:0xf bank_mask:0xf")
            k(f"v_cndmask_b32 v{B}, v{B}, v{B+1}, vcc")
        k("v_and_b32 v190, 8, v1")
        k("v_cmp_ne_u32 vcc, 0, v190")
        rscatter(UU); rscatter(TT)
        k("v_mul_u32_u24 v190, 384, v194")
        k("v_lshl_add_u32 v190, v195, 3, v190")
        k("v_lshrrev_b32 v197, 3, v1")
        k("v_add_u32 v190, v190, v197")
        k("s_mul_i32 s55, s52, 96")
        k("v_add_u32 v190, s55, v190")
        k("v_lshlrev_b32 v190, 2, v190")
        k("s_cmp_ge_u32 s2, 240")
        k(f"s_cselect_b32 s55, 0, {16 * 384 * 4}")
        k(f"s_add_u32 s44, s{WSP}, {WS_UT}")
        k(f"s_addc_u32 s45, s{WSP+1}, 0")
        k("s_mov_b32 s46, s55")
        k("s_mov_b32 s47, 0x00020000")
        k(f"buffer_atomic_add_f32 v{UU}, v190, s[44:47], 0 offen")
        k(f"buffer_atomic_add_f32 v{TT}, v190, s[44:47], 0 offen offset:768")
    def job_wo():
        divconst(k, 190, 191, 80, 55, 65536)
        k("v_mul_u32_u24 v197, 80, v190")
        k("v_sub_u32 v197, v191, v197")
        divconst(k, 198, 197, 10, 55, 80)
        k("v_mul_u32_u24 v194, 10, v198")
        k("v_sub_u32 v197, v197, v194")
        k("v_and_b32 v194, 0xfffffff3, v190")
        k("v_bfe_u32 v195, v190, 2, 1")
        k("v_lshl_or_b32 v194, v195, 3, v194")
        k("v_bfe_u32 v195, v190, 3, 1")
        k("v_lshl_or_b32 v194, v195, 2, v194")
        k(f"s_mov_b32 s55, {640*160}")
        k("v_mul_lo_u32 v198, s55, v198")
        k("v_mul_u32_u24 v194, 160, v194")
        k("v_lshlrev_b32 v197, 4, v197")
        k("v_add3_u32 v198, v198, v197, v194")
        k("s_mov_b32 s55, 51200")
        k("v_cmp_gt_u32 vcc, s55, v191")
        k("v_mov_b32 v194, 0x7ffffff0")
        k("v_cndmask_b32 v198, v194, v198, vcc")
        wsrd(k, 48, 8 * 640 * 160, WS_WOP)
        k(f"buffer_store_dwordx4 v[{WOD}:{WOD+3}], v198, s[48:51], 0 offen sc1")
    def job_flag():
        k("s_cmp_lg_u32 s8, 0")
        k("s_cbranch_scc1 P3_NOTF")
        set_flag(k, FL_T, 2, 188)
        k.label("P3_NOTF")
    put(5, only_job_waves("a", job_issue)); put(14, only_job_waves("b", job_mod)); put(24, only_job_waves("c", job_dst))
    for i in range(4): put(25 + i, only_job_waves(f"d{i}", job_chunk(i)))
    put(29, only_job_waves("e", job_reduce)); put(31, only_job_waves("f", job_wo))
    put(47, job_flag)
    def pf_lines(off, nbytes, base_fn, per, vtag):
        def f():
            wsrd(k, 40, nbytes, off)
            base_fn()
            k("s_lshr_b32 s10, s2, 3")
            k(f"s_mul_i32 s10, s10, {per}")
            k("s_add_u32 s9, s9, s10")
            k("v_add_u32 v118, s9, v0")
            k("v_lshlrev_b32 v118, 7, v118")
            k(f"v_cmp_gt_u32 vcc, {per}, v0")
            k("v_mov_b32 v124, 0x7ffffff0")
            k("v_cndmask_b32 v118, v124, v118, vcc")
            vm.issue(f"buffer_load_dword v{vtag}, v118, s[40:43], 0 offen", "pf")
        return f
    if not os.environ.get("NO_PRETOUCH"):
        def pretouch():
            wsrd(k, 40, WS_X1 + S * D * 2 - WS_O, WS_O)
            k("s_mul_i32 s9, s2, 160")
            k("v_add_u32 v118, s9, v0")
            k("v_lshlrev_b32 v118, 7, v118")
            k("v_cmp_gt_u32 vcc, 160, v0")
            k("v_mov_b32 v124, 0x7ffffff0")
            k("v_cndmask_b32 v118, v124, v118, vcc")
            vm.issue("buffer_load_dword v229, v118, s[40:43], 0 offen", "pf")
        put(35, pretouch)
    if not os.environ.get("NO_WPF"):
        put(49, pf_lines(WS_WOP, 8 * 640 * 160, lambda: k("s_mov_b32 s9, 0"), 200, 231))
        def upbase():
            k("s_bfe_u32 s9, s2, 0x20001")
            k("s_mul_i32 s9, s9, 7680")
        put(53, pf_lines(WS_WUP, 16 * 10 * 24576, upbase, 240, 230))
    SEQ = "W2 M1 RKa RKb e0 e1 e2 c0 e3 P1 RV0 RV1 e4 c1 e5 e6 M2 c2 e7 e8 c3 e9 e10 WV P0 BG c4 e11 e12 c5 e13 e14 e15 c6 c7"
    for r in rdK(0) + rdK(1) + rdV(0): k(r)
    k("s_waitcnt lgkmcnt(4)")
    k(M1(0)); k(M2(0))
    for t in range(NTL):
        s = SS + 16 * (t & 1)
        st, tt = divmod(t, 16)
        if t == 4:
            vm.wait({("kv", 0, i) for i in range(5)})
            k("s_barrier")
        if tt == 14 and st + 1 < 4:
            k("s_waitcnt vmcnt(0)")
            k("s_barrier")
        have_next = t + 1 < NTL
        rk = rdK(t + 2) if t + 2 < NTL else []
        rv = rdV(t + 1) if have_next else []
        nrd = len(rk) + len(rv)
        for tok in SEQ.split():
            if tok[0] == "e": i = int(tok[1:]); k(f"v_exp_f32 v{s+i}, v{s+i}")
            elif tok[0] == "c": q = int(tok[1:]); k(f"v_cvt_pk_bf16_f32 v{PP+q}, v{s+2*q}, v{s+2*q+1}")
            elif tok == "W2":
                if have_next: k("s_waitcnt lgkmcnt(2)")
            elif tok == "M1":
                if have_next: k(M1(t + 1))
            elif tok == "M2":
                if have_next: k(M2(t + 1))
            elif tok == "RKa":
                if rk: k(rk[0])
            elif tok == "RKb":
                if rk: k(rk[1])
            elif tok == "RV0":
                if rv: k(rv[0])
            elif tok == "RV1":
                if rv: k(rv[1])
            elif tok == "WV": k(f"s_waitcnt lgkmcnt({nrd})")
            elif tok == "BG":
                for f in bg.get(t, []): f()
            elif tok == "P0": k(PV(t, 0))
            elif tok == "P1":
                if t > 0: k(PV(t - 1, 1))
    k(PV(NTL - 1, 1))
    mark(k, 6)
    def finish(check):
        k(f"v_mov_b32 v2, v{OO+8}")
        k(f"v_mov_b32 v3, v{OO+8}")
        k("v_permlane32_swap_b32 v2, v3")
        if check:
            k("s_mov_b32 s9, 0x21800000         ; 2^-60")
            k("s_mov_b32 s10, 0x5d800000        ; 2^60")
            k("v_cmp_le_f32 vcc, s9, v3")
            k("v_cmp_ge_f32 s[28:29], s10, v3")
            k("s_and_b64 s[28:29], s[28:29], vcc")
            k("s_movk_i32 s9, 0x207")
            for r in range(8):
                k(f"v_cmp_class_f32 vcc, v{OO+r}, s9")
                k("s_andn2_b64 s[28:29], s[28:29], vcc")
            k("s_mov_b32 s34, -1")
            k("s_mov_b32 s35, 0")
            for r in range(8, 12):
                k(f"v_cmp_class_f32 vcc, v{OO+r}, s9")
                k("s_and_b64 vcc, vcc, s[34:35]")
                k("s_andn2_b64 s[28:29], s[28:29], vcc")
            k("s_cmp_eq_u64 s[28:29], -1")
            k("s_cbranch_scc1 ATT_OK")
            k("v_mov_b32 v2, 1")
            k(f"v_mov_b32 v5, {FLAG}")
            k("ds_write_b32 v5, v2")
            k.label("ATT_OK")
            k("s_waitcnt lgkmcnt(0)")
            k("s_barrier")
            k(f"v_mov_b32 v5, {FLAG}")
            k("ds_read_b32 v2, v5")
            k("s_waitcnt lgkmcnt(0)")
            k("v_readfirstlane_b32 s9, v2")
            k("s_cmp_lg_u32 s9, 0")
            k("s_cbranch_scc1 ATT_SLOW")
        k("v_rcp_f32 v3, v3")
        for r in range(12): k(f"v_mul_f32 v{OO+r}, v{OO+r}, v3")
        for q in range(6): k(f"v_cvt_pk_bf16_f32 v{PP+q}, v{OO+2*q}, v{OO+2*q+1}")
        k("v_and_b32 v4, 31, v1")
        k("v_mul_u32_u24 v4, 40, v4")
        k("v_lshrrev_b32 v5, 5, v1")
        k("v_lshl_add_u32 v4, v5, 3, v4")
        k("s_lshl_b32 s9, s8, 11")
        k("v_add_u32 v4, s9, v4")
        k(f"ds_write_b64 v4, v[{PP}:{PP+1}]")
        k(f"ds_write_b64 v4, v[{PP+2}:{PP+3}] offset:16")
        k("s_mov_b32 exec_hi, 0")
        k(f"ds_write_b64 v4, v[{PP+4}:{PP+5}] offset:32")
        k("s_mov_b64 exec, -1")
        k("v_lshlrev_b32 v5, 3, v1")
        k("v_add_u32 v5, s9, v5")
        k("s_waitcnt lgkmcnt(0)")
        for i in range(3): k(f"ds_read_b64 v[{SS+2*i}:{SS+2*i+1}], v5 offset:{512*i}")
        for i in range(3):
            k(f"s_waitcnt lgkmcnt({2-i})")
            k(f"buffer_store_dwordx2 v[{SS+2*i}:{SS+2*i+1}], v{128+i}, s[24:27], 0 offen sc1")
        k("s_branch P4_START")
    finish(True)
    k.label("ATT_SLOW")
    k("s_waitcnt vmcnt(0)")
    for r in range(16): k(f"v_mov_b32 v{OO+r}, 0")
    k("v_mov_b32 v2, 0xff7fffff")
    k("s_mov_b32 s15, 0")
    k.label("ATT_SLOW_STAGE")
    k("s_barrier")
    k(f"s_mul_i32 s10, s15, {STAGE}")
    for i in range(5):
        k(f"s_add_u32 m0, s13, {8192*i}")
        k(f"s_add_u32 s14, s10, {8192*i}")
        k(f"buffer_load_dwordx4 v{VDMA}, s[16:19], s14 offen sc1 lds")
    k("s_cmp_lg_u32 s8, 0")
    k("s_cbranch_scc1 ATT_SLOW_NP")
    k(f"s_add_u32 m0, s13, {8192*5}")
    k(f"s_add_u32 s14, s10, {8192*5}")
    k(f"buffer_load_dwordx4 v{VDMA}, s[16:19], s14 offen sc1 lds")
    k.label("ATT_SLOW_NP")
    k("s_waitcnt vmcnt(0)")
    k("s_barrier")
    k(f"v_mov_b32 v5, v{AK}")
    k(f"v_mov_b32 v6, v{AKB}")
    k(f"v_mov_b32 v7, v{AV}")
    k("s_mov_b32 s9, 0")
    k.label("ATT_SLOW_TILE")
    k(f"ds_read_b128 v[{KA}:{KA+3}], v5")
    k(f"ds_read_b64 v[{KB}:{KB+1}], v6")
    k(f"ds_read_b128 v[{VF}:{VF+3}], v7")
    k(f"ds_read_b128 v[{VF+4}:{VF+7}], v7 offset:672")
    k("s_waitcnt lgkmcnt(0)")
    k(m16(SS, KA, Q1, "0"))
    k(m8(SS, KB, Q2, f"v[{SS}:{SS+15}]"))
    k(f"v_add_u32 v5, {KV_TILE}, v5")
    k(f"v_add_u32 v6, {KV_TILE}, v6")
    k(f"v_add_u32 v7, {KV_TILE}, v7")
    k(f"v_max_f32 v108, v{SS}, v{SS+1}")
    for r in range(2, 16): k(f"v_max_f32 v108, v108, v{SS+r}")
    k("v_mov_b32 v109, v108")
    k("v_permlane32_swap_b32 v108, v109")
    k("v_max_f32 v108, v108, v109")
    k("v_max_f32 v108, v108, v2")
    k("v_sub_f32 v109, v2, v108")
    k("v_exp_f32 v109, v109")
    k("v_mov_b32 v2, v108")
    for r in range(16): k(f"v_sub_f32 v{SS+r}, v{SS+r}, v108")
    for r in range(16): k(f"v_exp_f32 v{SS+r}, v{SS+r}")
    for r in range(16): k(f"v_mul_f32 v{OO+r}, v{OO+r}, v109")
    for q in range(8): k(f"v_cvt_pk_bf16_f32 v{PP+q}, v{SS+2*q}, v{SS+2*q+1}")
    k(m16(OO, VF, PP, f"v[{OO}:{OO+15}]"))
    k(m16(OO, VF + 4, PP + 4, f"v[{OO}:{OO+15}]"))
    k("s_add_u32 s9, s9, 1")
    k("s_cmp_lt_u32 s9, 16")
    k("s_cbranch_scc1 ATT_SLOW_TILE")
    k("s_add_u32 s15, s15, 1")
    k("s_cmp_lt_u32 s15, 4")
    k("s_cbranch_scc1 ATT_SLOW_STAGE")
    k("s_barrier")
    finish(False)

def narrow_ids(k):
    k("s_and_b32 s3, s2, 7")
    k("s_lshr_b32 s13, s2, 3")
    k("s_lshl_b32 s14, s3, 2")
    k("s_and_b32 s15, s13, 3")
    k("s_add_u32 s11, s14, s15")
    k("s_lshr_b32 s12, s13, 2")
    k("s_and_b32 s28, s31, 1")
    k("s_lshr_b32 s29, s31, 1           ; k half")
    k("s_lshl_b32 s9, s11, 6")
    k("s_lshl_b32 s10, s28, 5")
    k("s_add_u32 s30, s9, s10")

RESL, GTL = 147456, 157696
def narrow_res_dma(k, resid_is_input, gate_idx):
    if resid_is_input: srd(k, 24, XP, S * D * 2)
    else: wsrd(k, 24, S * D * 2, WS_X1)
    wsrd(k, 36, 6 * 640 * 4, WS_MODV)
    k("v_and_b32 v16, 255, v0")
    k("s_lshl_b32 s9, s11, 6")
    k("s_mul_i32 s10, s12, 160")
    for i in range(3):
        k(f"v_add_u32 v17, {256*i}, v16")
        k("v_mul_u32_u24 v18, 6554, v17")
        k("v_lshrrev_b32 v18, 16, v18        ; row")
        k("v_mul_u32_u24 v19, 10, v18")
        k("v_sub_u32 v19, v17, v19           ; chunk")
        k("v_add_u32 v18, s9, v18")
        k("v_mul_u32_u24 v18, 1280, v18")
        k("v_lshl_add_u32 v18, v19, 4, v18")
        k("v_add_u32 v18, s10, v18")
        if i == 2:
            k("v_cmp_gt_u32 vcc, 640, v17")
            k("v_mov_b32 v19, 0x7ffffff0")
            k("v_cndmask_b32 v18, v19, v18, vcc")
        k("s_lshl_b32 s14, s31, 10")
        k(f"s_add_u32 m0, s14, {RESL + 4096*i}")
        if i == 2:
            k("s_cmp_ge_u32 s31, 2")
            k("s_cbranch_scc1 NRD_SKIP%d" % gate_idx)
        k("buffer_load_dwordx4 v18, s[24:27], 0 offen sc1 lds")
        if i == 2: k.label("NRD_SKIP%d" % gate_idx)
    k("s_cmp_lg_u32 s31, 3")
    k("s_cbranch_scc1 NRD_NG%d" % gate_idx)
    k("v_lshlrev_b32 v18, 4, v1")
    k("s_mul_i32 s14, s12, 320")
    k(f"s_add_u32 s14, s14, {gate_idx*2560}")
    k(f"s_mov_b32 m0, {GTL}")
    k("s_mov_b32 exec_lo, 0xfffff")
    k("s_mov_b32 exec_hi, 0")
    k("buffer_load_dwordx4 v18, s[36:39], s14 offen sc1 lds")
    k("s_mov_b64 exec, -1")
    k.label("NRD_NG%d" % gate_idx)

def narrow_loader_setup(k, Kdim, a_off, b_off):
    KH = Kdim // 2; NST = KH // 64; lda = Kdim * 2
    VA, VB, NS = 8, 12, 4
    k(f"s_mul_i32 s34, s29, {KH*2}")
    a_dma_rows32(k, VA, 30, lda, 34)
    k("v_lshlrev_b32 v2, 4, v1")
    k(f"s_mul_i32 s9, s12, {Kdim*160}")
    k(f"s_mul_i32 s10, s29, {KH*160}")
    k("s_add_u32 s9, s9, s10")
    k("s_mul_i32 s10, s28, 5120")
    k("s_add_u32 s9, s9, s10")
    k(f"v_add_u32 v{VB}, s9, v2")
    k(f"v_add_u32 v{VB+1}, 4096, v{VB}")
    k("s_lshl_b32 s13, s31, 12")
    k("s_mul_i32 s15, s29, 10240")
    k("s_mul_i32 s10, s28, 5120")
    k("s_add_u32 s15, s15, s10")
    wsrd(k, 16, S * Kdim * 2, a_off)
    wsrd(k, 20, 8 * Kdim * 160, b_off)
    def dmaA(st):
        k(f"s_add_u32 m0, s13, {(st % NS)*16384}")
        k(f"s_mov_b32 s14, {st*128}")
        for i in range(4):
            k(f"buffer_load_dwordx4 v{VA+i}, s[16:19], s14 offen offset:{i*1024} sc1 lds")
    def dmaB(st):
        slot = st % NS
        k(f"s_add_u32 m0, s15, {65536 + slot*20480}")
        k(f"s_mov_b32 s14, {st*10240}")
        for i in range(4):
            k(f"buffer_load_dwordx4 v{VB}, s[20:23], s14 offen offset:{i*1024} sc1 lds")
        k(f"s_add_u32 m0, s15, {65536 + slot*20480 + 4096}")
        k("s_nop 0")
        k(f"buffer_load_dwordx4 v{VB+1}, s[20:23], s14 offen sc1 lds")
    return Loader(k, NST, NS, dmaA, dmaB, 4, 5)

def narrow_compute(k, tag, Kdim, resid_is_input, gate_idx, final, pre_barrier):
    KH = Kdim // 2; NST = KH // 64; NS = 4
    RA, RB, AF, BF, ACC, RES, GT = 4, 6, 12, 28, 68, 108, 120
    k("v_and_b32 v2, 15, v1")
    k("v_lshrrev_b32 v3, 4, v1          ; g")
    k("v_lshrrev_b32 v10, 1, v2")
    k("v_lshlrev_b32 v2, 7, v2")
    k("s_lshl_b32 s13, s8, 12")
    k("v_add_u32 v2, s13, v2")
    for ks in range(2):
        k(f"v_add_u32 v11, {4*ks}, v3")
        k("v_xor_b32 v11, v11, v10")
        k(f"v_lshl_add_u32 v{RA+ks}, v11, 4, v2")
    k("v_lshrrev_b32 v2, 5, v1")
    k("v_lshlrev_b32 v2, 4, v2")
    k("v_bfe_u32 v10, v1, 4, 1")
    k("v_lshl_add_u32 v2, v10, 2, v2")
    k("v_bfe_u32 v10, v1, 2, 2")
    k("v_add_u32 v2, v2, v10")
    k("v_mul_u32_u24 v2, 160, v2")
    k("v_and_b32 v10, 3, v1")
    k("v_lshl_add_u32 v2, v10, 3, v2")
    k("s_mul_i32 s10, s29, 10240")
    k("s_add_u32 s10, s10, 65536")
    k(f"v_add_u32 v{RB}, s10, v2")
    k(f"v_add_u32 v{RB+1}, 40960, v{RB}")
    k("v_and_b32 v2, 15, v1")
    k("s_lshl_b32 s10, s29, 4")
    k("s_add_u32 s10, s10, s30")
    k("v_add_u32 v2, s10, v2")
    k("v_mul_u32_u24 v8, 1280, v2")
    k("s_mul_i32 s10, s12, 160")
    k("v_lshl_add_u32 v8, v3, 3, v8")
    k("v_add_u32 v8, s10, v8")
    k("s_mul_i32 s10, s12, 320")
    k("v_lshlrev_b32 v9, 4, v3")
    k("v_add_u32 v9, s10, v9")
    if final: srd(k, 32, OUTP, S * D * 2)
    else: wsrd(k, 32, S * D * 2, WS_X1)
    XL, XG = 144, 148
    k("s_mul_i32 s9, s8, 3072")
    k("s_add_u32 s9, s9, 24576")
    k("s_lshl_b32 s10, s29, 4")
    k("s_add_u32 s10, s10, s30")
    k("s_mul_i32 s40, s12, 160")
    for i in range(3):
        k(f"v_add_u32 v10, {64*i}, v1")
        k("v_mul_u32_u24 v11, 6554, v10")
        k("v_lshrrev_b32 v11, 16, v11        ; row")
        k("v_mul_u32_u24 v140, 10, v11")
        k("v_sub_u32 v140, v10, v140         ; chunk")
        k("v_lshlrev_b32 v140, 4, v140")
        k("v_mul_u32_u24 v141, 176, v11")
        k(f"v_add3_u32 v{XL+i}, v141, v140, s9")
        k("v_add_u32 v11, s10, v11")
        k("v_mul_u32_u24 v11, 1280, v11")
        k(f"v_add3_u32 v{XG+i}, v11, v140, s40")
    k("v_cmp_gt_u32 vcc, 32, v1")
    k("v_mov_b32 v10, 0x7ffffff0")
    k(f"v_cndmask_b32 v{XG+2}, v10, v{XG+2}, vcc")
    k("v_and_b32 v10, 15, v1")
    k("v_mul_u32_u24 v10, 176, v10")
    k("v_lshrrev_b32 v11, 4, v1")
    k("v_lshlrev_b32 v11, 3, v11")
    k("v_add3_u32 v147, v10, v11, s9")
    pre_barrier()
    if APF: apf_rows(k, WS_G if final else WS_O, S * Kdim * 2, lambda: k("s_lshl_b32 s9, s11, 6"), Kdim * 2, 6, 0, NST,
                     lambda: k("s_mov_b32 s9, s12"), 128 * NST // 8, 10, 229, khalf=KH * 2)
    def reads(step):
        st, ks = divmod(step, 2); slot = st % NS; sb = step & 1
        a = [f"ds_read_b128 v[{AF+(sb*2+mb)*4}:{AF+(sb*2+mb)*4+3}], v{RA+ks} offset:{slot*16384 + mb*2048}" for mb in range(2)]
        out = []
        for nt in range(5):
            d = BF + (sb * 5 + nt) * 4
            g = [f"ds_read_b64_tr_b16 v[{d+2*j}:{d+2*j+1}], v{RB+(slot>>1)} offset:{(slot&1)*20480 + (32*ks+8*j)*160 + nt*32}" for j in range(2)]
            out.append((a if nt == 0 else []) + g)
        return out
    def mf(step, nt):
        sb = step & 1
        return [mfma16(ACC + (nt * 2 + mb) * 4, BF + (sb * 5 + nt) * 4, AF + (sb * 2 + mb) * 4, "0" if step == 0 else None) for mb in range(2)]
    compute_loop(k, NST, 2, reads, mf, 0, stamp=False, hooks={-1: lambda: mark(k, 21 if final else 23)})
    mark(k, 9 if not final else 15)
    k("s_barrier")
    k("v_lshlrev_b32 v2, 4, v1")
    k("s_mul_i32 s9, s8, 5120")
    k("v_add_u32 v3, s9, v2")
    k("s_xor_b32 s10, s8, 2")
    k("s_mul_i32 s10, s10, 5120")
    k("v_add_u32 v4, s10, v2")
    k("s_cmp_eq_u32 s29, 0")
    k(f"s_cbranch_scc1 {tag}_KH0")
    for nt in range(5):
        d = ACC + (nt * 2 + 0) * 4
        k(f"ds_write_b128 v3, v[{d}:{d+3}] offset:{1024*nt}")
    for nt in range(5):
        for r in range(4): k(f"v_mov_b32 v{ACC+(nt*2)*4+r}, v{ACC+(nt*2+1)*4+r}")
    k(f"s_branch {tag}_JOIN")
    k.label(f"{tag}_KH0")
    for nt in range(5):
        d = ACC + (nt * 2 + 1) * 4
        k(f"ds_write_b128 v3, v[{d}:{d+3}] offset:{1024*nt}")
    k.label(f"{tag}_JOIN")
    k("s_waitcnt lgkmcnt(0)")
    k("s_barrier")
    for nt in range(5):
        k(f"ds_read_b128 v[{BF+4*nt}:{BF+4*nt+3}], v4 offset:{1024*nt}")
    k("v_and_b32 v2, 15, v1")
    k("s_lshl_b32 s10, s29, 4")
    k("s_lshl_b32 s9, s28, 5")
    k("s_add_u32 s10, s10, s9")
    k("v_add_u32 v2, s10, v2")
    k("v_mul_u32_u24 v2, 160, v2")
    k("v_lshrrev_b32 v3, 4, v1")
    k("v_lshl_add_u32 v2, v3, 3, v2")
    k(f"v_add_u32 v2, {RESL}, v2")
    k("v_lshlrev_b32 v3, 4, v3")
    k(f"v_add_u32 v3, {GTL}, v3")
    for nt in range(5):
        k(f"ds_read_b64 v[{RES+2*nt}:{RES+2*nt+1}], v2 offset:{32*nt}")
        k(f"ds_read_b128 v[{GT+4*nt}:{GT+4*nt+3}], v3 offset:{64*nt}")
    k("s_waitcnt lgkmcnt(0)")
    st_sc = "" if final else " sc1"
    for nt in range(5):
        d = ACC + nt * 8
        for r in range(4): k(f"v_add_f32 v{d+r}, v{d+r}, v{BF+4*nt+r}")
        k(f"v_lshlrev_b32 v12, 16, v{RES+2*nt}")
        k(f"v_and_b32 v13, 0xffff0000, v{RES+2*nt}")
        k(f"v_lshlrev_b32 v14, 16, v{RES+2*nt+1}")
        k(f"v_and_b32 v15, 0xffff0000, v{RES+2*nt+1}")
        for r in range(4): k(f"v_fmac_f32 v{12+r}, v{d+r}, v{GT+4*nt+r}")
        k(f"v_cvt_pk_bf16_f32 v{16+2*(nt%2)}, v12, v13")
        k(f"v_cvt_pk_bf16_f32 v{17+2*(nt%2)}, v14, v15")
        k(f"ds_write_b64 v147, v[{16+2*(nt%2)}:{17+2*(nt%2)}] offset:{32*nt}")
        if not final:
            t = 16 + 2 * (nt % 2)
            k(f"v_lshlrev_b32 v12, 16, v{t}")
            k(f"v_and_b32 v13, 0xffff0000, v{t}")
            k(f"v_lshlrev_b32 v14, 16, v{t+1}")
            k(f"v_and_b32 v15, 0xffff0000, v{t+1}")
            if nt == 0:
                k("v_add_f32 v20, v12, v13"); k("v_add_f32 v21, v14, v15")
                k("v_mul_f32 v22, v12, v12"); k("v_mul_f32 v23, v13, v13")
            else:
                k("v_add_f32 v20, v20, v12"); k("v_add_f32 v21, v21, v13")
                k("v_fmac_f32 v22, v12, v12"); k("v_fmac_f32 v23, v13, v13")
                k("v_add_f32 v20, v20, v14"); k("v_add_f32 v21, v21, v15")
            k("v_fmac_f32 v22, v14, v14"); k("v_fmac_f32 v23, v15, v15")
    k("s_waitcnt lgkmcnt(0)")
    for i in range(3): k(f"ds_read_b128 v[{BF+4*i}:{BF+4*i+3}], v{144+i}")
    for i in range(3):
        k(f"s_waitcnt lgkmcnt({2-i})")
        k(f"buffer_store_dwordx4 v[{BF+4*i}:{BF+4*i+3}], v{148+i}, s[32:35], 0 offen{st_sc}")
    if not final:
        k("v_add_f32 v20, v20, v21")
        k("v_add_f32 v21, v22, v23")
        for sw in ("v_permlane32_swap_b32", "v_permlane16_swap_b32"):
            k("v_mov_b32 v22, v20"); k("v_mov_b32 v23, v21")
            k(f"{sw} v20, v22"); k(f"{sw} v21, v23")
            k("v_add_f32 v20, v20, v22"); k("v_add_f32 v21, v21, v23")
        wsrd(k, 24, 2048 * 64, WS_STAT)
        k("v_and_b32 v2, 15, v1")
        k("s_lshl_b32 s10, s29, 4")
        k("s_add_u32 s10, s10, s30")
        k("v_add_u32 v2, s10, v2")
        k("v_lshlrev_b32 v2, 6, v2")
        k("s_lshl_b32 s10, s12, 3")
        k("s_mov_b64 exec, 0xffff")
        k("buffer_store_dwordx2 v[20:21], v2, s[24:27], s10 offen sc1")
        k("s_mov_b64 exec, -1")

def up_ids(k):
    k("s_and_b32 s3, s2, 7")
    k("s_lshr_b32 s13, s2, 3")
    k("s_and_b32 s14, s3, 1")
    k("s_lshl_b32 s14, s14, 3")
    k("s_and_b32 s15, s13, 7")
    k("s_add_u32 s11, s14, s15")
    k("s_lshr_b32 s14, s3, 1")
    k("s_lshl_b32 s14, s14, 2")
    k("s_lshr_b32 s15, s13, 3")
    k("s_add_u32 s12, s14, s15")

def up_loader_setup(k):
    VA, VB, NS = 8, 12, 4
    k("s_lshl_b32 s9, s11, 7")
    k("s_lshl_b32 s10, s31, 5")
    k("s_add_u32 s9, s9, s10")
    a_dma_rows32(k, VA, 9, 1280)
    k("v_lshlrev_b32 v2, 4, v1")
    k("s_mul_i32 s9, s31, 6144")
    k(f"s_mul_i32 s10, s12, {10*24576}")
    k("s_add_u32 s9, s9, s10")
    k(f"v_add_u32 v{VB}, s9, v2")
    k(f"v_add_u32 v{VB+1}, 4096, v{VB}")
    k("s_lshl_b32 s13, s31, 12")
    k("s_mul_i32 s15, s31, 6144")
    wsrd(k, 16, S * D * 2, WS_X1)
    wsrd(k, 20, 16 * 10 * 24576, WS_WUP)
    def dmaA(st):
        k(f"s_add_u32 m0, s13, {(st % NS)*16384}")
        k(f"s_mov_b32 s14, {st*128}")
        for i in range(4):
            k(f"buffer_load_dwordx4 v{VA+i}, s[16:19], s14 offen offset:{i*1024} sc1 lds")
    def dmaB(st):
        slot = st % NS
        k(f"s_add_u32 m0, s15, {65536 + slot*24576}")
        k(f"s_mov_b32 s14, {st*24576}")
        for i in range(4):
            k(f"buffer_load_dwordx4 v{VB}, s[20:23], s14 offen offset:{i*1024} sc1 lds")
        k(f"s_add_u32 m0, s15, {65536 + slot*24576 + 4096}")
        k("s_nop 0")
        for i in range(2):
            k(f"buffer_load_dwordx4 v{VB+1}, s[20:23], s14 offen offset:{i*1024} sc1 lds")
    return Loader(k, 10, NS, dmaA, dmaB, 4, 6)

def up_compute(k, pre_barrier):
    AF, BF, ACC, RA, RB, NS = 16, 24, 72, 4, 8, 4
    k("v_and_b32 v2, 31, v1")
    k("v_lshrrev_b32 v3, 5, v1")
    k("v_bfe_u32 v14, v2, 1, 3")
    k("v_lshlrev_b32 v2, 7, v2")
    k("s_lshl_b32 s10, s8, 12")
    k("v_add_u32 v2, s10, v2")
    for ks in range(4):
        k(f"v_add_u32 v15, {2*ks}, v3")
        k("v_xor_b32 v15, v15, v14")
        k(f"v_lshl_add_u32 v{RA+ks}, v15, 4, v2")
    k("v_lshrrev_b32 v2, 5, v1")
    k("v_bfe_u32 v3, v1, 2, 2")
    k("v_lshl_add_u32 v2, v2, 3, v3")
    k("v_mul_u32_u24 v2, 192, v2")
    k("v_bfe_u32 v14, v1, 4, 1")
    k("v_lshl_add_u32 v2, v14, 5, v2")
    k("v_and_b32 v14, 3, v1")
    k("v_lshl_add_u32 v2, v14, 3, v2")
    k(f"v_add_u32 v{RB}, 65536, v2")
    k(f"v_add_u32 v{RB+1}, {65536+49152}, v2")
    k("v_and_b32 v2, 31, v1")
    k("s_lshl_b32 s9, s11, 7")
    k("s_lshl_b32 s10, s8, 5")
    k("s_add_u32 s9, s9, s10")
    k("v_add_u32 v2, s9, v2")
    k("v_lshlrev_b32 v2, 6, v2")
    wsrd(k, 44, 2048 * 64, WS_STAT)
    GST, GL, GG = 131072, 200, 206
    k("s_mul_i32 s9, s8, 6656")
    k(f"s_add_u32 s9, s9, {GST}")
    k("s_lshl_b32 s10, s11, 7")
    k("s_lshl_b32 s34, s8, 5")
    k("s_add_u32 s10, s10, s34")
    k("s_mul_i32 s34, s12, 192")
    for i in range(6):
        k(f"v_add_u32 v14, {64*i}, v1")
        k("v_mul_u32_u24 v15, 5462, v14")
        k("v_lshrrev_b32 v15, 16, v15        ; row")
        k("v_mul_u32_u24 v16, 12, v15")
        k("v_sub_u32 v16, v14, v16           ; chunk")
        k("v_lshlrev_b32 v16, 4, v16")
        k("v_mul_u32_u24 v17, 208, v15")
        k(f"v_add3_u32 v{GL+i}, v17, v16, s9")
        k("v_add_u32 v15, s10, v15")
        k("v_mul_u32_u24 v15, 3072, v15")
        k(f"v_add3_u32 v{GG+i}, v15, v16, s34")
    k("v_and_b32 v14, 31, v1")
    k("v_mul_u32_u24 v14, 208, v14")
    k("v_lshrrev_b32 v15, 5, v1")
    k("v_lshlrev_b32 v15, 4, v15")
    k("v_add3_u32 v212, v14, v15, s9")
    pre_barrier()
    if APF: apf_rows(k, WS_X1, S * D * 2, lambda: k("s_lshl_b32 s9, s11, 7"), 1280, 7, 0, 10, lambda: k("s_and_b32 s9, s12, 3"), 320, 14, 228)
    STT = 168
    def reads(step):
        st, ks = divmod(step, 4); slot = st % NS; sb = step & 1
        a = f"ds_read_b128 v[{AF+4*sb}:{AF+4*sb+3}], v{RA+ks} offset:{slot*16384}"
        out = []
        for nt in range(6):
            d = BF + (sb * 6 + nt) * 4
            off = (slot & 1) * 24576 + (nt // 3) * 12288 + (nt % 3) * 64
            g = [f"ds_read_b64_tr_b16 v[{d+2*j}:{d+2*j+1}], v{RB+(slot>>1)} offset:{off + (16*ks+4*j)*192}" for j in range(2)]
            out.append(([a] if nt == 0 else []) + g)
        return out
    def mf(step, nt):
        sb = step & 1
        return [mfma32(ACC + 16 * nt, BF + (sb * 6 + nt) * 4, AF + 4 * sb, "0" if step == 0 else None)]
    compute_loop(k, 10, 4, reads, mf, 0, stamp=False, hooks={-1: lambda: mark(k, 22)})
    mark(k, 12)
    k("s_barrier")
    k("v_and_b32 v2, 31, v1")
    k("s_lshl_b32 s9, s8, 5")
    k("v_add_u32 v2, s9, v2")
    k("v_lshlrev_b32 v2, 6, v2")
    k("v_add_u32 v2, 36864, v2")
    for q in range(4): k(f"ds_read_b128 v[{STT+4*q}:{STT+4*q+3}], v2 offset:{16*q}")
    k("s_waitcnt lgkmcnt(0)")
    k(f"v_add_f32 v10, v{STT}, v{STT+2}")
    k(f"v_add_f32 v11, v{STT+1}, v{STT+3}")
    for q in range(2, 8):
        k(f"v_add_f32 v10, v10, v{STT+2*q}")
        k(f"v_add_f32 v11, v11, v{STT+2*q+1}")
    k(f"s_mov_b32 s9, {hex(f2u(1.0/640))}")
    k("v_mul_f32 v10, s9, v10            ; mean")
    k("v_mul_f32 v13, v10, v10")
    k("v_fma_f32 v11, v11, s9, -v13      ; variance")
    k("v_max_f32 v11, 0, v11")
    k("v_add_f32 v11, 0x3727c5ac, v11")
    k("v_rsq_f32 v11, v11")
    k("s_nop 0")
    k("v_mul_f32 v13, v10, v11")
    k("v_sub_f32 v12, 0, v13")
    k("v_mov_b32 v13, v12")
    k("v_mov_b32 v10, v11")
    k("v_lshrrev_b32 v14, 5, v1")
    k("v_lshlrev_b32 v14, 4, v14")
    k("v_add_u32 v14, 32768, v14")
    wsrd(k, 24, S * F * 2, WS_G)
    k("v_and_b32 v2, 31, v1")
    k("s_lshl_b32 s9, s11, 7")
    k("s_lshl_b32 s10, s8, 5")
    k("s_add_u32 s9, s9, s10")
    k("v_add_u32 v2, s9, v2")
    k("v_mul_u32_u24 v2, 3072, v2")
    k("v_lshrrev_b32 v3, 5, v1")
    k("v_lshlrev_b32 v3, 4, v3")
    k("s_mul_i32 s9, s12, 192")
    k("v_add3_u32 v2, v2, v3, s9")
    c1 = -2.0 * 0.7978845608028654 * 1.4426950408889634
    c2 = c1 * 0.044715
    for r, c in ((4, c1), (5, c1), (6, c2), (7, c2), (8, 1.0), (9, 1.0)): k(f"v_mov_b32 v{r}, {hex(f2u(c))}")
    pk = lambda r: f"v[{r}:{r+1}]"
    U0, U1 = 40, 168
    def ut_reads(slot, off):
        U = (U0, U1)[slot]
        for mat in range(2):
            for jj in range(2):
                k(f"ds_read_b128 v[{U+8*mat+4*jj}:{U+8*mat+4*jj+3}], v14 offset:{mat*384 + off + 32*jj}")
                k(f"ds_read_b128 v[{U+16+8*mat+4*jj}:{U+16+8*mat+4*jj+3}], v14 offset:{768 + mat*384 + off + 32*jj}")
    if os.environ.get("UPDIAG"): mark(k, 25)
    def group(jp, g, nxt_slot, nxt_off, woff):
        U = (U0, U1)[jp]
        u = g + 48
        T = 16 + 8 * jp
        if nxt_off is not None: ut_reads(nxt_slot, nxt_off)
        k(f"s_waitcnt lgkmcnt({8 if nxt_off is not None else 0})")
        for mat in range(2):
            for r in range(0, 8, 2):
                k(f"v_pk_fma_f32 {pk(U+16+8*mat+r)}, {pk(U+8*mat+r)}, v[12:13], {pk(U+16+8*mat+r)}")
        for mat in range(2):
            base = g if mat == 0 else u
            for r in range(0, 8, 2):
                k(f"v_pk_fma_f32 {pk(base+r)}, {pk(base+r)}, v[10:11], {pk(U+16+8*mat+r)}")
        for r in range(0, 8, 2): k(f"v_pk_mul_f32 {pk(T+r)}, {pk(g+r)}, {pk(g+r)}")
        for r in range(0, 8, 2): k(f"v_pk_fma_f32 {pk(T+r)}, {pk(T+r)}, v[6:7], v[4:5]")
        for r in range(0, 8, 2): k(f"v_pk_mul_f32 {pk(T+r)}, {pk(T+r)}, {pk(g+r)}")
        for r in range(8): k(f"v_exp_f32 v{T+r}, v{T+r}")
        for r in range(0, 8, 2): k(f"v_pk_mul_f32 {pk(g+r)}, {pk(g+r)}, {pk(u+r)}")
        for r in range(0, 8, 2): k(f"v_pk_add_f32 {pk(T+r)}, {pk(T+r)}, v[8:9]")
        for r in range(8): k(f"v_rcp_f32 v{T+r}, v{T+r}")
        for r in range(0, 8, 2): k(f"v_pk_mul_f32 {pk(T+r)}, {pk(T+r)}, {pk(g+r)}")
        t = 32 + 4 * jp
        for q in range(4): k(f"v_cvt_pk_bf16_f32 v{t+q}, v{T+2*q}, v{T+2*q+1}")
        k(f"v_permlane32_swap_b32 v{t}, v{t+2}")
        k(f"v_permlane32_swap_b32 v{t+1}, v{t+3}")
        k(f"ds_write_b128 v212, v[{t}:{t+3}] offset:{woff}")
    ut_reads(0, 0)
    if os.environ.get("EPI_LOOP"):
        k("s_mov_b32 s34, 3")
        k.label("UP_EPI")
        for jp in range(2): group(jp, ACC + 8 * jp, 1 - jp, 64 * (jp + 1), 32 * jp)
        for base in (ACC, ACC + 48):
            for r in range(0, 32, 2): k(f"v_pk_mov_b32 {pk(base+r)}, {pk(base+16+r)}, {pk(base+16+r)} op_sel:[0,1]")
        k("v_add_u32 v14, 128, v14")
        k("v_add_u32 v212, 64, v212")
        k("s_sub_u32 s34, s34, 1")
        k("s_cmp_lg_u32 s34, 0")
        k("s_cbranch_scc1 UP_EPI")
    else:
        for grp in range(6):
            nt, jp = divmod(grp, 2)
            group(jp, ACC + 16 * nt + 8 * jp, 1 - jp, (64 * (grp + 1) if grp < 5 else None), 64 * nt + 32 * jp)
    if os.environ.get("UPDIAG"): mark(k, 28)
    k("s_waitcnt lgkmcnt(0)")
    for i in range(6): k(f"ds_read_b128 v[{ACC+4*i}:{ACC+4*i+3}], v{200+i}")
    for i in range(6):
        k(f"s_waitcnt lgkmcnt({5-i})")
        k(f"buffer_store_dwordx4 v[{ACC+4*i}:{ACC+4*i+3}], v{206+i}, s[24:27], 0 offen sc1")

def phases456(k):
    k.label("P4_START")
    if not os.environ.get("LDIAG") and not os.environ.get("P0DIAG") and not os.environ.get("UPDIAG"): mark(k, 25)
    k("s_waitcnt vmcnt(0)")
    if not os.environ.get("LDIAG") and not os.environ.get("P0DIAG") and not os.environ.get("UPDIAG"): mark(k, 26)
    k("s_barrier                        ; B_h")
    mark(k, 7)
    narrow_ids(k)
    k("s_cmp_lt_u32 s8, 4")
    k("s_cbranch_scc1 P4_COMPUTE")
    k("s_cmp_lg_u32 s8, 7")
    k("s_cbranch_scc1 P4L_NF")
    set_flag(k, FL_O, 2)
    k.label("P4L_NF")
    L = narrow_loader_setup(k, 640, WS_O, WS_WOP)
    poll_all(k, "P4L_T", FL_T, 20)
    L.preloadB()
    narrow_res_dma(k, True, 2)
    k("s_cmp_lg_u32 s8, 4")
    k("s_cbranch_scc1 P4L_GO")
    poll_range(k, "P4L_O", FL_O, lambda: k("s_lshl_b32 s9, s3, 5"), 32)
    k.label("P4L_GO")
    k("s_barrier                        ; B_i")
    mark(k, 8)
    L.run(prefetch=apf_loader(k, WS_O, S * 640 * 2, lambda: k("s_lshl_b32 s9, s11, 6"), 1280, 6, 1, 4, lambda: k("s_mov_b32 s9, s12"), 64, 17, 229, khalf=640))
    k("s_barrier")
    k("s_barrier")
    k("s_lshr_b32 s35, s11, 1")
    k("s_lshl_b32 s35, s35, 4")
    k("s_and_b32 s36, s11, 1")
    k("s_lshl_b32 s36, s36, 3")
    k("s_add_u32 s35, s35, s36")
    k("s_add_u32 s35, s35, s12")
    up_ids(k)
    L = up_loader_setup(k)
    L.preloadB()
    k("s_barrier")
    k("s_cmp_lg_u32 s8, 4")
    k("s_cbranch_scc1 P5L_GO")
    set_flag(k, FL_X1, 35)
    poll_range(k, "P5L_X", FL_X1, lambda: k("s_lshl_b32 s9, s11, 4"), 16)
    k.label("P5L_GO")
    k("s_barrier                        ; B_k")
    mark(k, 11)

    def ut_issue():
        wsrd(k, 24, 16 * 384 * 4, WS_UT)
        k("v_lshlrev_b32 v2, 4, v1")
        k("s_mul_i32 s14, s12, 1536")
        k("s_and_b32 s9, s31, 1")
        k("s_lshl_b32 s9, s9, 10")
        k("s_add_u32 s14, s14, s9")
        k("s_add_u32 m0, s9, 32768")
        k("s_nop 0")
        k("buffer_load_dwordx4 v2, s[24:27], s14 offen sc1 lds")
        wsrd(k, 24, 2048 * 64, WS_STAT)
        k("s_lshl_b32 s14, s11, 13")
        k("s_lshl_b32 s9, s31, 11")
        k("s_add_u32 s14, s14, s9")
        k("s_add_u32 m0, s9, 36864")
        k("s_nop 0")
        k("buffer_load_dwordx4 v2, s[24:27], s14 offen sc1 lds")
        k("buffer_load_dwordx4 v2, s[24:27], s14 offen offset:1024 sc1 lds")
        n = 0
        if os.environ.get("WDPF"):
            wsrd(k, 52, 8 * 1536 * 160, WS_WDP)
            k("s_lshr_b32 s9, s2, 3")
            k("s_mul_i32 s9, s9, 480")
            k("v_and_b32 v20, 255, v0")
            for i in range(2):
                k(f"v_add_u32 v21, {256*i}, v20")
                k("v_add_u32 v22, s9, v21")
                k("v_lshlrev_b32 v22, 7, v22")
                if i:
                    k("v_cmp_gt_u32 vcc, 480, v21")
                    k("v_mov_b32 v23, 0x7ffffff0")
                    k("v_cndmask_b32 v22, v23, v22, vcc")
                k(f"buffer_load_dword v{228+i}, v22, s[52:55], 0 offen")
                n += 1
        npf.append(n)
        return 3 + n
    npf = []
    L.run(after_barrier={8: ut_issue}, prefetch=(apf_loader(k, WS_X1, S * D * 2, lambda: k("s_lshl_b32 s9, s11, 7"), 1280, 7, 1, 9, lambda: k("s_and_b32 s9, s12, 3"), 288, 17, 228) if os.environ.get("APF_UP") else None))
    k(f"s_waitcnt vmcnt({npf[0]})")
    k("s_barrier                        ; u', t landed")
    k("s_lshl_b32 s35, s11, 4")
    k("s_add_u32 s35, s35, s12")
    narrow_ids(k)
    if os.environ.get("LATE_PRE"): k("s_barrier")
    L = narrow_loader_setup(k, 1536, WS_G, WS_WDP)
    poll_all(k, "P6L_O", FL_O, 20)
    L.preloadB()
    if not os.environ.get("LATE_PRE"): k("s_barrier")
    k("s_cmp_lg_u32 s8, 4")
    k("s_cbranch_scc1 P6L_GO")
    set_flag(k, FL_G, 35)
    def gfirst():
        k("s_lshr_b32 s9, s11, 1")
        k("s_lshl_b32 s9, s9, 4")
    poll_range(k, "P6L_G", FL_G, gfirst, 16)
    k.label("P6L_GO")
    k("s_barrier                        ; B_m")
    mark(k, 14)
    def down_res():
        narrow_res_dma(k, False, 5)
        return 0
    L.run(after_barrier={2: down_res}, prefetch=apf_loader(k, WS_G, S * 1536 * 2, lambda: k("s_lshl_b32 s9, s11, 6"), 3072, 6, 1, 11, lambda: k("s_mov_b32 s9, s12"), 176, 17, 229, khalf=1536))
    k("s_barrier")
    k("s_barrier")
    k("s_branch F_END")
    k.label("P4_COMPUTE")
    narrow_compute(k, "P4C", 640, True, 2, False, lambda: k("s_barrier                        ; B_i"))
    if not os.environ.get("P0DIAG") and not os.environ.get("UPDIAG"): mark(k, 29)
    k("s_waitcnt vmcnt(0)")
    if not os.environ.get("P0DIAG"): mark(k, 30)
    k("s_barrier                        ; B_j")
    mark(k, 10)
    up_ids(k)
    up_compute(k, lambda: k("s_barrier                        ; B_k"))
    if os.environ.get("UPDIAG"): mark(k, 29)
    if not os.environ.get("LDIAG") and not os.environ.get("P0DIAG") and not os.environ.get("UPDIAG"): mark(k, 27)
    k("s_waitcnt vmcnt(0)")
    if not os.environ.get("P0DIAG") and not os.environ.get("UPDIAG"): mark(k, 28)
    k("s_barrier                        ; B_l")
    mark(k, 13)
    narrow_ids(k)
    narrow_compute(k, "P6C", 1536, False, 5, True, lambda: k("s_barrier                        ; B_m"))

def gen_fused():
    k = K()
    k("s_cmp_ge_u32 s2, 256")
    k("s_cbranch_scc1 F_END")
    k(f"s_load_dwordx8 s[64:71], s[0:1], 0")
    k(f"s_load_dwordx8 s[72:79], s[0:1], 32")
    k(f"s_load_dwordx8 s[80:87], s[0:1], 64")
    k("v_and_b32 v1, 63, v0")
    k("v_lshrrev_b32 v2, 6, v0")
    k("s_nop 0")
    k("v_readfirstlane_b32 s8, v2       ; wave")
    k("s_and_b32 s31, s8, 3")
    for r in range(176, 228): k(f"v_mov_b32 v{r}, 0x7ffffff0")
    phase01(k)
    phase2_loader(k)
    phase2_spare(k)
    phase2_compute(k)
    phase3(k)
    phases456(k)
    k.label("F_END")
    k("s_endpgm")
    k.fix_hazards()
    return NAME, header(NAME) + k.text() + descriptor(NAME, 232), (256, 512, 163840)

if __name__ == "__main__":
    import sys
    HEAD = open("adaLN_cond__mha_block__geglu_ffn__prompt.s.ref").read().split("; Override launch")[0]
    n, t, (g, b, l) = gen_fused()
    s = HEAD + f"; @launch grid=({g},1,1) block=({b},1,1) lds={l}\n" + '.amdgcn_target "amdgcn-amd-amdhsa--gfx950"\n' + t
    out = sys.argv[1] if len(sys.argv) > 1 else "fused.s"
    open(out, "w").write(s)
    print("wrote", out, len(s))
```

```python
from common import *
from k_gemm2 import mfma32, mfma16, compute_loop, f2u
from k_attn2 import VM, m16, m8
import os, struct

NAME = "adaLN_cond__mha_block__geglu_ffn__prompt_kernel"
XP, WQKVP, WOP_, WGP, WUP_, WDP_, CP, WMODP, OUTP, DBGP, WSP = 64, 66, 68, 72, 74, 76, 78, 80, 82, 84, 86
NONCE = 60
CTL = 163584
SCR = 131072
STOP = int(os.environ.get("STOP", 99))
TIMEOUT = 30000

def wsrd(k, s, nbytes, off): srd(k, s, WSP, nbytes, off)
def mark(k, i): k(f"; MARK {i}")

APF = bool(os.environ.get("APF"))
def apf_rows(k, off, nbytes, row0_fn, lda, nrows_log2, first_line, nlines, sharer_fn, per, vt, vdst, khalf=None, tid="v0"):
    wsrd(k, 52, nbytes, off)
    for i in range((per + 255) // 256):
        sharer_fn()
        k(f"s_mul_i32 s9, s9, {per}")
        if i: k(f"s_add_u32 s9, s9, {256 * i}")
        k(f"v_add_u32 v{vt}, s9, {tid}")
        sh = nrows_log2 + (1 if khalf else 0)
        k(f"v_lshrrev_b32 v{vt+1}, {sh}, v{vt}")
        if khalf: k(f"v_bfe_u32 v{vt+2}, v{vt}, {nrows_log2}, 1")
        k(f"v_and_b32 v{vt}, {(1 << nrows_log2) - 1}, v{vt}")
        row0_fn()
        k(f"v_add_u32 v{vt}, s9, v{vt}")
        k(f"s_mov_b32 s9, {lda}")
        k(f"v_mul_lo_u32 v{vt}, s9, v{vt}")
        if first_line: k(f"v_add_u32 v{vt+1}, {first_line}, v{vt+1}")
        k(f"v_lshl_add_u32 v{vt}, v{vt+1}, 7, v{vt}")
        if khalf:
            k(f"v_mul_u32_u24 v{vt+2}, {khalf}, v{vt+2}")
            k(f"v_add_u32 v{vt}, v{vt}, v{vt+2}")
        if 256 * (i + 1) > per:
            k(f"v_cmp_gt_u32 vcc, {per - 256 * i}, {tid}")
            k(f"v_mov_b32 v{vt+1}, 0x7ffffff0")
            k(f"v_cndmask_b32 v{vt}, v{vt+1}, v{vt}, vcc")
        k(f"buffer_load_dword v{vdst+i}, v{vt}, s[52:55], 0 offen sc1")

APF2 = os.environ.get("APF2", "0") != "0"
def apf_loader(k, *args, **kw):
    def f():
        per = args[8]
        k("v_and_b32 v16, 255, v0")
        apf_rows(k, *args, tid="v16", **kw)
        return (per + 255) // 256
    return f

OLDPOLL = bool(os.environ.get('OLDPOLL'))
def poll_old(k, tag, vaddr, mask, vtmp, waitall=True):
    k("s_mov_b32 s14, 0")
    k.label(f"{tag}_P")
    if mask == "lo32":
        k("s_mov_b32 exec_lo, -1"); k("s_mov_b32 exec_hi, 0")
    else:
        k(f"s_mov_b64 exec, {mask}")
    k(f"buffer_load_dword v{vtmp}, v{vaddr}, s[56:59], 0 offen sc1")
    k("s_waitcnt vmcnt(0)")
    k(f"v_cmp_ne_u32 vcc, s{NONCE}, v{vtmp}")
    k("s_mov_b64 exec, -1")
    k("s_cmp_eq_u64 vcc, 0")
    k(f"s_cbranch_scc1 {tag}_R")
    k("s_add_u32 s14, s14, 1")
    k(f"s_cmp_gt_u32 s14, {TIMEOUT}")
    k(f"s_cbranch_scc1 {tag}_R")
    k("s_sleep 2")
    k(f"s_branch {tag}_P")
    k.label(f"{tag}_R")

def poll_new(k, tag, vaddr, mask, vtmp, waitall=True):
    def setmask():
        if mask == "lo32":
            k("s_mov_b32 exec_lo, -1"); k("s_mov_b32 exec_hi, 0")
        else:
            k(f"s_mov_b64 exec, {mask}")
    k("s_mov_b32 s14, 0")
    setmask()
    k("s_waitcnt vmcnt(0)")
    k(f"buffer_load_dword v226, v{vaddr}, s[56:59], 0 offen sc1")
    k.label(f"{tag}_P")
    k(f"buffer_load_dword v227, v{vaddr}, s[56:59], 0 offen sc1")
    k("s_waitcnt vmcnt(1)")
    k(f"v_cmp_ne_u32 vcc, s{NONCE}, v226")
    k("s_cmp_eq_u64 vcc, 0")
    k(f"s_cbranch_scc1 {tag}_R")
    k(f"buffer_load_dword v226, v{vaddr}, s[56:59], 0 offen sc1")
    k("s_waitcnt vmcnt(1)")
    k(f"v_cmp_ne_u32 vcc, s{NONCE}, v227")
    k("s_cmp_eq_u64 vcc, 0")
    k(f"s_cbranch_scc1 {tag}_R")
    k("s_add_u32 s14, s14, 1")
    k(f"s_cmp_gt_u32 s14, {TIMEOUT}")
    k(f"s_cbranch_scc0 {tag}_P")
    k.label(f"{tag}_R")
    k("s_mov_b64 exec, -1")

def poll(k, *a, **kw): return (poll_old if OLDPOLL else poll_new)(k, *a, **kw)

def flag_srd(k): wsrd(k, 56, 7 * 256 * 128, WS_FLG)

def poll_range(k, tag, base, first_sgpr_expr, n, v=20):
    flag_srd(k)
    first_sgpr_expr()
    k(f"v_and_b32 v{v}, 63, v0")
    k(f"v_add_u32 v{v}, s9, v{v}")
    k(f"v_lshlrev_b32 v{v}, 7, v{v}")
    if base: k(f"v_add_u32 v{v}, {base}, v{v}")
    poll(k, tag, v, "-1" if n == 64 else ("lo32" if n == 32 else hex((1 << n) - 1)), v + 1)

def poll_all(k, tag, base, v=20):
    flag_srd(k)
    k(f"v_and_b32 v{v}, 63, v0")
    k(f"v_lshlrev_b32 v{v}, 7, v{v}")
    k(f"v_add_u32 v{v}, {base}, v{v}")
    for q in range(1, 4): k(f"v_add_u32 v{v+q}, {q * 64 * 128}, v{v}")
    k("s_mov_b32 s14, 0")
    k.label(f"{tag}_P")
    for q in range(4): k(f"buffer_load_dword v{v+4+q}, v{v+q}, s[56:59], 0 offen sc1")
    k("s_waitcnt vmcnt(0)")
    k(f"v_cmp_ne_u32 vcc, s{NONCE}, v{v+4}")
    for q in range(1, 4):
        k(f"v_cmp_ne_u32 s[62:63], s{NONCE}, v{v+4+q}")
        k("s_or_b64 vcc, vcc, s[62:63]")
    k("s_cmp_eq_u64 vcc, 0")
    k(f"s_cbranch_scc1 {tag}_R")
    k("s_add_u32 s14, s14, 1")
    k(f"s_cmp_gt_u32 s14, {TIMEOUT}")
    k(f"s_cbranch_scc1 {tag}_R")
    k("s_sleep 2")
    k(f"s_branch {tag}_P")
    k.label(f"{tag}_R")

def set_flag(k, base, idx_sgpr, v=20):
    flag_srd(k)
    k(f"s_lshl_b32 s9, s{idx_sgpr}, 7")
    k(f"s_add_u32 s9, s9, {base}")
    k(f"v_mov_b32 v{v}, s9")
    k(f"v_mov_b32 v{v+1}, s{NONCE}")
    k("s_mov_b64 exec, 1")
    k(f"buffer_store_dword v{v+1}, v{v}, s[56:59], 0 offen sc1")
    k("s_mov_b64 exec, -1")

LDIAG = [25, 26, 27]
class Loader:
    def __init__(self, k, nst, nslots, dmaA, dmaB, nA, nB):
        self.k, self.nst, self.ns, self.dmaA, self.dmaB, self.nA, self.nB = k, nst, nslots, dmaA, dmaB, nA, nB
        self.ops = []
    def A(self, st): self.dmaA(st); self.ops += [st] * self.nA
    def B(self, st): self.dmaB(st); self.ops += [st] * self.nB
    def extra(self, n): self.ops += ["x"] * n
    def drained(self): self.ops = ["done"] if False else []
    def wait(self, st):
        idx = [i for i, t in enumerate(self.ops) if t == st]
        n = len(self.ops) - 1 - max(idx) if idx else len(self.ops)
        self.k(f"s_waitcnt vmcnt({min(63, n)})")
    def preloadB(self):
        for st in range(min(self.ns - 1, self.nst)): self.B(st)
    def run(self, after_barrier=None, tail=None, prefetch=None):
        k = self.k; up = min(self.ns - 1, self.nst)
        if prefetch is not None and APF2:
            self.A(0)
            self.extra(prefetch())
            self.wait(0)
            k("s_barrier")
            k("s_waitcnt vmcnt(0)")
            if os.environ.get("LDIAG"): mark(k, LDIAG.pop(0))
            for st in range(1, up): self.A(st)
        else:
            for st in range(up): self.A(st)
            self.wait(0)
            k("s_barrier")
        issued = up
        for s in range(self.nst - 1):
            self.wait(s + 1)
            k("s_barrier")
            if issued < self.nst:
                self.A(issued); self.B(issued); issued += 1
                if issued == self.nst and tail: self.extra(tail())
            if after_barrier and (s + 1) in after_barrier: self.extra(after_barrier[s + 1]())

def a_dma_rows32(k, VA, row0_sgpr, lda, koff_sgpr=None):
    k("v_lshrrev_b32 v2, 3, v1")
    k("v_lshrrev_b32 v3, 4, v1")
    k("v_and_b32 v4, 7, v1")
    k(f"v_add_u32 v2, s{row0_sgpr}, v2")
    k(f"s_mov_b32 s10, {lda}")
    k("v_mul_lo_u32 v2, s10, v2")
    if koff_sgpr is not None: k(f"v_add_u32 v2, s{koff_sgpr}, v2")
    for i in range(4):
        k(f"v_xor_b32 v5, {(i&1)*4}, v3")
        k("v_xor_b32 v5, v5, v4")
        k("v_lshlrev_b32 v5, 4, v5")
        k(f"v_add_u32 v5, {i*8*lda - i*1024}, v5")
        k(f"v_add_u32 v{VA+i}, v2, v5")

def phase01(k):
    X, C0, W0, AC, T = 8, 32, 40, 64, 72
    k("s_and_b32 s13, s2, 3             ; kq")
    k("s_lshr_b32 s14, s2, 2")
    k("v_lshrrev_b32 v5, 3, v0")
    k("v_and_b32 v6, 7, v0")
    k("s_mul_i32 s15, s13, 160")
    k("v_add_u32 v7, s15, v5")
    k("v_mul_u32_u24 v5, 7680, v7")
    k("v_lshlrev_b32 v6, 4, v6")
    k("s_lshl_b32 s15, s14, 7")
    k("v_add3_u32 v5, v5, v6, s15")
    k("v_lshrrev_b32 v3, 4, v0")
    k("s_lshl_b32 s15, s2, 3")
    k("v_add_u32 v3, s15, v3")
    k("v_mul_u32_u24 v3, 1280, v3")
    k("v_and_b32 v4, 15, v0")
    k("v_lshl_add_u32 v3, v4, 4, v3")
    k("v_lshlrev_b32 v6, 1, v7")
    k("v_mov_b32 v28, 0x7ffffff0")
    k("v_cmp_gt_u32 vcc, 256, v0")
    k("v_cndmask_b32 v29, v28, v5, vcc")
    k("v_cndmask_b32 v30, v28, v6, vcc")
    k("s_waitcnt lgkmcnt(0)")
    srd(k, 36, WMODP, 640 * 7680)
    srd(k, 32, CP, 1280)
    srd(k, 16, XP, S * D * 2)
    def gemv_loads():
        k(f"buffer_load_dwordx4 v[{W0}:{W0+3}], v5, s[36:39], 0 offen")
        k(f"s_mov_b32 s15, {64*7680}")
        k(f"buffer_load_dwordx4 v[{W0+4}:{W0+7}], v5, s[36:39], s15 offen")
        k(f"s_mov_b32 s15, {128*7680}")
        k(f"buffer_load_dwordx4 v[{W0+8}:{W0+11}], v29, s[36:39], s15 offen")
        k(f"buffer_load_ushort v{C0}, v6, s[32:35], 0 offen")
        k(f"buffer_load_ushort v{C0+1}, v6, s[32:35], 0 offen offset:128")
        k(f"buffer_load_ushort v{C0+2}, v30, s[32:35], 0 offen offset:256")
    def x_loads(tag):
        k("s_cmp_ge_u32 s8, 2")
        k(f"s_cbranch_scc1 {tag}")
        for i in range(5):
            k(f"buffer_load_dwordx4 v[{X+4*i}:{X+4*i+3}], v3, s[16:19], 0 offen offset:{256*i}")
        k.label(tag)
    k("s_cmp_ge_u32 s2, 80")
    k("s_cbranch_scc1 P0_LATE")
    gemv_loads()
    x_loads("P0_NOX1")
    k("s_branch P0_ISSUED")
    k.label("P0_LATE")
    x_loads("P0_NOX2")
    k("s_waitcnt vmcnt(0)")
    k("s_barrier")
    k("s_cmp_ge_u32 s14, 60")
    k("s_cbranch_scc1 P0_ISSUED")
    gemv_loads()
    k.label("P0_ISSUED")
    wsrd(k, 20, 4 * 3840 * 4, WS_MODP)
    wsrd(k, 24, S * D * 2, WS_H)
    for r in range(176, 228): k(f"v_mov_b32 v{r}, 0x7ffffff0")
    k("s_cmp_lg_u32 s8, 3")
    k("s_cbranch_scc1 P0_NOCTL")
    k(f"v_lshlrev_b32 v11, 2, v1")
    k(f"v_add_u32 v11, {CTL}, v11")
    k("v_mov_b32 v12, 0")
    k("ds_write_b32 v11, v12")
    k.label("P0_NOCTL")
    k("s_cmp_ge_u32 s8, 4")
    k("s_cbranch_scc1 P0_NOSETUP")
    phase2_setup(k)
    k.label("P0_NOSETUP")
    k("s_cmp_ge_u32 s14, 60")
    k("s_cbranch_scc1 P0_BA")
    k("s_cmp_ge_u32 s2, 80")
    k("s_cbranch_scc1 P0_W0")
    k("s_cmp_ge_u32 s8, 2")
    k("s_cbranch_scc1 P0_W0")
    k("s_waitcnt vmcnt(5)")
    k("s_branch P0_W1")
    k.label("P0_W0")
    k("s_waitcnt vmcnt(0)")
    k.label("P0_W1")
    k("s_mov_b32 s15, 0xbfb8aa3b")
    for i in range(3): k(f"v_lshlrev_b32 v{C0+i}, 16, v{C0+i}")
    for i in range(3): k(f"v_mul_f32 v{T+i}, s15, v{C0+i}")
    for i in range(3): k(f"v_exp_f32 v{T+i}, v{T+i}")
    for i in range(3): k(f"v_add_f32 v{T+i}, 1.0, v{T+i}")
    for i in range(3): k(f"v_rcp_f32 v{T+i}, v{T+i}")
    for i in range(3): k(f"v_mul_f32 v{C0+i}, v{C0+i}, v{T+i}")
    for i in range(3): bf16_round_f32(k, C0 + i, C0 + i, T)
    for i in range(3):
        for j in range(4):
            k(f"v_lshlrev_b32 v{T}, 16, v{W0+4*i+j}")
            k(f"v_and_b32 v{T+1}, 0xffff0000, v{W0+4*i+j}")
            op = "v_mul_f32" if i == 0 else "v_fmac_f32"
            k(f"{op} v{AC+2*j}, v{C0+i}, v{T}")
            k(f"{op} v{AC+2*j+1}, v{C0+i}, v{T+1}")
    for j in range(8):
        k(f"v_add_f32_dpp v{AC+j}, v{AC+j}, v{AC+j} row_ror:8 row_mask:0xf bank_mask:0xf")
    k("v_lshrrev_b32 v5, 4, v0")
    k("v_lshlrev_b32 v5, 8, v5")
    k("v_and_b32 v6, 7, v0")
    k("v_lshl_add_u32 v5, v6, 5, v5")
    k(f"v_add_u32 v5, {SCR}, v5")
    k("v_and_b32 v6, 15, v0")
    k("v_cmp_gt_u32 vcc, 8, v6")
    k("s_and_saveexec_b64 s[34:35], vcc")
    k(f"ds_write_b128 v5, v[{AC}:{AC+3}]")
    k(f"ds_write_b128 v5, v[{AC+4}:{AC+7}] offset:16")
    k("s_mov_b64 exec, s[34:35]")
    k.label("P0_BA")
    k("s_waitcnt lgkmcnt(0)")
    k("s_barrier                        ; B_a")
    mark(k, 0)
    k("s_cmp_lt_u32 s8, 2")
    k("s_cbranch_scc1 P1_LNA")
    k("s_cmp_eq_u32 s8, 2")
    k("s_cbranch_scc1 P0_FINAL")
    k("s_cmp_eq_u32 s8, 3")
    k("s_cbranch_scc1 P0_ONES")
    k("s_branch P0_LOADERS")
    k.label("P0_FINAL")
    k("s_cmp_ge_u32 s14, 60")
    k("s_cbranch_scc1 P1_BA2")
    k("v_lshlrev_b32 v7, 2, v1")
    k(f"v_add_u32 v6, {SCR}, v7")
    for p in range(32): k(f"ds_read_b32 v{W0+p}, v6 offset:{256*p}")
    k("s_waitcnt lgkmcnt(0)")
    for st in (16, 8, 4, 2, 1):
        for p in range(st): k(f"v_add_f32 v{W0+p}, v{W0+p}, v{W0+p+st}")
    k("s_mul_i32 s15, s13, 15360")
    k("s_lshl_b32 s34, s14, 8")
    k("s_add_u32 s15, s15, s34")
    if os.environ.get("P0DIAG"): mark(k, 25)
    k(f"buffer_store_dword v{W0}, v7, s[20:23], s15 offen sc1")
    k("s_waitcnt vmcnt(0)")
    if os.environ.get("P0DIAG"): mark(k, 26)
    k("s_cmp_ge_u32 s14, 20")
    k("s_cbranch_scc1 P1_BA2")
    k("s_mov_b64 exec, 1")
    k("v_mov_b32 v5, 0")
    k("v_mov_b32 v6, 1")
    k(f"global_atomic_add v7, v5, v6, s[{DBGP}:{DBGP+1}] sc0 sc1")
    k("s_waitcnt vmcnt(0)")
    k("v_readfirstlane_b32 s15, v7")
    if os.environ.get("P0DIAG"):
        k("s_mov_b64 exec, -1"); mark(k, 27); k("s_mov_b64 exec, 1")
    k("s_cmp_lg_u32 s15, 79")
    k("s_cbranch_scc1 P0_NOFLAG")
    k("s_memrealtime s[34:35]")
    k("s_waitcnt lgkmcnt(0)")
    k("s_or_b32 s34, s34, 1")
    k("v_mov_b32 v6, s34")
    k(f"global_store_dword v5, v6, s[{DBGP}:{DBGP+1}] offset:128 sc1")
    k.label("P0_NOFLAG")
    k("s_mov_b64 exec, -1")
    k("s_branch P1_BA2")
    k.label("P0_ONES")
    wsrd(k, 32, 32 * KV_HEAD, WS_KV)
    k("s_lshl_b32 s13, s2, 5")
    k("v_add_u32 v5, s13, v1")
    k("v_lshrrev_b32 v6, 2, v5")
    k(f"v_mul_u32_u24 v6, {KV_TILE}, v6")
    k("v_and_b32 v7, 3, v5")
    k("v_mul_u32_u24 v7, 336, v7")
    k(f"v_add_u32 v6, {1280+320}, v6")
    k("v_add_u32 v6, v6, v7")
    for j in range(4): k(f"v_mov_b32 v{8+j}, 0x3f803f80")
    k("s_mov_b32 exec_hi, 0")
    k("buffer_store_dwordx4 v[8:11], v6, s[32:35], 0 offen sc1")
    wsrd(k, 36, 16 * 384 * 4, WS_UT)
    k("s_mul_i32 s13, s2, 96")
    k("v_lshlrev_b32 v5, 2, v1")
    k("v_mov_b32 v12, 0")
    k("s_mov_b32 exec_lo, 0xffffff")
    k("buffer_store_dword v12, v5, s[36:39], s13 offen sc1")
    k("s_mov_b64 exec, -1")
    k("s_waitcnt vmcnt(0)")
    k("s_branch P1_BA2")
    k.label("P1_LNA")
    k("s_barrier                        ; B_a2 (waves 0, 1)")
    k.label("P1_LN")
    E = 32
    k("s_waitcnt vmcnt(0)")
    for r in range(20):
        k(f"v_lshlrev_b32 v{E+2*r}, 16, v{X+r}")
        k(f"v_and_b32 v{E+2*r+1}, 0xffff0000, v{X+r}")
    k(f"v_add_f32 v5, v{E}, v{E+1}")
    k(f"v_add_f32 v6, v{E+2}, v{E+3}")
    for r in range(4, 40, 2):
        k(f"v_add_f32 v5, v5, v{E+r}")
        k(f"v_add_f32 v6, v6, v{E+r+1}")
    k("v_add_f32 v5, v5, v6")
    for rot in (1, 2, 4, 8):
        k(f"v_add_f32_dpp v5, v5, v5 row_ror:{rot} row_mask:0xf bank_mask:0xf")
    k(f"s_mov_b32 s13, {hex(f2u(1.0/640))}")
    k("v_mul_f32 v5, s13, v5")
    for r in range(40): k(f"v_sub_f32 v{E+r}, v{E+r}, v5")
    k(f"v_mul_f32 v6, v{E}, v{E}")
    k(f"v_mul_f32 v7, v{E+1}, v{E+1}")
    for r in range(2, 40, 2):
        k(f"v_fmac_f32 v6, v{E+r}, v{E+r}")
        k(f"v_fmac_f32 v7, v{E+r+1}, v{E+r+1}")
    k("v_add_f32 v6, v6, v7")
    for rot in (1, 2, 4, 8):
        k(f"v_add_f32_dpp v6, v6, v6 row_ror:{rot} row_mask:0xf bank_mask:0xf")
    k("v_mov_b32 v7, 0x3727c5ac")
    k("v_fmac_f32 v7, s13, v6")
    k("v_rsq_f32 v7, v7")
    k("s_nop 0")
    for r in range(40): k(f"v_mul_f32 v{E+r}, v{E+r}, v7")
    k("v_mov_b32 v5, 0")
    k("s_mov_b32 s14, 0")
    k.label("P1_POLL")
    k("s_mov_b64 exec, 1")
    k(f"global_load_dword v6, v5, s[{DBGP}:{DBGP+1}] offset:128 sc1")
    k("s_waitcnt vmcnt(0)")
    k(f"v_readfirstlane_b32 s{NONCE}, v6")
    k("s_mov_b64 exec, -1")
    k(f"s_cmp_lg_u32 s{NONCE}, 0")
    k("s_cbranch_scc1 P1_READY")
    k("s_add_u32 s14, s14, 1")
    k(f"s_cmp_gt_u32 s14, {TIMEOUT}")
    k("s_cbranch_scc1 P1_READY")
    k("s_sleep 4")
    k("s_branch P1_POLL")
    k.label("P1_READY")
    mark(k, 1)
    P = 80
    k("s_mul_i32 s15, s8, 2560")
    k("v_lshlrev_b32 v5, 4, v1")
    k("v_mov_b32 v8, 0x7ffffff0")
    k("v_cmp_gt_u32 vcc, 32, v1")
    k("v_add_u32 v6, s15, v5")
    k("v_add_u32 v9, 2048, v6")
    k("v_cndmask_b32 v9, v8, v9, vcc")
    for q in range(4):
        k(f"s_mov_b32 s34, {q*15360}")
        k(f"buffer_load_dwordx4 v[{P+12*q}:{P+12*q+3}], v6, s[20:23], s34 offen sc1")
        k(f"buffer_load_dwordx4 v[{P+12*q+4}:{P+12*q+7}], v6, s[20:23], s34 offen offset:1024 sc1")
        k(f"buffer_load_dwordx4 v[{P+12*q+8}:{P+12*q+11}], v9, s[20:23], s34 offen sc1")
    k(f"v_mov_b32 v10, {CTL}")
    k(f"v_mov_b32 v11, s{NONCE}")
    k("ds_write_b32 v10, v11")
    k("s_waitcnt vmcnt(0)")
    for r in range(12):
        k(f"v_add_f32 v{P+r}, v{P+r}, v{P+12+r}")
        k(f"v_add_f32 v{P+24+r}, v{P+24+r}, v{P+36+r}")
    for r in range(12): k(f"v_add_f32 v{P+r}, v{P+r}, v{P+24+r}")
    for r in range(12): bf16_round_f32(k, P + r, P + r, P + 12)
    k("s_cmp_eq_u32 s8, 0")
    k("s_cbranch_scc1 P1_NOONE")
    for r in range(12): k(f"v_add_f32 v{P+r}, 1.0, v{P+r}")
    for r in range(12): bf16_round_f32(k, P + r, P + r, P + 12)
    k.label("P1_NOONE")
    k("s_mul_i32 s15, s8, 2560")
    k("v_add_u32 v5, s15, v5")
    k(f"v_add_u32 v5, {SCR + 8192}, v5")
    k(f"ds_write_b128 v5, v[{P}:{P+3}]")
    k(f"ds_write_b128 v5, v[{P+4}:{P+7}] offset:1024")
    k("s_mov_b32 exec_hi, 0")
    k(f"ds_write_b128 v5, v[{P+8}:{P+11}] offset:2048")
    k("s_mov_b64 exec, -1")
    k("s_waitcnt lgkmcnt(0)")
    if os.environ.get("P0DIAG"): mark(k, 28)
    k("s_barrier")
    Gm, Sm = 96, 136
    k("v_and_b32 v4, 15, v0")
    k("v_lshlrev_b32 v4, 5, v4")
    k(f"v_add_u32 v4, {SCR + 8192}, v4")
    for i in range(5):
        for hh in range(2):
            k(f"ds_read_b128 v[{Sm+8*i+4*hh}:{Sm+8*i+4*hh+3}], v4 offset:{512*i + 16*hh}")
            k(f"ds_read_b128 v[{Gm+8*i+4*hh}:{Gm+8*i+4*hh+3}], v4 offset:{2560 + 512*i + 16*hh}")
    k("s_waitcnt lgkmcnt(0)")
    for r in range(40): k(f"v_fma_f32 v{E+r}, v{E+r}, v{Gm+r}, v{Sm+r}")
    for r in range(20): k(f"v_cvt_pk_bf16_f32 v{X+r}, v{E+2*r}, v{E+2*r+1}")
    for i in range(5):
        k(f"buffer_store_dwordx4 v[{X+4*i}:{X+4*i+3}], v3, s[24:27], 0 offen offset:{256*i} sc1")
    if os.environ.get("P0DIAG"): mark(k, 29)
    k("s_waitcnt vmcnt(0)")
    if os.environ.get("P0DIAG"): mark(k, 30)
    k("s_barrier")
    k("s_cmp_lg_u32 s8, 0")
    k("s_cbranch_scc1 P2_START")
    set_flag(k, FL_H, 2)
    k("s_branch P2_START")
    k.label("P1_BA2")
    k("s_barrier")
    k.label("P1_BB")
    k("s_barrier                        ; B_b")
    k(f"v_mov_b32 v10, {CTL}")
    k("ds_read_b32 v11, v10")
    k("s_waitcnt lgkmcnt(0)")
    k(f"v_readfirstlane_b32 s{NONCE}, v11")
    k("s_barrier                        ; B_c")
    k("s_branch P2_START")

def qkv_ids(k):
    k("s_and_b32 s3, s2, 7")
    k("s_lshr_b32 s13, s2, 3")
    k("s_and_b32 s14, s3, 3")
    k("s_lshl_b32 s14, s14, 2")
    k("s_and_b32 s15, s13, 3")
    k("s_add_u32 s11, s14, s15")
    k("s_lshr_b32 s14, s3, 2")
    k("s_lshl_b32 s14, s14, 3")
    k("s_lshr_b32 s15, s13, 2")
    k("s_add_u32 s12, s14, s15")

QNS = 4
def phase2_loader(k):
    k.label("P0_LOADERS")
    k("s_barrier                        ; B_a2")
    if not os.environ.get("NO_CODEPF"):
        k("s_cmp_lg_u32 s8, 7")
        k("s_cbranch_scc1 F_NOCPF")
        k("s_getpc_b64 s[34:35]")
        k.label("F_PC")
        k("s_lshr_b32 s9, s2, 3")
        k("s_mul_i32 s9, s9, 18")
        k("v_add_u32 v2, s9, v1")
        k("v_lshlrev_b32 v2, 7, v2")
        k("v_cmp_gt_u32 vcc, 18, v1")
        k("s_mov_b32 s10, F_END-F_PC")
        k("v_cmp_gt_u32 s[36:37], s10, v2")
        k("s_and_b64 vcc, vcc, s[36:37]")
        k("s_and_saveexec_b64 s[36:37], vcc")
        k("s_cbranch_execz F_CPFX")
        k("global_load_dword v231, v2, s[34:35]")
        k.label("F_CPFX")
        k("s_mov_b64 exec, s[36:37]")
        k.label("F_NOCPF")
    if not os.environ.get("NO_TLB"):
        k("s_cmp_lg_u32 s8, 6")
        k("s_cbranch_scc1 F_NOTLB")
        wsrd(k, 16, WS_END, 0)
        srd(k, 20, OUTP, S * D * 2)
        k("s_lshr_b32 s9, s2, 3")
        k("s_lshl_b32 s9, s9, 4")
        k("v_add_u32 v2, s9, v1")
        k("v_lshlrev_b32 v2, 16, v2")
        k("s_mov_b64 exec, 0xffff")
        k("buffer_load_dword v229, v2, s[16:19], 0 offen")
        k("s_mov_b64 exec, -1")
        k("s_lshr_b32 s9, s2, 3")
        k("v_mov_b32 v2, s9")
        k("v_lshlrev_b32 v2, 17, v2")
        k("s_mov_b64 exec, 1")
        k("buffer_load_dword v228, v2, s[20:23], 0 offen")
        k("s_mov_b64 exec, -1")
        k.label("F_NOTLB")
    qkv_ids(k)
    VA, VB = 8, 12
    k("s_lshl_b32 s9, s11, 7")
    k("s_lshl_b32 s10, s31, 5")
    k("s_add_u32 s9, s9, s10")
    a_dma_rows32(k, VA, 9, 1280)
    k("v_lshrrev_b32 v2, 4, v1")
    k("v_bfe_u32 v3, v1, 2, 2")
    k("v_xor_b32 v3, v3, v2")
    k("v_lshlrev_b32 v3, 6, v3")
    k("v_and_b32 v4, 3, v1")
    k("v_lshl_add_u32 v3, v4, 4, v3")
    k("s_lshl_b32 s9, s31, 4")
    k("v_add_u32 v2, s9, v2")
    k("v_mul_u32_u24 v2, 3840, v2")
    k("s_lshl_b32 s9, s12, 8")
    k("v_add3_u32 v2, v2, v3, s9")
    for i in range(4):
        k(f"v_add_u32 v{VB+i}, {i*(4*3840-1024)}, v2")
    k("s_lshl_b32 s13, s31, 12")
    wsrd(k, 16, S * D * 2, WS_H)
    srd(k, 20, WQKVP, 640 * 3840)
    def dmaA(st):
        k(f"s_add_u32 m0, s13, {(st % QNS)*32768}")
        k(f"s_mov_b32 s14, {st*128}")
        for i in range(4):
            k(f"buffer_load_dwordx4 v{VA+i}, s[16:19], s14 offen offset:{i*1024} sc1 lds")
    def dmaB(st):
        k(f"s_add_u32 m0, s13, {(st % QNS)*32768 + 16384}")
        k(f"s_mov_b32 s14, {st*64*3840}")
        for i in range(4):
            k(f"buffer_load_dwordx4 v{VB+i}, s[20:23], s14 offen offset:{i*1024} lds")
    L = Loader(k, 10, QNS, dmaA, dmaB, 4, 4)
    k("s_cmp_ge_u32 s12, 15")
    k("s_cbranch_scc1 P2L_NOTILE")
    L.preloadB()
    if not os.environ.get("NO_WPF"):
        k("s_and_b32 s9, s11, 3")
        k("s_mul_i32 s9, s9, 224")
        k("s_mul_i32 s10, s31, 56")
        k("s_add_u32 s9, s9, s10")
        k("v_add_u32 v16, s9, v1")
        k("v_lshrrev_b32 v17, 1, v16")
        k("v_add_u32 v17, 192, v17")
        k("v_mul_u32_u24 v17, 3840, v17")
        k("v_and_b32 v16, 1, v16")
        k("v_lshl_add_u32 v17, v16, 7, v17")
        k("s_lshl_b32 s9, s12, 8")
        k("v_add_u32 v17, s9, v17")
        k("v_cmp_gt_u32 vcc, 56, v1")
        k("v_mov_b32 v16, 0x7ffffff0")
        k("v_cndmask_b32 v17, v16, v17, vcc")
        k("buffer_load_dword v231, v17, s[20:23], 0 offen")
    k.label("P2L_NOTILE")
    phase2_tables(k)
    k("s_barrier                        ; B_b")
    k(f"v_mov_b32 v16, {CTL}")
    k("ds_read_b32 v17, v16")
    k("s_waitcnt lgkmcnt(0)")
    k(f"v_readfirstlane_b32 s{NONCE}, v17")
    k("s_barrier                        ; B_c")
    k("s_cmp_ge_u32 s12, 15")
    k("s_cbranch_scc1 P2_SPARE")
    k("s_cmp_lg_u32 s8, 4")
    k("s_cbranch_scc1 P2L_GO")
    poll_range(k, "P2L_H", FL_H, lambda: k("s_lshl_b32 s9, s11, 4"), 16)
    k.label("P2L_GO")
    k("s_barrier                        ; B_d")
    mark(k, 2)
    L.run(prefetch=apf_loader(k, WS_H, S * D * 2, lambda: k("s_lshl_b32 s9, s11, 7"), 1280, 7, 1, 9, lambda: k("s_and_b32 s9, s12, 7"), 144, 17, 229))
    mark(k, 20)
    k("s_branch P3_START")

def last_arriver_flag(k, tag, lds_word, last, base, idx_sgpr, v=20):
    k(f"v_mov_b32 v{v}, {lds_word}")
    k(f"v_mov_b32 v{v+1}, 1")
    k("s_mov_b64 exec, 1")
    k(f"ds_add_rtn_u32 v{v+2}, v{v}, v{v+1}")
    k("s_waitcnt lgkmcnt(0)")
    k(f"v_readfirstlane_b32 s9, v{v+2}")
    k("s_mov_b64 exec, -1")
    k(f"s_cmp_lg_u32 s9, {last}")
    k(f"s_cbranch_scc1 {tag}_NL")
    set_flag(k, base, idx_sgpr, v)
    k.label(f"{tag}_NL")

def phase2_spare(k):
    k.label("P2_SPARE")
    k("s_cmp_lg_u32 s8, 4")
    k("s_cbranch_scc1 P3_START")
    k("s_cmp_ge_u32 s11, 4")
    k("s_cbranch_scc1 P2S_FLAG")
    poll_all(k, "P2S_ALLH", FL_H, 20)
    k("s_add_u32 s9, s11, 2")
    k("s_mul_i32 s9, s9, 2560")
    wsrd(k, 16, 4 * 3840 * 4, WS_MODP)
    wsrd(k, 20, 6 * 640 * 4, WS_MODV)
    for i in range(3):
        k(f"v_add_u32 v2, {64*i}, v1")
        k(f"v_lshlrev_b32 v{3+i}, 4, v2")
        if i == 2:
            k("v_cmp_gt_u32 vcc, 160, v2")
            k("v_mov_b32 v6, 0x7ffffff0")
            k(f"v_cndmask_b32 v{3+i}, v6, v{3+i}, vcc")
        for q in range(4):
            k(f"s_add_u32 s10, s9, {q*15360}")
            k(f"buffer_load_dwordx4 v[{8+16*i+4*q}:{11+16*i+4*q}], v{3+i}, s[16:19], s10 offen sc1")
    k("s_waitcnt vmcnt(0)")
    for i in range(3):
        B = 8 + 16 * i
        for r in range(4):
            k(f"v_add_f32 v{B+r}, v{B+r}, v{B+4+r}")
            k(f"v_add_f32 v{B+8+r}, v{B+8+r}, v{B+12+r}")
        for r in range(4): k(f"v_add_f32 v{B+r}, v{B+r}, v{B+8+r}")
        for r in range(4): bf16_round_f32(k, B + r, B + r, 60)
    k("s_cmp_lg_u32 s11, 2")
    k("s_cbranch_scc1 P2S_NOONE")
    for i in range(3):
        B = 8 + 16 * i
        for r in range(4): k(f"v_add_f32 v{B+r}, 1.0, v{B+r}")
        for r in range(4): bf16_round_f32(k, B + r, B + r, 60)
    k.label("P2S_NOONE")
    for i in range(3):
        k(f"buffer_store_dwordx4 v[{8+16*i}:{11+16*i}], v{3+i}, s[20:23], s9 offen sc1")
    k("s_waitcnt vmcnt(0)")
    set_flag(k, FL_M, 11)
    k.label("P2S_FLAG")
    k("s_branch P3_START")

QA = dict(AF=40, BF=48, ACC=80, RA=212, RB=220, EA=176, GA=192)
def phase2_setup(k):
    RA, RB, EA, GA = QA["RA"], QA["RB"], QA["EA"], QA["GA"]
    k.label("P2_SETUP")
    qkv_ids(k)
    k("s_cmp_ge_u32 s12, 15")
    k("s_cbranch_scc1 P2_SETUP_END")
    k("v_and_b32 v55, 31, v1")
    k("v_lshrrev_b32 v54, 5, v1")
    k("v_bfe_u32 v52, v55, 1, 3")
    k("v_lshlrev_b32 v55, 7, v55")
    k("s_lshl_b32 s10, s8, 12")
    k("v_add_u32 v55, s10, v55")
    for ks in range(4):
        k(f"v_add_u32 v53, {2*ks}, v54")
        k("v_xor_b32 v53, v53, v52")
        k(f"v_lshl_add_u32 v{RA+ks}, v53, 4, v55")
        k(f"v_add_u32 v{RA+4+ks}, 65536, v{RA+ks}")
    k("v_lshrrev_b32 v55, 5, v1")
    k("v_bfe_u32 v54, v1, 2, 2")
    k("v_lshl_add_u32 v55, v55, 3, v54")
    k("v_lshlrev_b32 v55, 8, v55")
    k("v_bfe_u32 v52, v1, 4, 1")
    k("v_lshl_add_u32 v55, v52, 5, v55")
    k("v_and_b32 v52, 3, v1")
    k("v_lshl_add_u32 v55, v52, 3, v55")
    k("v_add_u32 v55, 16384, v55")
    for nt in range(4):
        k(f"v_xor_b32 v52, {nt}, v54")
        k(f"v_lshl_add_u32 v{RB+nt}, v52, 6, v55")
        k(f"v_add_u32 v{RB+4+nt}, 65536, v{RB+nt}")
    k("s_cmp_ge_u32 s12, 10")
    k("s_cbranch_scc1 P2S_V")
    k("s_cmp_ge_u32 s12, 5")
    k("s_cbranch_scc1 P2S_K")
    k(f"s_mov_b32 s16, {64*1280}")
    k("s_movk_i32 s17, 1280")
    k("s_lshl_b32 s10, s12, 5")
    k(f"s_mov_b32 s41, {hex(f2u(1.4426950408889634 / (20 ** 0.5)))}")
    k("s_branch P2S_QK")
    k.label("P2S_K")
    k(f"s_mov_b32 s16, {KV_HEAD}")
    k(f"s_movk_i32 s17, {KV_TILE}")
    k("s_sub_u32 s10, s12, 5")
    k("s_lshl_b32 s10, s10, 5")
    k("s_mov_b32 s41, 1.0")
    k.label("P2S_QK")
    k("s_lshl_b32 s42, s11, 2")
    k("s_add_u32 s42, s42, s8")
    k("s_mul_i32 s42, s42, s17")
    k("s_lshl_b32 s43, s8, 14")
    k("s_add_u32 s43, s43, 65536")
    k("s_branch P2_SETUP_END")
    k.label("P2S_V")
    k("s_lshl_b32 s42, s11, 2")
    k("s_add_u32 s42, s42, s8")
    k(f"s_mul_i32 s42, s42, {KV_TILE}")
    k("s_add_u32 s42, s42, 1280")
    k.label("P2_SETUP_END")
    k("s_lshr_b32 s14, s2, 2")
    k("s_and_b32 s13, s2, 3")

TBL = 144384
def phase2_tables(k):
    k("s_cmp_ge_u32 s12, 15")
    k("s_cbranch_scc1 P2T_END")
    k("v_lshlrev_b32 v30, 4, v1")
    k(f"v_add_u32 v30, {TBL}, v30        ; lane*16")
    k("s_cmp_ge_u32 s12, 10")
    k("s_cbranch_scc1 P2T_V")
    k("s_cmp_ge_u32 s12, 5")
    k("s_cselect_b32 s10, 5, 0")
    k(f"s_cselect_b32 s44, {KV_HEAD}, 0")
    k(f"s_cselect_b32 s45, 0, {64*1280}")
    k("s_or_b32 s44, s44, s45")
    k("s_sub_u32 s10, s12, s10")
    k("s_lshl_b32 s10, s10, 5")
    k(f"s_mul_hi_u32 s35, s10, {(1<<32)//5+1}")
    k("v_and_b32 v25, 31, v1")
    k("v_lshrrev_b32 v24, 5, v1")
    k("v_add_u32 v24, s10, v24")
    k("v_lshlrev_b32 v26, 4, v25")
    k("v_lshlrev_b32 v27, 3, v25")
    k("v_add_u32 v27, 1024, v27")
    for n in range(4):
        k("s_lshl_b32 s9, s31, 3")
        k(f"s_add_u32 s9, s9, {2*n}")
        k("v_add_u32 v18, s9, v24")
        k("v_mul_u32_u24 v19, 205, v18")
        k("v_lshrrev_b32 v19, 10, v19")
        k("v_mad_i32_i24 v20, v19, -5, v18")
        k("v_lshrrev_b32 v21, 1, v20")
        k("v_lshl_add_u32 v21, v21, 9, v26")
        k("v_and_b32 v22, 1, v20")
        k("v_lshl_add_u32 v21, v22, 3, v21")
        k("v_cmp_eq_u32 vcc, 4, v20")
        k("v_subrev_u32 v19, s35, v19")
        k("v_cndmask_b32 v21, v21, v27, vcc")
        k("v_mul_u32_u24 v19, 1280, v19")
        k(f"v_add_u32 v{32+n}, v21, v19")
    k("s_lshl_b32 s9, s31, 10")
    k("v_add_u32 v31, s9, v30")
    k("ds_write_b128 v31, v[32:35]")
    for n in range(5):
        k("s_mul_i32 s9, s31, 5")
        k(f"s_add_u32 s9, s9, {n}")
        k("s_lshl_b32 s14, s9, 6")
        k("v_add_u32 v18, s14, v1")
        k("v_mul_u32_u24 v19, 52429, v18")
        k("v_lshrrev_b32 v19, 23, v19          ; hh")
        k("v_mul_u32_u24 v20, 160, v19")
        k("v_sub_u32 v20, v18, v20             ; w")
        k("v_lshrrev_b32 v21, 6, v20")
        k("v_lshlrev_b32 v21, 1, v21")
        k("v_and_b32 v22, 1, v20")
        k("v_add_u32 v21, v21, v22")
        k("v_min_u32 v21, 4, v21")
        k("v_add_u32 v19, s35, v19             ; head")
        k("v_mad_u32_u24 v21, v19, 5, v21")
        k("v_subrev_u32 v21, s10, v21")
        k("v_cmp_gt_u32 vcc, 32, v21")
        k("v_mul_lo_u32 v19, s44, v19")
        k("v_lshl_add_u32 v19, v20, 3, v19")
        k("v_mov_b32 v22, 0x7ffffff0")
        k("v_cndmask_b32 v19, v22, v19, vcc")
        k("s_add_u32 s9, s9, 16")
        k("s_lshr_b32 s14, s9, 2")
        k("s_lshl_b32 s14, s14, 10")
        k("s_and_b32 s9, s9, 3")
        k("s_lshl_b32 s9, s9, 2")
        k("s_add_u32 s9, s9, s14")
        k("v_add_u32 v31, s9, v30")
        k("ds_write_b32 v31, v19")
    k("s_branch P2T_END")
    k.label("P2T_V")
    k("v_and_b32 v25, 31, v1")
    k("v_lshrrev_b32 v24, 5, v1")
    k("v_mul_u32_u24 v24, 336, v24")
    k("s_sub_u32 s10, s12, 10")
    k("s_lshl_b32 s10, s10, 7")
    k("s_lshl_b32 s9, s31, 5")
    k("s_add_u32 s10, s10, s9")
    k("v_add_u32 v18, s10, v25")
    k("v_mul_u32_u24 v19, 3277, v18")
    k("v_lshrrev_b32 v19, 16, v19")
    k("v_mul_u32_u24 v20, 20, v19")
    k("v_sub_u32 v20, v18, v20")
    k(f"s_mov_b32 s10, {KV_HEAD}")
    k("v_mul_lo_u32 v19, s10, v19")
    k("v_lshlrev_b32 v20, 4, v20")
    k("v_add3_u32 v19, v19, v20, v24")
    k("s_lshl_b32 s9, s31, 2")
    k("v_add_u32 v31, s9, v30")
    k("ds_write_b32 v31, v19")
    k.label("P2T_END")
    k("s_waitcnt lgkmcnt(0)")

def phase2_compute(k):
    AF, BF, ACC, RA, RB, EA, GA = (QA[x] for x in ("AF", "BF", "ACC", "RA", "RB", "EA", "GA"))
    k.label("P2_START")
    k("s_cmp_ge_u32 s12, 15")
    k("s_cbranch_scc1 P3_START")
    def reads(step):
        st, ks = divmod(step, 4); slot = st % QNS; sb = step & 1
        bs, off = slot >> 1, (slot & 1) * 32768
        a = f"ds_read_b128 v[{AF+4*sb}:{AF+4*sb+3}], v{RA+4*bs+ks} offset:{off}"
        out = []
        for nt in range(4):
            d = BF + (sb * 4 + nt) * 4
            g = [f"ds_read_b64_tr_b16 v[{d+2*j}:{d+2*j+1}], v{RB+4*bs+nt} offset:{off + (16*ks+4*j)*256}" for j in range(2)]
            out.append(([a] if nt == 0 else []) + g)
        return out
    def mf(swap):
        def f(step, nt):
            sb = step & 1; a = AF + 4 * sb; b = BF + (sb * 4 + nt) * 4; d = ACC + 16 * nt
            c = "0" if step == 0 else None
            return [mfma32(d, a, b, c) if swap else mfma32(d, b, a, c)]
        return f
    k("v_lshlrev_b32 v2, 4, v1")
    k(f"v_add_u32 v2, {TBL}, v2")
    for g in range(9): k(f"ds_read_b128 v[{EA+4*g}:{EA+4*g+3}], v2 offset:{1024*g}")
    k("s_waitcnt lgkmcnt(0)")
    k("s_cmp_ge_u32 s12, 10")
    k("s_cbranch_scc1 P2_V")
    for r in range(16): k(f"v_add_u32 v{EA+r}, s43, v{EA+r}")
    k("s_cmp_ge_u32 s12, 5")
    k("s_cbranch_scc1 P2_K")
    wsrd(k, 24, 32 * 64 * 1280, WS_Q)
    k("s_branch P2_QK")
    k.label("P2_K")
    wsrd(k, 24, 32 * KV_HEAD, WS_KV)
    k.label("P2_QK")
    k("s_barrier                        ; B_d")
    def qapf():
        if APF: apf_rows(k, WS_H, S * D * 2, lambda: k("s_lshl_b32 s9, s11, 7"), 1280, 7, 0, 10, lambda: k("s_and_b32 s9, s12, 7"), 160, 28, 229)
    qapf()
    compute_loop(k, 10, 4, reads, mf(False), 0, stamp=False)
    mark(k, 3)
    k("v_mov_b32 v2, s41")
    k("v_mov_b32 v3, s41")
    for nt in range(4):
        for j in range(4):
            a_ = ACC + 16 * nt + 4 * j
            t = 28 + 2 * (j % 4)
            k(f"v_pk_mul_f32 v[{a_}:{a_+1}], v[{a_}:{a_+1}], v[2:3]")
            k(f"v_pk_mul_f32 v[{a_+2}:{a_+3}], v[{a_+2}:{a_+3}], v[2:3]")
            k(f"v_cvt_pk_bf16_f32 v{t}, v{a_}, v{a_+1}")
            k(f"v_cvt_pk_bf16_f32 v{t+1}, v{a_+2}, v{a_+3}")
            k(f"ds_write_b64 v{EA+4*nt+j}, v[{t}:{t+1}]")
    k("v_lshlrev_b32 v2, 3, v1")
    k("v_add_u32 v2, s43, v2")
    k("s_waitcnt lgkmcnt(0)")
    for i in range(20):
        k(f"ds_read_b64 v[{ACC+2*i}:{ACC+2*i+1}], v2 offset:{512*i}")
        if i >= 9:
            k("s_waitcnt lgkmcnt(9)")
            k(f"buffer_store_dwordx2 v[{ACC+2*(i-9)}:{ACC+2*(i-9)+1}], v{GA+i-9}, s[24:27], s42 offen sc1")
    for i in range(11, 20):
        k(f"s_waitcnt lgkmcnt({19-i})")
        k(f"buffer_store_dwordx2 v[{ACC+2*i}:{ACC+2*i+1}], v{GA+i}, s[24:27], s42 offen sc1")
    k("s_branch P2_DONE")
    k.label("P2_V")
    wsrd(k, 24, 32 * KV_HEAD, WS_KV)
    k("s_barrier                        ; B_d")
    qapf()
    compute_loop(k, 10, 4, reads, mf(True), 0, stamp=False)
    mark(k, 3)
    for nt in range(4):
        for m in range(2):
            a_ = ACC + 16 * nt + 8 * m
            t = 28 + 4 * m
            for q in range(4):
                k(f"v_cvt_pk_bf16_f32 v{t+q}, v{a_+2*q}, v{a_+2*q+1}")
            k(f"buffer_store_dwordx4 v[{t}:{t+3}], v{EA+nt}, s[24:27], s42 offen offset:{672*m} sc1")
    k.label("P2_DONE")
    k("s_waitcnt vmcnt(0)")
    k("s_lshl_b32 s34, s12, 4")
    k("s_add_u32 s34, s34, s11")
    mark(k, 19)
    last_arriver_flag(k, "P2C", CTL + 4, 3, FL_QKV, 34)
    k("s_branch P3_START")

def phase3(k):
    from k_attn2 import STAGE, Q1, Q2, KA, KB, VF, SS, PP, OO, AK, AKB, AV, VDMA
    vm = VM(k)
    FLAG = CTL + 12
    k.label("P3_START")
    k("s_and_b32 s11, s2, 7")
    k("s_lshl_b32 s11, s11, 2")
    k("s_bfe_u32 s12, s2, 0x20003")
    k("s_add_u32 s11, s11, s12          ; head")
    k("s_lshr_b32 s12, s2, 5")
    k(f"s_mul_i32 s9, s11, {KV_HEAD}")
    k("s_lshl_b32 s13, s8, 10")
    k("s_add_u32 s9, s9, s13")
    k("v_lshlrev_b32 v4, 4, v1")
    k(f"v_add_u32 v{VDMA}, s9, v4")
    k("v_and_b32 v2, 31, v1")
    k("s_lshl_b32 s9, s12, 3")
    k("s_add_u32 s9, s9, s8")
    k("s_mul_i32 s9, s9, 1280")
    k("s_mul_i32 s10, s11, 81920")
    k("s_add_u32 s9, s9, s10")
    k("v_add_u32 v10, s9, v4")
    k("v_lshlrev_b32 v5, 3, v2")
    k("v_add_u32 v5, s9, v5")
    k("v_lshrrev_b32 v3, 5, v1          ; half")
    for sl in range(3):
        k(f"v_lshlrev_b32 v{AK+sl}, 4, v1")
        if sl: k(f"v_add_u32 v{AK+sl}, {sl*STAGE}, v{AK+sl}")
        k(f"v_lshlrev_b32 v{AKB+sl}, 3, v2")
        k(f"v_add_u32 v{AKB+sl}, {sl*STAGE + 1024}, v{AKB+sl}")
        k(f"v_mul_u32_u24 v{AV+sl}, 336, v3")
        k(f"v_lshl_add_u32 v{AV+sl}, v2, 4, v{AV+sl}")
        k(f"v_add_u32 v{AV+sl}, {sl*STAGE + 1280}, v{AV+sl}")
    k("s_lshl_b32 s9, s12, 8")
    k("s_lshl_b32 s10, s8, 5")
    k("s_add_u32 s9, s9, s10")
    k("v_add_u32 v4, s9, v2             ; token")
    k("v_mul_u32_u24 v4, 1280, v4")
    k("s_mul_i32 s9, s11, 40")
    k("v_add_u32 v4, s9, v4")
    k("v_lshl_add_u32 v11, v3, 3, v4")
    k("s_lshl_b32 s9, s12, 8")
    k("s_lshl_b32 s10, s8, 5")
    k("s_add_u32 s9, s9, s10")
    k("s_mul_i32 s10, s11, 40")
    for i in range(3):
        k(f"v_add_u32 v6, {64*i}, v1")
        k("v_mul_u32_u24 v7, 13108, v6")
        k("v_lshrrev_b32 v7, 16, v7")
        k("v_mul_u32_u24 v8, 5, v7")
        k("v_sub_u32 v8, v6, v8")
        k("v_add_u32 v7, s9, v7")
        k("v_mul_u32_u24 v7, 1280, v7")
        k("v_lshl_add_u32 v7, v8, 3, v7")
        k(f"v_add_u32 v{128+i}, s10, v7")
    k("v_cmp_gt_u32 vcc, 32, v1")
    k("v_mov_b32 v6, 0x7ffffff0")
    k("v_cndmask_b32 v130, v6, v130, vcc")
    for r in range(16): k(f"v_mov_b32 v{OO+r}, 0")
    wsrd(k, 16, 32 * KV_HEAD, WS_KV)
    wsrd(k, 20, S * D * 2, WS_Q)
    wsrd(k, 24, S * D * 2, WS_O)
    k("s_cmp_lg_u32 s8, 0")
    k("s_cbranch_scc1 P3_GO")
    k("s_mul_i32 s9, s11, 20")
    k("s_lshr_b32 s10, s9, 7")
    k("s_add_u32 s9, s9, 19")
    k("s_lshr_b32 s9, s9, 7")
    k("v_bfe_u32 v20, v1, 4, 1")
    k("s_sub_u32 s15, s9, s10")
    k("v_mul_u32_u24 v20, s15, v20")
    k("v_add_u32 v20, s10, v20")
    k("v_lshrrev_b32 v21, 5, v1")
    k("v_mul_u32_u24 v21, 5, v21")
    k("v_add3_u32 v20, v20, v21, 5")
    k("v_and_b32 v21, 15, v1")
    k("v_lshl_add_u32 v20, v20, 4, v21")
    k("v_lshlrev_b32 v20, 7, v20")
    k(f"v_add_u32 v20, {FL_QKV}, v20")
    flag_srd(k)
    poll(k, "P3_KV", 20, "-1", 21)
    k("v_bfe_u32 v20, v1, 1, 1")
    k("v_mul_u32_u24 v20, s15, v20")
    k("v_add_u32 v20, s10, v20")
    k("v_and_b32 v21, 1, v1")
    k("s_lshl_b32 s9, s12, 1")
    k("v_add_u32 v21, s9, v21")
    k("v_lshl_add_u32 v20, v20, 4, v21")
    k("v_lshlrev_b32 v20, 7, v20")
    k(f"v_add_u32 v20, {FL_QKV}, v20")
    poll(k, "P3_Q", 20, "0xf", 21)
    mark(k, 24)
    k.label("P3_GO")
    k("s_barrier                        ; B_g")
    mark(k, 4)
    def dma_item(st, slot, i):
        L = [f"s_add_u32 m0, s13, {slot*STAGE + 8192*i}", f"s_mov_b32 s14, {st*STAGE + 8192*i}"]
        return L, f"buffer_load_dwordx4 v{VDMA}, s[16:19], s14 offen sc1 lds"
    def emit_dma(st, slot, i):
        L, ld = dma_item(st, slot, i)
        for l in L: k(l)
        vm.issue(ld, ("kv", st, i))
    def emit_stage_first(st, slot):
        L, ld = dma_item(st, slot, 5)
        lab = f"ATT_NP_{st}"
        k("s_cmp_lg_u32 s8, 0")
        k(f"s_cbranch_scc1 {lab}")
        for l in L: k(l)
        k(ld)
        k.label(lab)
    vm.issue(f"buffer_load_dwordx4 v[{Q1}:{Q1+3}], v10, s[20:23], 0 offen sc1", "q")
    vm.issue(f"buffer_load_dwordx2 v[{Q2}:{Q2+1}], v5, s[20:23], 0 offen offset:1024 sc1", "q")
    emit_stage_first(0, 0)
    for i in range(5): emit_dma(0, 0, i)
    vm.wait({"q", ("kv", 0, 0), ("kv", 0, 1)})
    k("v_cmp_gt_u32 vcc, 32, v1")
    k(f"v_cndmask_b32 v{Q2}, 0, v{Q2}, vcc")
    k(f"v_cndmask_b32 v{Q2+1}, 0, v{Q2+1}, vcc")
    k("s_barrier")
    mark(k, 5)
    def rdK(t):
        st, tt = divmod(t, 16); sl = st % 3; b = t & 1
        return [f"ds_read_b128 v[{KA+4*b}:{KA+4*b+3}], v{AK+sl} offset:{tt*KV_TILE}",
                f"ds_read_b64 v[{KB+2*b}:{KB+2*b+1}], v{AKB+sl} offset:{tt*KV_TILE}"]
    def rdV(t):
        st, tt = divmod(t, 16); sl = st % 3; b = t & 1
        return [f"ds_read_b128 v[{VF+8*b+4*m}:{VF+8*b+4*m+3}], v{AV+sl} offset:{tt*KV_TILE + 672*m}" for m in range(2)]
    def M1(t): b = t & 1; return m16(SS + 16 * b, KA + 4 * b, Q1, "0")
    def M2(t): b = t & 1; d = SS + 16 * b; return m8(d, KB + 2 * b, Q2, f"v[{d}:{d+15}]")
    def PV(t, m): b = t & 1; return m16(OO, VF + 8 * b + 4 * m, PP + 4 * m, f"v[{OO}:{OO+15}]")
    NTL = 64
    bg = {}
    def put(t, f): bg.setdefault(t, []).append(f)
    def stage_items(st, t0, step):
        slot = st % 3
        put(t0, lambda: emit_stage_first(st, slot))
        for i in range(5): put(t0 + step * i, (lambda i=i: emit_dma(st, slot, i)))
    stage_items(1, 0, 2); stage_items(2, 14, 1); stage_items(3, 30, 2)
    def wd_addr():
        k("s_lshl_b32 s9, s2, 9")
        k("v_add_u32 v118, s9, v0")
        k("v_lshlrev_b32 v119, 4, v118")
        srd(k, 36, WDP_, 1536 * 1280)
        vm.issue("buffer_load_dwordx4 v[120:123], v119, s[36:39], 0 offen", "wd")
    def wd_dst():
        divconst(k, 124, 118, 80, 9, 131072)
        k("v_mul_u32_u24 v125, 80, v124")
        k("v_sub_u32 v125, v118, v125")
        divconst(k, 126, 125, 10, 9, 80)
        k("v_mul_u32_u24 v127, 10, v126")
        k("v_sub_u32 v125, v125, v127")
        k("v_and_b32 v127, 0xfffffff3, v124")
        k("v_bfe_u32 v119, v124, 2, 1")
        k("v_lshl_or_b32 v127, v119, 3, v127")
        k("v_bfe_u32 v119, v124, 3, 1")
        k("v_lshl_or_b32 v127, v119, 2, v127")
        k(f"s_mov_b32 s9, {1536*160}")
        k("v_mul_lo_u32 v126, s9, v126")
        k("v_mul_u32_u24 v127, 160, v127")
        k("v_lshlrev_b32 v125, 4, v125")
        k("v_add3_u32 v119, v126, v125, v127")
        k("s_mov_b32 s9, 122880")
        k("v_cmp_gt_u32 vcc, s9, v118")
        k("v_mov_b32 v124, 0x7ffffff0")
        k("v_cndmask_b32 v119, v124, v119, vcc")
        wsrd(k, 36, 8 * 1536 * 160, WS_WDP)
    put(15, wd_addr); put(20, wd_dst)
    put(31, lambda: vm.issue("buffer_store_dwordx4 v[120:123], v119, s[36:39], 0 offen sc1", "wdst"))
    WD_, SG, UU, TT, TM, WOD = 136, 152, 160, 168, 176, 184
    def only_job_waves(tag, f):
        def g():
            k("s_cmp_ge_u32 s8, 4")
            k(f"s_cbranch_scc1 P3_J{tag}")
            f()
            k.label(f"P3_J{tag}")
        return g
    def job_issue():
        k(f"s_mul_hi_u32 s55, s2, {(1<<32)//5+1}")
        k("s_mul_i32 s54, s55, 5")
        k("s_sub_u32 s54, s2, s54")
        k("s_lshl_b32 s54, s54, 7")
        k("s_cmp_ge_u32 s55, 24")
        k("s_cselect_b32 s52, 1, 0          ; matrix")
        k("s_mul_i32 s53, s52, 24")
        k("s_sub_u32 s53, s55, s53")
        k("v_and_b32 v188, 7, v0")
        k("v_lshrrev_b32 v189, 3, v0")
        k("v_add_u32 v189, s54, v189")
        k("v_mul_u32_u24 v190, 3072, v189")
        k("s_lshl_b32 s55, s53, 7")
        k("v_lshl_add_u32 v190, v188, 4, v190")
        k("v_add_u32 v190, s55, v190")
        k("s_cmp_ge_u32 s2, 240")
        k("s_cselect_b32 s55, 0, 1966080")
        k("s_cmp_eq_u32 s52, 0")
        k(f"s_cselect_b32 s44, s{WGP}, s{WUP_}")
        k(f"s_cselect_b32 s45, s{WGP+1}, s{WUP_+1}")
        k("s_mov_b32 s46, s55")
        k("s_mov_b32 s47, 0x00020000")
        for i in range(4):
            k(f"s_mov_b32 s55, {i*32*3072}")
            k(f"buffer_load_dwordx4 v[{WD_+4*i}:{WD_+4*i+3}], v190, s[44:47], s55 offen")
        k("s_lshl_b32 s55, s2, 8")
        k("v_add_u32 v191, s55, v0")
        k("v_lshlrev_b32 v190, 4, v191")
        srd(k, 48, WOP_, 640 * 1280)
        k(f"buffer_load_dwordx4 v[{WOD}:{WOD+3}], v190, s[48:51], 0 offen")
        flag_srd(k)
        k("v_and_b32 v192, 3, v1")
        k("v_lshlrev_b32 v192, 7, v192")
        k(f"v_add_u32 v192, {FL_M}, v192")
        k("buffer_load_dword v193, v192, s[56:59], 0 offen sc1")
    def job_mod():
        k(f"v_cmp_ne_u32 vcc, s{NONCE}, v193")
        k("s_cmp_eq_u64 vcc, 0")
        k("s_cbranch_scc1 P3_MOK")
        poll(k, "P3_M", 192, "-1", 193)
        k.label("P3_MOK")
        wsrd(k, 48, 6 * 640 * 4, WS_MODV)
        k("v_lshlrev_b32 v190, 2, v189")
        for i in range(4):
            k("s_movk_i32 s55, 7680")
            k(f"buffer_load_dword v{SG+2*i}, v190, s[48:51], s55 offen offset:{128*i} sc1")
            k("s_movk_i32 s55, 10240")
            k(f"buffer_load_dword v{SG+2*i+1}, v190, s[48:51], s55 offen offset:{128*i} sc1")
    def job_dst():
        k("s_waitcnt vmcnt(0)")
        for r in range(16): k(f"v_mov_b32 v{UU+r}, 0")
        k("s_lshl_b32 s55, s53, 3")
        k("v_add_u32 v190, s55, v188")
        k("v_mul_u32_u24 v194, 5462, v190")
        k("v_lshrrev_b32 v194, 16, v194     ; ct")
        k("v_mul_u32_u24 v195, 12, v194")
        k("v_sub_u32 v195, v190, v195       ; cc")
        k("s_mov_b32 s55, 245760")
        k("v_mul_lo_u32 v196, s55, v194")
        k("s_mul_i32 s55, s52, 12288")
        k("v_lshl_add_u32 v196, v195, 4, v196")
        k("v_add_u32 v196, s55, v196")
        k("s_cmp_ge_u32 s2, 240")
        k(f"s_cselect_b32 s55, 0, {16 * 10 * 24576}")
        k(f"s_add_u32 s44, s{WSP}, {WS_WUP}")
        k(f"s_addc_u32 s45, s{WSP+1}, 0")
        k("s_mov_b32 s46, s55")
        k("s_mov_b32 s47, 0x00020000")
    def job_chunk(i):
        def f():
            d = WD_ + 4 * i
            for q in range(4):
                k(f"v_lshlrev_b32 v{TM+2*q}, 16, v{d+q}")
                k(f"v_and_b32 v{TM+2*q+1}, 0xffff0000, v{d+q}")
            for q in range(8): k(f"v_fmac_f32 v{TT+q}, v{SG+2*i}, v{TM+q}")
            for q in range(8): k(f"v_mul_f32 v{TM+q}, v{SG+2*i+1}, v{TM+q}")
            for q in range(8): k(f"v_add_f32 v{UU+q}, v{UU+q}, v{TM+q}")
            for q in range(4): k(f"v_cvt_pk_bf16_f32 v{d+q}, v{TM+2*q}, v{TM+2*q+1}")
            k(f"v_add_u32 v190, {32*i}, v189")
            k("v_lshrrev_b32 v197, 6, v190")
            k("v_mul_u32_u24 v190, 192, v190")
            k("v_mul_u32_u24 v197, 12288, v197")
            k("v_add3_u32 v190, v190, v197, v196")
            k(f"buffer_store_dwordx4 v[{d}:{d+3}], v190, s[44:47], 0 offen sc1")
        return f
    def job_reduce():
        def rscatter(B):
            for e in range(4):
                k(f"v_permlane32_swap_b32 v{B+e}, v{B+e+4}")
                k(f"v_add_f32 v{B+e}, v{B+e}, v{B+e+4}")
            for e in range(2):
                k(f"v_permlane16_swap_b32 v{B+e}, v{B+e+2}")
                k(f"v_add_f32 v{B+e}, v{B+e}, v{B+e+2}")
            k(f"v_add_f32_dpp v{B}, v{B}, v{B} row_ror:8 row_mask:0xf bank_mask:0xf")
            k(f"v_add_f32_dpp v{B+1}, v{B+1}, v{B+1} row_ror:8 row_mask:0xf bank_mask:0xf")
            k(f"v_cndmask_b32 v{B}, v{B}, v{B+1}, vcc")
        k("v_and_b32 v190, 8, v1")
        k("v_cmp_ne_u32 vcc, 0, v190")
        rscatter(UU); rscatter(TT)
        k("v_mul_u32_u24 v190, 384, v194")
        k("v_lshl_add_u32 v190, v195, 3, v190")
        k("v_lshrrev_b32 v197, 3, v1")
        k("v_add_u32 v190, v190, v197")
        k("s_mul_i32 s55, s52, 96")
        k("v_add_u32 v190, s55, v190")
        k("v_lshlrev_b32 v190, 2, v190")
        k("s_cmp_ge_u32 s2, 240")
        k(f"s_cselect_b32 s55, 0, {16 * 384 * 4}")
        k(f"s_add_u32 s44, s{WSP}, {WS_UT}")
        k(f"s_addc_u32 s45, s{WSP+1}, 0")
        k("s_mov_b32 s46, s55")
        k("s_mov_b32 s47, 0x00020000")
        k(f"buffer_atomic_add_f32 v{UU}, v190, s[44:47], 0 offen")
        k(f"buffer_atomic_add_f32 v{TT}, v190, s[44:47], 0 offen offset:768")
    def job_wo():
        divconst(k, 190, 191, 80, 55, 65536)
        k("v_mul_u32_u24 v197, 80, v190")
        k("v_sub_u32 v197, v191, v197")
        divconst(k, 198, 197, 10, 55, 80)
        k("v_mul_u32_u24 v194, 10, v198")
        k("v_sub_u32 v197, v197, v194")
        k("v_and_b32 v194, 0xfffffff3, v190")
        k("v_bfe_u32 v195, v190, 2, 1")
        k("v_lshl_or_b32 v194, v195, 3, v194")
        k("v_bfe_u32 v195, v190, 3, 1")
        k("v_lshl_or_b32 v194, v195, 2, v194")
        k(f"s_mov_b32 s55, {640*160}")
        k("v_mul_lo_u32 v198, s55, v198")
        k("v_mul_u32_u24 v194, 160, v194")
        k("v_lshlrev_b32 v197, 4, v197")
        k("v_add3_u32 v198, v198, v197, v194")
        k("s_mov_b32 s55, 51200")
        k("v_cmp_gt_u32 vcc, s55, v191")
        k("v_mov_b32 v194, 0x7ffffff0")
        k("v_cndmask_b32 v198, v194, v198, vcc")
        wsrd(k, 48, 8 * 640 * 160, WS_WOP)
        k(f"buffer_store_dwordx4 v[{WOD}:{WOD+3}], v198, s[48:51], 0 offen sc1")
    def job_flag():
        k("s_cmp_lg_u32 s8, 0")
        k("s_cbranch_scc1 P3_NOTF")
        set_flag(k, FL_T, 2, 188)
        k.label("P3_NOTF")
    put(5, only_job_waves("a", job_issue)); put(14, only_job_waves("b", job_mod)); put(24, only_job_waves("c", job_dst))
    for i in range(4): put(25 + i, only_job_waves(f"d{i}", job_chunk(i)))
    put(29, only_job_waves("e", job_reduce)); put(31, only_job_waves("f", job_wo))
    put(47, job_flag)
    def pf_lines(off, nbytes, base_fn, per, vtag):
        def f():
            wsrd(k, 40, nbytes, off)
            base_fn()
            k("s_lshr_b32 s10, s2, 3")
            k(f"s_mul_i32 s10, s10, {per}")
            k("s_add_u32 s9, s9, s10")
            k("v_add_u32 v118, s9, v0")
            k("v_lshlrev_b32 v118, 7, v118")
            k(f"v_cmp_gt_u32 vcc, {per}, v0")
            k("v_mov_b32 v124, 0x7ffffff0")
            k("v_cndmask_b32 v118, v124, v118, vcc")
            vm.issue(f"buffer_load_dword v{vtag}, v118, s[40:43], 0 offen", "pf")
        return f
    if not os.environ.get("NO_PRETOUCH"):
        def pretouch():
            wsrd(k, 40, WS_X1 + S * D * 2 - WS_O, WS_O)
            k("s_mul_i32 s9, s2, 160")
            k("v_add_u32 v118, s9, v0")
            k("v_lshlrev_b32 v118, 7, v118")
            k("v_cmp_gt_u32 vcc, 160, v0")
            k("v_mov_b32 v124, 0x7ffffff0")
            k("v_cndmask_b32 v118, v124, v118, vcc")
            vm.issue("buffer_load_dword v229, v118, s[40:43], 0 offen", "pf")
        put(35, pretouch)
    if not os.environ.get("NO_WPF"):
        put(49, pf_lines(WS_WOP, 8 * 640 * 160, lambda: k("s_mov_b32 s9, 0"), 200, 231))
        def upbase():
            k("s_bfe_u32 s9, s2, 0x20001")
            k("s_mul_i32 s9, s9, 7680")
        put(53, pf_lines(WS_WUP, 16 * 10 * 24576, upbase, 240, 230))
    SEQ = "W2 M1 RKa RKb e0 e1 e2 c0 e3 P1 RV0 RV1 e4 c1 e5 e6 M2 c2 e7 e8 c3 e9 e10 WV P0 BG c4 e11 e12 c5 e13 e14 e15 c6 c7"
    for r in rdK(0) + rdK(1) + rdV(0): k(r)
    k("s_waitcnt lgkmcnt(4)")
    k(M1(0)); k(M2(0))
    for t in range(NTL):
        s = SS + 16 * (t & 1)
        st, tt = divmod(t, 16)
        if t == 4:
            vm.wait({("kv", 0, i) for i in range(5)})
            k("s_barrier")
        if tt == 14 and st + 1 < 4:
            k("s_waitcnt vmcnt(0)")
            k("s_barrier")
        have_next = t + 1 < NTL
        rk = rdK(t + 2) if t + 2 < NTL else []
        rv = rdV(t + 1) if have_next else []
        nrd = len(rk) + len(rv)
        for tok in SEQ.split():
            if tok[0] == "e": i = int(tok[1:]); k(f"v_exp_f32 v{s+i}, v{s+i}")
            elif tok[0] == "c": q = int(tok[1:]); k(f"v_cvt_pk_bf16_f32 v{PP+q}, v{s+2*q}, v{s+2*q+1}")
            elif tok == "W2":
                if have_next: k("s_waitcnt lgkmcnt(2)")
            elif tok == "M1":
                if have_next: k(M1(t + 1))
            elif tok == "M2":
                if have_next: k(M2(t + 1))
            elif tok == "RKa":
                if rk: k(rk[0])
            elif tok == "RKb":
                if rk: k(rk[1])
            elif tok == "RV0":
                if rv: k(rv[0])
            elif tok == "RV1":
                if rv: k(rv[1])
            elif tok == "WV": k(f"s_waitcnt lgkmcnt({nrd})")
            elif tok == "BG":
                for f in bg.get(t, []): f()
            elif tok == "P0": k(PV(t, 0))
            elif tok == "P1":
                if t > 0: k(PV(t - 1, 1))
    k(PV(NTL - 1, 1))
    mark(k, 6)
    def finish(check):
        k(f"v_mov_b32 v2, v{OO+8}")
        k(f"v_mov_b32 v3, v{OO+8}")
        k("v_permlane32_swap_b32 v2, v3")
        if check:
            k("s_mov_b32 s9, 0x21800000         ; 2^-60")
            k("s_mov_b32 s10, 0x5d800000        ; 2^60")
            k("v_cmp_le_f32 vcc, s9, v3")
            k("v_cmp_ge_f32 s[28:29], s10, v3")
            k("s_and_b64 s[28:29], s[28:29], vcc")
            k("s_movk_i32 s9, 0x207")
            for r in range(8):
                k(f"v_cmp_class_f32 vcc, v{OO+r}, s9")
                k("s_andn2_b64 s[28:29], s[28:29], vcc")
            k("s_mov_b32 s34, -1")
            k("s_mov_b32 s35, 0")
            for r in range(8, 12):
                k(f"v_cmp_class_f32 vcc, v{OO+r}, s9")
                k("s_and_b64 vcc, vcc, s[34:35]")
                k("s_andn2_b64 s[28:29], s[28:29], vcc")
            k("s_cmp_eq_u64 s[28:29], -1")
            k("s_cbranch_scc1 ATT_OK")
            k("v_mov_b32 v2, 1")
            k(f"v_mov_b32 v5, {FLAG}")
            k("ds_write_b32 v5, v2")
            k.label("ATT_OK")
            k("s_waitcnt lgkmcnt(0)")
            k("s_barrier")
            k(f"v_mov_b32 v5, {FLAG}")
            k("ds_read_b32 v2, v5")
            k("s_waitcnt lgkmcnt(0)")
            k("v_readfirstlane_b32 s9, v2")
            k("s_cmp_lg_u32 s9, 0")
            k("s_cbranch_scc1 ATT_SLOW")
        k("v_rcp_f32 v3, v3")
        for r in range(12): k(f"v_mul_f32 v{OO+r}, v{OO+r}, v3")
        for q in range(6): k(f"v_cvt_pk_bf16_f32 v{PP+q}, v{OO+2*q}, v{OO+2*q+1}")
        k("v_and_b32 v4, 31, v1")
        k("v_mul_u32_u24 v4, 40, v4")
        k("v_lshrrev_b32 v5, 5, v1")
        k("v_lshl_add_u32 v4, v5, 3, v4")
        k("s_lshl_b32 s9, s8, 11")
        k("v_add_u32 v4, s9, v4")
        k(f"ds_write_b64 v4, v[{PP}:{PP+1}]")
        k(f"ds_write_b64 v4, v[{PP+2}:{PP+3}] offset:16")
        k("s_mov_b32 exec_hi, 0")
        k(f"ds_write_b64 v4, v[{PP+4}:{PP+5}] offset:32")
        k("s_mov_b64 exec, -1")
        k("v_lshlrev_b32 v5, 3, v1")
        k("v_add_u32 v5, s9, v5")
        k("s_waitcnt lgkmcnt(0)")
        for i in range(3): k(f"ds_read_b64 v[{SS+2*i}:{SS+2*i+1}], v5 offset:{512*i}")
        for i in range(3):
            k(f"s_waitcnt lgkmcnt({2-i})")
            k(f"buffer_store_dwordx2 v[{SS+2*i}:{SS+2*i+1}], v{128+i}, s[24:27], 0 offen sc1")
        k("s_branch P4_START")
    finish(True)
    k.label("ATT_SLOW")
    k("s_waitcnt vmcnt(0)")
    for r in range(16): k(f"v_mov_b32 v{OO+r}, 0")
    k("v_mov_b32 v2, 0xff7fffff")
    k("s_mov_b32 s15, 0")
    k.label("ATT_SLOW_STAGE")
    k("s_barrier")
    k(f"s_mul_i32 s10, s15, {STAGE}")
    for i in range(5):
        k(f"s_add_u32 m0, s13, {8192*i}")
        k(f"s_add_u32 s14, s10, {8192*i}")
        k(f"buffer_load_dwordx4 v{VDMA}, s[16:19], s14 offen sc1 lds")
    k("s_cmp_lg_u32 s8, 0")
    k("s_cbranch_scc1 ATT_SLOW_NP")
    k(f"s_add_u32 m0, s13, {8192*5}")
    k(f"s_add_u32 s14, s10, {8192*5}")
    k(f"buffer_load_dwordx4 v{VDMA}, s[16:19], s14 offen sc1 lds")
    k.label("ATT_SLOW_NP")
    k("s_waitcnt vmcnt(0)")
    k("s_barrier")
    k(f"v_mov_b32 v5, v{AK}")
    k(f"v_mov_b32 v6, v{AKB}")
    k(f"v_mov_b32 v7, v{AV}")
    k("s_mov_b32 s9, 0")
    k.label("ATT_SLOW_TILE")
    k(f"ds_read_b128 v[{KA}:{KA+3}], v5")
    k(f"ds_read_b64 v[{KB}:{KB+1}], v6")
    k(f"ds_read_b128 v[{VF}:{VF+3}], v7")
    k(f"ds_read_b128 v[{VF+4}:{VF+7}], v7 offset:672")
    k("s_waitcnt lgkmcnt(0)")
    k(m16(SS, KA, Q1, "0"))
    k(m8(SS, KB, Q2, f"v[{SS}:{SS+15}]"))
    k(f"v_add_u32 v5, {KV_TILE}, v5")
    k(f"v_add_u32 v6, {KV_TILE}, v6")
    k(f"v_add_u32 v7, {KV_TILE}, v7")
    k(f"v_max_f32 v108, v{SS}, v{SS+1}")
    for r in range(2, 16): k(f"v_max_f32 v108, v108, v{SS+r}")
    k("v_mov_b32 v109, v108")
    k("v_permlane32_swap_b32 v108, v109")
    k("v_max_f32 v108, v108, v109")
    k("v_max_f32 v108, v108, v2")
    k("v_sub_f32 v109, v2, v108")
    k("v_exp_f32 v109, v109")
    k("v_mov_b32 v2, v108")
    for r in range(16): k(f"v_sub_f32 v{SS+r}, v{SS+r}, v108")
    for r in range(16): k(f"v_exp_f32 v{SS+r}, v{SS+r}")
    for r in range(16): k(f"v_mul_f32 v{OO+r}, v{OO+r}, v109")
    for q in range(8): k(f"v_cvt_pk_bf16_f32 v{PP+q}, v{SS+2*q}, v{SS+2*q+1}")
    k(m16(OO, VF, PP, f"v[{OO}:{OO+15}]"))
    k(m16(OO, VF + 4, PP + 4, f"v[{OO}:{OO+15}]"))
    k("s_add_u32 s9, s9, 1")
    k("s_cmp_lt_u32 s9, 16")
    k("s_cbranch_scc1 ATT_SLOW_TILE")
    k("s_add_u32 s15, s15, 1")
    k("s_cmp_lt_u32 s15, 4")
    k("s_cbranch_scc1 ATT_SLOW_STAGE")
    k("s_barrier")
    finish(False)

def narrow_ids(k):
    k("s_and_b32 s3, s2, 7")
    k("s_lshr_b32 s13, s2, 3")
    k("s_lshl_b32 s14, s3, 2")
    k("s_and_b32 s15, s13, 3")
    k("s_add_u32 s11, s14, s15")
    k("s_lshr_b32 s12, s13, 2")
    k("s_and_b32 s28, s31, 1")
    k("s_lshr_b32 s29, s31, 1           ; k half")
    k("s_lshl_b32 s9, s11, 6")
    k("s_lshl_b32 s10, s28, 5")
    k("s_add_u32 s30, s9, s10")

RESL, GTL = 147456, 157696
def narrow_res_dma(k, resid_is_input, gate_idx):
    if resid_is_input: srd(k, 24, XP, S * D * 2)
    else: wsrd(k, 24, S * D * 2, WS_X1)
    wsrd(k, 36, 6 * 640 * 4, WS_MODV)
    k("v_and_b32 v16, 255, v0")
    k("s_lshl_b32 s9, s11, 6")
    k("s_mul_i32 s10, s12, 160")
    for i in range(3):
        k(f"v_add_u32 v17, {256*i}, v16")
        k("v_mul_u32_u24 v18, 6554, v17")
        k("v_lshrrev_b32 v18, 16, v18        ; row")
        k("v_mul_u32_u24 v19, 10, v18")
        k("v_sub_u32 v19, v17, v19           ; chunk")
        k("v_add_u32 v18, s9, v18")
        k("v_mul_u32_u24 v18, 1280, v18")
        k("v_lshl_add_u32 v18, v19, 4, v18")
        k("v_add_u32 v18, s10, v18")
        if i == 2:
            k("v_cmp_gt_u32 vcc, 640, v17")
            k("v_mov_b32 v19, 0x7ffffff0")
            k("v_cndmask_b32 v18, v19, v18, vcc")
        k("s_lshl_b32 s14, s31, 10")
        k(f"s_add_u32 m0, s14, {RESL + 4096*i}")
        if i == 2:
            k("s_cmp_ge_u32 s31, 2")
            k("s_cbranch_scc1 NRD_SKIP%d" % gate_idx)
        k("buffer_load_dwordx4 v18, s[24:27], 0 offen sc1 lds")
        if i == 2: k.label("NRD_SKIP%d" % gate_idx)
    k("s_cmp_lg_u32 s31, 3")
    k("s_cbranch_scc1 NRD_NG%d" % gate_idx)
    k("v_lshlrev_b32 v18, 4, v1")
    k("s_mul_i32 s14, s12, 320")
    k(f"s_add_u32 s14, s14, {gate_idx*2560}")
    k(f"s_mov_b32 m0, {GTL}")
    k("s_mov_b32 exec_lo, 0xfffff")
    k("s_mov_b32 exec_hi, 0")
    k("buffer_load_dwordx4 v18, s[36:39], s14 offen sc1 lds")
    k("s_mov_b64 exec, -1")
    k.label("NRD_NG%d" % gate_idx)

def narrow_loader_setup(k, Kdim, a_off, b_off):
    KH = Kdim // 2; NST = KH // 64; lda = Kdim * 2
    VA, VB, NS = 8, 12, 4
    k(f"s_mul_i32 s34, s29, {KH*2}")
    a_dma_rows32(k, VA, 30, lda, 34)
    k("v_lshlrev_b32 v2, 4, v1")
    k(f"s_mul_i32 s9, s12, {Kdim*160}")
    k(f"s_mul_i32 s10, s29, {KH*160}")
    k("s_add_u32 s9, s9, s10")
    k("s_mul_i32 s10, s28, 5120")
    k("s_add_u32 s9, s9, s10")
    k(f"v_add_u32 v{VB}, s9, v2")
    k(f"v_add_u32 v{VB+1}, 4096, v{VB}")
    k("s_lshl_b32 s13, s31, 12")
    k("s_mul_i32 s15, s29, 10240")
    k("s_mul_i32 s10, s28, 5120")
    k("s_add_u32 s15, s15, s10")
    wsrd(k, 16, S * Kdim * 2, a_off)
    wsrd(k, 20, 8 * Kdim * 160, b_off)
    def dmaA(st):
        k(f"s_add_u32 m0, s13, {(st % NS)*16384}")
        k(f"s_mov_b32 s14, {st*128}")
        for i in range(4):
            k(f"buffer_load_dwordx4 v{VA+i}, s[16:19], s14 offen offset:{i*1024} sc1 lds")
    def dmaB(st):
        slot = st % NS
        k(f"s_add_u32 m0, s15, {65536 + slot*20480}")
        k(f"s_mov_b32 s14, {st*10240}")
        for i in range(4):
            k(f"buffer_load_dwordx4 v{VB}, s[20:23], s14 offen offset:{i*1024} sc1 lds")
        k(f"s_add_u32 m0, s15, {65536 + slot*20480 + 4096}")
        k("s_nop 0")
        k(f"buffer_load_dwordx4 v{VB+1}, s[20:23], s14 offen sc1 lds")
    return Loader(k, NST, NS, dmaA, dmaB, 4, 5)

def narrow_compute(k, tag, Kdim, resid_is_input, gate_idx, final, pre_barrier):
    KH = Kdim // 2; NST = KH // 64; NS = 4
    RA, RB, AF, BF, ACC, RES, GT = 4, 6, 12, 28, 68, 108, 120
    k("v_and_b32 v2, 15, v1")
    k("v_lshrrev_b32 v3, 4, v1          ; g")
    k("v_lshrrev_b32 v10, 1, v2")
    k("v_lshlrev_b32 v2, 7, v2")
    k("s_lshl_b32 s13, s8, 12")
    k("v_add_u32 v2, s13, v2")
    for ks in range(2):
        k(f"v_add_u32 v11, {4*ks}, v3")
        k("v_xor_b32 v11, v11, v10")
        k(f"v_lshl_add_u32 v{RA+ks}, v11, 4, v2")
    k("v_lshrrev_b32 v2, 5, v1")
    k("v_lshlrev_b32 v2, 4, v2")
    k("v_bfe_u32 v10, v1, 4, 1")
    k("v_lshl_add_u32 v2, v10, 2, v2")
    k("v_bfe_u32 v10, v1, 2, 2")
    k("v_add_u32 v2, v2, v10")
    k("v_mul_u32_u24 v2, 160, v2")
    k("v_and_b32 v10, 3, v1")
    k("v_lshl_add_u32 v2, v10, 3, v2")
    k("s_mul_i32 s10, s29, 10240")
    k("s_add_u32 s10, s10, 65536")
    k(f"v_add_u32 v{RB}, s10, v2")
    k(f"v_add_u32 v{RB+1}, 40960, v{RB}")
    k("v_and_b32 v2, 15, v1")
    k("s_lshl_b32 s10, s29, 4")
    k("s_add_u32 s10, s10, s30")
    k("v_add_u32 v2, s10, v2")
    k("v_mul_u32_u24 v8, 1280, v2")
    k("s_mul_i32 s10, s12, 160")
    k("v_lshl_add_u32 v8, v3, 3, v8")
    k("v_add_u32 v8, s10, v8")
    k("s_mul_i32 s10, s12, 320")
    k("v_lshlrev_b32 v9, 4, v3")
    k("v_add_u32 v9, s10, v9")
    if final: srd(k, 32, OUTP, S * D * 2)
    else: wsrd(k, 32, S * D * 2, WS_X1)
    XL, XG = 144, 148
    k("s_mul_i32 s9, s8, 3072")
    k("s_add_u32 s9, s9, 24576")
    k("s_lshl_b32 s10, s29, 4")
    k("s_add_u32 s10, s10, s30")
    k("s_mul_i32 s40, s12, 160")
    for i in range(3):
        k(f"v_add_u32 v10, {64*i}, v1")
        k("v_mul_u32_u24 v11, 6554, v10")
        k("v_lshrrev_b32 v11, 16, v11        ; row")
        k("v_mul_u32_u24 v140, 10, v11")
        k("v_sub_u32 v140, v10, v140         ; chunk")
        k("v_lshlrev_b32 v140, 4, v140")
        k("v_mul_u32_u24 v141, 176, v11")
        k(f"v_add3_u32 v{XL+i}, v141, v140, s9")
        k("v_add_u32 v11, s10, v11")
        k("v_mul_u32_u24 v11, 1280, v11")
        k(f"v_add3_u32 v{XG+i}, v11, v140, s40")
    k("v_cmp_gt_u32 vcc, 32, v1")
    k("v_mov_b32 v10, 0x7ffffff0")
    k(f"v_cndmask_b32 v{XG+2}, v10, v{XG+2}, vcc")
    k("v_and_b32 v10, 15, v1")
    k("v_mul_u32_u24 v10, 176, v10")
    k("v_lshrrev_b32 v11, 4, v1")
    k("v_lshlrev_b32 v11, 3, v11")
    k("v_add3_u32 v147, v10, v11, s9")
    pre_barrier()
    if APF: apf_rows(k, WS_G if final else WS_O, S * Kdim * 2, lambda: k("s_lshl_b32 s9, s11, 6"), Kdim * 2, 6, 0, NST,
                     lambda: k("s_mov_b32 s9, s12"), 128 * NST // 8, 10, 229, khalf=KH * 2)
    def reads(step):
        st, ks = divmod(step, 2); slot = st % NS; sb = step & 1
        a = [f"ds_read_b128 v[{AF+(sb*2+mb)*4}:{AF+(sb*2+mb)*4+3}], v{RA+ks} offset:{slot*16384 + mb*2048}" for mb in range(2)]
        out = []
        for nt in range(5):
            d = BF + (sb * 5 + nt) * 4
            g = [f"ds_read_b64_tr_b16 v[{d+2*j}:{d+2*j+1}], v{RB+(slot>>1)} offset:{(slot&1)*20480 + (32*ks+8*j)*160 + nt*32}" for j in range(2)]
            out.append((a if nt == 0 else []) + g)
        return out
    def mf(step, nt):
        sb = step & 1
        return [mfma16(ACC + (nt * 2 + mb) * 4, BF + (sb * 5 + nt) * 4, AF + (sb * 2 + mb) * 4, "0" if step == 0 else None) for mb in range(2)]
    compute_loop(k, NST, 2, reads, mf, 0, stamp=False, hooks={-1: lambda: mark(k, 21 if final else 23)})
    mark(k, 9 if not final else 15)
    k("s_barrier")
    k("v_lshlrev_b32 v2, 4, v1")
    k("s_mul_i32 s9, s8, 5120")
    k("v_add_u32 v3, s9, v2")
    k("s_xor_b32 s10, s8, 2")
    k("s_mul_i32 s10, s10, 5120")
    k("v_add_u32 v4, s10, v2")
    k("s_cmp_eq_u32 s29, 0")
    k(f"s_cbranch_scc1 {tag}_KH0")
    for nt in range(5):
        d = ACC + (nt * 2 + 0) * 4
        k(f"ds_write_b128 v3, v[{d}:{d+3}] offset:{1024*nt}")
    for nt in range(5):
        for r in range(4): k(f"v_mov_b32 v{ACC+(nt*2)*4+r}, v{ACC+(nt*2+1)*4+r}")
    k(f"s_branch {tag}_JOIN")
    k.label(f"{tag}_KH0")
    for nt in range(5):
        d = ACC + (nt * 2 + 1) * 4
        k(f"ds_write_b128 v3, v[{d}:{d+3}] offset:{1024*nt}")
    k.label(f"{tag}_JOIN")
    k("s_waitcnt lgkmcnt(0)")
    k("s_barrier")
    for nt in range(5):
        k(f"ds_read_b128 v[{BF+4*nt}:{BF+4*nt+3}], v4 offset:{1024*nt}")
    k("v_and_b32 v2, 15, v1")
    k("s_lshl_b32 s10, s29, 4")
    k("s_lshl_b32 s9, s28, 5")
    k("s_add_u32 s10, s10, s9")
    k("v_add_u32 v2, s10, v2")
    k("v_mul_u32_u24 v2, 160, v2")
    k("v_lshrrev_b32 v3, 4, v1")
    k("v_lshl_add_u32 v2, v3, 3, v2")
    k(f"v_add_u32 v2, {RESL}, v2")
    k("v_lshlrev_b32 v3, 4, v3")
    k(f"v_add_u32 v3, {GTL}, v3")
    for nt in range(5):
        k(f"ds_read_b64 v[{RES+2*nt}:{RES+2*nt+1}], v2 offset:{32*nt}")
        k(f"ds_read_b128 v[{GT+4*nt}:{GT+4*nt+3}], v3 offset:{64*nt}")
    k("s_waitcnt lgkmcnt(0)")
    st_sc = "" if final else " sc1"
    for nt in range(5):
        d = ACC + nt * 8
        for r in range(4): k(f"v_add_f32 v{d+r}, v{d+r}, v{BF+4*nt+r}")
        k(f"v_lshlrev_b32 v12, 16, v{RES+2*nt}")
        k(f"v_and_b32 v13, 0xffff0000, v{RES+2*nt}")
        k(f"v_lshlrev_b32 v14, 16, v{RES+2*nt+1}")
        k(f"v_and_b32 v15, 0xffff0000, v{RES+2*nt+1}")
        for r in range(4): k(f"v_fmac_f32 v{12+r}, v{d+r}, v{GT+4*nt+r}")
        k(f"v_cvt_pk_bf16_f32 v{16+2*(nt%2)}, v12, v13")
        k(f"v_cvt_pk_bf16_f32 v{17+2*(nt%2)}, v14, v15")
        k(f"ds_write_b64 v147, v[{16+2*(nt%2)}:{17+2*(nt%2)}] offset:{32*nt}")
        if not final:
            t = 16 + 2 * (nt % 2)
            k(f"v_lshlrev_b32 v12, 16, v{t}")
            k(f"v_and_b32 v13, 0xffff0000, v{t}")
            k(f"v_lshlrev_b32 v14, 16, v{t+1}")
            k(f"v_and_b32 v15, 0xffff0000, v{t+1}")
            if nt == 0:
                k("v_add_f32 v20, v12, v13"); k("v_add_f32 v21, v14, v15")
                k("v_mul_f32 v22, v12, v12"); k("v_mul_f32 v23, v13, v13")
            else:
                k("v_add_f32 v20, v20, v12"); k("v_add_f32 v21, v21, v13")
                k("v_fmac_f32 v22, v12, v12"); k("v_fmac_f32 v23, v13, v13")
                k("v_add_f32 v20, v20, v14"); k("v_add_f32 v21, v21, v15")
            k("v_fmac_f32 v22, v14, v14"); k("v_fmac_f32 v23, v15, v15")
    k("s_waitcnt lgkmcnt(0)")
    for i in range(3): k(f"ds_read_b128 v[{BF+4*i}:{BF+4*i+3}], v{144+i}")
    for i in range(3):
        k(f"s_waitcnt lgkmcnt({2-i})")
        k(f"buffer_store_dwordx4 v[{BF+4*i}:{BF+4*i+3}], v{148+i}, s[32:35], 0 offen{st_sc}")
    if not final:
        k("v_add_f32 v20, v20, v21")
        k("v_add_f32 v21, v22, v23")
        for sw in ("v_permlane32_swap_b32", "v_permlane16_swap_b32"):
            k("v_mov_b32 v22, v20"); k("v_mov_b32 v23, v21")
            k(f"{sw} v20, v22"); k(f"{sw} v21, v23")
            k("v_add_f32 v20, v20, v22"); k("v_add_f32 v21, v21, v23")
        wsrd(k, 24, 2048 * 64, WS_STAT)
        k("v_and_b32 v2, 15, v1")
        k("s_lshl_b32 s10, s29, 4")
        k("s_add_u32 s10, s10, s30")
        k("v_add_u32 v2, s10, v2")
        k("v_lshlrev_b32 v2, 6, v2")
        k("s_lshl_b32 s10, s12, 3")
        k("s_mov_b64 exec, 0xffff")
        k("buffer_store_dwordx2 v[20:21], v2, s[24:27], s10 offen sc1")
        k("s_mov_b64 exec, -1")

def up_ids(k):
    k("s_and_b32 s3, s2, 7")
    k("s_lshr_b32 s13, s2, 3")
    k("s_and_b32 s14, s3, 1")
    k("s_lshl_b32 s14, s14, 3")
    k("s_and_b32 s15, s13, 7")
    k("s_add_u32 s11, s14, s15")
    k("s_lshr_b32 s14, s3, 1")
    k("s_lshl_b32 s14, s14, 2")
    k("s_lshr_b32 s15, s13, 3")
    k("s_add_u32 s12, s14, s15")

def up_loader_setup(k):
    VA, VB, NS = 8, 12, 4
    k("s_lshl_b32 s9, s11, 7")
    k("s_lshl_b32 s10, s31, 5")
    k("s_add_u32 s9, s9, s10")
    a_dma_rows32(k, VA, 9, 1280)
    k("v_lshlrev_b32 v2, 4, v1")
    k("s_mul_i32 s9, s31, 6144")
    k(f"s_mul_i32 s10, s12, {10*24576}")
    k("s_add_u32 s9, s9, s10")
    k(f"v_add_u32 v{VB}, s9, v2")
    k(f"v_add_u32 v{VB+1}, 4096, v{VB}")
    k("s_lshl_b32 s13, s31, 12")
    k("s_mul_i32 s15, s31, 6144")
    wsrd(k, 16, S * D * 2, WS_X1)
    wsrd(k, 20, 16 * 10 * 24576, WS_WUP)
    def dmaA(st):
        k(f"s_add_u32 m0, s13, {(st % NS)*16384}")
        k(f"s_mov_b32 s14, {st*128}")
        for i in range(4):
            k(f"buffer_load_dwordx4 v{VA+i}, s[16:19], s14 offen offset:{i*1024} sc1 lds")
    def dmaB(st):
        slot = st % NS
        k(f"s_add_u32 m0, s15, {65536 + slot*24576}")
        k(f"s_mov_b32 s14, {st*24576}")
        for i in range(4):
            k(f"buffer_load_dwordx4 v{VB}, s[20:23], s14 offen offset:{i*1024} sc1 lds")
        k(f"s_add_u32 m0, s15, {65536 + slot*24576 + 4096}")
        k("s_nop 0")
        for i in range(2):
            k(f"buffer_load_dwordx4 v{VB+1}, s[20:23], s14 offen offset:{i*1024} sc1 lds")
    return Loader(k, 10, NS, dmaA, dmaB, 4, 6)

def up_compute(k, pre_barrier):
    AF, BF, ACC, RA, RB, NS = 16, 24, 72, 4, 8, 4
    k("v_and_b32 v2, 31, v1")
    k("v_lshrrev_b32 v3, 5, v1")
    k("v_bfe_u32 v14, v2, 1, 3")
    k("v_lshlrev_b32 v2, 7, v2")
    k("s_lshl_b32 s10, s8, 12")
    k("v_add_u32 v2, s10, v2")
    for ks in range(4):
        k(f"v_add_u32 v15, {2*ks}, v3")
        k("v_xor_b32 v15, v15, v14")
        k(f"v_lshl_add_u32 v{RA+ks}, v15, 4, v2")
    k("v_lshrrev_b32 v2, 5, v1")
    k("v_bfe_u32 v3, v1, 2, 2")
    k("v_lshl_add_u32 v2, v2, 3, v3")
    k("v_mul_u32_u24 v2, 192, v2")
    k("v_bfe_u32 v14, v1, 4, 1")
    k("v_lshl_add_u32 v2, v14, 5, v2")
    k("v_and_b32 v14, 3, v1")
    k("v_lshl_add_u32 v2, v14, 3, v2")
    k(f"v_add_u32 v{RB}, 65536, v2")
    k(f"v_add_u32 v{RB+1}, {65536+49152}, v2")
    k("v_and_b32 v2, 31, v1")
    k("s_lshl_b32 s9, s11, 7")
    k("s_lshl_b32 s10, s8, 5")
    k("s_add_u32 s9, s9, s10")
    k("v_add_u32 v2, s9, v2")
    k("v_lshlrev_b32 v2, 6, v2")
    wsrd(k, 44, 2048 * 64, WS_STAT)
    GST, GL, GG = 131072, 200, 206
    k("s_mul_i32 s9, s8, 6656")
    k(f"s_add_u32 s9, s9, {GST}")
    k("s_lshl_b32 s10, s11, 7")
    k("s_lshl_b32 s34, s8, 5")
    k("s_add_u32 s10, s10, s34")
    k("s_mul_i32 s34, s12, 192")
    for i in range(6):
        k(f"v_add_u32 v14, {64*i}, v1")
        k("v_mul_u32_u24 v15, 5462, v14")
        k("v_lshrrev_b32 v15, 16, v15        ; row")
        k("v_mul_u32_u24 v16, 12, v15")
        k("v_sub_u32 v16, v14, v16           ; chunk")
        k("v_lshlrev_b32 v16, 4, v16")
        k("v_mul_u32_u24 v17, 208, v15")
        k(f"v_add3_u32 v{GL+i}, v17, v16, s9")
        k("v_add_u32 v15, s10, v15")
        k("v_mul_u32_u24 v15, 3072, v15")
        k(f"v_add3_u32 v{GG+i}, v15, v16, s34")
    k("v_and_b32 v14, 31, v1")
    k("v_mul_u32_u24 v14, 208, v14")
    k("v_lshrrev_b32 v15, 5, v1")
    k("v_lshlrev_b32 v15, 4, v15")
    k("v_add3_u32 v212, v14, v15, s9")
    pre_barrier()
    if APF: apf_rows(k, WS_X1, S * D * 2, lambda: k("s_lshl_b32 s9, s11, 7"), 1280, 7, 0, 10, lambda: k("s_and_b32 s9, s12, 3"), 320, 14, 228)
    STT = 168
    def reads(step):
        st, ks = divmod(step, 4); slot = st % NS; sb = step & 1
        a = f"ds_read_b128 v[{AF+4*sb}:{AF+4*sb+3}], v{RA+ks} offset:{slot*16384}"
        out = []
        for nt in range(6):
            d = BF + (sb * 6 + nt) * 4
            off = (slot & 1) * 24576 + (nt // 3) * 12288 + (nt % 3) * 64
            g = [f"ds_read_b64_tr_b16 v[{d+2*j}:{d+2*j+1}], v{RB+(slot>>1)} offset:{off + (16*ks+4*j)*192}" for j in range(2)]
            out.append(([a] if nt == 0 else []) + g)
        return out
    def mf(step, nt):
        sb = step & 1
        return [mfma32(ACC + 16 * nt, BF + (sb * 6 + nt) * 4, AF + 4 * sb, "0" if step == 0 else None)]
    compute_loop(k, 10, 4, reads, mf, 0, stamp=False, hooks={-1: lambda: mark(k, 22)})
    mark(k, 12)
    k("s_barrier")
    k("v_and_b32 v2, 31, v1")
    k("s_lshl_b32 s9, s8, 5")
    k("v_add_u32 v2, s9, v2")
    k("v_lshlrev_b32 v2, 6, v2")
    k("v_add_u32 v2, 36864, v2")
    for q in range(4): k(f"ds_read_b128 v[{STT+4*q}:{STT+4*q+3}], v2 offset:{16*q}")
    k("s_waitcnt lgkmcnt(0)")
    k(f"v_add_f32 v10, v{STT}, v{STT+2}")
    k(f"v_add_f32 v11, v{STT+1}, v{STT+3}")
    for q in range(2, 8):
        k(f"v_add_f32 v10, v10, v{STT+2*q}")
        k(f"v_add_f32 v11, v11, v{STT+2*q+1}")
    k(f"s_mov_b32 s9, {hex(f2u(1.0/640))}")
    k("v_mul_f32 v10, s9, v10            ; mean")
    k("v_mul_f32 v13, v10, v10")
    k("v_fma_f32 v11, v11, s9, -v13      ; variance")
    k("v_max_f32 v11, 0, v11")
    k("v_add_f32 v11, 0x3727c5ac, v11")
    k("v_rsq_f32 v11, v11")
    k("s_nop 0")
    k("v_mul_f32 v13, v10, v11")
    k("v_sub_f32 v12, 0, v13")
    k("v_mov_b32 v13, v12")
    k("v_mov_b32 v10, v11")
    k("v_lshrrev_b32 v14, 5, v1")
    k("v_lshlrev_b32 v14, 4, v14")
    k("v_add_u32 v14, 32768, v14")
    wsrd(k, 24, S * F * 2, WS_G)
    k("v_and_b32 v2, 31, v1")
    k("s_lshl_b32 s9, s11, 7")
    k("s_lshl_b32 s10, s8, 5")
    k("s_add_u32 s9, s9, s10")
    k("v_add_u32 v2, s9, v2")
    k("v_mul_u32_u24 v2, 3072, v2")
    k("v_lshrrev_b32 v3, 5, v1")
    k("v_lshlrev_b32 v3, 4, v3")
    k("s_mul_i32 s9, s12, 192")
    k("v_add3_u32 v2, v2, v3, s9")
    c1 = -2.0 * 0.7978845608028654 * 1.4426950408889634
    c2 = c1 * 0.044715
    for r, c in ((4, c1), (5, c1), (6, c2), (7, c2), (8, 1.0), (9, 1.0)): k(f"v_mov_b32 v{r}, {hex(f2u(c))}")
    pk = lambda r: f"v[{r}:{r+1}]"
    U0, U1 = 40, 168
    def ut_reads(slot, off):
        U = (U0, U1)[slot]
        for mat in range(2):
            for jj in range(2):
                k(f"ds_read_b128 v[{U+8*mat+4*jj}:{U+8*mat+4*jj+3}], v14 offset:{mat*384 + off + 32*jj}")
                k(f"ds_read_b128 v[{U+16+8*mat+4*jj}:{U+16+8*mat+4*jj+3}], v14 offset:{768 + mat*384 + off + 32*jj}")
    if os.environ.get("UPDIAG"): mark(k, 25)
    def group(jp, g, nxt_slot, nxt_off, woff):
        U = (U0, U1)[jp]
        u = g + 48
        T = 16 + 8 * jp
        if nxt_off is not None: ut_reads(nxt_slot, nxt_off)
        k(f"s_waitcnt lgkmcnt({8 if nxt_off is not None else 0})")
        for mat in range(2):
            for r in range(0, 8, 2):
                k(f"v_pk_fma_f32 {pk(U+16+8*mat+r)}, {pk(U+8*mat+r)}, v[12:13], {pk(U+16+8*mat+r)}")
        for mat in range(2):
            base = g if mat == 0 else u
            for r in range(0, 8, 2):
                k(f"v_pk_fma_f32 {pk(base+r)}, {pk(base+r)}, v[10:11], {pk(U+16+8*mat+r)}")
        for r in range(0, 8, 2): k(f"v_pk_mul_f32 {pk(T+r)}, {pk(g+r)}, {pk(g+r)}")
        for r in range(0, 8, 2): k(f"v_pk_fma_f32 {pk(T+r)}, {pk(T+r)}, v[6:7], v[4:5]")
        for r in range(0, 8, 2): k(f"v_pk_mul_f32 {pk(T+r)}, {pk(T+r)}, {pk(g+r)}")
        for r in range(8): k(f"v_exp_f32 v{T+r}, v{T+r}")
        for r in range(0, 8, 2): k(f"v_pk_mul_f32 {pk(g+r)}, {pk(g+r)}, {pk(u+r)}")
        for r in range(0, 8, 2): k(f"v_pk_add_f32 {pk(T+r)}, {pk(T+r)}, v[8:9]")
        for r in range(8): k(f"v_rcp_f32 v{T+r}, v{T+r}")
        for r in range(0, 8, 2): k(f"v_pk_mul_f32 {pk(T+r)}, {pk(T+r)}, {pk(g+r)}")
        t = 32 + 4 * jp
        for q in range(4): k(f"v_cvt_pk_bf16_f32 v{t+q}, v{T+2*q}, v{T+2*q+1}")
        k(f"v_permlane32_swap_b32 v{t}, v{t+2}")
        k(f"v_permlane32_swap_b32 v{t+1}, v{t+3}")
        k(f"ds_write_b128 v212, v[{t}:{t+3}] offset:{woff}")
    ut_reads(0, 0)
    if os.environ.get("EPI_LOOP"):
        k("s_mov_b32 s34, 3")
        k.label("UP_EPI")
        for jp in range(2): group(jp, ACC + 8 * jp, 1 - jp, 64 * (jp + 1), 32 * jp)
        for base in (ACC, ACC + 48):
            for r in range(0, 32, 2): k(f"v_pk_mov_b32 {pk(base+r)}, {pk(base+16+r)}, {pk(base+16+r)} op_sel:[0,1]")
        k("v_add_u32 v14, 128, v14")
        k("v_add_u32 v212, 64, v212")
        k("s_sub_u32 s34, s34, 1")
        k("s_cmp_lg_u32 s34, 0")
        k("s_cbranch_scc1 UP_EPI")
    else:
        for grp in range(6):
            nt, jp = divmod(grp, 2)
            group(jp, ACC + 16 * nt + 8 * jp, 1 - jp, (64 * (grp + 1) if grp < 5 else None), 64 * nt + 32 * jp)
    if os.environ.get("UPDIAG"): mark(k, 28)
    k("s_waitcnt lgkmcnt(0)")
    for i in range(6): k(f"ds_read_b128 v[{ACC+4*i}:{ACC+4*i+3}], v{200+i}")
    for i in range(6):
        k(f"s_waitcnt lgkmcnt({5-i})")
        k(f"buffer_store_dwordx4 v[{ACC+4*i}:{ACC+4*i+3}], v{206+i}, s[24:27], 0 offen sc1")

def phases456(k):
    k.label("P4_START")
    if not os.environ.get("LDIAG") and not os.environ.get("P0DIAG") and not os.environ.get("UPDIAG"): mark(k, 25)
    k("s_waitcnt vmcnt(0)")
    if not os.environ.get("LDIAG") and not os.environ.get("P0DIAG") and not os.environ.get("UPDIAG"): mark(k, 26)
    k("s_barrier                        ; B_h")
    mark(k, 7)
    narrow_ids(k)
    k("s_cmp_lt_u32 s8, 4")
    k("s_cbranch_scc1 P4_COMPUTE")
    k("s_cmp_lg_u32 s8, 7")
    k("s_cbranch_scc1 P4L_NF")
    set_flag(k, FL_O, 2)
    k.label("P4L_NF")
    L = narrow_loader_setup(k, 640, WS_O, WS_WOP)
    poll_all(k, "P4L_T", FL_T, 20)
    L.preloadB()
    narrow_res_dma(k, True, 2)
    k("s_cmp_lg_u32 s8, 4")
    k("s_cbranch_scc1 P4L_GO")
    poll_range(k, "P4L_O", FL_O, lambda: k("s_lshl_b32 s9, s3, 5"), 32)
    k.label("P4L_GO")
    k("s_barrier                        ; B_i")
    mark(k, 8)
    L.run(prefetch=apf_loader(k, WS_O, S * 640 * 2, lambda: k("s_lshl_b32 s9, s11, 6"), 1280, 6, 1, 4, lambda: k("s_mov_b32 s9, s12"), 64, 17, 229, khalf=640))
    k("s_barrier")
    k("s_barrier")
    k("s_lshr_b32 s35, s11, 1")
    k("s_lshl_b32 s35, s35, 4")
    k("s_and_b32 s36, s11, 1")
    k("s_lshl_b32 s36, s36, 3")
    k("s_add_u32 s35, s35, s36")
    k("s_add_u32 s35, s35, s12")
    up_ids(k)
    L = up_loader_setup(k)
    L.preloadB()
    k("s_barrier")
    k("s_cmp_lg_u32 s8, 4")
    k("s_cbranch_scc1 P5L_GO")
    set_flag(k, FL_X1, 35)
    poll_range(k, "P5L_X", FL_X1, lambda: k("s_lshl_b32 s9, s11, 4"), 16)
    k.label("P5L_GO")
    k("s_barrier                        ; B_k")
    mark(k, 11)

    def ut_issue():
        wsrd(k, 24, 16 * 384 * 4, WS_UT)
        k("v_lshlrev_b32 v2, 4, v1")
        k("s_mul_i32 s14, s12, 1536")
        k("s_and_b32 s9, s31, 1")
        k("s_lshl_b32 s9, s9, 10")
        k("s_add_u32 s14, s14, s9")
        k("s_add_u32 m0, s9, 32768")
        k("s_nop 0")
        k("buffer_load_dwordx4 v2, s[24:27], s14 offen sc1 lds")
        wsrd(k, 24, 2048 * 64, WS_STAT)
        k("s_lshl_b32 s14, s11, 13")
        k("s_lshl_b32 s9, s31, 11")
        k("s_add_u32 s14, s14, s9")
        k("s_add_u32 m0, s9, 36864")
        k("s_nop 0")
        k("buffer_load_dwordx4 v2, s[24:27], s14 offen sc1 lds")
        k("buffer_load_dwordx4 v2, s[24:27], s14 offen offset:1024 sc1 lds")
        n = 0
        if os.environ.get("WDPF"):
            wsrd(k, 52, 8 * 1536 * 160, WS_WDP)
            k("s_lshr_b32 s9, s2, 3")
            k("s_mul_i32 s9, s9, 480")
            k("v_and_b32 v20, 255, v0")
            for i in range(2):
                k(f"v_add_u32 v21, {256*i}, v20")
                k("v_add_u32 v22, s9, v21")
                k("v_lshlrev_b32 v22, 7, v22")
                if i:
                    k("v_cmp_gt_u32 vcc, 480, v21")
                    k("v_mov_b32 v23, 0x7ffffff0")
                    k("v_cndmask_b32 v22, v23, v22, vcc")
                k(f"buffer_load_dword v{228+i}, v22, s[52:55], 0 offen")
                n += 1
        npf.append(n)
        return 3 + n
    npf = []
    L.run(after_barrier={8: ut_issue}, prefetch=(apf_loader(k, WS_X1, S * D * 2, lambda: k("s_lshl_b32 s9, s11, 7"), 1280, 7, 1, 9, lambda: k("s_and_b32 s9, s12, 3"), 288, 17, 228) if os.environ.get("APF_UP") else None))
    k(f"s_waitcnt vmcnt({npf[0]})")
    k("s_barrier                        ; u', t landed")
    k("s_lshl_b32 s35, s11, 4")
    k("s_add_u32 s35, s35, s12")
    narrow_ids(k)
    if os.environ.get("LATE_PRE"): k("s_barrier")
    L = narrow_loader_setup(k, 1536, WS_G, WS_WDP)
    poll_all(k, "P6L_O", FL_O, 20)
    L.preloadB()
    if not os.environ.get("LATE_PRE"): k("s_barrier")
    k("s_cmp_lg_u32 s8, 4")
    k("s_cbranch_scc1 P6L_GO")
    set_flag(k, FL_G, 35)
    def gfirst():
        k("s_lshr_b32 s9, s11, 1")
        k("s_lshl_b32 s9, s9, 4")
    poll_range(k, "P6L_G", FL_G, gfirst, 16)
    k.label("P6L_GO")
    k("s_barrier                        ; B_m")
    mark(k, 14)
    def down_res():
        narrow_res_dma(k, False, 5)
        return 0
    L.run(after_barrier={2: down_res}, prefetch=apf_loader(k, WS_G, S * 1536 * 2, lambda: k("s_lshl_b32 s9, s11, 6"), 3072, 6, 1, 11, lambda: k("s_mov_b32 s9, s12"), 176, 17, 229, khalf=1536))
    k("s_barrier")
    k("s_barrier")
    k("s_branch F_END")
    k.label("P4_COMPUTE")
    narrow_compute(k, "P4C", 640, True, 2, False, lambda: k("s_barrier                        ; B_i"))
    if not os.environ.get("P0DIAG") and not os.environ.get("UPDIAG"): mark(k, 29)
    k("s_waitcnt vmcnt(0)")
    if not os.environ.get("P0DIAG"): mark(k, 30)
    k("s_barrier                        ; B_j")
    mark(k, 10)
    up_ids(k)
    up_compute(k, lambda: k("s_barrier                        ; B_k"))
    if os.environ.get("UPDIAG"): mark(k, 29)
    if not os.environ.get("LDIAG") and not os.environ.get("P0DIAG") and not os.environ.get("UPDIAG"): mark(k, 27)
    k("s_waitcnt vmcnt(0)")
    if not os.environ.get("P0DIAG") and not os.environ.get("UPDIAG"): mark(k, 28)
    k("s_barrier                        ; B_l")
    mark(k, 13)
    narrow_ids(k)
    narrow_compute(k, "P6C", 1536, False, 5, True, lambda: k("s_barrier                        ; B_m"))

def gen_fused():
    k = K()
    k("s_cmp_ge_u32 s2, 256")
    k("s_cbranch_scc1 F_END")
    k(f"s_load_dwordx8 s[64:71], s[0:1], 0")
    k(f"s_load_dwordx8 s[72:79], s[0:1], 32")
    k(f"s_load_dwordx8 s[80:87], s[0:1], 64")
    k("v_and_b32 v1, 63, v0")
    k("v_lshrrev_b32 v2, 6, v0")
    k("s_nop 0")
    k("v_readfirstlane_b32 s8, v2       ; wave")
    k("s_and_b32 s31, s8, 3")
    phase01(k)
    phase2_loader(k)
    phase2_spare(k)
    phase2_compute(k)
    phase3(k)
    phases456(k)
    k.label("F_END")
    k("s_endpgm")
    k.fix_hazards()
    return NAME, header(NAME) + k.text() + descriptor(NAME, 232), (256, 512, 163840)

if __name__ == "__main__":
    import sys
    HEAD = open("adaLN_cond__mha_block__geglu_ffn__prompt.s.ref").read().split("; Override launch")[0]
    n, t, (g, b, l) = gen_fused()
    s = HEAD + f"; @launch grid=({g},1,1) block=({b},1,1) lds={l}\n" + '.amdgcn_target "amdgcn-amd-amdhsa--gfx950"\n' + t
    out = sys.argv[1] if len(sys.argv) > 1 else "fused.s"
    open(out, "w").write(s)
    print("wrote", out, len(s))
```

```python
from common import *
from k_gemm2 import mfma32, mfma16, compute_loop, f2u
from k_attn2 import VM, m16, m8
import os, struct

NAME = "adaLN_cond__mha_block__geglu_ffn__prompt_kernel"
XP, WQKVP, WOP_, WGP, WUP_, WDP_, CP, WMODP, OUTP, DBGP, WSP = 64, 66, 68, 72, 74, 76, 78, 80, 82, 84, 86
NONCE = 60
CTL = 163584
SCR = 131072
STOP = int(os.environ.get("STOP", 99))
TIMEOUT = 30000

def wsrd(k, s, nbytes, off): srd(k, s, WSP, nbytes, off)
def mark(k, i): k(f"; MARK {i}")

APF = bool(os.environ.get("APF"))
def apf_rows(k, off, nbytes, row0_fn, lda, nrows_log2, first_line, nlines, sharer_fn, per, vt, vdst, khalf=None, tid="v0"):
    wsrd(k, 52, nbytes, off)
    for i in range((per + 255) // 256):
        sharer_fn()
        k(f"s_mul_i32 s9, s9, {per}")
        if i: k(f"s_add_u32 s9, s9, {256 * i}")
        k(f"v_add_u32 v{vt}, s9, {tid}")
        sh = nrows_log2 + (1 if khalf else 0)
        k(f"v_lshrrev_b32 v{vt+1}, {sh}, v{vt}")
        if khalf: k(f"v_bfe_u32 v{vt+2}, v{vt}, {nrows_log2}, 1")
        k(f"v_and_b32 v{vt}, {(1 << nrows_log2) - 1}, v{vt}")
        row0_fn()
        k(f"v_add_u32 v{vt}, s9, v{vt}")
        k(f"s_mov_b32 s9, {lda}")
        k(f"v_mul_lo_u32 v{vt}, s9, v{vt}")
        if first_line: k(f"v_add_u32 v{vt+1}, {first_line}, v{vt+1}")
        k(f"v_lshl_add_u32 v{vt}, v{vt+1}, 7, v{vt}")
        if khalf:
            k(f"v_mul_u32_u24 v{vt+2}, {khalf}, v{vt+2}")
            k(f"v_add_u32 v{vt}, v{vt}, v{vt+2}")
        if 256 * (i + 1) > per:
            k(f"v_cmp_gt_u32 vcc, {per - 256 * i}, {tid}")
            k(f"v_mov_b32 v{vt+1}, 0x7ffffff0")
            k(f"v_cndmask_b32 v{vt}, v{vt+1}, v{vt}, vcc")
        k(f"buffer_load_dword v{vdst+i}, v{vt}, s[52:55], 0 offen sc1")

APF2 = os.environ.get("APF2", "0") != "0"
def apf_loader(k, *args, **kw):
    def f():
        per = args[8]
        k("v_and_b32 v16, 255, v0")
        apf_rows(k, *args, tid="v16", **kw)
        return (per + 255) // 256
    return f

OLDPOLL = bool(os.environ.get('OLDPOLL'))
def poll_old(k, tag, vaddr, mask, vtmp, waitall=True):
    k("s_mov_b32 s14, 0")
    k.label(f"{tag}_P")
    if mask == "lo32":
        k("s_mov_b32 exec_lo, -1"); k("s_mov_b32 exec_hi, 0")
    else:
        k(f"s_mov_b64 exec, {mask}")
    k(f"buffer_load_dword v{vtmp}, v{vaddr}, s[56:59], 0 offen sc1")
    k("s_waitcnt vmcnt(0)")
    k(f"v_cmp_ne_u32 vcc, s{NONCE}, v{vtmp}")
    k("s_mov_b64 exec, -1")
    k("s_cmp_eq_u64 vcc, 0")
    k(f"s_cbranch_scc1 {tag}_R")
    k("s_add_u32 s14, s14, 1")
    k(f"s_cmp_gt_u32 s14, {TIMEOUT}")
    k(f"s_cbranch_scc1 {tag}_R")
    k("s_sleep 2")
    k(f"s_branch {tag}_P")
    k.label(f"{tag}_R")

def poll_new(k, tag, vaddr, mask, vtmp, waitall=True):
    def setmask():
        if mask == "lo32":
            k("s_mov_b32 exec_lo, -1"); k("s_mov_b32 exec_hi, 0")
        else:
            k(f"s_mov_b64 exec, {mask}")
    k("s_mov_b32 s14, 0")
    setmask()
    k("s_waitcnt vmcnt(0)")
    k(f"buffer_load_dword v226, v{vaddr}, s[56:59], 0 offen sc1")
    k.label(f"{tag}_P")
    k(f"buffer_load_dword v227, v{vaddr}, s[56:59], 0 offen sc1")
    k("s_waitcnt vmcnt(1)")
    k(f"v_cmp_ne_u32 vcc, s{NONCE}, v226")
    k("s_cmp_eq_u64 vcc, 0")
    k(f"s_cbranch_scc1 {tag}_R")
    k(f"buffer_load_dword v226, v{vaddr}, s[56:59], 0 offen sc1")
    k("s_waitcnt vmcnt(1)")
    k(f"v_cmp_ne_u32 vcc, s{NONCE}, v227")
    k("s_cmp_eq_u64 vcc, 0")
    k(f"s_cbranch_scc1 {tag}_R")
    k("s_add_u32 s14, s14, 1")
    k(f"s_cmp_gt_u32 s14, {TIMEOUT}")
    k(f"s_cbranch_scc0 {tag}_P")
    k.label(f"{tag}_R")
    k("s_mov_b64 exec, -1")

def poll(k, *a, **kw): return (poll_old if OLDPOLL else poll_new)(k, *a, **kw)

def flag_srd(k): wsrd(k, 56, 7 * 256 * 128, WS_FLG)

def poll_range(k, tag, base, first_sgpr_expr, n, v=20):
    flag_srd(k)
    first_sgpr_expr()
    k(f"v_and_b32 v{v}, 63, v0")
    k(f"v_add_u32 v{v}, s9, v{v}")
    k(f"v_lshlrev_b32 v{v}, 7, v{v}")
    if base: k(f"v_add_u32 v{v}, {base}, v{v}")
    poll(k, tag, v, "-1" if n == 64 else ("lo32" if n == 32 else hex((1 << n) - 1)), v + 1)

def poll_all(k, tag, base, v=20):
    flag_srd(k)
    k(f"v_and_b32 v{v}, 63, v0")
    k(f"v_lshlrev_b32 v{v}, 7, v{v}")
    k(f"v_add_u32 v{v}, {base}, v{v}")
    for q in range(1, 4): k(f"v_add_u32 v{v+q}, {q * 64 * 128}, v{v}")
    k("s_mov_b32 s14, 0")
    k.label(f"{tag}_P")
    for q in range(4): k(f"buffer_load_dword v{v+4+q}, v{v+q}, s[56:59], 0 offen sc1")
    k("s_waitcnt vmcnt(0)")
    k(f"v_cmp_ne_u32 vcc, s{NONCE}, v{v+4}")
    for q in range(1, 4):
        k(f"v_cmp_ne_u32 s[62:63], s{NONCE}, v{v+4+q}")
        k("s_or_b64 vcc, vcc, s[62:63]")
    k("s_cmp_eq_u64 vcc, 0")
    k(f"s_cbranch_scc1 {tag}_R")
    k("s_add_u32 s14, s14, 1")
    k(f"s_cmp_gt_u32 s14, {TIMEOUT}")
    k(f"s_cbranch_scc1 {tag}_R")
    k("s_sleep 2")
    k(f"s_branch {tag}_P")
    k.label(f"{tag}_R")

def check_all_issue(k, base, v):
    flag_srd(k)
    k(f"v_and_b32 v{v}, 63, v0")
    k(f"v_lshlrev_b32 v{v}, 7, v{v}")
    k(f"v_add_u32 v{v}, {base}, v{v}")
    for q in range(1, 4): k(f"v_add_u32 v{v+q}, {q * 64 * 128}, v{v}")
    for q in range(4): k(f"buffer_load_dword v{v+4+q}, v{v+q}, s[56:59], 0 offen sc1")
def check_all_finish(k, tag, base, v):
    k(f"v_cmp_ne_u32 vcc, s{NONCE}, v{v+4}")
    for q in range(1, 4):
        k(f"v_cmp_ne_u32 s[62:63], s{NONCE}, v{v+4+q}")
        k("s_or_b64 vcc, vcc, s[62:63]")
    k("s_cmp_eq_u64 vcc, 0")
    k(f"s_cbranch_scc1 {tag}_OK")
    poll_all(k, tag, base, v)
    k.label(f"{tag}_OK")

def set_flag(k, base, idx_sgpr, v=20):
    flag_srd(k)
    k(f"s_lshl_b32 s9, s{idx_sgpr}, 7")
    k(f"s_add_u32 s9, s9, {base}")
    k(f"v_mov_b32 v{v}, s9")
    k(f"v_mov_b32 v{v+1}, s{NONCE}")
    k("s_mov_b64 exec, 1")
    k(f"buffer_store_dword v{v+1}, v{v}, s[56:59], 0 offen sc1")
    k("s_mov_b64 exec, -1")

LDIAG = [25, 26, 27]
class Loader:
    def __init__(self, k, nst, nslots, dmaA, dmaB, nA, nB):
        self.k, self.nst, self.ns, self.dmaA, self.dmaB, self.nA, self.nB = k, nst, nslots, dmaA, dmaB, nA, nB
        self.ops = []
    def A(self, st): self.dmaA(st); self.ops += [st] * self.nA
    def B(self, st): self.dmaB(st); self.ops += [st] * self.nB
    def extra(self, n): self.ops += ["x"] * n
    def drained(self): self.ops = ["done"] if False else []
    def wait(self, st):
        idx = [i for i, t in enumerate(self.ops) if t == st]
        n = len(self.ops) - 1 - max(idx) if idx else len(self.ops)
        self.k(f"s_waitcnt vmcnt({min(63, n)})")
    def preloadB(self):
        for st in range(min(self.ns - 1, self.nst)): self.B(st)
    def run(self, after_barrier=None, tail=None, prefetch=None):
        k = self.k; up = min(self.ns - 1, self.nst)
        if prefetch is not None and APF2:
            self.A(0)
            self.extra(prefetch())
            self.wait(0)
            k("s_barrier")
            k("s_waitcnt vmcnt(0)")
            if os.environ.get("LDIAG"): mark(k, LDIAG.pop(0))
            for st in range(1, up): self.A(st)
        else:
            for st in range(up): self.A(st)
            self.wait(0)
            k("s_barrier")
        issued = up
        for s in range(self.nst - 1):
            self.wait(s + 1)
            k("s_barrier")
            if issued < self.nst:
                self.A(issued); self.B(issued); issued += 1
                if issued == self.nst and tail: self.extra(tail())
            if after_barrier and (s + 1) in after_barrier: self.extra(after_barrier[s + 1]())

def a_dma_rows32(k, VA, row0_sgpr, lda, koff_sgpr=None):
    k("v_lshrrev_b32 v2, 3, v1")
    k("v_lshrrev_b32 v3, 4, v1")
    k("v_and_b32 v4, 7, v1")
    k(f"v_add_u32 v2, s{row0_sgpr}, v2")
    k(f"s_mov_b32 s10, {lda}")
    k("v_mul_lo_u32 v2, s10, v2")
    if koff_sgpr is not None: k(f"v_add_u32 v2, s{koff_sgpr}, v2")
    for i in range(4):
        k(f"v_xor_b32 v5, {(i&1)*4}, v3")
        k("v_xor_b32 v5, v5, v4")
        k("v_lshlrev_b32 v5, 4, v5")
        k(f"v_add_u32 v5, {i*8*lda - i*1024}, v5")
        k(f"v_add_u32 v{VA+i}, v2, v5")

def phase01(k):
    X, C0, W0, AC, T = 8, 32, 40, 64, 72
    k("s_and_b32 s13, s2, 3             ; kq")
    k("s_lshr_b32 s14, s2, 2")
    k("v_lshrrev_b32 v5, 3, v0")
    k("v_and_b32 v6, 7, v0")
    k("s_mul_i32 s15, s13, 160")
    k("v_add_u32 v7, s15, v5")
    k("v_mul_u32_u24 v5, 7680, v7")
    k("v_lshlrev_b32 v6, 4, v6")
    k("s_lshl_b32 s15, s14, 7")
    k("v_add3_u32 v5, v5, v6, s15")
    k("v_lshrrev_b32 v3, 4, v0")
    k("s_lshl_b32 s15, s2, 3")
    k("v_add_u32 v3, s15, v3")
    k("v_mul_u32_u24 v3, 1280, v3")
    k("v_and_b32 v4, 15, v0")
    k("v_lshl_add_u32 v3, v4, 4, v3")
    k("v_lshlrev_b32 v6, 1, v7")
    k("v_mov_b32 v28, 0x7ffffff0")
    k("v_cmp_gt_u32 vcc, 256, v0")
    k("v_cndmask_b32 v29, v28, v5, vcc")
    k("v_cndmask_b32 v30, v28, v6, vcc")
    k("s_waitcnt lgkmcnt(0)")
    srd(k, 36, WMODP, 640 * 7680)
    srd(k, 32, CP, 1280)
    srd(k, 16, XP, S * D * 2)
    def gemv_loads():
        k(f"buffer_load_dwordx4 v[{W0}:{W0+3}], v5, s[36:39], 0 offen")
        k(f"s_mov_b32 s15, {64*7680}")
        k(f"buffer_load_dwordx4 v[{W0+4}:{W0+7}], v5, s[36:39], s15 offen")
        k(f"s_mov_b32 s15, {128*7680}")
        k(f"buffer_load_dwordx4 v[{W0+8}:{W0+11}], v29, s[36:39], s15 offen")
        k(f"buffer_load_ushort v{C0}, v6, s[32:35], 0 offen")
        k(f"buffer_load_ushort v{C0+1}, v6, s[32:35], 0 offen offset:128")
        k(f"buffer_load_ushort v{C0+2}, v30, s[32:35], 0 offen offset:256")
    def x_loads(tag):
        k("s_cmp_ge_u32 s8, 2")
        k(f"s_cbranch_scc1 {tag}")
        for i in range(5):
            k(f"buffer_load_dwordx4 v[{X+4*i}:{X+4*i+3}], v3, s[16:19], 0 offen offset:{256*i}")
        k.label(tag)
    k("s_cmp_ge_u32 s2, 80")
    k("s_cbranch_scc1 P0_LATE")
    gemv_loads()
    x_loads("P0_NOX1")
    k("s_branch P0_ISSUED")
    k.label("P0_LATE")
    x_loads("P0_NOX2")
    k("s_waitcnt vmcnt(0)")
    k("s_barrier")
    k("s_cmp_ge_u32 s14, 60")
    k("s_cbranch_scc1 P0_ISSUED")
    gemv_loads()
    k.label("P0_ISSUED")
    wsrd(k, 20, 4 * 3840 * 4, WS_MODP)
    wsrd(k, 24, S * D * 2, WS_H)
    for r in range(176, 228): k(f"v_mov_b32 v{r}, 0x7ffffff0")
    k("s_cmp_lg_u32 s8, 3")
    k("s_cbranch_scc1 P0_NOCTL")
    k(f"v_lshlrev_b32 v11, 2, v1")
    k(f"v_add_u32 v11, {CTL}, v11")
    k("v_mov_b32 v12, 0")
    k("ds_write_b32 v11, v12")
    k.label("P0_NOCTL")
    k("s_cmp_ge_u32 s8, 4")
    k("s_cbranch_scc1 P0_NOSETUP")
    phase2_setup(k)
    k.label("P0_NOSETUP")
    k("s_cmp_ge_u32 s14, 60")
    k("s_cbranch_scc1 P0_BA")
    k("s_cmp_ge_u32 s2, 80")
    k("s_cbranch_scc1 P0_W0")
    k("s_cmp_ge_u32 s8, 2")
    k("s_cbranch_scc1 P0_W0")
    k("s_waitcnt vmcnt(5)")
    k("s_branch P0_W1")
    k.label("P0_W0")
    k("s_waitcnt vmcnt(0)")
    k.label("P0_W1")
    k("s_mov_b32 s15, 0xbfb8aa3b")
    for i in range(3): k(f"v_lshlrev_b32 v{C0+i}, 16, v{C0+i}")
    for i in range(3): k(f"v_mul_f32 v{T+i}, s15, v{C0+i}")
    for i in range(3): k(f"v_exp_f32 v{T+i}, v{T+i}")
    for i in range(3): k(f"v_add_f32 v{T+i}, 1.0, v{T+i}")
    for i in range(3): k(f"v_rcp_f32 v{T+i}, v{T+i}")
    for i in range(3): k(f"v_mul_f32 v{C0+i}, v{C0+i}, v{T+i}")
    for i in range(3): bf16_round_f32(k, C0 + i, C0 + i, T)
    for i in range(3):
        for j in range(4):
            k(f"v_lshlrev_b32 v{T}, 16, v{W0+4*i+j}")
            k(f"v_and_b32 v{T+1}, 0xffff0000, v{W0+4*i+j}")
            op = "v_mul_f32" if i == 0 else "v_fmac_f32"
            k(f"{op} v{AC+2*j}, v{C0+i}, v{T}")
            k(f"{op} v{AC+2*j+1}, v{C0+i}, v{T+1}")
    for j in range(8):
        k(f"v_add_f32_dpp v{AC+j}, v{AC+j}, v{AC+j} row_ror:8 row_mask:0xf bank_mask:0xf")
    k("v_lshrrev_b32 v5, 4, v0")
    k("v_lshlrev_b32 v5, 8, v5")
    k("v_and_b32 v6, 7, v0")
    k("v_lshl_add_u32 v5, v6, 5, v5")
    k(f"v_add_u32 v5, {SCR}, v5")
    k("v_and_b32 v6, 15, v0")
    k("v_cmp_gt_u32 vcc, 8, v6")
    k("s_and_saveexec_b64 s[34:35], vcc")
    k(f"ds_write_b128 v5, v[{AC}:{AC+3}]")
    k(f"ds_write_b128 v5, v[{AC+4}:{AC+7}] offset:16")
    k("s_mov_b64 exec, s[34:35]")
    k.label("P0_BA")
    k("s_waitcnt lgkmcnt(0)")
    k("s_barrier                        ; B_a")
    mark(k, 0)
    k("s_cmp_lt_u32 s8, 2")
    k("s_cbranch_scc1 P1_LNA")
    k("s_cmp_eq_u32 s8, 2")
    k("s_cbranch_scc1 P0_FINAL")
    k("s_cmp_eq_u32 s8, 3")
    k("s_cbranch_scc1 P0_ONES")
    k("s_branch P0_LOADERS")
    k.label("P0_FINAL")
    k("s_cmp_ge_u32 s14, 60")
    k("s_cbranch_scc1 P1_BA2")
    k("v_lshlrev_b32 v7, 2, v1")
    k(f"v_add_u32 v6, {SCR}, v7")
    for p in range(32): k(f"ds_read_b32 v{W0+p}, v6 offset:{256*p}")
    k("s_waitcnt lgkmcnt(0)")
    for st in (16, 8, 4, 2, 1):
        for p in range(st): k(f"v_add_f32 v{W0+p}, v{W0+p}, v{W0+p+st}")
    k("s_mul_i32 s15, s13, 15360")
    k("s_lshl_b32 s34, s14, 8")
    k("s_add_u32 s15, s15, s34")
    if os.environ.get("P0DIAG"): mark(k, 25)
    k(f"buffer_store_dword v{W0}, v7, s[20:23], s15 offen sc1")
    k("s_waitcnt vmcnt(0)")
    if os.environ.get("P0DIAG"): mark(k, 26)
    k("s_cmp_ge_u32 s14, 20")
    k("s_cbranch_scc1 P1_BA2")
    k("s_mov_b64 exec, 1")
    k("v_mov_b32 v5, 0")
    k("v_mov_b32 v6, 1")
    k(f"global_atomic_add v7, v5, v6, s[{DBGP}:{DBGP+1}] sc0 sc1")
    k("s_waitcnt vmcnt(0)")
    k("v_readfirstlane_b32 s15, v7")
    if os.environ.get("P0DIAG"):
        k("s_mov_b64 exec, -1"); mark(k, 27); k("s_mov_b64 exec, 1")
    k("s_cmp_lg_u32 s15, 79")
    k("s_cbranch_scc1 P0_NOFLAG")
    k("s_memrealtime s[34:35]")
    k("s_waitcnt lgkmcnt(0)")
    k("s_or_b32 s34, s34, 1")
    k("v_mov_b32 v6, s34")
    k(f"global_store_dword v5, v6, s[{DBGP}:{DBGP+1}] offset:128 sc1")
    k.label("P0_NOFLAG")
    k("s_mov_b64 exec, -1")
    k("s_branch P1_BA2")
    k.label("P0_ONES")
    wsrd(k, 32, 32 * KV_HEAD, WS_KV)
    k("s_lshl_b32 s13, s2, 5")
    k("v_add_u32 v5, s13, v1")
    k("v_lshrrev_b32 v6, 2, v5")
    k(f"v_mul_u32_u24 v6, {KV_TILE}, v6")
    k("v_and_b32 v7, 3, v5")
    k("v_mul_u32_u24 v7, 336, v7")
    k(f"v_add_u32 v6, {1280+320}, v6")
    k("v_add_u32 v6, v6, v7")
    for j in range(4): k(f"v_mov_b32 v{8+j}, 0x3f803f80")
    k("s_mov_b32 exec_hi, 0")
    k("buffer_store_dwordx4 v[8:11], v6, s[32:35], 0 offen sc1")
    wsrd(k, 36, 16 * 384 * 4, WS_UT)
    k("s_mul_i32 s13, s2, 96")
    k("v_lshlrev_b32 v5, 2, v1")
    k("v_mov_b32 v12, 0")
    k("s_mov_b32 exec_lo, 0xffffff")
    k("buffer_store_dword v12, v5, s[36:39], s13 offen sc1")
    k("s_mov_b64 exec, -1")
    k("s_waitcnt vmcnt(0)")
    k("s_branch P1_BA2")
    k.label("P1_LNA")
    k("s_barrier                        ; B_a2 (waves 0, 1)")
    k.label("P1_LN")
    E = 32
    k("s_waitcnt vmcnt(0)")
    for r in range(20):
        k(f"v_lshlrev_b32 v{E+2*r}, 16, v{X+r}")
        k(f"v_and_b32 v{E+2*r+1}, 0xffff0000, v{X+r}")
    k(f"v_add_f32 v5, v{E}, v{E+1}")
    k(f"v_add_f32 v6, v{E+2}, v{E+3}")
    for r in range(4, 40, 2):
        k(f"v_add_f32 v5, v5, v{E+r}")
        k(f"v_add_f32 v6, v6, v{E+r+1}")
    k("v_add_f32 v5, v5, v6")
    for rot in (1, 2, 4, 8):
        k(f"v_add_f32_dpp v5, v5, v5 row_ror:{rot} row_mask:0xf bank_mask:0xf")
    k(f"s_mov_b32 s13, {hex(f2u(1.0/640))}")
    k("v_mul_f32 v5, s13, v5")
    for r in range(40): k(f"v_sub_f32 v{E+r}, v{E+r}, v5")
    k(f"v_mul_f32 v6, v{E}, v{E}")
    k(f"v_mul_f32 v7, v{E+1}, v{E+1}")
    for r in range(2, 40, 2):
        k(f"v_fmac_f32 v6, v{E+r}, v{E+r}")
        k(f"v_fmac_f32 v7, v{E+r+1}, v{E+r+1}")
    k("v_add_f32 v6, v6, v7")
    for rot in (1, 2, 4, 8):
        k(f"v_add_f32_dpp v6, v6, v6 row_ror:{rot} row_mask:0xf bank_mask:0xf")
    k("v_mov_b32 v7, 0x3727c5ac")
    k("v_fmac_f32 v7, s13, v6")
    k("v_rsq_f32 v7, v7")
    k("s_nop 0")
    for r in range(40): k(f"v_mul_f32 v{E+r}, v{E+r}, v7")
    k("v_mov_b32 v5, 0")
    k("s_mov_b32 s14, 0")
    k.label("P1_POLL")
    k("s_mov_b64 exec, 1")
    k(f"global_load_dword v6, v5, s[{DBGP}:{DBGP+1}] offset:128 sc1")
    k("s_waitcnt vmcnt(0)")
    k(f"v_readfirstlane_b32 s{NONCE}, v6")
    k("s_mov_b64 exec, -1")
    k(f"s_cmp_lg_u32 s{NONCE}, 0")
    k("s_cbranch_scc1 P1_READY")
    k("s_add_u32 s14, s14, 1")
    k(f"s_cmp_gt_u32 s14, {TIMEOUT}")
    k("s_cbranch_scc1 P1_READY")
    k("s_sleep 4")
    k("s_branch P1_POLL")
    k.label("P1_READY")
    mark(k, 1)
    P = 80
    k("s_mul_i32 s15, s8, 2560")
    k("v_lshlrev_b32 v5, 4, v1")
    k("v_mov_b32 v8, 0x7ffffff0")
    k("v_cmp_gt_u32 vcc, 32, v1")
    k("v_add_u32 v6, s15, v5")
    k("v_add_u32 v9, 2048, v6")
    k("v_cndmask_b32 v9, v8, v9, vcc")
    for q in range(4):
        k(f"s_mov_b32 s34, {q*15360}")
        k(f"buffer_load_dwordx4 v[{P+12*q}:{P+12*q+3}], v6, s[20:23], s34 offen sc1")
        k(f"buffer_load_dwordx4 v[{P+12*q+4}:{P+12*q+7}], v6, s[20:23], s34 offen offset:1024 sc1")
        k(f"buffer_load_dwordx4 v[{P+12*q+8}:{P+12*q+11}], v9, s[20:23], s34 offen sc1")
    k(f"v_mov_b32 v10, {CTL}")
    k(f"v_mov_b32 v11, s{NONCE}")
    k("ds_write_b32 v10, v11")
    k("s_waitcnt vmcnt(0)")
    for r in range(12):
        k(f"v_add_f32 v{P+r}, v{P+r}, v{P+12+r}")
        k(f"v_add_f32 v{P+24+r}, v{P+24+r}, v{P+36+r}")
    for r in range(12): k(f"v_add_f32 v{P+r}, v{P+r}, v{P+24+r}")
    for r in range(12): bf16_round_f32(k, P + r, P + r, P + 12)
    k("s_cmp_eq_u32 s8, 0")
    k("s_cbranch_scc1 P1_NOONE")
    for r in range(12): k(f"v_add_f32 v{P+r}, 1.0, v{P+r}")
    for r in range(12): bf16_round_f32(k, P + r, P + r, P + 12)
    k.label("P1_NOONE")
    k("s_mul_i32 s15, s8, 2560")
    k("v_add_u32 v5, s15, v5")
    k(f"v_add_u32 v5, {SCR + 8192}, v5")
    k(f"ds_write_b128 v5, v[{P}:{P+3}]")
    k(f"ds_write_b128 v5, v[{P+4}:{P+7}] offset:1024")
    k("s_mov_b32 exec_hi, 0")
    k(f"ds_write_b128 v5, v[{P+8}:{P+11}] offset:2048")
    k("s_mov_b64 exec, -1")
    k("s_waitcnt lgkmcnt(0)")
    if os.environ.get("P0DIAG"): mark(k, 28)
    k("s_barrier")
    Gm, Sm = 96, 136
    k("v_and_b32 v4, 15, v0")
    k("v_lshlrev_b32 v4, 5, v4")
    k(f"v_add_u32 v4, {SCR + 8192}, v4")
    for i in range(5):
        for hh in range(2):
            k(f"ds_read_b128 v[{Sm+8*i+4*hh}:{Sm+8*i+4*hh+3}], v4 offset:{512*i + 16*hh}")
            k(f"ds_read_b128 v[{Gm+8*i+4*hh}:{Gm+8*i+4*hh+3}], v4 offset:{2560 + 512*i + 16*hh}")
    k("s_waitcnt lgkmcnt(0)")
    for r in range(40): k(f"v_fma_f32 v{E+r}, v{E+r}, v{Gm+r}, v{Sm+r}")
    for r in range(20): k(f"v_cvt_pk_bf16_f32 v{X+r}, v{E+2*r}, v{E+2*r+1}")
    for i in range(5):
        k(f"buffer_store_dwordx4 v[{X+4*i}:{X+4*i+3}], v3, s[24:27], 0 offen offset:{256*i} sc1")
    if os.environ.get("P0DIAG"): mark(k, 29)
    k("s_waitcnt vmcnt(0)")
    if os.environ.get("P0DIAG"): mark(k, 30)
    k("s_barrier")
    k("s_cmp_lg_u32 s8, 0")
    k("s_cbranch_scc1 P2_START")
    set_flag(k, FL_H, 2)
    k("s_branch P2_START")
    k.label("P1_BA2")
    k("s_barrier")
    k.label("P1_BB")
    k("s_barrier                        ; B_b")
    k(f"v_mov_b32 v10, {CTL}")
    k("ds_read_b32 v11, v10")
    k("s_waitcnt lgkmcnt(0)")
    k(f"v_readfirstlane_b32 s{NONCE}, v11")
    k("s_barrier                        ; B_c")
    k("s_branch P2_START")

def qkv_ids(k):
    k("s_and_b32 s3, s2, 7")
    k("s_lshr_b32 s13, s2, 3")
    k("s_and_b32 s14, s3, 3")
    k("s_lshl_b32 s14, s14, 2")
    k("s_and_b32 s15, s13, 3")
    k("s_add_u32 s11, s14, s15")
    k("s_lshr_b32 s14, s3, 2")
    k("s_lshl_b32 s14, s14, 3")
    k("s_lshr_b32 s15, s13, 2")
    k("s_add_u32 s12, s14, s15")

QNS = 4
def phase2_loader(k):
    k.label("P0_LOADERS")
    k("s_barrier                        ; B_a2")
    if not os.environ.get("NO_CODEPF"):
        k("s_cmp_lg_u32 s8, 7")
        k("s_cbranch_scc1 F_NOCPF")
        k("s_getpc_b64 s[34:35]")
        k.label("F_PC")
        k("s_lshr_b32 s9, s2, 3")
        k("s_mul_i32 s9, s9, 18")
        k("v_add_u32 v2, s9, v1")
        k("v_lshlrev_b32 v2, 7, v2")
        k("v_cmp_gt_u32 vcc, 18, v1")
        k("s_mov_b32 s10, F_END-F_PC")
        k("v_cmp_gt_u32 s[36:37], s10, v2")
        k("s_and_b64 vcc, vcc, s[36:37]")
        k("s_and_saveexec_b64 s[36:37], vcc")
        k("s_cbranch_execz F_CPFX")
        k("global_load_dword v231, v2, s[34:35]")
        k.label("F_CPFX")
        k("s_mov_b64 exec, s[36:37]")
        k.label("F_NOCPF")
    if not os.environ.get("NO_TLB"):
        k("s_cmp_lg_u32 s8, 6")
        k("s_cbranch_scc1 F_NOTLB")
        wsrd(k, 16, WS_END, 0)
        srd(k, 20, OUTP, S * D * 2)
        k("s_lshr_b32 s9, s2, 3")
        k("s_lshl_b32 s9, s9, 4")
        k("v_add_u32 v2, s9, v1")
        k("v_lshlrev_b32 v2, 16, v2")
        k("s_mov_b64 exec, 0xffff")
        k("buffer_load_dword v229, v2, s[16:19], 0 offen")
        k("s_mov_b64 exec, -1")
        k("s_lshr_b32 s9, s2, 3")
        k("v_mov_b32 v2, s9")
        k("v_lshlrev_b32 v2, 17, v2")
        k("s_mov_b64 exec, 1")
        k("buffer_load_dword v228, v2, s[20:23], 0 offen")
        k("s_mov_b64 exec, -1")
        k.label("F_NOTLB")
    qkv_ids(k)
    VA, VB = 8, 12
    k("s_lshl_b32 s9, s11, 7")
    k("s_lshl_b32 s10, s31, 5")
    k("s_add_u32 s9, s9, s10")
    a_dma_rows32(k, VA, 9, 1280)
    k("v_lshrrev_b32 v2, 4, v1")
    k("v_bfe_u32 v3, v1, 2, 2")
    k("v_xor_b32 v3, v3, v2")
    k("v_lshlrev_b32 v3, 6, v3")
    k("v_and_b32 v4, 3, v1")
    k("v_lshl_add_u32 v3, v4, 4, v3")
    k("s_lshl_b32 s9, s31, 4")
    k("v_add_u32 v2, s9, v2")
    k("v_mul_u32_u24 v2, 3840, v2")
    k("s_lshl_b32 s9, s12, 8")
    k("v_add3_u32 v2, v2, v3, s9")
    for i in range(4):
        k(f"v_add_u32 v{VB+i}, {i*(4*3840-1024)}, v2")
    k("s_lshl_b32 s13, s31, 12")
    wsrd(k, 16, S * D * 2, WS_H)
    srd(k, 20, WQKVP, 640 * 3840)
    def dmaA(st):
        k(f"s_add_u32 m0, s13, {(st % QNS)*32768}")
        k(f"s_mov_b32 s14, {st*128}")
        for i in range(4):
            k(f"buffer_load_dwordx4 v{VA+i}, s[16:19], s14 offen offset:{i*1024} sc1 lds")
    def dmaB(st):
        k(f"s_add_u32 m0, s13, {(st % QNS)*32768 + 16384}")
        k(f"s_mov_b32 s14, {st*64*3840}")
        for i in range(4):
            k(f"buffer_load_dwordx4 v{VB+i}, s[20:23], s14 offen offset:{i*1024} lds")
    L = Loader(k, 10, QNS, dmaA, dmaB, 4, 4)
    k("s_cmp_ge_u32 s12, 15")
    k("s_cbranch_scc1 P2L_NOTILE")
    L.preloadB()
    if not os.environ.get("NO_WPF"):
        k("s_and_b32 s9, s11, 3")
        k("s_mul_i32 s9, s9, 224")
        k("s_mul_i32 s10, s31, 56")
        k("s_add_u32 s9, s9, s10")
        k("v_add_u32 v16, s9, v1")
        k("v_lshrrev_b32 v17, 1, v16")
        k("v_add_u32 v17, 192, v17")
        k("v_mul_u32_u24 v17, 3840, v17")
        k("v_and_b32 v16, 1, v16")
        k("v_lshl_add_u32 v17, v16, 7, v17")
        k("s_lshl_b32 s9, s12, 8")
        k("v_add_u32 v17, s9, v17")
        k("v_cmp_gt_u32 vcc, 56, v1")
        k("v_mov_b32 v16, 0x7ffffff0")
        k("v_cndmask_b32 v17, v16, v17, vcc")
        k("buffer_load_dword v231, v17, s[20:23], 0 offen")
    k.label("P2L_NOTILE")
    phase2_tables(k)
    k("s_barrier                        ; B_b")
    k(f"v_mov_b32 v16, {CTL}")
    k("ds_read_b32 v17, v16")
    k("s_waitcnt lgkmcnt(0)")
    k(f"v_readfirstlane_b32 s{NONCE}, v17")
    k("s_barrier                        ; B_c")
    k("s_cmp_ge_u32 s12, 15")
    k("s_cbranch_scc1 P2_SPARE")
    k("s_cmp_lg_u32 s8, 4")
    k("s_cbranch_scc1 P2L_GO")
    poll_range(k, "P2L_H", FL_H, lambda: k("s_lshl_b32 s9, s11, 4"), 16)
    k.label("P2L_GO")
    k("s_barrier                        ; B_d")
    mark(k, 2)
    L.run(prefetch=apf_loader(k, WS_H, S * D * 2, lambda: k("s_lshl_b32 s9, s11, 7"), 1280, 7, 1, 9, lambda: k("s_and_b32 s9, s12, 7"), 144, 17, 229))
    mark(k, 20)
    k("s_branch P3_START")

def last_arriver_flag(k, tag, lds_word, last, base, idx_sgpr, v=20):
    k(f"v_mov_b32 v{v}, {lds_word}")
    k(f"v_mov_b32 v{v+1}, 1")
    k("s_mov_b64 exec, 1")
    k(f"ds_add_rtn_u32 v{v+2}, v{v}, v{v+1}")
    k("s_waitcnt lgkmcnt(0)")
    k(f"v_readfirstlane_b32 s9, v{v+2}")
    k("s_mov_b64 exec, -1")
    k(f"s_cmp_lg_u32 s9, {last}")
    k(f"s_cbranch_scc1 {tag}_NL")
    set_flag(k, base, idx_sgpr, v)
    k.label(f"{tag}_NL")

def phase2_spare(k):
    k.label("P2_SPARE")
    k("s_cmp_lg_u32 s8, 4")
    k("s_cbranch_scc1 P3_START")
    k("s_cmp_ge_u32 s11, 4")
    k("s_cbranch_scc1 P2S_FLAG")
    poll_all(k, "P2S_ALLH", FL_H, 20)
    k("s_add_u32 s9, s11, 2")
    k("s_mul_i32 s9, s9, 2560")
    wsrd(k, 16, 4 * 3840 * 4, WS_MODP)
    wsrd(k, 20, 6 * 640 * 4, WS_MODV)
    for i in range(3):
        k(f"v_add_u32 v2, {64*i}, v1")
        k(f"v_lshlrev_b32 v{3+i}, 4, v2")
        if i == 2:
            k("v_cmp_gt_u32 vcc, 160, v2")
            k("v_mov_b32 v6, 0x7ffffff0")
            k(f"v_cndmask_b32 v{3+i}, v6, v{3+i}, vcc")
        for q in range(4):
            k(f"s_add_u32 s10, s9, {q*15360}")
            k(f"buffer_load_dwordx4 v[{8+16*i+4*q}:{11+16*i+4*q}], v{3+i}, s[16:19], s10 offen sc1")
    k("s_waitcnt vmcnt(0)")
    for i in range(3):
        B = 8 + 16 * i
        for r in range(4):
            k(f"v_add_f32 v{B+r}, v{B+r}, v{B+4+r}")
            k(f"v_add_f32 v{B+8+r}, v{B+8+r}, v{B+12+r}")
        for r in range(4): k(f"v_add_f32 v{B+r}, v{B+r}, v{B+8+r}")
        for r in range(4): bf16_round_f32(k, B + r, B + r, 60)
    k("s_cmp_lg_u32 s11, 2")
    k("s_cbranch_scc1 P2S_NOONE")
    for i in range(3):
        B = 8 + 16 * i
        for r in range(4): k(f"v_add_f32 v{B+r}, 1.0, v{B+r}")
        for r in range(4): bf16_round_f32(k, B + r, B + r, 60)
    k.label("P2S_NOONE")
    for i in range(3):
        k(f"buffer_store_dwordx4 v[{8+16*i}:{11+16*i}], v{3+i}, s[20:23], s9 offen sc1")
    k("s_waitcnt vmcnt(0)")
    set_flag(k, FL_M, 11)
    k.label("P2S_FLAG")
    k("s_branch P3_START")

QA = dict(AF=40, BF=48, ACC=80, RA=212, RB=220, EA=176, GA=192)
def phase2_setup(k):
    RA, RB, EA, GA = QA["RA"], QA["RB"], QA["EA"], QA["GA"]
    k.label("P2_SETUP")
    qkv_ids(k)
    k("s_cmp_ge_u32 s12, 15")
    k("s_cbranch_scc1 P2_SETUP_END")
    k("v_and_b32 v55, 31, v1")
    k("v_lshrrev_b32 v54, 5, v1")
    k("v_bfe_u32 v52, v55, 1, 3")
    k("v_lshlrev_b32 v55, 7, v55")
    k("s_lshl_b32 s10, s8, 12")
    k("v_add_u32 v55, s10, v55")
    for ks in range(4):
        k(f"v_add_u32 v53, {2*ks}, v54")
        k("v_xor_b32 v53, v53, v52")
        k(f"v_lshl_add_u32 v{RA+ks}, v53, 4, v55")
        k(f"v_add_u32 v{RA+4+ks}, 65536, v{RA+ks}")
    k("v_lshrrev_b32 v55, 5, v1")
    k("v_bfe_u32 v54, v1, 2, 2")
    k("v_lshl_add_u32 v55, v55, 3, v54")
    k("v_lshlrev_b32 v55, 8, v55")
    k("v_bfe_u32 v52, v1, 4, 1")
    k("v_lshl_add_u32 v55, v52, 5, v55")
    k("v_and_b32 v52, 3, v1")
    k("v_lshl_add_u32 v55, v52, 3, v55")
    k("v_add_u32 v55, 16384, v55")
    for nt in range(4):
        k(f"v_xor_b32 v52, {nt}, v54")
        k(f"v_lshl_add_u32 v{RB+nt}, v52, 6, v55")
        k(f"v_add_u32 v{RB+4+nt}, 65536, v{RB+nt}")
    k("s_cmp_ge_u32 s12, 10")
    k("s_cbranch_scc1 P2S_V")
    k("s_cmp_ge_u32 s12, 5")
    k("s_cbranch_scc1 P2S_K")
    k(f"s_mov_b32 s16, {64*1280}")
    k("s_movk_i32 s17, 1280")
    k("s_lshl_b32 s10, s12, 5")
    k(f"s_mov_b32 s41, {hex(f2u(1.4426950408889634 / (20 ** 0.5)))}")
    k("s_branch P2S_QK")
    k.label("P2S_K")
    k(f"s_mov_b32 s16, {KV_HEAD}")
    k(f"s_movk_i32 s17, {KV_TILE}")
    k("s_sub_u32 s10, s12, 5")
    k("s_lshl_b32 s10, s10, 5")
    k("s_mov_b32 s41, 1.0")
    k.label("P2S_QK")
    k("s_lshl_b32 s42, s11, 2")
    k("s_add_u32 s42, s42, s8")
    k("s_mul_i32 s42, s42, s17")
    k("s_lshl_b32 s43, s8, 14")
    k("s_add_u32 s43, s43, 65536")
    k("s_branch P2_SETUP_END")
    k.label("P2S_V")
    k("s_lshl_b32 s42, s11, 2")
    k("s_add_u32 s42, s42, s8")
    k(f"s_mul_i32 s42, s42, {KV_TILE}")
    k("s_add_u32 s42, s42, 1280")
    k.label("P2_SETUP_END")
    k("s_lshr_b32 s14, s2, 2")
    k("s_and_b32 s13, s2, 3")

TBL = 144384
def phase2_tables(k):
    k("s_cmp_ge_u32 s12, 15")
    k("s_cbranch_scc1 P2T_END")
    k("v_lshlrev_b32 v30, 4, v1")
    k(f"v_add_u32 v30, {TBL}, v30        ; lane*16")
    k("s_cmp_ge_u32 s12, 10")
    k("s_cbranch_scc1 P2T_V")
    k("s_cmp_ge_u32 s12, 5")
    k("s_cselect_b32 s10, 5, 0")
    k(f"s_cselect_b32 s44, {KV_HEAD}, 0")
    k(f"s_cselect_b32 s45, 0, {64*1280}")
    k("s_or_b32 s44, s44, s45")
    k("s_sub_u32 s10, s12, s10")
    k("s_lshl_b32 s10, s10, 5")
    k(f"s_mul_hi_u32 s35, s10, {(1<<32)//5+1}")
    k("v_and_b32 v25, 31, v1")
    k("v_lshrrev_b32 v24, 5, v1")
    k("v_add_u32 v24, s10, v24")
    k("v_lshlrev_b32 v26, 4, v25")
    k("v_lshlrev_b32 v27, 3, v25")
    k("v_add_u32 v27, 1024, v27")
    for n in range(4):
        k("s_lshl_b32 s9, s31, 3")
        k(f"s_add_u32 s9, s9, {2*n}")
        k("v_add_u32 v18, s9, v24")
        k("v_mul_u32_u24 v19, 205, v18")
        k("v_lshrrev_b32 v19, 10, v19")
        k("v_mad_i32_i24 v20, v19, -5, v18")
        k("v_lshrrev_b32 v21, 1, v20")
        k("v_lshl_add_u32 v21, v21, 9, v26")
        k("v_and_b32 v22, 1, v20")
        k("v_lshl_add_u32 v21, v22, 3, v21")
        k("v_cmp_eq_u32 vcc, 4, v20")
        k("v_subrev_u32 v19, s35, v19")
        k("v_cndmask_b32 v21, v21, v27, vcc")
        k("v_mul_u32_u24 v19, 1280, v19")
        k(f"v_add_u32 v{32+n}, v21, v19")
    k("s_lshl_b32 s9, s31, 10")
    k("v_add_u32 v31, s9, v30")
    k("ds_write_b128 v31, v[32:35]")
    for n in range(5):
        k("s_mul_i32 s9, s31, 5")
        k(f"s_add_u32 s9, s9, {n}")
        k("s_lshl_b32 s14, s9, 6")
        k("v_add_u32 v18, s14, v1")
        k("v_mul_u32_u24 v19, 52429, v18")
        k("v_lshrrev_b32 v19, 23, v19          ; hh")
        k("v_mul_u32_u24 v20, 160, v19")
        k("v_sub_u32 v20, v18, v20             ; w")
        k("v_lshrrev_b32 v21, 6, v20")
        k("v_lshlrev_b32 v21, 1, v21")
        k("v_and_b32 v22, 1, v20")
        k("v_add_u32 v21, v21, v22")
        k("v_min_u32 v21, 4, v21")
        k("v_add_u32 v19, s35, v19             ; head")
        k("v_mad_u32_u24 v21, v19, 5, v21")
        k("v_subrev_u32 v21, s10, v21")
        k("v_cmp_gt_u32 vcc, 32, v21")
        k("v_mul_lo_u32 v19, s44, v19")
        k("v_lshl_add_u32 v19, v20, 3, v19")
        k("v_mov_b32 v22, 0x7ffffff0")
        k("v_cndmask_b32 v19, v22, v19, vcc")
        k("s_add_u32 s9, s9, 16")
        k("s_lshr_b32 s14, s9, 2")
        k("s_lshl_b32 s14, s14, 10")
        k("s_and_b32 s9, s9, 3")
        k("s_lshl_b32 s9, s9, 2")
        k("s_add_u32 s9, s9, s14")
        k("v_add_u32 v31, s9, v30")
        k("ds_write_b32 v31, v19")
    k("s_branch P2T_END")
    k.label("P2T_V")
    k("v_and_b32 v25, 31, v1")
    k("v_lshrrev_b32 v24, 5, v1")
    k("v_mul_u32_u24 v24, 336, v24")
    k("s_sub_u32 s10, s12, 10")
    k("s_lshl_b32 s10, s10, 7")
    k("s_lshl_b32 s9, s31, 5")
    k("s_add_u32 s10, s10, s9")
    k("v_add_u32 v18, s10, v25")
    k("v_mul_u32_u24 v19, 3277, v18")
    k("v_lshrrev_b32 v19, 16, v19")
    k("v_mul_u32_u24 v20, 20, v19")
    k("v_sub_u32 v20, v18, v20")
    k(f"s_mov_b32 s10, {KV_HEAD}")
    k("v_mul_lo_u32 v19, s10, v19")
    k("v_lshlrev_b32 v20, 4, v20")
    k("v_add3_u32 v19, v19, v20, v24")
    k("s_lshl_b32 s9, s31, 2")
    k("v_add_u32 v31, s9, v30")
    k("ds_write_b32 v31, v19")
    k.label("P2T_END")
    k("s_waitcnt lgkmcnt(0)")

def phase2_compute(k):
    AF, BF, ACC, RA, RB, EA, GA = (QA[x] for x in ("AF", "BF", "ACC", "RA", "RB", "EA", "GA"))
    k.label("P2_START")
    k("s_cmp_ge_u32 s12, 15")
    k("s_cbranch_scc1 P3_START")
    def reads(step):
        st, ks = divmod(step, 4); slot = st % QNS; sb = step & 1
        bs, off = slot >> 1, (slot & 1) * 32768
        a = f"ds_read_b128 v[{AF+4*sb}:{AF+4*sb+3}], v{RA+4*bs+ks} offset:{off}"
        out = []
        for nt in range(4):
            d = BF + (sb * 4 + nt) * 4
            g = [f"ds_read_b64_tr_b16 v[{d+2*j}:{d+2*j+1}], v{RB+4*bs+nt} offset:{off + (16*ks+4*j)*256}" for j in range(2)]
            out.append(([a] if nt == 0 else []) + g)
        return out
    def mf(swap):
        def f(step, nt):
            sb = step & 1; a = AF + 4 * sb; b = BF + (sb * 4 + nt) * 4; d = ACC + 16 * nt
            c = "0" if step == 0 else None
            return [mfma32(d, a, b, c) if swap else mfma32(d, b, a, c)]
        return f
    k("v_lshlrev_b32 v2, 4, v1")
    k(f"v_add_u32 v2, {TBL}, v2")
    for g in range(9): k(f"ds_read_b128 v[{EA+4*g}:{EA+4*g+3}], v2 offset:{1024*g}")
    k("s_waitcnt lgkmcnt(0)")
    k("s_cmp_ge_u32 s12, 10")
    k("s_cbranch_scc1 P2_V")
    for r in range(16): k(f"v_add_u32 v{EA+r}, s43, v{EA+r}")
    k("s_cmp_ge_u32 s12, 5")
    k("s_cbranch_scc1 P2_K")
    wsrd(k, 24, 32 * 64 * 1280, WS_Q)
    k("s_branch P2_QK")
    k.label("P2_K")
    wsrd(k, 24, 32 * KV_HEAD, WS_KV)
    k.label("P2_QK")
    k("s_barrier                        ; B_d")
    def qapf():
        if APF: apf_rows(k, WS_H, S * D * 2, lambda: k("s_lshl_b32 s9, s11, 7"), 1280, 7, 0, 10, lambda: k("s_and_b32 s9, s12, 7"), 160, 28, 229)
    qapf()
    compute_loop(k, 10, 4, reads, mf(False), 0, stamp=False)
    mark(k, 3)
    k("v_mov_b32 v2, s41")
    k("v_mov_b32 v3, s41")
    for nt in range(4):
        for j in range(4):
            a_ = ACC + 16 * nt + 4 * j
            t = 28 + 2 * (j % 4)
            k(f"v_pk_mul_f32 v[{a_}:{a_+1}], v[{a_}:{a_+1}], v[2:3]")
            k(f"v_pk_mul_f32 v[{a_+2}:{a_+3}], v[{a_+2}:{a_+3}], v[2:3]")
            k(f"v_cvt_pk_bf16_f32 v{t}, v{a_}, v{a_+1}")
            k(f"v_cvt_pk_bf16_f32 v{t+1}, v{a_+2}, v{a_+3}")
            k(f"ds_write_b64 v{EA+4*nt+j}, v[{t}:{t+1}]")
    k("v_lshlrev_b32 v2, 3, v1")
    k("v_add_u32 v2, s43, v2")
    k("s_waitcnt lgkmcnt(0)")
    for i in range(20):
        k(f"ds_read_b64 v[{ACC+2*i}:{ACC+2*i+1}], v2 offset:{512*i}")
        if i >= 9:
            k("s_waitcnt lgkmcnt(9)")
            k(f"buffer_store_dwordx2 v[{ACC+2*(i-9)}:{ACC+2*(i-9)+1}], v{GA+i-9}, s[24:27], s42 offen sc1")
    for i in range(11, 20):
        k(f"s_waitcnt lgkmcnt({19-i})")
        k(f"buffer_store_dwordx2 v[{ACC+2*i}:{ACC+2*i+1}], v{GA+i}, s[24:27], s42 offen sc1")
    k("s_branch P2_DONE")
    k.label("P2_V")
    wsrd(k, 24, 32 * KV_HEAD, WS_KV)
    k("s_barrier                        ; B_d")
    qapf()
    compute_loop(k, 10, 4, reads, mf(True), 0, stamp=False)
    mark(k, 3)
    for nt in range(4):
        for m in range(2):
            a_ = ACC + 16 * nt + 8 * m
            t = 28 + 4 * m
            for q in range(4):
                k(f"v_cvt_pk_bf16_f32 v{t+q}, v{a_+2*q}, v{a_+2*q+1}")
            k(f"buffer_store_dwordx4 v[{t}:{t+3}], v{EA+nt}, s[24:27], s42 offen offset:{672*m} sc1")
    k.label("P2_DONE")
    k("s_waitcnt vmcnt(0)")
    k("s_lshl_b32 s34, s12, 4")
    k("s_add_u32 s34, s34, s11")
    mark(k, 19)
    last_arriver_flag(k, "P2C", CTL + 4, 3, FL_QKV, 34)
    k("s_branch P3_START")

def phase3(k):
    from k_attn2 import STAGE, Q1, Q2, KA, KB, VF, SS, PP, OO, AK, AKB, AV, VDMA
    vm = VM(k)
    FLAG = CTL + 12
    k.label("P3_START")
    k("s_and_b32 s11, s2, 7")
    k("s_lshl_b32 s11, s11, 2")
    k("s_bfe_u32 s12, s2, 0x20003")
    k("s_add_u32 s11, s11, s12          ; head")
    k("s_lshr_b32 s12, s2, 5")
    k(f"s_mul_i32 s9, s11, {KV_HEAD}")
    k("s_lshl_b32 s13, s8, 10")
    k("s_add_u32 s9, s9, s13")
    k("v_lshlrev_b32 v4, 4, v1")
    k(f"v_add_u32 v{VDMA}, s9, v4")
    k("v_and_b32 v2, 31, v1")
    k("s_lshl_b32 s9, s12, 3")
    k("s_add_u32 s9, s9, s8")
    k("s_mul_i32 s9, s9, 1280")
    k("s_mul_i32 s10, s11, 81920")
    k("s_add_u32 s9, s9, s10")
    k("v_add_u32 v10, s9, v4")
    k("v_lshlrev_b32 v5, 3, v2")
    k("v_add_u32 v5, s9, v5")
    k("v_lshrrev_b32 v3, 5, v1          ; half")
    for sl in range(3):
        k(f"v_lshlrev_b32 v{AK+sl}, 4, v1")
        if sl: k(f"v_add_u32 v{AK+sl}, {sl*STAGE}, v{AK+sl}")
        k(f"v_lshlrev_b32 v{AKB+sl}, 3, v2")
        k(f"v_add_u32 v{AKB+sl}, {sl*STAGE + 1024}, v{AKB+sl}")
        k(f"v_mul_u32_u24 v{AV+sl}, 336, v3")
        k(f"v_lshl_add_u32 v{AV+sl}, v2, 4, v{AV+sl}")
        k(f"v_add_u32 v{AV+sl}, {sl*STAGE + 1280}, v{AV+sl}")
    k("s_lshl_b32 s9, s12, 8")
    k("s_lshl_b32 s10, s8, 5")
    k("s_add_u32 s9, s9, s10")
    k("v_add_u32 v4, s9, v2             ; token")
    k("v_mul_u32_u24 v4, 1280, v4")
    k("s_mul_i32 s9, s11, 40")
    k("v_add_u32 v4, s9, v4")
    k("v_lshl_add_u32 v11, v3, 3, v4")
    k("s_lshl_b32 s9, s12, 8")
    k("s_lshl_b32 s10, s8, 5")
    k("s_add_u32 s9, s9, s10")
    k("s_mul_i32 s10, s11, 40")
    for i in range(3):
        k(f"v_add_u32 v6, {64*i}, v1")
        k("v_mul_u32_u24 v7, 13108, v6")
        k("v_lshrrev_b32 v7, 16, v7")
        k("v_mul_u32_u24 v8, 5, v7")
        k("v_sub_u32 v8, v6, v8")
        k("v_add_u32 v7, s9, v7")
        k("v_mul_u32_u24 v7, 1280, v7")
        k("v_lshl_add_u32 v7, v8, 3, v7")
        k(f"v_add_u32 v{128+i}, s10, v7")
    k("v_cmp_gt_u32 vcc, 32, v1")
    k("v_mov_b32 v6, 0x7ffffff0")
    k("v_cndmask_b32 v130, v6, v130, vcc")
    for r in range(16): k(f"v_mov_b32 v{OO+r}, 0")
    wsrd(k, 16, 32 * KV_HEAD, WS_KV)
    wsrd(k, 20, S * D * 2, WS_Q)
    wsrd(k, 24, S * D * 2, WS_O)
    k("s_cmp_lg_u32 s8, 4")
    k("s_cbranch_scc1 P3_GO")
    k("s_mul_i32 s9, s11, 20")
    k("s_lshr_b32 s10, s9, 7")
    k("s_add_u32 s9, s9, 19")
    k("s_lshr_b32 s9, s9, 7")
    k("v_bfe_u32 v20, v1, 4, 1")
    k("s_sub_u32 s15, s9, s10")
    k("v_mul_u32_u24 v20, s15, v20")
    k("v_add_u32 v20, s10, v20")
    k("v_lshrrev_b32 v21, 5, v1")
    k("v_mul_u32_u24 v21, 5, v21")
    k("v_add3_u32 v20, v20, v21, 5")
    k("v_and_b32 v21, 15, v1")
    k("v_lshl_add_u32 v20, v20, 4, v21")
    k("v_lshlrev_b32 v20, 7, v20")
    k(f"v_add_u32 v20, {FL_QKV}, v20")
    flag_srd(k)
    poll(k, "P3_KV", 20, "-1", 21)
    k("v_bfe_u32 v20, v1, 1, 1")
    k("v_mul_u32_u24 v20, s15, v20")
    k("v_add_u32 v20, s10, v20")
    k("v_and_b32 v21, 1, v1")
    k("s_lshl_b32 s9, s12, 1")
    k("v_add_u32 v21, s9, v21")
    k("v_lshl_add_u32 v20, v20, 4, v21")
    k("v_lshlrev_b32 v20, 7, v20")
    k(f"v_add_u32 v20, {FL_QKV}, v20")
    poll(k, "P3_Q", 20, "0xf", 21)
    mark(k, 24)
    k.label("P3_GO")
    k("s_barrier                        ; B_g")
    mark(k, 4)
    def dma_item(st, slot, i):
        L = [f"s_add_u32 m0, s13, {slot*STAGE + 8192*i}", f"s_mov_b32 s14, {st*STAGE + 8192*i}"]
        return L, f"buffer_load_dwordx4 v{VDMA}, s[16:19], s14 offen sc1 lds"
    def emit_dma(st, slot, i):
        L, ld = dma_item(st, slot, i)
        for l in L: k(l)
        vm.issue(ld, ("kv", st, i))
    def emit_stage_first(st, slot):
        L, ld = dma_item(st, slot, 5)
        lab = f"ATT_NP_{st}"
        k("s_cmp_lg_u32 s8, 0")
        k(f"s_cbranch_scc1 {lab}")
        for l in L: k(l)
        k(ld)
        k.label(lab)
    vm.issue(f"buffer_load_dwordx4 v[{Q1}:{Q1+3}], v10, s[20:23], 0 offen sc1", "q")
    vm.issue(f"buffer_load_dwordx2 v[{Q2}:{Q2+1}], v5, s[20:23], 0 offen offset:1024 sc1", "q")
    emit_stage_first(0, 0)
    for i in range(5): emit_dma(0, 0, i)
    vm.wait({"q", ("kv", 0, 0), ("kv", 0, 1)})
    k("v_cmp_gt_u32 vcc, 32, v1")
    k(f"v_cndmask_b32 v{Q2}, 0, v{Q2}, vcc")
    k(f"v_cndmask_b32 v{Q2+1}, 0, v{Q2+1}, vcc")
    k("s_barrier")
    mark(k, 5)
    def rdK(t):
        st, tt = divmod(t, 16); sl = st % 3; b = t & 1
        return [f"ds_read_b128 v[{KA+4*b}:{KA+4*b+3}], v{AK+sl} offset:{tt*KV_TILE}",
                f"ds_read_b64 v[{KB+2*b}:{KB+2*b+1}], v{AKB+sl} offset:{tt*KV_TILE}"]
    def rdV(t):
        st, tt = divmod(t, 16); sl = st % 3; b = t & 1
        return [f"ds_read_b128 v[{VF+8*b+4*m}:{VF+8*b+4*m+3}], v{AV+sl} offset:{tt*KV_TILE + 672*m}" for m in range(2)]
    def M1(t): b = t & 1; return m16(SS + 16 * b, KA + 4 * b, Q1, "0")
    def M2(t): b = t & 1; d = SS + 16 * b; return m8(d, KB + 2 * b, Q2, f"v[{d}:{d+15}]")
    def PV(t, m): b = t & 1; return m16(OO, VF + 8 * b + 4 * m, PP + 4 * m, f"v[{OO}:{OO+15}]")
    NTL = 64
    bg = {}
    def put(t, f): bg.setdefault(t, []).append(f)
    def stage_items(st, t0, step):
        slot = st % 3
        put(t0, lambda: emit_stage_first(st, slot))
        for i in range(5): put(t0 + step * i, (lambda i=i: emit_dma(st, slot, i)))
    stage_items(1, 0, 2); stage_items(2, 14, 1); stage_items(3, 30, 2)
    def wd_addr():
        k("s_lshl_b32 s9, s2, 9")
        k("v_add_u32 v118, s9, v0")
        k("v_lshlrev_b32 v119, 4, v118")
        srd(k, 36, WDP_, 1536 * 1280)
        vm.issue("buffer_load_dwordx4 v[120:123], v119, s[36:39], 0 offen", "wd")
    def wd_dst():
        divconst(k, 124, 118, 80, 9, 131072)
        k("v_mul_u32_u24 v125, 80, v124")
        k("v_sub_u32 v125, v118, v125")
        divconst(k, 126, 125, 10, 9, 80)
        k("v_mul_u32_u24 v127, 10, v126")
        k("v_sub_u32 v125, v125, v127")
        k("v_and_b32 v127, 0xfffffff3, v124")
        k("v_bfe_u32 v119, v124, 2, 1")
        k("v_lshl_or_b32 v127, v119, 3, v127")
        k("v_bfe_u32 v119, v124, 3, 1")
        k("v_lshl_or_b32 v127, v119, 2, v127")
        k(f"s_mov_b32 s9, {1536*160}")
        k("v_mul_lo_u32 v126, s9, v126")
        k("v_mul_u32_u24 v127, 160, v127")
        k("v_lshlrev_b32 v125, 4, v125")
        k("v_add3_u32 v119, v126, v125, v127")
        k("s_mov_b32 s9, 122880")
        k("v_cmp_gt_u32 vcc, s9, v118")
        k("v_mov_b32 v124, 0x7ffffff0")
        k("v_cndmask_b32 v119, v124, v119, vcc")
        wsrd(k, 36, 8 * 1536 * 160, WS_WDP)
    put(15, wd_addr); put(20, wd_dst)
    put(31, lambda: vm.issue("buffer_store_dwordx4 v[120:123], v119, s[36:39], 0 offen sc1", "wdst"))
    WD_, SG, UU, TT, TM, WOD = 136, 152, 160, 168, 176, 184
    def only_job_waves(tag, f):
        def g():
            k("s_cmp_ge_u32 s8, 4")
            k(f"s_cbranch_scc1 P3_J{tag}")
            f()
            k.label(f"P3_J{tag}")
        return g
    def job_issue():
        k(f"s_mul_hi_u32 s55, s2, {(1<<32)//5+1}")
        k("s_mul_i32 s54, s55, 5")
        k("s_sub_u32 s54, s2, s54")
        k("s_lshl_b32 s54, s54, 7")
        k("s_cmp_ge_u32 s55, 24")
        k("s_cselect_b32 s52, 1, 0          ; matrix")
        k("s_mul_i32 s53, s52, 24")
        k("s_sub_u32 s53, s55, s53")
        k("v_and_b32 v188, 7, v0")
        k("v_lshrrev_b32 v189, 3, v0")
        k("v_add_u32 v189, s54, v189")
        k("v_mul_u32_u24 v190, 3072, v189")
        k("s_lshl_b32 s55, s53, 7")
        k("v_lshl_add_u32 v190, v188, 4, v190")
        k("v_add_u32 v190, s55, v190")
        k("s_cmp_ge_u32 s2, 240")
        k("s_cselect_b32 s55, 0, 1966080")
        k("s_cmp_eq_u32 s52, 0")
        k(f"s_cselect_b32 s44, s{WGP}, s{WUP_}")
        k(f"s_cselect_b32 s45, s{WGP+1}, s{WUP_+1}")
        k("s_mov_b32 s46, s55")
        k("s_mov_b32 s47, 0x00020000")
        for i in range(4):
            k(f"s_mov_b32 s55, {i*32*3072}")
            k(f"buffer_load_dwordx4 v[{WD_+4*i}:{WD_+4*i+3}], v190, s[44:47], s55 offen")
        k("s_lshl_b32 s55, s2, 8")
        k("v_add_u32 v191, s55, v0")
        k("v_lshlrev_b32 v190, 4, v191")
        srd(k, 48, WOP_, 640 * 1280)
        k(f"buffer_load_dwordx4 v[{WOD}:{WOD+3}], v190, s[48:51], 0 offen")
        flag_srd(k)
        k("v_and_b32 v192, 3, v1")
        k("v_lshlrev_b32 v192, 7, v192")
        k(f"v_add_u32 v192, {FL_M}, v192")
        k("buffer_load_dword v193, v192, s[56:59], 0 offen sc1")
    def job_mod():
        k(f"v_cmp_ne_u32 vcc, s{NONCE}, v193")
        k("s_cmp_eq_u64 vcc, 0")
        k("s_cbranch_scc1 P3_MOK")
        poll(k, "P3_M", 192, "-1", 193)
        k.label("P3_MOK")
        wsrd(k, 48, 6 * 640 * 4, WS_MODV)
        k("v_lshlrev_b32 v190, 2, v189")
        for i in range(4):
            k("s_movk_i32 s55, 7680")
            k(f"buffer_load_dword v{SG+2*i}, v190, s[48:51], s55 offen offset:{128*i} sc1")
            k("s_movk_i32 s55, 10240")
            k(f"buffer_load_dword v{SG+2*i+1}, v190, s[48:51], s55 offen offset:{128*i} sc1")
    def job_dst():
        k("s_waitcnt vmcnt(0)")
        for r in range(16): k(f"v_mov_b32 v{UU+r}, 0")
        k("s_lshl_b32 s55, s53, 3")
        k("v_add_u32 v190, s55, v188")
        k("v_mul_u32_u24 v194, 5462, v190")
        k("v_lshrrev_b32 v194, 16, v194     ; ct")
        k("v_mul_u32_u24 v195, 12, v194")
        k("v_sub_u32 v195, v190, v195       ; cc")
        k("s_mov_b32 s55, 245760")
        k("v_mul_lo_u32 v196, s55, v194")
        k("s_mul_i32 s55, s52, 12288")
        k("v_lshl_add_u32 v196, v195, 4, v196")
        k("v_add_u32 v196, s55, v196")
        k("s_cmp_ge_u32 s2, 240")
        k(f"s_cselect_b32 s55, 0, {16 * 10 * 24576}")
        k(f"s_add_u32 s44, s{WSP}, {WS_WUP}")
        k(f"s_addc_u32 s45, s{WSP+1}, 0")
        k("s_mov_b32 s46, s55")
        k("s_mov_b32 s47, 0x00020000")
    def job_chunk(i):
        def f():
            d = WD_ + 4 * i
            for q in range(4):
                k(f"v_lshlrev_b32 v{TM+2*q}, 16, v{d+q}")
                k(f"v_and_b32 v{TM+2*q+1}, 0xffff0000, v{d+q}")
            for q in range(8): k(f"v_fmac_f32 v{TT+q}, v{SG+2*i}, v{TM+q}")
            for q in range(8): k(f"v_mul_f32 v{TM+q}, v{SG+2*i+1}, v{TM+q}")
            for q in range(8): k(f"v_add_f32 v{UU+q}, v{UU+q}, v{TM+q}")
            for q in range(4): k(f"v_cvt_pk_bf16_f32 v{d+q}, v{TM+2*q}, v{TM+2*q+1}")
            k(f"v_add_u32 v190, {32*i}, v189")
            k("v_lshrrev_b32 v197, 6, v190")
            k("v_mul_u32_u24 v190, 192, v190")
            k("v_mul_u32_u24 v197, 12288, v197")
            k("v_add3_u32 v190, v190, v197, v196")
            k(f"buffer_store_dwordx4 v[{d}:{d+3}], v190, s[44:47], 0 offen sc1")
        return f
    def job_reduce():
        def rscatter(B):
            for e in range(4):
                k(f"v_permlane32_swap_b32 v{B+e}, v{B+e+4}")
                k(f"v_add_f32 v{B+e}, v{B+e}, v{B+e+4}")
            for e in range(2):
                k(f"v_permlane16_swap_b32 v{B+e}, v{B+e+2}")
                k(f"v_add_f32 v{B+e}, v{B+e}, v{B+e+2}")
            k(f"v_add_f32_dpp v{B}, v{B}, v{B} row_ror:8 row_mask:0xf bank_mask:0xf")
            k(f"v_add_f32_dpp v{B+1}, v{B+1}, v{B+1} row_ror:8 row_mask:0xf bank_mask:0xf")
            k(f"v_cndmask_b32 v{B}, v{B}, v{B+1}, vcc")
        k("v_and_b32 v190, 8, v1")
        k("v_cmp_ne_u32 vcc, 0, v190")
        rscatter(UU); rscatter(TT)
        k("v_mul_u32_u24 v190, 384, v194")
        k("v_lshl_add_u32 v190, v195, 3, v190")
        k("v_lshrrev_b32 v197, 3, v1")
        k("v_add_u32 v190, v190, v197")
        k("s_mul_i32 s55, s52, 96")
        k("v_add_u32 v190, s55, v190")
        k("v_lshlrev_b32 v190, 2, v190")
        k("s_cmp_ge_u32 s2, 240")
        k(f"s_cselect_b32 s55, 0, {16 * 384 * 4}")
        k(f"s_add_u32 s44, s{WSP}, {WS_UT}")
        k(f"s_addc_u32 s45, s{WSP+1}, 0")
        k("s_mov_b32 s46, s55")
        k("s_mov_b32 s47, 0x00020000")
        k(f"buffer_atomic_add_f32 v{UU}, v190, s[44:47], 0 offen")
        k(f"buffer_atomic_add_f32 v{TT}, v190, s[44:47], 0 offen offset:768")
    def job_wo():
        divconst(k, 190, 191, 80, 55, 65536)
        k("v_mul_u32_u24 v197, 80, v190")
        k("v_sub_u32 v197, v191, v197")
        divconst(k, 198, 197, 10, 55, 80)
        k("v_mul_u32_u24 v194, 10, v198")
        k("v_sub_u32 v197, v197, v194")
        k("v_and_b32 v194, 0xfffffff3, v190")
        k("v_bfe_u32 v195, v190, 2, 1")
        k("v_lshl_or_b32 v194, v195, 3, v194")
        k("v_bfe_u32 v195, v190, 3, 1")
        k("v_lshl_or_b32 v194, v195, 2, v194")
        k(f"s_mov_b32 s55, {640*160}")
        k("v_mul_lo_u32 v198, s55, v198")
        k("v_mul_u32_u24 v194, 160, v194")
        k("v_lshlrev_b32 v197, 4, v197")
        k("v_add3_u32 v198, v198, v197, v194")
        k("s_mov_b32 s55, 51200")
        k("v_cmp_gt_u32 vcc, s55, v191")
        k("v_mov_b32 v194, 0x7ffffff0")
        k("v_cndmask_b32 v198, v194, v198, vcc")
        wsrd(k, 48, 8 * 640 * 160, WS_WOP)
        k(f"buffer_store_dwordx4 v[{WOD}:{WOD+3}], v198, s[48:51], 0 offen sc1")
    def job_flag():
        k("s_cmp_lg_u32 s8, 0")
        k("s_cbranch_scc1 P3_NOTF")
        set_flag(k, FL_T, 2, 188)
        k.label("P3_NOTF")
    put(5, only_job_waves("a", job_issue)); put(14, only_job_waves("b", job_mod)); put(24, only_job_waves("c", job_dst))
    for i in range(4): put(25 + i, only_job_waves(f"d{i}", job_chunk(i)))
    put(29, only_job_waves("e", job_reduce)); put(31, only_job_waves("f", job_wo))
    put(47, job_flag)
    def only_wave(w, tag, f):
        def g():
            k(f"s_cmp_lg_u32 s8, {w}")
            k(f"s_cbranch_scc1 P3_W{tag}")
            f()
            k.label(f"P3_W{tag}")
        return g
    put(55, only_wave(1, "ta", lambda: check_all_issue(k, FL_T, 132)))
    def tfin():
        k("s_waitcnt vmcnt(0)")
        check_all_finish(k, "P3_TALL", FL_T, 132)
    put(61, only_wave(1, "tb", tfin))
    def pf_lines(off, nbytes, base_fn, per, vtag):
        def f():
            wsrd(k, 40, nbytes, off)
            base_fn()
            k("s_lshr_b32 s10, s2, 3")
            k(f"s_mul_i32 s10, s10, {per}")
            k("s_add_u32 s9, s9, s10")
            k("v_add_u32 v118, s9, v0")
            k("v_lshlrev_b32 v118, 7, v118")
            k(f"v_cmp_gt_u32 vcc, {per}, v0")
            k("v_mov_b32 v124, 0x7ffffff0")
            k("v_cndmask_b32 v118, v124, v118, vcc")
            vm.issue(f"buffer_load_dword v{vtag}, v118, s[40:43], 0 offen", "pf")
        return f
    if not os.environ.get("NO_PRETOUCH"):
        def pretouch():
            wsrd(k, 40, WS_X1 + S * D * 2 - WS_O, WS_O)
            k("s_mul_i32 s9, s2, 160")
            k("v_add_u32 v118, s9, v0")
            k("v_lshlrev_b32 v118, 7, v118")
            k("v_cmp_gt_u32 vcc, 160, v0")
            k("v_mov_b32 v124, 0x7ffffff0")
            k("v_cndmask_b32 v118, v124, v118, vcc")
            vm.issue("buffer_load_dword v229, v118, s[40:43], 0 offen", "pf")
        put(35, pretouch)
    if not os.environ.get("NO_WPF"):
        put(49, pf_lines(WS_WOP, 8 * 640 * 160, lambda: k("s_mov_b32 s9, 0"), 200, 231))
        def upbase():
            k("s_bfe_u32 s9, s2, 0x20001")
            k("s_mul_i32 s9, s9, 7680")
        put(53, pf_lines(WS_WUP, 16 * 10 * 24576, upbase, 240, 230))
    SEQ = "W2 M1 RKa RKb e0 e1 e2 c0 e3 P1 RV0 RV1 e4 c1 e5 e6 M2 c2 e7 e8 c3 e9 e10 WV P0 BG c4 e11 e12 c5 e13 e14 e15 c6 c7"
    for r in rdK(0) + rdK(1) + rdV(0): k(r)
    k("s_waitcnt lgkmcnt(4)")
    k(M1(0)); k(M2(0))
    for t in range(NTL):
        s = SS + 16 * (t & 1)
        st, tt = divmod(t, 16)
        if t == 4:
            vm.wait({("kv", 0, i) for i in range(5)})
            k("s_barrier")
        if tt == 14 and st + 1 < 4:
            k("s_waitcnt vmcnt(0)")
            k("s_barrier")
        have_next = t + 1 < NTL
        rk = rdK(t + 2) if t + 2 < NTL else []
        rv = rdV(t + 1) if have_next else []
        nrd = len(rk) + len(rv)
        for tok in SEQ.split():
            if tok[0] == "e": i = int(tok[1:]); k(f"v_exp_f32 v{s+i}, v{s+i}")
            elif tok[0] == "c": q = int(tok[1:]); k(f"v_cvt_pk_bf16_f32 v{PP+q}, v{s+2*q}, v{s+2*q+1}")
            elif tok == "W2":
                if have_next: k("s_waitcnt lgkmcnt(2)")
            elif tok == "M1":
                if have_next: k(M1(t + 1))
            elif tok == "M2":
                if have_next: k(M2(t + 1))
            elif tok == "RKa":
                if rk: k(rk[0])
            elif tok == "RKb":
                if rk: k(rk[1])
            elif tok == "RV0":
                if rv: k(rv[0])
            elif tok == "RV1":
                if rv: k(rv[1])
            elif tok == "WV": k(f"s_waitcnt lgkmcnt({nrd})")
            elif tok == "BG":
                for f in bg.get(t, []): f()
            elif tok == "P0": k(PV(t, 0))
            elif tok == "P1":
                if t > 0: k(PV(t - 1, 1))
    k(PV(NTL - 1, 1))
    mark(k, 6)
    def finish(check):
        k(f"v_mov_b32 v2, v{OO+8}")
        k(f"v_mov_b32 v3, v{OO+8}")
        k("v_permlane32_swap_b32 v2, v3")
        if check:
            k("s_mov_b32 s9, 0x21800000         ; 2^-60")
            k("s_mov_b32 s10, 0x5d800000        ; 2^60")
            k("v_cmp_le_f32 vcc, s9, v3")
            k("v_cmp_ge_f32 s[28:29], s10, v3")
            k("s_and_b64 s[28:29], s[28:29], vcc")
            k("s_movk_i32 s9, 0x207")
            for r in range(8):
                k(f"v_cmp_class_f32 vcc, v{OO+r}, s9")
                k("s_andn2_b64 s[28:29], s[28:29], vcc")
            k("s_mov_b32 s34, -1")
            k("s_mov_b32 s35, 0")
            for r in range(8, 12):
                k(f"v_cmp_class_f32 vcc, v{OO+r}, s9")
                k("s_and_b64 vcc, vcc, s[34:35]")
                k("s_andn2_b64 s[28:29], s[28:29], vcc")
            k("s_cmp_eq_u64 s[28:29], -1")
            k("s_cbranch_scc1 ATT_OK")
            k("v_mov_b32 v2, 1")
            k(f"v_mov_b32 v5, {FLAG}")
            k("ds_write_b32 v5, v2")
            k.label("ATT_OK")
            k("s_waitcnt lgkmcnt(0)")
            k("s_barrier")
            k(f"v_mov_b32 v5, {FLAG}")
            k("ds_read_b32 v2, v5")
            k("s_waitcnt lgkmcnt(0)")
            k("v_readfirstlane_b32 s9, v2")
            k("s_cmp_lg_u32 s9, 0")
            k("s_cbranch_scc1 ATT_SLOW")
        k("v_rcp_f32 v3, v3")
        for r in range(12): k(f"v_mul_f32 v{OO+r}, v{OO+r}, v3")
        for q in range(6): k(f"v_cvt_pk_bf16_f32 v{PP+q}, v{OO+2*q}, v{OO+2*q+1}")
        k("v_and_b32 v4, 31, v1")
        k("v_mul_u32_u24 v4, 40, v4")
        k("v_lshrrev_b32 v5, 5, v1")
        k("v_lshl_add_u32 v4, v5, 3, v4")
        k("s_lshl_b32 s9, s8, 11")
        k("v_add_u32 v4, s9, v4")
        k(f"ds_write_b64 v4, v[{PP}:{PP+1}]")
        k(f"ds_write_b64 v4, v[{PP+2}:{PP+3}] offset:16")
        k("s_mov_b32 exec_hi, 0")
        k(f"ds_write_b64 v4, v[{PP+4}:{PP+5}] offset:32")
        k("s_mov_b64 exec, -1")
        k("s_waitcnt lgkmcnt(0)")
        k("s_branch P4_STAGED")
    finish(True)
    k.label("ATT_SLOW")
    k("s_waitcnt vmcnt(0)")
    for r in range(16): k(f"v_mov_b32 v{OO+r}, 0")
    k("v_mov_b32 v2, 0xff7fffff")
    k("s_mov_b32 s15, 0")
    k.label("ATT_SLOW_STAGE")
    k("s_barrier")
    k(f"s_mul_i32 s10, s15, {STAGE}")
    for i in range(5):
        k(f"s_add_u32 m0, s13, {8192*i}")
        k(f"s_add_u32 s14, s10, {8192*i}")
        k(f"buffer_load_dwordx4 v{VDMA}, s[16:19], s14 offen sc1 lds")
    k("s_cmp_lg_u32 s8, 0")
    k("s_cbranch_scc1 ATT_SLOW_NP")
    k(f"s_add_u32 m0, s13, {8192*5}")
    k(f"s_add_u32 s14, s10, {8192*5}")
    k(f"buffer_load_dwordx4 v{VDMA}, s[16:19], s14 offen sc1 lds")
    k.label("ATT_SLOW_NP")
    k("s_waitcnt vmcnt(0)")
    k("s_barrier")
    k(f"v_mov_b32 v5, v{AK}")
    k(f"v_mov_b32 v6, v{AKB}")
    k(f"v_mov_b32 v7, v{AV}")
    k("s_mov_b32 s9, 0")
    k.label("ATT_SLOW_TILE")
    k(f"ds_read_b128 v[{KA}:{KA+3}], v5")
    k(f"ds_read_b64 v[{KB}:{KB+1}], v6")
    k(f"ds_read_b128 v[{VF}:{VF+3}], v7")
    k(f"ds_read_b128 v[{VF+4}:{VF+7}], v7 offset:672")
    k("s_waitcnt lgkmcnt(0)")
    k(m16(SS, KA, Q1, "0"))
    k(m8(SS, KB, Q2, f"v[{SS}:{SS+15}]"))
    k(f"v_add_u32 v5, {KV_TILE}, v5")
    k(f"v_add_u32 v6, {KV_TILE}, v6")
    k(f"v_add_u32 v7, {KV_TILE}, v7")
    k(f"v_max_f32 v108, v{SS}, v{SS+1}")
    for r in range(2, 16): k(f"v_max_f32 v108, v108, v{SS+r}")
    k("v_mov_b32 v109, v108")
    k("v_permlane32_swap_b32 v108, v109")
    k("v_max_f32 v108, v108, v109")
    k("v_max_f32 v108, v108, v2")
    k("v_sub_f32 v109, v2, v108")
    k("v_exp_f32 v109, v109")
    k("v_mov_b32 v2, v108")
    for r in range(16): k(f"v_sub_f32 v{SS+r}, v{SS+r}, v108")
    for r in range(16): k(f"v_exp_f32 v{SS+r}, v{SS+r}")
    for r in range(16): k(f"v_mul_f32 v{OO+r}, v{OO+r}, v109")
    for q in range(8): k(f"v_cvt_pk_bf16_f32 v{PP+q}, v{SS+2*q}, v{SS+2*q+1}")
    k(m16(OO, VF, PP, f"v[{OO}:{OO+15}]"))
    k(m16(OO, VF + 4, PP + 4, f"v[{OO}:{OO+15}]"))
    k("s_add_u32 s9, s9, 1")
    k("s_cmp_lt_u32 s9, 16")
    k("s_cbranch_scc1 ATT_SLOW_TILE")
    k("s_add_u32 s15, s15, 1")
    k("s_cmp_lt_u32 s15, 4")
    k("s_cbranch_scc1 ATT_SLOW_STAGE")
    k("s_barrier")
    finish(False)

def narrow_ids(k):
    k("s_and_b32 s3, s2, 7")
    k("s_lshr_b32 s13, s2, 3")
    k("s_lshl_b32 s14, s3, 2")
    k("s_and_b32 s15, s13, 3")
    k("s_add_u32 s11, s14, s15")
    k("s_lshr_b32 s12, s13, 2")
    k("s_and_b32 s28, s31, 1")
    k("s_lshr_b32 s29, s31, 1           ; k half")
    k("s_lshl_b32 s9, s11, 6")
    k("s_lshl_b32 s10, s28, 5")
    k("s_add_u32 s30, s9, s10")

RESL, GTL = 147456, 157696
def narrow_res_dma(k, resid_is_input, gate_idx):
    if resid_is_input: srd(k, 24, XP, S * D * 2)
    else: wsrd(k, 24, S * D * 2, WS_X1)
    wsrd(k, 36, 6 * 640 * 4, WS_MODV)
    k("v_and_b32 v16, 255, v0")
    k("s_lshl_b32 s9, s11, 6")
    k("s_mul_i32 s10, s12, 160")
    for i in range(3):
        k(f"v_add_u32 v17, {256*i}, v16")
        k("v_mul_u32_u24 v18, 6554, v17")
        k("v_lshrrev_b32 v18, 16, v18        ; row")
        k("v_mul_u32_u24 v19, 10, v18")
        k("v_sub_u32 v19, v17, v19           ; chunk")
        k("v_add_u32 v18, s9, v18")
        k("v_mul_u32_u24 v18, 1280, v18")
        k("v_lshl_add_u32 v18, v19, 4, v18")
        k("v_add_u32 v18, s10, v18")
        if i == 2:
            k("v_cmp_gt_u32 vcc, 640, v17")
            k("v_mov_b32 v19, 0x7ffffff0")
            k("v_cndmask_b32 v18, v19, v18, vcc")
        k("s_lshl_b32 s14, s31, 10")
        k(f"s_add_u32 m0, s14, {RESL + 4096*i}")
        if i == 2:
            k("s_cmp_ge_u32 s31, 2")
            k("s_cbranch_scc1 NRD_SKIP%d" % gate_idx)
        k("buffer_load_dwordx4 v18, s[24:27], 0 offen sc1 lds")
        if i == 2: k.label("NRD_SKIP%d" % gate_idx)
    k("s_cmp_lg_u32 s31, 3")
    k("s_cbranch_scc1 NRD_NG%d" % gate_idx)
    k("v_lshlrev_b32 v18, 4, v1")
    k("s_mul_i32 s14, s12, 320")
    k(f"s_add_u32 s14, s14, {gate_idx*2560}")
    k(f"s_mov_b32 m0, {GTL}")
    k("s_mov_b32 exec_lo, 0xfffff")
    k("s_mov_b32 exec_hi, 0")
    k("buffer_load_dwordx4 v18, s[36:39], s14 offen sc1 lds")
    k("s_mov_b64 exec, -1")
    k.label("NRD_NG%d" % gate_idx)

def narrow_loader_setup(k, Kdim, a_off, b_off):
    KH = Kdim // 2; NST = KH // 64; lda = Kdim * 2
    VA, VB, NS = 8, 12, 4
    k(f"s_mul_i32 s34, s29, {KH*2}")
    a_dma_rows32(k, VA, 30, lda, 34)
    k("v_lshlrev_b32 v2, 4, v1")
    k(f"s_mul_i32 s9, s12, {Kdim*160}")
    k(f"s_mul_i32 s10, s29, {KH*160}")
    k("s_add_u32 s9, s9, s10")
    k("s_mul_i32 s10, s28, 5120")
    k("s_add_u32 s9, s9, s10")
    k(f"v_add_u32 v{VB}, s9, v2")
    k(f"v_add_u32 v{VB+1}, 4096, v{VB}")
    k("s_lshl_b32 s13, s31, 12")
    k("s_mul_i32 s15, s29, 10240")
    k("s_mul_i32 s10, s28, 5120")
    k("s_add_u32 s15, s15, s10")
    wsrd(k, 16, S * Kdim * 2, a_off)
    wsrd(k, 20, 8 * Kdim * 160, b_off)
    def dmaA(st):
        k(f"s_add_u32 m0, s13, {(st % NS)*16384}")
        k(f"s_mov_b32 s14, {st*128}")
        for i in range(4):
            k(f"buffer_load_dwordx4 v{VA+i}, s[16:19], s14 offen offset:{i*1024} sc1 lds")
    def dmaB(st):
        slot = st % NS
        k(f"s_add_u32 m0, s15, {65536 + slot*20480}")
        k(f"s_mov_b32 s14, {st*10240}")
        for i in range(4):
            k(f"buffer_load_dwordx4 v{VB}, s[20:23], s14 offen offset:{i*1024} sc1 lds")
        k(f"s_add_u32 m0, s15, {65536 + slot*20480 + 4096}")
        k("s_nop 0")
        k(f"buffer_load_dwordx4 v{VB+1}, s[20:23], s14 offen sc1 lds")
    return Loader(k, NST, NS, dmaA, dmaB, 4, 5)

def narrow_compute(k, tag, Kdim, resid_is_input, gate_idx, final, pre_barrier):
    KH = Kdim // 2; NST = KH // 64; NS = 4
    RA, RB, AF, BF, ACC, RES, GT = 4, 6, 12, 28, 68, 108, 120
    k("v_and_b32 v2, 15, v1")
    k("v_lshrrev_b32 v3, 4, v1          ; g")
    k("v_lshrrev_b32 v10, 1, v2")
    k("v_lshlrev_b32 v2, 7, v2")
    k("s_lshl_b32 s13, s8, 12")
    k("v_add_u32 v2, s13, v2")
    for ks in range(2):
        k(f"v_add_u32 v11, {4*ks}, v3")
        k("v_xor_b32 v11, v11, v10")
        k(f"v_lshl_add_u32 v{RA+ks}, v11, 4, v2")
    k("v_lshrrev_b32 v2, 5, v1")
    k("v_lshlrev_b32 v2, 4, v2")
    k("v_bfe_u32 v10, v1, 4, 1")
    k("v_lshl_add_u32 v2, v10, 2, v2")
    k("v_bfe_u32 v10, v1, 2, 2")
    k("v_add_u32 v2, v2, v10")
    k("v_mul_u32_u24 v2, 160, v2")
    k("v_and_b32 v10, 3, v1")
    k("v_lshl_add_u32 v2, v10, 3, v2")
    k("s_mul_i32 s10, s29, 10240")
    k("s_add_u32 s10, s10, 65536")
    k(f"v_add_u32 v{RB}, s10, v2")
    k(f"v_add_u32 v{RB+1}, 40960, v{RB}")
    k("v_and_b32 v2, 15, v1")
    k("s_lshl_b32 s10, s29, 4")
    k("s_add_u32 s10, s10, s30")
    k("v_add_u32 v2, s10, v2")
    k("v_mul_u32_u24 v8, 1280, v2")
    k("s_mul_i32 s10, s12, 160")
    k("v_lshl_add_u32 v8, v3, 3, v8")
    k("v_add_u32 v8, s10, v8")
    k("s_mul_i32 s10, s12, 320")
    k("v_lshlrev_b32 v9, 4, v3")
    k("v_add_u32 v9, s10, v9")
    if final: srd(k, 32, OUTP, S * D * 2)
    else: wsrd(k, 32, S * D * 2, WS_X1)
    XL, XG = 144, 148
    k("s_mul_i32 s9, s8, 3072")
    k("s_add_u32 s9, s9, 24576")
    k("s_lshl_b32 s10, s29, 4")
    k("s_add_u32 s10, s10, s30")
    k("s_mul_i32 s40, s12, 160")
    for i in range(3):
        k(f"v_add_u32 v10, {64*i}, v1")
        k("v_mul_u32_u24 v11, 6554, v10")
        k("v_lshrrev_b32 v11, 16, v11        ; row")
        k("v_mul_u32_u24 v140, 10, v11")
        k("v_sub_u32 v140, v10, v140         ; chunk")
        k("v_lshlrev_b32 v140, 4, v140")
        k("v_mul_u32_u24 v141, 176, v11")
        k(f"v_add3_u32 v{XL+i}, v141, v140, s9")
        k("v_add_u32 v11, s10, v11")
        k("v_mul_u32_u24 v11, 1280, v11")
        k(f"v_add3_u32 v{XG+i}, v11, v140, s40")
    k("v_cmp_gt_u32 vcc, 32, v1")
    k("v_mov_b32 v10, 0x7ffffff0")
    k(f"v_cndmask_b32 v{XG+2}, v10, v{XG+2}, vcc")
    k("v_and_b32 v10, 15, v1")
    k("v_mul_u32_u24 v10, 176, v10")
    k("v_lshrrev_b32 v11, 4, v1")
    k("v_lshlrev_b32 v11, 3, v11")
    k("v_add3_u32 v147, v10, v11, s9")
    pre_barrier()
    if APF: apf_rows(k, WS_G if final else WS_O, S * Kdim * 2, lambda: k("s_lshl_b32 s9, s11, 6"), Kdim * 2, 6, 0, NST,
                     lambda: k("s_mov_b32 s9, s12"), 128 * NST // 8, 10, 229, khalf=KH * 2)
    def reads(step):
        st, ks = divmod(step, 2); slot = st % NS; sb = step & 1
        a = [f"ds_read_b128 v[{AF+(sb*2+mb)*4}:{AF+(sb*2+mb)*4+3}], v{RA+ks} offset:{slot*16384 + mb*2048}" for mb in range(2)]
        out = []
        for nt in range(5):
            d = BF + (sb * 5 + nt) * 4
            g = [f"ds_read_b64_tr_b16 v[{d+2*j}:{d+2*j+1}], v{RB+(slot>>1)} offset:{(slot&1)*20480 + (32*ks+8*j)*160 + nt*32}" for j in range(2)]
            out.append((a if nt == 0 else []) + g)
        return out
    def mf(step, nt):
        sb = step & 1
        return [mfma16(ACC + (nt * 2 + mb) * 4, BF + (sb * 5 + nt) * 4, AF + (sb * 2 + mb) * 4, "0" if step == 0 else None) for mb in range(2)]
    compute_loop(k, NST, 2, reads, mf, 0, stamp=False, hooks={-1: lambda: mark(k, 21 if final else 23)})
    mark(k, 9 if not final else 15)
    k("s_barrier")
    k("v_lshlrev_b32 v2, 4, v1")
    k("s_mul_i32 s9, s8, 5120")
    k("v_add_u32 v3, s9, v2")
    k("s_xor_b32 s10, s8, 2")
    k("s_mul_i32 s10, s10, 5120")
    k("v_add_u32 v4, s10, v2")
    k("s_cmp_eq_u32 s29, 0")
    k(f"s_cbranch_scc1 {tag}_KH0")
    for nt in range(5):
        d = ACC + (nt * 2 + 0) * 4
        k(f"ds_write_b128 v3, v[{d}:{d+3}] offset:{1024*nt}")
    for nt in range(5):
        for r in range(4): k(f"v_mov_b32 v{ACC+(nt*2)*4+r}, v{ACC+(nt*2+1)*4+r}")
    k(f"s_branch {tag}_JOIN")
    k.label(f"{tag}_KH0")
    for nt in range(5):
        d = ACC + (nt * 2 + 1) * 4
        k(f"ds_write_b128 v3, v[{d}:{d+3}] offset:{1024*nt}")
    k.label(f"{tag}_JOIN")
    k("s_waitcnt lgkmcnt(0)")
    k("s_barrier")
    for nt in range(5):
        k(f"ds_read_b128 v[{BF+4*nt}:{BF+4*nt+3}], v4 offset:{1024*nt}")
    k("v_and_b32 v2, 15, v1")
    k("s_lshl_b32 s10, s29, 4")
    k("s_lshl_b32 s9, s28, 5")
    k("s_add_u32 s10, s10, s9")
    k("v_add_u32 v2, s10, v2")
    k("v_mul_u32_u24 v2, 160, v2")
    k("v_lshrrev_b32 v3, 4, v1")
    k("v_lshl_add_u32 v2, v3, 3, v2")
    k(f"v_add_u32 v2, {RESL}, v2")
    k("v_lshlrev_b32 v3, 4, v3")
    k(f"v_add_u32 v3, {GTL}, v3")
    for nt in range(5):
        k(f"ds_read_b64 v[{RES+2*nt}:{RES+2*nt+1}], v2 offset:{32*nt}")
        k(f"ds_read_b128 v[{GT+4*nt}:{GT+4*nt+3}], v3 offset:{64*nt}")
    k("s_waitcnt lgkmcnt(0)")
    st_sc = "" if final else " sc1"
    for nt in range(5):
        d = ACC + nt * 8
        for r in range(4): k(f"v_add_f32 v{d+r}, v{d+r}, v{BF+4*nt+r}")
        k(f"v_lshlrev_b32 v12, 16, v{RES+2*nt}")
        k(f"v_and_b32 v13, 0xffff0000, v{RES+2*nt}")
        k(f"v_lshlrev_b32 v14, 16, v{RES+2*nt+1}")
        k(f"v_and_b32 v15, 0xffff0000, v{RES+2*nt+1}")
        for r in range(4): k(f"v_fmac_f32 v{12+r}, v{d+r}, v{GT+4*nt+r}")
        k(f"v_cvt_pk_bf16_f32 v{16+2*(nt%2)}, v12, v13")
        k(f"v_cvt_pk_bf16_f32 v{17+2*(nt%2)}, v14, v15")
        k(f"ds_write_b64 v147, v[{16+2*(nt%2)}:{17+2*(nt%2)}] offset:{32*nt}")
        if not final:
            t = 16 + 2 * (nt % 2)
            k(f"v_lshlrev_b32 v12, 16, v{t}")
            k(f"v_and_b32 v13, 0xffff0000, v{t}")
            k(f"v_lshlrev_b32 v14, 16, v{t+1}")
            k(f"v_and_b32 v15, 0xffff0000, v{t+1}")
            if nt == 0:
                k("v_add_f32 v20, v12, v13"); k("v_add_f32 v21, v14, v15")
                k("v_mul_f32 v22, v12, v12"); k("v_mul_f32 v23, v13, v13")
            else:
                k("v_add_f32 v20, v20, v12"); k("v_add_f32 v21, v21, v13")
                k("v_fmac_f32 v22, v12, v12"); k("v_fmac_f32 v23, v13, v13")
                k("v_add_f32 v20, v20, v14"); k("v_add_f32 v21, v21, v15")
            k("v_fmac_f32 v22, v14, v14"); k("v_fmac_f32 v23, v15, v15")
    k("s_waitcnt lgkmcnt(0)")
    for i in range(3): k(f"ds_read_b128 v[{BF+4*i}:{BF+4*i+3}], v{144+i}")
    for i in range(3):
        k(f"s_waitcnt lgkmcnt({2-i})")
        k(f"buffer_store_dwordx4 v[{BF+4*i}:{BF+4*i+3}], v{148+i}, s[32:35], 0 offen{st_sc}")
    if not final:
        k("v_add_f32 v20, v20, v21")
        k("v_add_f32 v21, v22, v23")
        for sw in ("v_permlane32_swap_b32", "v_permlane16_swap_b32"):
            k("v_mov_b32 v22, v20"); k("v_mov_b32 v23, v21")
            k(f"{sw} v20, v22"); k(f"{sw} v21, v23")
            k("v_add_f32 v20, v20, v22"); k("v_add_f32 v21, v21, v23")
        wsrd(k, 24, 2048 * 64, WS_STAT)
        k("v_and_b32 v2, 15, v1")
        k("s_lshl_b32 s10, s29, 4")
        k("s_add_u32 s10, s10, s30")
        k("v_add_u32 v2, s10, v2")
        k("v_lshlrev_b32 v2, 6, v2")
        k("s_lshl_b32 s10, s12, 3")
        k("s_mov_b64 exec, 0xffff")
        k("buffer_store_dwordx2 v[20:21], v2, s[24:27], s10 offen sc1")
        k("s_mov_b64 exec, -1")

def up_ids(k):
    k("s_and_b32 s3, s2, 7")
    k("s_lshr_b32 s13, s2, 3")
    k("s_and_b32 s14, s3, 1")
    k("s_lshl_b32 s14, s14, 3")
    k("s_and_b32 s15, s13, 7")
    k("s_add_u32 s11, s14, s15")
    k("s_lshr_b32 s14, s3, 1")
    k("s_lshl_b32 s14, s14, 2")
    k("s_lshr_b32 s15, s13, 3")
    k("s_add_u32 s12, s14, s15")

def up_loader_setup(k):
    VA, VB, NS = 8, 12, 4
    k("s_lshl_b32 s9, s11, 7")
    k("s_lshl_b32 s10, s31, 5")
    k("s_add_u32 s9, s9, s10")
    a_dma_rows32(k, VA, 9, 1280)
    k("v_lshlrev_b32 v2, 4, v1")
    k("s_mul_i32 s9, s31, 6144")
    k(f"s_mul_i32 s10, s12, {10*24576}")
    k("s_add_u32 s9, s9, s10")
    k(f"v_add_u32 v{VB}, s9, v2")
    k(f"v_add_u32 v{VB+1}, 4096, v{VB}")
    k("s_lshl_b32 s13, s31, 12")
    k("s_mul_i32 s15, s31, 6144")
    wsrd(k, 16, S * D * 2, WS_X1)
    wsrd(k, 20, 16 * 10 * 24576, WS_WUP)
    def dmaA(st):
        k(f"s_add_u32 m0, s13, {(st % NS)*16384}")
        k(f"s_mov_b32 s14, {st*128}")
        for i in range(4):
            k(f"buffer_load_dwordx4 v{VA+i}, s[16:19], s14 offen offset:{i*1024} sc1 lds")
    def dmaB(st):
        slot = st % NS
        k(f"s_add_u32 m0, s15, {65536 + slot*24576}")
        k(f"s_mov_b32 s14, {st*24576}")
        for i in range(4):
            k(f"buffer_load_dwordx4 v{VB}, s[20:23], s14 offen offset:{i*1024} sc1 lds")
        k(f"s_add_u32 m0, s15, {65536 + slot*24576 + 4096}")
        k("s_nop 0")
        for i in range(2):
            k(f"buffer_load_dwordx4 v{VB+1}, s[20:23], s14 offen offset:{i*1024} sc1 lds")
    return Loader(k, 10, NS, dmaA, dmaB, 4, 6)

def up_compute(k, pre_barrier):
    AF, BF, ACC, RA, RB, NS = 16, 24, 72, 4, 8, 4
    k("v_and_b32 v2, 31, v1")
    k("v_lshrrev_b32 v3, 5, v1")
    k("v_bfe_u32 v14, v2, 1, 3")
    k("v_lshlrev_b32 v2, 7, v2")
    k("s_lshl_b32 s10, s8, 12")
    k("v_add_u32 v2, s10, v2")
    for ks in range(4):
        k(f"v_add_u32 v15, {2*ks}, v3")
        k("v_xor_b32 v15, v15, v14")
        k(f"v_lshl_add_u32 v{RA+ks}, v15, 4, v2")
    k("v_lshrrev_b32 v2, 5, v1")
    k("v_bfe_u32 v3, v1, 2, 2")
    k("v_lshl_add_u32 v2, v2, 3, v3")
    k("v_mul_u32_u24 v2, 192, v2")
    k("v_bfe_u32 v14, v1, 4, 1")
    k("v_lshl_add_u32 v2, v14, 5, v2")
    k("v_and_b32 v14, 3, v1")
    k("v_lshl_add_u32 v2, v14, 3, v2")
    k(f"v_add_u32 v{RB}, 65536, v2")
    k(f"v_add_u32 v{RB+1}, {65536+49152}, v2")
    k("v_and_b32 v2, 31, v1")
    k("s_lshl_b32 s9, s11, 7")
    k("s_lshl_b32 s10, s8, 5")
    k("s_add_u32 s9, s9, s10")
    k("v_add_u32 v2, s9, v2")
    k("v_lshlrev_b32 v2, 6, v2")
    wsrd(k, 44, 2048 * 64, WS_STAT)
    GST, GL, GG = 131072, 200, 206
    k("s_mul_i32 s9, s8, 6656")
    k(f"s_add_u32 s9, s9, {GST}")
    k("s_lshl_b32 s10, s11, 7")
    k("s_lshl_b32 s34, s8, 5")
    k("s_add_u32 s10, s10, s34")
    k("s_mul_i32 s34, s12, 192")
    for i in range(6):
        k(f"v_add_u32 v14, {64*i}, v1")
        k("v_mul_u32_u24 v15, 5462, v14")
        k("v_lshrrev_b32 v15, 16, v15        ; row")
        k("v_mul_u32_u24 v16, 12, v15")
        k("v_sub_u32 v16, v14, v16           ; chunk")
        k("v_lshlrev_b32 v16, 4, v16")
        k("v_mul_u32_u24 v17, 208, v15")
        k(f"v_add3_u32 v{GL+i}, v17, v16, s9")
        k("v_add_u32 v15, s10, v15")
        k("v_mul_u32_u24 v15, 3072, v15")
        k(f"v_add3_u32 v{GG+i}, v15, v16, s34")
    k("v_and_b32 v14, 31, v1")
    k("v_mul_u32_u24 v14, 208, v14")
    k("v_lshrrev_b32 v15, 5, v1")
    k("v_lshlrev_b32 v15, 4, v15")
    k("v_add3_u32 v212, v14, v15, s9")
    pre_barrier()
    if APF: apf_rows(k, WS_X1, S * D * 2, lambda: k("s_lshl_b32 s9, s11, 7"), 1280, 7, 0, 10, lambda: k("s_and_b32 s9, s12, 3"), 320, 14, 228)
    STT = 168
    def reads(step):
        st, ks = divmod(step, 4); slot = st % NS; sb = step & 1
        a = f"ds_read_b128 v[{AF+4*sb}:{AF+4*sb+3}], v{RA+ks} offset:{slot*16384}"
        out = []
        for nt in range(6):
            d = BF + (sb * 6 + nt) * 4
            off = (slot & 1) * 24576 + (nt // 3) * 12288 + (nt % 3) * 64
            g = [f"ds_read_b64_tr_b16 v[{d+2*j}:{d+2*j+1}], v{RB+(slot>>1)} offset:{off + (16*ks+4*j)*192}" for j in range(2)]
            out.append(([a] if nt == 0 else []) + g)
        return out
    def mf(step, nt):
        sb = step & 1
        return [mfma32(ACC + 16 * nt, BF + (sb * 6 + nt) * 4, AF + 4 * sb, "0" if step == 0 else None)]
    compute_loop(k, 10, 4, reads, mf, 0, stamp=False, hooks={-1: lambda: mark(k, 22)})
    mark(k, 12)
    k("s_barrier")
    k("v_and_b32 v2, 31, v1")
    k("s_lshl_b32 s9, s8, 5")
    k("v_add_u32 v2, s9, v2")
    k("v_lshlrev_b32 v2, 6, v2")
    k("v_add_u32 v2, 36864, v2")
    for q in range(4): k(f"ds_read_b128 v[{STT+4*q}:{STT+4*q+3}], v2 offset:{16*q}")
    k("s_waitcnt lgkmcnt(0)")
    k(f"v_add_f32 v10, v{STT}, v{STT+2}")
    k(f"v_add_f32 v11, v{STT+1}, v{STT+3}")
    for q in range(2, 8):
        k(f"v_add_f32 v10, v10, v{STT+2*q}")
        k(f"v_add_f32 v11, v11, v{STT+2*q+1}")
    k(f"s_mov_b32 s9, {hex(f2u(1.0/640))}")
    k("v_mul_f32 v10, s9, v10            ; mean")
    k("v_mul_f32 v13, v10, v10")
    k("v_fma_f32 v11, v11, s9, -v13      ; variance")
    k("v_max_f32 v11, 0, v11")
    k("v_add_f32 v11, 0x3727c5ac, v11")
    k("v_rsq_f32 v11, v11")
    k("s_nop 0")
    k("v_mul_f32 v13, v10, v11")
    k("v_sub_f32 v12, 0, v13")
    k("v_mov_b32 v13, v12")
    k("v_mov_b32 v10, v11")
    k("v_lshrrev_b32 v14, 5, v1")
    k("v_lshlrev_b32 v14, 4, v14")
    k("v_add_u32 v14, 32768, v14")
    wsrd(k, 24, S * F * 2, WS_G)
    k("v_and_b32 v2, 31, v1")
    k("s_lshl_b32 s9, s11, 7")
    k("s_lshl_b32 s10, s8, 5")
    k("s_add_u32 s9, s9, s10")
    k("v_add_u32 v2, s9, v2")
    k("v_mul_u32_u24 v2, 3072, v2")
    k("v_lshrrev_b32 v3, 5, v1")
    k("v_lshlrev_b32 v3, 4, v3")
    k("s_mul_i32 s9, s12, 192")
    k("v_add3_u32 v2, v2, v3, s9")
    c1 = -2.0 * 0.7978845608028654 * 1.4426950408889634
    c2 = c1 * 0.044715
    for r, c in ((4, c1), (5, c1), (6, c2), (7, c2), (8, 1.0), (9, 1.0)): k(f"v_mov_b32 v{r}, {hex(f2u(c))}")
    pk = lambda r: f"v[{r}:{r+1}]"
    U0, U1 = 40, 168
    def ut_reads(slot, off):
        U = (U0, U1)[slot]
        for mat in range(2):
            for jj in range(2):
                k(f"ds_read_b128 v[{U+8*mat+4*jj}:{U+8*mat+4*jj+3}], v14 offset:{mat*384 + off + 32*jj}")
                k(f"ds_read_b128 v[{U+16+8*mat+4*jj}:{U+16+8*mat+4*jj+3}], v14 offset:{768 + mat*384 + off + 32*jj}")
    if os.environ.get("UPDIAG"): mark(k, 25)
    def group(jp, g, nxt_slot, nxt_off, woff):
        U = (U0, U1)[jp]
        u = g + 48
        T = 16 + 8 * jp
        if nxt_off is not None: ut_reads(nxt_slot, nxt_off)
        k(f"s_waitcnt lgkmcnt({8 if nxt_off is not None else 0})")
        for mat in range(2):
            for r in range(0, 8, 2):
                k(f"v_pk_fma_f32 {pk(U+16+8*mat+r)}, {pk(U+8*mat+r)}, v[12:13], {pk(U+16+8*mat+r)}")
        for mat in range(2):
            base = g if mat == 0 else u
            for r in range(0, 8, 2):
                k(f"v_pk_fma_f32 {pk(base+r)}, {pk(base+r)}, v[10:11], {pk(U+16+8*mat+r)}")
        for r in range(0, 8, 2): k(f"v_pk_mul_f32 {pk(T+r)}, {pk(g+r)}, {pk(g+r)}")
        for r in range(0, 8, 2): k(f"v_pk_fma_f32 {pk(T+r)}, {pk(T+r)}, v[6:7], v[4:5]")
        for r in range(0, 8, 2): k(f"v_pk_mul_f32 {pk(T+r)}, {pk(T+r)}, {pk(g+r)}")
        for r in range(8): k(f"v_exp_f32 v{T+r}, v{T+r}")
        for r in range(0, 8, 2): k(f"v_pk_mul_f32 {pk(g+r)}, {pk(g+r)}, {pk(u+r)}")
        for r in range(0, 8, 2): k(f"v_pk_add_f32 {pk(T+r)}, {pk(T+r)}, v[8:9]")
        for r in range(8): k(f"v_rcp_f32 v{T+r}, v{T+r}")
        for r in range(0, 8, 2): k(f"v_pk_mul_f32 {pk(T+r)}, {pk(T+r)}, {pk(g+r)}")
        t = 32 + 4 * jp
        for q in range(4): k(f"v_cvt_pk_bf16_f32 v{t+q}, v{T+2*q}, v{T+2*q+1}")
        k(f"v_permlane32_swap_b32 v{t}, v{t+2}")
        k(f"v_permlane32_swap_b32 v{t+1}, v{t+3}")
        k(f"ds_write_b128 v212, v[{t}:{t+3}] offset:{woff}")
    ut_reads(0, 0)
    if os.environ.get("EPI_LOOP"):
        k("s_mov_b32 s34, 3")
        k.label("UP_EPI")
        for jp in range(2): group(jp, ACC + 8 * jp, 1 - jp, 64 * (jp + 1), 32 * jp)
        for base in (ACC, ACC + 48):
            for r in range(0, 32, 2): k(f"v_pk_mov_b32 {pk(base+r)}, {pk(base+16+r)}, {pk(base+16+r)} op_sel:[0,1]")
        k("v_add_u32 v14, 128, v14")
        k("v_add_u32 v212, 64, v212")
        k("s_sub_u32 s34, s34, 1")
        k("s_cmp_lg_u32 s34, 0")
        k("s_cbranch_scc1 UP_EPI")
    else:
        for grp in range(6):
            nt, jp = divmod(grp, 2)
            group(jp, ACC + 16 * nt + 8 * jp, 1 - jp, (64 * (grp + 1) if grp < 5 else None), 64 * nt + 32 * jp)
    if os.environ.get("UPDIAG"): mark(k, 28)
    k("s_waitcnt lgkmcnt(0)")
    for i in range(6): k(f"ds_read_b128 v[{ACC+4*i}:{ACC+4*i+3}], v{200+i}")
    for i in range(6):
        k(f"s_waitcnt lgkmcnt({5-i})")
        k(f"buffer_store_dwordx4 v[{ACC+4*i}:{ACC+4*i+3}], v{206+i}, s[24:27], 0 offen sc1")

def phases456(k):
    k.label("P4_STAGED")
    from k_attn2 import SS
    k("s_waitcnt vmcnt(0)")
    k("s_barrier")
    mark(k, 7)
    narrow_ids(k)
    k("s_cmp_ge_u32 s8, 4")
    k("s_cbranch_scc1 P4_LOADER")
    k("v_lshlrev_b32 v5, 3, v1")
    k("s_lshl_b32 s9, s8, 11")
    k("v_add_u32 v5, s9, v5")
    for h in range(2):
        for i in range(3): k(f"ds_read_b64 v[{SS+6*h+2*i}:{SS+6*h+2*i+1}], v5 offset:{8192*h + 512*i}")
    k(f"s_mov_b32 s9, {128*1280}")
    for h in range(2):
        for i in range(3):
            k(f"s_waitcnt lgkmcnt({5 - 3*h - i})")
            k(f"buffer_store_dwordx2 v[{SS+6*h+2*i}:{SS+6*h+2*i+1}], v{128+i}, s[24:27], {'s9' if h else '0'} offen sc1")
    if not os.environ.get("NO_BH2"): k("s_barrier")
    if not os.environ.get("LDIAG") and not os.environ.get("P0DIAG") and not os.environ.get("UPDIAG"): mark(k, 25)
    k("s_waitcnt vmcnt(0)")
    if not os.environ.get("LDIAG") and not os.environ.get("P0DIAG") and not os.environ.get("UPDIAG"): mark(k, 26)
    last_arriver_flag(k, "P3O", CTL + 16, 3, FL_O, 2)
    k("s_branch P4_COMPUTE")
    k.label("P4_LOADER")
    if not os.environ.get("NO_BH2"): k("s_barrier                        ; B_h2")
    L = narrow_loader_setup(k, 640, WS_O, WS_WOP)
    L.preloadB()
    narrow_res_dma(k, True, 2)
    k("s_cmp_lg_u32 s8, 4")
    k("s_cbranch_scc1 P4L_GO")
    poll_range(k, "P4L_O", FL_O, lambda: k("s_lshl_b32 s9, s3, 5"), 32)
    k.label("P4L_GO")
    k("s_barrier                        ; B_i")
    mark(k, 8)
    L.run(prefetch=apf_loader(k, WS_O, S * 640 * 2, lambda: k("s_lshl_b32 s9, s11, 6"), 1280, 6, 1, 4, lambda: k("s_mov_b32 s9, s12"), 64, 17, 229, khalf=640))
    k("s_barrier")
    k("s_barrier")
    k("s_lshr_b32 s35, s11, 1")
    k("s_lshl_b32 s35, s35, 4")
    k("s_and_b32 s36, s11, 1")
    k("s_lshl_b32 s36, s36, 3")
    k("s_add_u32 s35, s35, s36")
    k("s_add_u32 s35, s35, s12")
    up_ids(k)
    L = up_loader_setup(k)
    if os.environ.get("BJ0"): k("s_barrier")
    L.preloadB()
    k("s_barrier")
    k("s_cmp_lg_u32 s8, 4")
    k("s_cbranch_scc1 P5L_GO")
    set_flag(k, FL_X1, 35)
    poll_range(k, "P5L_X", FL_X1, lambda: k("s_lshl_b32 s9, s11, 4"), 16)
    k.label("P5L_GO")
    k("s_barrier                        ; B_k")
    mark(k, 11)

    def ut_issue():
        wsrd(k, 24, 16 * 384 * 4, WS_UT)
        k("v_lshlrev_b32 v2, 4, v1")
        k("s_mul_i32 s14, s12, 1536")
        k("s_and_b32 s9, s31, 1")
        k("s_lshl_b32 s9, s9, 10")
        k("s_add_u32 s14, s14, s9")
        k("s_add_u32 m0, s9, 32768")
        k("s_nop 0")
        k("buffer_load_dwordx4 v2, s[24:27], s14 offen sc1 lds")
        wsrd(k, 24, 2048 * 64, WS_STAT)
        k("s_lshl_b32 s14, s11, 13")
        k("s_lshl_b32 s9, s31, 11")
        k("s_add_u32 s14, s14, s9")
        k("s_add_u32 m0, s9, 36864")
        k("s_nop 0")
        k("buffer_load_dwordx4 v2, s[24:27], s14 offen sc1 lds")
        k("buffer_load_dwordx4 v2, s[24:27], s14 offen offset:1024 sc1 lds")
        n = 0
        if os.environ.get("WDPF"):
            wsrd(k, 52, 8 * 1536 * 160, WS_WDP)
            k("s_lshr_b32 s9, s2, 3")
            k("s_mul_i32 s9, s9, 480")
            k("v_and_b32 v20, 255, v0")
            for i in range(2):
                k(f"v_add_u32 v21, {256*i}, v20")
                k("v_add_u32 v22, s9, v21")
                k("v_lshlrev_b32 v22, 7, v22")
                if i:
                    k("v_cmp_gt_u32 vcc, 480, v21")
                    k("v_mov_b32 v23, 0x7ffffff0")
                    k("v_cndmask_b32 v22, v23, v22, vcc")
                k(f"buffer_load_dword v{228+i}, v22, s[52:55], 0 offen")
                n += 1
        npf.append(n)
        return 3 + n
    npf = []
    def o_issue():
        k("s_cmp_lg_u32 s8, 5")
        k("s_cbranch_scc1 P5L_OA")
        check_all_issue(k, FL_O, 24)
        k.label("P5L_OA")
        return 0
    def o_fin():
        k("s_cmp_lg_u32 s8, 5")
        k("s_cbranch_scc1 P5L_OB")
        k("s_waitcnt vmcnt(0)")
        check_all_finish(k, "P5L_OALL", FL_O, 24)
        k.label("P5L_OB")
        return ut_issue()
    L.run(after_barrier={2: o_issue, 8: o_fin}, prefetch=(apf_loader(k, WS_X1, S * D * 2, lambda: k("s_lshl_b32 s9, s11, 7"), 1280, 7, 1, 9, lambda: k("s_and_b32 s9, s12, 3"), 288, 17, 228) if os.environ.get("APF_UP") else None))
    k(f"s_waitcnt vmcnt({npf[0]})")
    k("s_barrier                        ; u', t landed")
    k("s_lshl_b32 s35, s11, 4")
    k("s_add_u32 s35, s35, s12")
    narrow_ids(k)
    if os.environ.get("LATE_PRE"): k("s_barrier")
    L = narrow_loader_setup(k, 1536, WS_G, WS_WDP)
    if os.environ.get("BL0"): k("s_barrier")
    L.preloadB()
    if not os.environ.get("LATE_PRE"): k("s_barrier")
    k("s_cmp_lg_u32 s8, 4")
    k("s_cbranch_scc1 P6L_GO")
    set_flag(k, FL_G, 35)
    def gfirst():
        k("s_lshr_b32 s9, s11, 1")
        k("s_lshl_b32 s9, s9, 4")
    poll_range(k, "P6L_G", FL_G, gfirst, 16)
    k.label("P6L_GO")
    k("s_barrier                        ; B_m")
    mark(k, 14)
    def down_res():
        narrow_res_dma(k, False, 5)
        return 0
    L.run(after_barrier={2: down_res}, prefetch=apf_loader(k, WS_G, S * 1536 * 2, lambda: k("s_lshl_b32 s9, s11, 6"), 3072, 6, 1, 11, lambda: k("s_mov_b32 s9, s12"), 176, 17, 229, khalf=1536))
    k("s_barrier")
    k("s_barrier")
    k("s_branch F_END")
    k.label("P4_COMPUTE")
    narrow_compute(k, "P4C", 640, True, 2, False, lambda: k("s_barrier                        ; B_i"))
    if os.environ.get("BJ0"): k("s_barrier                        ; B_j0")
    if not os.environ.get("P0DIAG") and not os.environ.get("UPDIAG"): mark(k, 29)
    k("s_waitcnt vmcnt(0)")
    if not os.environ.get("P0DIAG"): mark(k, 30)
    k("s_barrier                        ; B_j")
    mark(k, 10)
    up_ids(k)
    up_compute(k, lambda: k("s_barrier                        ; B_k"))
    if os.environ.get("BL0"): k("s_barrier                        ; B_l0")
    if os.environ.get("UPDIAG"): mark(k, 29)
    if not os.environ.get("LDIAG") and not os.environ.get("P0DIAG") and not os.environ.get("UPDIAG"): mark(k, 27)
    k("s_waitcnt vmcnt(0)")
    if not os.environ.get("P0DIAG") and not os.environ.get("UPDIAG"): mark(k, 28)
    k("s_barrier                        ; B_l")
    mark(k, 13)
    narrow_ids(k)
    narrow_compute(k, "P6C", 1536, False, 5, True, lambda: k("s_barrier                        ; B_m"))

def gen_fused():
    k = K()
    k("s_cmp_ge_u32 s2, 256")
    k("s_cbranch_scc1 F_END")
    k(f"s_load_dwordx8 s[64:71], s[0:1], 0")
    k(f"s_load_dwordx8 s[72:79], s[0:1], 32")
    k(f"s_load_dwordx8 s[80:87], s[0:1], 64")
    k("v_and_b32 v1, 63, v0")
    k("v_lshrrev_b32 v2, 6, v0")
    k("s_nop 0")
    k("v_readfirstlane_b32 s8, v2       ; wave")
    k("s_and_b32 s31, s8, 3")
    phase01(k)
    phase2_loader(k)
    phase2_spare(k)
    phase2_compute(k)
    phase3(k)
    phases456(k)
    k.label("F_END")
    k("s_endpgm")
    k.fix_hazards()
    return NAME, header(NAME) + k.text() + descriptor(NAME, 232), (256, 512, 163840)

if __name__ == "__main__":
    import sys
    HEAD = open("adaLN_cond__mha_block__geglu_ffn__prompt.s.ref").read().split("; Override launch")[0]
    n, t, (g, b, l) = gen_fused()
    s = HEAD + f"; @launch grid=({g},1,1) block=({b},1,1) lds={l}\n" + '.amdgcn_target "amdgcn-amd-amdhsa--gfx950"\n' + t
    out = sys.argv[1] if len(sys.argv) > 1 else "fused.s"
    open(out, "w").write(s)
    print("wrote", out, len(s))
```

```python
from common import *
from k_gemm2 import mfma32, mfma16, compute_loop, f2u
from k_attn2 import VM, m16, m8
import os, struct

NAME = "adaLN_cond__mha_block__geglu_ffn__prompt_kernel"
XP, WQKVP, WOP_, WGP, WUP_, WDP_, CP, WMODP, OUTP, DBGP, WSP = 64, 66, 68, 72, 74, 76, 78, 80, 82, 84, 86
NONCE = 60
CTL = 163584
SCR = 131072
STOP = int(os.environ.get("STOP", 99))
TIMEOUT = 30000

def wsrd(k, s, nbytes, off): srd(k, s, WSP, nbytes, off)
def mark(k, i): k(f"; MARK {i}")

APF = bool(os.environ.get("APF"))
def apf_rows(k, off, nbytes, row0_fn, lda, nrows_log2, first_line, nlines, sharer_fn, per, vt, vdst, khalf=None, tid="v0"):
    wsrd(k, 52, nbytes, off)
    for i in range((per + 255) // 256):
        sharer_fn()
        k(f"s_mul_i32 s9, s9, {per}")
        if i: k(f"s_add_u32 s9, s9, {256 * i}")
        k(f"v_add_u32 v{vt}, s9, {tid}")
        sh = nrows_log2 + (1 if khalf else 0)
        k(f"v_lshrrev_b32 v{vt+1}, {sh}, v{vt}")
        if khalf: k(f"v_bfe_u32 v{vt+2}, v{vt}, {nrows_log2}, 1")
        k(f"v_and_b32 v{vt}, {(1 << nrows_log2) - 1}, v{vt}")
        row0_fn()
        k(f"v_add_u32 v{vt}, s9, v{vt}")
        k(f"s_mov_b32 s9, {lda}")
        k(f"v_mul_lo_u32 v{vt}, s9, v{vt}")
        if first_line: k(f"v_add_u32 v{vt+1}, {first_line}, v{vt+1}")
        k(f"v_lshl_add_u32 v{vt}, v{vt+1}, 7, v{vt}")
        if khalf:
            k(f"v_mul_u32_u24 v{vt+2}, {khalf}, v{vt+2}")
            k(f"v_add_u32 v{vt}, v{vt}, v{vt+2}")
        if 256 * (i + 1) > per:
            k(f"v_cmp_gt_u32 vcc, {per - 256 * i}, {tid}")
            k(f"v_mov_b32 v{vt+1}, 0x7ffffff0")
            k(f"v_cndmask_b32 v{vt}, v{vt+1}, v{vt}, vcc")
        k(f"buffer_load_dword v{vdst+i}, v{vt}, s[52:55], 0 offen sc1")

APF2 = os.environ.get("APF2", "0") != "0"
def apf_loader(k, *args, **kw):
    def f():
        per = args[8]
        k("v_and_b32 v16, 255, v0")
        apf_rows(k, *args, tid="v16", **kw)
        return (per + 255) // 256
    return f

OLDPOLL = bool(os.environ.get('OLDPOLL'))
def poll_old(k, tag, vaddr, mask, vtmp, waitall=True):
    k("s_mov_b32 s14, 0")
    k.label(f"{tag}_P")
    if mask == "lo32":
        k("s_mov_b32 exec_lo, -1"); k("s_mov_b32 exec_hi, 0")
    else:
        k(f"s_mov_b64 exec, {mask}")
    k(f"buffer_load_dword v{vtmp}, v{vaddr}, s[56:59], 0 offen sc1")
    k("s_waitcnt vmcnt(0)")
    k(f"v_cmp_ne_u32 vcc, s{NONCE}, v{vtmp}")
    k("s_mov_b64 exec, -1")
    k("s_cmp_eq_u64 vcc, 0")
    k(f"s_cbranch_scc1 {tag}_R")
    k("s_add_u32 s14, s14, 1")
    k(f"s_cmp_gt_u32 s14, {TIMEOUT}")
    k(f"s_cbranch_scc1 {tag}_R")
    k("s_sleep 2")
    k(f"s_branch {tag}_P")
    k.label(f"{tag}_R")

def poll_new(k, tag, vaddr, mask, vtmp, waitall=True):
    def setmask():
        if mask == "lo32":
            k("s_mov_b32 exec_lo, -1"); k("s_mov_b32 exec_hi, 0")
        else:
            k(f"s_mov_b64 exec, {mask}")
    k("s_mov_b32 s14, 0")
    setmask()
    k("s_waitcnt vmcnt(0)")
    k(f"buffer_load_dword v226, v{vaddr}, s[56:59], 0 offen sc1")
    k.label(f"{tag}_P")
    k(f"buffer_load_dword v227, v{vaddr}, s[56:59], 0 offen sc1")
    k("s_waitcnt vmcnt(1)")
    k(f"v_cmp_ne_u32 vcc, s{NONCE}, v226")
    k("s_cmp_eq_u64 vcc, 0")
    k(f"s_cbranch_scc1 {tag}_R")
    k(f"buffer_load_dword v226, v{vaddr}, s[56:59], 0 offen sc1")
    k("s_waitcnt vmcnt(1)")
    k(f"v_cmp_ne_u32 vcc, s{NONCE}, v227")
    k("s_cmp_eq_u64 vcc, 0")
    k(f"s_cbranch_scc1 {tag}_R")
    k("s_add_u32 s14, s14, 1")
    k(f"s_cmp_gt_u32 s14, {TIMEOUT}")
    k(f"s_cbranch_scc0 {tag}_P")
    k.label(f"{tag}_R")
    k("s_mov_b64 exec, -1")

def poll(k, *a, **kw): return (poll_old if OLDPOLL else poll_new)(k, *a, **kw)

def flag_srd(k): wsrd(k, 56, 7 * 256 * 128, WS_FLG)

def poll_range(k, tag, base, first_sgpr_expr, n, v=20):
    flag_srd(k)
    first_sgpr_expr()
    k(f"v_and_b32 v{v}, 63, v0")
    k(f"v_add_u32 v{v}, s9, v{v}")
    k(f"v_lshlrev_b32 v{v}, 7, v{v}")
    if base: k(f"v_add_u32 v{v}, {base}, v{v}")
    poll(k, tag, v, "-1" if n == 64 else ("lo32" if n == 32 else hex((1 << n) - 1)), v + 1)

def poll_all(k, tag, base, v=20):
    flag_srd(k)
    k(f"v_and_b32 v{v}, 63, v0")
    k(f"v_lshlrev_b32 v{v}, 7, v{v}")
    k(f"v_add_u32 v{v}, {base}, v{v}")
    for q in range(1, 4): k(f"v_add_u32 v{v+q}, {q * 64 * 128}, v{v}")
    k("s_mov_b32 s14, 0")
    k.label(f"{tag}_P")
    for q in range(4): k(f"buffer_load_dword v{v+4+q}, v{v+q}, s[56:59], 0 offen sc1")
    k("s_waitcnt vmcnt(0)")
    k(f"v_cmp_ne_u32 vcc, s{NONCE}, v{v+4}")
    for q in range(1, 4):
        k(f"v_cmp_ne_u32 s[62:63], s{NONCE}, v{v+4+q}")
        k("s_or_b64 vcc, vcc, s[62:63]")
    k("s_cmp_eq_u64 vcc, 0")
    k(f"s_cbranch_scc1 {tag}_R")
    k("s_add_u32 s14, s14, 1")
    k(f"s_cmp_gt_u32 s14, {TIMEOUT}")
    k(f"s_cbranch_scc1 {tag}_R")
    k("s_sleep 2")
    k(f"s_branch {tag}_P")
    k.label(f"{tag}_R")

def check_all_issue(k, base, v):
    flag_srd(k)
    k(f"v_and_b32 v{v}, 63, v0")
    k(f"v_lshlrev_b32 v{v}, 7, v{v}")
    k(f"v_add_u32 v{v}, {base}, v{v}")
    for q in range(1, 4): k(f"v_add_u32 v{v+q}, {q * 64 * 128}, v{v}")
    for q in range(4): k(f"buffer_load_dword v{v+4+q}, v{v+q}, s[56:59], 0 offen sc1")
def check_all_finish(k, tag, base, v):
    k(f"v_cmp_ne_u32 vcc, s{NONCE}, v{v+4}")
    for q in range(1, 4):
        k(f"v_cmp_ne_u32 s[62:63], s{NONCE}, v{v+4+q}")
        k("s_or_b64 vcc, vcc, s[62:63]")
    k("s_cmp_eq_u64 vcc, 0")
    k(f"s_cbranch_scc1 {tag}_OK")
    poll_all(k, tag, base, v)
    k.label(f"{tag}_OK")

def set_flag(k, base, idx_sgpr, v=20):
    flag_srd(k)
    k(f"s_lshl_b32 s9, s{idx_sgpr}, 7")
    k(f"s_add_u32 s9, s9, {base}")
    k(f"v_mov_b32 v{v}, s9")
    k(f"v_mov_b32 v{v+1}, s{NONCE}")
    k("s_mov_b64 exec, 1")
    k(f"buffer_store_dword v{v+1}, v{v}, s[56:59], 0 offen sc1")
    k("s_mov_b64 exec, -1")

LDIAG = [25, 26, 27]
class Loader:
    def __init__(self, k, nst, nslots, dmaA, dmaB, nA, nB):
        self.k, self.nst, self.ns, self.dmaA, self.dmaB, self.nA, self.nB = k, nst, nslots, dmaA, dmaB, nA, nB
        self.ops = []
    def A(self, st): self.dmaA(st); self.ops += [st] * self.nA
    def B(self, st): self.dmaB(st); self.ops += [st] * self.nB
    def extra(self, n): self.ops += ["x"] * n
    def drained(self): self.ops = ["done"] if False else []
    def wait(self, st):
        idx = [i for i, t in enumerate(self.ops) if t == st]
        n = len(self.ops) - 1 - max(idx) if idx else len(self.ops)
        self.k(f"s_waitcnt vmcnt({min(63, n)})")
    def preloadB(self):
        for st in range(min(self.ns - 1, self.nst)): self.B(st)
    def run(self, after_barrier=None, tail=None, prefetch=None):
        k = self.k; up = min(self.ns - 1, self.nst)
        if prefetch is not None and APF2:
            self.A(0)
            self.extra(prefetch())
            self.wait(0)
            k("s_barrier")
            k("s_waitcnt vmcnt(0)")
            if os.environ.get("LDIAG"): mark(k, LDIAG.pop(0))
            for st in range(1, up): self.A(st)
        else:
            for st in range(up): self.A(st)
            self.wait(0)
            k("s_barrier")
        issued = up
        for s in range(self.nst - 1):
            self.wait(s + 1)
            k("s_barrier")
            if issued < self.nst:
                self.A(issued); self.B(issued); issued += 1
                if issued == self.nst and tail: self.extra(tail())
            if after_barrier and (s + 1) in after_barrier: self.extra(after_barrier[s + 1]())

def a_dma_rows32(k, VA, row0_sgpr, lda, koff_sgpr=None):
    k("v_lshrrev_b32 v2, 3, v1")
    k("v_lshrrev_b32 v3, 4, v1")
    k("v_and_b32 v4, 7, v1")
    k(f"v_add_u32 v2, s{row0_sgpr}, v2")
    k(f"s_mov_b32 s10, {lda}")
    k("v_mul_lo_u32 v2, s10, v2")
    if koff_sgpr is not None: k(f"v_add_u32 v2, s{koff_sgpr}, v2")
    for i in range(4):
        k(f"v_xor_b32 v5, {(i&1)*4}, v3")
        k("v_xor_b32 v5, v5, v4")
        k("v_lshlrev_b32 v5, 4, v5")
        k(f"v_add_u32 v5, {i*8*lda - i*1024}, v5")
        k(f"v_add_u32 v{VA+i}, v2, v5")

def phase01(k):
    X, C0, W0, AC, T = 8, 32, 40, 64, 72
    k("s_and_b32 s13, s2, 3             ; kq")
    k("s_lshr_b32 s14, s2, 2")
    k("v_lshrrev_b32 v5, 3, v0")
    k("v_and_b32 v6, 7, v0")
    k("s_mul_i32 s15, s13, 160")
    k("v_add_u32 v7, s15, v5")
    k("v_mul_u32_u24 v5, 7680, v7")
    k("v_lshlrev_b32 v6, 4, v6")
    k("s_lshl_b32 s15, s14, 7")
    k("v_add3_u32 v5, v5, v6, s15")
    k("v_lshrrev_b32 v3, 4, v0")
    k("s_lshl_b32 s15, s2, 3")
    k("v_add_u32 v3, s15, v3")
    k("v_mul_u32_u24 v3, 1280, v3")
    k("v_and_b32 v4, 15, v0")
    k("v_lshl_add_u32 v3, v4, 4, v3")
    k("v_lshlrev_b32 v6, 1, v7")
    k("v_mov_b32 v28, 0x7ffffff0")
    k("v_cmp_gt_u32 vcc, 256, v0")
    k("v_cndmask_b32 v29, v28, v5, vcc")
    k("v_cndmask_b32 v30, v28, v6, vcc")
    k("s_waitcnt lgkmcnt(0)")
    srd(k, 36, WMODP, 640 * 7680)
    srd(k, 32, CP, 1280)
    srd(k, 16, XP, S * D * 2)
    def gemv_loads():
        k(f"buffer_load_dwordx4 v[{W0}:{W0+3}], v5, s[36:39], 0 offen")
        k(f"s_mov_b32 s15, {64*7680}")
        k(f"buffer_load_dwordx4 v[{W0+4}:{W0+7}], v5, s[36:39], s15 offen")
        k(f"s_mov_b32 s15, {128*7680}")
        k(f"buffer_load_dwordx4 v[{W0+8}:{W0+11}], v29, s[36:39], s15 offen")
        k(f"buffer_load_ushort v{C0}, v6, s[32:35], 0 offen")
        k(f"buffer_load_ushort v{C0+1}, v6, s[32:35], 0 offen offset:128")
        k(f"buffer_load_ushort v{C0+2}, v30, s[32:35], 0 offen offset:256")
    def x_loads(tag):
        k("s_cmp_ge_u32 s8, 2")
        k(f"s_cbranch_scc1 {tag}")
        for i in range(5):
            k(f"buffer_load_dwordx4 v[{X+4*i}:{X+4*i+3}], v3, s[16:19], 0 offen offset:{256*i}")
        k.label(tag)
    k("s_cmp_ge_u32 s2, 80")
    k("s_cbranch_scc1 P0_LATE")
    gemv_loads()
    x_loads("P0_NOX1")
    k("s_branch P0_ISSUED")
    k.label("P0_LATE")
    x_loads("P0_NOX2")
    k("s_waitcnt vmcnt(0)")
    k("s_barrier")
    k("s_cmp_ge_u32 s14, 60")
    k("s_cbranch_scc1 P0_ISSUED")
    gemv_loads()
    k.label("P0_ISSUED")
    wsrd(k, 20, 4 * 3840 * 4, WS_MODP)
    wsrd(k, 24, S * D * 2, WS_H)
    for r in range(176, 228): k(f"v_mov_b32 v{r}, 0x7ffffff0")
    k("s_cmp_lg_u32 s8, 3")
    k("s_cbranch_scc1 P0_NOCTL")
    k(f"v_lshlrev_b32 v11, 2, v1")
    k(f"v_add_u32 v11, {CTL}, v11")
    k("v_mov_b32 v12, 0")
    k("ds_write_b32 v11, v12")
    k.label("P0_NOCTL")
    k("s_cmp_ge_u32 s8, 4")
    k("s_cbranch_scc1 P0_NOSETUP")
    phase2_setup(k)
    k.label("P0_NOSETUP")
    k("s_cmp_ge_u32 s14, 60")
    k("s_cbranch_scc1 P0_BA")
    k("s_cmp_ge_u32 s2, 80")
    k("s_cbranch_scc1 P0_W0")
    k("s_cmp_ge_u32 s8, 2")
    k("s_cbranch_scc1 P0_W0")
    k("s_waitcnt vmcnt(5)")
    k("s_branch P0_W1")
    k.label("P0_W0")
    k("s_waitcnt vmcnt(0)")
    k.label("P0_W1")
    k("s_mov_b32 s15, 0xbfb8aa3b")
    for i in range(3): k(f"v_lshlrev_b32 v{C0+i}, 16, v{C0+i}")
    for i in range(3): k(f"v_mul_f32 v{T+i}, s15, v{C0+i}")
    for i in range(3): k(f"v_exp_f32 v{T+i}, v{T+i}")
    for i in range(3): k(f"v_add_f32 v{T+i}, 1.0, v{T+i}")
    for i in range(3): k(f"v_rcp_f32 v{T+i}, v{T+i}")
    for i in range(3): k(f"v_mul_f32 v{C0+i}, v{C0+i}, v{T+i}")
    for i in range(3): bf16_round_f32(k, C0 + i, C0 + i, T)
    for i in range(3):
        for j in range(4):
            k(f"v_lshlrev_b32 v{T}, 16, v{W0+4*i+j}")
            k(f"v_and_b32 v{T+1}, 0xffff0000, v{W0+4*i+j}")
            op = "v_mul_f32" if i == 0 else "v_fmac_f32"
            k(f"{op} v{AC+2*j}, v{C0+i}, v{T}")
            k(f"{op} v{AC+2*j+1}, v{C0+i}, v{T+1}")
    for j in range(8):
        k(f"v_add_f32_dpp v{AC+j}, v{AC+j}, v{AC+j} row_ror:8 row_mask:0xf bank_mask:0xf")
    k("v_lshrrev_b32 v5, 4, v0")
    k("v_lshlrev_b32 v5, 8, v5")
    k("v_and_b32 v6, 7, v0")
    k("v_lshl_add_u32 v5, v6, 5, v5")
    k(f"v_add_u32 v5, {SCR}, v5")
    k("v_and_b32 v6, 15, v0")
    k("v_cmp_gt_u32 vcc, 8, v6")
    k("s_and_saveexec_b64 s[34:35], vcc")
    k(f"ds_write_b128 v5, v[{AC}:{AC+3}]")
    k(f"ds_write_b128 v5, v[{AC+4}:{AC+7}] offset:16")
    k("s_mov_b64 exec, s[34:35]")
    k.label("P0_BA")
    k("s_waitcnt lgkmcnt(0)")
    k("s_barrier                        ; B_a")
    mark(k, 0)
    k("s_cmp_lt_u32 s8, 2")
    k("s_cbranch_scc1 P1_LNA")
    k("s_cmp_eq_u32 s8, 2")
    k("s_cbranch_scc1 P0_FINAL")
    k("s_cmp_eq_u32 s8, 3")
    k("s_cbranch_scc1 P0_ONES")
    k("s_branch P0_LOADERS")
    k.label("P0_FINAL")
    k("s_cmp_ge_u32 s14, 60")
    k("s_cbranch_scc1 P1_BA2")
    k("v_lshlrev_b32 v7, 2, v1")
    k(f"v_add_u32 v6, {SCR}, v7")
    for p in range(32): k(f"ds_read_b32 v{W0+p}, v6 offset:{256*p}")
    k("s_waitcnt lgkmcnt(0)")
    for st in (16, 8, 4, 2, 1):
        for p in range(st): k(f"v_add_f32 v{W0+p}, v{W0+p}, v{W0+p+st}")
    k("s_mul_i32 s15, s13, 15360")
    k("s_lshl_b32 s34, s14, 8")
    k("s_add_u32 s15, s15, s34")
    if os.environ.get("P0DIAG"): mark(k, 25)
    k(f"buffer_store_dword v{W0}, v7, s[20:23], s15 offen sc1")
    k("s_waitcnt vmcnt(0)")
    if os.environ.get("P0DIAG"): mark(k, 26)
    k("s_cmp_ge_u32 s14, 20")
    k("s_cbranch_scc1 P1_BA2")
    k("s_mov_b64 exec, 1")
    k("v_mov_b32 v5, 0")
    k("v_mov_b32 v6, 1")
    k(f"global_atomic_add v7, v5, v6, s[{DBGP}:{DBGP+1}] sc0 sc1")
    k("s_waitcnt vmcnt(0)")
    k("v_readfirstlane_b32 s15, v7")
    if os.environ.get("P0DIAG"):
        k("s_mov_b64 exec, -1"); mark(k, 27); k("s_mov_b64 exec, 1")
    k("s_cmp_lg_u32 s15, 79")
    k("s_cbranch_scc1 P0_NOFLAG")
    k("s_memrealtime s[34:35]")
    k("s_waitcnt lgkmcnt(0)")
    k("s_or_b32 s34, s34, 1")
    k("v_mov_b32 v6, s34")
    k(f"global_store_dword v5, v6, s[{DBGP}:{DBGP+1}] offset:128 sc1")
    k.label("P0_NOFLAG")
    k("s_mov_b64 exec, -1")
    k("s_branch P1_BA2")
    k.label("P0_ONES")
    wsrd(k, 32, 32 * KV_HEAD, WS_KV)
    k("s_lshl_b32 s13, s2, 5")
    k("v_add_u32 v5, s13, v1")
    k("v_lshrrev_b32 v6, 2, v5")
    k(f"v_mul_u32_u24 v6, {KV_TILE}, v6")
    k("v_and_b32 v7, 3, v5")
    k("v_mul_u32_u24 v7, 336, v7")
    k(f"v_add_u32 v6, {1280+320}, v6")
    k("v_add_u32 v6, v6, v7")
    for j in range(4): k(f"v_mov_b32 v{8+j}, 0x3f803f80")
    k("s_mov_b32 exec_hi, 0")
    k("buffer_store_dwordx4 v[8:11], v6, s[32:35], 0 offen sc1")
    wsrd(k, 36, 16 * 384 * 4, WS_UT)
    k("s_mul_i32 s13, s2, 96")
    k("v_lshlrev_b32 v5, 2, v1")
    k("v_mov_b32 v12, 0")
    k("s_mov_b32 exec_lo, 0xffffff")
    k("buffer_store_dword v12, v5, s[36:39], s13 offen sc1")
    k("s_mov_b64 exec, -1")
    k("s_waitcnt vmcnt(0)")
    k("s_branch P1_BA2")
    k.label("P1_LNA")
    k("s_barrier                        ; B_a2 (waves 0, 1)")
    k.label("P1_LN")
    E = 32
    k("s_waitcnt vmcnt(0)")
    for r in range(20):
        k(f"v_lshlrev_b32 v{E+2*r}, 16, v{X+r}")
        k(f"v_and_b32 v{E+2*r+1}, 0xffff0000, v{X+r}")
    k(f"v_add_f32 v5, v{E}, v{E+1}")
    k(f"v_add_f32 v6, v{E+2}, v{E+3}")
    for r in range(4, 40, 2):
        k(f"v_add_f32 v5, v5, v{E+r}")
        k(f"v_add_f32 v6, v6, v{E+r+1}")
    k("v_add_f32 v5, v5, v6")
    for rot in (1, 2, 4, 8):
        k(f"v_add_f32_dpp v5, v5, v5 row_ror:{rot} row_mask:0xf bank_mask:0xf")
    k(f"s_mov_b32 s13, {hex(f2u(1.0/640))}")
    k("v_mul_f32 v5, s13, v5")
    for r in range(40): k(f"v_sub_f32 v{E+r}, v{E+r}, v5")
    k(f"v_mul_f32 v6, v{E}, v{E}")
    k(f"v_mul_f32 v7, v{E+1}, v{E+1}")
    for r in range(2, 40, 2):
        k(f"v_fmac_f32 v6, v{E+r}, v{E+r}")
        k(f"v_fmac_f32 v7, v{E+r+1}, v{E+r+1}")
    k("v_add_f32 v6, v6, v7")
    for rot in (1, 2, 4, 8):
        k(f"v_add_f32_dpp v6, v6, v6 row_ror:{rot} row_mask:0xf bank_mask:0xf")
    k("v_mov_b32 v7, 0x3727c5ac")
    k("v_fmac_f32 v7, s13, v6")
    k("v_rsq_f32 v7, v7")
    k("s_nop 0")
    for r in range(40): k(f"v_mul_f32 v{E+r}, v{E+r}, v7")
    k("v_mov_b32 v5, 0")
    k("s_mov_b32 s14, 0")
    k.label("P1_POLL")
    k("s_mov_b64 exec, 1")
    k(f"global_load_dword v6, v5, s[{DBGP}:{DBGP+1}] offset:128 sc1")
    k("s_waitcnt vmcnt(0)")
    k(f"v_readfirstlane_b32 s{NONCE}, v6")
    k("s_mov_b64 exec, -1")
    k(f"s_cmp_lg_u32 s{NONCE}, 0")
    k("s_cbranch_scc1 P1_READY")
    k("s_add_u32 s14, s14, 1")
    k(f"s_cmp_gt_u32 s14, {TIMEOUT}")
    k("s_cbranch_scc1 P1_READY")
    k("s_sleep 4")
    k("s_branch P1_POLL")
    k.label("P1_READY")
    mark(k, 1)
    P = 80
    k("s_mul_i32 s15, s8, 2560")
    k("v_lshlrev_b32 v5, 4, v1")
    k("v_mov_b32 v8, 0x7ffffff0")
    k("v_cmp_gt_u32 vcc, 32, v1")
    k("v_add_u32 v6, s15, v5")
    k("v_add_u32 v9, 2048, v6")
    k("v_cndmask_b32 v9, v8, v9, vcc")
    for q in range(4):
        k(f"s_mov_b32 s34, {q*15360}")
        k(f"buffer_load_dwordx4 v[{P+12*q}:{P+12*q+3}], v6, s[20:23], s34 offen sc1")
        k(f"buffer_load_dwordx4 v[{P+12*q+4}:{P+12*q+7}], v6, s[20:23], s34 offen offset:1024 sc1")
        k(f"buffer_load_dwordx4 v[{P+12*q+8}:{P+12*q+11}], v9, s[20:23], s34 offen sc1")
    k(f"v_mov_b32 v10, {CTL}")
    k(f"v_mov_b32 v11, s{NONCE}")
    k("ds_write_b32 v10, v11")
    k("s_waitcnt vmcnt(0)")
    for r in range(12):
        k(f"v_add_f32 v{P+r}, v{P+r}, v{P+12+r}")
        k(f"v_add_f32 v{P+24+r}, v{P+24+r}, v{P+36+r}")
    for r in range(12): k(f"v_add_f32 v{P+r}, v{P+r}, v{P+24+r}")
    for r in range(12): bf16_round_f32(k, P + r, P + r, P + 12)
    k("s_cmp_eq_u32 s8, 0")
    k("s_cbranch_scc1 P1_NOONE")
    for r in range(12): k(f"v_add_f32 v{P+r}, 1.0, v{P+r}")
    for r in range(12): bf16_round_f32(k, P + r, P + r, P + 12)
    k.label("P1_NOONE")
    k("s_mul_i32 s15, s8, 2560")
    k("v_add_u32 v5, s15, v5")
    k(f"v_add_u32 v5, {SCR + 8192}, v5")
    k(f"ds_write_b128 v5, v[{P}:{P+3}]")
    k(f"ds_write_b128 v5, v[{P+4}:{P+7}] offset:1024")
    k("s_mov_b32 exec_hi, 0")
    k(f"ds_write_b128 v5, v[{P+8}:{P+11}] offset:2048")
    k("s_mov_b64 exec, -1")
    k("s_waitcnt lgkmcnt(0)")
    if os.environ.get("P0DIAG"): mark(k, 28)
    k("s_barrier")
    Gm, Sm = 96, 136
    k("v_and_b32 v4, 15, v0")
    k("v_lshlrev_b32 v4, 5, v4")
    k(f"v_add_u32 v4, {SCR + 8192}, v4")
    for i in range(5):
        for hh in range(2):
            k(f"ds_read_b128 v[{Sm+8*i+4*hh}:{Sm+8*i+4*hh+3}], v4 offset:{512*i + 16*hh}")
            k(f"ds_read_b128 v[{Gm+8*i+4*hh}:{Gm+8*i+4*hh+3}], v4 offset:{2560 + 512*i + 16*hh}")
    k("s_waitcnt lgkmcnt(0)")
    for r in range(40): k(f"v_fma_f32 v{E+r}, v{E+r}, v{Gm+r}, v{Sm+r}")
    for r in range(20): k(f"v_cvt_pk_bf16_f32 v{X+r}, v{E+2*r}, v{E+2*r+1}")
    for i in range(5):
        k(f"buffer_store_dwordx4 v[{X+4*i}:{X+4*i+3}], v3, s[24:27], 0 offen offset:{256*i} sc1")
    if os.environ.get("P0DIAG"): mark(k, 29)
    k("s_waitcnt vmcnt(0)")
    if os.environ.get("P0DIAG"): mark(k, 30)
    k("s_barrier")
    k("s_cmp_lg_u32 s8, 0")
    k("s_cbranch_scc1 P2_START")
    set_flag(k, FL_H, 2)
    k("s_branch P2_START")
    k.label("P1_BA2")
    k("s_barrier")
    k.label("P1_BB")
    k("s_barrier                        ; B_b")
    k(f"v_mov_b32 v10, {CTL}")
    k("ds_read_b32 v11, v10")
    k("s_waitcnt lgkmcnt(0)")
    k(f"v_readfirstlane_b32 s{NONCE}, v11")
    k("s_barrier                        ; B_c")
    k("s_branch P2_START")

def qkv_ids(k):
    k("s_and_b32 s3, s2, 7")
    k("s_lshr_b32 s13, s2, 3")
    k("s_and_b32 s14, s3, 3")
    k("s_lshl_b32 s14, s14, 2")
    k("s_and_b32 s15, s13, 3")
    k("s_add_u32 s11, s14, s15")
    k("s_lshr_b32 s14, s3, 2")
    k("s_lshl_b32 s14, s14, 3")
    k("s_lshr_b32 s15, s13, 2")
    k("s_add_u32 s12, s14, s15")


JW, JSG, JU, JT, JTM, JWO, JD = 136, 152, 160, 168, 176, 184, 199
def wjob_issue(k):
    k(f"s_mul_hi_u32 s55, s2, {(1<<32)//5+1}")
    k("s_mul_i32 s54, s55, 5")
    k("s_sub_u32 s54, s2, s54")
    k("s_lshl_b32 s54, s54, 7")
    k("s_cmp_ge_u32 s55, 24")
    k("s_cselect_b32 s52, 1, 0          ; matrix")
    k("s_mul_i32 s53, s52, 24")
    k("s_sub_u32 s53, s55, s53")
    k("v_and_b32 v191, 255, v0")
    k("v_and_b32 v188, 7, v191")
    k("v_lshrrev_b32 v189, 3, v191")
    k("v_add_u32 v189, s54, v189")
    k("v_mul_u32_u24 v190, 3072, v189")
    k("s_lshl_b32 s55, s53, 7")
    k("v_lshl_add_u32 v190, v188, 4, v190")
    k("v_add_u32 v190, s55, v190")
    k("s_cmp_ge_u32 s2, 240")
    k("s_cselect_b32 s55, 0, 1966080")
    k("s_cmp_eq_u32 s52, 0")
    k(f"s_cselect_b32 s44, s{WGP}, s{WUP_}")
    k(f"s_cselect_b32 s45, s{WGP+1}, s{WUP_+1}")
    k("s_mov_b32 s46, s55")
    k("s_mov_b32 s47, 0x00020000")
    for i in range(4):
        k(f"s_mov_b32 s55, {i*32*3072}")
        k(f"buffer_load_dwordx4 v[{JW+4*i}:{JW+4*i+3}], v190, s[44:47], s55 offen")
    k("s_lshl_b32 s55, s2, 8")
    k("v_add_u32 v191, s55, v191")
    k("v_lshlrev_b32 v190, 4, v191")
    srd(k, 48, WOP_, 640 * 1280)
    k(f"buffer_load_dwordx4 v[{JWO}:{JWO+3}], v190, s[48:51], 0 offen")
    flag_srd(k)
    k("v_and_b32 v192, 3, v1")
    k("v_lshlrev_b32 v192, 7, v192")
    k(f"v_add_u32 v192, {FL_M}, v192")
    k("buffer_load_dword v193, v192, s[56:59], 0 offen sc1")
    return 6
def wjob_compute(k, tag):
    k("s_waitcnt vmcnt(0)")
    k(f"v_cmp_ne_u32 vcc, s{NONCE}, v193")
    k("s_cmp_eq_u64 vcc, 0")
    k(f"s_cbranch_scc1 {tag}_MOK")
    poll(k, f"{tag}_M", 192, "-1", 193)
    k.label(f"{tag}_MOK")
    wsrd(k, 48, 6 * 640 * 4, WS_MODV)
    k("v_lshlrev_b32 v190, 2, v189")
    for i in range(4):
        k("s_movk_i32 s55, 7680")
        k(f"buffer_load_dword v{JSG+2*i}, v190, s[48:51], s55 offen offset:{128*i} sc1")
        k("s_movk_i32 s55, 10240")
        k(f"buffer_load_dword v{JSG+2*i+1}, v190, s[48:51], s55 offen offset:{128*i} sc1")
    for r in range(16): k(f"v_mov_b32 v{JU+r}, 0")
    k("s_lshl_b32 s55, s53, 3")
    k("v_add_u32 v190, s55, v188")
    k("v_mul_u32_u24 v194, 5462, v190")
    k("v_lshrrev_b32 v194, 16, v194     ; ct")
    k("v_mul_u32_u24 v195, 12, v194")
    k("v_sub_u32 v195, v190, v195       ; cc")
    k("s_mov_b32 s55, 245760")
    k("v_mul_lo_u32 v196, s55, v194")
    k("s_mul_i32 s55, s52, 12288")
    k("v_lshl_add_u32 v196, v195, 4, v196")
    k("v_add_u32 v196, s55, v196")
    for i in range(4):
        k(f"v_add_u32 v190, {32*i}, v189")
        k("v_lshrrev_b32 v197, 6, v190")
        k("v_mul_u32_u24 v190, 192, v190")
        k("v_mul_u32_u24 v197, 12288, v197")
        k(f"v_add3_u32 v{JD+i}, v190, v197, v196")
    k("v_mul_u32_u24 v190, 384, v194")
    k("v_lshl_add_u32 v190, v195, 3, v190")
    k("v_lshrrev_b32 v197, 3, v1")
    k("v_add_u32 v190, v190, v197")
    k("s_mul_i32 s55, s52, 96")
    k("v_add_u32 v190, s55, v190")
    k(f"v_lshlrev_b32 v{JD+4}, 2, v190")
    divconst(k, 190, 191, 80, 55, 65536)
    k("v_mul_u32_u24 v197, 80, v190")
    k("v_sub_u32 v197, v191, v197")
    divconst(k, 198, 197, 10, 55, 80)
    k("v_mul_u32_u24 v194, 10, v198")
    k("v_sub_u32 v197, v197, v194")
    k("v_and_b32 v194, 0xfffffff3, v190")
    k("v_bfe_u32 v195, v190, 2, 1")
    k("v_lshl_or_b32 v194, v195, 3, v194")
    k("v_bfe_u32 v195, v190, 3, 1")
    k("v_lshl_or_b32 v194, v195, 2, v194")
    k(f"s_mov_b32 s55, {640*160}")
    k("v_mul_lo_u32 v198, s55, v198")
    k("v_mul_u32_u24 v194, 160, v194")
    k("v_lshlrev_b32 v197, 4, v197")
    k("v_add3_u32 v198, v198, v197, v194")
    k("s_mov_b32 s55, 51200")
    k("v_cmp_gt_u32 vcc, s55, v191")
    k("v_mov_b32 v194, 0x7ffffff0")
    k(f"v_cndmask_b32 v{JD+5}, v194, v198, vcc")
    k("s_waitcnt vmcnt(0)")
    for i in range(4):
        d = JW + 4 * i
        for q in range(4):
            k(f"v_lshlrev_b32 v{JTM+2*q}, 16, v{d+q}")
            k(f"v_and_b32 v{JTM+2*q+1}, 0xffff0000, v{d+q}")
        sg = f"v[{JSG+2*i}:{JSG+2*i+1}]"
        for q in range(0, 8, 2): k(f"v_pk_fma_f32 v[{JT+q}:{JT+q+1}], v[{JTM+q}:{JTM+q+1}], {sg}, v[{JT+q}:{JT+q+1}] op_sel:[0,0,0] op_sel_hi:[1,0,1]")
        for q in range(0, 8, 2): k(f"v_pk_mul_f32 v[{JTM+q}:{JTM+q+1}], v[{JTM+q}:{JTM+q+1}], {sg} op_sel:[0,1] op_sel_hi:[1,1]")
        for q in range(0, 8, 2): k(f"v_pk_add_f32 v[{JU+q}:{JU+q+1}], v[{JU+q}:{JU+q+1}], v[{JTM+q}:{JTM+q+1}]")
        for q in range(4): k(f"v_cvt_pk_bf16_f32 v{d+q}, v{JTM+2*q}, v{JTM+2*q+1}")
    def rscatter(B):
        for e in range(4):
            k(f"v_permlane32_swap_b32 v{B+e}, v{B+e+4}")
            k(f"v_add_f32 v{B+e}, v{B+e}, v{B+e+4}")
        for e in range(2):
            k(f"v_permlane16_swap_b32 v{B+e}, v{B+e+2}")
            k(f"v_add_f32 v{B+e}, v{B+e}, v{B+e+2}")
        k(f"v_add_f32_dpp v{B}, v{B}, v{B} row_ror:8 row_mask:0xf bank_mask:0xf")
        k(f"v_add_f32_dpp v{B+1}, v{B+1}, v{B+1} row_ror:8 row_mask:0xf bank_mask:0xf")
        k(f"v_cndmask_b32 v{B}, v{B}, v{B+1}, vcc")
    k("v_and_b32 v190, 8, v1")
    k("v_cmp_ne_u32 vcc, 0, v190")
    rscatter(JU); rscatter(JT)
def wjob_store_w(k):
    k("s_cmp_ge_u32 s2, 240")
    k(f"s_cselect_b32 s55, 0, {16 * 10 * 24576}")
    k(f"s_add_u32 s44, s{WSP}, {WS_WUP}")
    k(f"s_addc_u32 s45, s{WSP+1}, 0")
    k("s_mov_b32 s46, s55")
    k("s_mov_b32 s47, 0x00020000")
    for i in range(4): k(f"buffer_store_dwordx4 v[{JW+4*i}:{JW+4*i+3}], v{JD+i}, s[44:47], 0 offen sc1")
def wjob_store_rest(k):
    k("s_cmp_ge_u32 s2, 240")
    k(f"s_cselect_b32 s55, 0, {16 * 384 * 4}")
    k(f"s_add_u32 s44, s{WSP}, {WS_UT}")
    k(f"s_addc_u32 s45, s{WSP+1}, 0")
    k("s_mov_b32 s46, s55")
    k("s_mov_b32 s47, 0x00020000")
    k(f"buffer_atomic_add_f32 v{JU}, v{JD+4}, s[44:47], 0 offen")
    k(f"buffer_atomic_add_f32 v{JT}, v{JD+4}, s[44:47], 0 offen offset:768")
    wsrd(k, 48, 8 * 640 * 160, WS_WOP)
    k(f"buffer_store_dwordx4 v[{JWO}:{JWO+3}], v{JD+5}, s[48:51], 0 offen sc1")

QNS = 4
def phase2_loader(k):
    k.label("P0_LOADERS")
    k("s_barrier                        ; B_a2")
    if not os.environ.get("NO_CODEPF"):
        k("s_cmp_lg_u32 s8, 7")
        k("s_cbranch_scc1 F_NOCPF")
        k("s_getpc_b64 s[34:35]")
        k.label("F_PC")
        k("s_lshr_b32 s9, s2, 3")
        k("s_mul_i32 s9, s9, 18")
        k("v_add_u32 v2, s9, v1")
        k("v_lshlrev_b32 v2, 7, v2")
        k("v_cmp_gt_u32 vcc, 18, v1")
        k("s_mov_b32 s10, F_END-F_PC")
        k("v_cmp_gt_u32 s[36:37], s10, v2")
        k("s_and_b64 vcc, vcc, s[36:37]")
        k("s_and_saveexec_b64 s[36:37], vcc")
        k("s_cbranch_execz F_CPFX")
        k("global_load_dword v231, v2, s[34:35]")
        k.label("F_CPFX")
        k("s_mov_b64 exec, s[36:37]")
        k.label("F_NOCPF")
    if not os.environ.get("NO_TLB"):
        k("s_cmp_lg_u32 s8, 6")
        k("s_cbranch_scc1 F_NOTLB")
        wsrd(k, 16, WS_END, 0)
        srd(k, 20, OUTP, S * D * 2)
        k("s_lshr_b32 s9, s2, 3")
        k("s_lshl_b32 s9, s9, 4")
        k("v_add_u32 v2, s9, v1")
        k("v_lshlrev_b32 v2, 16, v2")
        k("s_mov_b64 exec, 0xffff")
        k("buffer_load_dword v229, v2, s[16:19], 0 offen")
        k("s_mov_b64 exec, -1")
        k("s_lshr_b32 s9, s2, 3")
        k("v_mov_b32 v2, s9")
        k("v_lshlrev_b32 v2, 17, v2")
        k("s_mov_b64 exec, 1")
        k("buffer_load_dword v228, v2, s[20:23], 0 offen")
        k("s_mov_b64 exec, -1")
        k.label("F_NOTLB")
    qkv_ids(k)
    VA, VB = 8, 12
    k("s_lshl_b32 s9, s11, 7")
    k("s_lshl_b32 s10, s31, 5")
    k("s_add_u32 s9, s9, s10")
    a_dma_rows32(k, VA, 9, 1280)
    k("v_lshrrev_b32 v2, 4, v1")
    k("v_bfe_u32 v3, v1, 2, 2")
    k("v_xor_b32 v3, v3, v2")
    k("v_lshlrev_b32 v3, 6, v3")
    k("v_and_b32 v4, 3, v1")
    k("v_lshl_add_u32 v3, v4, 4, v3")
    k("s_lshl_b32 s9, s31, 4")
    k("v_add_u32 v2, s9, v2")
    k("v_mul_u32_u24 v2, 3840, v2")
    k("s_lshl_b32 s9, s12, 8")
    k("v_add3_u32 v2, v2, v3, s9")
    for i in range(4):
        k(f"v_add_u32 v{VB+i}, {i*(4*3840-1024)}, v2")
    k("s_lshl_b32 s13, s31, 12")
    wsrd(k, 16, S * D * 2, WS_H)
    srd(k, 20, WQKVP, 640 * 3840)
    def dmaA(st):
        k(f"s_add_u32 m0, s13, {(st % QNS)*32768}")
        k(f"s_mov_b32 s14, {st*128}")
        for i in range(4):
            k(f"buffer_load_dwordx4 v{VA+i}, s[16:19], s14 offen offset:{i*1024} sc1 lds")
    def dmaB(st):
        k(f"s_add_u32 m0, s13, {(st % QNS)*32768 + 16384}")
        k(f"s_mov_b32 s14, {st*64*3840}")
        for i in range(4):
            k(f"buffer_load_dwordx4 v{VB+i}, s[20:23], s14 offen offset:{i*1024} lds")
    L = Loader(k, 10, QNS, dmaA, dmaB, 4, 4)
    k("s_cmp_ge_u32 s12, 15")
    k("s_cbranch_scc1 P2L_NOTILE")
    L.preloadB()
    if not os.environ.get("NO_WPF"):
        k("s_and_b32 s9, s11, 3")
        k("s_mul_i32 s9, s9, 224")
        k("s_mul_i32 s10, s31, 56")
        k("s_add_u32 s9, s9, s10")
        k("v_add_u32 v16, s9, v1")
        k("v_lshrrev_b32 v17, 1, v16")
        k("v_add_u32 v17, 192, v17")
        k("v_mul_u32_u24 v17, 3840, v17")
        k("v_and_b32 v16, 1, v16")
        k("v_lshl_add_u32 v17, v16, 7, v17")
        k("s_lshl_b32 s9, s12, 8")
        k("v_add_u32 v17, s9, v17")
        k("v_cmp_gt_u32 vcc, 56, v1")
        k("v_mov_b32 v16, 0x7ffffff0")
        k("v_cndmask_b32 v17, v16, v17, vcc")
        k("buffer_load_dword v231, v17, s[20:23], 0 offen")
    k.label("P2L_NOTILE")
    phase2_tables(k)
    k("s_barrier                        ; B_b")
    k(f"v_mov_b32 v16, {CTL}")
    k("ds_read_b32 v17, v16")
    k("s_waitcnt lgkmcnt(0)")
    k(f"v_readfirstlane_b32 s{NONCE}, v17")
    k("s_barrier                        ; B_c")
    k("s_cmp_ge_u32 s12, 15")
    k("s_cbranch_scc1 P2_SPARE")
    k("s_cmp_lg_u32 s8, 4")
    k("s_cbranch_scc1 P2L_GO")
    poll_range(k, "P2L_H", FL_H, lambda: k("s_lshl_b32 s9, s11, 4"), 16)
    k.label("P2L_GO")
    k("s_barrier                        ; B_d")
    mark(k, 2)
    L.run(tail=lambda: wjob_issue(k), prefetch=apf_loader(k, WS_H, S * D * 2, lambda: k("s_lshl_b32 s9, s11, 7"), 1280, 7, 1, 9, lambda: k("s_and_b32 s9, s12, 7"), 144, 17, 229))
    mark(k, 20)
    wjob_compute(k, "P2LJ")
    k("s_branch P3_START")

def last_arriver_flag(k, tag, lds_word, last, base, idx_sgpr, v=20):
    k(f"v_mov_b32 v{v}, {lds_word}")
    k(f"v_mov_b32 v{v+1}, 1")
    k("s_mov_b64 exec, 1")
    k(f"ds_add_rtn_u32 v{v+2}, v{v}, v{v+1}")
    k("s_waitcnt lgkmcnt(0)")
    k(f"v_readfirstlane_b32 s9, v{v+2}")
    k("s_mov_b64 exec, -1")
    k(f"s_cmp_lg_u32 s9, {last}")
    k(f"s_cbranch_scc1 {tag}_NL")
    set_flag(k, base, idx_sgpr, v)
    k.label(f"{tag}_NL")

def phase2_spare(k):
    k.label("P2_SPARE")
    k("s_cmp_lg_u32 s8, 4")
    k("s_cbranch_scc1 P2S_FLAG")
    k("s_cmp_ge_u32 s11, 4")
    k("s_cbranch_scc1 P2S_FLAG")
    poll_all(k, "P2S_ALLH", FL_H, 20)
    k("s_add_u32 s9, s11, 2")
    k("s_mul_i32 s9, s9, 2560")
    wsrd(k, 16, 4 * 3840 * 4, WS_MODP)
    wsrd(k, 20, 6 * 640 * 4, WS_MODV)
    for i in range(3):
        k(f"v_add_u32 v2, {64*i}, v1")
        k(f"v_lshlrev_b32 v{3+i}, 4, v2")
        if i == 2:
            k("v_cmp_gt_u32 vcc, 160, v2")
            k("v_mov_b32 v6, 0x7ffffff0")
            k(f"v_cndmask_b32 v{3+i}, v6, v{3+i}, vcc")
        for q in range(4):
            k(f"s_add_u32 s10, s9, {q*15360}")
            k(f"buffer_load_dwordx4 v[{8+16*i+4*q}:{11+16*i+4*q}], v{3+i}, s[16:19], s10 offen sc1")
    k("s_waitcnt vmcnt(0)")
    for i in range(3):
        B = 8 + 16 * i
        for r in range(4):
            k(f"v_add_f32 v{B+r}, v{B+r}, v{B+4+r}")
            k(f"v_add_f32 v{B+8+r}, v{B+8+r}, v{B+12+r}")
        for r in range(4): k(f"v_add_f32 v{B+r}, v{B+r}, v{B+8+r}")
        for r in range(4): bf16_round_f32(k, B + r, B + r, 60)
    k("s_cmp_lg_u32 s11, 2")
    k("s_cbranch_scc1 P2S_NOONE")
    for i in range(3):
        B = 8 + 16 * i
        for r in range(4): k(f"v_add_f32 v{B+r}, 1.0, v{B+r}")
        for r in range(4): bf16_round_f32(k, B + r, B + r, 60)
    k.label("P2S_NOONE")
    for i in range(3):
        k(f"buffer_store_dwordx4 v[{8+16*i}:{11+16*i}], v{3+i}, s[20:23], s9 offen sc1")
    k("s_waitcnt vmcnt(0)")
    set_flag(k, FL_M, 11)
    k.label("P2S_FLAG")
    wjob_issue(k)
    wjob_compute(k, "P2SJ")
    k("s_branch P3_START")

QA = dict(AF=40, BF=48, ACC=80, RA=212, RB=220, EA=176, GA=192)
def phase2_setup(k):
    RA, RB, EA, GA = QA["RA"], QA["RB"], QA["EA"], QA["GA"]
    k.label("P2_SETUP")
    qkv_ids(k)
    k("s_cmp_ge_u32 s12, 15")
    k("s_cbranch_scc1 P2_SETUP_END")
    k("v_and_b32 v55, 31, v1")
    k("v_lshrrev_b32 v54, 5, v1")
    k("v_bfe_u32 v52, v55, 1, 3")
    k("v_lshlrev_b32 v55, 7, v55")
    k("s_lshl_b32 s10, s8, 12")
    k("v_add_u32 v55, s10, v55")
    for ks in range(4):
        k(f"v_add_u32 v53, {2*ks}, v54")
        k("v_xor_b32 v53, v53, v52")
        k(f"v_lshl_add_u32 v{RA+ks}, v53, 4, v55")
        k(f"v_add_u32 v{RA+4+ks}, 65536, v{RA+ks}")
    k("v_lshrrev_b32 v55, 5, v1")
    k("v_bfe_u32 v54, v1, 2, 2")
    k("v_lshl_add_u32 v55, v55, 3, v54")
    k("v_lshlrev_b32 v55, 8, v55")
    k("v_bfe_u32 v52, v1, 4, 1")
    k("v_lshl_add_u32 v55, v52, 5, v55")
    k("v_and_b32 v52, 3, v1")
    k("v_lshl_add_u32 v55, v52, 3, v55")
    k("v_add_u32 v55, 16384, v55")
    for nt in range(4):
        k(f"v_xor_b32 v52, {nt}, v54")
        k(f"v_lshl_add_u32 v{RB+nt}, v52, 6, v55")
        k(f"v_add_u32 v{RB+4+nt}, 65536, v{RB+nt}")
    k("s_cmp_ge_u32 s12, 10")
    k("s_cbranch_scc1 P2S_V")
    k("s_cmp_ge_u32 s12, 5")
    k("s_cbranch_scc1 P2S_K")
    k(f"s_mov_b32 s16, {64*1280}")
    k("s_movk_i32 s17, 1280")
    k("s_lshl_b32 s10, s12, 5")
    k(f"s_mov_b32 s41, {hex(f2u(1.4426950408889634 / (20 ** 0.5)))}")
    k("s_branch P2S_QK")
    k.label("P2S_K")
    k(f"s_mov_b32 s16, {KV_HEAD}")
    k(f"s_movk_i32 s17, {KV_TILE}")
    k("s_sub_u32 s10, s12, 5")
    k("s_lshl_b32 s10, s10, 5")
    k("s_mov_b32 s41, 1.0")
    k.label("P2S_QK")
    k("s_lshl_b32 s42, s11, 2")
    k("s_add_u32 s42, s42, s8")
    k("s_mul_i32 s42, s42, s17")
    k("s_lshl_b32 s43, s8, 14")
    k("s_add_u32 s43, s43, 65536")
    k("s_branch P2_SETUP_END")
    k.label("P2S_V")
    k("s_lshl_b32 s42, s11, 2")
    k("s_add_u32 s42, s42, s8")
    k(f"s_mul_i32 s42, s42, {KV_TILE}")
    k("s_add_u32 s42, s42, 1280")
    k.label("P2_SETUP_END")
    k("s_lshr_b32 s14, s2, 2")
    k("s_and_b32 s13, s2, 3")

TBL = 144384
def phase2_tables(k):
    k("s_cmp_ge_u32 s12, 15")
    k("s_cbranch_scc1 P2T_END")
    k("v_lshlrev_b32 v30, 4, v1")
    k(f"v_add_u32 v30, {TBL}, v30        ; lane*16")
    k("s_cmp_ge_u32 s12, 10")
    k("s_cbranch_scc1 P2T_V")
    k("s_cmp_ge_u32 s12, 5")
    k("s_cselect_b32 s10, 5, 0")
    k(f"s_cselect_b32 s44, {KV_HEAD}, 0")
    k(f"s_cselect_b32 s45, 0, {64*1280}")
    k("s_or_b32 s44, s44, s45")
    k("s_sub_u32 s10, s12, s10")
    k("s_lshl_b32 s10, s10, 5")
    k(f"s_mul_hi_u32 s35, s10, {(1<<32)//5+1}")
    k("v_and_b32 v25, 31, v1")
    k("v_lshrrev_b32 v24, 5, v1")
    k("v_add_u32 v24, s10, v24")
    k("v_lshlrev_b32 v26, 4, v25")
    k("v_lshlrev_b32 v27, 3, v25")
    k("v_add_u32 v27, 1024, v27")
    for n in range(4):
        k("s_lshl_b32 s9, s31, 3")
        k(f"s_add_u32 s9, s9, {2*n}")
        k("v_add_u32 v18, s9, v24")
        k("v_mul_u32_u24 v19, 205, v18")
        k("v_lshrrev_b32 v19, 10, v19")
        k("v_mad_i32_i24 v20, v19, -5, v18")
        k("v_lshrrev_b32 v21, 1, v20")
        k("v_lshl_add_u32 v21, v21, 9, v26")
        k("v_and_b32 v22, 1, v20")
        k("v_lshl_add_u32 v21, v22, 3, v21")
        k("v_cmp_eq_u32 vcc, 4, v20")
        k("v_subrev_u32 v19, s35, v19")
        k("v_cndmask_b32 v21, v21, v27, vcc")
        k("v_mul_u32_u24 v19, 1280, v19")
        k(f"v_add_u32 v{32+n}, v21, v19")
    k("s_lshl_b32 s9, s31, 10")
    k("v_add_u32 v31, s9, v30")
    k("ds_write_b128 v31, v[32:35]")
    for n in range(5):
        k("s_mul_i32 s9, s31, 5")
        k(f"s_add_u32 s9, s9, {n}")
        k("s_lshl_b32 s14, s9, 6")
        k("v_add_u32 v18, s14, v1")
        k("v_mul_u32_u24 v19, 52429, v18")
        k("v_lshrrev_b32 v19, 23, v19          ; hh")
        k("v_mul_u32_u24 v20, 160, v19")
        k("v_sub_u32 v20, v18, v20             ; w")
        k("v_lshrrev_b32 v21, 6, v20")
        k("v_lshlrev_b32 v21, 1, v21")
        k("v_and_b32 v22, 1, v20")
        k("v_add_u32 v21, v21, v22")
        k("v_min_u32 v21, 4, v21")
        k("v_add_u32 v19, s35, v19             ; head")
        k("v_mad_u32_u24 v21, v19, 5, v21")
        k("v_subrev_u32 v21, s10, v21")
        k("v_cmp_gt_u32 vcc, 32, v21")
        k("v_mul_lo_u32 v19, s44, v19")
        k("v_lshl_add_u32 v19, v20, 3, v19")
        k("v_mov_b32 v22, 0x7ffffff0")
        k("v_cndmask_b32 v19, v22, v19, vcc")
        k("s_add_u32 s9, s9, 16")
        k("s_lshr_b32 s14, s9, 2")
        k("s_lshl_b32 s14, s14, 10")
        k("s_and_b32 s9, s9, 3")
        k("s_lshl_b32 s9, s9, 2")
        k("s_add_u32 s9, s9, s14")
        k("v_add_u32 v31, s9, v30")
        k("ds_write_b32 v31, v19")
    k("s_branch P2T_END")
    k.label("P2T_V")
    k("v_and_b32 v25, 31, v1")
    k("v_lshrrev_b32 v24, 5, v1")
    k("v_mul_u32_u24 v24, 336, v24")
    k("s_sub_u32 s10, s12, 10")
    k("s_lshl_b32 s10, s10, 7")
    k("s_lshl_b32 s9, s31, 5")
    k("s_add_u32 s10, s10, s9")
    k("v_add_u32 v18, s10, v25")
    k("v_mul_u32_u24 v19, 3277, v18")
    k("v_lshrrev_b32 v19, 16, v19")
    k("v_mul_u32_u24 v20, 20, v19")
    k("v_sub_u32 v20, v18, v20")
    k(f"s_mov_b32 s10, {KV_HEAD}")
    k("v_mul_lo_u32 v19, s10, v19")
    k("v_lshlrev_b32 v20, 4, v20")
    k("v_add3_u32 v19, v19, v20, v24")
    k("s_lshl_b32 s9, s31, 2")
    k("v_add_u32 v31, s9, v30")
    k("ds_write_b32 v31, v19")
    k.label("P2T_END")
    k("s_waitcnt lgkmcnt(0)")

def phase2_compute(k):
    AF, BF, ACC, RA, RB, EA, GA = (QA[x] for x in ("AF", "BF", "ACC", "RA", "RB", "EA", "GA"))
    k.label("P2_START")
    k("s_cmp_ge_u32 s12, 15")
    k("s_cbranch_scc1 P3_START")
    def reads(step):
        st, ks = divmod(step, 4); slot = st % QNS; sb = step & 1
        bs, off = slot >> 1, (slot & 1) * 32768
        a = f"ds_read_b128 v[{AF+4*sb}:{AF+4*sb+3}], v{RA+4*bs+ks} offset:{off}"
        out = []
        for nt in range(4):
            d = BF + (sb * 4 + nt) * 4
            g = [f"ds_read_b64_tr_b16 v[{d+2*j}:{d+2*j+1}], v{RB+4*bs+nt} offset:{off + (16*ks+4*j)*256}" for j in range(2)]
            out.append(([a] if nt == 0 else []) + g)
        return out
    def mf(swap):
        def f(step, nt):
            sb = step & 1; a = AF + 4 * sb; b = BF + (sb * 4 + nt) * 4; d = ACC + 16 * nt
            c = "0" if step == 0 else None
            return [mfma32(d, a, b, c) if swap else mfma32(d, b, a, c)]
        return f
    k("v_lshlrev_b32 v2, 4, v1")
    k(f"v_add_u32 v2, {TBL}, v2")
    for g in range(9): k(f"ds_read_b128 v[{EA+4*g}:{EA+4*g+3}], v2 offset:{1024*g}")
    k("s_waitcnt lgkmcnt(0)")
    k("s_cmp_ge_u32 s12, 10")
    k("s_cbranch_scc1 P2_V")
    for r in range(16): k(f"v_add_u32 v{EA+r}, s43, v{EA+r}")
    k("s_cmp_ge_u32 s12, 5")
    k("s_cbranch_scc1 P2_K")
    wsrd(k, 24, 32 * 64 * 1280, WS_Q)
    k("s_branch P2_QK")
    k.label("P2_K")
    wsrd(k, 24, 32 * KV_HEAD, WS_KV)
    k.label("P2_QK")
    k("s_barrier                        ; B_d")
    def qapf():
        if APF: apf_rows(k, WS_H, S * D * 2, lambda: k("s_lshl_b32 s9, s11, 7"), 1280, 7, 0, 10, lambda: k("s_and_b32 s9, s12, 7"), 160, 28, 229)
    qapf()
    compute_loop(k, 10, 4, reads, mf(False), 0, stamp=False)
    mark(k, 3)
    k("v_mov_b32 v2, s41")
    k("v_mov_b32 v3, s41")
    for nt in range(4):
        for j in range(4):
            a_ = ACC + 16 * nt + 4 * j
            t = 28 + 2 * (j % 4)
            k(f"v_pk_mul_f32 v[{a_}:{a_+1}], v[{a_}:{a_+1}], v[2:3]")
            k(f"v_pk_mul_f32 v[{a_+2}:{a_+3}], v[{a_+2}:{a_+3}], v[2:3]")
            k(f"v_cvt_pk_bf16_f32 v{t}, v{a_}, v{a_+1}")
            k(f"v_cvt_pk_bf16_f32 v{t+1}, v{a_+2}, v{a_+3}")
            k(f"ds_write_b64 v{EA+4*nt+j}, v[{t}:{t+1}]")
    k("v_lshlrev_b32 v2, 3, v1")
    k("v_add_u32 v2, s43, v2")
    k("s_waitcnt lgkmcnt(0)")
    for i in range(20):
        k(f"ds_read_b64 v[{ACC+2*i}:{ACC+2*i+1}], v2 offset:{512*i}")
        if i >= 9:
            k("s_waitcnt lgkmcnt(9)")
            k(f"buffer_store_dwordx2 v[{ACC+2*(i-9)}:{ACC+2*(i-9)+1}], v{GA+i-9}, s[24:27], s42 offen sc1")
    for i in range(11, 20):
        k(f"s_waitcnt lgkmcnt({19-i})")
        k(f"buffer_store_dwordx2 v[{ACC+2*i}:{ACC+2*i+1}], v{GA+i}, s[24:27], s42 offen sc1")
    k("s_branch P2_DONE")
    k.label("P2_V")
    wsrd(k, 24, 32 * KV_HEAD, WS_KV)
    k("s_barrier                        ; B_d")
    qapf()
    compute_loop(k, 10, 4, reads, mf(True), 0, stamp=False)
    mark(k, 3)
    for nt in range(4):
        for m in range(2):
            a_ = ACC + 16 * nt + 8 * m
            t = 28 + 4 * m
            for q in range(4):
                k(f"v_cvt_pk_bf16_f32 v{t+q}, v{a_+2*q}, v{a_+2*q+1}")
            k(f"buffer_store_dwordx4 v[{t}:{t+3}], v{EA+nt}, s[24:27], s42 offen offset:{672*m} sc1")
    k.label("P2_DONE")
    k("s_waitcnt vmcnt(0)")
    k("s_lshl_b32 s34, s12, 4")
    k("s_add_u32 s34, s34, s11")
    mark(k, 19)
    last_arriver_flag(k, "P2C", CTL + 4, 3, FL_QKV, 34)
    k("s_branch P3_START")

def phase3(k):
    from k_attn2 import STAGE, Q1, Q2, KA, KB, VF, SS, PP, OO, AK, AKB, AV, VDMA
    vm = VM(k)
    FLAG = CTL + 12
    k.label("P3_START")
    k("s_and_b32 s11, s2, 7")
    k("s_lshl_b32 s11, s11, 2")
    k("s_bfe_u32 s12, s2, 0x20003")
    k("s_add_u32 s11, s11, s12          ; head")
    k("s_lshr_b32 s12, s2, 5")
    k(f"s_mul_i32 s9, s11, {KV_HEAD}")
    k("s_lshl_b32 s13, s8, 10")
    k("s_add_u32 s9, s9, s13")
    k("v_lshlrev_b32 v4, 4, v1")
    k(f"v_add_u32 v{VDMA}, s9, v4")
    k("v_and_b32 v2, 31, v1")
    k("s_lshl_b32 s9, s12, 3")
    k("s_add_u32 s9, s9, s8")
    k("s_mul_i32 s9, s9, 1280")
    k("s_mul_i32 s10, s11, 81920")
    k("s_add_u32 s9, s9, s10")
    k("v_add_u32 v10, s9, v4")
    k("v_lshlrev_b32 v5, 3, v2")
    k("v_add_u32 v5, s9, v5")
    k("v_lshrrev_b32 v3, 5, v1          ; half")
    for sl in range(3):
        k(f"v_lshlrev_b32 v{AK+sl}, 4, v1")
        if sl: k(f"v_add_u32 v{AK+sl}, {sl*STAGE}, v{AK+sl}")
        k(f"v_lshlrev_b32 v{AKB+sl}, 3, v2")
        k(f"v_add_u32 v{AKB+sl}, {sl*STAGE + 1024}, v{AKB+sl}")
        k(f"v_mul_u32_u24 v{AV+sl}, 336, v3")
        k(f"v_lshl_add_u32 v{AV+sl}, v2, 4, v{AV+sl}")
        k(f"v_add_u32 v{AV+sl}, {sl*STAGE + 1280}, v{AV+sl}")
    k("s_lshl_b32 s9, s12, 8")
    k("s_lshl_b32 s10, s8, 5")
    k("s_add_u32 s9, s9, s10")
    k("v_add_u32 v4, s9, v2             ; token")
    k("v_mul_u32_u24 v4, 1280, v4")
    k("s_mul_i32 s9, s11, 40")
    k("v_add_u32 v4, s9, v4")
    k("v_lshl_add_u32 v11, v3, 3, v4")
    k("s_lshl_b32 s9, s12, 8")
    k("s_lshl_b32 s10, s8, 5")
    k("s_add_u32 s9, s9, s10")
    k("s_mul_i32 s10, s11, 40")
    for i in range(3):
        k(f"v_add_u32 v6, {64*i}, v1")
        k("v_mul_u32_u24 v7, 13108, v6")
        k("v_lshrrev_b32 v7, 16, v7")
        k("v_mul_u32_u24 v8, 5, v7")
        k("v_sub_u32 v8, v6, v8")
        k("v_add_u32 v7, s9, v7")
        if os.environ.get("EXP_O"):
            k("v_mul_u32_u24 v7, 40, v7")
            k("v_lshl_add_u32 v7, v8, 3, v7")
            k("s_mul_i32 s15, s11, 81920")
            k(f"v_add_u32 v{128+i}, s15, v7")
        else:
            k("v_mul_u32_u24 v7, 1280, v7")
            k("v_lshl_add_u32 v7, v8, 3, v7")
            k(f"v_add_u32 v{128+i}, s10, v7")
    k("v_cmp_gt_u32 vcc, 32, v1")
    k("v_mov_b32 v6, 0x7ffffff0")
    k("v_cndmask_b32 v130, v6, v130, vcc")
    for r in range(16): k(f"v_mov_b32 v{OO+r}, 0")
    wsrd(k, 16, 32 * KV_HEAD, WS_KV)
    wsrd(k, 20, S * D * 2, WS_Q)
    wsrd(k, 24, S * D * 2, WS_O)
    k("s_cmp_lg_u32 s8, 4")
    k("s_cbranch_scc1 P3_GO")
    k("s_mul_i32 s9, s11, 20")
    k("s_lshr_b32 s10, s9, 7")
    k("s_add_u32 s9, s9, 19")
    k("s_lshr_b32 s9, s9, 7")
    k("v_bfe_u32 v20, v1, 4, 1")
    k("s_sub_u32 s15, s9, s10")
    k("v_mul_u32_u24 v20, s15, v20")
    k("v_add_u32 v20, s10, v20")
    k("v_lshrrev_b32 v21, 5, v1")
    k("v_mul_u32_u24 v21, 5, v21")
    k("v_add3_u32 v20, v20, v21, 5")
    k("v_and_b32 v21, 15, v1")
    k("v_lshl_add_u32 v20, v20, 4, v21")
    k("v_lshlrev_b32 v20, 7, v20")
    k(f"v_add_u32 v20, {FL_QKV}, v20")
    flag_srd(k)
    poll(k, "P3_KV", 20, "-1", 21)
    k("v_bfe_u32 v20, v1, 1, 1")
    k("v_mul_u32_u24 v20, s15, v20")
    k("v_add_u32 v20, s10, v20")
    k("v_and_b32 v21, 1, v1")
    k("s_lshl_b32 s9, s12, 1")
    k("v_add_u32 v21, s9, v21")
    k("v_lshl_add_u32 v20, v20, 4, v21")
    k("v_lshlrev_b32 v20, 7, v20")
    k(f"v_add_u32 v20, {FL_QKV}, v20")
    poll(k, "P3_Q", 20, "0xf", 21)
    mark(k, 24)
    k.label("P3_GO")
    k("s_barrier                        ; B_g")
    mark(k, 4)
    def dma_item(st, slot, i):
        L = [f"s_add_u32 m0, s13, {slot*STAGE + 8192*i}", f"s_mov_b32 s14, {st*STAGE + 8192*i}"]
        return L, f"buffer_load_dwordx4 v{VDMA}, s[16:19], s14 offen sc1 lds"
    def emit_dma(st, slot, i):
        L, ld = dma_item(st, slot, i)
        for l in L: k(l)
        vm.issue(ld, ("kv", st, i))
    def emit_stage_first(st, slot):
        L, ld = dma_item(st, slot, 5)
        lab = f"ATT_NP_{st}"
        k("s_cmp_lg_u32 s8, 0")
        k(f"s_cbranch_scc1 {lab}")
        for l in L: k(l)
        k(ld)
        k.label(lab)
    vm.issue(f"buffer_load_dwordx4 v[{Q1}:{Q1+3}], v10, s[20:23], 0 offen sc1", "q")
    vm.issue(f"buffer_load_dwordx2 v[{Q2}:{Q2+1}], v5, s[20:23], 0 offen offset:1024 sc1", "q")
    emit_stage_first(0, 0)
    for i in range(5): emit_dma(0, 0, i)
    vm.wait({"q", ("kv", 0, 0), ("kv", 0, 1)})
    k("v_cmp_gt_u32 vcc, 32, v1")
    k(f"v_cndmask_b32 v{Q2}, 0, v{Q2}, vcc")
    k(f"v_cndmask_b32 v{Q2+1}, 0, v{Q2+1}, vcc")
    k("s_barrier")
    mark(k, 5)
    def rdK(t):
        st, tt = divmod(t, 16); sl = st % 3; b = t & 1
        return [f"ds_read_b128 v[{KA+4*b}:{KA+4*b+3}], v{AK+sl} offset:{tt*KV_TILE}",
                f"ds_read_b64 v[{KB+2*b}:{KB+2*b+1}], v{AKB+sl} offset:{tt*KV_TILE}"]
    def rdV(t):
        st, tt = divmod(t, 16); sl = st % 3; b = t & 1
        return [f"ds_read_b128 v[{VF+8*b+4*m}:{VF+8*b+4*m+3}], v{AV+sl} offset:{tt*KV_TILE + 672*m}" for m in range(2)]
    def M1(t): b = t & 1; return m16(SS + 16 * b, KA + 4 * b, Q1, "0")
    def M2(t): b = t & 1; d = SS + 16 * b; return m8(d, KB + 2 * b, Q2, f"v[{d}:{d+15}]")
    def PV(t, m): b = t & 1; return m16(OO, VF + 8 * b + 4 * m, PP + 4 * m, f"v[{OO}:{OO+15}]")
    NTL = 64
    bg = {}
    def put(t, f): bg.setdefault(t, []).append(f)
    def stage_items(st, t0, step):
        slot = st % 3
        put(t0, lambda: emit_stage_first(st, slot))
        for i in range(5): put(t0 + step * i, (lambda i=i: emit_dma(st, slot, i)))
    stage_items(1, 0, 2); stage_items(2, 14, 1); stage_items(3, 30, 2)
    def wd_addr():
        k("s_lshl_b32 s9, s2, 9")
        k("v_add_u32 v118, s9, v0")
        k("v_lshlrev_b32 v119, 4, v118")
        srd(k, 36, WDP_, 1536 * 1280)
        vm.issue("buffer_load_dwordx4 v[120:123], v119, s[36:39], 0 offen", "wd")
    def wd_dst():
        divconst(k, 124, 118, 80, 9, 131072)
        k("v_mul_u32_u24 v125, 80, v124")
        k("v_sub_u32 v125, v118, v125")
        divconst(k, 126, 125, 10, 9, 80)
        k("v_mul_u32_u24 v127, 10, v126")
        k("v_sub_u32 v125, v125, v127")
        k("v_and_b32 v127, 0xfffffff3, v124")
        k("v_bfe_u32 v119, v124, 2, 1")
        k("v_lshl_or_b32 v127, v119, 3, v127")
        k("v_bfe_u32 v119, v124, 3, 1")
        k("v_lshl_or_b32 v127, v119, 2, v127")
        k(f"s_mov_b32 s9, {1536*160}")
        k("v_mul_lo_u32 v126, s9, v126")
        k("v_mul_u32_u24 v127, 160, v127")
        k("v_lshlrev_b32 v125, 4, v125")
        k("v_add3_u32 v119, v126, v125, v127")
        k("s_mov_b32 s9, 122880")
        k("v_cmp_gt_u32 vcc, s9, v118")
        k("v_mov_b32 v124, 0x7ffffff0")
        k("v_cndmask_b32 v119, v124, v119, vcc")
        wsrd(k, 36, 8 * 1536 * 160, WS_WDP)
    put(15, wd_addr); put(20, wd_dst)
    put(31, lambda: vm.issue("buffer_store_dwordx4 v[120:123], v119, s[36:39], 0 offen sc1", "wdst"))
    def only_job_waves(tag, f):
        def g():
            k("s_cmp_lt_u32 s8, 4")
            k(f"s_cbranch_scc1 P3_J{tag}")
            f()
            k.label(f"P3_J{tag}")
        return g
    put(5, only_job_waves("a", lambda: wjob_store_w(k)))
    put(6, only_job_waves("b", lambda: wjob_store_rest(k)))
    def job_flag():
        k("s_cmp_lg_u32 s8, 4")
        k("s_cbranch_scc1 P3_NOTF")
        set_flag(k, FL_T, 2, 188)
        k.label("P3_NOTF")
    put(15, job_flag)
    def only_wave(w, tag, f):
        def g():
            k(f"s_cmp_lg_u32 s8, {w}")
            k(f"s_cbranch_scc1 P3_W{tag}")
            f()
            k.label(f"P3_W{tag}")
        return g
    put(55, only_wave(1, "ta", lambda: check_all_issue(k, FL_T, 132)))
    def tfin():
        k("s_waitcnt vmcnt(0)")
        check_all_finish(k, "P3_TALL", FL_T, 132)
    put(61, only_wave(1, "tb", tfin))
    def pf_lines(off, nbytes, base_fn, per, vtag):
        def f():
            wsrd(k, 40, nbytes, off)
            base_fn()
            k("s_lshr_b32 s10, s2, 3")
            k(f"s_mul_i32 s10, s10, {per}")
            k("s_add_u32 s9, s9, s10")
            k("v_add_u32 v118, s9, v0")
            k("v_lshlrev_b32 v118, 7, v118")
            k(f"v_cmp_gt_u32 vcc, {per}, v0")
            k("v_mov_b32 v124, 0x7ffffff0")
            k("v_cndmask_b32 v118, v124, v118, vcc")
            vm.issue(f"buffer_load_dword v{vtag}, v118, s[40:43], 0 offen", "pf")
        return f
    if not os.environ.get("NO_PRETOUCH"):
        def pretouch():
            wsrd(k, 40, WS_X1 + S * D * 2 - WS_O, WS_O)
            k("s_mul_i32 s9, s2, 160")
            k("v_add_u32 v118, s9, v0")
            k("v_lshlrev_b32 v118, 7, v118")
            k("v_cmp_gt_u32 vcc, 160, v0")
            k("v_mov_b32 v124, 0x7ffffff0")
            k("v_cndmask_b32 v118, v124, v118, vcc")
            vm.issue("buffer_load_dword v229, v118, s[40:43], 0 offen", "pf")
        put(35, pretouch)
    if not os.environ.get("NO_WPF"):
        put(49, pf_lines(WS_WOP, 8 * 640 * 160, lambda: k("s_mov_b32 s9, 0"), 200, 231))
        def upbase():
            k("s_bfe_u32 s9, s2, 0x20001")
            k("s_mul_i32 s9, s9, 7680")
        put(53, pf_lines(WS_WUP, 16 * 10 * 24576, upbase, 240, 230))
    SEQ = os.environ.get("ATT_SEQ", "W0 M1 RKa RKb e0 e1 e2 c0 e3 P1 RV0 RV1 e4 c1 e5 e6 M2 c2 e7 e8 c3 e9 e10 P0 BG c4 e11 e12 c5 e13 e14 e15 c6 c7")
    for r in rdK(0) + rdK(1) + rdV(0): k(r)
    k("s_waitcnt lgkmcnt(4)")
    k(M1(0)); k(M2(0))
    for t in range(NTL):
        s = SS + 16 * (t & 1)
        st, tt = divmod(t, 16)
        if t == 4:
            vm.wait({("kv", 0, i) for i in range(5)})
            k("s_barrier")
        if tt == 14 and st + 1 < 4:
            k("s_waitcnt vmcnt(0)")
            k("s_barrier")
        have_next = t + 1 < NTL
        rk = rdK(t + 2) if t + 2 < NTL else []
        rv = rdV(t + 1) if have_next else []
        nrd = len(rk) + len(rv)
        for tok in SEQ.split():
            if tok[0] == "e": i = int(tok[1:]); k(f"v_exp_f32 v{s+i}, v{s+i}")
            elif tok[0] == "c": q = int(tok[1:]); k(f"v_cvt_pk_bf16_f32 v{PP+q}, v{s+2*q}, v{s+2*q+1}")
            elif tok == "W2":
                if have_next: k("s_waitcnt lgkmcnt(2)")
            elif tok == "W0": k("s_waitcnt lgkmcnt(0)")
            elif tok == "M1":
                if have_next: k(M1(t + 1))
            elif tok == "M2":
                if have_next: k(M2(t + 1))
            elif tok == "RKa":
                if rk: k(rk[0])
            elif tok == "RKb":
                if rk: k(rk[1])
            elif tok == "RV0":
                if rv: k(rv[0])
            elif tok == "RV1":
                if rv: k(rv[1])
            elif tok == "WV": k(f"s_waitcnt lgkmcnt({nrd})")
            elif tok == "BG":
                for f in bg.get(t, []): f()
            elif tok == "P0": k(PV(t, 0))
            elif tok == "P1":
                if t > 0: k(PV(t - 1, 1))
    k(PV(NTL - 1, 1))
    mark(k, 6)
    def finish(check):
        k(f"v_mov_b32 v2, v{OO+8}")
        k(f"v_mov_b32 v3, v{OO+8}")
        k("v_permlane32_swap_b32 v2, v3")
        if check:
            k("s_mov_b32 s9, 0x21800000         ; 2^-60")
            k("s_mov_b32 s10, 0x5d800000        ; 2^60")
            k("v_cmp_le_f32 vcc, s9, v3")
            k("v_cmp_ge_f32 s[28:29], s10, v3")
            k("s_and_b64 s[28:29], s[28:29], vcc")
            k("s_movk_i32 s9, 0x207")
            for r in range(8):
                k(f"v_cmp_class_f32 vcc, v{OO+r}, s9")
                k("s_andn2_b64 s[28:29], s[28:29], vcc")
            k("s_mov_b32 s34, -1")
            k("s_mov_b32 s35, 0")
            for r in range(8, 12):
                k(f"v_cmp_class_f32 vcc, v{OO+r}, s9")
                k("s_and_b64 vcc, vcc, s[34:35]")
                k("s_andn2_b64 s[28:29], s[28:29], vcc")
            k("s_cmp_eq_u64 s[28:29], -1")
            k("s_cbranch_scc1 ATT_OK")
            k("v_mov_b32 v2, 1")
            k(f"v_mov_b32 v5, {FLAG}")
            k("ds_write_b32 v5, v2")
            k.label("ATT_OK")
            k("s_waitcnt lgkmcnt(0)")
            k("s_barrier")
            k(f"v_mov_b32 v5, {FLAG}")
            k("ds_read_b32 v2, v5")
            k("s_waitcnt lgkmcnt(0)")
            k("v_readfirstlane_b32 s9, v2")
            k("s_cmp_lg_u32 s9, 0")
            k("s_cbranch_scc1 ATT_SLOW")
        k("v_rcp_f32 v3, v3")
        for r in range(12): k(f"v_mul_f32 v{OO+r}, v{OO+r}, v3")
        for q in range(6): k(f"v_cvt_pk_bf16_f32 v{PP+q}, v{OO+2*q}, v{OO+2*q+1}")
        k("v_and_b32 v4, 31, v1")
        k("v_mul_u32_u24 v4, 40, v4")
        k("v_lshrrev_b32 v5, 5, v1")
        k("v_lshl_add_u32 v4, v5, 3, v4")
        k("s_lshl_b32 s9, s8, 11")
        k("v_add_u32 v4, s9, v4")
        k(f"ds_write_b64 v4, v[{PP}:{PP+1}]")
        k(f"ds_write_b64 v4, v[{PP+2}:{PP+3}] offset:16")
        k("s_mov_b32 exec_hi, 0")
        k(f"ds_write_b64 v4, v[{PP+4}:{PP+5}] offset:32")
        k("s_mov_b64 exec, -1")
        k("s_waitcnt lgkmcnt(0)")
        k("s_branch P4_STAGED")
    finish(True)
    k.label("ATT_SLOW")
    k("s_waitcnt vmcnt(0)")
    for r in range(16): k(f"v_mov_b32 v{OO+r}, 0")
    k("v_mov_b32 v2, 0xff7fffff")
    k("s_mov_b32 s15, 0")
    k.label("ATT_SLOW_STAGE")
    k("s_barrier")
    k(f"s_mul_i32 s10, s15, {STAGE}")
    for i in range(5):
        k(f"s_add_u32 m0, s13, {8192*i}")
        k(f"s_add_u32 s14, s10, {8192*i}")
        k(f"buffer_load_dwordx4 v{VDMA}, s[16:19], s14 offen sc1 lds")
    k("s_cmp_lg_u32 s8, 0")
    k("s_cbranch_scc1 ATT_SLOW_NP")
    k(f"s_add_u32 m0, s13, {8192*5}")
    k(f"s_add_u32 s14, s10, {8192*5}")
    k(f"buffer_load_dwordx4 v{VDMA}, s[16:19], s14 offen sc1 lds")
    k.label("ATT_SLOW_NP")
    k("s_waitcnt vmcnt(0)")
    k("s_barrier")
    k(f"v_mov_b32 v5, v{AK}")
    k(f"v_mov_b32 v6, v{AKB}")
    k(f"v_mov_b32 v7, v{AV}")
    k("s_mov_b32 s9, 0")
    k.label("ATT_SLOW_TILE")
    k(f"ds_read_b128 v[{KA}:{KA+3}], v5")
    k(f"ds_read_b64 v[{KB}:{KB+1}], v6")
    k(f"ds_read_b128 v[{VF}:{VF+3}], v7")
    k(f"ds_read_b128 v[{VF+4}:{VF+7}], v7 offset:672")
    k("s_waitcnt lgkmcnt(0)")
    k(m16(SS, KA, Q1, "0"))
    k(m8(SS, KB, Q2, f"v[{SS}:{SS+15}]"))
    k(f"v_add_u32 v5, {KV_TILE}, v5")
    k(f"v_add_u32 v6, {KV_TILE}, v6")
    k(f"v_add_u32 v7, {KV_TILE}, v7")
    k(f"v_max_f32 v108, v{SS}, v{SS+1}")
    for r in range(2, 16): k(f"v_max_f32 v108, v108, v{SS+r}")
    k("v_mov_b32 v109, v108")
    k("v_permlane32_swap_b32 v108, v109")
    k("v_max_f32 v108, v108, v109")
    k("v_max_f32 v108, v108, v2")
    k("v_sub_f32 v109, v2, v108")
    k("v_exp_f32 v109, v109")
    k("v_mov_b32 v2, v108")
    for r in range(16): k(f"v_sub_f32 v{SS+r}, v{SS+r}, v108")
    for r in range(16): k(f"v_exp_f32 v{SS+r}, v{SS+r}")
    for r in range(16): k(f"v_mul_f32 v{OO+r}, v{OO+r}, v109")
    for q in range(8): k(f"v_cvt_pk_bf16_f32 v{PP+q}, v{SS+2*q}, v{SS+2*q+1}")
    k(m16(OO, VF, PP, f"v[{OO}:{OO+15}]"))
    k(m16(OO, VF + 4, PP + 4, f"v[{OO}:{OO+15}]"))
    k("s_add_u32 s9, s9, 1")
    k("s_cmp_lt_u32 s9, 16")
    k("s_cbranch_scc1 ATT_SLOW_TILE")
    k("s_add_u32 s15, s15, 1")
    k("s_cmp_lt_u32 s15, 4")
    k("s_cbranch_scc1 ATT_SLOW_STAGE")
    k("s_barrier")
    finish(False)

def narrow_ids(k):
    k("s_and_b32 s3, s2, 7")
    k("s_lshr_b32 s13, s2, 3")
    k("s_lshl_b32 s14, s3, 2")
    k("s_and_b32 s15, s13, 3")
    k("s_add_u32 s11, s14, s15")
    k("s_lshr_b32 s12, s13, 2")
    k("s_and_b32 s28, s31, 1")
    k("s_lshr_b32 s29, s31, 1           ; k half")
    k("s_lshl_b32 s9, s11, 6")
    k("s_lshl_b32 s10, s28, 5")
    k("s_add_u32 s30, s9, s10")

RESL, GTL = 147456, 157696
def narrow_res_dma(k, resid_is_input, gate_idx):
    if resid_is_input: srd(k, 24, XP, S * D * 2)
    else: wsrd(k, 24, S * D * 2, WS_X1)
    wsrd(k, 36, 6 * 640 * 4, WS_MODV)
    k("v_and_b32 v16, 255, v0")
    k("s_lshl_b32 s9, s11, 6")
    k("s_mul_i32 s10, s12, 160")
    for i in range(3):
        k(f"v_add_u32 v17, {256*i}, v16")
        k("v_mul_u32_u24 v18, 6554, v17")
        k("v_lshrrev_b32 v18, 16, v18        ; row")
        k("v_mul_u32_u24 v19, 10, v18")
        k("v_sub_u32 v19, v17, v19           ; chunk")
        k("v_add_u32 v18, s9, v18")
        k("v_mul_u32_u24 v18, 1280, v18")
        k("v_lshl_add_u32 v18, v19, 4, v18")
        k("v_add_u32 v18, s10, v18")
        if i == 2:
            k("v_cmp_gt_u32 vcc, 640, v17")
            k("v_mov_b32 v19, 0x7ffffff0")
            k("v_cndmask_b32 v18, v19, v18, vcc")
        k("s_lshl_b32 s14, s31, 10")
        k(f"s_add_u32 m0, s14, {RESL + 4096*i}")
        if i == 2:
            k("s_cmp_ge_u32 s31, 2")
            k("s_cbranch_scc1 NRD_SKIP%d" % gate_idx)
        k("buffer_load_dwordx4 v18, s[24:27], 0 offen sc1 lds")
        if i == 2: k.label("NRD_SKIP%d" % gate_idx)
    k("s_cmp_lg_u32 s31, 3")
    k("s_cbranch_scc1 NRD_NG%d" % gate_idx)
    k("v_lshlrev_b32 v18, 4, v1")
    k("s_mul_i32 s14, s12, 320")
    k(f"s_add_u32 s14, s14, {gate_idx*2560}")
    k(f"s_mov_b32 m0, {GTL}")
    k("s_mov_b32 exec_lo, 0xfffff")
    k("s_mov_b32 exec_hi, 0")
    k("buffer_load_dwordx4 v18, s[36:39], s14 offen sc1 lds")
    k("s_mov_b64 exec, -1")
    k.label("NRD_NG%d" % gate_idx)

def narrow_loader_setup(k, Kdim, a_off, b_off):
    KH = Kdim // 2; NST = KH // 64; lda = Kdim * 2
    VA, VB, NS = 8, 12, 4
    k(f"s_mul_i32 s34, s29, {KH*2}")
    a_dma_rows32(k, VA, 30, lda, 34)
    k("v_lshlrev_b32 v2, 4, v1")
    k(f"s_mul_i32 s9, s12, {Kdim*160}")
    k(f"s_mul_i32 s10, s29, {KH*160}")
    k("s_add_u32 s9, s9, s10")
    k("s_mul_i32 s10, s28, 5120")
    k("s_add_u32 s9, s9, s10")
    k(f"v_add_u32 v{VB}, s9, v2")
    k(f"v_add_u32 v{VB+1}, 4096, v{VB}")
    k("s_lshl_b32 s13, s31, 12")
    k("s_mul_i32 s15, s29, 10240")
    k("s_mul_i32 s10, s28, 5120")
    k("s_add_u32 s15, s15, s10")
    wsrd(k, 16, S * Kdim * 2, a_off)
    wsrd(k, 20, 8 * Kdim * 160, b_off)
    def dmaA(st):
        k(f"s_add_u32 m0, s13, {(st % NS)*16384}")
        k(f"s_mov_b32 s14, {st*128}")
        for i in range(4):
            k(f"buffer_load_dwordx4 v{VA+i}, s[16:19], s14 offen offset:{i*1024} sc1 lds")
    def dmaB(st):
        slot = st % NS
        k(f"s_add_u32 m0, s15, {65536 + slot*20480}")
        k(f"s_mov_b32 s14, {st*10240}")
        for i in range(4):
            k(f"buffer_load_dwordx4 v{VB}, s[20:23], s14 offen offset:{i*1024} sc1 lds")
        k(f"s_add_u32 m0, s15, {65536 + slot*20480 + 4096}")
        k("s_nop 0")
        k(f"buffer_load_dwordx4 v{VB+1}, s[20:23], s14 offen sc1 lds")
    return Loader(k, NST, NS, dmaA, dmaB, 4, 5)

def narrow_compute(k, tag, Kdim, resid_is_input, gate_idx, final, pre_barrier):
    KH = Kdim // 2; NST = KH // 64; NS = 4
    RA, RB, AF, BF, ACC, RES, GT = 4, 6, 12, 28, 68, 108, 120
    k("v_and_b32 v2, 15, v1")
    k("v_lshrrev_b32 v3, 4, v1          ; g")
    k("v_lshrrev_b32 v10, 1, v2")
    k("v_lshlrev_b32 v2, 7, v2")
    k("s_lshl_b32 s13, s8, 12")
    k("v_add_u32 v2, s13, v2")
    for ks in range(2):
        k(f"v_add_u32 v11, {4*ks}, v3")
        k("v_xor_b32 v11, v11, v10")
        k(f"v_lshl_add_u32 v{RA+ks}, v11, 4, v2")
    k("v_lshrrev_b32 v2, 5, v1")
    k("v_lshlrev_b32 v2, 4, v2")
    k("v_bfe_u32 v10, v1, 4, 1")
    k("v_lshl_add_u32 v2, v10, 2, v2")
    k("v_bfe_u32 v10, v1, 2, 2")
    k("v_add_u32 v2, v2, v10")
    k("v_mul_u32_u24 v2, 160, v2")
    k("v_and_b32 v10, 3, v1")
    k("v_lshl_add_u32 v2, v10, 3, v2")
    k("s_mul_i32 s10, s29, 10240")
    k("s_add_u32 s10, s10, 65536")
    k(f"v_add_u32 v{RB}, s10, v2")
    k(f"v_add_u32 v{RB+1}, 40960, v{RB}")
    k("v_and_b32 v2, 15, v1")
    k("s_lshl_b32 s10, s29, 4")
    k("s_add_u32 s10, s10, s30")
    k("v_add_u32 v2, s10, v2")
    k("v_mul_u32_u24 v8, 1280, v2")
    k("s_mul_i32 s10, s12, 160")
    k("v_lshl_add_u32 v8, v3, 3, v8")
    k("v_add_u32 v8, s10, v8")
    k("s_mul_i32 s10, s12, 320")
    k("v_lshlrev_b32 v9, 4, v3")
    k("v_add_u32 v9, s10, v9")
    if final: srd(k, 32, OUTP, S * D * 2)
    else: wsrd(k, 32, S * D * 2, WS_X1)
    XL, XG = 144, 148
    EXB = 0 if final else 16384
    k("v_lshlrev_b32 v10, 4, v1")
    k("s_mul_i32 s9, s8, 5120")
    k(f"s_add_u32 s9, s9, {EXB}")
    k("v_add_u32 v151, s9, v10")
    k("s_xor_b32 s10, s8, 2")
    k("s_mul_i32 s10, s10, 5120")
    k(f"s_add_u32 s10, s10, {EXB}")
    k("v_add_u32 v152, s10, v10")
    k("v_and_b32 v10, 15, v1")
    k("s_lshl_b32 s10, s29, 4")
    k("s_lshl_b32 s9, s28, 5")
    k("s_add_u32 s10, s10, s9")
    k("v_add_u32 v11, s10, v10")
    k("v_mul_u32_u24 v11, 160, v11")
    k("v_lshrrev_b32 v140, 4, v1")
    k("v_lshl_add_u32 v11, v140, 3, v11")
    k(f"v_add_u32 v153, {RESL}, v11")
    k("v_lshlrev_b32 v140, 4, v140")
    k(f"v_add_u32 v154, {GTL}, v140")
    k("s_lshl_b32 s10, s29, 4")
    k("s_add_u32 s10, s10, s30")
    k("v_add_u32 v11, s10, v10")
    k("v_lshlrev_b32 v155, 6, v11")
    k("s_mul_i32 s9, s8, 3072")
    k(f"s_add_u32 s9, s9, {EXB + 20480}")
    k("s_lshl_b32 s10, s29, 4")
    k("s_add_u32 s10, s10, s30")
    k("s_mul_i32 s40, s12, 160")
    for i in range(3):
        k(f"v_add_u32 v10, {64*i}, v1")
        k("v_mul_u32_u24 v11, 6554, v10")
        k("v_lshrrev_b32 v11, 16, v11        ; row")
        k("v_mul_u32_u24 v140, 10, v11")
        k("v_sub_u32 v140, v10, v140         ; chunk")
        k("v_lshlrev_b32 v140, 4, v140")
        k("v_mul_u32_u24 v141, 176, v11")
        k(f"v_add3_u32 v{XL+i}, v141, v140, s9")
        if os.environ.get("EXP_X1") and not final:
            k("v_add_u32 v11, s10, v11")
            k("v_mul_u32_u24 v11, 160, v11")
            k("s_mul_i32 s41, s12, 81920")
            k(f"v_add3_u32 v{XG+i}, v11, v140, s41")
        else:
            k("v_add_u32 v11, s10, v11")
            k("v_mul_u32_u24 v11, 1280, v11")
            k(f"v_add3_u32 v{XG+i}, v11, v140, s40")
    k("v_cmp_gt_u32 vcc, 32, v1")
    k("v_mov_b32 v10, 0x7ffffff0")
    k(f"v_cndmask_b32 v{XG+2}, v10, v{XG+2}, vcc")
    k("v_and_b32 v10, 15, v1")
    k("v_mul_u32_u24 v10, 176, v10")
    k("v_lshrrev_b32 v11, 4, v1")
    k("v_lshlrev_b32 v11, 3, v11")
    k("v_add3_u32 v147, v10, v11, s9")
    pre_barrier()
    if APF: apf_rows(k, WS_G if final else WS_O, S * Kdim * 2, lambda: k("s_lshl_b32 s9, s11, 6"), Kdim * 2, 6, 0, NST,
                     lambda: k("s_mov_b32 s9, s12"), 128 * NST // 8, 10, 229, khalf=KH * 2)
    def reads(step):
        st, ks = divmod(step, 2); slot = st % NS; sb = step & 1
        a = [f"ds_read_b128 v[{AF+(sb*2+mb)*4}:{AF+(sb*2+mb)*4+3}], v{RA+ks} offset:{slot*16384 + mb*2048}" for mb in range(2)]
        out = []
        for nt in range(5):
            d = BF + (sb * 5 + nt) * 4
            g = [f"ds_read_b64_tr_b16 v[{d+2*j}:{d+2*j+1}], v{RB+(slot>>1)} offset:{(slot&1)*20480 + (32*ks+8*j)*160 + nt*32}" for j in range(2)]
            out.append((a if nt == 0 else []) + g)
        return out
    def mf(step, nt):
        sb = step & 1
        return [mfma16(ACC + (nt * 2 + mb) * 4, BF + (sb * 5 + nt) * 4, AF + (sb * 2 + mb) * 4, "0" if step == 0 else None) for mb in range(2)]
    compute_loop(k, NST, 2, reads, mf, 0, stamp=False, hooks={-1: lambda: mark(k, 21 if final else 23)})
    mark(k, 9 if not final else 15)
    k(f"s_cmp_eq_u32 s29, 0")
    k(f"s_cbranch_scc1 {tag}_KH0")
    for nt in range(5):
        d = ACC + (nt * 2 + 0) * 4
        k(f"ds_write_b128 v151, v[{d}:{d+3}] offset:{1024*nt}")
    for nt in range(5):
        for r in range(0, 4, 2): k(f"v_pk_mov_b32 v[{ACC+(nt*2)*4+r}:{ACC+(nt*2)*4+r+1}], v[{ACC+(nt*2+1)*4+r}:{ACC+(nt*2+1)*4+r+1}], v[{ACC+(nt*2+1)*4+r}:{ACC+(nt*2+1)*4+r+1}] op_sel:[0,1]")
    k(f"s_branch {tag}_JOIN")
    k.label(f"{tag}_KH0")
    for nt in range(5):
        d = ACC + (nt * 2 + 1) * 4
        k(f"ds_write_b128 v151, v[{d}:{d+3}] offset:{1024*nt}")
    k.label(f"{tag}_JOIN")
    for nt in range(5):
        k(f"ds_read_b64 v[{RES+2*nt}:{RES+2*nt+1}], v153 offset:{32*nt}")
        k(f"ds_read_b128 v[{GT+4*nt}:{GT+4*nt+3}], v154 offset:{64*nt}")
    k("s_waitcnt lgkmcnt(10)")
    k("s_barrier")
    for nt in range(5):
        k(f"ds_read_b128 v[{BF+4*nt}:{BF+4*nt+3}], v152 offset:{1024*nt}")
    st_sc = "" if final else " sc1"
    PKD = 12
    for nt in range(5):
        d = ACC + nt * 8
        k(f"s_waitcnt lgkmcnt({4 - nt + (nt > 0) * min(nt, 1) * nt})" if False else f"s_waitcnt lgkmcnt({4 - nt + nt})" if False else f"s_waitcnt lgkmcnt(4)")
        for r in range(0, 4, 2): k(f"v_pk_add_f32 v[{d+r}:{d+r+1}], v[{d+r}:{d+r+1}], v[{BF+4*nt+r}:{BF+4*nt+r+1}]")
        k(f"v_lshlrev_b32 v22, 16, v{RES+2*nt}")
        k(f"v_and_b32 v23, 0xffff0000, v{RES+2*nt}")
        k(f"v_lshlrev_b32 v24, 16, v{RES+2*nt+1}")
        k(f"v_and_b32 v25, 0xffff0000, v{RES+2*nt+1}")
        for r in range(0, 4, 2): k(f"v_pk_fma_f32 v[{22+r}:{23+r}], v[{d+r}:{d+r+1}], v[{GT+4*nt+r}:{GT+4*nt+r+1}], v[{22+r}:{23+r}]")
        k(f"v_cvt_pk_bf16_f32 v{PKD+2*nt}, v22, v23")
        k(f"v_cvt_pk_bf16_f32 v{PKD+2*nt+1}, v24, v25")
        k(f"ds_write_b64 v147, v[{PKD+2*nt}:{PKD+2*nt+1}] offset:{32*nt}")
    k("s_waitcnt lgkmcnt(0)")
    for i in range(3): k(f"ds_read_b128 v[{BF+4*i}:{BF+4*i+3}], v{144+i}")
    for i in range(3):
        k(f"s_waitcnt lgkmcnt({2-i})")
        k(f"buffer_store_dwordx4 v[{BF+4*i}:{BF+4*i+3}], v{148+i}, s[32:35], 0 offen{st_sc}")
    if not final:
        for nt in range(5):
            t = PKD + 2 * nt
            k(f"v_lshlrev_b32 v22, 16, v{t}")
            k(f"v_and_b32 v23, 0xffff0000, v{t}")
            k(f"v_lshlrev_b32 v24, 16, v{t+1}")
            k(f"v_and_b32 v25, 0xffff0000, v{t+1}")
            if nt == 0:
                k("v_pk_add_f32 v[26:27], v[22:23], v[24:25]")
                k("v_pk_mul_f32 v[44:45], v[22:23], v[22:23]")
            else:
                k("v_pk_add_f32 v[26:27], v[26:27], v[22:23]")
                k("v_pk_fma_f32 v[44:45], v[22:23], v[22:23], v[44:45]")
                k("v_pk_add_f32 v[26:27], v[26:27], v[24:25]")
            k("v_pk_fma_f32 v[44:45], v[24:25], v[24:25], v[44:45]")
        k("v_add_f32 v26, v26, v27")
        k("v_add_f32 v27, v44, v45")
        for sw in ("v_permlane32_swap_b32", "v_permlane16_swap_b32"):
            k("v_mov_b32 v44, v26"); k("v_mov_b32 v45, v27")
            k(f"{sw} v26, v44"); k(f"{sw} v27, v45")
            k("v_add_f32 v26, v26, v44"); k("v_add_f32 v27, v27, v45")
        wsrd(k, 24, 2048 * 64, WS_STAT)
        k("s_lshl_b32 s10, s12, 3")
        k("s_mov_b64 exec, 0xffff")
        k("buffer_store_dwordx2 v[26:27], v155, s[24:27], s10 offen sc1")
        k("s_mov_b64 exec, -1")

def up_ids(k):
    k("s_and_b32 s3, s2, 7")
    k("s_lshr_b32 s13, s2, 3")
    k("s_and_b32 s14, s3, 1")
    k("s_lshl_b32 s14, s14, 3")
    k("s_and_b32 s15, s13, 7")
    k("s_add_u32 s11, s14, s15")
    k("s_lshr_b32 s14, s3, 1")
    k("s_lshl_b32 s14, s14, 2")
    k("s_lshr_b32 s15, s13, 3")
    k("s_add_u32 s12, s14, s15")

def up_loader_setup(k):
    VA, VB, NS = 8, 12, 4
    k("s_lshl_b32 s9, s11, 7")
    k("s_lshl_b32 s10, s31, 5")
    k("s_add_u32 s9, s9, s10")
    a_dma_rows32(k, VA, 9, 1280)
    k("v_lshlrev_b32 v2, 4, v1")
    k("s_mul_i32 s9, s31, 6144")
    k(f"s_mul_i32 s10, s12, {10*24576}")
    k("s_add_u32 s9, s9, s10")
    k(f"v_add_u32 v{VB}, s9, v2")
    k(f"v_add_u32 v{VB+1}, 4096, v{VB}")
    k("s_lshl_b32 s13, s31, 12")
    k("s_mul_i32 s15, s31, 6144")
    wsrd(k, 16, S * D * 2, WS_X1)
    wsrd(k, 20, 16 * 10 * 24576, WS_WUP)
    def dmaA(st):
        k(f"s_add_u32 m0, s13, {(st % NS)*16384}")
        k(f"s_mov_b32 s14, {st*128}")
        for i in range(4):
            k(f"buffer_load_dwordx4 v{VA+i}, s[16:19], s14 offen offset:{i*1024} sc1 lds")
    def dmaB(st):
        slot = st % NS
        k(f"s_add_u32 m0, s15, {65536 + slot*24576}")
        k(f"s_mov_b32 s14, {st*24576}")
        for i in range(4):
            k(f"buffer_load_dwordx4 v{VB}, s[20:23], s14 offen offset:{i*1024} sc1 lds")
        k(f"s_add_u32 m0, s15, {65536 + slot*24576 + 4096}")
        k("s_nop 0")
        for i in range(2):
            k(f"buffer_load_dwordx4 v{VB+1}, s[20:23], s14 offen offset:{i*1024} sc1 lds")
    return Loader(k, 10, NS, dmaA, dmaB, 4, 6)

def up_compute(k, pre_barrier):
    AF, BF, ACC, RA, RB, NS = 16, 24, 72, 4, 8, 4
    k("v_and_b32 v2, 31, v1")
    k("v_lshrrev_b32 v3, 5, v1")
    k("v_bfe_u32 v14, v2, 1, 3")
    k("v_lshlrev_b32 v2, 7, v2")
    k("s_lshl_b32 s10, s8, 12")
    k("v_add_u32 v2, s10, v2")
    for ks in range(4):
        k(f"v_add_u32 v15, {2*ks}, v3")
        k("v_xor_b32 v15, v15, v14")
        k(f"v_lshl_add_u32 v{RA+ks}, v15, 4, v2")
    k("v_lshrrev_b32 v2, 5, v1")
    k("v_bfe_u32 v3, v1, 2, 2")
    k("v_lshl_add_u32 v2, v2, 3, v3")
    k("v_mul_u32_u24 v2, 192, v2")
    k("v_bfe_u32 v14, v1, 4, 1")
    k("v_lshl_add_u32 v2, v14, 5, v2")
    k("v_and_b32 v14, 3, v1")
    k("v_lshl_add_u32 v2, v14, 3, v2")
    k(f"v_add_u32 v{RB}, 65536, v2")
    k(f"v_add_u32 v{RB+1}, {65536+49152}, v2")
    k("v_and_b32 v2, 31, v1")
    k("s_lshl_b32 s9, s11, 7")
    k("s_lshl_b32 s10, s8, 5")
    k("s_add_u32 s9, s9, s10")
    k("v_add_u32 v2, s9, v2")
    k("v_lshlrev_b32 v2, 6, v2")
    wsrd(k, 44, 2048 * 64, WS_STAT)
    GST, GL, GG = 131072, 200, 206
    k("s_mul_i32 s9, s8, 6656")
    k(f"s_add_u32 s9, s9, {GST}")
    k("s_lshl_b32 s10, s11, 7")
    k("s_lshl_b32 s34, s8, 5")
    k("s_add_u32 s10, s10, s34")
    k("s_mul_i32 s34, s12, 192")
    for i in range(6):
        k(f"v_add_u32 v14, {64*i}, v1")
        k("v_mul_u32_u24 v15, 5462, v14")
        k("v_lshrrev_b32 v15, 16, v15        ; row")
        k("v_mul_u32_u24 v16, 12, v15")
        k("v_sub_u32 v16, v14, v16           ; chunk")
        k("v_lshlrev_b32 v16, 4, v16")
        k("v_mul_u32_u24 v17, 208, v15")
        k(f"v_add3_u32 v{GL+i}, v17, v16, s9")
        k("v_add_u32 v15, s10, v15")
        k("v_mul_u32_u24 v15, 3072, v15")
        k(f"v_add3_u32 v{GG+i}, v15, v16, s34")
    k("v_and_b32 v14, 31, v1")
    k("v_mul_u32_u24 v14, 208, v14")
    k("v_lshrrev_b32 v15, 5, v1")
    k("v_lshlrev_b32 v15, 4, v15")
    k("v_add3_u32 v212, v14, v15, s9")
    pre_barrier()
    if APF: apf_rows(k, WS_X1, S * D * 2, lambda: k("s_lshl_b32 s9, s11, 7"), 1280, 7, 0, 10, lambda: k("s_and_b32 s9, s12, 3"), 320, 14, 228)
    STT = 168
    def reads(step):
        st, ks = divmod(step, 4); slot = st % NS; sb = step & 1
        a = f"ds_read_b128 v[{AF+4*sb}:{AF+4*sb+3}], v{RA+ks} offset:{slot*16384}"
        out = []
        for nt in range(6):
            d = BF + (sb * 6 + nt) * 4
            off = (slot & 1) * 24576 + (nt // 3) * 12288 + (nt % 3) * 64
            g = [f"ds_read_b64_tr_b16 v[{d+2*j}:{d+2*j+1}], v{RB+(slot>>1)} offset:{off + (16*ks+4*j)*192}" for j in range(2)]
            out.append(([a] if nt == 0 else []) + g)
        return out
    def mf(step, nt):
        sb = step & 1
        return [mfma32(ACC + 16 * nt, BF + (sb * 6 + nt) * 4, AF + 4 * sb, "0" if step == 0 else None)]
    compute_loop(k, 10, 4, reads, mf, 0, stamp=False, hooks={-1: lambda: mark(k, 22)})
    mark(k, 12)
    k("s_barrier")
    k("v_and_b32 v2, 31, v1")
    k("s_lshl_b32 s9, s8, 5")
    k("v_add_u32 v2, s9, v2")
    k("v_lshlrev_b32 v2, 6, v2")
    k("v_add_u32 v2, 36864, v2")
    for q in range(4): k(f"ds_read_b128 v[{STT+4*q}:{STT+4*q+3}], v2 offset:{16*q}")
    k("s_waitcnt lgkmcnt(0)")
    k(f"v_add_f32 v10, v{STT}, v{STT+2}")
    k(f"v_add_f32 v11, v{STT+1}, v{STT+3}")
    for q in range(2, 8):
        k(f"v_add_f32 v10, v10, v{STT+2*q}")
        k(f"v_add_f32 v11, v11, v{STT+2*q+1}")
    k(f"s_mov_b32 s9, {hex(f2u(1.0/640))}")
    k("v_mul_f32 v10, s9, v10            ; mean")
    k("v_mul_f32 v13, v10, v10")
    k("v_fma_f32 v11, v11, s9, -v13      ; variance")
    k("v_max_f32 v11, 0, v11")
    k("v_add_f32 v11, 0x3727c5ac, v11")
    k("v_rsq_f32 v11, v11")
    k("s_nop 0")
    k("v_mul_f32 v13, v10, v11")
    k("v_sub_f32 v12, 0, v13")
    k("v_mov_b32 v13, v12")
    k("v_mov_b32 v10, v11")
    k("v_lshrrev_b32 v14, 5, v1")
    k("v_lshlrev_b32 v14, 4, v14")
    k("v_add_u32 v14, 32768, v14")
    wsrd(k, 24, S * F * 2, WS_G)
    k("v_and_b32 v2, 31, v1")
    k("s_lshl_b32 s9, s11, 7")
    k("s_lshl_b32 s10, s8, 5")
    k("s_add_u32 s9, s9, s10")
    k("v_add_u32 v2, s9, v2")
    k("v_mul_u32_u24 v2, 3072, v2")
    k("v_lshrrev_b32 v3, 5, v1")
    k("v_lshlrev_b32 v3, 4, v3")
    k("s_mul_i32 s9, s12, 192")
    k("v_add3_u32 v2, v2, v3, s9")
    c1 = -2.0 * 0.7978845608028654 * 1.4426950408889634
    c2 = c1 * 0.044715
    for r, c in ((4, c1), (5, c1), (6, c2), (7, c2), (8, 1.0), (9, 1.0)): k(f"v_mov_b32 v{r}, {hex(f2u(c))}")
    pk = lambda r: f"v[{r}:{r+1}]"
    U0, U1 = 40, 168
    def ut_reads(slot, off):
        U = (U0, U1)[slot]
        for mat in range(2):
            for jj in range(2):
                k(f"ds_read_b128 v[{U+8*mat+4*jj}:{U+8*mat+4*jj+3}], v14 offset:{mat*384 + off + 32*jj}")
                k(f"ds_read_b128 v[{U+16+8*mat+4*jj}:{U+16+8*mat+4*jj+3}], v14 offset:{768 + mat*384 + off + 32*jj}")
    if os.environ.get("UPDIAG"): mark(k, 25)
    def group(jp, g, nxt_slot, nxt_off, woff):
        U = (U0, U1)[jp]
        u = g + 48
        T = 16 + 8 * jp
        if nxt_off is not None: ut_reads(nxt_slot, nxt_off)
        k(f"s_waitcnt lgkmcnt({8 if nxt_off is not None else 0})")
        for mat in range(2):
            for r in range(0, 8, 2):
                k(f"v_pk_fma_f32 {pk(U+16+8*mat+r)}, {pk(U+8*mat+r)}, v[12:13], {pk(U+16+8*mat+r)}")
        for mat in range(2):
            base = g if mat == 0 else u
            for r in range(0, 8, 2):
                k(f"v_pk_fma_f32 {pk(base+r)}, {pk(base+r)}, v[10:11], {pk(U+16+8*mat+r)}")
        for r in range(0, 8, 2): k(f"v_pk_mul_f32 {pk(T+r)}, {pk(g+r)}, {pk(g+r)}")
        for r in range(0, 8, 2): k(f"v_pk_fma_f32 {pk(T+r)}, {pk(T+r)}, v[6:7], v[4:5]")
        for r in range(0, 8, 2): k(f"v_pk_mul_f32 {pk(T+r)}, {pk(T+r)}, {pk(g+r)}")
        for r in range(8): k(f"v_exp_f32 v{T+r}, v{T+r}")
        for r in range(0, 8, 2): k(f"v_pk_mul_f32 {pk(g+r)}, {pk(g+r)}, {pk(u+r)}")
        for r in range(0, 8, 2): k(f"v_pk_add_f32 {pk(T+r)}, {pk(T+r)}, v[8:9]")
        for r in range(8): k(f"v_rcp_f32 v{T+r}, v{T+r}")
        for r in range(0, 8, 2): k(f"v_pk_mul_f32 {pk(T+r)}, {pk(T+r)}, {pk(g+r)}")
        t = 32 + 4 * jp
        for q in range(4): k(f"v_cvt_pk_bf16_f32 v{t+q}, v{T+2*q}, v{T+2*q+1}")
        k(f"v_permlane32_swap_b32 v{t}, v{t+2}")
        k(f"v_permlane32_swap_b32 v{t+1}, v{t+3}")
        k(f"ds_write_b128 v212, v[{t}:{t+3}] offset:{woff}")
    ut_reads(0, 0)
    if os.environ.get("EPI_LOOP"):
        k("s_mov_b32 s34, 3")
        k.label("UP_EPI")
        for jp in range(2): group(jp, ACC + 8 * jp, 1 - jp, 64 * (jp + 1), 32 * jp)
        for base in (ACC, ACC + 48):
            for r in range(0, 32, 2): k(f"v_pk_mov_b32 {pk(base+r)}, {pk(base+16+r)}, {pk(base+16+r)} op_sel:[0,1]")
        k("v_add_u32 v14, 128, v14")
        k("v_add_u32 v212, 64, v212")
        k("s_sub_u32 s34, s34, 1")
        k("s_cmp_lg_u32 s34, 0")
        k("s_cbranch_scc1 UP_EPI")
    else:
        for grp in range(6):
            nt, jp = divmod(grp, 2)
            group(jp, ACC + 16 * nt + 8 * jp, 1 - jp, (64 * (grp + 1) if grp < 5 else None), 64 * nt + 32 * jp)
    if os.environ.get("UPDIAG"): mark(k, 28)
    k("s_waitcnt lgkmcnt(0)")
    for i in range(6): k(f"ds_read_b128 v[{ACC+4*i}:{ACC+4*i+3}], v{200+i}")
    for i in range(6):
        k(f"s_waitcnt lgkmcnt({5-i})")
        k(f"buffer_store_dwordx4 v[{ACC+4*i}:{ACC+4*i+3}], v{206+i}, s[24:27], 0 offen sc1")

def phases456(k):
    k.label("P4_STAGED")
    from k_attn2 import SS
    k("s_waitcnt vmcnt(0)")
    k("s_barrier")
    mark(k, 7)
    narrow_ids(k)
    k("s_cmp_ge_u32 s8, 4")
    k("s_cbranch_scc1 P4_LOADER")
    k("v_lshlrev_b32 v5, 3, v1")
    k("s_lshl_b32 s9, s8, 11")
    k("v_add_u32 v5, s9, v5")
    for h in range(2):
        for i in range(3): k(f"ds_read_b64 v[{SS+6*h+2*i}:{SS+6*h+2*i+1}], v5 offset:{8192*h + 512*i}")
    k(f"s_mov_b32 s9, {128*40 if os.environ.get('EXP_O') else 128*1280}")
    for h in range(2):
        for i in range(3):
            k(f"s_waitcnt lgkmcnt({5 - 3*h - i})")
            k(f"buffer_store_dwordx2 v[{SS+6*h+2*i}:{SS+6*h+2*i+1}], v{128+i}, s[24:27], {'s9' if h else '0'} offen sc1")
    if not os.environ.get("NO_BH2"): k("s_barrier")
    if not os.environ.get("LDIAG") and not os.environ.get("P0DIAG") and not os.environ.get("UPDIAG"): mark(k, 25)
    k("s_waitcnt vmcnt(0)")
    if not os.environ.get("LDIAG") and not os.environ.get("P0DIAG") and not os.environ.get("UPDIAG"): mark(k, 26)
    last_arriver_flag(k, "P3O", CTL + 16, 3, FL_O, 2)
    k("s_branch P4_COMPUTE")
    k.label("P4_LOADER")
    if not os.environ.get("NO_BH2"): k("s_barrier                        ; B_h2")
    L = narrow_loader_setup(k, 640, WS_O, WS_WOP)
    L.preloadB()
    narrow_res_dma(k, True, 2)
    k("s_cmp_lg_u32 s8, 4")
    k("s_cbranch_scc1 P4L_GO")
    poll_range(k, "P4L_O", FL_O, lambda: k("s_lshl_b32 s9, s3, 5"), 32)
    k.label("P4L_GO")
    k("s_barrier                        ; B_i")
    mark(k, 8)
    L.run(prefetch=apf_loader(k, WS_O, S * 640 * 2, lambda: k("s_lshl_b32 s9, s11, 6"), 1280, 6, 1, 4, lambda: k("s_mov_b32 s9, s12"), 64, 17, 229, khalf=640))
    k("s_barrier")
    k("s_lshr_b32 s35, s11, 1")
    k("s_lshl_b32 s35, s35, 4")
    k("s_and_b32 s36, s11, 1")
    k("s_lshl_b32 s36, s36, 3")
    k("s_add_u32 s35, s35, s36")
    k("s_add_u32 s35, s35, s12")
    up_ids(k)
    L = up_loader_setup(k)
    if os.environ.get("BJ0"): k("s_barrier")
    L.preloadB()
    k("s_barrier")
    k("s_cmp_lg_u32 s8, 4")
    k("s_cbranch_scc1 P5L_GO")
    set_flag(k, FL_X1, 35)
    poll_range(k, "P5L_X", FL_X1, lambda: k("s_lshl_b32 s9, s11, 4"), 16)
    k.label("P5L_GO")
    k("s_barrier                        ; B_k")
    mark(k, 11)

    def ut_issue():
        wsrd(k, 24, 16 * 384 * 4, WS_UT)
        k("v_lshlrev_b32 v2, 4, v1")
        k("s_mul_i32 s14, s12, 1536")
        k("s_and_b32 s9, s31, 1")
        k("s_lshl_b32 s9, s9, 10")
        k("s_add_u32 s14, s14, s9")
        k("s_add_u32 m0, s9, 32768")
        k("s_nop 0")
        k("buffer_load_dwordx4 v2, s[24:27], s14 offen sc1 lds")
        wsrd(k, 24, 2048 * 64, WS_STAT)
        k("s_lshl_b32 s14, s11, 13")
        k("s_lshl_b32 s9, s31, 11")
        k("s_add_u32 s14, s14, s9")
        k("s_add_u32 m0, s9, 36864")
        k("s_nop 0")
        k("buffer_load_dwordx4 v2, s[24:27], s14 offen sc1 lds")
        k("buffer_load_dwordx4 v2, s[24:27], s14 offen offset:1024 sc1 lds")
        n = 0
        if os.environ.get("WDPF"):
            wsrd(k, 52, 8 * 1536 * 160, WS_WDP)
            k("s_lshr_b32 s9, s2, 3")
            k("s_mul_i32 s9, s9, 480")
            k("v_and_b32 v20, 255, v0")
            for i in range(2):
                k(f"v_add_u32 v21, {256*i}, v20")
                k("v_add_u32 v22, s9, v21")
                k("v_lshlrev_b32 v22, 7, v22")
                if i:
                    k("v_cmp_gt_u32 vcc, 480, v21")
                    k("v_mov_b32 v23, 0x7ffffff0")
                    k("v_cndmask_b32 v22, v23, v22, vcc")
                k(f"buffer_load_dword v{228+i}, v22, s[52:55], 0 offen")
                n += 1
        npf.append(n)
        return 3 + n
    npf = []
    def o_issue():
        k("s_cmp_lg_u32 s8, 5")
        k("s_cbranch_scc1 P5L_OA")
        check_all_issue(k, FL_O, 24)
        k.label("P5L_OA")
        return 0
    def o_fin():
        k("s_cmp_lg_u32 s8, 5")
        k("s_cbranch_scc1 P5L_OB")
        k("s_waitcnt vmcnt(0)")
        check_all_finish(k, "P5L_OALL", FL_O, 24)
        k.label("P5L_OB")
        return ut_issue()
    L.run(after_barrier={2: o_issue, 8: o_fin}, prefetch=(apf_loader(k, WS_X1, S * D * 2, lambda: k("s_lshl_b32 s9, s11, 7"), 1280, 7, 1, 9, lambda: k("s_and_b32 s9, s12, 3"), 288, 17, 228) if os.environ.get("APF_UP") else None))
    k(f"s_waitcnt vmcnt({npf[0]})")
    k("s_barrier                        ; u', t landed")
    k("s_lshl_b32 s35, s11, 4")
    k("s_add_u32 s35, s35, s12")
    narrow_ids(k)
    if os.environ.get("LATE_PRE"): k("s_barrier")
    L = narrow_loader_setup(k, 1536, WS_G, WS_WDP)
    if os.environ.get("BL0"): k("s_barrier")
    L.preloadB()
    if not os.environ.get("LATE_PRE"): k("s_barrier")
    k("s_cmp_lg_u32 s8, 4")
    k("s_cbranch_scc1 P6L_GO")
    set_flag(k, FL_G, 35)
    def gfirst():
        k("s_lshr_b32 s9, s11, 1")
        k("s_lshl_b32 s9, s9, 4")
    poll_range(k, "P6L_G", FL_G, gfirst, 16)
    k.label("P6L_GO")
    k("s_barrier                        ; B_m")
    mark(k, 14)
    def down_res():
        narrow_res_dma(k, False, 5)
        return 0
    L.run(after_barrier={2: down_res}, prefetch=apf_loader(k, WS_G, S * 1536 * 2, lambda: k("s_lshl_b32 s9, s11, 6"), 3072, 6, 1, 11, lambda: k("s_mov_b32 s9, s12"), 176, 17, 229, khalf=1536))
    k("s_barrier")
    k("s_branch F_END")
    k.label("P4_COMPUTE")
    narrow_compute(k, "P4C", 640, True, 2, False, lambda: k("s_barrier                        ; B_i"))
    if os.environ.get("BJ0"): k("s_barrier                        ; B_j0")
    if not os.environ.get("P0DIAG") and not os.environ.get("UPDIAG"): mark(k, 29)
    k("s_waitcnt vmcnt(0)")
    if not os.environ.get("P0DIAG"): mark(k, 30)
    k("s_barrier                        ; B_j")
    mark(k, 10)
    up_ids(k)
    up_compute(k, lambda: k("s_barrier                        ; B_k"))
    if os.environ.get("BL0"): k("s_barrier                        ; B_l0")
    if os.environ.get("UPDIAG"): mark(k, 29)
    if not os.environ.get("LDIAG") and not os.environ.get("P0DIAG") and not os.environ.get("UPDIAG"): mark(k, 27)
    k("s_waitcnt vmcnt(0)")
    if not os.environ.get("P0DIAG") and not os.environ.get("UPDIAG"): mark(k, 28)
    k("s_barrier                        ; B_l")
    mark(k, 13)
    narrow_ids(k)
    narrow_compute(k, "P6C", 1536, False, 5, True, lambda: k("s_barrier                        ; B_m"))

def gen_fused():
    k = K()
    k("s_cmp_ge_u32 s2, 256")
    k("s_cbranch_scc1 F_END")
    k(f"s_load_dwordx8 s[64:71], s[0:1], 0")
    k(f"s_load_dwordx8 s[72:79], s[0:1], 32")
    k(f"s_load_dwordx8 s[80:87], s[0:1], 64")
    k("v_and_b32 v1, 63, v0")
    k("v_lshrrev_b32 v2, 6, v0")
    k("s_nop 0")
    k("v_readfirstlane_b32 s8, v2       ; wave")
    k("s_and_b32 s31, s8, 3")
    phase01(k)
    phase2_loader(k)
    phase2_spare(k)
    phase2_compute(k)
    phase3(k)
    phases456(k)
    k.label("F_END")
    k("s_endpgm")
    k.fix_hazards()
    return NAME, header(NAME) + k.text() + descriptor(NAME, 232), (256, 512, 163840)

if __name__ == "__main__":
    import sys
    HEAD = open("adaLN_cond__mha_block__geglu_ffn__prompt.s.ref").read().split("; Override launch")[0]
    n, t, (g, b, l) = gen_fused()
    s = HEAD + f"; @launch grid=({g},1,1) block=({b},1,1) lds={l}\n" + '.amdgcn_target "amdgcn-amd-amdhsa--gfx950"\n' + t
    out = sys.argv[1] if len(sys.argv) > 1 else "fused.s"
    open(out, "w").write(s)
    print("wrote", out, len(s))
```

```python
S, D, H, DH, F = 2048, 640, 32, 20, 1536
WS_MODV = 0x0
WS_UT   = 0x4000
WS_H    = 0x10000
WS_Q    = WS_H + 0x280000
WS_KV   = WS_Q + 0x280000
VSEG = 384
KV_TILE = 1280 + 4 * VSEG
KV_HEAD = 64 * KV_TILE
WS_O    = WS_KV + 0x580000
WS_X1   = WS_O + 0x280000
WS_G    = WS_X1 + 0x280000
WS_WOP  = WS_G + 0x600000
WS_WDP  = WS_WOP + 0xC8000
WS_WUP  = WS_WDP + 0x1E0000
WS_MODP = WS_WUP + 0x3C0000
WS_UTP  = WS_MODP + 0x10000
WS_STAT = WS_UTP + 0x20000
WS_FLG  = WS_STAT + 0x20000
FL_H, FL_QKV, FL_T, FL_O, FL_X1, FL_G, FL_M, FL_P = [i * 256 * 128 for i in range(8)]
WS_END  = WS_FLG + 8 * 256 * 128
KA_X, KA_WQKV, KA_WO, KA_BX, KA_WG, KA_WU, KA_WD, KA_C, KA_WMOD, KA_OUT, KA_DBG, KA_WS = [8 * i for i in range(12)]
if __name__ == "__main__":
    print(hex(WS_END), WS_END)
```

```python
from common import *
from k_gemm2 import mfma32, mfma16, compute_loop, f2u
from k_attn2 import VM, m16, m8
import os, struct

NAME = "adaLN_cond__mha_block__geglu_ffn__prompt_kernel"
XP, WQKVP, WOP_, WGP, WUP_, WDP_, CP, WMODP, OUTP, DBGP, WSP = 64, 66, 68, 72, 74, 76, 78, 80, 82, 84, 86
NONCE = 60
CTL = 163584
SCR = 131072
STOP = int(os.environ.get("STOP", 99))
TIMEOUT = 30000

def wsrd(k, s, nbytes, off): srd(k, s, WSP, nbytes, off)
def mark(k, i): k(f"; MARK {i}")

APF = bool(os.environ.get("APF"))
def apf_rows(k, off, nbytes, row0_fn, lda, nrows_log2, first_line, nlines, sharer_fn, per, vt, vdst, khalf=None, tid="v0"):
    wsrd(k, 52, nbytes, off)
    for i in range((per + 255) // 256):
        sharer_fn()
        k(f"s_mul_i32 s9, s9, {per}")
        if i: k(f"s_add_u32 s9, s9, {256 * i}")
        k(f"v_add_u32 v{vt}, s9, {tid}")
        sh = nrows_log2 + (1 if khalf else 0)
        k(f"v_lshrrev_b32 v{vt+1}, {sh}, v{vt}")
        if khalf: k(f"v_bfe_u32 v{vt+2}, v{vt}, {nrows_log2}, 1")
        k(f"v_and_b32 v{vt}, {(1 << nrows_log2) - 1}, v{vt}")
        row0_fn()
        k(f"v_add_u32 v{vt}, s9, v{vt}")
        k(f"s_mov_b32 s9, {lda}")
        k(f"v_mul_lo_u32 v{vt}, s9, v{vt}")
        if first_line: k(f"v_add_u32 v{vt+1}, {first_line}, v{vt+1}")
        k(f"v_lshl_add_u32 v{vt}, v{vt+1}, 7, v{vt}")
        if khalf:
            k(f"v_mul_u32_u24 v{vt+2}, {khalf}, v{vt+2}")
            k(f"v_add_u32 v{vt}, v{vt}, v{vt+2}")
        if 256 * (i + 1) > per:
            k(f"v_cmp_gt_u32 vcc, {per - 256 * i}, {tid}")
            k(f"v_mov_b32 v{vt+1}, 0x7ffffff0")
            k(f"v_cndmask_b32 v{vt}, v{vt+1}, v{vt}, vcc")
        k(f"buffer_load_dword v{vdst+i}, v{vt}, s[52:55], 0 offen sc1")

APF2 = os.environ.get("APF2", "0") != "0"
def apf_loader(k, *args, **kw):
    def f():
        per = args[8]
        k("v_and_b32 v16, 255, v0")
        apf_rows(k, *args, tid="v16", **kw)
        return (per + 255) // 256
    return f

OLDPOLL = bool(os.environ.get('OLDPOLL'))
def poll_old(k, tag, vaddr, mask, vtmp, waitall=True):
    k("s_mov_b32 s14, 0")
    k.label(f"{tag}_P")
    if mask == "lo32":
        k("s_mov_b32 exec_lo, -1"); k("s_mov_b32 exec_hi, 0")
    else:
        k(f"s_mov_b64 exec, {mask}")
    k(f"buffer_load_dword v{vtmp}, v{vaddr}, s[56:59], 0 offen sc1")
    k("s_waitcnt vmcnt(0)")
    k(f"v_cmp_ne_u32 vcc, s{NONCE}, v{vtmp}")
    k("s_mov_b64 exec, -1")
    k("s_cmp_eq_u64 vcc, 0")
    k(f"s_cbranch_scc1 {tag}_R")
    k("s_add_u32 s14, s14, 1")
    k(f"s_cmp_gt_u32 s14, {TIMEOUT}")
    k(f"s_cbranch_scc1 {tag}_R")
    k("s_sleep 2")
    k(f"s_branch {tag}_P")
    k.label(f"{tag}_R")

def poll_new(k, tag, vaddr, mask, vtmp, waitall=True):
    def setmask():
        if mask == "lo32":
            k("s_mov_b32 exec_lo, -1"); k("s_mov_b32 exec_hi, 0")
        else:
            k(f"s_mov_b64 exec, {mask}")
    k("s_mov_b32 s14, 0")
    setmask()
    k("s_waitcnt vmcnt(0)")
    k(f"buffer_load_dword v226, v{vaddr}, s[56:59], 0 offen sc1")
    k.label(f"{tag}_P")
    k(f"buffer_load_dword v227, v{vaddr}, s[56:59], 0 offen sc1")
    k("s_waitcnt vmcnt(1)")
    k(f"v_cmp_ne_u32 vcc, s{NONCE}, v226")
    k("s_cmp_eq_u64 vcc, 0")
    k(f"s_cbranch_scc1 {tag}_R")
    k(f"buffer_load_dword v226, v{vaddr}, s[56:59], 0 offen sc1")
    k("s_waitcnt vmcnt(1)")
    k(f"v_cmp_ne_u32 vcc, s{NONCE}, v227")
    k("s_cmp_eq_u64 vcc, 0")
    k(f"s_cbranch_scc1 {tag}_R")
    k("s_add_u32 s14, s14, 1")
    k(f"s_cmp_gt_u32 s14, {TIMEOUT}")
    k(f"s_cbranch_scc0 {tag}_P")
    k.label(f"{tag}_R")
    k("s_mov_b64 exec, -1")

def poll(k, *a, **kw): return (poll_old if OLDPOLL else poll_new)(k, *a, **kw)

def flag_srd(k): wsrd(k, 56, 7 * 256 * 128, WS_FLG)

def poll_range(k, tag, base, first_sgpr_expr, n, v=20):
    flag_srd(k)
    first_sgpr_expr()
    k(f"v_and_b32 v{v}, 63, v0")
    k(f"v_add_u32 v{v}, s9, v{v}")
    k(f"v_lshlrev_b32 v{v}, 7, v{v}")
    if base: k(f"v_add_u32 v{v}, {base}, v{v}")
    poll(k, tag, v, "-1" if n == 64 else ("lo32" if n == 32 else hex((1 << n) - 1)), v + 1)

def poll_all(k, tag, base, v=20):
    flag_srd(k)
    k(f"v_and_b32 v{v}, 63, v0")
    k(f"v_lshlrev_b32 v{v}, 7, v{v}")
    k(f"v_add_u32 v{v}, {base}, v{v}")
    for q in range(1, 4): k(f"v_add_u32 v{v+q}, {q * 64 * 128}, v{v}")
    k("s_mov_b32 s14, 0")
    k.label(f"{tag}_P")
    for q in range(4): k(f"buffer_load_dword v{v+4+q}, v{v+q}, s[56:59], 0 offen sc1")
    k("s_waitcnt vmcnt(0)")
    k(f"v_cmp_ne_u32 vcc, s{NONCE}, v{v+4}")
    for q in range(1, 4):
        k(f"v_cmp_ne_u32 s[62:63], s{NONCE}, v{v+4+q}")
        k("s_or_b64 vcc, vcc, s[62:63]")
    k("s_cmp_eq_u64 vcc, 0")
    k(f"s_cbranch_scc1 {tag}_R")
    k("s_add_u32 s14, s14, 1")
    k(f"s_cmp_gt_u32 s14, {TIMEOUT}")
    k(f"s_cbranch_scc1 {tag}_R")
    k("s_sleep 2")
    k(f"s_branch {tag}_P")
    k.label(f"{tag}_R")

def check_all_issue(k, base, v):
    flag_srd(k)
    k(f"v_and_b32 v{v}, 63, v0")
    k(f"v_lshlrev_b32 v{v}, 7, v{v}")
    k(f"v_add_u32 v{v}, {base}, v{v}")
    for q in range(1, 4): k(f"v_add_u32 v{v+q}, {q * 64 * 128}, v{v}")
    for q in range(4): k(f"buffer_load_dword v{v+4+q}, v{v+q}, s[56:59], 0 offen sc1")
def check_all_finish(k, tag, base, v):
    k(f"v_cmp_ne_u32 vcc, s{NONCE}, v{v+4}")
    for q in range(1, 4):
        k(f"v_cmp_ne_u32 s[62:63], s{NONCE}, v{v+4+q}")
        k("s_or_b64 vcc, vcc, s[62:63]")
    k("s_cmp_eq_u64 vcc, 0")
    k(f"s_cbranch_scc1 {tag}_OK")
    poll_all(k, tag, base, v)
    k.label(f"{tag}_OK")

def set_flag(k, base, idx_sgpr, v=20):
    flag_srd(k)
    k(f"s_lshl_b32 s9, s{idx_sgpr}, 7")
    k(f"s_add_u32 s9, s9, {base}")
    k(f"v_mov_b32 v{v}, s9")
    k(f"v_mov_b32 v{v+1}, s{NONCE}")
    k("s_mov_b64 exec, 1")
    k(f"buffer_store_dword v{v+1}, v{v}, s[56:59], 0 offen sc1")
    k("s_mov_b64 exec, -1")

LDIAG = [25, 26, 27]
class Loader:
    def __init__(self, k, nst, nslots, dmaA, dmaB, nA, nB):
        self.k, self.nst, self.ns, self.dmaA, self.dmaB, self.nA, self.nB = k, nst, nslots, dmaA, dmaB, nA, nB
        self.ops = []
    def A(self, st): self.dmaA(st); self.ops += [st] * self.nA
    def B(self, st): self.dmaB(st); self.ops += [st] * self.nB
    def extra(self, n): self.ops += ["x"] * n
    def drained(self): self.ops = ["done"] if False else []
    def wait(self, st):
        idx = [i for i, t in enumerate(self.ops) if t == st]
        n = len(self.ops) - 1 - max(idx) if idx else len(self.ops)
        self.k(f"s_waitcnt vmcnt({min(63, n)})")
    def preloadB(self):
        for st in range(min(self.ns - 1, self.nst)): self.B(st)
    def run(self, after_barrier=None, tail=None, prefetch=None):
        k = self.k; up = min(self.ns - 1, self.nst)
        if prefetch is not None and APF2:
            self.A(0)
            self.extra(prefetch())
            self.wait(0)
            k("s_barrier")
            k("s_waitcnt vmcnt(0)")
            if os.environ.get("LDIAG"): mark(k, LDIAG.pop(0))
            for st in range(1, up): self.A(st)
        else:
            for st in range(up): self.A(st)
            self.wait(0)
            k("s_barrier")
        issued = up
        for s in range(self.nst - 1):
            self.wait(s + 1)
            k("s_barrier")
            if issued < self.nst:
                self.A(issued); self.B(issued); issued += 1
                if issued == self.nst and tail: self.extra(tail())
            if after_barrier and (s + 1) in after_barrier: self.extra(after_barrier[s + 1]())

def a_dma_rows32(k, VA, row0_sgpr, lda, koff_sgpr=None):
    k("v_lshrrev_b32 v2, 3, v1")
    k("v_lshrrev_b32 v3, 4, v1")
    k("v_and_b32 v4, 7, v1")
    k(f"v_add_u32 v2, s{row0_sgpr}, v2")
    k(f"s_mov_b32 s10, {lda}")
    k("v_mul_lo_u32 v2, s10, v2")
    if koff_sgpr is not None: k(f"v_add_u32 v2, s{koff_sgpr}, v2")
    for i in range(4):
        k(f"v_xor_b32 v5, {(i&1)*4}, v3")
        k("v_xor_b32 v5, v5, v4")
        k("v_lshlrev_b32 v5, 4, v5")
        k(f"v_add_u32 v5, {i*8*lda - i*1024}, v5")
        k(f"v_add_u32 v{VA+i}, v2, v5")

def phase01(k):
    X, C0, W0, AC, T = 8, 32, 40, 64, 72
    k("s_and_b32 s13, s2, 3             ; kq")
    k("s_lshr_b32 s14, s2, 2")
    k("v_lshrrev_b32 v5, 3, v0")
    k("v_and_b32 v6, 7, v0")
    k("s_mul_i32 s15, s13, 160")
    k("v_add_u32 v7, s15, v5")
    k("v_mul_u32_u24 v5, 7680, v7")
    k("v_lshlrev_b32 v6, 4, v6")
    k("s_lshl_b32 s15, s14, 7")
    k("v_add3_u32 v5, v5, v6, s15")
    k("v_lshrrev_b32 v3, 4, v0")
    k("s_lshl_b32 s15, s2, 3")
    k("v_add_u32 v3, s15, v3")
    k("v_mul_u32_u24 v3, 1280, v3")
    k("v_and_b32 v4, 15, v0")
    k("v_lshl_add_u32 v3, v4, 4, v3")
    k("v_lshlrev_b32 v6, 1, v7")
    k("v_mov_b32 v28, 0x7ffffff0")
    k("v_cmp_gt_u32 vcc, 256, v0")
    k("v_cndmask_b32 v29, v28, v5, vcc")
    k("v_cndmask_b32 v30, v28, v6, vcc")
    k("s_waitcnt lgkmcnt(0)")
    srd(k, 36, WMODP, 640 * 7680)
    srd(k, 32, CP, 1280)
    srd(k, 16, XP, S * D * 2)
    def gemv_loads():
        k(f"buffer_load_dwordx4 v[{W0}:{W0+3}], v5, s[36:39], 0 offen")
        k(f"s_mov_b32 s15, {64*7680}")
        k(f"buffer_load_dwordx4 v[{W0+4}:{W0+7}], v5, s[36:39], s15 offen")
        k(f"s_mov_b32 s15, {128*7680}")
        k(f"buffer_load_dwordx4 v[{W0+8}:{W0+11}], v29, s[36:39], s15 offen")
        k(f"buffer_load_ushort v{C0}, v6, s[32:35], 0 offen")
        k(f"buffer_load_ushort v{C0+1}, v6, s[32:35], 0 offen offset:128")
        k(f"buffer_load_ushort v{C0+2}, v30, s[32:35], 0 offen offset:256")
    def x_loads(tag):
        k("s_cmp_ge_u32 s8, 2")
        k(f"s_cbranch_scc1 {tag}")
        for i in range(5):
            k(f"buffer_load_dwordx4 v[{X+4*i}:{X+4*i+3}], v3, s[16:19], 0 offen offset:{256*i}")
        k.label(tag)
    k("s_cmp_ge_u32 s2, 80")
    k("s_cbranch_scc1 P0_LATE")
    gemv_loads()
    x_loads("P0_NOX1")
    k("s_branch P0_ISSUED")
    k.label("P0_LATE")
    x_loads("P0_NOX2")
    k("s_waitcnt vmcnt(0)")
    k("s_barrier")
    k("s_cmp_ge_u32 s14, 60")
    k("s_cbranch_scc1 P0_ISSUED")
    gemv_loads()
    k.label("P0_ISSUED")
    wsrd(k, 20, 4 * 3840 * 4, WS_MODP)
    wsrd(k, 24, S * D * 2, WS_H)
    for r in range(176, 228): k(f"v_mov_b32 v{r}, 0x7ffffff0")
    k("s_cmp_lg_u32 s8, 3")
    k("s_cbranch_scc1 P0_NOCTL")
    k(f"v_lshlrev_b32 v11, 2, v1")
    k(f"v_add_u32 v11, {CTL}, v11")
    k("v_mov_b32 v12, 0")
    k("ds_write_b32 v11, v12")
    k.label("P0_NOCTL")
    k("s_cmp_ge_u32 s8, 4")
    k("s_cbranch_scc1 P0_NOSETUP")
    phase2_setup(k)
    k.label("P0_NOSETUP")
    k("s_cmp_ge_u32 s14, 60")
    k("s_cbranch_scc1 P0_BA")
    k("s_cmp_ge_u32 s2, 80")
    k("s_cbranch_scc1 P0_W0")
    k("s_cmp_ge_u32 s8, 2")
    k("s_cbranch_scc1 P0_W0")
    k("s_waitcnt vmcnt(5)")
    k("s_branch P0_W1")
    k.label("P0_W0")
    k("s_waitcnt vmcnt(0)")
    k.label("P0_W1")
    k("s_mov_b32 s15, 0xbfb8aa3b")
    for i in range(3): k(f"v_lshlrev_b32 v{C0+i}, 16, v{C0+i}")
    for i in range(3): k(f"v_mul_f32 v{T+i}, s15, v{C0+i}")
    for i in range(3): k(f"v_exp_f32 v{T+i}, v{T+i}")
    for i in range(3): k(f"v_add_f32 v{T+i}, 1.0, v{T+i}")
    for i in range(3): k(f"v_rcp_f32 v{T+i}, v{T+i}")
    for i in range(3): k(f"v_mul_f32 v{C0+i}, v{C0+i}, v{T+i}")
    for i in range(3): bf16_round_f32(k, C0 + i, C0 + i, T)
    for i in range(3):
        for j in range(4):
            k(f"v_lshlrev_b32 v{T}, 16, v{W0+4*i+j}")
            k(f"v_and_b32 v{T+1}, 0xffff0000, v{W0+4*i+j}")
            op = "v_mul_f32" if i == 0 else "v_fmac_f32"
            k(f"{op} v{AC+2*j}, v{C0+i}, v{T}")
            k(f"{op} v{AC+2*j+1}, v{C0+i}, v{T+1}")
    for j in range(8):
        k(f"v_add_f32_dpp v{AC+j}, v{AC+j}, v{AC+j} row_ror:8 row_mask:0xf bank_mask:0xf")
    for sw in ("v_permlane16_swap_b32", "v_permlane32_swap_b32"):
        for j in range(8): k(f"v_mov_b32 v{T+j}, v{AC+j}")
        for j in range(8): k(f"{sw} v{AC+j}, v{T+j}")
        for j in range(8): k(f"v_add_f32 v{AC+j}, v{AC+j}, v{T+j}")
    k("v_lshrrev_b32 v5, 6, v0")
    k("v_lshlrev_b32 v5, 8, v5")
    k("v_and_b32 v6, 7, v0")
    k("v_lshl_add_u32 v5, v6, 5, v5")
    k(f"v_add_u32 v5, {SCR}, v5")
    k("v_cmp_gt_u32 vcc, 8, v1")
    k("s_and_saveexec_b64 s[34:35], vcc")
    k(f"ds_write_b128 v5, v[{AC}:{AC+3}]")
    k(f"ds_write_b128 v5, v[{AC+4}:{AC+7}] offset:16")
    k("s_mov_b64 exec, s[34:35]")
    k.label("P0_BA")
    k("s_waitcnt lgkmcnt(0)")
    k("s_barrier                        ; B_a")
    mark(k, 0)
    k("s_cmp_lt_u32 s8, 2")
    k("s_cbranch_scc1 P1_LNA")
    k("s_cmp_eq_u32 s8, 2")
    k("s_cbranch_scc1 P0_FINAL")
    k("s_cmp_eq_u32 s8, 3")
    k("s_cbranch_scc1 P0_ONES")
    k("s_branch P0_LOADERS")
    k.label("P0_FINAL")
    k("s_cmp_ge_u32 s14, 60")
    k("s_cbranch_scc1 P1_BA2")
    k("s_memrealtime s[46:47]")
    k("v_lshlrev_b32 v7, 2, v1")
    k(f"v_add_u32 v6, {SCR}, v7")
    for p in range(8): k(f"ds_read_b32 v{W0+p}, v6 offset:{256*p}")
    k("s_waitcnt lgkmcnt(0)")
    for st in (4, 2, 1):
        for p in range(st): k(f"v_add_f32 v{W0+p}, v{W0+p}, v{W0+p+st}")
    k("s_mul_i32 s15, s13, 15360")
    k("s_lshl_b32 s34, s14, 8")
    k("s_add_u32 s15, s15, s34")
    if os.environ.get("P0DIAG"): mark(k, 25)
    k(f"buffer_store_dword v{W0}, v7, s[20:23], s15 offen sc1")
    k("s_waitcnt vmcnt(0)")
    if os.environ.get("P0DIAG"): mark(k, 26)
    k("s_cmp_ge_u32 s14, 20")
    k("s_cbranch_scc1 P1_BA2")
    k("s_mov_b64 exec, 1")
    k("v_mov_b32 v5, 0")
    k("v_mov_b32 v6, 1")
    k(f"global_atomic_add v7, v5, v6, s[{DBGP}:{DBGP+1}] sc0 sc1")
    k("s_waitcnt vmcnt(0)")
    k("v_readfirstlane_b32 s15, v7")
    if os.environ.get("P0DIAG"):
        k("s_mov_b64 exec, -1"); mark(k, 27); k("s_mov_b64 exec, 1")
    k("s_cmp_lg_u32 s15, 79")
    k("s_cbranch_scc1 P0_NOFLAG")
    k("s_or_b32 s46, s46, 1")
    k("v_mov_b32 v6, s46")
    k(f"global_store_dword v5, v6, s[{DBGP}:{DBGP+1}] offset:128 sc1")
    k.label("P0_NOFLAG")
    k("s_mov_b64 exec, -1")
    k("s_branch P1_BA2")
    k.label("P0_ONES")
    wsrd(k, 32, 32 * KV_HEAD, WS_KV)
    k("s_lshl_b32 s13, s2, 5")
    k("v_add_u32 v5, s13, v1")
    k("v_lshrrev_b32 v6, 2, v5")
    k(f"v_mul_u32_u24 v6, {KV_TILE}, v6")
    k("v_and_b32 v7, 3, v5")
    k(f"v_mul_u32_u24 v7, {VSEG}, v7")
    k(f"v_add_u32 v6, {1280+320}, v6")
    k("v_add_u32 v6, v6, v7")
    for j in range(4): k(f"v_mov_b32 v{8+j}, 0x3f803f80")
    k("s_mov_b32 exec_hi, 0")
    k("buffer_store_dwordx4 v[8:11], v6, s[32:35], 0 offen sc1")
    wsrd(k, 36, 16 * 384 * 4, WS_UT)
    k("s_mul_i32 s13, s2, 96")
    k("v_lshlrev_b32 v5, 2, v1")
    k("v_mov_b32 v12, 0")
    k("s_mov_b32 exec_lo, 0xffffff")
    k("buffer_store_dword v12, v5, s[36:39], s13 offen sc1")
    k("s_mov_b64 exec, -1")
    k("s_waitcnt vmcnt(0)")
    k("s_branch P1_BA2")
    k.label("P1_LNA")
    k("s_barrier                        ; B_a2 (waves 0, 1)")
    k.label("P1_LN")
    E = 32
    k("s_waitcnt vmcnt(0)")
    for r in range(20):
        k(f"v_lshlrev_b32 v{E+2*r}, 16, v{X+r}")
        k(f"v_and_b32 v{E+2*r+1}, 0xffff0000, v{X+r}")
    k(f"v_add_f32 v5, v{E}, v{E+1}")
    k(f"v_add_f32 v6, v{E+2}, v{E+3}")
    for r in range(4, 40, 2):
        k(f"v_add_f32 v5, v5, v{E+r}")
        k(f"v_add_f32 v6, v6, v{E+r+1}")
    k("v_add_f32 v5, v5, v6")
    for rot in (1, 2, 4, 8):
        k(f"v_add_f32_dpp v5, v5, v5 row_ror:{rot} row_mask:0xf bank_mask:0xf")
    k(f"s_mov_b32 s13, {hex(f2u(1.0/640))}")
    k("v_mul_f32 v5, s13, v5")
    for r in range(40): k(f"v_sub_f32 v{E+r}, v{E+r}, v5")
    k(f"v_mul_f32 v6, v{E}, v{E}")
    k(f"v_mul_f32 v7, v{E+1}, v{E+1}")
    for r in range(2, 40, 2):
        k(f"v_fmac_f32 v6, v{E+r}, v{E+r}")
        k(f"v_fmac_f32 v7, v{E+r+1}, v{E+r+1}")
    k("v_add_f32 v6, v6, v7")
    for rot in (1, 2, 4, 8):
        k(f"v_add_f32_dpp v6, v6, v6 row_ror:{rot} row_mask:0xf bank_mask:0xf")
    k("v_mov_b32 v7, 0x3727c5ac")
    k("v_fmac_f32 v7, s13, v6")
    k("v_rsq_f32 v7, v7")
    k("s_nop 0")
    for r in range(40): k(f"v_mul_f32 v{E+r}, v{E+r}, v7")
    k("v_mov_b32 v5, 0")
    k("s_mov_b32 s14, 0")
    k.label("P1_POLL")
    k("s_mov_b64 exec, 1")
    k(f"global_load_dword v6, v5, s[{DBGP}:{DBGP+1}] offset:128 sc1")
    k("s_waitcnt vmcnt(0)")
    k(f"v_readfirstlane_b32 s{NONCE}, v6")
    k("s_mov_b64 exec, -1")
    k(f"s_cmp_lg_u32 s{NONCE}, 0")
    k("s_cbranch_scc1 P1_READY")
    k("s_add_u32 s14, s14, 1")
    k(f"s_cmp_gt_u32 s14, {TIMEOUT}")
    k("s_cbranch_scc1 P1_READY")
    k("s_sleep 1")
    k("s_branch P1_POLL")
    k.label("P1_READY")
    mark(k, 1)
    P = 80
    k("s_mul_i32 s15, s8, 2560")
    k("v_lshlrev_b32 v5, 4, v1")
    k("v_mov_b32 v8, 0x7ffffff0")
    k("v_cmp_gt_u32 vcc, 32, v1")
    k("v_add_u32 v6, s15, v5")
    k("v_add_u32 v9, 2048, v6")
    k("v_cndmask_b32 v9, v8, v9, vcc")
    for q in range(4):
        k(f"s_mov_b32 s34, {q*15360}")
        k(f"buffer_load_dwordx4 v[{P+12*q}:{P+12*q+3}], v6, s[20:23], s34 offen sc1")
        k(f"buffer_load_dwordx4 v[{P+12*q+4}:{P+12*q+7}], v6, s[20:23], s34 offen offset:1024 sc1")
        k(f"buffer_load_dwordx4 v[{P+12*q+8}:{P+12*q+11}], v9, s[20:23], s34 offen sc1")
    k(f"v_mov_b32 v10, {CTL}")
    k(f"v_mov_b32 v11, s{NONCE}")
    k("ds_write_b32 v10, v11")
    k("s_waitcnt vmcnt(0)")
    for r in range(12):
        k(f"v_add_f32 v{P+r}, v{P+r}, v{P+12+r}")
        k(f"v_add_f32 v{P+24+r}, v{P+24+r}, v{P+36+r}")
    for r in range(12): k(f"v_add_f32 v{P+r}, v{P+r}, v{P+24+r}")
    for r in range(12): bf16_round_f32(k, P + r, P + r, P + 12)
    k("s_cmp_eq_u32 s8, 0")
    k("s_cbranch_scc1 P1_NOONE")
    for r in range(12): k(f"v_add_f32 v{P+r}, 1.0, v{P+r}")
    for r in range(12): bf16_round_f32(k, P + r, P + r, P + 12)
    k.label("P1_NOONE")
    k("s_mul_i32 s15, s8, 2560")
    k("v_add_u32 v5, s15, v5")
    k(f"v_add_u32 v5, {SCR + 8192}, v5")
    k(f"ds_write_b128 v5, v[{P}:{P+3}]")
    k(f"ds_write_b128 v5, v[{P+4}:{P+7}] offset:1024")
    k("s_mov_b32 exec_hi, 0")
    k(f"ds_write_b128 v5, v[{P+8}:{P+11}] offset:2048")
    k("s_mov_b64 exec, -1")
    k("s_waitcnt lgkmcnt(0)")
    if os.environ.get("P0DIAG"): mark(k, 28)
    k("s_barrier")
    Gm, Sm = 96, 136
    k("v_and_b32 v4, 15, v0")
    k("v_lshlrev_b32 v4, 5, v4")
    k(f"v_add_u32 v4, {SCR + 8192}, v4")
    for i in range(5):
        for hh in range(2):
            k(f"ds_read_b128 v[{Sm+8*i+4*hh}:{Sm+8*i+4*hh+3}], v4 offset:{512*i + 16*hh}")
            k(f"ds_read_b128 v[{Gm+8*i+4*hh}:{Gm+8*i+4*hh+3}], v4 offset:{2560 + 512*i + 16*hh}")
    k("s_waitcnt lgkmcnt(0)")
    for r in range(40): k(f"v_fma_f32 v{E+r}, v{E+r}, v{Gm+r}, v{Sm+r}")
    for r in range(20): k(f"v_cvt_pk_bf16_f32 v{X+r}, v{E+2*r}, v{E+2*r+1}")
    for i in range(5):
        k(f"buffer_store_dwordx4 v[{X+4*i}:{X+4*i+3}], v3, s[24:27], 0 offen offset:{256*i} sc1")
    if os.environ.get("P0DIAG"): mark(k, 29)
    k("s_waitcnt vmcnt(0)")
    if os.environ.get("P0DIAG"): mark(k, 30)
    k("s_barrier")
    k("s_cmp_lg_u32 s8, 0")
    k("s_cbranch_scc1 P2_START")
    set_flag(k, FL_H, 2)
    k("s_branch P2_START")
    k.label("P1_BA2")
    k("s_barrier")
    k.label("P1_BB")
    k("s_barrier                        ; B_b")
    k(f"v_mov_b32 v10, {CTL}")
    k("ds_read_b32 v11, v10")
    k("s_waitcnt lgkmcnt(0)")
    k(f"v_readfirstlane_b32 s{NONCE}, v11")
    k("s_barrier                        ; B_c")
    k("s_branch P2_START")

def qkv_ids(k):
    k("s_and_b32 s3, s2, 7")
    k("s_lshr_b32 s13, s2, 3")
    k("s_and_b32 s14, s3, 3")
    k("s_lshl_b32 s14, s14, 2")
    k("s_and_b32 s15, s13, 3")
    k("s_add_u32 s11, s14, s15")
    k("s_lshr_b32 s14, s3, 2")
    k("s_lshl_b32 s14, s14, 3")
    k("s_lshr_b32 s15, s13, 2")
    k("s_add_u32 s12, s14, s15")


JW, JSG, JU, JT, JTM, JWO, JD = 136, 152, 160, 168, 176, 184, 199
def wjob_issue(k):
    k(f"s_mul_hi_u32 s55, s2, {(1<<32)//5+1}")
    k("s_mul_i32 s54, s55, 5")
    k("s_sub_u32 s54, s2, s54")
    k("s_lshl_b32 s54, s54, 7")
    k("s_cmp_ge_u32 s55, 24")
    k("s_cselect_b32 s52, 1, 0          ; matrix")
    k("s_mul_i32 s53, s52, 24")
    k("s_sub_u32 s53, s55, s53")
    k("v_and_b32 v191, 255, v0")
    k("v_and_b32 v188, 7, v191")
    k("v_lshrrev_b32 v189, 3, v191")
    k("v_add_u32 v189, s54, v189")
    k("v_mul_u32_u24 v190, 3072, v189")
    k("s_lshl_b32 s55, s53, 7")
    k("v_lshl_add_u32 v190, v188, 4, v190")
    k("v_add_u32 v190, s55, v190")
    k("s_cmp_ge_u32 s2, 240")
    k("s_cselect_b32 s55, 0, 1966080")
    k("s_cmp_eq_u32 s52, 0")
    k(f"s_cselect_b32 s44, s{WGP}, s{WUP_}")
    k(f"s_cselect_b32 s45, s{WGP+1}, s{WUP_+1}")
    k("s_mov_b32 s46, s55")
    k("s_mov_b32 s47, 0x00020000")
    for i in range(4):
        k(f"s_mov_b32 s55, {i*32*3072}")
        k(f"buffer_load_dwordx4 v[{JW+4*i}:{JW+4*i+3}], v190, s[44:47], s55 offen")
    k("s_lshl_b32 s55, s2, 8")
    k("v_add_u32 v191, s55, v191")
    k("v_lshlrev_b32 v190, 4, v191")
    srd(k, 48, WOP_, 640 * 1280)
    k(f"buffer_load_dwordx4 v[{JWO}:{JWO+3}], v190, s[48:51], 0 offen")
    flag_srd(k)
    k("v_and_b32 v192, 3, v1")
    k("v_lshlrev_b32 v192, 7, v192")
    k(f"v_add_u32 v192, {FL_M}, v192")
    k("buffer_load_dword v193, v192, s[56:59], 0 offen sc1")
    return 6
def wjob_compute(k, tag):
    k("s_waitcnt vmcnt(0)")
    k(f"v_cmp_ne_u32 vcc, s{NONCE}, v193")
    k("s_cmp_eq_u64 vcc, 0")
    k(f"s_cbranch_scc1 {tag}_MOK")
    poll(k, f"{tag}_M", 192, "-1", 193)
    k.label(f"{tag}_MOK")
    wsrd(k, 48, 6 * 640 * 4, WS_MODV)
    k("v_lshlrev_b32 v190, 2, v189")
    for i in range(4):
        k("s_movk_i32 s55, 7680")
        k(f"buffer_load_dword v{JSG+2*i}, v190, s[48:51], s55 offen offset:{128*i} sc1")
        k("s_movk_i32 s55, 10240")
        k(f"buffer_load_dword v{JSG+2*i+1}, v190, s[48:51], s55 offen offset:{128*i} sc1")
    for r in range(16): k(f"v_mov_b32 v{JU+r}, 0")
    k("s_lshl_b32 s55, s53, 3")
    k("v_add_u32 v190, s55, v188")
    k("v_mul_u32_u24 v194, 5462, v190")
    k("v_lshrrev_b32 v194, 16, v194     ; ct")
    k("v_mul_u32_u24 v195, 12, v194")
    k("v_sub_u32 v195, v190, v195       ; cc")
    k("s_mov_b32 s55, 245760")
    k("v_mul_lo_u32 v196, s55, v194")
    k("s_mul_i32 s55, s52, 12288")
    k("v_lshl_add_u32 v196, v195, 4, v196")
    k("v_add_u32 v196, s55, v196")
    for i in range(4):
        k(f"v_add_u32 v190, {32*i}, v189")
        k("v_lshrrev_b32 v197, 6, v190")
        k("v_mul_u32_u24 v190, 192, v190")
        k("v_mul_u32_u24 v197, 12288, v197")
        k(f"v_add3_u32 v{JD+i}, v190, v197, v196")
    k("v_mul_u32_u24 v190, 384, v194")
    k("v_lshl_add_u32 v190, v195, 3, v190")
    k("v_lshrrev_b32 v197, 3, v1")
    k("v_add_u32 v190, v190, v197")
    k("s_mul_i32 s55, s52, 96")
    k("v_add_u32 v190, s55, v190")
    k(f"v_lshlrev_b32 v{JD+4}, 2, v190")
    divconst(k, 190, 191, 80, 55, 65536)
    k("v_mul_u32_u24 v197, 80, v190")
    k("v_sub_u32 v197, v191, v197")
    divconst(k, 198, 197, 10, 55, 80)
    k("v_mul_u32_u24 v194, 10, v198")
    k("v_sub_u32 v197, v197, v194")
    k("v_and_b32 v194, 0xfffffff3, v190")
    k("v_bfe_u32 v195, v190, 2, 1")
    k("v_lshl_or_b32 v194, v195, 3, v194")
    k("v_bfe_u32 v195, v190, 3, 1")
    k("v_lshl_or_b32 v194, v195, 2, v194")
    k(f"s_mov_b32 s55, {640*160}")
    k("v_mul_lo_u32 v198, s55, v198")
    k("v_mul_u32_u24 v194, 160, v194")
    k("v_lshlrev_b32 v197, 4, v197")
    k("v_add3_u32 v198, v198, v197, v194")
    k("s_mov_b32 s55, 51200")
    k("v_cmp_gt_u32 vcc, s55, v191")
    k("v_mov_b32 v194, 0x7ffffff0")
    k(f"v_cndmask_b32 v{JD+5}, v194, v198, vcc")
    k("s_waitcnt vmcnt(0)")
    for i in range(4):
        d = JW + 4 * i
        for q in range(4):
            k(f"v_lshlrev_b32 v{JTM+2*q}, 16, v{d+q}")
            k(f"v_and_b32 v{JTM+2*q+1}, 0xffff0000, v{d+q}")
        sg = f"v[{JSG+2*i}:{JSG+2*i+1}]"
        for q in range(0, 8, 2): k(f"v_pk_fma_f32 v[{JT+q}:{JT+q+1}], v[{JTM+q}:{JTM+q+1}], {sg}, v[{JT+q}:{JT+q+1}] op_sel:[0,0,0] op_sel_hi:[1,0,1]")
        for q in range(0, 8, 2): k(f"v_pk_mul_f32 v[{JTM+q}:{JTM+q+1}], v[{JTM+q}:{JTM+q+1}], {sg} op_sel:[0,1] op_sel_hi:[1,1]")
        for q in range(0, 8, 2): k(f"v_pk_add_f32 v[{JU+q}:{JU+q+1}], v[{JU+q}:{JU+q+1}], v[{JTM+q}:{JTM+q+1}]")
        for q in range(4): k(f"v_cvt_pk_bf16_f32 v{d+q}, v{JTM+2*q}, v{JTM+2*q+1}")
    def rscatter(B):
        for e in range(4):
            k(f"v_permlane32_swap_b32 v{B+e}, v{B+e+4}")
            k(f"v_add_f32 v{B+e}, v{B+e}, v{B+e+4}")
        for e in range(2):
            k(f"v_permlane16_swap_b32 v{B+e}, v{B+e+2}")
            k(f"v_add_f32 v{B+e}, v{B+e}, v{B+e+2}")
        k(f"v_add_f32_dpp v{B}, v{B}, v{B} row_ror:8 row_mask:0xf bank_mask:0xf")
        k(f"v_add_f32_dpp v{B+1}, v{B+1}, v{B+1} row_ror:8 row_mask:0xf bank_mask:0xf")
        k(f"v_cndmask_b32 v{B}, v{B}, v{B+1}, vcc")
    k("v_and_b32 v190, 8, v1")
    k("v_cmp_ne_u32 vcc, 0, v190")
    rscatter(JU); rscatter(JT)
def wjob_store_w(k):
    k("s_cmp_ge_u32 s2, 240")
    k(f"s_cselect_b32 s55, 0, {16 * 10 * 24576}")
    k(f"s_add_u32 s44, s{WSP}, {WS_WUP}")
    k(f"s_addc_u32 s45, s{WSP+1}, 0")
    k("s_mov_b32 s46, s55")
    k("s_mov_b32 s47, 0x00020000")
    for i in range(4): k(f"buffer_store_dwordx4 v[{JW+4*i}:{JW+4*i+3}], v{JD+i}, s[44:47], 0 offen sc1")
def wjob_store_rest(k):
    k("s_cmp_ge_u32 s2, 240")
    k(f"s_cselect_b32 s55, 0, {16 * 384 * 4}")
    k(f"s_add_u32 s44, s{WSP}, {WS_UT}")
    k(f"s_addc_u32 s45, s{WSP+1}, 0")
    k("s_mov_b32 s46, s55")
    k("s_mov_b32 s47, 0x00020000")
    k(f"buffer_atomic_add_f32 v{JU}, v{JD+4}, s[44:47], 0 offen")
    k(f"buffer_atomic_add_f32 v{JT}, v{JD+4}, s[44:47], 0 offen offset:768")
    wsrd(k, 48, 8 * 640 * 160, WS_WOP)
    k(f"buffer_store_dwordx4 v[{JWO}:{JWO+3}], v{JD+5}, s[48:51], 0 offen sc1")

QNS = 4
def phase2_loader(k):
    k.label("P0_LOADERS")
    k("s_barrier                        ; B_a2")
    if not os.environ.get("NO_CODEPF"):
        k("s_cmp_lg_u32 s8, 7")
        k("s_cbranch_scc1 F_NOCPF")
        k("s_getpc_b64 s[34:35]")
        k.label("F_PC")
        k("s_lshr_b32 s9, s2, 3")
        k("s_mul_i32 s9, s9, 18")
        k("v_add_u32 v2, s9, v1")
        k("v_lshlrev_b32 v2, 7, v2")
        k("v_cmp_gt_u32 vcc, 18, v1")
        k("s_mov_b32 s10, F_END-F_PC")
        k("v_cmp_gt_u32 s[36:37], s10, v2")
        k("s_and_b64 vcc, vcc, s[36:37]")
        k("s_and_saveexec_b64 s[36:37], vcc")
        k("s_cbranch_execz F_CPFX")
        k("global_load_dword v231, v2, s[34:35]")
        k.label("F_CPFX")
        k("s_mov_b64 exec, s[36:37]")
        k.label("F_NOCPF")
    if not os.environ.get("NO_TLB"):
        k("s_cmp_lg_u32 s8, 6")
        k("s_cbranch_scc1 F_NOTLB")
        wsrd(k, 16, WS_END, 0)
        srd(k, 20, OUTP, S * D * 2)
        k("s_lshr_b32 s9, s2, 3")
        k("s_lshl_b32 s9, s9, 4")
        k("v_add_u32 v2, s9, v1")
        k("v_lshlrev_b32 v2, 16, v2")
        k("s_mov_b64 exec, 0xffff")
        k("buffer_load_dword v229, v2, s[16:19], 0 offen")
        k("s_mov_b64 exec, -1")
        k("s_lshr_b32 s9, s2, 3")
        k("v_mov_b32 v2, s9")
        k("v_lshlrev_b32 v2, 17, v2")
        k("s_mov_b64 exec, 1")
        k("buffer_load_dword v228, v2, s[20:23], 0 offen")
        k("s_mov_b64 exec, -1")
        k.label("F_NOTLB")
    qkv_ids(k)
    VA, VB = 8, 12
    k("s_lshl_b32 s9, s11, 7")
    k("s_lshl_b32 s10, s31, 5")
    k("s_add_u32 s9, s9, s10")
    a_dma_rows32(k, VA, 9, 1280)
    k("v_lshrrev_b32 v2, 4, v1")
    k("v_bfe_u32 v3, v1, 2, 2")
    k("v_xor_b32 v3, v3, v2")
    k("v_lshlrev_b32 v3, 6, v3")
    k("v_and_b32 v4, 3, v1")
    k("v_lshl_add_u32 v3, v4, 4, v3")
    k("s_lshl_b32 s9, s31, 4")
    k("v_add_u32 v2, s9, v2")
    k("v_mul_u32_u24 v2, 3840, v2")
    k("s_lshl_b32 s9, s12, 8")
    k("v_add3_u32 v2, v2, v3, s9")
    for i in range(4):
        k(f"v_add_u32 v{VB+i}, {i*(4*3840-1024)}, v2")
    k("s_lshl_b32 s13, s31, 12")
    wsrd(k, 16, S * D * 2, WS_H)
    srd(k, 20, WQKVP, 640 * 3840)
    def dmaA(st):
        k(f"s_add_u32 m0, s13, {(st % QNS)*32768}")
        k(f"s_mov_b32 s14, {st*128}")
        for i in range(4):
            k(f"buffer_load_dwordx4 v{VA+i}, s[16:19], s14 offen offset:{i*1024} sc1 lds")
    def dmaB(st):
        k(f"s_add_u32 m0, s13, {(st % QNS)*32768 + 16384}")
        k(f"s_mov_b32 s14, {st*64*3840}")
        for i in range(4):
            k(f"buffer_load_dwordx4 v{VB+i}, s[20:23], s14 offen offset:{i*1024} lds")
    L = Loader(k, 10, QNS, dmaA, dmaB, 4, 4)
    k("s_cmp_ge_u32 s12, 15")
    k("s_cbranch_scc1 P2L_NOTILE")
    L.preloadB()
    if not os.environ.get("NO_WPF"):
        k("s_and_b32 s9, s11, 3")
        k("s_mul_i32 s9, s9, 224")
        k("s_mul_i32 s10, s31, 56")
        k("s_add_u32 s9, s9, s10")
        k("v_add_u32 v16, s9, v1")
        k("v_lshrrev_b32 v17, 1, v16")
        k("v_add_u32 v17, 192, v17")
        k("v_mul_u32_u24 v17, 3840, v17")
        k("v_and_b32 v16, 1, v16")
        k("v_lshl_add_u32 v17, v16, 7, v17")
        k("s_lshl_b32 s9, s12, 8")
        k("v_add_u32 v17, s9, v17")
        k("v_cmp_gt_u32 vcc, 56, v1")
        k("v_mov_b32 v16, 0x7ffffff0")
        k("v_cndmask_b32 v17, v16, v17, vcc")
        k("buffer_load_dword v231, v17, s[20:23], 0 offen")
    k.label("P2L_NOTILE")
    if os.environ.get("RAWTOUCH"):
        k("s_cmp_eq_u32 s8, 4")
        k(f"s_cselect_b32 s44, s{WGP}, s{WUP_}")
        k(f"s_cselect_b32 s45, s{WGP+1}, s{WUP_+1}")
        k("s_cmp_eq_u32 s8, 6")
        k(f"s_cselect_b32 s44, s{WOP_}, s44")
        k(f"s_cselect_b32 s45, s{WOP_+1}, s45")
        k("s_cselect_b32 s9, 25, 60")
        k(f"s_mov_b32 s46, {640*3072}")
        k(f"s_cselect_b32 s46, {640*1280}, s46")
        k("s_cmp_eq_u32 s8, 7")
        k(f"s_cselect_b32 s44, s{WDP_}, s44")
        k(f"s_cselect_b32 s45, s{WDP_+1}, s45")
        k("s_mov_b32 s47, 0x00020000")
        k("s_mul_i32 s10, s2, s9")
        k("v_add_u32 v16, s10, v1")
        k("v_lshlrev_b32 v16, 7, v16")
        k("v_cmp_gt_u32 vcc, s9, v1")
        k("v_mov_b32 v17, 0x7ffffff0")
        k("v_cndmask_b32 v16, v17, v16, vcc")
        k("buffer_load_dword v230, v16, s[44:47], 0 offen")
    phase2_tables(k)
    k("s_barrier                        ; B_b")
    k(f"v_mov_b32 v16, {CTL}")
    k("ds_read_b32 v17, v16")
    k("s_waitcnt lgkmcnt(0)")
    k(f"v_readfirstlane_b32 s{NONCE}, v17")
    k("s_barrier                        ; B_c")
    k("s_cmp_ge_u32 s12, 15")
    k("s_cbranch_scc1 P2_SPARE")
    k("s_cmp_lg_u32 s8, 4")
    k("s_cbranch_scc1 P2L_GO")
    poll_range(k, "P2L_H", FL_H, lambda: k("s_lshl_b32 s9, s11, 4"), 16)
    k.label("P2L_GO")
    k("s_barrier                        ; B_d")
    mark(k, 2)
    BE = not os.environ.get("NO_BE")
    L.run(tail=(None if BE else (lambda: wjob_issue(k))), prefetch=apf_loader(k, WS_H, S * D * 2, lambda: k("s_lshl_b32 s9, s11, 7"), 1280, 7, 1, 9, lambda: k("s_and_b32 s9, s12, 7"), 144, 17, 229))
    mark(k, 20)
    if BE:
        k("s_barrier")
        wjob_issue(k)
    wjob_compute(k, "P2LJ")
    k("s_branch P3_START")

def last_arriver_flag(k, tag, lds_word, last, base, idx_sgpr, v=20):
    k(f"v_mov_b32 v{v}, {lds_word}")
    k(f"v_mov_b32 v{v+1}, 1")
    k("s_mov_b64 exec, 1")
    k(f"ds_add_rtn_u32 v{v+2}, v{v}, v{v+1}")
    k("s_waitcnt lgkmcnt(0)")
    k(f"v_readfirstlane_b32 s9, v{v+2}")
    k("s_mov_b64 exec, -1")
    k(f"s_cmp_lg_u32 s9, {last}")
    k(f"s_cbranch_scc1 {tag}_NL")
    set_flag(k, base, idx_sgpr, v)
    k.label(f"{tag}_NL")

def phase2_spare(k):
    k.label("P2_SPARE")
    k("s_cmp_lg_u32 s8, 4")
    k("s_cbranch_scc1 P2S_FLAG")
    k("s_cmp_ge_u32 s11, 4")
    k("s_cbranch_scc1 P2S_FLAG")
    poll_all(k, "P2S_ALLH", FL_H, 20)
    k("s_add_u32 s9, s11, 2")
    k("s_mul_i32 s9, s9, 2560")
    wsrd(k, 16, 4 * 3840 * 4, WS_MODP)
    wsrd(k, 20, 6 * 640 * 4, WS_MODV)
    for i in range(3):
        k(f"v_add_u32 v2, {64*i}, v1")
        k(f"v_lshlrev_b32 v{3+i}, 4, v2")
        if i == 2:
            k("v_cmp_gt_u32 vcc, 160, v2")
            k("v_mov_b32 v6, 0x7ffffff0")
            k(f"v_cndmask_b32 v{3+i}, v6, v{3+i}, vcc")
        for q in range(4):
            k(f"s_add_u32 s10, s9, {q*15360}")
            k(f"buffer_load_dwordx4 v[{8+16*i+4*q}:{11+16*i+4*q}], v{3+i}, s[16:19], s10 offen sc1")
    k("s_waitcnt vmcnt(0)")
    for i in range(3):
        B = 8 + 16 * i
        for r in range(4):
            k(f"v_add_f32 v{B+r}, v{B+r}, v{B+4+r}")
            k(f"v_add_f32 v{B+8+r}, v{B+8+r}, v{B+12+r}")
        for r in range(4): k(f"v_add_f32 v{B+r}, v{B+r}, v{B+8+r}")
        for r in range(4): bf16_round_f32(k, B + r, B + r, 60)
    k("s_cmp_lg_u32 s11, 2")
    k("s_cbranch_scc1 P2S_NOONE")
    for i in range(3):
        B = 8 + 16 * i
        for r in range(4): k(f"v_add_f32 v{B+r}, 1.0, v{B+r}")
        for r in range(4): bf16_round_f32(k, B + r, B + r, 60)
    k.label("P2S_NOONE")
    for i in range(3):
        k(f"buffer_store_dwordx4 v[{8+16*i}:{11+16*i}], v{3+i}, s[20:23], s9 offen sc1")
    k("s_waitcnt vmcnt(0)")
    set_flag(k, FL_M, 11)
    k.label("P2S_FLAG")
    wjob_issue(k)
    wjob_compute(k, "P2SJ")
    k("s_branch P3_START")

QA = dict(AF=40, BF=48, ACC=80, RA=212, RB=220, EA=176, GA=192)
def phase2_setup(k):
    RA, RB, EA, GA = QA["RA"], QA["RB"], QA["EA"], QA["GA"]
    k.label("P2_SETUP")
    qkv_ids(k)
    k("s_cmp_ge_u32 s12, 15")
    k("s_cbranch_scc1 P2_SETUP_END")
    k("v_and_b32 v55, 31, v1")
    k("v_lshrrev_b32 v54, 5, v1")
    k("v_bfe_u32 v52, v55, 1, 3")
    k("v_lshlrev_b32 v55, 7, v55")
    k("s_lshl_b32 s10, s8, 12")
    k("v_add_u32 v55, s10, v55")
    for ks in range(4):
        k(f"v_add_u32 v53, {2*ks}, v54")
        k("v_xor_b32 v53, v53, v52")
        k(f"v_lshl_add_u32 v{RA+ks}, v53, 4, v55")
        k(f"v_add_u32 v{RA+4+ks}, 65536, v{RA+ks}")
    k("v_lshrrev_b32 v55, 5, v1")
    k("v_bfe_u32 v54, v1, 2, 2")
    k("v_lshl_add_u32 v55, v55, 3, v54")
    k("v_lshlrev_b32 v55, 8, v55")
    k("v_bfe_u32 v52, v1, 4, 1")
    k("v_lshl_add_u32 v55, v52, 5, v55")
    k("v_and_b32 v52, 3, v1")
    k("v_lshl_add_u32 v55, v52, 3, v55")
    k("v_add_u32 v55, 16384, v55")
    for nt in range(4):
        k(f"v_xor_b32 v52, {nt}, v54")
        k(f"v_lshl_add_u32 v{RB+nt}, v52, 6, v55")
        k(f"v_add_u32 v{RB+4+nt}, 65536, v{RB+nt}")
    k("s_cmp_ge_u32 s12, 10")
    k("s_cbranch_scc1 P2S_V")
    k("s_cmp_ge_u32 s12, 5")
    k("s_cbranch_scc1 P2S_K")
    k(f"s_mov_b32 s16, {64*1280}")
    k("s_movk_i32 s17, 1280")
    k("s_lshl_b32 s10, s12, 5")
    k(f"s_mov_b32 s41, {hex(f2u(1.4426950408889634 / (20 ** 0.5)))}")
    k("s_branch P2S_QK")
    k.label("P2S_K")
    k(f"s_mov_b32 s16, {KV_HEAD}")
    k(f"s_movk_i32 s17, {KV_TILE}")
    k("s_sub_u32 s10, s12, 5")
    k("s_lshl_b32 s10, s10, 5")
    k("s_mov_b32 s41, 1.0")
    k.label("P2S_QK")
    k("s_lshl_b32 s42, s11, 2")
    k("s_add_u32 s42, s42, s8")
    k("s_mul_i32 s42, s42, s17")
    k("s_lshl_b32 s43, s8, 14")
    k("s_add_u32 s43, s43, 65536")
    k("s_branch P2_SETUP_END")
    k.label("P2S_V")
    k("s_lshl_b32 s42, s11, 2")
    k("s_add_u32 s42, s42, s8")
    k(f"s_mul_i32 s42, s42, {KV_TILE}")
    k("s_add_u32 s42, s42, 1280")
    k.label("P2_SETUP_END")
    k("s_lshr_b32 s14, s2, 2")
    k("s_and_b32 s13, s2, 3")

TBL = 144384
def phase2_tables(k):
    k("s_cmp_ge_u32 s12, 15")
    k("s_cbranch_scc1 P2T_END")
    k("v_lshlrev_b32 v30, 4, v1")
    k(f"v_add_u32 v30, {TBL}, v30        ; lane*16")
    k("s_cmp_ge_u32 s12, 10")
    k("s_cbranch_scc1 P2T_V")
    k("s_cmp_ge_u32 s12, 5")
    k("s_cselect_b32 s10, 5, 0")
    k(f"s_cselect_b32 s44, {KV_HEAD}, 0")
    k(f"s_cselect_b32 s45, 0, {64*1280}")
    k("s_or_b32 s44, s44, s45")
    k("s_sub_u32 s10, s12, s10")
    k("s_lshl_b32 s10, s10, 5")
    k(f"s_mul_hi_u32 s35, s10, {(1<<32)//5+1}")
    k("v_and_b32 v25, 31, v1")
    k("v_lshrrev_b32 v24, 5, v1")
    k("v_add_u32 v24, s10, v24")
    k("v_lshlrev_b32 v26, 4, v25")
    k("v_lshlrev_b32 v27, 3, v25")
    k("v_add_u32 v27, 1024, v27")
    for n in range(4):
        k("s_lshl_b32 s9, s31, 3")
        k(f"s_add_u32 s9, s9, {2*n}")
        k("v_add_u32 v18, s9, v24")
        k("v_mul_u32_u24 v19, 205, v18")
        k("v_lshrrev_b32 v19, 10, v19")
        k("v_mad_i32_i24 v20, v19, -5, v18")
        k("v_lshrrev_b32 v21, 1, v20")
        k("v_lshl_add_u32 v21, v21, 9, v26")
        k("v_and_b32 v22, 1, v20")
        k("v_lshl_add_u32 v21, v22, 3, v21")
        k("v_cmp_eq_u32 vcc, 4, v20")
        k("v_subrev_u32 v19, s35, v19")
        k("v_cndmask_b32 v21, v21, v27, vcc")
        k("v_mul_u32_u24 v19, 1280, v19")
        k(f"v_add_u32 v{32+n}, v21, v19")
    k("s_lshl_b32 s9, s31, 10")
    k("v_add_u32 v31, s9, v30")
    k("ds_write_b128 v31, v[32:35]")
    for n in range(5):
        k("s_mul_i32 s9, s31, 5")
        k(f"s_add_u32 s9, s9, {n}")
        k("s_lshl_b32 s14, s9, 6")
        k("v_add_u32 v18, s14, v1")
        k("v_mul_u32_u24 v19, 52429, v18")
        k("v_lshrrev_b32 v19, 23, v19          ; hh")
        k("v_mul_u32_u24 v20, 160, v19")
        k("v_sub_u32 v20, v18, v20             ; w")
        k("v_lshrrev_b32 v21, 6, v20")
        k("v_lshlrev_b32 v21, 1, v21")
        k("v_and_b32 v22, 1, v20")
        k("v_add_u32 v21, v21, v22")
        k("v_min_u32 v21, 4, v21")
        k("v_add_u32 v19, s35, v19             ; head")
        k("v_mad_u32_u24 v21, v19, 5, v21")
        k("v_subrev_u32 v21, s10, v21")
        k("v_cmp_gt_u32 vcc, 32, v21")
        k("v_mul_lo_u32 v19, s44, v19")
        k("v_lshl_add_u32 v19, v20, 3, v19")
        k("v_mov_b32 v22, 0x7ffffff0")
        k("v_cndmask_b32 v19, v22, v19, vcc")
        k("s_add_u32 s9, s9, 16")
        k("s_lshr_b32 s14, s9, 2")
        k("s_lshl_b32 s14, s14, 10")
        k("s_and_b32 s9, s9, 3")
        k("s_lshl_b32 s9, s9, 2")
        k("s_add_u32 s9, s9, s14")
        k("v_add_u32 v31, s9, v30")
        k("ds_write_b32 v31, v19")
    k("s_branch P2T_END")
    k.label("P2T_V")
    k("v_and_b32 v25, 31, v1")
    k("v_lshrrev_b32 v24, 5, v1")
    k(f"v_mul_u32_u24 v24, {VSEG}, v24")
    k("s_sub_u32 s10, s12, 10")
    k("s_lshl_b32 s10, s10, 7")
    k("s_lshl_b32 s9, s31, 5")
    k("s_add_u32 s10, s10, s9")
    k("v_add_u32 v18, s10, v25")
    k("v_mul_u32_u24 v19, 3277, v18")
    k("v_lshrrev_b32 v19, 16, v19")
    k("v_mul_u32_u24 v20, 20, v19")
    k("v_sub_u32 v20, v18, v20")
    k(f"s_mov_b32 s10, {KV_HEAD}")
    k("v_mul_lo_u32 v19, s10, v19")
    k("v_lshlrev_b32 v20, 4, v20")
    k("v_add3_u32 v19, v19, v20, v24")
    k("s_lshl_b32 s9, s31, 2")
    k("v_add_u32 v31, s9, v30")
    k("ds_write_b32 v31, v19")
    k.label("P2T_END")
    k("s_waitcnt lgkmcnt(0)")

def phase2_compute(k):
    AF, BF, ACC, RA, RB, EA, GA = (QA[x] for x in ("AF", "BF", "ACC", "RA", "RB", "EA", "GA"))
    k.label("P2_START")
    k("s_cmp_ge_u32 s12, 15")
    k("s_cbranch_scc1 P3_START")
    def reads(step):
        st, ks = divmod(step, 4); slot = st % QNS; sb = step & 1
        bs, off = slot >> 1, (slot & 1) * 32768
        a = f"ds_read_b128 v[{AF+4*sb}:{AF+4*sb+3}], v{RA+4*bs+ks} offset:{off}"
        out = []
        for nt in range(4):
            d = BF + (sb * 4 + nt) * 4
            g = [f"ds_read_b64_tr_b16 v[{d+2*j}:{d+2*j+1}], v{RB+4*bs+nt} offset:{off + (16*ks+4*j)*256}" for j in range(2)]
            out.append(([a] if nt == 0 else []) + g)
        return out
    def mf(swap):
        def f(step, nt):
            sb = step & 1; a = AF + 4 * sb; b = BF + (sb * 4 + nt) * 4; d = ACC + 16 * nt
            c = "0" if step == 0 else None
            return [mfma32(d, a, b, c) if swap else mfma32(d, b, a, c)]
        return f
    k("v_lshlrev_b32 v2, 4, v1")
    k(f"v_add_u32 v2, {TBL}, v2")
    for g in range(9): k(f"ds_read_b128 v[{EA+4*g}:{EA+4*g+3}], v2 offset:{1024*g}")
    k("s_waitcnt lgkmcnt(0)")
    k("s_cmp_ge_u32 s12, 10")
    k("s_cbranch_scc1 P2_V")
    for r in range(16): k(f"v_add_u32 v{EA+r}, s43, v{EA+r}")
    k("s_cmp_ge_u32 s12, 5")
    k("s_cbranch_scc1 P2_K")
    wsrd(k, 24, 32 * 64 * 1280, WS_Q)
    k("s_branch P2_QK")
    k.label("P2_K")
    wsrd(k, 24, 32 * KV_HEAD, WS_KV)
    k.label("P2_QK")
    k("s_barrier                        ; B_d")
    def qapf():
        if APF: apf_rows(k, WS_H, S * D * 2, lambda: k("s_lshl_b32 s9, s11, 7"), 1280, 7, 0, 10, lambda: k("s_and_b32 s9, s12, 7"), 160, 28, 229)
    qapf()
    compute_loop(k, 10, 4, reads, mf(False), 0, stamp=False)
    mark(k, 3)
    k("v_mov_b32 v2, s41")
    k("v_mov_b32 v3, s41")
    for nt in range(4):
        for j in range(4):
            a_ = ACC + 16 * nt + 4 * j
            t = 28 + 2 * (j % 4)
            k(f"v_pk_mul_f32 v[{a_}:{a_+1}], v[{a_}:{a_+1}], v[2:3]")
            k(f"v_pk_mul_f32 v[{a_+2}:{a_+3}], v[{a_+2}:{a_+3}], v[2:3]")
            k(f"v_cvt_pk_bf16_f32 v{t}, v{a_}, v{a_+1}")
            k(f"v_cvt_pk_bf16_f32 v{t+1}, v{a_+2}, v{a_+3}")
            k(f"ds_write_b64 v{EA+4*nt+j}, v[{t}:{t+1}]")
    k("v_lshlrev_b32 v2, 3, v1")
    k("v_add_u32 v2, s43, v2")
    k("s_waitcnt lgkmcnt(0)")
    for i in range(20):
        k(f"ds_read_b64 v[{ACC+2*i}:{ACC+2*i+1}], v2 offset:{512*i}")
        if i >= 9:
            k("s_waitcnt lgkmcnt(9)")
            k(f"buffer_store_dwordx2 v[{ACC+2*(i-9)}:{ACC+2*(i-9)+1}], v{GA+i-9}, s[24:27], s42 offen sc1")
    for i in range(11, 20):
        k(f"s_waitcnt lgkmcnt({19-i})")
        k(f"buffer_store_dwordx2 v[{ACC+2*i}:{ACC+2*i+1}], v{GA+i}, s[24:27], s42 offen sc1")
    k("s_branch P2_DONE")
    k.label("P2_V")
    wsrd(k, 24, 32 * KV_HEAD, WS_KV)
    k("s_barrier                        ; B_d")
    qapf()
    compute_loop(k, 10, 4, reads, mf(True), 0, stamp=False)
    mark(k, 3)
    for nt in range(4):
        for m in range(2):
            a_ = ACC + 16 * nt + 8 * m
            t = 28 + 4 * m
            for q in range(4):
                k(f"v_cvt_pk_bf16_f32 v{t+q}, v{a_+2*q}, v{a_+2*q+1}")
            k(f"buffer_store_dwordx4 v[{t}:{t+3}], v{EA+nt}, s[24:27], s42 offen offset:{2*VSEG*m} sc1")
    k.label("P2_DONE")
    if not os.environ.get("NO_BE"): k("s_barrier                        ; B_e")
    if os.environ.get("QDIAG"): mark(k, 31)
    k("s_waitcnt vmcnt(0)")
    k("s_lshl_b32 s34, s12, 4")
    k("s_add_u32 s34, s34, s11")
    mark(k, 19)
    last_arriver_flag(k, "P2C", CTL + 4, 3, FL_QKV, 34)
    k("s_branch P3_START")

def phase3(k):
    from k_attn2 import STAGE, Q1, Q2, KA, KB, VF, SS, PP, OO, AK, AKB, AV, VDMA
    vm = VM(k)
    FLAG = CTL + 12
    k.label("P3_START")
    k("s_and_b32 s11, s2, 7")
    k("s_lshl_b32 s11, s11, 2")
    k("s_bfe_u32 s12, s2, 0x20003")
    k("s_add_u32 s11, s11, s12          ; head")
    k("s_lshr_b32 s12, s2, 5")
    k(f"s_mul_i32 s9, s11, {KV_HEAD}")
    k("s_lshl_b32 s13, s8, 10")
    k("s_add_u32 s9, s9, s13")
    k("v_lshlrev_b32 v4, 4, v1")
    k(f"v_add_u32 v{VDMA}, s9, v4")
    k("v_and_b32 v2, 31, v1")
    k("s_lshl_b32 s9, s12, 3")
    k("s_add_u32 s9, s9, s8")
    k("s_mul_i32 s9, s9, 1280")
    k("s_mul_i32 s10, s11, 81920")
    k("s_add_u32 s9, s9, s10")
    k("v_add_u32 v10, s9, v4")
    k("v_lshlrev_b32 v5, 3, v2")
    k("v_add_u32 v5, s9, v5")
    k("v_lshrrev_b32 v3, 5, v1          ; half")
    for sl in range(3):
        k(f"v_lshlrev_b32 v{AK+sl}, 4, v1")
        if sl: k(f"v_add_u32 v{AK+sl}, {sl*STAGE}, v{AK+sl}")
        k(f"v_lshlrev_b32 v{AKB+sl}, 3, v2")
        k(f"v_add_u32 v{AKB+sl}, {sl*STAGE + 1024}, v{AKB+sl}")
        k(f"v_mul_u32_u24 v{AV+sl}, {VSEG}, v3")
        k(f"v_lshl_add_u32 v{AV+sl}, v2, 4, v{AV+sl}")
        k(f"v_add_u32 v{AV+sl}, {sl*STAGE + 1280}, v{AV+sl}")
    k("s_lshl_b32 s9, s12, 8")
    k("s_lshl_b32 s10, s8, 5")
    k("s_add_u32 s9, s9, s10")
    k("v_add_u32 v4, s9, v2             ; token")
    k("v_mul_u32_u24 v4, 1280, v4")
    k("s_mul_i32 s9, s11, 40")
    k("v_add_u32 v4, s9, v4")
    k("v_lshl_add_u32 v11, v3, 3, v4")
    k("s_mul_i32 s9, s8, 160")
    k("s_mul_i32 s10, s11, 81920")
    k("s_lshl_b32 s15, s12, 9")
    k("s_add_u32 s10, s10, s15")
    for i in range(3):
        k(f"v_add_u32 v6, {64*i}, v1")
        k("v_add_u32 v6, s9, v6")
        k("v_lshrrev_b32 v7, 5, v6")
        k("v_and_b32 v8, 31, v6")
        k("v_lshlrev_b32 v7, 12, v7")
        k("v_lshl_add_u32 v7, v8, 4, v7")
        k(f"v_add_u32 v{128+i}, s10, v7")
    k("v_cmp_gt_u32 vcc, 32, v1")
    k("v_mov_b32 v6, 0x7ffffff0")
    k("v_cndmask_b32 v130, v6, v130, vcc")
    for r in range(16): k(f"v_mov_b32 v{OO+r}, 0")
    wsrd(k, 16, 32 * KV_HEAD, WS_KV)
    wsrd(k, 20, S * D * 2, WS_Q)
    wsrd(k, 24, S * D * 2, WS_O)
    k("s_cmp_lg_u32 s8, 4")
    k("s_cbranch_scc1 P3_GO")
    k("s_mul_i32 s9, s11, 20")
    k("s_lshr_b32 s10, s9, 7")
    k("s_add_u32 s9, s9, 19")
    k("s_lshr_b32 s9, s9, 7")
    k("v_bfe_u32 v20, v1, 4, 1")
    k("s_sub_u32 s15, s9, s10")
    k("v_mul_u32_u24 v20, s15, v20")
    k("v_add_u32 v20, s10, v20")
    k("v_lshrrev_b32 v21, 5, v1")
    k("v_mul_u32_u24 v21, 5, v21")
    k("v_add3_u32 v20, v20, v21, 5")
    k("v_and_b32 v21, 15, v1")
    k("v_lshl_add_u32 v20, v20, 4, v21")
    k("v_lshlrev_b32 v20, 7, v20")
    k(f"v_add_u32 v20, {FL_QKV}, v20")
    flag_srd(k)
    poll(k, "P3_KV", 20, "-1", 21)
    k("v_bfe_u32 v20, v1, 1, 1")
    k("v_mul_u32_u24 v20, s15, v20")
    k("v_add_u32 v20, s10, v20")
    k("v_and_b32 v21, 1, v1")
    k("s_lshl_b32 s9, s12, 1")
    k("v_add_u32 v21, s9, v21")
    k("v_lshl_add_u32 v20, v20, 4, v21")
    k("v_lshlrev_b32 v20, 7, v20")
    k(f"v_add_u32 v20, {FL_QKV}, v20")
    poll(k, "P3_Q", 20, "0xf", 21)
    mark(k, 24)
    k.label("P3_GO")
    k("s_barrier                        ; B_g")
    mark(k, 4)
    def dma_item(st, slot, i):
        L = [f"s_add_u32 m0, s13, {slot*STAGE + 8192*i}", f"s_mov_b32 s14, {st*STAGE + 8192*i}"]
        return L, f"buffer_load_dwordx4 v{VDMA}, s[16:19], s14 offen sc1 lds"
    def emit_dma(st, slot, i):
        L, ld = dma_item(st, slot, i)
        for l in L: k(l)
        vm.issue(ld, ("kv", st, i))
    def emit_stage_first(st, slot):
        L, ld = dma_item(st, slot, 5)
        lab = f"ATT_NP_{st}"
        k("s_cmp_ge_u32 s8, 4")
        k(f"s_cbranch_scc1 {lab}")
        for l in L: k(l)
        k(ld)
        k.label(lab)
    vm.issue(f"buffer_load_dwordx4 v[{Q1}:{Q1+3}], v10, s[20:23], 0 offen sc1", "q")
    vm.issue(f"buffer_load_dwordx2 v[{Q2}:{Q2+1}], v5, s[20:23], 0 offen offset:1024 sc1", "q")
    emit_stage_first(0, 0)
    for i in range(5): emit_dma(0, 0, i)
    vm.wait({"q", ("kv", 0, 0), ("kv", 0, 1)})
    k("v_cmp_gt_u32 vcc, 32, v1")
    k(f"v_cndmask_b32 v{Q2}, 0, v{Q2}, vcc")
    k(f"v_cndmask_b32 v{Q2+1}, 0, v{Q2+1}, vcc")
    k("s_barrier")
    mark(k, 5)
    def rdK(t):
        st, tt = divmod(t, 16); sl = st % 3; b = t & 1
        return [f"ds_read_b128 v[{KA+4*b}:{KA+4*b+3}], v{AK+sl} offset:{tt*KV_TILE}",
                f"ds_read_b64 v[{KB+2*b}:{KB+2*b+1}], v{AKB+sl} offset:{tt*KV_TILE}"]
    def rdV(t):
        st, tt = divmod(t, 16); sl = st % 3; b = t & 1
        return [f"ds_read_b128 v[{VF+8*b+4*m}:{VF+8*b+4*m+3}], v{AV+sl} offset:{tt*KV_TILE + 2*VSEG*m}" for m in range(2)]
    def M1(t): b = t & 1; return m16(SS + 16 * b, KA + 4 * b, Q1, "0")
    def M2(t): b = t & 1; d = SS + 16 * b; return m8(d, KB + 2 * b, Q2, f"v[{d}:{d+15}]")
    def PV(t, m): b = t & 1; return m16(OO, VF + 8 * b + 4 * m, PP + 4 * m, f"v[{OO}:{OO+15}]")
    NTL = 64
    bg = {}
    def put(t, f): bg.setdefault(t, []).append(f)
    def stage_items(st, t0, step):
        slot = st % 3
        put(t0, lambda: emit_stage_first(st, slot))
        for i in range(5): put(t0 + step * i, (lambda i=i: emit_dma(st, slot, i)))
    stage_items(1, 0, 2); stage_items(2, 14, 1); stage_items(3, 30, 2)
    def wd_addr():
        k("s_lshl_b32 s9, s2, 9")
        k("v_add_u32 v118, s9, v0")
        k("v_lshlrev_b32 v119, 4, v118")
        srd(k, 36, WDP_, 1536 * 1280)
        vm.issue("buffer_load_dwordx4 v[120:123], v119, s[36:39], 0 offen", "wd")
    def wd_dst():
        divconst(k, 124, 118, 80, 9, 131072)
        k("v_mul_u32_u24 v125, 80, v124")
        k("v_sub_u32 v125, v118, v125")
        divconst(k, 126, 125, 10, 9, 80)
        k("v_mul_u32_u24 v127, 10, v126")
        k("v_sub_u32 v125, v125, v127")
        k("v_and_b32 v127, 0xfffffff3, v124")
        k("v_bfe_u32 v119, v124, 2, 1")
        k("v_lshl_or_b32 v127, v119, 3, v127")
        k("v_bfe_u32 v119, v124, 3, 1")
        k("v_lshl_or_b32 v127, v119, 2, v127")
        k(f"s_mov_b32 s9, {1536*160}")
        k("v_mul_lo_u32 v126, s9, v126")
        k("v_mul_u32_u24 v127, 160, v127")
        k("v_lshlrev_b32 v125, 4, v125")
        k("v_add3_u32 v119, v126, v125, v127")
        k("s_mov_b32 s9, 122880")
        k("v_cmp_gt_u32 vcc, s9, v118")
        k("v_mov_b32 v124, 0x7ffffff0")
        k("v_cndmask_b32 v119, v124, v119, vcc")
        wsrd(k, 36, 8 * 1536 * 160, WS_WDP)
    put(15, wd_addr); put(20, wd_dst)
    put(31, lambda: vm.issue("buffer_store_dwordx4 v[120:123], v119, s[36:39], 0 offen sc1", "wdst"))
    def only_job_waves(tag, f):
        def g():
            k("s_cmp_lt_u32 s8, 4")
            k(f"s_cbranch_scc1 P3_J{tag}")
            f()
            k.label(f"P3_J{tag}")
        return g
    put(5, only_job_waves("a", lambda: wjob_store_w(k)))
    put(6, only_job_waves("b", lambda: wjob_store_rest(k)))
    def job_flag():
        k("s_cmp_lg_u32 s8, 4")
        k("s_cbranch_scc1 P3_NOTF")
        set_flag(k, FL_T, 2, 188)
        k.label("P3_NOTF")
    put(15, job_flag)
    def only_wave(w, tag, f):
        def g():
            k(f"s_cmp_lg_u32 s8, {w}")
            k(f"s_cbranch_scc1 P3_W{tag}")
            f()
            k.label(f"P3_W{tag}")
        return g
    put(55, only_wave(1, "ta", lambda: check_all_issue(k, FL_T, 132)))
    def tfin():
        k("s_waitcnt vmcnt(0)")
        check_all_finish(k, "P3_TALL", FL_T, 132)
    put(61, only_wave(1, "tb", tfin))
    def pf_lines(off, nbytes, base_fn, per, vtag):
        def f():
            wsrd(k, 40, nbytes, off)
            base_fn()
            k("s_lshr_b32 s10, s2, 3")
            k(f"s_mul_i32 s10, s10, {per}")
            k("s_add_u32 s9, s9, s10")
            k("v_add_u32 v118, s9, v0")
            k("v_lshlrev_b32 v118, 7, v118")
            k(f"v_cmp_gt_u32 vcc, {per}, v0")
            k("v_mov_b32 v124, 0x7ffffff0")
            k("v_cndmask_b32 v118, v124, v118, vcc")
            vm.issue(f"buffer_load_dword v{vtag}, v118, s[40:43], 0 offen", "pf")
        return f
    if not os.environ.get("NO_PRETOUCH"):
        def pretouch():
            wsrd(k, 40, S * D * 2, WS_X1)
            k("s_mul_i32 s9, s2, 80")
            k("v_add_u32 v118, s9, v0")
            k("v_lshlrev_b32 v118, 7, v118")
            k("v_cmp_gt_u32 vcc, 80, v0")
            k("v_mov_b32 v124, 0x7ffffff0")
            k("v_cndmask_b32 v118, v124, v118, vcc")
            vm.issue("buffer_load_dword v229, v118, s[40:43], 0 offen", "pf")
        put(35, pretouch)
    if not os.environ.get("NO_WPF"):
        put(49, pf_lines(WS_WOP, 8 * 640 * 160, lambda: k("s_mov_b32 s9, 0"), 200, 231))
        def upbase():
            k("s_bfe_u32 s9, s2, 0x20001")
            k("s_mul_i32 s9, s9, 7680")
        put(53, pf_lines(WS_WUP, 16 * 10 * 24576, upbase, 240, 230))
    SEQ = os.environ.get("ATT_SEQ", "W0 M1 RKa RKb e0 e1 e2 c0 e3 P1 RV0 RV1 e4 c1 e5 e6 M2 c2 e7 e8 c3 e9 e10 P0 BG c4 e11 e12 c5 e13 e14 e15 c6 c7")
    for r in rdK(0) + rdK(1) + rdV(0): k(r)
    k("s_waitcnt lgkmcnt(4)")
    k(M1(0)); k(M2(0))
    for t in range(NTL):
        s = SS + 16 * (t & 1)
        st, tt = divmod(t, 16)
        if t == 3:
            vm.wait({("kv", 0, i) for i in range(5)})
            k("s_barrier")
        if tt == 14 and st + 1 < 4:
            k("s_waitcnt vmcnt(0)")
            k("s_barrier")
        have_next = t + 1 < NTL
        rk = rdK(t + 2) if t + 2 < NTL else []
        rv = rdV(t + 1) if have_next else []
        nrd = len(rk) + len(rv)
        for tok in SEQ.split():
            if tok[0] == "e": i = int(tok[1:]); k(f"v_exp_f32 v{s+i}, v{s+i}")
            elif tok[0] == "c": q = int(tok[1:]); k(f"v_cvt_pk_bf16_f32 v{PP+q}, v{s+2*q}, v{s+2*q+1}")
            elif tok == "W2":
                if have_next: k("s_waitcnt lgkmcnt(2)")
            elif tok == "W0": k("s_waitcnt lgkmcnt(0)")
            elif tok == "M1":
                if have_next: k(M1(t + 1))
            elif tok == "M2":
                if have_next: k(M2(t + 1))
            elif tok == "RKa":
                if rk: k(rk[0])
            elif tok == "RKb":
                if rk: k(rk[1])
            elif tok == "RV0":
                if rv: k(rv[0])
            elif tok == "RV1":
                if rv: k(rv[1])
            elif tok == "WV": k(f"s_waitcnt lgkmcnt({nrd})")
            elif tok == "BG":
                for f in bg.get(t, []): f()
            elif tok == "P0": k(PV(t, 0))
            elif tok == "P1":
                if t > 0: k(PV(t - 1, 1))
    k(PV(NTL - 1, 1))
    mark(k, 6)
    def finish(check):
        k(f"v_mov_b32 v2, v{OO+8}")
        k(f"v_mov_b32 v3, v{OO+8}")
        k("v_permlane32_swap_b32 v2, v3")
        if check:
            k("s_mov_b32 s9, 0x21800000         ; 2^-60")
            k("s_mov_b32 s10, 0x5d800000        ; 2^60")
            k("v_cmp_le_f32 vcc, s9, v3")
            k("v_cmp_ge_f32 s[28:29], s10, v3")
            k("s_and_b64 s[28:29], s[28:29], vcc")
            k("s_movk_i32 s9, 0x207")
            for r in range(8):
                k(f"v_cmp_class_f32 vcc, v{OO+r}, s9")
                k("s_andn2_b64 s[28:29], s[28:29], vcc")
            k("s_mov_b32 s34, -1")
            k("s_mov_b32 s35, 0")
            for r in range(8, 12):
                k(f"v_cmp_class_f32 vcc, v{OO+r}, s9")
                k("s_and_b64 vcc, vcc, s[34:35]")
                k("s_andn2_b64 s[28:29], s[28:29], vcc")
            k("s_cmp_eq_u64 s[28:29], -1")
            k("s_cbranch_scc1 ATT_OK")
            k("v_mov_b32 v2, 1")
            k(f"v_mov_b32 v5, {FLAG}")
            k("ds_write_b32 v5, v2")
            k.label("ATT_OK")
            k("s_waitcnt lgkmcnt(0)")
            k("s_barrier")
            k(f"v_mov_b32 v5, {FLAG}")
            k("ds_read_b32 v2, v5")
            k("s_waitcnt lgkmcnt(0)")
            k("v_readfirstlane_b32 s9, v2")
            k("s_cmp_lg_u32 s9, 0")
            k("s_cbranch_scc1 ATT_SLOW")
        k("v_rcp_f32 v3, v3")
        for r in range(12): k(f"v_mul_f32 v{OO+r}, v{OO+r}, v3")
        for q in range(6): k(f"v_cvt_pk_bf16_f32 v{PP+q}, v{OO+2*q}, v{OO+2*q+1}")
        k("v_and_b32 v4, 31, v1")
        k("s_lshl_b32 s9, s8, 5")
        k("v_add_u32 v4, s9, v4")
        k("v_lshlrev_b32 v4, 1, v4")
        k("v_lshrrev_b32 v5, 5, v1")
        k("v_lshl_add_u32 v4, v5, 11, v4")
        for q in range(4):
            d = 8 * (q >> 1) + 2 * (q & 1)
            k(f"ds_write_b16 v4, v{PP+q} offset:{d*512}")
            k(f"ds_write_b16_d16_hi v4, v{PP+q} offset:{(d+1)*512}")
        k("s_mov_b32 exec_hi, 0")
        for q in range(4, 6):
            d = 16 + 2 * (q - 4)
            k(f"ds_write_b16 v4, v{PP+q} offset:{d*512}")
            k(f"ds_write_b16_d16_hi v4, v{PP+q} offset:{(d+1)*512}")
        k("s_mov_b64 exec, -1")
        k("s_waitcnt lgkmcnt(0)")
        k("s_branch P4_STAGED")
    finish(True)
    k.label("ATT_SLOW")
    k("s_waitcnt vmcnt(0)")
    for r in range(16): k(f"v_mov_b32 v{OO+r}, 0")
    k("v_mov_b32 v2, 0xff7fffff")
    k("s_mov_b32 s15, 0")
    k.label("ATT_SLOW_STAGE")
    k("s_barrier")
    k(f"s_mul_i32 s10, s15, {STAGE}")
    for i in range(5):
        k(f"s_add_u32 m0, s13, {8192*i}")
        k(f"s_add_u32 s14, s10, {8192*i}")
        k(f"buffer_load_dwordx4 v{VDMA}, s[16:19], s14 offen sc1 lds")
    k("s_cmp_ge_u32 s8, 4")
    k("s_cbranch_scc1 ATT_SLOW_NP")
    k(f"s_add_u32 m0, s13, {8192*5}")
    k(f"s_add_u32 s14, s10, {8192*5}")
    k(f"buffer_load_dwordx4 v{VDMA}, s[16:19], s14 offen sc1 lds")
    k.label("ATT_SLOW_NP")
    k("s_waitcnt vmcnt(0)")
    k("s_barrier")
    k(f"v_mov_b32 v5, v{AK}")
    k(f"v_mov_b32 v6, v{AKB}")
    k(f"v_mov_b32 v7, v{AV}")
    k("s_mov_b32 s9, 0")
    k.label("ATT_SLOW_TILE")
    k(f"ds_read_b128 v[{KA}:{KA+3}], v5")
    k(f"ds_read_b64 v[{KB}:{KB+1}], v6")
    k(f"ds_read_b128 v[{VF}:{VF+3}], v7")
    k(f"ds_read_b128 v[{VF+4}:{VF+7}], v7 offset:{2*VSEG}")
    k("s_waitcnt lgkmcnt(0)")
    k(m16(SS, KA, Q1, "0"))
    k(m8(SS, KB, Q2, f"v[{SS}:{SS+15}]"))
    k(f"v_add_u32 v5, {KV_TILE}, v5")
    k(f"v_add_u32 v6, {KV_TILE}, v6")
    k(f"v_add_u32 v7, {KV_TILE}, v7")
    k(f"v_max_f32 v108, v{SS}, v{SS+1}")
    for r in range(2, 16): k(f"v_max_f32 v108, v108, v{SS+r}")
    k("v_mov_b32 v109, v108")
    k("v_permlane32_swap_b32 v108, v109")
    k("v_max_f32 v108, v108, v109")
    k("v_max_f32 v108, v108, v2")
    k("v_sub_f32 v109, v2, v108")
    k("v_exp_f32 v109, v109")
    k("v_mov_b32 v2, v108")
    for r in range(16): k(f"v_sub_f32 v{SS+r}, v{SS+r}, v108")
    for r in range(16): k(f"v_exp_f32 v{SS+r}, v{SS+r}")
    for r in range(16): k(f"v_mul_f32 v{OO+r}, v{OO+r}, v109")
    for q in range(8): k(f"v_cvt_pk_bf16_f32 v{PP+q}, v{SS+2*q}, v{SS+2*q+1}")
    k(m16(OO, VF, PP, f"v[{OO}:{OO+15}]"))
    k(m16(OO, VF + 4, PP + 4, f"v[{OO}:{OO+15}]"))
    k("s_add_u32 s9, s9, 1")
    k("s_cmp_lt_u32 s9, 16")
    k("s_cbranch_scc1 ATT_SLOW_TILE")
    k("s_add_u32 s15, s15, 1")
    k("s_cmp_lt_u32 s15, 4")
    k("s_cbranch_scc1 ATT_SLOW_STAGE")
    k("s_barrier")
    finish(False)

def narrow_ids(k):
    k("s_and_b32 s3, s2, 7")
    k("s_lshr_b32 s13, s2, 3")
    k("s_lshl_b32 s14, s3, 2")
    k("s_and_b32 s15, s13, 3")
    k("s_add_u32 s11, s14, s15")
    k("s_lshr_b32 s12, s13, 2")
    k("s_and_b32 s28, s31, 1")
    k("s_lshr_b32 s29, s31, 1           ; k half")
    k("s_lshl_b32 s9, s11, 6")
    k("s_lshl_b32 s10, s28, 5")
    k("s_add_u32 s30, s9, s10")

RESL, GTL = 147456, 157696
def narrow_res_dma(k, resid_is_input, gate_idx):
    if resid_is_input: srd(k, 24, XP, S * D * 2)
    else: wsrd(k, 24, S * D * 2, WS_X1)
    wsrd(k, 36, 6 * 640 * 4, WS_MODV)
    k("v_and_b32 v16, 255, v0")
    k("s_lshl_b32 s9, s11, 6")
    k("s_mul_i32 s10, s12, 160")
    for i in range(3):
        k(f"v_add_u32 v17, {256*i}, v16")
        k("v_mul_u32_u24 v18, 6554, v17")
        k("v_lshrrev_b32 v18, 16, v18        ; row")
        k("v_mul_u32_u24 v19, 10, v18")
        k("v_sub_u32 v19, v17, v19           ; chunk")
        k("v_add_u32 v18, s9, v18")
        k("v_mul_u32_u24 v18, 1280, v18")
        k("v_lshl_add_u32 v18, v19, 4, v18")
        k("v_add_u32 v18, s10, v18")
        if i == 2:
            k("v_cmp_gt_u32 vcc, 640, v17")
            k("v_mov_b32 v19, 0x7ffffff0")
            k("v_cndmask_b32 v18, v19, v18, vcc")
        k("s_lshl_b32 s14, s31, 10")
        k(f"s_add_u32 m0, s14, {RESL + 4096*i}")
        if i == 2:
            k("s_cmp_ge_u32 s31, 2")
            k("s_cbranch_scc1 NRD_SKIP%d" % gate_idx)
        k("buffer_load_dwordx4 v18, s[24:27], 0 offen sc1 lds")
        if i == 2: k.label("NRD_SKIP%d" % gate_idx)
    k("s_cmp_lg_u32 s31, 3")
    k("s_cbranch_scc1 NRD_NG%d" % gate_idx)
    k("v_lshlrev_b32 v18, 4, v1")
    k("s_mul_i32 s14, s12, 320")
    k(f"s_add_u32 s14, s14, {gate_idx*2560}")
    k(f"s_mov_b32 m0, {GTL}")
    k("s_mov_b32 exec_lo, 0xfffff")
    k("s_mov_b32 exec_hi, 0")
    k("buffer_load_dwordx4 v18, s[36:39], s14 offen sc1 lds")
    k("s_mov_b64 exec, -1")
    k.label("NRD_NG%d" % gate_idx)

def narrow_loader_setup(k, Kdim, a_off, b_off, transposed=False):
    KH = Kdim // 2; NST = KH // 64; lda = Kdim * 2
    VA, VB, NS = 8, 12, 4
    if transposed:
        k("v_lshrrev_b32 v2, 3, v1")
        k("v_bfe_u32 v3, v1, 4, 1            ; k bit 1")
        k("v_and_b32 v4, 7, v1")
        k(f"s_mul_i32 s34, s29, {KH}")
        k("s_lshl_b32 s9, s28, 5")
        k("s_add_u32 s34, s34, s9")
        k("v_add_u32 v2, s34, v2")
        k("v_lshlrev_b32 v2, 12, v2")
        k("s_lshl_b32 s9, s11, 7")
        k("v_add_u32 v2, s9, v2")
        for i in range(4):
            k(f"v_or_b32 v5, {(i&1)*2}, v3")
            k("v_lshlrev_b32 v5, 1, v5")
            k("v_xor_b32 v5, v5, v4")
            k("v_lshlrev_b32 v5, 4, v5")
            k(f"v_add_u32 v5, {i*8*4096 - i*1024}, v5")
            k(f"v_add_u32 v{VA+i}, v2, v5")
    else:
        k(f"s_mul_i32 s34, s29, {KH*2}")
        a_dma_rows32(k, VA, 30, lda, 34)
    k("v_lshlrev_b32 v2, 4, v1")
    k(f"s_mul_i32 s9, s12, {Kdim*160}")
    k(f"s_mul_i32 s10, s29, {KH*160}")
    k("s_add_u32 s9, s9, s10")
    k("s_mul_i32 s10, s28, 5120")
    k("s_add_u32 s9, s9, s10")
    k(f"v_add_u32 v{VB}, s9, v2")
    k(f"v_add_u32 v{VB+1}, 4096, v{VB}")
    k("s_lshl_b32 s13, s31, 12")
    k("s_mul_i32 s15, s29, 10240")
    k("s_mul_i32 s10, s28, 5120")
    k("s_add_u32 s15, s15, s10")
    wsrd(k, 16, S * Kdim * 2, a_off)
    wsrd(k, 20, 8 * Kdim * 160, b_off)
    def dmaA(st):
        k(f"s_add_u32 m0, s13, {(st % NS)*16384}")
        k(f"s_mov_b32 s14, {st*64*4096 if transposed else st*128}")
        for i in range(4):
            k(f"buffer_load_dwordx4 v{VA+i}, s[16:19], s14 offen offset:{i*1024} sc1 lds")
    def dmaB(st):
        slot = st % NS
        k(f"s_add_u32 m0, s15, {65536 + slot*20480}")
        k(f"s_mov_b32 s14, {st*10240}")
        for i in range(4):
            k(f"buffer_load_dwordx4 v{VB}, s[20:23], s14 offen offset:{i*1024} sc1 lds")
        k(f"s_add_u32 m0, s15, {65536 + slot*20480 + 4096}")
        k("s_nop 0")
        k(f"buffer_load_dwordx4 v{VB+1}, s[20:23], s14 offen sc1 lds")
    return Loader(k, NST, NS, dmaA, dmaB, 4, 5)

def narrow_compute(k, tag, Kdim, resid_is_input, gate_idx, final, pre_barrier):
    KH = Kdim // 2; NST = KH // 64; NS = 4
    RA, RB, AF, BF, ACC, RES, GT = 4, 6, 12, 28, 68, 108, 120
    k("v_and_b32 v2, 15, v1")
    k("v_lshrrev_b32 v3, 4, v1          ; g")
    k("v_lshrrev_b32 v10, 1, v2")
    k("v_lshlrev_b32 v2, 7, v2")
    k("s_lshl_b32 s13, s8, 12")
    k("v_add_u32 v2, s13, v2")
    if final:
        for ks in range(2):
            k(f"v_add_u32 v11, {4*ks}, v3")
            k("v_xor_b32 v11, v11, v10")
            k(f"v_lshl_add_u32 v{RA+ks}, v11, 4, v2")
    else:
        k("v_bfe_u32 v10, v1, 2, 2           ; r4")
        k("v_lshl_add_u32 v2, v3, 3, v10")
        k("v_lshlrev_b32 v2, 7, v2")
        k("v_and_b32 v11, 3, v1")
        k("v_lshl_add_u32 v2, v11, 3, v2")
        k("s_lshl_b32 s9, s29, 13")
        k("v_add_u32 v2, s9, v2")
        k("v_lshrrev_b32 v10, 1, v10         ; k bit 1")
        k("v_and_b32 v11, 1, v3")
        k("v_lshl_or_b32 v10, v11, 1, v10    ; s")
        for mb in range(2):
            k("s_lshl_b32 s9, s28, 1")
            k(f"s_add_u32 s9, s9, {mb}")
            k("v_xor_b32 v11, s9, v10")
            k(f"v_lshl_add_u32 v{RA+mb}, v11, 5, v2")
    k("v_lshrrev_b32 v2, 5, v1")
    k("v_lshlrev_b32 v2, 4, v2")
    k("v_bfe_u32 v10, v1, 4, 1")
    k("v_lshl_add_u32 v2, v10, 2, v2")
    k("v_bfe_u32 v10, v1, 2, 2")
    k("v_add_u32 v2, v2, v10")
    k("v_mul_u32_u24 v2, 160, v2")
    k("v_and_b32 v10, 3, v1")
    k("v_lshl_add_u32 v2, v10, 3, v2")
    k("s_mul_i32 s10, s29, 10240")
    k("s_add_u32 s10, s10, 65536")
    k(f"v_add_u32 v{RB}, s10, v2")
    k(f"v_add_u32 v{RB+1}, 40960, v{RB}")
    k("v_and_b32 v2, 15, v1")
    k("s_lshl_b32 s10, s29, 4")
    k("s_add_u32 s10, s10, s30")
    k("v_add_u32 v2, s10, v2")
    k("v_mul_u32_u24 v8, 1280, v2")
    k("s_mul_i32 s10, s12, 160")
    k("v_lshl_add_u32 v8, v3, 3, v8")
    k("v_add_u32 v8, s10, v8")
    k("s_mul_i32 s10, s12, 320")
    k("v_lshlrev_b32 v9, 4, v3")
    k("v_add_u32 v9, s10, v9")
    if final: srd(k, 32, OUTP, S * D * 2)
    else: wsrd(k, 32, S * D * 2, WS_X1)
    XL, XG = 144, 148
    EXB = 0 if final else 16384
    k("v_lshlrev_b32 v10, 4, v1")
    k("s_mul_i32 s9, s8, 5120")
    k(f"s_add_u32 s9, s9, {EXB}")
    k("v_add_u32 v151, s9, v10")
    k("s_xor_b32 s10, s8, 2")
    k("s_mul_i32 s10, s10, 5120")
    k(f"s_add_u32 s10, s10, {EXB}")
    k("v_add_u32 v152, s10, v10")
    k("v_and_b32 v10, 15, v1")
    k("s_lshl_b32 s10, s29, 4")
    k("s_lshl_b32 s9, s28, 5")
    k("s_add_u32 s10, s10, s9")
    k("v_add_u32 v11, s10, v10")
    k("v_mul_u32_u24 v11, 160, v11")
    k("v_lshrrev_b32 v140, 4, v1")
    k("v_lshl_add_u32 v11, v140, 3, v11")
    k(f"v_add_u32 v153, {RESL}, v11")
    k("v_lshlrev_b32 v140, 4, v140")
    k(f"v_add_u32 v154, {GTL}, v140")
    k("s_lshl_b32 s10, s29, 4")
    k("s_lshl_b32 s9, s28, 5")
    k("s_add_u32 s10, s10, s9")
    k("v_add_u32 v11, s10, v10")
    k("v_lshlrev_b32 v155, 3, v11")
    k("s_lshl_b32 s9, s11, 12")
    k("s_lshl_b32 s10, s12, 9")
    k("s_add_u32 s9, s9, s10")
    k("v_add_u32 v155, s9, v155")
    k("s_mul_i32 s9, s8, 3072")
    k(f"s_add_u32 s9, s9, {EXB + 20480}")
    k("s_lshl_b32 s10, s29, 4")
    k("s_add_u32 s10, s10, s30")
    k("s_mul_i32 s40, s12, 160")
    for i in range(3):
        k(f"v_add_u32 v10, {64*i}, v1")
        k("v_mul_u32_u24 v11, 6554, v10")
        k("v_lshrrev_b32 v11, 16, v11        ; row")
        k("v_mul_u32_u24 v140, 10, v11")
        k("v_sub_u32 v140, v10, v140         ; chunk")
        k("v_lshlrev_b32 v140, 4, v140")
        k("v_mul_u32_u24 v141, 176, v11")
        k(f"v_add3_u32 v{XL+i}, v141, v140, s9")
        k("v_add_u32 v11, s10, v11")
        k("v_mul_u32_u24 v11, 1280, v11")
        k(f"v_add3_u32 v{XG+i}, v11, v140, s40")
    k("v_cmp_gt_u32 vcc, 32, v1")
    k("v_mov_b32 v10, 0x7ffffff0")
    k(f"v_cndmask_b32 v{XG+2}, v10, v{XG+2}, vcc")
    k("v_and_b32 v10, 15, v1")
    k("v_mul_u32_u24 v10, 176, v10")
    k("v_lshrrev_b32 v11, 4, v1")
    k("v_lshlrev_b32 v11, 3, v11")
    k("v_add3_u32 v147, v10, v11, s9")
    pre_barrier()
    if APF: apf_rows(k, WS_G if final else WS_O, S * Kdim * 2, lambda: k("s_lshl_b32 s9, s11, 6"), Kdim * 2, 6, 0, NST,
                     lambda: k("s_mov_b32 s9, s12"), 128 * NST // 8, 10, 229, khalf=KH * 2)
    def reads(step):
        st, ks = divmod(step, 2); slot = st % NS; sb = step & 1
        if final:
            a = [f"ds_read_b128 v[{AF+(sb*2+mb)*4}:{AF+(sb*2+mb)*4+3}], v{RA+ks} offset:{slot*16384 + mb*2048}" for mb in range(2)]
        else:
            a = [f"ds_read_b64_tr_b16 v[{AF+(sb*2+mb)*4+2*j}:{AF+(sb*2+mb)*4+2*j+1}], v{RA+mb} offset:{slot*16384 + (32*ks+4*j)*128}" for mb in range(2) for j in range(2)]
        out = []
        for nt in range(5):
            d = BF + (sb * 5 + nt) * 4
            g = [f"ds_read_b64_tr_b16 v[{d+2*j}:{d+2*j+1}], v{RB+(slot>>1)} offset:{(slot&1)*20480 + (32*ks+8*j)*160 + nt*32}" for j in range(2)]
            out.append((a if nt == 0 else []) + g)
        return out
    def mf(step, nt):
        sb = step & 1
        return [mfma16(ACC + (nt * 2 + mb) * 4, BF + (sb * 5 + nt) * 4, AF + (sb * 2 + mb) * 4, "0" if step == 0 else None) for mb in range(2)]
    compute_loop(k, NST, 2, reads, mf, 0, stamp=False, hooks={-1: lambda: mark(k, 21 if final else 23)})
    mark(k, 9 if not final else 15)
    k(f"s_cmp_eq_u32 s29, 0")
    k(f"s_cbranch_scc1 {tag}_KH0")
    for nt in range(5):
        d = ACC + (nt * 2 + 0) * 4
        k(f"ds_write_b128 v151, v[{d}:{d+3}] offset:{1024*nt}")
    for nt in range(5):
        for r in range(0, 4, 2): k(f"v_pk_mov_b32 v[{ACC+(nt*2)*4+r}:{ACC+(nt*2)*4+r+1}], v[{ACC+(nt*2+1)*4+r}:{ACC+(nt*2+1)*4+r+1}], v[{ACC+(nt*2+1)*4+r}:{ACC+(nt*2+1)*4+r+1}] op_sel:[0,1]")
    k(f"s_branch {tag}_JOIN")
    k.label(f"{tag}_KH0")
    for nt in range(5):
        d = ACC + (nt * 2 + 1) * 4
        k(f"ds_write_b128 v151, v[{d}:{d+3}] offset:{1024*nt}")
    k.label(f"{tag}_JOIN")
    for nt in range(5):
        k(f"ds_read_b64 v[{RES+2*nt}:{RES+2*nt+1}], v153 offset:{32*nt}")
        k(f"ds_read_b128 v[{GT+4*nt}:{GT+4*nt+3}], v154 offset:{64*nt}")
    k("s_waitcnt lgkmcnt(10)")
    k("s_barrier")
    for nt in range(5):
        k(f"ds_read_b128 v[{BF+4*nt}:{BF+4*nt+3}], v152 offset:{1024*nt}")
    st_sc = "" if final else " sc1"
    PKD = 12
    for nt in range(5):
        d = ACC + nt * 8
        k(f"s_waitcnt lgkmcnt({4 - nt + (nt > 0) * min(nt, 1) * nt})" if False else f"s_waitcnt lgkmcnt({4 - nt + nt})" if False else f"s_waitcnt lgkmcnt(4)")
        for r in range(0, 4, 2): k(f"v_pk_add_f32 v[{d+r}:{d+r+1}], v[{d+r}:{d+r+1}], v[{BF+4*nt+r}:{BF+4*nt+r+1}]")
        k(f"v_lshlrev_b32 v22, 16, v{RES+2*nt}")
        k(f"v_and_b32 v23, 0xffff0000, v{RES+2*nt}")
        k(f"v_lshlrev_b32 v24, 16, v{RES+2*nt+1}")
        k(f"v_and_b32 v25, 0xffff0000, v{RES+2*nt+1}")
        for r in range(0, 4, 2): k(f"v_pk_fma_f32 v[{22+r}:{23+r}], v[{d+r}:{d+r+1}], v[{GT+4*nt+r}:{GT+4*nt+r+1}], v[{22+r}:{23+r}]")
        k(f"v_cvt_pk_bf16_f32 v{PKD+2*nt}, v22, v23")
        k(f"v_cvt_pk_bf16_f32 v{PKD+2*nt+1}, v24, v25")
        k(f"ds_write_b64 v147, v[{PKD+2*nt}:{PKD+2*nt+1}] offset:{32*nt}")
    k("s_waitcnt lgkmcnt(0)")
    for i in range(3): k(f"ds_read_b128 v[{BF+4*i}:{BF+4*i+3}], v{144+i}")
    for i in range(3):
        k(f"s_waitcnt lgkmcnt({2-i})")
        k(f"buffer_store_dwordx4 v[{BF+4*i}:{BF+4*i+3}], v{148+i}, s[32:35], 0 offen{st_sc}")
    if not final:
        for nt in range(5):
            t = PKD + 2 * nt
            k(f"v_lshlrev_b32 v22, 16, v{t}")
            k(f"v_and_b32 v23, 0xffff0000, v{t}")
            k(f"v_lshlrev_b32 v24, 16, v{t+1}")
            k(f"v_and_b32 v25, 0xffff0000, v{t+1}")
            if nt == 0:
                k("v_pk_add_f32 v[26:27], v[22:23], v[24:25]")
                k("v_pk_mul_f32 v[44:45], v[22:23], v[22:23]")
            else:
                k("v_pk_add_f32 v[26:27], v[26:27], v[22:23]")
                k("v_pk_fma_f32 v[44:45], v[22:23], v[22:23], v[44:45]")
                k("v_pk_add_f32 v[26:27], v[26:27], v[24:25]")
            k("v_pk_fma_f32 v[44:45], v[24:25], v[24:25], v[44:45]")
        k("v_add_f32 v26, v26, v27")
        k("v_add_f32 v27, v44, v45")
        for sw in ("v_permlane32_swap_b32", "v_permlane16_swap_b32"):
            k("v_mov_b32 v44, v26"); k("v_mov_b32 v45, v27")
            k(f"{sw} v26, v44"); k(f"{sw} v27, v45")
            k("v_add_f32 v26, v26, v44"); k("v_add_f32 v27, v27, v45")
        wsrd(k, 24, 2048 * 64, WS_STAT)
        k("s_mov_b64 exec, 0xffff")
        k("buffer_store_dwordx2 v[26:27], v155, s[24:27], 0 offen sc1")
        k("s_mov_b64 exec, -1")

def up_ids(k):
    k("s_and_b32 s3, s2, 7")
    k("s_lshr_b32 s13, s2, 3")
    k("s_and_b32 s14, s3, 1")
    k("s_lshl_b32 s14, s14, 3")
    k("s_and_b32 s15, s13, 7")
    k("s_add_u32 s11, s14, s15")
    k("s_lshr_b32 s14, s3, 1")
    k("s_lshl_b32 s14, s14, 2")
    k("s_lshr_b32 s15, s13, 3")
    k("s_add_u32 s12, s14, s15")

def up_loader_setup(k):
    VA, VB, NS = 8, 12, 4
    k("s_lshl_b32 s9, s11, 7")
    k("s_lshl_b32 s10, s31, 5")
    k("s_add_u32 s9, s9, s10")
    a_dma_rows32(k, VA, 9, 1280)
    k("v_lshlrev_b32 v2, 4, v1")
    k("s_mul_i32 s9, s31, 6144")
    k(f"s_mul_i32 s10, s12, {10*24576}")
    k("s_add_u32 s9, s9, s10")
    k(f"v_add_u32 v{VB}, s9, v2")
    k(f"v_add_u32 v{VB+1}, 4096, v{VB}")
    k("s_lshl_b32 s13, s31, 12")
    k("s_mul_i32 s15, s31, 6144")
    wsrd(k, 16, S * D * 2, WS_X1)
    wsrd(k, 20, 16 * 10 * 24576, WS_WUP)
    def dmaA(st):
        k(f"s_add_u32 m0, s13, {(st % NS)*16384}")
        k(f"s_mov_b32 s14, {st*128}")
        for i in range(4):
            k(f"buffer_load_dwordx4 v{VA+i}, s[16:19], s14 offen offset:{i*1024} sc1 lds")
    def dmaB(st):
        slot = st % NS
        k(f"s_add_u32 m0, s15, {65536 + slot*24576}")
        k(f"s_mov_b32 s14, {st*24576}")
        for i in range(4):
            k(f"buffer_load_dwordx4 v{VB}, s[20:23], s14 offen offset:{i*1024} sc1 lds")
        k(f"s_add_u32 m0, s15, {65536 + slot*24576 + 4096}")
        k("s_nop 0")
        for i in range(2):
            k(f"buffer_load_dwordx4 v{VB+1}, s[20:23], s14 offen offset:{i*1024} sc1 lds")
    return Loader(k, 10, NS, dmaA, dmaB, 4, 6)

def up_compute(k, pre_barrier):
    AF, BF, ACC, RA, RB, NS = 16, 24, 72, 4, 8, 4
    k("v_and_b32 v2, 31, v1")
    k("v_lshrrev_b32 v3, 5, v1")
    k("v_bfe_u32 v14, v2, 1, 3")
    k("v_lshlrev_b32 v2, 7, v2")
    k("s_lshl_b32 s10, s8, 12")
    k("v_add_u32 v2, s10, v2")
    for ks in range(4):
        k(f"v_add_u32 v15, {2*ks}, v3")
        k("v_xor_b32 v15, v15, v14")
        k(f"v_lshl_add_u32 v{RA+ks}, v15, 4, v2")
    k("v_lshrrev_b32 v2, 5, v1")
    k("v_bfe_u32 v3, v1, 2, 2")
    k("v_lshl_add_u32 v2, v2, 3, v3")
    k("v_mul_u32_u24 v2, 192, v2")
    k("v_bfe_u32 v14, v1, 4, 1")
    k("v_lshl_add_u32 v2, v14, 5, v2")
    k("v_and_b32 v14, 3, v1")
    k("v_lshl_add_u32 v2, v14, 3, v2")
    k(f"v_add_u32 v{RB}, 65536, v2")
    k(f"v_add_u32 v{RB+1}, {65536+49152}, v2")
    k("v_and_b32 v2, 31, v1")
    k("s_lshl_b32 s9, s11, 7")
    k("s_lshl_b32 s10, s8, 5")
    k("s_add_u32 s9, s9, s10")
    k("v_add_u32 v2, s9, v2")
    k("v_lshlrev_b32 v2, 6, v2")
    wsrd(k, 44, 2048 * 64, WS_STAT)
    GST, GL, GG = 131072, 200, 206
    k("s_mul_i32 s9, s8, 6656")
    k(f"s_add_u32 s9, s9, {GST}")
    k("s_lshl_b32 s10, s11, 7")
    k("s_lshl_b32 s34, s8, 5")
    k("s_add_u32 s10, s10, s34")
    k("s_mul_i32 s34, s12, 192")
    for i in range(6):
        k(f"v_add_u32 v14, {64*i}, v1")
        k("v_mul_u32_u24 v15, 5462, v14")
        k("v_lshrrev_b32 v15, 16, v15        ; row")
        k("v_mul_u32_u24 v16, 12, v15")
        k("v_sub_u32 v16, v14, v16           ; chunk")
        k("v_lshlrev_b32 v16, 4, v16")
        k("v_mul_u32_u24 v17, 208, v15")
        k(f"v_add3_u32 v{GL+i}, v17, v16, s9")
        k("v_add_u32 v15, s10, v15")
        k("v_mul_u32_u24 v15, 3072, v15")
        k(f"v_add3_u32 v{GG+i}, v15, v16, s34")
    k("v_and_b32 v14, 31, v1")
    k("v_mul_u32_u24 v14, 208, v14")
    k("v_lshrrev_b32 v15, 5, v1")
    k("v_lshlrev_b32 v15, 4, v15")
    k("v_add3_u32 v212, v14, v15, s9")
    pre_barrier()
    STT = 168
    def reads(step):
        st, ks = divmod(step, 4); slot = st % NS; sb = step & 1
        a = f"ds_read_b128 v[{AF+4*sb}:{AF+4*sb+3}], v{RA+ks} offset:{slot*16384}"
        out = []
        for nt in range(6):
            d = BF + (sb * 6 + nt) * 4
            off = (slot & 1) * 24576 + (nt // 3) * 12288 + (nt % 3) * 64
            g = [f"ds_read_b64_tr_b16 v[{d+2*j}:{d+2*j+1}], v{RB+(slot>>1)} offset:{off + (16*ks+4*j)*192}" for j in range(2)]
            out.append(([a] if nt == 0 else []) + g)
        return out
    def mf(step, nt):
        sb = step & 1
        return [mfma32(ACC + 16 * nt, BF + (sb * 6 + nt) * 4, AF + 4 * sb, "0" if step == 0 else None)]
    compute_loop(k, 10, 4, reads, mf, 0, stamp=False, hooks={-1: lambda: mark(k, 22)})
    mark(k, 12)
    k("s_barrier")
    k("v_and_b32 v2, 31, v1")
    k("s_and_b32 s9, s8, 1")
    k("s_lshl_b32 s9, s9, 8              ; (w & 1)*32 rows*8 B")
    k("s_lshr_b32 s10, s8, 1")
    k("s_lshl_b32 s10, s10, 12           ; (w >> 1)*4096")
    k("s_add_u32 s9, s9, s10")
    k("v_lshlrev_b32 v2, 3, v2")
    k("v_add_u32 v2, s9, v2")
    k("v_add_u32 v2, 36864, v2")
    for q in range(8): k(f"ds_read_b64 v[{STT+2*q}:{STT+2*q+1}], v2 offset:{512*q}")
    k("s_waitcnt lgkmcnt(0)")
    k(f"v_add_f32 v10, v{STT}, v{STT+2}")
    k(f"v_add_f32 v11, v{STT+1}, v{STT+3}")
    for q in range(2, 8):
        k(f"v_add_f32 v10, v10, v{STT+2*q}")
        k(f"v_add_f32 v11, v11, v{STT+2*q+1}")
    k(f"s_mov_b32 s9, {hex(f2u(1.0/640))}")
    k("v_mul_f32 v10, s9, v10            ; mean")
    k("v_mul_f32 v13, v10, v10")
    k("v_fma_f32 v11, v11, s9, -v13      ; variance")
    k("v_max_f32 v11, 0, v11")
    k("v_add_f32 v11, 0x3727c5ac, v11")
    k("v_rsq_f32 v11, v11")
    k("s_nop 0")
    k("v_mul_f32 v13, v10, v11")
    k("v_sub_f32 v12, 0, v13")
    k("v_mov_b32 v13, v12")
    k("v_mov_b32 v10, v11")
    k("v_lshrrev_b32 v14, 5, v1")
    k("v_lshlrev_b32 v14, 4, v14")
    k("v_add_u32 v14, 32768, v14")
    wsrd(k, 24, S * F * 2, WS_G)
    k("v_and_b32 v2, 31, v1")
    k("s_lshl_b32 s9, s11, 7")
    k("s_lshl_b32 s10, s8, 5")
    k("s_add_u32 s9, s9, s10")
    k("v_add_u32 v2, s9, v2")
    k("v_mul_u32_u24 v2, 3072, v2")
    k("v_lshrrev_b32 v3, 5, v1")
    k("v_lshlrev_b32 v3, 4, v3")
    k("s_mul_i32 s9, s12, 192")
    k("v_add3_u32 v2, v2, v3, s9")
    c1 = -2.0 * 0.7978845608028654 * 1.4426950408889634
    c2 = c1 * 0.044715
    for r, c in ((4, c1), (5, c1), (6, c2), (7, c2), (8, 1.0), (9, 1.0)): k(f"v_mov_b32 v{r}, {hex(f2u(c))}")
    pk = lambda r: f"v[{r}:{r+1}]"
    U0, U1 = 40, 168
    def ut_reads(slot, off):
        U = (U0, U1)[slot]
        for mat in range(2):
            for jj in range(2):
                k(f"ds_read_b128 v[{U+8*mat+4*jj}:{U+8*mat+4*jj+3}], v14 offset:{mat*384 + off + 32*jj}")
                k(f"ds_read_b128 v[{U+16+8*mat+4*jj}:{U+16+8*mat+4*jj+3}], v14 offset:{768 + mat*384 + off + 32*jj}")
    if os.environ.get("UPDIAG"): mark(k, 25)
    def group(jp, g, nxt_slot, nxt_off, woff):
        U = (U0, U1)[jp]
        u = g + 48
        T = 16 + 8 * jp
        if nxt_off is not None: ut_reads(nxt_slot, nxt_off)
        k(f"s_waitcnt lgkmcnt({8 if nxt_off is not None else 0})")
        for mat in range(2):
            for r in range(0, 8, 2):
                k(f"v_pk_fma_f32 {pk(U+16+8*mat+r)}, {pk(U+8*mat+r)}, v[12:13], {pk(U+16+8*mat+r)}")
        for mat in range(2):
            base = g if mat == 0 else u
            for r in range(0, 8, 2):
                k(f"v_pk_fma_f32 {pk(base+r)}, {pk(base+r)}, v[10:11], {pk(U+16+8*mat+r)}")
        for r in range(0, 8, 2): k(f"v_pk_mul_f32 {pk(T+r)}, {pk(g+r)}, {pk(g+r)}")
        for r in range(0, 8, 2): k(f"v_pk_fma_f32 {pk(T+r)}, {pk(T+r)}, v[6:7], v[4:5]")
        for r in range(0, 8, 2): k(f"v_pk_mul_f32 {pk(T+r)}, {pk(T+r)}, {pk(g+r)}")
        for r in range(8): k(f"v_exp_f32 v{T+r}, v{T+r}")
        for r in range(0, 8, 2): k(f"v_pk_mul_f32 {pk(g+r)}, {pk(g+r)}, {pk(u+r)}")
        for r in range(0, 8, 2): k(f"v_pk_add_f32 {pk(T+r)}, {pk(T+r)}, v[8:9]")
        for r in range(8): k(f"v_rcp_f32 v{T+r}, v{T+r}")
        for r in range(0, 8, 2): k(f"v_pk_mul_f32 {pk(T+r)}, {pk(T+r)}, {pk(g+r)}")
        t = 32 + 4 * jp
        for q in range(4): k(f"v_cvt_pk_bf16_f32 v{t+q}, v{T+2*q}, v{T+2*q+1}")
        k(f"v_permlane32_swap_b32 v{t}, v{t+2}")
        k(f"v_permlane32_swap_b32 v{t+1}, v{t+3}")
        k(f"ds_write_b128 v212, v[{t}:{t+3}] offset:{woff}")
    ut_reads(0, 0)
    if os.environ.get("EPI_LOOP"):
        k("s_mov_b32 s34, 3")
        k.label("UP_EPI")
        for jp in range(2): group(jp, ACC + 8 * jp, 1 - jp, 64 * (jp + 1), 32 * jp)
        for base in (ACC, ACC + 48):
            for r in range(0, 32, 2): k(f"v_pk_mov_b32 {pk(base+r)}, {pk(base+16+r)}, {pk(base+16+r)} op_sel:[0,1]")
        k("v_add_u32 v14, 128, v14")
        k("v_add_u32 v212, 64, v212")
        k("s_sub_u32 s34, s34, 1")
        k("s_cmp_lg_u32 s34, 0")
        k("s_cbranch_scc1 UP_EPI")
    else:
        for grp in range(6):
            nt, jp = divmod(grp, 2)
            group(jp, ACC + 16 * nt + 8 * jp, 1 - jp, (64 * (grp + 1) if grp < 5 else None), 64 * nt + 32 * jp)
    if os.environ.get("UPDIAG"): mark(k, 28)
    k("s_waitcnt lgkmcnt(0)")
    for i in range(6): k(f"ds_read_b128 v[{ACC+4*i}:{ACC+4*i+3}], v{200+i}")
    for i in range(6):
        k(f"s_waitcnt lgkmcnt({5-i})")
        k(f"buffer_store_dwordx4 v[{ACC+4*i}:{ACC+4*i+3}], v{206+i}, s[24:27], 0 offen sc1")

def phases456(k):
    k.label("P4_STAGED")
    from k_attn2 import SS
    k("s_waitcnt vmcnt(0)")
    k("s_barrier")
    mark(k, 7)
    narrow_ids(k)
    k("s_cmp_ge_u32 s8, 4")
    k("s_cbranch_scc1 P4_LOADER")
    k("v_lshlrev_b32 v5, 4, v1")
    k("s_mul_i32 s9, s8, 2560")
    k("v_add_u32 v5, s9, v5")
    for i in range(3): k(f"ds_read_b128 v[{SS+4*i}:{SS+4*i+3}], v5 offset:{1024*i}")
    for i in range(3):
        k(f"s_waitcnt lgkmcnt({2-i})")
        k(f"buffer_store_dwordx4 v[{SS+4*i}:{SS+4*i+3}], v{128+i}, s[24:27], 0 offen sc1")
    if not os.environ.get("NO_BH2"): k("s_barrier")
    if not os.environ.get("LDIAG") and not os.environ.get("P0DIAG") and not os.environ.get("UPDIAG"): mark(k, 25)
    k("s_waitcnt vmcnt(0)")
    if not os.environ.get("LDIAG") and not os.environ.get("P0DIAG") and not os.environ.get("UPDIAG"): mark(k, 26)
    last_arriver_flag(k, "P3O", CTL + 16, 3, FL_O, 2)
    k("s_branch P4_COMPUTE")
    k.label("P4_LOADER")
    if not os.environ.get("NO_BH2"): k("s_barrier                        ; B_h2")
    L = narrow_loader_setup(k, 640, WS_O, WS_WOP, transposed=True)
    L.preloadB()
    narrow_res_dma(k, True, 2)
    k("s_cmp_lg_u32 s8, 4")
    k("s_cbranch_scc1 P4L_GO")
    poll_range(k, "P4L_O", FL_O, lambda: k("s_lshl_b32 s9, s3, 5"), 32)
    k.label("P4L_GO")
    k("s_barrier                        ; B_i")
    mark(k, 8)
    L.run(prefetch=apf_loader(k, WS_O, S * 640 * 2, lambda: k("s_lshl_b32 s9, s11, 6"), 1280, 6, 1, 4, lambda: k("s_mov_b32 s9, s12"), 64, 17, 229, khalf=640))
    k("s_barrier")
    k("s_lshr_b32 s35, s11, 1")
    k("s_lshl_b32 s35, s35, 4")
    k("s_and_b32 s36, s11, 1")
    k("s_lshl_b32 s36, s36, 3")
    k("s_add_u32 s35, s35, s36")
    k("s_add_u32 s35, s35, s12")
    up_ids(k)
    L = up_loader_setup(k)
    if os.environ.get("BJ0"): k("s_barrier")
    L.preloadB()
    k("s_barrier")
    k("s_cmp_lg_u32 s8, 4")
    k("s_cbranch_scc1 P5L_GO")
    set_flag(k, FL_X1, 35)
    poll_range(k, "P5L_X", FL_X1, lambda: k("s_lshl_b32 s9, s11, 4"), 16)
    k.label("P5L_GO")
    k("s_barrier                        ; B_k")
    mark(k, 11)

    def ut_issue():
        wsrd(k, 24, 16 * 384 * 4, WS_UT)
        k("v_lshlrev_b32 v2, 4, v1")
        k("s_mul_i32 s14, s12, 1536")
        k("s_and_b32 s9, s31, 1")
        k("s_lshl_b32 s9, s9, 10")
        k("s_add_u32 s14, s14, s9")
        k("s_add_u32 m0, s9, 32768")
        k("s_nop 0")
        k("buffer_load_dwordx4 v2, s[24:27], s14 offen sc1 lds")
        wsrd(k, 24, 2048 * 64, WS_STAT)
        k("s_lshl_b32 s14, s11, 13")
        k("s_lshl_b32 s9, s31, 11")
        k("s_add_u32 s14, s14, s9")
        k("s_add_u32 m0, s9, 36864")
        k("s_nop 0")
        k("buffer_load_dwordx4 v2, s[24:27], s14 offen sc1 lds")
        k("buffer_load_dwordx4 v2, s[24:27], s14 offen offset:1024 sc1 lds")
        n = 0
        if os.environ.get("WDPF"):
            wsrd(k, 52, 8 * 1536 * 160, WS_WDP)
            k("s_lshr_b32 s9, s2, 3")
            k("s_mul_i32 s9, s9, 480")
            k("v_and_b32 v20, 255, v0")
            for i in range(2):
                k(f"v_add_u32 v21, {256*i}, v20")
                k("v_add_u32 v22, s9, v21")
                k("v_lshlrev_b32 v22, 7, v22")
                if i:
                    k("v_cmp_gt_u32 vcc, 480, v21")
                    k("v_mov_b32 v23, 0x7ffffff0")
                    k("v_cndmask_b32 v22, v23, v22, vcc")
                k(f"buffer_load_dword v{228+i}, v22, s[52:55], 0 offen")
                n += 1
        npf.append(n)
        return 3 + n
    npf = []
    def o_issue():
        k("s_cmp_lg_u32 s8, 5")
        k("s_cbranch_scc1 P5L_OA")
        check_all_issue(k, FL_O, 24)
        k.label("P5L_OA")
        return 0
    def o_fin():
        k("s_cmp_lg_u32 s8, 5")
        k("s_cbranch_scc1 P5L_OB")
        k("s_waitcnt vmcnt(0)")
        check_all_finish(k, "P5L_OALL", FL_O, 24)
        k.label("P5L_OB")
        return ut_issue()
    L.run(after_barrier={2: o_issue, 8: o_fin}, prefetch=None)
    k(f"s_waitcnt vmcnt({npf[0]})")
    k("s_barrier                        ; u', t landed")
    k("s_lshl_b32 s35, s11, 4")
    k("s_add_u32 s35, s35, s12")
    narrow_ids(k)
    if os.environ.get("LATE_PRE"): k("s_barrier")
    L = narrow_loader_setup(k, 1536, WS_G, WS_WDP)
    if os.environ.get("BL0"): k("s_barrier")
    L.preloadB()
    if not os.environ.get("LATE_PRE"): k("s_barrier")
    k("s_cmp_lg_u32 s8, 4")
    k("s_cbranch_scc1 P6L_GO")
    set_flag(k, FL_G, 35)
    def gfirst():
        k("s_lshr_b32 s9, s11, 1")
        k("s_lshl_b32 s9, s9, 4")
    poll_range(k, "P6L_G", FL_G, gfirst, 16)
    k.label("P6L_GO")
    k("s_barrier                        ; B_m")
    mark(k, 14)
    def down_res():
        narrow_res_dma(k, False, 5)
        return 0
    L.run(after_barrier={2: down_res}, prefetch=apf_loader(k, WS_G, S * 1536 * 2, lambda: k("s_lshl_b32 s9, s11, 6"), 3072, 6, 1, 11, lambda: k("s_mov_b32 s9, s12"), 176, 17, 229, khalf=1536))
    k("s_barrier")
    k("s_branch F_END")
    k.label("P4_COMPUTE")
    narrow_compute(k, "P4C", 640, True, 2, False, lambda: k("s_barrier                        ; B_i"))
    if os.environ.get("BJ0"): k("s_barrier                        ; B_j0")
    if not os.environ.get("P0DIAG") and not os.environ.get("UPDIAG"): mark(k, 29)
    k("s_waitcnt vmcnt(0)")
    if not os.environ.get("P0DIAG"): mark(k, 30)
    k("s_barrier                        ; B_j")
    mark(k, 10)
    up_ids(k)
    up_compute(k, lambda: k("s_barrier                        ; B_k"))
    if os.environ.get("BL0"): k("s_barrier                        ; B_l0")
    if os.environ.get("UPDIAG"): mark(k, 29)
    if not os.environ.get("LDIAG") and not os.environ.get("P0DIAG") and not os.environ.get("UPDIAG"): mark(k, 27)
    k("s_waitcnt vmcnt(0)")
    if not os.environ.get("P0DIAG") and not os.environ.get("UPDIAG"): mark(k, 28)
    k("s_barrier                        ; B_l")
    mark(k, 13)
    narrow_ids(k)
    narrow_compute(k, "P6C", 1536, False, 5, True, lambda: k("s_barrier                        ; B_m"))

def gen_fused():
    k = K()
    k("s_cmp_ge_u32 s2, 256")
    k("s_cbranch_scc1 F_END")
    k(f"s_load_dwordx8 s[64:71], s[0:1], 0")
    k(f"s_load_dwordx8 s[72:79], s[0:1], 32")
    k(f"s_load_dwordx8 s[80:87], s[0:1], 64")
    k("v_and_b32 v1, 63, v0")
    k("v_lshrrev_b32 v2, 6, v0")
    k("s_nop 0")
    k("v_readfirstlane_b32 s8, v2       ; wave")
    k("s_and_b32 s31, s8, 3")
    phase01(k)
    phase2_loader(k)
    phase2_spare(k)
    phase2_compute(k)
    phase3(k)
    phases456(k)
    k.label("F_END")
    k("s_endpgm")
    k.fix_hazards()
    return NAME, header(NAME) + k.text() + descriptor(NAME, 232), (256, 512, 163840)

if __name__ == "__main__":
    import sys
    HEAD = open("adaLN_cond__mha_block__geglu_ffn__prompt.s.ref").read().split("; Override launch")[0]
    n, t, (g, b, l) = gen_fused()
    s = HEAD + f"; @launch grid=({g},1,1) block=({b},1,1) lds={l}\n" + '.amdgcn_target "amdgcn-amd-amdhsa--gfx950"\n' + t
    out = sys.argv[1] if len(sys.argv) > 1 else "fused.s"
    open(out, "w").write(s)
    print("wrote", out, len(s))
```

```python
from common import *
from k_gemm2 import mfma32, mfma16, compute_loop, f2u
from k_attn2 import VM, m16, m8
import os, struct

NAME = "adaLN_cond__mha_block__geglu_ffn__prompt_kernel"
XP, WQKVP, WOP_, WGP, WUP_, WDP_, CP, WMODP, OUTP, DBGP, WSP = 64, 66, 68, 72, 74, 76, 78, 80, 82, 84, 86
NONCE = 60
CTL = 163584
SCR = 131072
STOP = int(os.environ.get("STOP", 99))
TIMEOUT = 30000

def wsrd(k, s, nbytes, off): srd(k, s, WSP, nbytes, off)
def mark(k, i): k(f"; MARK {i}")

APF = bool(os.environ.get("APF"))
def apf_rows(k, off, nbytes, row0_fn, lda, nrows_log2, first_line, nlines, sharer_fn, per, vt, vdst, khalf=None, tid="v0"):
    wsrd(k, 52, nbytes, off)
    for i in range((per + 255) // 256):
        sharer_fn()
        k(f"s_mul_i32 s9, s9, {per}")
        if i: k(f"s_add_u32 s9, s9, {256 * i}")
        k(f"v_add_u32 v{vt}, s9, {tid}")
        sh = nrows_log2 + (1 if khalf else 0)
        k(f"v_lshrrev_b32 v{vt+1}, {sh}, v{vt}")
        if khalf: k(f"v_bfe_u32 v{vt+2}, v{vt}, {nrows_log2}, 1")
        k(f"v_and_b32 v{vt}, {(1 << nrows_log2) - 1}, v{vt}")
        row0_fn()
        k(f"v_add_u32 v{vt}, s9, v{vt}")
        k(f"s_mov_b32 s9, {lda}")
        k(f"v_mul_lo_u32 v{vt}, s9, v{vt}")
        if first_line: k(f"v_add_u32 v{vt+1}, {first_line}, v{vt+1}")
        k(f"v_lshl_add_u32 v{vt}, v{vt+1}, 7, v{vt}")
        if khalf:
            k(f"v_mul_u32_u24 v{vt+2}, {khalf}, v{vt+2}")
            k(f"v_add_u32 v{vt}, v{vt}, v{vt+2}")
        if 256 * (i + 1) > per:
            k(f"v_cmp_gt_u32 vcc, {per - 256 * i}, {tid}")
            k(f"v_mov_b32 v{vt+1}, 0x7ffffff0")
            k(f"v_cndmask_b32 v{vt}, v{vt+1}, v{vt}, vcc")
        k(f"buffer_load_dword v{vdst+i}, v{vt}, s[52:55], 0 offen sc1")

APF2 = os.environ.get("APF2", "0") != "0"
def apf_loader(k, *args, **kw):
    def f():
        per = args[8]
        k("v_and_b32 v16, 255, v0")
        apf_rows(k, *args, tid="v16", **kw)
        return (per + 255) // 256
    return f

OLDPOLL = bool(os.environ.get('OLDPOLL'))
def poll_old(k, tag, vaddr, mask, vtmp, waitall=True):
    k("s_mov_b32 s14, 0")
    k.label(f"{tag}_P")
    if mask == "lo32":
        k("s_mov_b32 exec_lo, -1"); k("s_mov_b32 exec_hi, 0")
    else:
        k(f"s_mov_b64 exec, {mask}")
    k(f"buffer_load_dword v{vtmp}, v{vaddr}, s[56:59], 0 offen sc1")
    k("s_waitcnt vmcnt(0)")
    k(f"v_cmp_ne_u32 vcc, s{NONCE}, v{vtmp}")
    k("s_mov_b64 exec, -1")
    k("s_cmp_eq_u64 vcc, 0")
    k(f"s_cbranch_scc1 {tag}_R")
    k("s_add_u32 s14, s14, 1")
    k(f"s_cmp_gt_u32 s14, {TIMEOUT}")
    k(f"s_cbranch_scc1 {tag}_R")
    k("s_sleep 2")
    k(f"s_branch {tag}_P")
    k.label(f"{tag}_R")

def poll_new(k, tag, vaddr, mask, vtmp, waitall=True):
    def setmask():
        if mask == "lo32":
            k("s_mov_b32 exec_lo, -1"); k("s_mov_b32 exec_hi, 0")
        else:
            k(f"s_mov_b64 exec, {mask}")
    k("s_mov_b32 s14, 0")
    setmask()
    k("s_waitcnt vmcnt(0)")
    k(f"buffer_load_dword v226, v{vaddr}, s[56:59], 0 offen sc1")
    k.label(f"{tag}_P")
    k(f"buffer_load_dword v227, v{vaddr}, s[56:59], 0 offen sc1")
    k("s_waitcnt vmcnt(1)")
    k(f"v_cmp_ne_u32 vcc, s{NONCE}, v226")
    k("s_cmp_eq_u64 vcc, 0")
    k(f"s_cbranch_scc1 {tag}_R")
    k(f"buffer_load_dword v226, v{vaddr}, s[56:59], 0 offen sc1")
    k("s_waitcnt vmcnt(1)")
    k(f"v_cmp_ne_u32 vcc, s{NONCE}, v227")
    k("s_cmp_eq_u64 vcc, 0")
    k(f"s_cbranch_scc1 {tag}_R")
    k("s_add_u32 s14, s14, 1")
    k(f"s_cmp_gt_u32 s14, {TIMEOUT}")
    k(f"s_cbranch_scc0 {tag}_P")
    k.label(f"{tag}_R")
    k("s_mov_b64 exec, -1")

def poll(k, *a, **kw): return (poll_old if OLDPOLL else poll_new)(k, *a, **kw)

def flag_srd(k): wsrd(k, 56, 7 * 256 * 128, WS_FLG)

def poll_range(k, tag, base, first_sgpr_expr, n, v=20):
    flag_srd(k)
    first_sgpr_expr()
    k(f"v_and_b32 v{v}, 63, v0")
    k(f"v_add_u32 v{v}, s9, v{v}")
    k(f"v_lshlrev_b32 v{v}, 7, v{v}")
    if base: k(f"v_add_u32 v{v}, {base}, v{v}")
    poll(k, tag, v, "-1" if n == 64 else ("lo32" if n == 32 else hex((1 << n) - 1)), v + 1)

def poll_all(k, tag, base, v=20):
    flag_srd(k)
    k(f"v_and_b32 v{v}, 63, v0")
    k(f"v_lshlrev_b32 v{v}, 7, v{v}")
    k(f"v_add_u32 v{v}, {base}, v{v}")
    for q in range(1, 4): k(f"v_add_u32 v{v+q}, {q * 64 * 128}, v{v}")
    k("s_mov_b32 s14, 0")
    k.label(f"{tag}_P")
    for q in range(4): k(f"buffer_load_dword v{v+4+q}, v{v+q}, s[56:59], 0 offen sc1")
    k("s_waitcnt vmcnt(0)")
    k(f"v_cmp_ne_u32 vcc, s{NONCE}, v{v+4}")
    for q in range(1, 4):
        k(f"v_cmp_ne_u32 s[62:63], s{NONCE}, v{v+4+q}")
        k("s_or_b64 vcc, vcc, s[62:63]")
    k("s_cmp_eq_u64 vcc, 0")
    k(f"s_cbranch_scc1 {tag}_R")
    k("s_add_u32 s14, s14, 1")
    k(f"s_cmp_gt_u32 s14, {TIMEOUT}")
    k(f"s_cbranch_scc1 {tag}_R")
    k("s_sleep 2")
    k(f"s_branch {tag}_P")
    k.label(f"{tag}_R")

def check_all_issue(k, base, v):
    flag_srd(k)
    k(f"v_and_b32 v{v}, 63, v0")
    k(f"v_lshlrev_b32 v{v}, 7, v{v}")
    k(f"v_add_u32 v{v}, {base}, v{v}")
    for q in range(1, 4): k(f"v_add_u32 v{v+q}, {q * 64 * 128}, v{v}")
    for q in range(4): k(f"buffer_load_dword v{v+4+q}, v{v+q}, s[56:59], 0 offen sc1")
def check_all_finish(k, tag, base, v):
    k(f"v_cmp_ne_u32 vcc, s{NONCE}, v{v+4}")
    for q in range(1, 4):
        k(f"v_cmp_ne_u32 s[62:63], s{NONCE}, v{v+4+q}")
        k("s_or_b64 vcc, vcc, s[62:63]")
    k("s_cmp_eq_u64 vcc, 0")
    k(f"s_cbranch_scc1 {tag}_OK")
    poll_all(k, tag, base, v)
    k.label(f"{tag}_OK")

def set_flag(k, base, idx_sgpr, v=20):
    flag_srd(k)
    k(f"s_lshl_b32 s9, s{idx_sgpr}, 7")
    k(f"s_add_u32 s9, s9, {base}")
    k(f"v_mov_b32 v{v}, s9")
    k(f"v_mov_b32 v{v+1}, s{NONCE}")
    k("s_mov_b64 exec, 1")
    k(f"buffer_store_dword v{v+1}, v{v}, s[56:59], 0 offen sc1")
    k("s_mov_b64 exec, -1")

LDIAG = [25, 26, 27]
class Loader:
    def __init__(self, k, nst, nslots, dmaA, dmaB, nA, nB):
        self.k, self.nst, self.ns, self.dmaA, self.dmaB, self.nA, self.nB = k, nst, nslots, dmaA, dmaB, nA, nB
        self.ops = []
    def A(self, st): self.dmaA(st); self.ops += [st] * self.nA
    def B(self, st): self.dmaB(st); self.ops += [st] * self.nB
    def extra(self, n): self.ops += ["x"] * n
    def drained(self): self.ops = ["done"] if False else []
    def wait(self, st):
        idx = [i for i, t in enumerate(self.ops) if t == st]
        n = len(self.ops) - 1 - max(idx) if idx else len(self.ops)
        self.k(f"s_waitcnt vmcnt({min(63, n)})")
    def preloadB(self):
        for st in range(min(self.ns - 1, self.nst)): self.B(st)
    def run(self, after_barrier=None, tail=None, prefetch=None):
        k = self.k; up = min(self.ns - 1, self.nst)
        if prefetch is not None and APF2:
            self.A(0)
            self.extra(prefetch())
            self.wait(0)
            k("s_barrier")
            k("s_waitcnt vmcnt(0)")
            if os.environ.get("LDIAG"): mark(k, LDIAG.pop(0))
            for st in range(1, up): self.A(st)
        else:
            for st in range(up): self.A(st)
            self.wait(0)
            k("s_barrier")
        issued = up
        for s in range(self.nst - 1):
            self.wait(s + 1)
            k("s_barrier")
            if issued < self.nst:
                self.A(issued); self.B(issued); issued += 1
                if issued == self.nst and tail: self.extra(tail())
            if after_barrier and (s + 1) in after_barrier: self.extra(after_barrier[s + 1]())

def a_dma_rows32(k, VA, row0_sgpr, lda, koff_sgpr=None):
    k("v_lshrrev_b32 v2, 3, v1")
    k("v_lshrrev_b32 v3, 4, v1")
    k("v_and_b32 v4, 7, v1")
    k(f"v_add_u32 v2, s{row0_sgpr}, v2")
    k(f"s_mov_b32 s10, {lda}")
    k("v_mul_lo_u32 v2, s10, v2")
    if koff_sgpr is not None: k(f"v_add_u32 v2, s{koff_sgpr}, v2")
    for i in range(4):
        k(f"v_xor_b32 v5, {(i&1)*4}, v3")
        k("v_xor_b32 v5, v5, v4")
        k("v_lshlrev_b32 v5, 4, v5")
        k(f"v_add_u32 v5, {i*8*lda - i*1024}, v5")
        k(f"v_add_u32 v{VA+i}, v2, v5")

def phase01(k):
    X, C0, W0, AC, T = 8, 32, 40, 64, 72
    k("s_and_b32 s13, s2, 3             ; kq")
    k("s_lshr_b32 s14, s2, 2")
    k("v_lshrrev_b32 v5, 3, v0")
    k("v_and_b32 v6, 7, v0")
    k("s_mul_i32 s15, s13, 160")
    k("v_add_u32 v7, s15, v5")
    k("v_mul_u32_u24 v5, 7680, v7")
    k("v_lshlrev_b32 v6, 4, v6")
    k("s_lshl_b32 s15, s14, 7")
    k("v_add3_u32 v5, v5, v6, s15")
    k("v_lshrrev_b32 v3, 4, v0")
    k("s_lshl_b32 s15, s2, 3")
    k("v_add_u32 v3, s15, v3")
    k("v_mul_u32_u24 v3, 1280, v3")
    k("v_and_b32 v4, 15, v0")
    k("v_lshl_add_u32 v3, v4, 4, v3")
    k("v_lshlrev_b32 v6, 1, v7")
    k("v_mov_b32 v28, 0x7ffffff0")
    k("v_cmp_gt_u32 vcc, 256, v0")
    k("v_cndmask_b32 v29, v28, v5, vcc")
    k("v_cndmask_b32 v30, v28, v6, vcc")
    k("s_waitcnt lgkmcnt(0)")
    srd(k, 36, WMODP, 640 * 7680)
    srd(k, 32, CP, 1280)
    srd(k, 16, XP, S * D * 2)
    def gemv_loads():
        k(f"buffer_load_dwordx4 v[{W0}:{W0+3}], v5, s[36:39], 0 offen")
        k(f"s_mov_b32 s15, {64*7680}")
        k(f"buffer_load_dwordx4 v[{W0+4}:{W0+7}], v5, s[36:39], s15 offen")
        k(f"s_mov_b32 s15, {128*7680}")
        k(f"buffer_load_dwordx4 v[{W0+8}:{W0+11}], v29, s[36:39], s15 offen")
        k(f"buffer_load_ushort v{C0}, v6, s[32:35], 0 offen")
        k(f"buffer_load_ushort v{C0+1}, v6, s[32:35], 0 offen offset:128")
        k(f"buffer_load_ushort v{C0+2}, v30, s[32:35], 0 offen offset:256")
    def x_loads(tag):
        k("s_cmp_ge_u32 s8, 2")
        k(f"s_cbranch_scc1 {tag}")
        for i in range(5):
            k(f"buffer_load_dwordx4 v[{X+4*i}:{X+4*i+3}], v3, s[16:19], 0 offen offset:{256*i}")
        k.label(tag)
    k("s_cmp_ge_u32 s2, 80")
    k("s_cbranch_scc1 P0_LATE")
    gemv_loads()
    x_loads("P0_NOX1")
    k("s_branch P0_ISSUED")
    k.label("P0_LATE")
    x_loads("P0_NOX2")
    k("s_waitcnt vmcnt(0)")
    k("s_barrier")
    k("s_cmp_ge_u32 s14, 60")
    k("s_cbranch_scc1 P0_ISSUED")
    gemv_loads()
    k.label("P0_ISSUED")
    wsrd(k, 20, 4 * 3840 * 4, WS_MODP)
    wsrd(k, 24, S * D * 2, WS_H)
    for r in range(176, 228): k(f"v_mov_b32 v{r}, 0x7ffffff0")
    k("s_cmp_lg_u32 s8, 3")
    k("s_cbranch_scc1 P0_NOCTL")
    k(f"v_lshlrev_b32 v11, 2, v1")
    k(f"v_add_u32 v11, {CTL}, v11")
    k("v_mov_b32 v12, 0")
    k("ds_write_b32 v11, v12")
    k.label("P0_NOCTL")
    k("s_cmp_ge_u32 s8, 4")
    k("s_cbranch_scc1 P0_NOSETUP")
    phase2_setup(k)
    k.label("P0_NOSETUP")
    k("s_cmp_ge_u32 s14, 60")
    k("s_cbranch_scc1 P0_BA")
    k("s_cmp_ge_u32 s2, 80")
    k("s_cbranch_scc1 P0_W0")
    k("s_cmp_ge_u32 s8, 2")
    k("s_cbranch_scc1 P0_W0")
    k("s_waitcnt vmcnt(5)")
    k("s_branch P0_W1")
    k.label("P0_W0")
    k("s_waitcnt vmcnt(0)")
    k.label("P0_W1")
    k("s_mov_b32 s15, 0xbfb8aa3b")
    for i in range(3): k(f"v_lshlrev_b32 v{C0+i}, 16, v{C0+i}")
    for i in range(3): k(f"v_mul_f32 v{T+i}, s15, v{C0+i}")
    for i in range(3): k(f"v_exp_f32 v{T+i}, v{T+i}")
    for i in range(3): k(f"v_add_f32 v{T+i}, 1.0, v{T+i}")
    for i in range(3): k(f"v_rcp_f32 v{T+i}, v{T+i}")
    for i in range(3): k(f"v_mul_f32 v{C0+i}, v{C0+i}, v{T+i}")
    for i in range(3): bf16_round_f32(k, C0 + i, C0 + i, T)
    for i in range(3):
        for j in range(4):
            k(f"v_lshlrev_b32 v{T}, 16, v{W0+4*i+j}")
            k(f"v_and_b32 v{T+1}, 0xffff0000, v{W0+4*i+j}")
            op = "v_mul_f32" if i == 0 else "v_fmac_f32"
            k(f"{op} v{AC+2*j}, v{C0+i}, v{T}")
            k(f"{op} v{AC+2*j+1}, v{C0+i}, v{T+1}")
    for j in range(8):
        k(f"v_add_f32_dpp v{AC+j}, v{AC+j}, v{AC+j} row_ror:8 row_mask:0xf bank_mask:0xf")
    for sw in ("v_permlane16_swap_b32", "v_permlane32_swap_b32"):
        for j in range(8): k(f"v_mov_b32 v{T+j}, v{AC+j}")
        for j in range(8): k(f"{sw} v{AC+j}, v{T+j}")
        for j in range(8): k(f"v_add_f32 v{AC+j}, v{AC+j}, v{T+j}")
    k("v_lshrrev_b32 v5, 6, v0")
    k("v_lshlrev_b32 v5, 8, v5")
    k("v_and_b32 v6, 7, v0")
    k("v_lshl_add_u32 v5, v6, 5, v5")
    k(f"v_add_u32 v5, {SCR}, v5")
    k("v_cmp_gt_u32 vcc, 8, v1")
    k("s_and_saveexec_b64 s[34:35], vcc")
    k(f"ds_write_b128 v5, v[{AC}:{AC+3}]")
    k(f"ds_write_b128 v5, v[{AC+4}:{AC+7}] offset:16")
    k("s_mov_b64 exec, s[34:35]")
    k.label("P0_BA")
    k("s_waitcnt lgkmcnt(0)")
    k("s_barrier                        ; B_a")
    mark(k, 0)
    k("s_cmp_lt_u32 s8, 2")
    k("s_cbranch_scc1 P1_LNA")
    k("s_cmp_eq_u32 s8, 2")
    k("s_cbranch_scc1 P0_FINAL")
    k("s_cmp_eq_u32 s8, 3")
    k("s_cbranch_scc1 P0_ONES")
    k("s_branch P0_LOADERS")
    k.label("P0_FINAL")
    k("s_cmp_ge_u32 s14, 60")
    k("s_cbranch_scc1 P1_BA2")
    k("s_memrealtime s[46:47]")
    k("v_lshlrev_b32 v7, 2, v1")
    k(f"v_add_u32 v6, {SCR}, v7")
    for p in range(8): k(f"ds_read_b32 v{W0+p}, v6 offset:{256*p}")
    k("s_waitcnt lgkmcnt(0)")
    for st in (4, 2, 1):
        for p in range(st): k(f"v_add_f32 v{W0+p}, v{W0+p}, v{W0+p+st}")
    k("s_mul_i32 s15, s13, 15360")
    k("s_lshl_b32 s34, s14, 8")
    k("s_add_u32 s15, s15, s34")
    if os.environ.get("P0DIAG"): mark(k, 25)
    k(f"buffer_store_dword v{W0}, v7, s[20:23], s15 offen sc1")
    k("s_waitcnt vmcnt(0)")
    if os.environ.get("P0DIAG"): mark(k, 26)
    k("s_cmp_ge_u32 s14, 20")
    k("s_cbranch_scc1 P1_BA2")
    k("s_mov_b64 exec, 1")
    k("v_mov_b32 v5, 0")
    k("v_mov_b32 v6, 1")
    k(f"global_atomic_add v7, v5, v6, s[{DBGP}:{DBGP+1}] sc0 sc1")
    k("s_waitcnt vmcnt(0)")
    k("v_readfirstlane_b32 s15, v7")
    if os.environ.get("P0DIAG"):
        k("s_mov_b64 exec, -1"); mark(k, 27); k("s_mov_b64 exec, 1")
    k("s_cmp_lg_u32 s15, 79")
    k("s_cbranch_scc1 P0_NOFLAG")
    k("s_or_b32 s46, s46, 1")
    k("v_mov_b32 v6, s46")
    k(f"global_store_dword v5, v6, s[{DBGP}:{DBGP+1}] offset:128 sc1")
    k.label("P0_NOFLAG")
    k("s_mov_b64 exec, -1")
    k("s_branch P1_BA2")
    k.label("P0_ONES")
    wsrd(k, 32, 32 * KV_HEAD, WS_KV)
    k("s_lshl_b32 s13, s2, 5")
    k("v_add_u32 v5, s13, v1")
    k("v_lshrrev_b32 v6, 2, v5")
    k(f"v_mul_u32_u24 v6, {KV_TILE}, v6")
    k("v_and_b32 v7, 3, v5")
    k(f"v_mul_u32_u24 v7, {VSEG}, v7")
    k(f"v_add_u32 v6, {1280+320}, v6")
    k("v_add_u32 v6, v6, v7")
    for j in range(4): k(f"v_mov_b32 v{8+j}, 0x3f803f80")
    k("s_mov_b32 exec_hi, 0")
    k("buffer_store_dwordx4 v[8:11], v6, s[32:35], 0 offen sc1")
    wsrd(k, 36, 16 * 384 * 4, WS_UT)
    k("s_mul_i32 s13, s2, 96")
    k("v_lshlrev_b32 v5, 2, v1")
    k("v_mov_b32 v12, 0")
    k("s_mov_b32 exec_lo, 0xffffff")
    k("buffer_store_dword v12, v5, s[36:39], s13 offen sc1")
    k("s_mov_b64 exec, -1")
    k("s_waitcnt vmcnt(0)")
    k("s_branch P1_BA2")
    k.label("P1_LNA")
    k("s_barrier                        ; B_a2 (waves 0, 1)")
    k.label("P1_LN")
    E = 32
    k("s_waitcnt vmcnt(0)")
    for r in range(20):
        k(f"v_lshlrev_b32 v{E+2*r}, 16, v{X+r}")
        k(f"v_and_b32 v{E+2*r+1}, 0xffff0000, v{X+r}")
    k(f"v_add_f32 v5, v{E}, v{E+1}")
    k(f"v_add_f32 v6, v{E+2}, v{E+3}")
    for r in range(4, 40, 2):
        k(f"v_add_f32 v5, v5, v{E+r}")
        k(f"v_add_f32 v6, v6, v{E+r+1}")
    k("v_add_f32 v5, v5, v6")
    for rot in (1, 2, 4, 8):
        k(f"v_add_f32_dpp v5, v5, v5 row_ror:{rot} row_mask:0xf bank_mask:0xf")
    k(f"s_mov_b32 s13, {hex(f2u(1.0/640))}")
    k("v_mul_f32 v5, s13, v5")
    for r in range(40): k(f"v_sub_f32 v{E+r}, v{E+r}, v5")
    k(f"v_mul_f32 v6, v{E}, v{E}")
    k(f"v_mul_f32 v7, v{E+1}, v{E+1}")
    for r in range(2, 40, 2):
        k(f"v_fmac_f32 v6, v{E+r}, v{E+r}")
        k(f"v_fmac_f32 v7, v{E+r+1}, v{E+r+1}")
    k("v_add_f32 v6, v6, v7")
    for rot in (1, 2, 4, 8):
        k(f"v_add_f32_dpp v6, v6, v6 row_ror:{rot} row_mask:0xf bank_mask:0xf")
    k("v_mov_b32 v7, 0x3727c5ac")
    k("v_fmac_f32 v7, s13, v6")
    k("v_rsq_f32 v7, v7")
    k("s_nop 0")
    for r in range(40): k(f"v_mul_f32 v{E+r}, v{E+r}, v7")
    k("v_mov_b32 v5, 0")
    k("s_mov_b32 s14, 0")
    k.label("P1_POLL")
    k("s_mov_b64 exec, 1")
    k(f"global_load_dword v6, v5, s[{DBGP}:{DBGP+1}] offset:128 sc1")
    k("s_waitcnt vmcnt(0)")
    k(f"v_readfirstlane_b32 s{NONCE}, v6")
    k("s_mov_b64 exec, -1")
    k(f"s_cmp_lg_u32 s{NONCE}, 0")
    k("s_cbranch_scc1 P1_READY")
    k("s_add_u32 s14, s14, 1")
    k(f"s_cmp_gt_u32 s14, {TIMEOUT}")
    k("s_cbranch_scc1 P1_READY")
    k("s_sleep 1")
    k("s_branch P1_POLL")
    k.label("P1_READY")
    mark(k, 1)
    P = 80
    k("s_mul_i32 s15, s8, 2560")
    k("v_lshlrev_b32 v5, 4, v1")
    k("v_mov_b32 v8, 0x7ffffff0")
    k("v_cmp_gt_u32 vcc, 32, v1")
    k("v_add_u32 v6, s15, v5")
    k("v_add_u32 v9, 2048, v6")
    k("v_cndmask_b32 v9, v8, v9, vcc")
    for q in range(4):
        k(f"s_mov_b32 s34, {q*15360}")
        k(f"buffer_load_dwordx4 v[{P+12*q}:{P+12*q+3}], v6, s[20:23], s34 offen sc1")
        k(f"buffer_load_dwordx4 v[{P+12*q+4}:{P+12*q+7}], v6, s[20:23], s34 offen offset:1024 sc1")
        k(f"buffer_load_dwordx4 v[{P+12*q+8}:{P+12*q+11}], v9, s[20:23], s34 offen sc1")
    k(f"v_mov_b32 v10, {CTL}")
    k(f"v_mov_b32 v11, s{NONCE}")
    k("ds_write_b32 v10, v11")
    k("s_waitcnt vmcnt(0)")
    for r in range(12):
        k(f"v_add_f32 v{P+r}, v{P+r}, v{P+12+r}")
        k(f"v_add_f32 v{P+24+r}, v{P+24+r}, v{P+36+r}")
    for r in range(12): k(f"v_add_f32 v{P+r}, v{P+r}, v{P+24+r}")
    for r in range(12): bf16_round_f32(k, P + r, P + r, P + 12)
    k("s_cmp_eq_u32 s8, 0")
    k("s_cbranch_scc1 P1_NOONE")
    for r in range(12): k(f"v_add_f32 v{P+r}, 1.0, v{P+r}")
    for r in range(12): bf16_round_f32(k, P + r, P + r, P + 12)
    k.label("P1_NOONE")
    k("s_mul_i32 s15, s8, 2560")
    k("v_add_u32 v5, s15, v5")
    k(f"v_add_u32 v5, {SCR + 8192}, v5")
    k(f"ds_write_b128 v5, v[{P}:{P+3}]")
    k(f"ds_write_b128 v5, v[{P+4}:{P+7}] offset:1024")
    k("s_mov_b32 exec_hi, 0")
    k(f"ds_write_b128 v5, v[{P+8}:{P+11}] offset:2048")
    k("s_mov_b64 exec, -1")
    k("s_waitcnt lgkmcnt(0)")
    if os.environ.get("P0DIAG"): mark(k, 28)
    k("s_barrier")
    Gm, Sm = 96, 136
    k("v_and_b32 v4, 15, v0")
    k("v_lshlrev_b32 v4, 5, v4")
    k(f"v_add_u32 v4, {SCR + 8192}, v4")
    for i in range(5):
        for hh in range(2):
            k(f"ds_read_b128 v[{Sm+8*i+4*hh}:{Sm+8*i+4*hh+3}], v4 offset:{512*i + 16*hh}")
            k(f"ds_read_b128 v[{Gm+8*i+4*hh}:{Gm+8*i+4*hh+3}], v4 offset:{2560 + 512*i + 16*hh}")
    k("s_waitcnt lgkmcnt(0)")
    for r in range(40): k(f"v_fma_f32 v{E+r}, v{E+r}, v{Gm+r}, v{Sm+r}")
    for r in range(20): k(f"v_cvt_pk_bf16_f32 v{X+r}, v{E+2*r}, v{E+2*r+1}")
    for i in range(5):
        k(f"buffer_store_dwordx4 v[{X+4*i}:{X+4*i+3}], v3, s[24:27], 0 offen offset:{256*i} sc1")
    if os.environ.get("P0DIAG"): mark(k, 29)
    k("s_waitcnt vmcnt(0)")
    if os.environ.get("P0DIAG"): mark(k, 30)
    k("s_barrier")
    k("s_cmp_lg_u32 s8, 0")
    k("s_cbranch_scc1 P2_START")
    set_flag(k, FL_H, 2)
    k("s_branch P2_START")
    k.label("P1_BA2")
    k("s_barrier")
    k.label("P1_BB")
    k("s_barrier                        ; B_b")
    k(f"v_mov_b32 v10, {CTL}")
    k("ds_read_b32 v11, v10")
    k("s_waitcnt lgkmcnt(0)")
    k(f"v_readfirstlane_b32 s{NONCE}, v11")
    k("s_barrier                        ; B_c")
    k("s_branch P2_START")

def qkv_ids(k):
    k("s_and_b32 s3, s2, 7")
    k("s_lshr_b32 s13, s2, 3")
    k("s_and_b32 s14, s3, 3")
    k("s_lshl_b32 s14, s14, 2")
    k("s_and_b32 s15, s13, 3")
    k("s_add_u32 s11, s14, s15")
    k("s_lshr_b32 s14, s3, 2")
    k("s_lshl_b32 s14, s14, 3")
    k("s_lshr_b32 s15, s13, 2")
    k("s_add_u32 s12, s14, s15")


JW, JSG, JU, JT, JTM, JWO, JD = 136, 152, 160, 168, 176, 184, 199
def wjob_issue(k):
    k(f"s_mul_hi_u32 s55, s2, {(1<<32)//5+1}")
    k("s_mul_i32 s54, s55, 5")
    k("s_sub_u32 s54, s2, s54")
    k("s_lshl_b32 s54, s54, 7")
    k("s_cmp_ge_u32 s55, 24")
    k("s_cselect_b32 s52, 1, 0          ; matrix")
    k("s_mul_i32 s53, s52, 24")
    k("s_sub_u32 s53, s55, s53")
    k("v_and_b32 v191, 255, v0")
    k("v_and_b32 v188, 7, v191")
    k("v_lshrrev_b32 v189, 3, v191")
    k("v_add_u32 v189, s54, v189")
    k("v_mul_u32_u24 v190, 3072, v189")
    k("s_lshl_b32 s55, s53, 7")
    k("v_lshl_add_u32 v190, v188, 4, v190")
    k("v_add_u32 v190, s55, v190")
    k("s_cmp_ge_u32 s2, 240")
    k("s_cselect_b32 s55, 0, 1966080")
    k("s_cmp_eq_u32 s52, 0")
    k(f"s_cselect_b32 s44, s{WGP}, s{WUP_}")
    k(f"s_cselect_b32 s45, s{WGP+1}, s{WUP_+1}")
    k("s_mov_b32 s46, s55")
    k("s_mov_b32 s47, 0x00020000")
    for i in range(4):
        k(f"s_mov_b32 s55, {i*32*3072}")
        k(f"buffer_load_dwordx4 v[{JW+4*i}:{JW+4*i+3}], v190, s[44:47], s55 offen")
    k("s_lshl_b32 s55, s2, 8")
    k("v_add_u32 v191, s55, v191")
    k("v_lshlrev_b32 v190, 4, v191")
    srd(k, 48, WOP_, 640 * 1280)
    k(f"buffer_load_dwordx4 v[{JWO}:{JWO+3}], v190, s[48:51], 0 offen")
    flag_srd(k)
    k("v_and_b32 v192, 3, v1")
    k("v_lshlrev_b32 v192, 7, v192")
    k(f"v_add_u32 v192, {FL_M}, v192")
    k("buffer_load_dword v193, v192, s[56:59], 0 offen sc1")
    return 6
def wjob_compute(k, tag):
    k("s_waitcnt vmcnt(0)")
    k(f"v_cmp_ne_u32 vcc, s{NONCE}, v193")
    k("s_cmp_eq_u64 vcc, 0")
    k(f"s_cbranch_scc1 {tag}_MOK")
    poll(k, f"{tag}_M", 192, "-1", 193)
    k.label(f"{tag}_MOK")
    wsrd(k, 48, 6 * 640 * 4, WS_MODV)
    k("v_lshlrev_b32 v190, 2, v189")
    for i in range(4):
        k("s_movk_i32 s55, 7680")
        k(f"buffer_load_dword v{JSG+2*i}, v190, s[48:51], s55 offen offset:{128*i} sc1")
        k("s_movk_i32 s55, 10240")
        k(f"buffer_load_dword v{JSG+2*i+1}, v190, s[48:51], s55 offen offset:{128*i} sc1")
    for r in range(16): k(f"v_mov_b32 v{JU+r}, 0")
    k("s_lshl_b32 s55, s53, 3")
    k("v_add_u32 v190, s55, v188")
    k("v_mul_u32_u24 v194, 5462, v190")
    k("v_lshrrev_b32 v194, 16, v194     ; ct")
    k("v_mul_u32_u24 v195, 12, v194")
    k("v_sub_u32 v195, v190, v195       ; cc")
    k("s_mov_b32 s55, 245760")
    k("v_mul_lo_u32 v196, s55, v194")
    k("s_mul_i32 s55, s52, 12288")
    k("v_lshl_add_u32 v196, v195, 4, v196")
    k("v_add_u32 v196, s55, v196")
    for i in range(4):
        k(f"v_add_u32 v190, {32*i}, v189")
        k("v_lshrrev_b32 v197, 6, v190")
        k("v_mul_u32_u24 v190, 192, v190")
        k("v_mul_u32_u24 v197, 12288, v197")
        k(f"v_add3_u32 v{JD+i}, v190, v197, v196")
    k("v_mul_u32_u24 v190, 384, v194")
    k("v_lshl_add_u32 v190, v195, 3, v190")
    k("v_lshrrev_b32 v197, 3, v1")
    k("v_add_u32 v190, v190, v197")
    k("s_mul_i32 s55, s52, 96")
    k("v_add_u32 v190, s55, v190")
    k(f"v_lshlrev_b32 v{JD+4}, 2, v190")
    divconst(k, 190, 191, 80, 55, 65536)
    k("v_mul_u32_u24 v197, 80, v190")
    k("v_sub_u32 v197, v191, v197")
    divconst(k, 198, 197, 10, 55, 80)
    k("v_mul_u32_u24 v194, 10, v198")
    k("v_sub_u32 v197, v197, v194")
    k("v_and_b32 v194, 0xfffffff3, v190")
    k("v_bfe_u32 v195, v190, 2, 1")
    k("v_lshl_or_b32 v194, v195, 3, v194")
    k("v_bfe_u32 v195, v190, 3, 1")
    k("v_lshl_or_b32 v194, v195, 2, v194")
    k(f"s_mov_b32 s55, {640*160}")
    k("v_mul_lo_u32 v198, s55, v198")
    k("v_mul_u32_u24 v194, 160, v194")
    k("v_lshlrev_b32 v197, 4, v197")
    k("v_add3_u32 v198, v198, v197, v194")
    k("s_mov_b32 s55, 51200")
    k("v_cmp_gt_u32 vcc, s55, v191")
    k("v_mov_b32 v194, 0x7ffffff0")
    k(f"v_cndmask_b32 v{JD+5}, v194, v198, vcc")
    k("s_waitcnt vmcnt(0)")
    for i in range(4):
        d = JW + 4 * i
        for q in range(4):
            k(f"v_lshlrev_b32 v{JTM+2*q}, 16, v{d+q}")
            k(f"v_and_b32 v{JTM+2*q+1}, 0xffff0000, v{d+q}")
        sg = f"v[{JSG+2*i}:{JSG+2*i+1}]"
        for q in range(0, 8, 2): k(f"v_pk_fma_f32 v[{JT+q}:{JT+q+1}], v[{JTM+q}:{JTM+q+1}], {sg}, v[{JT+q}:{JT+q+1}] op_sel:[0,0,0] op_sel_hi:[1,0,1]")
        for q in range(0, 8, 2): k(f"v_pk_mul_f32 v[{JTM+q}:{JTM+q+1}], v[{JTM+q}:{JTM+q+1}], {sg} op_sel:[0,1] op_sel_hi:[1,1]")
        for q in range(0, 8, 2): k(f"v_pk_add_f32 v[{JU+q}:{JU+q+1}], v[{JU+q}:{JU+q+1}], v[{JTM+q}:{JTM+q+1}]")
        for q in range(4): k(f"v_cvt_pk_bf16_f32 v{d+q}, v{JTM+2*q}, v{JTM+2*q+1}")
    def rscatter(B):
        for e in range(4):
            k(f"v_permlane32_swap_b32 v{B+e}, v{B+e+4}")
            k(f"v_add_f32 v{B+e}, v{B+e}, v{B+e+4}")
        for e in range(2):
            k(f"v_permlane16_swap_b32 v{B+e}, v{B+e+2}")
            k(f"v_add_f32 v{B+e}, v{B+e}, v{B+e+2}")
        k(f"v_add_f32_dpp v{B}, v{B}, v{B} row_ror:8 row_mask:0xf bank_mask:0xf")
        k(f"v_add_f32_dpp v{B+1}, v{B+1}, v{B+1} row_ror:8 row_mask:0xf bank_mask:0xf")
        k(f"v_cndmask_b32 v{B}, v{B}, v{B+1}, vcc")
    k("v_and_b32 v190, 8, v1")
    k("v_cmp_ne_u32 vcc, 0, v190")
    rscatter(JU); rscatter(JT)
def wjob_store_w(k):
    k("s_cmp_ge_u32 s2, 240")
    k(f"s_cselect_b32 s55, 0, {16 * 10 * 24576}")
    k(f"s_add_u32 s44, s{WSP}, {WS_WUP}")
    k(f"s_addc_u32 s45, s{WSP+1}, 0")
    k("s_mov_b32 s46, s55")
    k("s_mov_b32 s47, 0x00020000")
    for i in range(4): k(f"buffer_store_dwordx4 v[{JW+4*i}:{JW+4*i+3}], v{JD+i}, s[44:47], 0 offen sc1")
def wjob_store_rest(k):
    k("s_cmp_ge_u32 s2, 240")
    k(f"s_cselect_b32 s55, 0, {16 * 384 * 4}")
    k(f"s_add_u32 s44, s{WSP}, {WS_UT}")
    k(f"s_addc_u32 s45, s{WSP+1}, 0")
    k("s_mov_b32 s46, s55")
    k("s_mov_b32 s47, 0x00020000")
    k(f"buffer_atomic_add_f32 v{JU}, v{JD+4}, s[44:47], 0 offen")
    k(f"buffer_atomic_add_f32 v{JT}, v{JD+4}, s[44:47], 0 offen offset:768")
    wsrd(k, 48, 8 * 640 * 160, WS_WOP)
    k(f"buffer_store_dwordx4 v[{JWO}:{JWO+3}], v{JD+5}, s[48:51], 0 offen sc1")

QNS = 4
def phase2_loader(k):
    k.label("P0_LOADERS")
    k("s_barrier                        ; B_a2")
    if not os.environ.get("NO_CODEPF"):
        k("s_cmp_lg_u32 s8, 7")
        k("s_cbranch_scc1 F_NOCPF")
        k("s_getpc_b64 s[34:35]")
        k.label("F_PC")
        k("s_lshr_b32 s9, s2, 3")
        k("s_mul_i32 s9, s9, 18")
        k("v_add_u32 v2, s9, v1")
        k("v_lshlrev_b32 v2, 7, v2")
        k("v_cmp_gt_u32 vcc, 18, v1")
        k("s_mov_b32 s10, F_END-F_PC")
        k("v_cmp_gt_u32 s[36:37], s10, v2")
        k("s_and_b64 vcc, vcc, s[36:37]")
        k("s_and_saveexec_b64 s[36:37], vcc")
        k("s_cbranch_execz F_CPFX")
        k("global_load_dword v231, v2, s[34:35]")
        k.label("F_CPFX")
        k("s_mov_b64 exec, s[36:37]")
        k.label("F_NOCPF")
    if not os.environ.get("NO_TLB"):
        k("s_cmp_lg_u32 s8, 6")
        k("s_cbranch_scc1 F_NOTLB")
        wsrd(k, 16, WS_END, 0)
        srd(k, 20, OUTP, S * D * 2)
        k("s_lshr_b32 s9, s2, 3")
        k("s_lshl_b32 s9, s9, 4")
        k("v_add_u32 v2, s9, v1")
        k("v_lshlrev_b32 v2, 16, v2")
        k("s_mov_b64 exec, 0xffff")
        k("buffer_load_dword v229, v2, s[16:19], 0 offen")
        k("s_mov_b64 exec, -1")
        k("s_lshr_b32 s9, s2, 3")
        k("v_mov_b32 v2, s9")
        k("v_lshlrev_b32 v2, 17, v2")
        k("s_mov_b64 exec, 1")
        k("buffer_load_dword v228, v2, s[20:23], 0 offen")
        k("s_mov_b64 exec, -1")
        k.label("F_NOTLB")
    qkv_ids(k)
    VA, VB = 8, 12
    k("s_lshl_b32 s9, s11, 7")
    k("s_lshl_b32 s10, s31, 5")
    k("s_add_u32 s9, s9, s10")
    a_dma_rows32(k, VA, 9, 1280)
    k("v_lshrrev_b32 v2, 4, v1")
    k("v_bfe_u32 v3, v1, 2, 2")
    k("v_xor_b32 v3, v3, v2")
    k("v_lshlrev_b32 v3, 6, v3")
    k("v_and_b32 v4, 3, v1")
    k("v_lshl_add_u32 v3, v4, 4, v3")
    k("s_lshl_b32 s9, s31, 4")
    k("v_add_u32 v2, s9, v2")
    k("v_mul_u32_u24 v2, 3840, v2")
    k("s_lshl_b32 s9, s12, 8")
    k("v_add3_u32 v2, v2, v3, s9")
    for i in range(4):
        k(f"v_add_u32 v{VB+i}, {i*(4*3840-1024)}, v2")
    k("s_lshl_b32 s13, s31, 12")
    wsrd(k, 16, S * D * 2, WS_H)
    srd(k, 20, WQKVP, 640 * 3840)
    def dmaA(st):
        k(f"s_add_u32 m0, s13, {(st % QNS)*32768}")
        k(f"s_mov_b32 s14, {st*128}")
        for i in range(4):
            k(f"buffer_load_dwordx4 v{VA+i}, s[16:19], s14 offen offset:{i*1024} sc1 lds")
    def dmaB(st):
        k(f"s_add_u32 m0, s13, {(st % QNS)*32768 + 16384}")
        k(f"s_mov_b32 s14, {st*64*3840}")
        for i in range(4):
            k(f"buffer_load_dwordx4 v{VB+i}, s[20:23], s14 offen offset:{i*1024} lds")
    L = Loader(k, 10, QNS, dmaA, dmaB, 4, 4)
    k("s_cmp_ge_u32 s12, 15")
    k("s_cbranch_scc1 P2L_NOTILE")
    L.preloadB()
    if not os.environ.get("NO_WPF"):
        k("s_and_b32 s9, s11, 3")
        k("s_mul_i32 s9, s9, 224")
        k("s_mul_i32 s10, s31, 56")
        k("s_add_u32 s9, s9, s10")
        k("v_add_u32 v16, s9, v1")
        k("v_lshrrev_b32 v17, 1, v16")
        k("v_add_u32 v17, 192, v17")
        k("v_mul_u32_u24 v17, 3840, v17")
        k("v_and_b32 v16, 1, v16")
        k("v_lshl_add_u32 v17, v16, 7, v17")
        k("s_lshl_b32 s9, s12, 8")
        k("v_add_u32 v17, s9, v17")
        k("v_cmp_gt_u32 vcc, 56, v1")
        k("v_mov_b32 v16, 0x7ffffff0")
        k("v_cndmask_b32 v17, v16, v17, vcc")
        k("buffer_load_dword v231, v17, s[20:23], 0 offen")
    k.label("P2L_NOTILE")
    if os.environ.get("RAWTOUCH"):
        k("s_cmp_eq_u32 s8, 4")
        k(f"s_cselect_b32 s44, s{WGP}, s{WUP_}")
        k(f"s_cselect_b32 s45, s{WGP+1}, s{WUP_+1}")
        k("s_cmp_eq_u32 s8, 6")
        k(f"s_cselect_b32 s44, s{WOP_}, s44")
        k(f"s_cselect_b32 s45, s{WOP_+1}, s45")
        k("s_cselect_b32 s9, 25, 60")
        k(f"s_mov_b32 s46, {640*3072}")
        k(f"s_cselect_b32 s46, {640*1280}, s46")
        k("s_cmp_eq_u32 s8, 7")
        k(f"s_cselect_b32 s44, s{WDP_}, s44")
        k(f"s_cselect_b32 s45, s{WDP_+1}, s45")
        k("s_mov_b32 s47, 0x00020000")
        k("s_mul_i32 s10, s2, s9")
        k("v_add_u32 v16, s10, v1")
        k("v_lshlrev_b32 v16, 7, v16")
        k("v_cmp_gt_u32 vcc, s9, v1")
        k("v_mov_b32 v17, 0x7ffffff0")
        k("v_cndmask_b32 v16, v17, v16, vcc")
        k("buffer_load_dword v230, v16, s[44:47], 0 offen")
    phase2_tables(k)
    k("s_barrier                        ; B_b")
    k(f"v_mov_b32 v16, {CTL}")
    k("ds_read_b32 v17, v16")
    k("s_waitcnt lgkmcnt(0)")
    k(f"v_readfirstlane_b32 s{NONCE}, v17")
    k("s_barrier                        ; B_c")
    k("s_cmp_ge_u32 s12, 15")
    k("s_cbranch_scc1 P2_SPARE")
    k("s_cmp_lg_u32 s8, 4")
    k("s_cbranch_scc1 P2L_GO")
    poll_range(k, "P2L_H", FL_H, lambda: k("s_lshl_b32 s9, s11, 4"), 16)
    k.label("P2L_GO")
    k("s_barrier                        ; B_d")
    mark(k, 2)
    BE = not os.environ.get("NO_BE")
    L.run(tail=(None if BE else (lambda: wjob_issue(k))), prefetch=apf_loader(k, WS_H, S * D * 2, lambda: k("s_lshl_b32 s9, s11, 7"), 1280, 7, 1, 9, lambda: k("s_and_b32 s9, s12, 7"), 144, 17, 229))
    mark(k, 20)
    if BE:
        k("s_barrier")
        wjob_issue(k)
    wjob_compute(k, "P2LJ")
    k("s_branch P3_START")

def last_arriver_flag(k, tag, lds_word, last, base, idx_sgpr, v=20):
    k(f"v_mov_b32 v{v}, {lds_word}")
    k(f"v_mov_b32 v{v+1}, 1")
    k("s_mov_b64 exec, 1")
    k(f"ds_add_rtn_u32 v{v+2}, v{v}, v{v+1}")
    k("s_waitcnt lgkmcnt(0)")
    k(f"v_readfirstlane_b32 s9, v{v+2}")
    k("s_mov_b64 exec, -1")
    k(f"s_cmp_lg_u32 s9, {last}")
    k(f"s_cbranch_scc1 {tag}_NL")
    set_flag(k, base, idx_sgpr, v)
    k.label(f"{tag}_NL")

def phase2_spare(k):
    k.label("P2_SPARE")
    k("s_cmp_lg_u32 s8, 4")
    k("s_cbranch_scc1 P2S_FLAG")
    k("s_cmp_ge_u32 s11, 4")
    k("s_cbranch_scc1 P2S_FLAG")
    poll_all(k, "P2S_ALLH", FL_H, 20)
    k("s_add_u32 s9, s11, 2")
    k("s_mul_i32 s9, s9, 2560")
    wsrd(k, 16, 4 * 3840 * 4, WS_MODP)
    wsrd(k, 20, 6 * 640 * 4, WS_MODV)
    for i in range(3):
        k(f"v_add_u32 v2, {64*i}, v1")
        k(f"v_lshlrev_b32 v{3+i}, 4, v2")
        if i == 2:
            k("v_cmp_gt_u32 vcc, 160, v2")
            k("v_mov_b32 v6, 0x7ffffff0")
            k(f"v_cndmask_b32 v{3+i}, v6, v{3+i}, vcc")
        for q in range(4):
            k(f"s_add_u32 s10, s9, {q*15360}")
            k(f"buffer_load_dwordx4 v[{8+16*i+4*q}:{11+16*i+4*q}], v{3+i}, s[16:19], s10 offen sc1")
    k("s_waitcnt vmcnt(0)")
    for i in range(3):
        B = 8 + 16 * i
        for r in range(4):
            k(f"v_add_f32 v{B+r}, v{B+r}, v{B+4+r}")
            k(f"v_add_f32 v{B+8+r}, v{B+8+r}, v{B+12+r}")
        for r in range(4): k(f"v_add_f32 v{B+r}, v{B+r}, v{B+8+r}")
        for r in range(4): bf16_round_f32(k, B + r, B + r, 60)
    k("s_cmp_lg_u32 s11, 2")
    k("s_cbranch_scc1 P2S_NOONE")
    for i in range(3):
        B = 8 + 16 * i
        for r in range(4): k(f"v_add_f32 v{B+r}, 1.0, v{B+r}")
        for r in range(4): bf16_round_f32(k, B + r, B + r, 60)
    k.label("P2S_NOONE")
    for i in range(3):
        k(f"buffer_store_dwordx4 v[{8+16*i}:{11+16*i}], v{3+i}, s[20:23], s9 offen sc1")
    k("s_waitcnt vmcnt(0)")
    set_flag(k, FL_M, 11)
    k.label("P2S_FLAG")
    wjob_issue(k)
    wjob_compute(k, "P2SJ")
    k("s_branch P3_START")

QA = dict(AF=40, BF=48, ACC=80, RA=212, RB=220, EA=176, GA=192)
def phase2_setup(k):
    RA, RB, EA, GA = QA["RA"], QA["RB"], QA["EA"], QA["GA"]
    k.label("P2_SETUP")
    qkv_ids(k)
    k("s_cmp_ge_u32 s12, 15")
    k("s_cbranch_scc1 P2_SETUP_END")
    k("v_and_b32 v55, 31, v1")
    k("v_lshrrev_b32 v54, 5, v1")
    k("v_bfe_u32 v52, v55, 1, 3")
    k("v_lshlrev_b32 v55, 7, v55")
    k("s_lshl_b32 s10, s8, 12")
    k("v_add_u32 v55, s10, v55")
    for ks in range(4):
        k(f"v_add_u32 v53, {2*ks}, v54")
        k("v_xor_b32 v53, v53, v52")
        k(f"v_lshl_add_u32 v{RA+ks}, v53, 4, v55")
        k(f"v_add_u32 v{RA+4+ks}, 65536, v{RA+ks}")
    k("v_lshrrev_b32 v55, 5, v1")
    k("v_bfe_u32 v54, v1, 2, 2")
    k("v_lshl_add_u32 v55, v55, 3, v54")
    k("v_lshlrev_b32 v55, 8, v55")
    k("v_bfe_u32 v52, v1, 4, 1")
    k("v_lshl_add_u32 v55, v52, 5, v55")
    k("v_and_b32 v52, 3, v1")
    k("v_lshl_add_u32 v55, v52, 3, v55")
    k("v_add_u32 v55, 16384, v55")
    for nt in range(4):
        k(f"v_xor_b32 v52, {nt}, v54")
        k(f"v_lshl_add_u32 v{RB+nt}, v52, 6, v55")
        k(f"v_add_u32 v{RB+4+nt}, 65536, v{RB+nt}")
    k("s_cmp_ge_u32 s12, 10")
    k("s_cbranch_scc1 P2S_V")
    k("s_cmp_ge_u32 s12, 5")
    k("s_cbranch_scc1 P2S_K")
    k(f"s_mov_b32 s16, {64*1280}")
    k("s_movk_i32 s17, 1280")
    k("s_lshl_b32 s10, s12, 5")
    k(f"s_mov_b32 s41, {hex(f2u(1.4426950408889634 / (20 ** 0.5)))}")
    k("s_branch P2S_QK")
    k.label("P2S_K")
    k(f"s_mov_b32 s16, {KV_HEAD}")
    k(f"s_movk_i32 s17, {KV_TILE}")
    k("s_sub_u32 s10, s12, 5")
    k("s_lshl_b32 s10, s10, 5")
    k("s_mov_b32 s41, 1.0")
    k.label("P2S_QK")
    k("s_lshl_b32 s42, s11, 2")
    k("s_add_u32 s42, s42, s8")
    k("s_mul_i32 s42, s42, s17")
    k("s_lshl_b32 s43, s8, 14")
    k("s_add_u32 s43, s43, 65536")
    k("s_branch P2_SETUP_END")
    k.label("P2S_V")
    k("s_lshl_b32 s42, s11, 2")
    k("s_add_u32 s42, s42, s8")
    k(f"s_mul_i32 s42, s42, {KV_TILE}")
    k("s_add_u32 s42, s42, 1280")
    k.label("P2_SETUP_END")
    k("s_lshr_b32 s14, s2, 2")
    k("s_and_b32 s13, s2, 3")

TBL = 144384
def phase2_tables(k):
    k("s_cmp_ge_u32 s12, 15")
    k("s_cbranch_scc1 P2T_END")
    k("v_lshlrev_b32 v30, 4, v1")
    k(f"v_add_u32 v30, {TBL}, v30        ; lane*16")
    k("s_cmp_ge_u32 s12, 10")
    k("s_cbranch_scc1 P2T_V")
    k("s_cmp_ge_u32 s12, 5")
    k("s_cselect_b32 s10, 5, 0")
    k(f"s_cselect_b32 s44, {KV_HEAD}, 0")
    k(f"s_cselect_b32 s45, 0, {64*1280}")
    k("s_or_b32 s44, s44, s45")
    k("s_sub_u32 s10, s12, s10")
    k("s_lshl_b32 s10, s10, 5")
    k(f"s_mul_hi_u32 s35, s10, {(1<<32)//5+1}")
    k("v_and_b32 v25, 31, v1")
    k("v_lshrrev_b32 v24, 5, v1")
    k("v_add_u32 v24, s10, v24")
    k("v_lshlrev_b32 v26, 4, v25")
    k("v_lshlrev_b32 v27, 3, v25")
    k("v_add_u32 v27, 1024, v27")
    for n in range(4):
        k("s_lshl_b32 s9, s31, 3")
        k(f"s_add_u32 s9, s9, {2*n}")
        k("v_add_u32 v18, s9, v24")
        k("v_mul_u32_u24 v19, 205, v18")
        k("v_lshrrev_b32 v19, 10, v19")
        k("v_mad_i32_i24 v20, v19, -5, v18")
        k("v_lshrrev_b32 v21, 1, v20")
        k("v_lshl_add_u32 v21, v21, 9, v26")
        k("v_and_b32 v22, 1, v20")
        k("v_lshl_add_u32 v21, v22, 3, v21")
        k("v_cmp_eq_u32 vcc, 4, v20")
        k("v_subrev_u32 v19, s35, v19")
        k("v_cndmask_b32 v21, v21, v27, vcc")
        k("v_mul_u32_u24 v19, 1280, v19")
        k(f"v_add_u32 v{32+n}, v21, v19")
    k("s_lshl_b32 s9, s31, 10")
    k("v_add_u32 v31, s9, v30")
    k("ds_write_b128 v31, v[32:35]")
    for m in range(3):
        k("s_mul_i32 s9, s31, 3")
        k(f"s_add_u32 s9, s9, {m}")
        k("s_lshl_b32 s14, s9, 6")
        k("v_add_u32 v18, s14, v1")
        k("v_mul_u32_u24 v19, 52429, v18")
        k("v_lshrrev_b32 v19, 22, v19          ; hh = c / 80")
        k("v_mul_u32_u24 v20, 80, v19")
        k("v_sub_u32 v20, v18, v20             ; w = c % 80")
        k("v_lshrrev_b32 v21, 5, v20")
        k("v_lshlrev_b32 v21, 1, v21")
        k("v_add_u32 v19, s35, v19             ; head")
        k("v_mad_u32_u24 v22, v19, 5, v21")
        k("v_cmp_gt_u32 vcc, 4, v21")
        k("v_addc_co_u32 v23, vcc, 0, v22, vcc")
        k("v_subrev_u32 v22, s10, v22")
        k("v_subrev_u32 v23, s10, v23")
        k("v_max_u32 v22, v22, v23")
        k("v_cmp_gt_u32 vcc, 32, v22")
        k("v_mul_lo_u32 v19, s44, v19")
        k("v_lshl_add_u32 v19, v20, 4, v19")
        k("v_mov_b32 v22, 0x7ffffff0")
        k("v_cndmask_b32 v19, v22, v19, vcc")
        k("s_add_u32 s9, s9, 16")
        k("s_lshr_b32 s14, s9, 2")
        k("s_lshl_b32 s14, s14, 10")
        k("s_and_b32 s9, s9, 3")
        k("s_lshl_b32 s9, s9, 2")
        k("s_add_u32 s9, s9, s14")
        k("v_add_u32 v31, s9, v30")
        k("ds_write_b32 v31, v19")
    k("s_cmp_lg_u32 s31, 3")
    k("s_cbranch_scc1 P2T_END")
    k("v_lshrrev_b32 v18, 5, v1            ; side")
    k("v_lshlrev_b32 v19, 5, v18")
    k("v_add_u32 v19, s10, v19")
    k("v_add_u32 v19, -1, v19")
    k("v_max_i32 v20, 0, v19")
    k("v_mul_u32_u24 v21, 205, v20")
    k("v_lshrrev_b32 v21, 10, v21          ; head")
    k("v_mad_i32_i24 v22, v21, -5, v20     ; dq")
    k("v_and_b32 v23, 5, v22")
    k("v_cmp_eq_u32 vcc, 0, v23")
    k("v_cmp_le_i32 s[62:63], 0, v19")
    k("s_and_b64 vcc, vcc, s[62:63]")
    k("v_lshrrev_b32 v22, 1, v22")
    k("v_lshlrev_b32 v22, 9, v22           ; half*512")
    k("v_and_b32 v23, 31, v1")
    k("v_lshl_add_u32 v22, v23, 4, v22     ; + token*16")
    k("v_xor_b32 v23, 1, v18")
    k("v_lshl_add_u32 v22, v23, 3, v22")
    k("v_subrev_u32 v23, s35, v21")
    k("v_max_i32 v23, 0, v23")
    k("v_mul_u32_u24 v23, 1280, v23")
    k("v_add_u32 v23, v23, v22")
    k("v_mul_lo_u32 v21, s44, v21")
    k("v_add_u32 v21, v21, v22")
    k("v_mov_b32 v22, 0x7ffffff0")
    k("v_cndmask_b32 v21, v22, v21, vcc")
    k(f"v_add_u32 v31, {6*1024 + 8}, v30")
    k("ds_write_b32 v31, v21")
    k("ds_write_b32 v31, v23 offset:4")
    k("s_branch P2T_END")
    k.label("P2T_V")
    k("v_and_b32 v25, 31, v1")
    k("v_lshrrev_b32 v24, 5, v1")
    k(f"v_mul_u32_u24 v24, {VSEG}, v24")
    k("s_sub_u32 s10, s12, 10")
    k("s_lshl_b32 s10, s10, 7")
    k("s_lshl_b32 s9, s31, 5")
    k("s_add_u32 s10, s10, s9")
    k("v_add_u32 v18, s10, v25")
    k("v_mul_u32_u24 v19, 3277, v18")
    k("v_lshrrev_b32 v19, 16, v19")
    k("v_mul_u32_u24 v20, 20, v19")
    k("v_sub_u32 v20, v18, v20")
    k(f"s_mov_b32 s10, {KV_HEAD}")
    k("v_mul_lo_u32 v19, s10, v19")
    k("v_lshlrev_b32 v20, 4, v20")
    k("v_add3_u32 v19, v19, v20, v24")
    k("s_lshl_b32 s9, s31, 2")
    k("v_add_u32 v31, s9, v30")
    k("ds_write_b32 v31, v19")
    k.label("P2T_END")
    k("s_waitcnt lgkmcnt(0)")

def phase2_compute(k):
    AF, BF, ACC, RA, RB, EA, GA = (QA[x] for x in ("AF", "BF", "ACC", "RA", "RB", "EA", "GA"))
    k.label("P2_START")
    if os.environ.get("PRIO_C"): k("s_setprio 1")
    k("s_cmp_ge_u32 s12, 15")
    k("s_cbranch_scc1 P3_START")
    def reads(step):
        st, ks = divmod(step, 4); slot = st % QNS; sb = step & 1
        bs, off = slot >> 1, (slot & 1) * 32768
        a = f"ds_read_b128 v[{AF+4*sb}:{AF+4*sb+3}], v{RA+4*bs+ks} offset:{off}"
        out = []
        for nt in range(4):
            d = BF + (sb * 4 + nt) * 4
            g = [f"ds_read_b64_tr_b16 v[{d+2*j}:{d+2*j+1}], v{RB+4*bs+nt} offset:{off + (16*ks+4*j)*256}" for j in range(2)]
            out.append(([a] if nt == 0 else []) + g)
        return out
    def mf(swap):
        def f(step, nt):
            sb = step & 1; a = AF + 4 * sb; b = BF + (sb * 4 + nt) * 4; d = ACC + 16 * nt
            c = "0" if step == 0 else None
            return [mfma32(d, a, b, c) if swap else mfma32(d, b, a, c)]
        return f
    k("v_lshlrev_b32 v2, 4, v1")
    k(f"v_add_u32 v2, {TBL}, v2")
    for g in range(7): k(f"ds_read_b128 v[{EA+4*g}:{EA+4*g+3}], v2 offset:{1024*g}")
    k("s_waitcnt lgkmcnt(0)")
    k("s_cmp_ge_u32 s12, 10")
    k("s_cbranch_scc1 P2_V")
    for r in range(16): k(f"v_add_u32 v{EA+r}, s43, v{EA+r}")
    k("s_cmp_ge_u32 s12, 5")
    k("s_cbranch_scc1 P2_K")
    wsrd(k, 24, 32 * 64 * 1280, WS_Q)
    k("s_branch P2_QK")
    k.label("P2_K")
    wsrd(k, 24, 32 * KV_HEAD, WS_KV)
    k.label("P2_QK")
    k("s_barrier                        ; B_d")
    def qapf():
        if APF: apf_rows(k, WS_H, S * D * 2, lambda: k("s_lshl_b32 s9, s11, 7"), 1280, 7, 0, 10, lambda: k("s_and_b32 s9, s12, 7"), 160, 28, 229)
    qapf()
    compute_loop(k, 10, 4, reads, mf(False), 0, stamp=False)
    mark(k, 3)
    k("v_mov_b32 v2, s41")
    k("v_mov_b32 v3, s41")
    for nt in range(4):
        for j in range(4):
            a_ = ACC + 16 * nt + 4 * j
            t = 28 + 2 * (j % 4)
            k(f"v_pk_mul_f32 v[{a_}:{a_+1}], v[{a_}:{a_+1}], v[2:3]")
            k(f"v_pk_mul_f32 v[{a_+2}:{a_+3}], v[{a_+2}:{a_+3}], v[2:3]")
            k(f"v_cvt_pk_bf16_f32 v{t}, v{a_}, v{a_+1}")
            k(f"v_cvt_pk_bf16_f32 v{t+1}, v{a_+2}, v{a_+3}")
            k(f"ds_write_b64 v{EA+4*nt+j}, v[{t}:{t+1}]")
    k("v_lshlrev_b32 v2, 4, v1")
    k("v_add_u32 v2, s43, v2")
    k(f"v_add_u32 v3, s43, v{GA+11}")
    k("s_waitcnt lgkmcnt(0)")
    for i in range(10): k(f"ds_read_b128 v[{ACC+4*i}:{ACC+4*i+3}], v2 offset:{1024*i}")
    k(f"ds_read_b64 v[{ACC+40}:{ACC+41}], v3")
    for i in range(10):
        k(f"s_waitcnt lgkmcnt({10-i})")
        k(f"buffer_store_dwordx4 v[{ACC+4*i}:{ACC+4*i+3}], v{GA+i}, s[24:27], s42 offen sc1")
    k("s_waitcnt lgkmcnt(0)")
    k(f"buffer_store_dwordx2 v[{ACC+40}:{ACC+41}], v{GA+10}, s[24:27], s42 offen sc1")
    k("s_branch P2_DONE")
    k.label("P2_V")
    wsrd(k, 24, 32 * KV_HEAD, WS_KV)
    k("s_barrier                        ; B_d")
    qapf()
    compute_loop(k, 10, 4, reads, mf(True), 0, stamp=False)
    mark(k, 3)
    for nt in range(4):
        for m in range(2):
            a_ = ACC + 16 * nt + 8 * m
            t = 28 + 4 * m
            for q in range(4):
                k(f"v_cvt_pk_bf16_f32 v{t+q}, v{a_+2*q}, v{a_+2*q+1}")
            k(f"buffer_store_dwordx4 v[{t}:{t+3}], v{EA+nt}, s[24:27], s42 offen offset:{2*VSEG*m} sc1")
    k.label("P2_DONE")
    if not os.environ.get("NO_BE") and not os.environ.get("BE2"): k("s_barrier                        ; B_e")
    if os.environ.get("QDIAG"): mark(k, 31)
    k("s_waitcnt vmcnt(0)")
    if os.environ.get("BE2"): k("s_barrier")
    k("s_lshl_b32 s34, s12, 4")
    k("s_add_u32 s34, s34, s11")
    mark(k, 19)
    last_arriver_flag(k, "P2C", CTL + 4, 3, FL_QKV, 34)
    k("s_branch P3_START")

def phase3(k):
    from k_attn2 import STAGE, Q1, Q2, KA, KB, VF, SS, PP, OO, AK, AKB, AV, VDMA
    vm = VM(k)
    FLAG = CTL + 12
    k.label("P3_START")
    if os.environ.get("PRIO_A"):
        k("s_setprio 0")
        k("s_cmp_lt_u32 s8, 4")
        k("s_cbranch_scc1 P3_PRIO")
        k("s_setprio 1")
        k.label("P3_PRIO")
    elif os.environ.get("PRIO_C"): k("s_setprio 0")
    k("s_and_b32 s11, s2, 7")
    k("s_lshl_b32 s11, s11, 2")
    k("s_bfe_u32 s12, s2, 0x20003")
    k("s_add_u32 s11, s11, s12          ; head")
    k("s_lshr_b32 s12, s2, 5")
    k(f"s_mul_i32 s9, s11, {KV_HEAD}")
    k("s_lshl_b32 s13, s8, 10")
    k("s_add_u32 s9, s9, s13")
    k("v_lshlrev_b32 v4, 4, v1")
    k(f"v_add_u32 v{VDMA}, s9, v4")
    k("v_and_b32 v2, 31, v1")
    k("s_lshl_b32 s9, s12, 3")
    k("s_add_u32 s9, s9, s8")
    k("s_mul_i32 s9, s9, 1280")
    k("s_mul_i32 s10, s11, 81920")
    k("s_add_u32 s9, s9, s10")
    k("v_add_u32 v10, s9, v4")
    k("v_lshlrev_b32 v5, 3, v2")
    k("v_add_u32 v5, s9, v5")
    k("v_lshrrev_b32 v3, 5, v1          ; half")
    for sl in range(3):
        k(f"v_lshlrev_b32 v{AK+sl}, 4, v1")
        if sl: k(f"v_add_u32 v{AK+sl}, {sl*STAGE}, v{AK+sl}")
        k(f"v_lshlrev_b32 v{AKB+sl}, 3, v2")
        k(f"v_add_u32 v{AKB+sl}, {sl*STAGE + 1024}, v{AKB+sl}")
        k(f"v_mul_u32_u24 v{AV+sl}, {VSEG}, v3")
        k(f"v_lshl_add_u32 v{AV+sl}, v2, 4, v{AV+sl}")
        k(f"v_add_u32 v{AV+sl}, {sl*STAGE + 1280}, v{AV+sl}")
    k("s_lshl_b32 s9, s12, 8")
    k("s_lshl_b32 s10, s8, 5")
    k("s_add_u32 s9, s9, s10")
    k("v_add_u32 v4, s9, v2             ; token")
    k("v_mul_u32_u24 v4, 1280, v4")
    k("s_mul_i32 s9, s11, 40")
    k("v_add_u32 v4, s9, v4")
    k("v_lshl_add_u32 v11, v3, 3, v4")
    k("s_mul_i32 s9, s8, 160")
    k("s_mul_i32 s10, s11, 81920")
    k("s_lshl_b32 s15, s12, 9")
    k("s_add_u32 s10, s10, s15")
    for i in range(3):
        k(f"v_add_u32 v6, {64*i}, v1")
        k("v_add_u32 v6, s9, v6")
        k("v_lshrrev_b32 v7, 5, v6")
        k("v_and_b32 v8, 31, v6")
        k("v_lshlrev_b32 v7, 12, v7")
        k("v_lshl_add_u32 v7, v8, 4, v7")
        k(f"v_add_u32 v{128+i}, s10, v7")
    k("v_cmp_gt_u32 vcc, 32, v1")
    k("v_mov_b32 v6, 0x7ffffff0")
    k("v_cndmask_b32 v130, v6, v130, vcc")
    for r in range(16): k(f"v_mov_b32 v{OO+r}, 0")
    wsrd(k, 16, 32 * KV_HEAD, WS_KV)
    wsrd(k, 20, S * D * 2, WS_Q)
    wsrd(k, 24, S * D * 2, WS_O)
    k("s_cmp_lg_u32 s8, 4")
    k("s_cbranch_scc1 P3_GO")
    k("s_mul_i32 s9, s11, 20")
    k("s_lshr_b32 s10, s9, 7")
    k("s_add_u32 s9, s9, 19")
    k("s_lshr_b32 s9, s9, 7")
    k("v_bfe_u32 v20, v1, 4, 1")
    k("s_sub_u32 s15, s9, s10")
    k("v_mul_u32_u24 v20, s15, v20")
    k("v_add_u32 v20, s10, v20")
    k("v_lshrrev_b32 v21, 5, v1")
    k("v_mul_u32_u24 v21, 5, v21")
    k("v_add3_u32 v20, v20, v21, 5")
    k("v_and_b32 v21, 15, v1")
    k("v_lshl_add_u32 v20, v20, 4, v21")
    k("v_lshlrev_b32 v20, 7, v20")
    k(f"v_add_u32 v20, {FL_QKV}, v20")
    flag_srd(k)
    poll(k, "P3_KV", 20, "-1", 21)
    k("v_bfe_u32 v20, v1, 1, 1")
    k("v_mul_u32_u24 v20, s15, v20")
    k("v_add_u32 v20, s10, v20")
    k("v_and_b32 v21, 1, v1")
    k("s_lshl_b32 s9, s12, 1")
    k("v_add_u32 v21, s9, v21")
    k("v_lshl_add_u32 v20, v20, 4, v21")
    k("v_lshlrev_b32 v20, 7, v20")
    k(f"v_add_u32 v20, {FL_QKV}, v20")
    poll(k, "P3_Q", 20, "0xf", 21)
    mark(k, 24)
    k.label("P3_GO")
    k("s_barrier                        ; B_g")
    mark(k, 4)
    def dma_item(st, slot, i):
        L = [f"s_add_u32 m0, s13, {slot*STAGE + 8192*i}", f"s_mov_b32 s14, {st*STAGE + 8192*i}"]
        return L, f"buffer_load_dwordx4 v{VDMA}, s[16:19], s14 offen sc1 lds"
    def emit_dma(st, slot, i):
        L, ld = dma_item(st, slot, i)
        for l in L: k(l)
        vm.issue(ld, ("kv", st, i))
    def emit_stage_first(st, slot):
        L, ld = dma_item(st, slot, 5)
        lab = f"ATT_NP_{st}"
        k("s_cmp_ge_u32 s8, 4")
        k(f"s_cbranch_scc1 {lab}")
        for l in L: k(l)
        k(ld)
        k.label(lab)
    vm.issue(f"buffer_load_dwordx4 v[{Q1}:{Q1+3}], v10, s[20:23], 0 offen sc1", "q")
    vm.issue(f"buffer_load_dwordx2 v[{Q2}:{Q2+1}], v5, s[20:23], 0 offen offset:1024 sc1", "q")
    emit_stage_first(0, 0)
    for i in range(5): emit_dma(0, 0, i)
    vm.wait({"q", ("kv", 0, 0), ("kv", 0, 1)})
    k("v_cmp_gt_u32 vcc, 32, v1")
    k(f"v_cndmask_b32 v{Q2}, 0, v{Q2}, vcc")
    k(f"v_cndmask_b32 v{Q2+1}, 0, v{Q2+1}, vcc")
    k("s_barrier")
    mark(k, 5)
    def rdK(t):
        st, tt = divmod(t, 16); sl = st % 3; b = t & 1
        return [f"ds_read_b128 v[{KA+4*b}:{KA+4*b+3}], v{AK+sl} offset:{tt*KV_TILE}",
                f"ds_read_b64 v[{KB+2*b}:{KB+2*b+1}], v{AKB+sl} offset:{tt*KV_TILE}"]
    def rdV(t):
        st, tt = divmod(t, 16); sl = st % 3; b = t & 1
        return [f"ds_read_b128 v[{VF+8*b+4*m}:{VF+8*b+4*m+3}], v{AV+sl} offset:{tt*KV_TILE + 2*VSEG*m}" for m in range(2)]
    def M1(t): b = t & 1; return m16(SS + 16 * b, KA + 4 * b, Q1, "0")
    def M2(t): b = t & 1; d = SS + 16 * b; return m8(d, KB + 2 * b, Q2, f"v[{d}:{d+15}]")
    def PV(t, m): b = t & 1; return m16(OO, VF + 8 * b + 4 * m, PP + 4 * m, f"v[{OO}:{OO+15}]")
    NTL = 64
    bg = {}
    def put(t, f): bg.setdefault(t, []).append(f)
    def stage_items(st, t0, step):
        slot = st % 3
        put(t0, lambda: emit_stage_first(st, slot))
        for i in range(5): put(t0 + step * i, (lambda i=i: emit_dma(st, slot, i)))
    stage_items(1, 0, 2); stage_items(2, 14, 1); stage_items(3, 30, 2)
    def wd_addr():
        k("s_lshl_b32 s9, s2, 9")
        k("v_add_u32 v118, s9, v0")
        k("v_lshlrev_b32 v119, 4, v118")
        srd(k, 36, WDP_, 1536 * 1280)
        vm.issue("buffer_load_dwordx4 v[120:123], v119, s[36:39], 0 offen", "wd")
    def wd_dst():
        divconst(k, 124, 118, 80, 9, 131072)
        k("v_mul_u32_u24 v125, 80, v124")
        k("v_sub_u32 v125, v118, v125")
        divconst(k, 126, 125, 10, 9, 80)
        k("v_mul_u32_u24 v127, 10, v126")
        k("v_sub_u32 v125, v125, v127")
        k("v_and_b32 v127, 0xfffffff3, v124")
        k("v_bfe_u32 v119, v124, 2, 1")
        k("v_lshl_or_b32 v127, v119, 3, v127")
        k("v_bfe_u32 v119, v124, 3, 1")
        k("v_lshl_or_b32 v127, v119, 2, v127")
        k(f"s_mov_b32 s9, {1536*160}")
        k("v_mul_lo_u32 v126, s9, v126")
        k("v_mul_u32_u24 v127, 160, v127")
        k("v_lshlrev_b32 v125, 4, v125")
        k("v_add3_u32 v119, v126, v125, v127")
        k("s_mov_b32 s9, 122880")
        k("v_cmp_gt_u32 vcc, s9, v118")
        k("v_mov_b32 v124, 0x7ffffff0")
        k("v_cndmask_b32 v119, v124, v119, vcc")
        wsrd(k, 36, 8 * 1536 * 160, WS_WDP)
    put(15, wd_addr); put(20, wd_dst)
    put(31, lambda: vm.issue("buffer_store_dwordx4 v[120:123], v119, s[36:39], 0 offen sc1", "wdst"))
    def only_job_waves(tag, f):
        def g():
            k("s_cmp_lt_u32 s8, 4")
            k(f"s_cbranch_scc1 P3_J{tag}")
            f()
            k.label(f"P3_J{tag}")
        return g
    put(5, only_job_waves("a", lambda: wjob_store_w(k)))
    put(6, only_job_waves("b", lambda: wjob_store_rest(k)))
    def job_flag():
        k("s_cmp_lg_u32 s8, 4")
        k("s_cbranch_scc1 P3_NOTF")
        set_flag(k, FL_T, 2, 188)
        k.label("P3_NOTF")
    put(15, job_flag)
    def only_wave(w, tag, f):
        def g():
            k(f"s_cmp_lg_u32 s8, {w}")
            k(f"s_cbranch_scc1 P3_W{tag}")
            f()
            k.label(f"P3_W{tag}")
        return g
    put(55, only_wave(1, "ta", lambda: check_all_issue(k, FL_T, 132)))
    def tfin():
        k("s_waitcnt vmcnt(0)")
        check_all_finish(k, "P3_TALL", FL_T, 132)
    put(61, only_wave(1, "tb", tfin))
    def pf_lines(off, nbytes, base_fn, per, vtag):
        def f():
            wsrd(k, 40, nbytes, off)
            base_fn()
            k("s_lshr_b32 s10, s2, 3")
            k(f"s_mul_i32 s10, s10, {per}")
            k("s_add_u32 s9, s9, s10")
            k("v_add_u32 v118, s9, v0")
            k("v_lshlrev_b32 v118, 7, v118")
            k(f"v_cmp_gt_u32 vcc, {per}, v0")
            k("v_mov_b32 v124, 0x7ffffff0")
            k("v_cndmask_b32 v118, v124, v118, vcc")
            vm.issue(f"buffer_load_dword v{vtag}, v118, s[40:43], 0 offen", "pf")
        return f
    if os.environ.get("PRETOUCH"):
        def pretouch():
            wsrd(k, 40, S * D * 2, WS_X1)
            k("s_mul_i32 s9, s2, 80")
            k("v_add_u32 v118, s9, v0")
            k("v_lshlrev_b32 v118, 7, v118")
            k("v_cmp_gt_u32 vcc, 80, v0")
            k("v_mov_b32 v124, 0x7ffffff0")
            k("v_cndmask_b32 v118, v124, v118, vcc")
            vm.issue("buffer_load_dword v229, v118, s[40:43], 0 offen", "pf")
        put(35, pretouch)
    if not os.environ.get("NO_WPF"):
        put(49, pf_lines(WS_WOP, 8 * 640 * 160, lambda: k("s_mov_b32 s9, 0"), 200, 231))
        def upbase():
            k("s_bfe_u32 s9, s2, 0x20001")
            k("s_mul_i32 s9, s9, 7680")
        put(53, pf_lines(WS_WUP, 16 * 10 * 24576, upbase, 240, 230))
    SEQ = os.environ.get("ATT_SEQ", "W0 M1 RKa RKb e0 e1 e2 c0 e3 P1 RV0 RV1 e4 c1 e5 e6 M2 c2 e7 e8 c3 e9 e10 P0 BG c4 e11 e12 c5 e13 e14 e15 c6 c7")
    for r in rdK(0) + rdK(1) + rdV(0): k(r)
    k("s_waitcnt lgkmcnt(4)")
    k(M1(0)); k(M2(0))
    for t in range(NTL):
        s = SS + 16 * (t & 1)
        st, tt = divmod(t, 16)
        if t == 3:
            vm.wait({("kv", 0, i) for i in range(5)})
            k("s_barrier")
        if tt == 14 and st + 1 < 4:
            k("s_waitcnt vmcnt(0)")
            k("s_barrier")
        have_next = t + 1 < NTL
        rk = rdK(t + 2) if t + 2 < NTL else []
        rv = rdV(t + 1) if have_next else []
        nrd = len(rk) + len(rv)
        for tok in SEQ.split():
            if tok[0] == "e": i = int(tok[1:]); k(f"v_exp_f32 v{s+i}, v{s+i}")
            elif tok[0] == "c": q = int(tok[1:]); k(f"v_cvt_pk_bf16_f32 v{PP+q}, v{s+2*q}, v{s+2*q+1}")
            elif tok == "W2":
                if have_next: k("s_waitcnt lgkmcnt(2)")
            elif tok == "W0": k("s_waitcnt lgkmcnt(0)")
            elif tok == "M1":
                if have_next: k(M1(t + 1))
            elif tok == "M2":
                if have_next: k(M2(t + 1))
            elif tok == "RKa":
                if rk: k(rk[0])
            elif tok == "RKb":
                if rk: k(rk[1])
            elif tok == "RV0":
                if rv: k(rv[0])
            elif tok == "RV1":
                if rv: k(rv[1])
            elif tok == "WV": k(f"s_waitcnt lgkmcnt({nrd})")
            elif tok == "BG":
                for f in bg.get(t, []): f()
            elif tok == "P0": k(PV(t, 0))
            elif tok == "P1":
                if t > 0: k(PV(t - 1, 1))
    k(PV(NTL - 1, 1))
    mark(k, 6)
    def finish(check):
        k(f"v_mov_b32 v2, v{OO+8}")
        k(f"v_mov_b32 v3, v{OO+8}")
        k("v_permlane32_swap_b32 v2, v3")
        if check:
            k("s_mov_b32 s9, 0x21800000         ; 2^-60")
            k("s_mov_b32 s10, 0x5d800000        ; 2^60")
            k("v_cmp_le_f32 vcc, s9, v3")
            k("v_cmp_ge_f32 s[28:29], s10, v3")
            k("s_and_b64 s[28:29], s[28:29], vcc")
            k("s_movk_i32 s9, 0x207")
            for r in range(8):
                k(f"v_cmp_class_f32 vcc, v{OO+r}, s9")
                k("s_andn2_b64 s[28:29], s[28:29], vcc")
            k("s_mov_b32 s34, -1")
            k("s_mov_b32 s35, 0")
            for r in range(8, 12):
                k(f"v_cmp_class_f32 vcc, v{OO+r}, s9")
                k("s_and_b64 vcc, vcc, s[34:35]")
                k("s_andn2_b64 s[28:29], s[28:29], vcc")
            k("s_cmp_eq_u64 s[28:29], -1")
            k("s_cbranch_scc1 ATT_OK")
            k("v_mov_b32 v2, 1")
            k(f"v_mov_b32 v5, {FLAG}")
            k("ds_write_b32 v5, v2")
            k.label("ATT_OK")
            k("s_waitcnt lgkmcnt(0)")
            k("s_barrier")
            k(f"v_mov_b32 v5, {FLAG}")
            k("ds_read_b32 v2, v5")
            k("s_waitcnt lgkmcnt(0)")
            k("v_readfirstlane_b32 s9, v2")
            k("s_cmp_lg_u32 s9, 0")
            k("s_cbranch_scc1 ATT_SLOW")
        k("v_rcp_f32 v3, v3")
        for r in range(12): k(f"v_mul_f32 v{OO+r}, v{OO+r}, v3")
        for q in range(6): k(f"v_cvt_pk_bf16_f32 v{PP+q}, v{OO+2*q}, v{OO+2*q+1}")
        k("v_and_b32 v4, 31, v1")
        k("s_lshl_b32 s9, s8, 5")
        k("v_add_u32 v4, s9, v4")
        k("v_lshlrev_b32 v4, 1, v4")
        k("v_lshrrev_b32 v5, 5, v1")
        k("v_lshl_add_u32 v4, v5, 11, v4")
        for q in range(4):
            d = 8 * (q >> 1) + 2 * (q & 1)
            k(f"ds_write_b16 v4, v{PP+q} offset:{d*512}")
            k(f"ds_write_b16_d16_hi v4, v{PP+q} offset:{(d+1)*512}")
        k("s_mov_b32 exec_hi, 0")
        for q in range(4, 6):
            d = 16 + 2 * (q - 4)
            k(f"ds_write_b16 v4, v{PP+q} offset:{d*512}")
            k(f"ds_write_b16_d16_hi v4, v{PP+q} offset:{(d+1)*512}")
        k("s_mov_b64 exec, -1")
        k("s_waitcnt lgkmcnt(0)")
        k("s_branch P4_STAGED")
    finish(True)
    k.label("ATT_SLOW")
    k("s_waitcnt vmcnt(0)")
    for r in range(16): k(f"v_mov_b32 v{OO+r}, 0")
    k("v_mov_b32 v2, 0xff7fffff")
    k("s_mov_b32 s15, 0")
    k.label("ATT_SLOW_STAGE")
    k("s_barrier")
    k(f"s_mul_i32 s10, s15, {STAGE}")
    for i in range(5):
        k(f"s_add_u32 m0, s13, {8192*i}")
        k(f"s_add_u32 s14, s10, {8192*i}")
        k(f"buffer_load_dwordx4 v{VDMA}, s[16:19], s14 offen sc1 lds")
    k("s_cmp_ge_u32 s8, 4")
    k("s_cbranch_scc1 ATT_SLOW_NP")
    k(f"s_add_u32 m0, s13, {8192*5}")
    k(f"s_add_u32 s14, s10, {8192*5}")
    k(f"buffer_load_dwordx4 v{VDMA}, s[16:19], s14 offen sc1 lds")
    k.label("ATT_SLOW_NP")
    k("s_waitcnt vmcnt(0)")
    k("s_barrier")
    k(f"v_mov_b32 v5, v{AK}")
    k(f"v_mov_b32 v6, v{AKB}")
    k(f"v_mov_b32 v7, v{AV}")
    k("s_mov_b32 s9, 0")
    k.label("ATT_SLOW_TILE")
    k(f"ds_read_b128 v[{KA}:{KA+3}], v5")
    k(f"ds_read_b64 v[{KB}:{KB+1}], v6")
    k(f"ds_read_b128 v[{VF}:{VF+3}], v7")
    k(f"ds_read_b128 v[{VF+4}:{VF+7}], v7 offset:{2*VSEG}")
    k("s_waitcnt lgkmcnt(0)")
    k(m16(SS, KA, Q1, "0"))
    k(m8(SS, KB, Q2, f"v[{SS}:{SS+15}]"))
    k(f"v_add_u32 v5, {KV_TILE}, v5")
    k(f"v_add_u32 v6, {KV_TILE}, v6")
    k(f"v_add_u32 v7, {KV_TILE}, v7")
    k(f"v_max_f32 v108, v{SS}, v{SS+1}")
    for r in range(2, 16): k(f"v_max_f32 v108, v108, v{SS+r}")
    k("v_mov_b32 v109, v108")
    k("v_permlane32_swap_b32 v108, v109")
    k("v_max_f32 v108, v108, v109")
    k("v_max_f32 v108, v108, v2")
    k("v_sub_f32 v109, v2, v108")
    k("v_exp_f32 v109, v109")
    k("v_mov_b32 v2, v108")
    for r in range(16): k(f"v_sub_f32 v{SS+r}, v{SS+r}, v108")
    for r in range(16): k(f"v_exp_f32 v{SS+r}, v{SS+r}")
    for r in range(16): k(f"v_mul_f32 v{OO+r}, v{OO+r}, v109")
    for q in range(8): k(f"v_cvt_pk_bf16_f32 v{PP+q}, v{SS+2*q}, v{SS+2*q+1}")
    k(m16(OO, VF, PP, f"v[{OO}:{OO+15}]"))
    k(m16(OO, VF + 4, PP + 4, f"v[{OO}:{OO+15}]"))
    k("s_add_u32 s9, s9, 1")
    k("s_cmp_lt_u32 s9, 16")
    k("s_cbranch_scc1 ATT_SLOW_TILE")
    k("s_add_u32 s15, s15, 1")
    k("s_cmp_lt_u32 s15, 4")
    k("s_cbranch_scc1 ATT_SLOW_STAGE")
    k("s_barrier")
    finish(False)

def narrow_ids(k):
    k("s_and_b32 s3, s2, 7")
    k("s_lshr_b32 s13, s2, 3")
    k("s_lshl_b32 s14, s3, 2")
    k("s_and_b32 s15, s13, 3")
    k("s_add_u32 s11, s14, s15")
    k("s_lshr_b32 s12, s13, 2")
    k("s_and_b32 s28, s31, 1")
    k("s_lshr_b32 s29, s31, 1           ; k half")
    k("s_lshl_b32 s9, s11, 6")
    k("s_lshl_b32 s10, s28, 5")
    k("s_add_u32 s30, s9, s10")

RESL, GTL = 147456, 157696
def narrow_res_dma(k, resid_is_input, gate_idx):
    if resid_is_input: srd(k, 24, XP, S * D * 2)
    else: wsrd(k, 24, S * D * 2, WS_X1)
    wsrd(k, 36, 6 * 640 * 4, WS_MODV)
    k("v_and_b32 v16, 255, v0")
    k("s_lshl_b32 s9, s11, 6")
    k("s_mul_i32 s10, s12, 160")
    for i in range(3):
        k(f"v_add_u32 v17, {256*i}, v16")
        k("v_mul_u32_u24 v18, 6554, v17")
        k("v_lshrrev_b32 v18, 16, v18        ; row")
        k("v_mul_u32_u24 v19, 10, v18")
        k("v_sub_u32 v19, v17, v19           ; chunk")
        k("v_add_u32 v18, s9, v18")
        k("v_mul_u32_u24 v18, 1280, v18")
        k("v_lshl_add_u32 v18, v19, 4, v18")
        k("v_add_u32 v18, s10, v18")
        if i == 2:
            k("v_cmp_gt_u32 vcc, 640, v17")
            k("v_mov_b32 v19, 0x7ffffff0")
            k("v_cndmask_b32 v18, v19, v18, vcc")
        k("s_lshl_b32 s14, s31, 10")
        k(f"s_add_u32 m0, s14, {RESL + 4096*i}")
        if i == 2:
            k("s_cmp_ge_u32 s31, 2")
            k("s_cbranch_scc1 NRD_SKIP%d" % gate_idx)
        k("buffer_load_dwordx4 v18, s[24:27], 0 offen sc1 lds")
        if i == 2: k.label("NRD_SKIP%d" % gate_idx)
    k("s_cmp_lg_u32 s31, 3")
    k("s_cbranch_scc1 NRD_NG%d" % gate_idx)
    k("v_lshlrev_b32 v18, 4, v1")
    k("s_mul_i32 s14, s12, 320")
    k(f"s_add_u32 s14, s14, {gate_idx*2560}")
    k(f"s_mov_b32 m0, {GTL}")
    k("s_mov_b32 exec_lo, 0xfffff")
    k("s_mov_b32 exec_hi, 0")
    k("buffer_load_dwordx4 v18, s[36:39], s14 offen sc1 lds")
    k("s_mov_b64 exec, -1")
    k.label("NRD_NG%d" % gate_idx)

def narrow_loader_setup(k, Kdim, a_off, b_off, transposed=False):
    KH = Kdim // 2; NST = KH // 64; lda = Kdim * 2
    VA, VB, NS = 8, 12, 4
    if transposed:
        k("v_lshrrev_b32 v2, 3, v1")
        k("v_bfe_u32 v3, v1, 4, 1            ; k bit 1")
        k("v_and_b32 v4, 7, v1")
        k(f"s_mul_i32 s34, s29, {KH}")
        k("s_lshl_b32 s9, s28, 5")
        k("s_add_u32 s34, s34, s9")
        k("v_add_u32 v2, s34, v2")
        k("v_lshlrev_b32 v2, 12, v2")
        k("s_lshl_b32 s9, s11, 7")
        k("v_add_u32 v2, s9, v2")
        for i in range(4):
            k(f"v_or_b32 v5, {(i&1)*2}, v3")
            k("v_lshlrev_b32 v5, 1, v5")
            k("v_xor_b32 v5, v5, v4")
            k("v_lshlrev_b32 v5, 4, v5")
            k(f"v_add_u32 v5, {i*8*4096 - i*1024}, v5")
            k(f"v_add_u32 v{VA+i}, v2, v5")
    else:
        k(f"s_mul_i32 s34, s29, {KH*2}")
        a_dma_rows32(k, VA, 30, lda, 34)
    k("v_lshlrev_b32 v2, 4, v1")
    k(f"s_mul_i32 s9, s12, {Kdim*160}")
    k(f"s_mul_i32 s10, s29, {KH*160}")
    k("s_add_u32 s9, s9, s10")
    k("s_mul_i32 s10, s28, 5120")
    k("s_add_u32 s9, s9, s10")
    k(f"v_add_u32 v{VB}, s9, v2")
    k(f"v_add_u32 v{VB+1}, 4096, v{VB}")
    k("s_lshl_b32 s13, s31, 12")
    k("s_mul_i32 s15, s29, 10240")
    k("s_mul_i32 s10, s28, 5120")
    k("s_add_u32 s15, s15, s10")
    wsrd(k, 16, S * Kdim * 2, a_off)
    wsrd(k, 20, 8 * Kdim * 160, b_off)
    def dmaA(st):
        k(f"s_add_u32 m0, s13, {(st % NS)*16384}")
        k(f"s_mov_b32 s14, {st*64*4096 if transposed else st*128}")
        for i in range(4):
            k(f"buffer_load_dwordx4 v{VA+i}, s[16:19], s14 offen offset:{i*1024} sc1 lds")
    def dmaB(st):
        slot = st % NS
        k(f"s_add_u32 m0, s15, {65536 + slot*20480}")
        k(f"s_mov_b32 s14, {st*10240}")
        for i in range(4):
            k(f"buffer_load_dwordx4 v{VB}, s[20:23], s14 offen offset:{i*1024} sc1 lds")
        k(f"s_add_u32 m0, s15, {65536 + slot*20480 + 4096}")
        k("s_nop 0")
        k(f"buffer_load_dwordx4 v{VB+1}, s[20:23], s14 offen sc1 lds")
    return Loader(k, NST, NS, dmaA, dmaB, 4, 5)

def narrow_compute(k, tag, Kdim, resid_is_input, gate_idx, final, pre_barrier):
    KH = Kdim // 2; NST = KH // 64; NS = 4
    RA, RB, AF, BF, ACC, RES, GT = 4, 6, 12, 28, 68, 108, 120
    k("v_and_b32 v2, 15, v1")
    k("v_lshrrev_b32 v3, 4, v1          ; g")
    k("v_lshrrev_b32 v10, 1, v2")
    k("v_lshlrev_b32 v2, 7, v2")
    k("s_lshl_b32 s13, s8, 12")
    k("v_add_u32 v2, s13, v2")
    if final:
        for ks in range(2):
            k(f"v_add_u32 v11, {4*ks}, v3")
            k("v_xor_b32 v11, v11, v10")
            k(f"v_lshl_add_u32 v{RA+ks}, v11, 4, v2")
    else:
        k("v_bfe_u32 v10, v1, 2, 2           ; r4")
        k("v_lshl_add_u32 v2, v3, 3, v10")
        k("v_lshlrev_b32 v2, 7, v2")
        k("v_and_b32 v11, 3, v1")
        k("v_lshl_add_u32 v2, v11, 3, v2")
        k("s_lshl_b32 s9, s29, 13")
        k("v_add_u32 v2, s9, v2")
        k("v_lshrrev_b32 v10, 1, v10         ; k bit 1")
        k("v_and_b32 v11, 1, v3")
        k("v_lshl_or_b32 v10, v11, 1, v10    ; s")
        for mb in range(2):
            k("s_lshl_b32 s9, s28, 1")
            k(f"s_add_u32 s9, s9, {mb}")
            k("v_xor_b32 v11, s9, v10")
            k(f"v_lshl_add_u32 v{RA+mb}, v11, 5, v2")
    k("v_lshrrev_b32 v2, 5, v1")
    k("v_lshlrev_b32 v2, 4, v2")
    k("v_bfe_u32 v10, v1, 4, 1")
    k("v_lshl_add_u32 v2, v10, 2, v2")
    k("v_bfe_u32 v10, v1, 2, 2")
    k("v_add_u32 v2, v2, v10")
    k("v_mul_u32_u24 v2, 160, v2")
    k("v_and_b32 v10, 3, v1")
    k("v_lshl_add_u32 v2, v10, 3, v2")
    k("s_mul_i32 s10, s29, 10240")
    k("s_add_u32 s10, s10, 65536")
    k(f"v_add_u32 v{RB}, s10, v2")
    k(f"v_add_u32 v{RB+1}, 40960, v{RB}")
    k("v_and_b32 v2, 15, v1")
    k("s_lshl_b32 s10, s29, 4")
    k("s_add_u32 s10, s10, s30")
    k("v_add_u32 v2, s10, v2")
    k("v_mul_u32_u24 v8, 1280, v2")
    k("s_mul_i32 s10, s12, 160")
    k("v_lshl_add_u32 v8, v3, 3, v8")
    k("v_add_u32 v8, s10, v8")
    k("s_mul_i32 s10, s12, 320")
    k("v_lshlrev_b32 v9, 4, v3")
    k("v_add_u32 v9, s10, v9")
    if final: srd(k, 32, OUTP, S * D * 2)
    else: wsrd(k, 32, S * D * 2, WS_X1)
    XL, XG = 144, 148
    EXB = 0 if final else 16384
    k("v_lshlrev_b32 v10, 4, v1")
    k("s_mul_i32 s9, s8, 5120")
    k(f"s_add_u32 s9, s9, {EXB}")
    k("v_add_u32 v151, s9, v10")
    k("s_xor_b32 s10, s8, 2")
    k("s_mul_i32 s10, s10, 5120")
    k(f"s_add_u32 s10, s10, {EXB}")
    k("v_add_u32 v152, s10, v10")
    k("v_and_b32 v10, 15, v1")
    k("s_lshl_b32 s10, s29, 4")
    k("s_lshl_b32 s9, s28, 5")
    k("s_add_u32 s10, s10, s9")
    k("v_add_u32 v11, s10, v10")
    k("v_mul_u32_u24 v11, 160, v11")
    k("v_lshrrev_b32 v140, 4, v1")
    k("v_lshl_add_u32 v11, v140, 3, v11")
    k(f"v_add_u32 v153, {RESL}, v11")
    k("v_lshlrev_b32 v140, 4, v140")
    k(f"v_add_u32 v154, {GTL}, v140")
    k("s_lshl_b32 s10, s29, 4")
    k("s_lshl_b32 s9, s28, 5")
    k("s_add_u32 s10, s10, s9")
    k("v_add_u32 v11, s10, v10")
    k("v_lshlrev_b32 v155, 3, v11")
    k("s_lshl_b32 s9, s11, 12")
    k("s_lshl_b32 s10, s12, 9")
    k("s_add_u32 s9, s9, s10")
    k("v_add_u32 v155, s9, v155")
    k("s_mul_i32 s9, s8, 3072")
    k(f"s_add_u32 s9, s9, {EXB + 20480}")
    k("s_lshl_b32 s10, s29, 4")
    k("s_add_u32 s10, s10, s30")
    k("s_mul_i32 s40, s12, 160")
    for i in range(3):
        k(f"v_add_u32 v10, {64*i}, v1")
        k("v_mul_u32_u24 v11, 6554, v10")
        k("v_lshrrev_b32 v11, 16, v11        ; row")
        k("v_mul_u32_u24 v140, 10, v11")
        k("v_sub_u32 v140, v10, v140         ; chunk")
        k("v_lshlrev_b32 v140, 4, v140")
        k("v_mul_u32_u24 v141, 176, v11")
        k(f"v_add3_u32 v{XL+i}, v141, v140, s9")
        k("v_add_u32 v11, s10, v11")
        k("v_mul_u32_u24 v11, 1280, v11")
        k(f"v_add3_u32 v{XG+i}, v11, v140, s40")
    k("v_cmp_gt_u32 vcc, 32, v1")
    k("v_mov_b32 v10, 0x7ffffff0")
    k(f"v_cndmask_b32 v{XG+2}, v10, v{XG+2}, vcc")
    k("v_and_b32 v10, 15, v1")
    k("v_mul_u32_u24 v10, 176, v10")
    k("v_lshrrev_b32 v11, 4, v1")
    k("v_lshlrev_b32 v11, 3, v11")
    k("v_add3_u32 v147, v10, v11, s9")
    pre_barrier()
    if APF: apf_rows(k, WS_G if final else WS_O, S * Kdim * 2, lambda: k("s_lshl_b32 s9, s11, 6"), Kdim * 2, 6, 0, NST,
                     lambda: k("s_mov_b32 s9, s12"), 128 * NST // 8, 10, 229, khalf=KH * 2)
    def reads(step):
        st, ks = divmod(step, 2); slot = st % NS; sb = step & 1
        if final:
            a = [f"ds_read_b128 v[{AF+(sb*2+mb)*4}:{AF+(sb*2+mb)*4+3}], v{RA+ks} offset:{slot*16384 + mb*2048}" for mb in range(2)]
        else:
            a = [f"ds_read_b64_tr_b16 v[{AF+(sb*2+mb)*4+2*j}:{AF+(sb*2+mb)*4+2*j+1}], v{RA+mb} offset:{slot*16384 + (32*ks+4*j)*128}" for mb in range(2) for j in range(2)]
        out = []
        for nt in range(5):
            d = BF + (sb * 5 + nt) * 4
            g = [f"ds_read_b64_tr_b16 v[{d+2*j}:{d+2*j+1}], v{RB+(slot>>1)} offset:{(slot&1)*20480 + (32*ks+8*j)*160 + nt*32}" for j in range(2)]
            out.append((a if nt == 0 else []) + g)
        return out
    def mf(step, nt):
        sb = step & 1
        return [mfma16(ACC + (nt * 2 + mb) * 4, BF + (sb * 5 + nt) * 4, AF + (sb * 2 + mb) * 4, "0" if step == 0 else None) for mb in range(2)]
    compute_loop(k, NST, 2, reads, mf, 0, stamp=False, hooks={-1: lambda: mark(k, 21 if final else 23)})
    mark(k, 9 if not final else 15)
    k(f"s_cmp_eq_u32 s29, 0")
    k(f"s_cbranch_scc1 {tag}_KH0")
    for nt in range(5):
        d = ACC + (nt * 2 + 0) * 4
        k(f"ds_write_b128 v151, v[{d}:{d+3}] offset:{1024*nt}")
    for nt in range(5):
        for r in range(0, 4, 2): k(f"v_pk_mov_b32 v[{ACC+(nt*2)*4+r}:{ACC+(nt*2)*4+r+1}], v[{ACC+(nt*2+1)*4+r}:{ACC+(nt*2+1)*4+r+1}], v[{ACC+(nt*2+1)*4+r}:{ACC+(nt*2+1)*4+r+1}] op_sel:[0,1]")
    k(f"s_branch {tag}_JOIN")
    k.label(f"{tag}_KH0")
    for nt in range(5):
        d = ACC + (nt * 2 + 1) * 4
        k(f"ds_write_b128 v151, v[{d}:{d+3}] offset:{1024*nt}")
    k.label(f"{tag}_JOIN")
    for nt in range(5):
        k(f"ds_read_b64 v[{RES+2*nt}:{RES+2*nt+1}], v153 offset:{32*nt}")
        k(f"ds_read_b128 v[{GT+4*nt}:{GT+4*nt+3}], v154 offset:{64*nt}")
    k("s_waitcnt lgkmcnt(10)")
    k("s_barrier")
    for nt in range(5):
        k(f"ds_read_b128 v[{BF+4*nt}:{BF+4*nt+3}], v152 offset:{1024*nt}")
    st_sc = "" if final else " sc1"
    PKD = 12
    for nt in range(5):
        d = ACC + nt * 8
        k(f"s_waitcnt lgkmcnt({4 - nt + (nt > 0) * min(nt, 1) * nt})" if False else f"s_waitcnt lgkmcnt({4 - nt + nt})" if False else f"s_waitcnt lgkmcnt(4)")
        for r in range(0, 4, 2): k(f"v_pk_add_f32 v[{d+r}:{d+r+1}], v[{d+r}:{d+r+1}], v[{BF+4*nt+r}:{BF+4*nt+r+1}]")
        k(f"v_lshlrev_b32 v22, 16, v{RES+2*nt}")
        k(f"v_and_b32 v23, 0xffff0000, v{RES+2*nt}")
        k(f"v_lshlrev_b32 v24, 16, v{RES+2*nt+1}")
        k(f"v_and_b32 v25, 0xffff0000, v{RES+2*nt+1}")
        for r in range(0, 4, 2): k(f"v_pk_fma_f32 v[{22+r}:{23+r}], v[{d+r}:{d+r+1}], v[{GT+4*nt+r}:{GT+4*nt+r+1}], v[{22+r}:{23+r}]")
        k(f"v_cvt_pk_bf16_f32 v{PKD+2*nt}, v22, v23")
        k(f"v_cvt_pk_bf16_f32 v{PKD+2*nt+1}, v24, v25")
        k(f"ds_write_b64 v147, v[{PKD+2*nt}:{PKD+2*nt+1}] offset:{32*nt}")
    k("s_waitcnt lgkmcnt(0)")
    for i in range(3): k(f"ds_read_b128 v[{BF+4*i}:{BF+4*i+3}], v{144+i}")
    for i in range(3):
        k(f"s_waitcnt lgkmcnt({2-i})")
        k(f"buffer_store_dwordx4 v[{BF+4*i}:{BF+4*i+3}], v{148+i}, s[32:35], 0 offen{st_sc}")
    if not final:
        for nt in range(5):
            t = PKD + 2 * nt
            k(f"v_lshlrev_b32 v22, 16, v{t}")
            k(f"v_and_b32 v23, 0xffff0000, v{t}")
            k(f"v_lshlrev_b32 v24, 16, v{t+1}")
            k(f"v_and_b32 v25, 0xffff0000, v{t+1}")
            if nt == 0:
                k("v_pk_add_f32 v[26:27], v[22:23], v[24:25]")
                k("v_pk_mul_f32 v[44:45], v[22:23], v[22:23]")
            else:
                k("v_pk_add_f32 v[26:27], v[26:27], v[22:23]")
                k("v_pk_fma_f32 v[44:45], v[22:23], v[22:23], v[44:45]")
                k("v_pk_add_f32 v[26:27], v[26:27], v[24:25]")
            k("v_pk_fma_f32 v[44:45], v[24:25], v[24:25], v[44:45]")
        k("v_add_f32 v26, v26, v27")
        k("v_add_f32 v27, v44, v45")
        for sw in ("v_permlane32_swap_b32", "v_permlane16_swap_b32"):
            k("v_mov_b32 v44, v26"); k("v_mov_b32 v45, v27")
            k(f"{sw} v26, v44"); k(f"{sw} v27, v45")
            k("v_add_f32 v26, v26, v44"); k("v_add_f32 v27, v27, v45")
        wsrd(k, 24, 2048 * 64, WS_STAT)
        k("s_mov_b64 exec, 0xffff")
        k("buffer_store_dwordx2 v[26:27], v155, s[24:27], 0 offen sc1")
        k("s_mov_b64 exec, -1")

def up_ids(k):
    k("s_and_b32 s3, s2, 7")
    k("s_lshr_b32 s13, s2, 3")
    k("s_and_b32 s14, s3, 1")
    k("s_lshl_b32 s14, s14, 3")
    k("s_and_b32 s15, s13, 7")
    k("s_add_u32 s11, s14, s15")
    k("s_lshr_b32 s14, s3, 1")
    k("s_lshl_b32 s14, s14, 2")
    k("s_lshr_b32 s15, s13, 3")
    k("s_add_u32 s12, s14, s15")

def up_loader_setup(k):
    VA, VB, NS = 8, 12, 4
    k("s_lshl_b32 s9, s11, 7")
    k("s_lshl_b32 s10, s31, 5")
    k("s_add_u32 s9, s9, s10")
    a_dma_rows32(k, VA, 9, 1280)
    k("v_lshlrev_b32 v2, 4, v1")
    k("s_mul_i32 s9, s31, 6144")
    k(f"s_mul_i32 s10, s12, {10*24576}")
    k("s_add_u32 s9, s9, s10")
    k(f"v_add_u32 v{VB}, s9, v2")
    k(f"v_add_u32 v{VB+1}, 4096, v{VB}")
    k("s_lshl_b32 s13, s31, 12")
    k("s_mul_i32 s15, s31, 6144")
    wsrd(k, 16, S * D * 2, WS_X1)
    wsrd(k, 20, 16 * 10 * 24576, WS_WUP)
    def dmaA(st):
        k(f"s_add_u32 m0, s13, {(st % NS)*16384}")
        k(f"s_mov_b32 s14, {st*128}")
        for i in range(4):
            k(f"buffer_load_dwordx4 v{VA+i}, s[16:19], s14 offen offset:{i*1024} sc1 lds")
    def dmaB(st):
        slot = st % NS
        k(f"s_add_u32 m0, s15, {65536 + slot*24576}")
        k(f"s_mov_b32 s14, {st*24576}")
        for i in range(4):
            k(f"buffer_load_dwordx4 v{VB}, s[20:23], s14 offen offset:{i*1024} sc1 lds")
        k(f"s_add_u32 m0, s15, {65536 + slot*24576 + 4096}")
        k("s_nop 0")
        for i in range(2):
            k(f"buffer_load_dwordx4 v{VB+1}, s[20:23], s14 offen offset:{i*1024} sc1 lds")
    return Loader(k, 10, NS, dmaA, dmaB, 4, 6)

def up_compute(k, pre_barrier):
    AF, BF, ACC, RA, RB, NS = 16, 24, 72, 4, 8, 4
    k("v_and_b32 v2, 31, v1")
    k("v_lshrrev_b32 v3, 5, v1")
    k("v_bfe_u32 v14, v2, 1, 3")
    k("v_lshlrev_b32 v2, 7, v2")
    k("s_lshl_b32 s10, s8, 12")
    k("v_add_u32 v2, s10, v2")
    for ks in range(4):
        k(f"v_add_u32 v15, {2*ks}, v3")
        k("v_xor_b32 v15, v15, v14")
        k(f"v_lshl_add_u32 v{RA+ks}, v15, 4, v2")
    k("v_lshrrev_b32 v2, 5, v1")
    k("v_bfe_u32 v3, v1, 2, 2")
    k("v_lshl_add_u32 v2, v2, 3, v3")
    k("v_mul_u32_u24 v2, 192, v2")
    k("v_bfe_u32 v14, v1, 4, 1")
    k("v_lshl_add_u32 v2, v14, 5, v2")
    k("v_and_b32 v14, 3, v1")
    k("v_lshl_add_u32 v2, v14, 3, v2")
    k(f"v_add_u32 v{RB}, 65536, v2")
    k(f"v_add_u32 v{RB+1}, {65536+49152}, v2")
    k("v_and_b32 v2, 31, v1")
    k("s_lshl_b32 s9, s11, 7")
    k("s_lshl_b32 s10, s8, 5")
    k("s_add_u32 s9, s9, s10")
    k("v_add_u32 v2, s9, v2")
    k("v_lshlrev_b32 v2, 6, v2")
    wsrd(k, 44, 2048 * 64, WS_STAT)
    GST, GL, GG = 131072, 200, 206
    k("s_mul_i32 s9, s8, 6656")
    k(f"s_add_u32 s9, s9, {GST}")
    k("s_lshl_b32 s10, s11, 7")
    k("s_lshl_b32 s34, s8, 5")
    k("s_add_u32 s10, s10, s34")
    k("s_mul_i32 s34, s12, 192")
    for i in range(6):
        k(f"v_add_u32 v14, {64*i}, v1")
        k("v_mul_u32_u24 v15, 5462, v14")
        k("v_lshrrev_b32 v15, 16, v15        ; row")
        k("v_mul_u32_u24 v16, 12, v15")
        k("v_sub_u32 v16, v14, v16           ; chunk")
        k("v_lshlrev_b32 v16, 4, v16")
        k("v_mul_u32_u24 v17, 208, v15")
        k(f"v_add3_u32 v{GL+i}, v17, v16, s9")
        k("v_add_u32 v15, s10, v15")
        k("v_mul_u32_u24 v15, 3072, v15")
        k(f"v_add3_u32 v{GG+i}, v15, v16, s34")
    k("v_and_b32 v14, 31, v1")
    k("v_mul_u32_u24 v14, 208, v14")
    k("v_lshrrev_b32 v15, 5, v1")
    k("v_lshlrev_b32 v15, 4, v15")
    k("v_add3_u32 v212, v14, v15, s9")
    pre_barrier()
    STT = 168
    def reads(step):
        st, ks = divmod(step, 4); slot = st % NS; sb = step & 1
        a = f"ds_read_b128 v[{AF+4*sb}:{AF+4*sb+3}], v{RA+ks} offset:{slot*16384}"
        out = []
        for nt in range(6):
            d = BF + (sb * 6 + nt) * 4
            off = (slot & 1) * 24576 + (nt // 3) * 12288 + (nt % 3) * 64
            g = [f"ds_read_b64_tr_b16 v[{d+2*j}:{d+2*j+1}], v{RB+(slot>>1)} offset:{off + (16*ks+4*j)*192}" for j in range(2)]
            out.append(([a] if nt == 0 else []) + g)
        return out
    def mf(step, nt):
        sb = step & 1
        return [mfma32(ACC + 16 * nt, BF + (sb * 6 + nt) * 4, AF + 4 * sb, "0" if step == 0 else None)]
    compute_loop(k, 10, 4, reads, mf, 0, stamp=False, hooks={-1: lambda: mark(k, 22)})
    mark(k, 12)
    k("s_barrier")
    k("v_and_b32 v2, 31, v1")
    k("s_and_b32 s9, s8, 1")
    k("s_lshl_b32 s9, s9, 8              ; (w & 1)*32 rows*8 B")
    k("s_lshr_b32 s10, s8, 1")
    k("s_lshl_b32 s10, s10, 12           ; (w >> 1)*4096")
    k("s_add_u32 s9, s9, s10")
    k("v_lshlrev_b32 v2, 3, v2")
    k("v_add_u32 v2, s9, v2")
    k("v_add_u32 v2, 36864, v2")
    for q in range(8): k(f"ds_read_b64 v[{STT+2*q}:{STT+2*q+1}], v2 offset:{512*q}")
    k("s_waitcnt lgkmcnt(0)")
    k(f"v_add_f32 v10, v{STT}, v{STT+2}")
    k(f"v_add_f32 v11, v{STT+1}, v{STT+3}")
    for q in range(2, 8):
        k(f"v_add_f32 v10, v10, v{STT+2*q}")
        k(f"v_add_f32 v11, v11, v{STT+2*q+1}")
    k(f"s_mov_b32 s9, {hex(f2u(1.0/640))}")
    k("v_mul_f32 v10, s9, v10            ; mean")
    k("v_mul_f32 v13, v10, v10")
    k("v_fma_f32 v11, v11, s9, -v13      ; variance")
    k("v_max_f32 v11, 0, v11")
    k("v_add_f32 v11, 0x3727c5ac, v11")
    k("v_rsq_f32 v11, v11")
    k("s_nop 0")
    k("v_mul_f32 v13, v10, v11")
    k("v_sub_f32 v12, 0, v13")
    k("v_mov_b32 v13, v12")
    k("v_mov_b32 v10, v11")
    k("v_lshrrev_b32 v14, 5, v1")
    k("v_lshlrev_b32 v14, 4, v14")
    k("v_add_u32 v14, 32768, v14")
    wsrd(k, 24, S * F * 2, WS_G)
    k("v_and_b32 v2, 31, v1")
    k("s_lshl_b32 s9, s11, 7")
    k("s_lshl_b32 s10, s8, 5")
    k("s_add_u32 s9, s9, s10")
    k("v_add_u32 v2, s9, v2")
    k("v_mul_u32_u24 v2, 3072, v2")
    k("v_lshrrev_b32 v3, 5, v1")
    k("v_lshlrev_b32 v3, 4, v3")
    k("s_mul_i32 s9, s12, 192")
    k("v_add3_u32 v2, v2, v3, s9")
    c1 = -2.0 * 0.7978845608028654 * 1.4426950408889634
    c2 = c1 * 0.044715
    for r, c in ((4, c1), (5, c1), (6, c2), (7, c2), (8, 1.0), (9, 1.0)): k(f"v_mov_b32 v{r}, {hex(f2u(c))}")
    pk = lambda r: f"v[{r}:{r+1}]"
    U0, U1 = 40, 168
    def ut_reads(slot, off):
        U = (U0, U1)[slot]
        for mat in range(2):
            for jj in range(2):
                k(f"ds_read_b128 v[{U+8*mat+4*jj}:{U+8*mat+4*jj+3}], v14 offset:{mat*384 + off + 32*jj}")
                k(f"ds_read_b128 v[{U+16+8*mat+4*jj}:{U+16+8*mat+4*jj+3}], v14 offset:{768 + mat*384 + off + 32*jj}")
    if os.environ.get("UPDIAG"): mark(k, 25)
    def group(jp, g, nxt_slot, nxt_off, woff):
        U = (U0, U1)[jp]
        u = g + 48
        T = 16 + 8 * jp
        if nxt_off is not None: ut_reads(nxt_slot, nxt_off)
        k(f"s_waitcnt lgkmcnt({8 if nxt_off is not None else 0})")
        for mat in range(2):
            for r in range(0, 8, 2):
                k(f"v_pk_fma_f32 {pk(U+16+8*mat+r)}, {pk(U+8*mat+r)}, v[12:13], {pk(U+16+8*mat+r)}")
        for mat in range(2):
            base = g if mat == 0 else u
            for r in range(0, 8, 2):
                k(f"v_pk_fma_f32 {pk(base+r)}, {pk(base+r)}, v[10:11], {pk(U+16+8*mat+r)}")
        for r in range(0, 8, 2): k(f"v_pk_mul_f32 {pk(T+r)}, {pk(g+r)}, {pk(g+r)}")
        for r in range(0, 8, 2): k(f"v_pk_fma_f32 {pk(T+r)}, {pk(T+r)}, v[6:7], v[4:5]")
        for r in range(0, 8, 2): k(f"v_pk_mul_f32 {pk(T+r)}, {pk(T+r)}, {pk(g+r)}")
        for r in range(8): k(f"v_exp_f32 v{T+r}, v{T+r}")
        for r in range(0, 8, 2): k(f"v_pk_mul_f32 {pk(g+r)}, {pk(g+r)}, {pk(u+r)}")
        for r in range(0, 8, 2): k(f"v_pk_add_f32 {pk(T+r)}, {pk(T+r)}, v[8:9]")
        for r in range(8): k(f"v_rcp_f32 v{T+r}, v{T+r}")
        for r in range(0, 8, 2): k(f"v_pk_mul_f32 {pk(T+r)}, {pk(T+r)}, {pk(g+r)}")
        t = 32 + 4 * jp
        for q in range(4): k(f"v_cvt_pk_bf16_f32 v{t+q}, v{T+2*q}, v{T+2*q+1}")
        k(f"v_permlane32_swap_b32 v{t}, v{t+2}")
        k(f"v_permlane32_swap_b32 v{t+1}, v{t+3}")
        k(f"ds_write_b128 v212, v[{t}:{t+3}] offset:{woff}")
    ut_reads(0, 0)
    if os.environ.get("EPI_LOOP"):
        k("s_mov_b32 s34, 3")
        k.label("UP_EPI")
        for jp in range(2): group(jp, ACC + 8 * jp, 1 - jp, 64 * (jp + 1), 32 * jp)
        for base in (ACC, ACC + 48):
            for r in range(0, 32, 2): k(f"v_pk_mov_b32 {pk(base+r)}, {pk(base+16+r)}, {pk(base+16+r)} op_sel:[0,1]")
        k("v_add_u32 v14, 128, v14")
        k("v_add_u32 v212, 64, v212")
        k("s_sub_u32 s34, s34, 1")
        k("s_cmp_lg_u32 s34, 0")
        k("s_cbranch_scc1 UP_EPI")
    else:
        for grp in range(6):
            nt, jp = divmod(grp, 2)
            group(jp, ACC + 16 * nt + 8 * jp, 1 - jp, (64 * (grp + 1) if grp < 5 else None), 64 * nt + 32 * jp)
    if os.environ.get("UPDIAG"): mark(k, 28)
    k("s_waitcnt lgkmcnt(0)")
    for i in range(6): k(f"ds_read_b128 v[{ACC+4*i}:{ACC+4*i+3}], v{200+i}")
    for i in range(6):
        k(f"s_waitcnt lgkmcnt({5-i})")
        k(f"buffer_store_dwordx4 v[{ACC+4*i}:{ACC+4*i+3}], v{206+i}, s[24:27], 0 offen sc1")

def phases456(k):
    k.label("P4_STAGED")
    from k_attn2 import SS
    k("s_waitcnt vmcnt(0)")
    k("s_barrier")
    mark(k, 7)
    narrow_ids(k)
    k("s_cmp_ge_u32 s8, 4")
    k("s_cbranch_scc1 P4_LOADER")
    k("v_lshlrev_b32 v5, 4, v1")
    k("s_mul_i32 s9, s8, 2560")
    k("v_add_u32 v5, s9, v5")
    for i in range(3): k(f"ds_read_b128 v[{SS+4*i}:{SS+4*i+3}], v5 offset:{1024*i}")
    for i in range(3):
        k(f"s_waitcnt lgkmcnt({2-i})")
        k(f"buffer_store_dwordx4 v[{SS+4*i}:{SS+4*i+3}], v{128+i}, s[24:27], 0 offen sc1")
    if not os.environ.get("NO_BH2"): k("s_barrier")
    if not os.environ.get("LDIAG") and not os.environ.get("P0DIAG") and not os.environ.get("UPDIAG"): mark(k, 25)
    k("s_waitcnt vmcnt(0)")
    if not os.environ.get("LDIAG") and not os.environ.get("P0DIAG") and not os.environ.get("UPDIAG"): mark(k, 26)
    last_arriver_flag(k, "P3O", CTL + 16, 3, FL_O, 2)
    k("s_branch P4_COMPUTE")
    k.label("P4_LOADER")
    if os.environ.get("PRIO_A") or os.environ.get("PRIO_C"): k("s_setprio 0")
    if not os.environ.get("NO_BH2"): k("s_barrier                        ; B_h2")
    L = narrow_loader_setup(k, 640, WS_O, WS_WOP, transposed=True)
    L.preloadB()
    narrow_res_dma(k, True, 2)
    k("s_cmp_lg_u32 s8, 4")
    k("s_cbranch_scc1 P4L_GO")
    poll_range(k, "P4L_O", FL_O, lambda: k("s_lshl_b32 s9, s3, 5"), 32)
    k.label("P4L_GO")
    k("s_barrier                        ; B_i")
    mark(k, 8)
    L.run(prefetch=apf_loader(k, WS_O, S * 640 * 2, lambda: k("s_lshl_b32 s9, s11, 6"), 1280, 6, 1, 4, lambda: k("s_mov_b32 s9, s12"), 64, 17, 229, khalf=640))
    k("s_barrier")
    k("s_lshr_b32 s35, s11, 1")
    k("s_lshl_b32 s35, s35, 4")
    k("s_and_b32 s36, s11, 1")
    k("s_lshl_b32 s36, s36, 3")
    k("s_add_u32 s35, s35, s36")
    k("s_add_u32 s35, s35, s12")
    up_ids(k)
    L = up_loader_setup(k)
    if os.environ.get("BJ0"): k("s_barrier")
    L.preloadB()
    k("s_barrier")
    k("s_cmp_lg_u32 s8, 4")
    k("s_cbranch_scc1 P5L_GO")
    set_flag(k, FL_X1, 35)
    poll_range(k, "P5L_X", FL_X1, lambda: k("s_lshl_b32 s9, s11, 4"), 16)
    k.label("P5L_GO")
    k("s_barrier                        ; B_k")
    mark(k, 11)

    def ut_issue():
        wsrd(k, 24, 16 * 384 * 4, WS_UT)
        k("v_lshlrev_b32 v2, 4, v1")
        k("s_mul_i32 s14, s12, 1536")
        k("s_and_b32 s9, s31, 1")
        k("s_lshl_b32 s9, s9, 10")
        k("s_add_u32 s14, s14, s9")
        k("s_add_u32 m0, s9, 32768")
        k("s_nop 0")
        k("buffer_load_dwordx4 v2, s[24:27], s14 offen sc1 lds")
        wsrd(k, 24, 2048 * 64, WS_STAT)
        k("s_lshl_b32 s14, s11, 13")
        k("s_lshl_b32 s9, s31, 11")
        k("s_add_u32 s14, s14, s9")
        k("s_add_u32 m0, s9, 36864")
        k("s_nop 0")
        k("buffer_load_dwordx4 v2, s[24:27], s14 offen sc1 lds")
        k("buffer_load_dwordx4 v2, s[24:27], s14 offen offset:1024 sc1 lds")
        n = 0
        if os.environ.get("WDPF"):
            wsrd(k, 52, 8 * 1536 * 160, WS_WDP)
            k("s_lshr_b32 s9, s2, 3")
            k("s_mul_i32 s9, s9, 480")
            k("v_and_b32 v20, 255, v0")
            for i in range(2):
                k(f"v_add_u32 v21, {256*i}, v20")
                k("v_add_u32 v22, s9, v21")
                k("v_lshlrev_b32 v22, 7, v22")
                if i:
                    k("v_cmp_gt_u32 vcc, 480, v21")
                    k("v_mov_b32 v23, 0x7ffffff0")
                    k("v_cndmask_b32 v22, v23, v22, vcc")
                k(f"buffer_load_dword v{228+i}, v22, s[52:55], 0 offen")
                n += 1
        npf.append(n)
        return 3 + n
    npf = []
    def o_issue():
        k("s_cmp_lg_u32 s8, 5")
        k("s_cbranch_scc1 P5L_OA")
        check_all_issue(k, FL_O, 24)
        k.label("P5L_OA")
        return 0
    def o_fin():
        k("s_cmp_lg_u32 s8, 5")
        k("s_cbranch_scc1 P5L_OB")
        k("s_waitcnt vmcnt(0)")
        check_all_finish(k, "P5L_OALL", FL_O, 24)
        k.label("P5L_OB")
        return ut_issue()
    L.run(after_barrier={2: o_issue, 8: o_fin}, prefetch=None)
    k(f"s_waitcnt vmcnt({npf[0]})")
    k("s_barrier                        ; u', t landed")
    k("s_lshl_b32 s35, s11, 4")
    k("s_add_u32 s35, s35, s12")
    narrow_ids(k)
    if os.environ.get("LATE_PRE"): k("s_barrier")
    L = narrow_loader_setup(k, 1536, WS_G, WS_WDP)
    if os.environ.get("BL0"): k("s_barrier")
    L.preloadB()
    if not os.environ.get("LATE_PRE"): k("s_barrier")
    k("s_cmp_lg_u32 s8, 4")
    k("s_cbranch_scc1 P6L_GO")
    set_flag(k, FL_G, 35)
    def gfirst():
        k("s_lshr_b32 s9, s11, 1")
        k("s_lshl_b32 s9, s9, 4")
    poll_range(k, "P6L_G", FL_G, gfirst, 16)
    k.label("P6L_GO")
    k("s_barrier                        ; B_m")
    mark(k, 14)
    def down_res():
        narrow_res_dma(k, False, 5)
        return 0
    L.run(after_barrier={2: down_res}, prefetch=apf_loader(k, WS_G, S * 1536 * 2, lambda: k("s_lshl_b32 s9, s11, 6"), 3072, 6, 1, 11, lambda: k("s_mov_b32 s9, s12"), 176, 17, 229, khalf=1536))
    k("s_barrier")
    k("s_branch F_END")
    k.label("P4_COMPUTE")
    if os.environ.get("PRIO_C"): k("s_setprio 1")
    narrow_compute(k, "P4C", 640, True, 2, False, lambda: k("s_barrier                        ; B_i"))
    if os.environ.get("BJ0"): k("s_barrier                        ; B_j0")
    if not os.environ.get("P0DIAG") and not os.environ.get("UPDIAG"): mark(k, 29)
    k("s_waitcnt vmcnt(0)")
    if not os.environ.get("P0DIAG"): mark(k, 30)
    k("s_barrier                        ; B_j")
    mark(k, 10)
    up_ids(k)
    up_compute(k, lambda: k("s_barrier                        ; B_k"))
    if os.environ.get("BL0"): k("s_barrier                        ; B_l0")
    if os.environ.get("UPDIAG"): mark(k, 29)
    if not os.environ.get("LDIAG") and not os.environ.get("P0DIAG") and not os.environ.get("UPDIAG"): mark(k, 27)
    k("s_waitcnt vmcnt(0)")
    if not os.environ.get("P0DIAG") and not os.environ.get("UPDIAG"): mark(k, 28)
    k("s_barrier                        ; B_l")
    mark(k, 13)
    narrow_ids(k)
    narrow_compute(k, "P6C", 1536, False, 5, True, lambda: k("s_barrier                        ; B_m"))

def gen_fused():
    k = K()
    k("s_cmp_ge_u32 s2, 256")
    k("s_cbranch_scc1 F_END")
    k(f"s_load_dwordx8 s[64:71], s[0:1], 0")
    k(f"s_load_dwordx8 s[72:79], s[0:1], 32")
    k(f"s_load_dwordx8 s[80:87], s[0:1], 64")
    k("v_and_b32 v1, 63, v0")
    k("v_lshrrev_b32 v2, 6, v0")
    k("s_nop 0")
    k("v_readfirstlane_b32 s8, v2       ; wave")
    k("s_and_b32 s31, s8, 3")
    phase01(k)
    phase2_loader(k)
    phase2_spare(k)
    phase2_compute(k)
    phase3(k)
    phases456(k)
    k.label("F_END")
    k("s_endpgm")
    k.fix_hazards()
    return NAME, header(NAME) + k.text() + descriptor(NAME, 232), (256, 512, 163840)

if __name__ == "__main__":
    import sys
    HEAD = open("adaLN_cond__mha_block__geglu_ffn__prompt.s.ref").read().split("; Override launch")[0]
    n, t, (g, b, l) = gen_fused()
    s = HEAD + f"; @launch grid=({g},1,1) block=({b},1,1) lds={l}\n" + '.amdgcn_target "amdgcn-amd-amdhsa--gfx950"\n' + t
    out = sys.argv[1] if len(sys.argv) > 1 else "fused.s"
    open(out, "w").write(s)
    print("wrote", out, len(s))
```

```python
from common import *
from k_gemm2 import mfma32, mfma16, compute_loop, f2u
from k_attn2 import VM, m16, m8
import os, struct

NAME = "adaLN_cond__mha_block__geglu_ffn__prompt_kernel"
XP, WQKVP, WOP_, WGP, WUP_, WDP_, CP, WMODP, OUTP, DBGP, WSP = 64, 66, 68, 72, 74, 76, 78, 80, 82, 84, 86
NONCE = 60
NTM = "" if os.environ.get("NO_NT") else " nt"
CTL = 163584
SCR = 131072
STOP = int(os.environ.get("STOP", 99))
TIMEOUT = 30000

def wsrd(k, s, nbytes, off): srd(k, s, WSP, nbytes, off)
def mark(k, i): k(f"; MARK {i}")

APF = bool(os.environ.get("APF"))
def apf_rows(k, off, nbytes, row0_fn, lda, nrows_log2, first_line, nlines, sharer_fn, per, vt, vdst, khalf=None, tid="v0"):
    wsrd(k, 52, nbytes, off)
    for i in range((per + 255) // 256):
        sharer_fn()
        k(f"s_mul_i32 s9, s9, {per}")
        if i: k(f"s_add_u32 s9, s9, {256 * i}")
        k(f"v_add_u32 v{vt}, s9, {tid}")
        sh = nrows_log2 + (1 if khalf else 0)
        k(f"v_lshrrev_b32 v{vt+1}, {sh}, v{vt}")
        if khalf: k(f"v_bfe_u32 v{vt+2}, v{vt}, {nrows_log2}, 1")
        k(f"v_and_b32 v{vt}, {(1 << nrows_log2) - 1}, v{vt}")
        row0_fn()
        k(f"v_add_u32 v{vt}, s9, v{vt}")
        k(f"s_mov_b32 s9, {lda}")
        k(f"v_mul_lo_u32 v{vt}, s9, v{vt}")
        if first_line: k(f"v_add_u32 v{vt+1}, {first_line}, v{vt+1}")
        k(f"v_lshl_add_u32 v{vt}, v{vt+1}, 7, v{vt}")
        if khalf:
            k(f"v_mul_u32_u24 v{vt+2}, {khalf}, v{vt+2}")
            k(f"v_add_u32 v{vt}, v{vt}, v{vt+2}")
        if 256 * (i + 1) > per:
            k(f"v_cmp_gt_u32 vcc, {per - 256 * i}, {tid}")
            k(f"v_mov_b32 v{vt+1}, 0x7ffffff0")
            k(f"v_cndmask_b32 v{vt}, v{vt+1}, v{vt}, vcc")
        k(f"buffer_load_dword v{vdst+i}, v{vt}, s[52:55], 0 offen sc1")

APF2 = os.environ.get("APF2", "0") != "0"
def apf_loader(k, *args, **kw):
    def f():
        per = args[8]
        k("v_and_b32 v16, 255, v0")
        apf_rows(k, *args, tid="v16", **kw)
        return (per + 255) // 256
    return f

OLDPOLL = bool(os.environ.get('OLDPOLL'))
def poll_old(k, tag, vaddr, mask, vtmp, waitall=True):
    k("s_mov_b32 s14, 0")
    k.label(f"{tag}_P")
    if mask == "lo32":
        k("s_mov_b32 exec_lo, -1"); k("s_mov_b32 exec_hi, 0")
    else:
        k(f"s_mov_b64 exec, {mask}")
    k(f"buffer_load_dword v{vtmp}, v{vaddr}, s[56:59], 0 offen sc1")
    k("s_waitcnt vmcnt(0)")
    k(f"v_cmp_ne_u32 vcc, s{NONCE}, v{vtmp}")
    k("s_mov_b64 exec, -1")
    k("s_cmp_eq_u64 vcc, 0")
    k(f"s_cbranch_scc1 {tag}_R")
    k("s_add_u32 s14, s14, 1")
    k(f"s_cmp_gt_u32 s14, {TIMEOUT}")
    k(f"s_cbranch_scc1 {tag}_R")
    k("s_sleep 2")
    k(f"s_branch {tag}_P")
    k.label(f"{tag}_R")

def poll_new(k, tag, vaddr, mask, vtmp, waitall=True):
    def setmask():
        if mask == "lo32":
            k("s_mov_b32 exec_lo, -1"); k("s_mov_b32 exec_hi, 0")
        else:
            k(f"s_mov_b64 exec, {mask}")
    k("s_mov_b32 s14, 0")
    setmask()
    k("s_waitcnt vmcnt(0)")
    k(f"buffer_load_dword v226, v{vaddr}, s[56:59], 0 offen sc1")
    k.label(f"{tag}_P")
    k(f"buffer_load_dword v227, v{vaddr}, s[56:59], 0 offen sc1")
    k("s_waitcnt vmcnt(1)")
    k(f"v_cmp_ne_u32 vcc, s{NONCE}, v226")
    k("s_cmp_eq_u64 vcc, 0")
    k(f"s_cbranch_scc1 {tag}_R")
    k(f"buffer_load_dword v226, v{vaddr}, s[56:59], 0 offen sc1")
    k("s_waitcnt vmcnt(1)")
    k(f"v_cmp_ne_u32 vcc, s{NONCE}, v227")
    k("s_cmp_eq_u64 vcc, 0")
    k(f"s_cbranch_scc1 {tag}_R")
    k("s_add_u32 s14, s14, 1")
    k(f"s_cmp_gt_u32 s14, {TIMEOUT}")
    k(f"s_cbranch_scc0 {tag}_P")
    k.label(f"{tag}_R")
    k("s_mov_b64 exec, -1")

def poll(k, *a, **kw): return (poll_old if OLDPOLL else poll_new)(k, *a, **kw)

def flag_srd(k): wsrd(k, 56, 7 * 256 * 128, WS_FLG)

def poll_range(k, tag, base, first_sgpr_expr, n, v=20):
    flag_srd(k)
    first_sgpr_expr()
    k(f"v_and_b32 v{v}, 63, v0")
    k(f"v_add_u32 v{v}, s9, v{v}")
    k(f"v_lshlrev_b32 v{v}, 7, v{v}")
    if base: k(f"v_add_u32 v{v}, {base}, v{v}")
    poll(k, tag, v, "-1" if n == 64 else ("lo32" if n == 32 else hex((1 << n) - 1)), v + 1)

def poll_all(k, tag, base, v=20):
    flag_srd(k)
    k(f"v_and_b32 v{v}, 63, v0")
    k(f"v_lshlrev_b32 v{v}, 7, v{v}")
    k(f"v_add_u32 v{v}, {base}, v{v}")
    for q in range(1, 4): k(f"v_add_u32 v{v+q}, {q * 64 * 128}, v{v}")
    k("s_mov_b32 s14, 0")
    k.label(f"{tag}_P")
    for q in range(4): k(f"buffer_load_dword v{v+4+q}, v{v+q}, s[56:59], 0 offen sc1")
    k("s_waitcnt vmcnt(0)")
    k(f"v_cmp_ne_u32 vcc, s{NONCE}, v{v+4}")
    for q in range(1, 4):
        k(f"v_cmp_ne_u32 s[62:63], s{NONCE}, v{v+4+q}")
        k("s_or_b64 vcc, vcc, s[62:63]")
    k("s_cmp_eq_u64 vcc, 0")
    k(f"s_cbranch_scc1 {tag}_R")
    k("s_add_u32 s14, s14, 1")
    k(f"s_cmp_gt_u32 s14, {TIMEOUT}")
    k(f"s_cbranch_scc1 {tag}_R")
    k("s_sleep 2")
    k(f"s_branch {tag}_P")
    k.label(f"{tag}_R")

def check_all_issue(k, base, v):
    flag_srd(k)
    k(f"v_and_b32 v{v}, 63, v0")
    k(f"v_lshlrev_b32 v{v}, 7, v{v}")
    k(f"v_add_u32 v{v}, {base}, v{v}")
    for q in range(1, 4): k(f"v_add_u32 v{v+q}, {q * 64 * 128}, v{v}")
    for q in range(4): k(f"buffer_load_dword v{v+4+q}, v{v+q}, s[56:59], 0 offen sc1")
def check_all_finish(k, tag, base, v):
    k(f"v_cmp_ne_u32 vcc, s{NONCE}, v{v+4}")
    for q in range(1, 4):
        k(f"v_cmp_ne_u32 s[62:63], s{NONCE}, v{v+4+q}")
        k("s_or_b64 vcc, vcc, s[62:63]")
    k("s_cmp_eq_u64 vcc, 0")
    k(f"s_cbranch_scc1 {tag}_OK")
    poll_all(k, tag, base, v)
    k.label(f"{tag}_OK")

def set_flag(k, base, idx_sgpr, v=20):
    flag_srd(k)
    k(f"s_lshl_b32 s9, s{idx_sgpr}, 7")
    k(f"s_add_u32 s9, s9, {base}")
    k(f"v_mov_b32 v{v}, s9")
    k(f"v_mov_b32 v{v+1}, s{NONCE}")
    k("s_mov_b64 exec, 1")
    k(f"buffer_store_dword v{v+1}, v{v}, s[56:59], 0 offen sc1")
    k("s_mov_b64 exec, -1")

LDIAG = [25, 26, 27]
class Loader:
    def __init__(self, k, nst, nslots, dmaA, dmaB, nA, nB):
        self.k, self.nst, self.ns, self.dmaA, self.dmaB, self.nA, self.nB = k, nst, nslots, dmaA, dmaB, nA, nB
        self.ops = []
    def A(self, st): self.dmaA(st); self.ops += [st] * self.nA
    def B(self, st): self.dmaB(st); self.ops += [st] * self.nB
    def extra(self, n): self.ops += ["x"] * n
    def drained(self): self.ops = ["done"] if False else []
    def wait(self, st):
        idx = [i for i, t in enumerate(self.ops) if t == st]
        n = len(self.ops) - 1 - max(idx) if idx else len(self.ops)
        self.k(f"s_waitcnt vmcnt({min(63, n)})")
    def preloadB(self):
        for st in range(min(self.ns - 1, self.nst)): self.B(st)
    def run(self, after_barrier=None, tail=None, prefetch=None):
        k = self.k; up = min(self.ns - 1, self.nst)
        if prefetch is not None and APF2:
            self.A(0)
            self.extra(prefetch())
            self.wait(0)
            k("s_barrier")
            k("s_waitcnt vmcnt(0)")
            if os.environ.get("LDIAG"): mark(k, LDIAG.pop(0))
            for st in range(1, up): self.A(st)
        else:
            for st in range(up): self.A(st)
            self.wait(0)
            k("s_barrier")
        issued = up
        for s in range(self.nst - 1):
            self.wait(s + 1)
            k("s_barrier")
            if issued < self.nst:
                self.A(issued); self.B(issued); issued += 1
                if issued == self.nst and tail: self.extra(tail())
            if after_barrier and (s + 1) in after_barrier: self.extra(after_barrier[s + 1]())

def a_dma_rows32(k, VA, row0_sgpr, lda, koff_sgpr=None):
    k("v_lshrrev_b32 v2, 3, v1")
    k("v_lshrrev_b32 v3, 4, v1")
    k("v_and_b32 v4, 7, v1")
    k(f"v_add_u32 v2, s{row0_sgpr}, v2")
    k(f"s_mov_b32 s10, {lda}")
    k("v_mul_lo_u32 v2, s10, v2")
    if koff_sgpr is not None: k(f"v_add_u32 v2, s{koff_sgpr}, v2")
    for i in range(4):
        k(f"v_xor_b32 v5, {(i&1)*4}, v3")
        k("v_xor_b32 v5, v5, v4")
        k("v_lshlrev_b32 v5, 4, v5")
        k(f"v_add_u32 v5, {i*8*lda - i*1024}, v5")
        k(f"v_add_u32 v{VA+i}, v2, v5")

def phase01(k):
    X, C0, W0, AC, T = 8, 32, 40, 64, 72
    k("s_and_b32 s13, s2, 3             ; kq")
    k("s_lshr_b32 s14, s2, 2")
    k("v_lshrrev_b32 v5, 3, v0")
    k("v_and_b32 v6, 7, v0")
    k("s_mul_i32 s15, s13, 160")
    k("v_add_u32 v7, s15, v5")
    k("v_mul_u32_u24 v5, 7680, v7")
    k("v_lshlrev_b32 v6, 4, v6")
    k("s_lshl_b32 s15, s14, 7")
    k("v_add3_u32 v5, v5, v6, s15")
    k("v_lshrrev_b32 v3, 4, v0")
    k("s_lshl_b32 s15, s2, 3")
    k("v_add_u32 v3, s15, v3")
    k("v_mul_u32_u24 v3, 1280, v3")
    k("v_and_b32 v4, 15, v0")
    k("v_lshl_add_u32 v3, v4, 4, v3")
    k("v_lshlrev_b32 v6, 1, v7")
    k("v_mov_b32 v28, 0x7ffffff0")
    k("v_cmp_gt_u32 vcc, 256, v0")
    k("v_cndmask_b32 v29, v28, v5, vcc")
    k("v_cndmask_b32 v30, v28, v6, vcc")
    k("s_waitcnt lgkmcnt(0)")
    srd(k, 36, WMODP, 640 * 7680)
    srd(k, 32, CP, 1280)
    srd(k, 16, XP, S * D * 2)
    def gemv_loads():
        k(f"buffer_load_dwordx4 v[{W0}:{W0+3}], v5, s[36:39], 0 offen{NTM}")
        k(f"s_mov_b32 s15, {64*7680}")
        k(f"buffer_load_dwordx4 v[{W0+4}:{W0+7}], v5, s[36:39], s15 offen{NTM}")
        k(f"s_mov_b32 s15, {128*7680}")
        k(f"buffer_load_dwordx4 v[{W0+8}:{W0+11}], v29, s[36:39], s15 offen{NTM}")
        k(f"buffer_load_ushort v{C0}, v6, s[32:35], 0 offen")
        k(f"buffer_load_ushort v{C0+1}, v6, s[32:35], 0 offen offset:128")
        k(f"buffer_load_ushort v{C0+2}, v30, s[32:35], 0 offen offset:256")
    def x_loads(tag):
        k("s_cmp_ge_u32 s8, 2")
        k(f"s_cbranch_scc1 {tag}")
        for i in range(5):
            k(f"buffer_load_dwordx4 v[{X+4*i}:{X+4*i+3}], v3, s[16:19], 0 offen offset:{256*i}{NTM}")
        k.label(tag)
    k("s_cmp_ge_u32 s2, 80")
    k("s_cbranch_scc1 P0_LATE")
    gemv_loads()
    x_loads("P0_NOX1")
    k("s_branch P0_ISSUED")
    k.label("P0_LATE")
    x_loads("P0_NOX2")
    k("s_waitcnt vmcnt(0)")
    k("s_barrier")
    k("s_cmp_ge_u32 s14, 60")
    k("s_cbranch_scc1 P0_ISSUED")
    gemv_loads()
    k.label("P0_ISSUED")
    wsrd(k, 20, 4 * 3840 * 4, WS_MODP)
    wsrd(k, 24, S * D * 2, WS_H)
    for r in range(176, 228): k(f"v_mov_b32 v{r}, 0x7ffffff0")
    k("s_cmp_lg_u32 s8, 3")
    k("s_cbranch_scc1 P0_NOCTL")
    k(f"v_lshlrev_b32 v11, 2, v1")
    k(f"v_add_u32 v11, {CTL}, v11")
    k("v_mov_b32 v12, 0")
    k("ds_write_b32 v11, v12")
    k.label("P0_NOCTL")
    k("s_cmp_ge_u32 s8, 4")
    k("s_cbranch_scc1 P0_NOSETUP")
    phase2_setup(k)
    k.label("P0_NOSETUP")
    k("s_cmp_ge_u32 s14, 60")
    k("s_cbranch_scc1 P0_BA")
    k("s_cmp_ge_u32 s2, 80")
    k("s_cbranch_scc1 P0_W0")
    k("s_cmp_ge_u32 s8, 2")
    k("s_cbranch_scc1 P0_W0")
    k("s_waitcnt vmcnt(5)")
    k("s_branch P0_W1")
    k.label("P0_W0")
    k("s_waitcnt vmcnt(0)")
    k.label("P0_W1")
    k("s_mov_b32 s15, 0xbfb8aa3b")
    for i in range(3): k(f"v_lshlrev_b32 v{C0+i}, 16, v{C0+i}")
    for i in range(3): k(f"v_mul_f32 v{T+i}, s15, v{C0+i}")
    for i in range(3): k(f"v_exp_f32 v{T+i}, v{T+i}")
    for i in range(3): k(f"v_add_f32 v{T+i}, 1.0, v{T+i}")
    for i in range(3): k(f"v_rcp_f32 v{T+i}, v{T+i}")
    for i in range(3): k(f"v_mul_f32 v{C0+i}, v{C0+i}, v{T+i}")
    for i in range(3): bf16_round_f32(k, C0 + i, C0 + i, T)
    for i in range(3):
        for j in range(4):
            k(f"v_lshlrev_b32 v{T}, 16, v{W0+4*i+j}")
            k(f"v_and_b32 v{T+1}, 0xffff0000, v{W0+4*i+j}")
            op = "v_mul_f32" if i == 0 else "v_fmac_f32"
            k(f"{op} v{AC+2*j}, v{C0+i}, v{T}")
            k(f"{op} v{AC+2*j+1}, v{C0+i}, v{T+1}")
    for j in range(8):
        k(f"v_add_f32_dpp v{AC+j}, v{AC+j}, v{AC+j} row_ror:8 row_mask:0xf bank_mask:0xf")
    for sw in ("v_permlane16_swap_b32", "v_permlane32_swap_b32"):
        for j in range(8): k(f"v_mov_b32 v{T+j}, v{AC+j}")
        for j in range(8): k(f"{sw} v{AC+j}, v{T+j}")
        for j in range(8): k(f"v_add_f32 v{AC+j}, v{AC+j}, v{T+j}")
    k("v_lshrrev_b32 v5, 6, v0")
    k("v_lshlrev_b32 v5, 8, v5")
    k("v_and_b32 v6, 7, v0")
    k("v_lshl_add_u32 v5, v6, 5, v5")
    k(f"v_add_u32 v5, {SCR}, v5")
    k("v_cmp_gt_u32 vcc, 8, v1")
    k("s_and_saveexec_b64 s[34:35], vcc")
    k(f"ds_write_b128 v5, v[{AC}:{AC+3}]")
    k(f"ds_write_b128 v5, v[{AC+4}:{AC+7}] offset:16")
    k("s_mov_b64 exec, s[34:35]")
    k.label("P0_BA")
    k("s_waitcnt lgkmcnt(0)")
    k("s_barrier                        ; B_a")
    mark(k, 0)
    k("s_cmp_lt_u32 s8, 2")
    k("s_cbranch_scc1 P1_LNA")
    k("s_cmp_eq_u32 s8, 2")
    k("s_cbranch_scc1 P0_FINAL")
    k("s_cmp_eq_u32 s8, 3")
    k("s_cbranch_scc1 P0_ONES")
    k("s_branch P0_LOADERS")
    k.label("P0_FINAL")
    k("s_cmp_ge_u32 s14, 60")
    k("s_cbranch_scc1 P1_BA2")
    k("s_memrealtime s[46:47]")
    k("v_lshlrev_b32 v7, 2, v1")
    k(f"v_add_u32 v6, {SCR}, v7")
    for p in range(8): k(f"ds_read_b32 v{W0+p}, v6 offset:{256*p}")
    k("s_waitcnt lgkmcnt(0)")
    for st in (4, 2, 1):
        for p in range(st): k(f"v_add_f32 v{W0+p}, v{W0+p}, v{W0+p+st}")
    k("s_mul_i32 s15, s13, 15360")
    k("s_lshl_b32 s34, s14, 8")
    k("s_add_u32 s15, s15, s34")
    if os.environ.get("P0DIAG"): mark(k, 25)
    k(f"buffer_store_dword v{W0}, v7, s[20:23], s15 offen sc1")
    k("s_waitcnt vmcnt(0)")
    if os.environ.get("P0DIAG"): mark(k, 26)
    k("s_cmp_ge_u32 s14, 20")
    k("s_cbranch_scc1 P1_BA2")
    k("s_mov_b64 exec, 1")
    k("v_mov_b32 v5, 0")
    k("v_mov_b32 v6, 1")
    k(f"global_atomic_add v7, v5, v6, s[{DBGP}:{DBGP+1}] sc0 sc1")
    k("s_waitcnt vmcnt(0)")
    k("v_readfirstlane_b32 s15, v7")
    if os.environ.get("P0DIAG"):
        k("s_mov_b64 exec, -1"); mark(k, 27); k("s_mov_b64 exec, 1")
    k("s_cmp_lg_u32 s15, 79")
    k("s_cbranch_scc1 P0_NOFLAG")
    k("s_or_b32 s46, s46, 1")
    k("v_mov_b32 v6, s46")
    k(f"global_store_dword v5, v6, s[{DBGP}:{DBGP+1}] offset:128 sc1")
    k.label("P0_NOFLAG")
    k("s_mov_b64 exec, -1")
    k("s_branch P1_BA2")
    k.label("P0_ONES")
    wsrd(k, 32, 32 * KV_HEAD, WS_KV)
    k("s_lshl_b32 s13, s2, 5")
    k("v_add_u32 v5, s13, v1")
    k("v_lshrrev_b32 v6, 2, v5")
    k(f"v_mul_u32_u24 v6, {KV_TILE}, v6")
    k("v_and_b32 v7, 3, v5")
    k(f"v_mul_u32_u24 v7, {VSEG}, v7")
    k(f"v_add_u32 v6, {1280+320}, v6")
    k("v_add_u32 v6, v6, v7")
    for j in range(4): k(f"v_mov_b32 v{8+j}, 0x3f803f80")
    k("s_mov_b32 exec_hi, 0")
    k("buffer_store_dwordx4 v[8:11], v6, s[32:35], 0 offen sc1")
    wsrd(k, 36, 16 * 384 * 4, WS_UT)
    k("s_mul_i32 s13, s2, 96")
    k("v_lshlrev_b32 v5, 2, v1")
    k("v_mov_b32 v12, 0")
    k("s_mov_b32 exec_lo, 0xffffff")
    k("buffer_store_dword v12, v5, s[36:39], s13 offen sc1")
    k("s_mov_b64 exec, -1")
    k("s_waitcnt vmcnt(0)")
    k("s_branch P1_BA2")
    k.label("P1_LNA")
    k("s_barrier                        ; B_a2 (waves 0, 1)")
    k.label("P1_LN")
    E = 32
    k("s_waitcnt vmcnt(0)")
    for r in range(20):
        k(f"v_lshlrev_b32 v{E+2*r}, 16, v{X+r}")
        k(f"v_and_b32 v{E+2*r+1}, 0xffff0000, v{X+r}")
    k(f"v_add_f32 v5, v{E}, v{E+1}")
    k(f"v_add_f32 v6, v{E+2}, v{E+3}")
    for r in range(4, 40, 2):
        k(f"v_add_f32 v5, v5, v{E+r}")
        k(f"v_add_f32 v6, v6, v{E+r+1}")
    k("v_add_f32 v5, v5, v6")
    for rot in (1, 2, 4, 8):
        k(f"v_add_f32_dpp v5, v5, v5 row_ror:{rot} row_mask:0xf bank_mask:0xf")
    k(f"s_mov_b32 s13, {hex(f2u(1.0/640))}")
    k("v_mul_f32 v5, s13, v5")
    for r in range(40): k(f"v_sub_f32 v{E+r}, v{E+r}, v5")
    k(f"v_mul_f32 v6, v{E}, v{E}")
    k(f"v_mul_f32 v7, v{E+1}, v{E+1}")
    for r in range(2, 40, 2):
        k(f"v_fmac_f32 v6, v{E+r}, v{E+r}")
        k(f"v_fmac_f32 v7, v{E+r+1}, v{E+r+1}")
    k("v_add_f32 v6, v6, v7")
    for rot in (1, 2, 4, 8):
        k(f"v_add_f32_dpp v6, v6, v6 row_ror:{rot} row_mask:0xf bank_mask:0xf")
    k("v_mov_b32 v7, 0x3727c5ac")
    k("v_fmac_f32 v7, s13, v6")
    k("v_rsq_f32 v7, v7")
    k("s_nop 0")
    for r in range(40): k(f"v_mul_f32 v{E+r}, v{E+r}, v7")
    k("v_mov_b32 v5, 0")
    k("s_mov_b32 s14, 0")
    k.label("P1_POLL")
    k("s_mov_b64 exec, 1")
    k(f"global_load_dword v6, v5, s[{DBGP}:{DBGP+1}] offset:128 sc1")
    k("s_waitcnt vmcnt(0)")
    k(f"v_readfirstlane_b32 s{NONCE}, v6")
    k("s_mov_b64 exec, -1")
    k(f"s_cmp_lg_u32 s{NONCE}, 0")
    k("s_cbranch_scc1 P1_READY")
    k("s_add_u32 s14, s14, 1")
    k(f"s_cmp_gt_u32 s14, {TIMEOUT}")
    k("s_cbranch_scc1 P1_READY")
    k("s_sleep 1")
    k("s_branch P1_POLL")
    k.label("P1_READY")
    mark(k, 1)
    P = 80
    k("s_mul_i32 s15, s8, 2560")
    k("v_lshlrev_b32 v5, 4, v1")
    k("v_mov_b32 v8, 0x7ffffff0")
    k("v_cmp_gt_u32 vcc, 32, v1")
    k("v_add_u32 v6, s15, v5")
    k("v_add_u32 v9, 2048, v6")
    k("v_cndmask_b32 v9, v8, v9, vcc")
    for q in range(4):
        k(f"s_mov_b32 s34, {q*15360}")
        k(f"buffer_load_dwordx4 v[{P+12*q}:{P+12*q+3}], v6, s[20:23], s34 offen sc1")
        k(f"buffer_load_dwordx4 v[{P+12*q+4}:{P+12*q+7}], v6, s[20:23], s34 offen offset:1024 sc1")
        k(f"buffer_load_dwordx4 v[{P+12*q+8}:{P+12*q+11}], v9, s[20:23], s34 offen sc1")
    k(f"v_mov_b32 v10, {CTL}")
    k(f"v_mov_b32 v11, s{NONCE}")
    k("ds_write_b32 v10, v11")
    k("s_waitcnt vmcnt(0)")
    for r in range(12):
        k(f"v_add_f32 v{P+r}, v{P+r}, v{P+12+r}")
        k(f"v_add_f32 v{P+24+r}, v{P+24+r}, v{P+36+r}")
    for r in range(12): k(f"v_add_f32 v{P+r}, v{P+r}, v{P+24+r}")
    for r in range(12): bf16_round_f32(k, P + r, P + r, P + 12)
    k("s_cmp_eq_u32 s8, 0")
    k("s_cbranch_scc1 P1_NOONE")
    for r in range(12): k(f"v_add_f32 v{P+r}, 1.0, v{P+r}")
    for r in range(12): bf16_round_f32(k, P + r, P + r, P + 12)
    k.label("P1_NOONE")
    k("s_mul_i32 s15, s8, 2560")
    k("v_add_u32 v5, s15, v5")
    k(f"v_add_u32 v5, {SCR + 8192}, v5")
    k(f"ds_write_b128 v5, v[{P}:{P+3}]")
    k(f"ds_write_b128 v5, v[{P+4}:{P+7}] offset:1024")
    k("s_mov_b32 exec_hi, 0")
    k(f"ds_write_b128 v5, v[{P+8}:{P+11}] offset:2048")
    k("s_mov_b64 exec, -1")
    k("s_waitcnt lgkmcnt(0)")
    if os.environ.get("P0DIAG"): mark(k, 28)
    k("s_barrier")
    Gm, Sm = 96, 136
    k("v_and_b32 v4, 15, v0")
    k("v_lshlrev_b32 v4, 5, v4")
    k(f"v_add_u32 v4, {SCR + 8192}, v4")
    for i in range(5):
        for hh in range(2):
            k(f"ds_read_b128 v[{Sm+8*i+4*hh}:{Sm+8*i+4*hh+3}], v4 offset:{512*i + 16*hh}")
            k(f"ds_read_b128 v[{Gm+8*i+4*hh}:{Gm+8*i+4*hh+3}], v4 offset:{2560 + 512*i + 16*hh}")
    k("s_waitcnt lgkmcnt(0)")
    for r in range(40): k(f"v_fma_f32 v{E+r}, v{E+r}, v{Gm+r}, v{Sm+r}")
    for r in range(20): k(f"v_cvt_pk_bf16_f32 v{X+r}, v{E+2*r}, v{E+2*r+1}")
    for i in range(5):
        k(f"buffer_store_dwordx4 v[{X+4*i}:{X+4*i+3}], v3, s[24:27], 0 offen offset:{256*i} sc1")
    if os.environ.get("P0DIAG"): mark(k, 29)
    k("s_waitcnt vmcnt(0)")
    if os.environ.get("P0DIAG"): mark(k, 30)
    k("s_barrier")
    k("s_cmp_lg_u32 s8, 0")
    k("s_cbranch_scc1 P2_START")
    set_flag(k, FL_H, 2)
    k("s_branch P2_START")
    k.label("P1_BA2")
    k("s_barrier")
    k.label("P1_BB")
    k("s_barrier                        ; B_b")
    k(f"v_mov_b32 v10, {CTL}")
    k("ds_read_b32 v11, v10")
    k("s_waitcnt lgkmcnt(0)")
    k(f"v_readfirstlane_b32 s{NONCE}, v11")
    k("s_barrier                        ; B_c")
    k("s_branch P2_START")

def qkv_ids(k):
    k("s_and_b32 s3, s2, 7")
    k("s_lshr_b32 s13, s2, 3")
    k("s_and_b32 s14, s3, 3")
    k("s_lshl_b32 s14, s14, 2")
    k("s_and_b32 s15, s13, 3")
    k("s_add_u32 s11, s14, s15")
    k("s_lshr_b32 s14, s3, 2")
    k("s_lshl_b32 s14, s14, 3")
    k("s_lshr_b32 s15, s13, 2")
    k("s_add_u32 s12, s14, s15")


JW, JSG, JU, JT, JTM, JWO, JD = 136, 152, 160, 168, 176, 184, 199
def wjob_issue(k):
    k(f"s_mul_hi_u32 s55, s2, {(1<<32)//5+1}")
    k("s_mul_i32 s54, s55, 5")
    k("s_sub_u32 s54, s2, s54")
    k("s_lshl_b32 s54, s54, 7")
    k("s_cmp_ge_u32 s55, 24")
    k("s_cselect_b32 s52, 1, 0          ; matrix")
    k("s_mul_i32 s53, s52, 24")
    k("s_sub_u32 s53, s55, s53")
    k("v_and_b32 v191, 255, v0")
    k("v_and_b32 v188, 7, v191")
    k("v_lshrrev_b32 v189, 3, v191")
    k("v_add_u32 v189, s54, v189")
    k("v_mul_u32_u24 v190, 3072, v189")
    k("s_lshl_b32 s55, s53, 7")
    k("v_lshl_add_u32 v190, v188, 4, v190")
    k("v_add_u32 v190, s55, v190")
    k("s_cmp_ge_u32 s2, 240")
    k("s_cselect_b32 s55, 0, 1966080")
    k("s_cmp_eq_u32 s52, 0")
    k(f"s_cselect_b32 s44, s{WGP}, s{WUP_}")
    k(f"s_cselect_b32 s45, s{WGP+1}, s{WUP_+1}")
    k("s_mov_b32 s46, s55")
    k("s_mov_b32 s47, 0x00020000")
    for i in range(4):
        k(f"s_mov_b32 s55, {i*32*3072}")
        k(f"buffer_load_dwordx4 v[{JW+4*i}:{JW+4*i+3}], v190, s[44:47], s55 offen{NTM}")
    k("s_lshl_b32 s55, s2, 8")
    k("v_add_u32 v191, s55, v191")
    k("v_lshlrev_b32 v190, 4, v191")
    srd(k, 48, WOP_, 640 * 1280)
    k(f"buffer_load_dwordx4 v[{JWO}:{JWO+3}], v190, s[48:51], 0 offen{NTM}")
    flag_srd(k)
    k("v_and_b32 v192, 3, v1")
    k("v_lshlrev_b32 v192, 7, v192")
    k(f"v_add_u32 v192, {FL_M}, v192")
    k("buffer_load_dword v193, v192, s[56:59], 0 offen sc1")
    return 6
def wjob_compute(k, tag):
    k("s_waitcnt vmcnt(0)")
    k(f"v_cmp_ne_u32 vcc, s{NONCE}, v193")
    k("s_cmp_eq_u64 vcc, 0")
    k(f"s_cbranch_scc1 {tag}_MOK")
    poll(k, f"{tag}_M", 192, "-1", 193)
    k.label(f"{tag}_MOK")
    wsrd(k, 48, 6 * 640 * 4, WS_MODV)
    k("v_lshlrev_b32 v190, 2, v189")
    for i in range(4):
        k("s_movk_i32 s55, 7680")
        k(f"buffer_load_dword v{JSG+2*i}, v190, s[48:51], s55 offen offset:{128*i} sc1")
        k("s_movk_i32 s55, 10240")
        k(f"buffer_load_dword v{JSG+2*i+1}, v190, s[48:51], s55 offen offset:{128*i} sc1")
    for r in range(16): k(f"v_mov_b32 v{JU+r}, 0")
    k("s_lshl_b32 s55, s53, 3")
    k("v_add_u32 v190, s55, v188")
    k("v_mul_u32_u24 v194, 5462, v190")
    k("v_lshrrev_b32 v194, 16, v194     ; ct")
    k("v_mul_u32_u24 v195, 12, v194")
    k("v_sub_u32 v195, v190, v195       ; cc")
    k("s_mov_b32 s55, 245760")
    k("v_mul_lo_u32 v196, s55, v194")
    k("s_mul_i32 s55, s52, 12288")
    k("v_lshl_add_u32 v196, v195, 4, v196")
    k("v_add_u32 v196, s55, v196")
    for i in range(4):
        k(f"v_add_u32 v190, {32*i}, v189")
        k("v_lshrrev_b32 v197, 6, v190")
        k("v_mul_u32_u24 v190, 192, v190")
        k("v_mul_u32_u24 v197, 12288, v197")
        k(f"v_add3_u32 v{JD+i}, v190, v197, v196")
    k("v_mul_u32_u24 v190, 384, v194")
    k("v_lshl_add_u32 v190, v195, 3, v190")
    k("v_lshrrev_b32 v197, 3, v1")
    k("v_add_u32 v190, v190, v197")
    k("s_mul_i32 s55, s52, 96")
    k("v_add_u32 v190, s55, v190")
    k(f"v_lshlrev_b32 v{JD+4}, 2, v190")
    divconst(k, 190, 191, 80, 55, 65536)
    k("v_mul_u32_u24 v197, 80, v190")
    k("v_sub_u32 v197, v191, v197")
    divconst(k, 198, 197, 10, 55, 80)
    k("v_mul_u32_u24 v194, 10, v198")
    k("v_sub_u32 v197, v197, v194")
    k("v_and_b32 v194, 0xfffffff3, v190")
    k("v_bfe_u32 v195, v190, 2, 1")
    k("v_lshl_or_b32 v194, v195, 3, v194")
    k("v_bfe_u32 v195, v190, 3, 1")
    k("v_lshl_or_b32 v194, v195, 2, v194")
    k(f"s_mov_b32 s55, {640*160}")
    k("v_mul_lo_u32 v198, s55, v198")
    k("v_mul_u32_u24 v194, 160, v194")
    k("v_lshlrev_b32 v197, 4, v197")
    k("v_add3_u32 v198, v198, v197, v194")
    k("s_mov_b32 s55, 51200")
    k("v_cmp_gt_u32 vcc, s55, v191")
    k("v_mov_b32 v194, 0x7ffffff0")
    k(f"v_cndmask_b32 v{JD+5}, v194, v198, vcc")
    k("s_waitcnt vmcnt(0)")
    for i in range(4):
        d = JW + 4 * i
        for q in range(4):
            k(f"v_lshlrev_b32 v{JTM+2*q}, 16, v{d+q}")
            k(f"v_and_b32 v{JTM+2*q+1}, 0xffff0000, v{d+q}")
        sg = f"v[{JSG+2*i}:{JSG+2*i+1}]"
        for q in range(0, 8, 2): k(f"v_pk_fma_f32 v[{JT+q}:{JT+q+1}], v[{JTM+q}:{JTM+q+1}], {sg}, v[{JT+q}:{JT+q+1}] op_sel:[0,0,0] op_sel_hi:[1,0,1]")
        for q in range(0, 8, 2): k(f"v_pk_mul_f32 v[{JTM+q}:{JTM+q+1}], v[{JTM+q}:{JTM+q+1}], {sg} op_sel:[0,1] op_sel_hi:[1,1]")
        for q in range(0, 8, 2): k(f"v_pk_add_f32 v[{JU+q}:{JU+q+1}], v[{JU+q}:{JU+q+1}], v[{JTM+q}:{JTM+q+1}]")
        for q in range(4): k(f"v_cvt_pk_bf16_f32 v{d+q}, v{JTM+2*q}, v{JTM+2*q+1}")
    def rscatter(B):
        for e in range(4):
            k(f"v_permlane32_swap_b32 v{B+e}, v{B+e+4}")
            k(f"v_add_f32 v{B+e}, v{B+e}, v{B+e+4}")
        for e in range(2):
            k(f"v_permlane16_swap_b32 v{B+e}, v{B+e+2}")
            k(f"v_add_f32 v{B+e}, v{B+e}, v{B+e+2}")
        k(f"v_add_f32_dpp v{B}, v{B}, v{B} row_ror:8 row_mask:0xf bank_mask:0xf")
        k(f"v_add_f32_dpp v{B+1}, v{B+1}, v{B+1} row_ror:8 row_mask:0xf bank_mask:0xf")
        k(f"v_cndmask_b32 v{B}, v{B}, v{B+1}, vcc")
    k("v_and_b32 v190, 8, v1")
    k("v_cmp_ne_u32 vcc, 0, v190")
    rscatter(JU); rscatter(JT)
def wjob_store_w(k):
    k("s_cmp_ge_u32 s2, 240")
    k(f"s_cselect_b32 s55, 0, {16 * 10 * 24576}")
    k(f"s_add_u32 s44, s{WSP}, {WS_WUP}")
    k(f"s_addc_u32 s45, s{WSP+1}, 0")
    k("s_mov_b32 s46, s55")
    k("s_mov_b32 s47, 0x00020000")
    for i in range(4): k(f"buffer_store_dwordx4 v[{JW+4*i}:{JW+4*i+3}], v{JD+i}, s[44:47], 0 offen sc1")
def wjob_store_rest(k):
    k("s_cmp_ge_u32 s2, 240")
    k(f"s_cselect_b32 s55, 0, {16 * 384 * 4}")
    k(f"s_add_u32 s44, s{WSP}, {WS_UT}")
    k(f"s_addc_u32 s45, s{WSP+1}, 0")
    k("s_mov_b32 s46, s55")
    k("s_mov_b32 s47, 0x00020000")
    k(f"buffer_atomic_add_f32 v{JU}, v{JD+4}, s[44:47], 0 offen")
    k(f"buffer_atomic_add_f32 v{JT}, v{JD+4}, s[44:47], 0 offen offset:768")
    wsrd(k, 48, 8 * 640 * 160, WS_WOP)
    k(f"buffer_store_dwordx4 v[{JWO}:{JWO+3}], v{JD+5}, s[48:51], 0 offen sc1")

QNS = 4
def phase2_loader(k):
    k.label("P0_LOADERS")
    k("s_barrier                        ; B_a2")
    if not os.environ.get("NO_CODEPF"):
        k("s_cmp_lg_u32 s8, 7")
        k("s_cbranch_scc1 F_NOCPF")
        k("s_getpc_b64 s[34:35]")
        k.label("F_PC")
        k("s_lshr_b32 s9, s2, 3")
        k("s_mul_i32 s9, s9, 18")
        k("v_add_u32 v2, s9, v1")
        k("v_lshlrev_b32 v2, 7, v2")
        k("v_cmp_gt_u32 vcc, 18, v1")
        k("s_mov_b32 s10, F_END-F_PC")
        k("v_cmp_gt_u32 s[36:37], s10, v2")
        k("s_and_b64 vcc, vcc, s[36:37]")
        k("s_and_saveexec_b64 s[36:37], vcc")
        k("s_cbranch_execz F_CPFX")
        k("global_load_dword v231, v2, s[34:35]")
        k.label("F_CPFX")
        k("s_mov_b64 exec, s[36:37]")
        k.label("F_NOCPF")
    if not os.environ.get("NO_TLB"):
        k("s_cmp_lg_u32 s8, 6")
        k("s_cbranch_scc1 F_NOTLB")
        wsrd(k, 16, WS_END, 0)
        srd(k, 20, OUTP, S * D * 2)
        k("s_lshr_b32 s9, s2, 3")
        k("s_lshl_b32 s9, s9, 4")
        k("v_add_u32 v2, s9, v1")
        k("v_lshlrev_b32 v2, 16, v2")
        k("s_mov_b64 exec, 0xffff")
        k("buffer_load_dword v229, v2, s[16:19], 0 offen")
        k("s_mov_b64 exec, -1")
        k("s_lshr_b32 s9, s2, 3")
        k("v_mov_b32 v2, s9")
        k("v_lshlrev_b32 v2, 17, v2")
        k("s_mov_b64 exec, 1")
        k("buffer_load_dword v228, v2, s[20:23], 0 offen")
        k("s_mov_b64 exec, -1")
        k.label("F_NOTLB")
    qkv_ids(k)
    VA, VB = 8, 12
    k("s_lshl_b32 s9, s11, 7")
    k("s_lshl_b32 s10, s31, 5")
    k("s_add_u32 s9, s9, s10")
    a_dma_rows32(k, VA, 9, 1280)
    k("v_lshrrev_b32 v2, 4, v1")
    k("v_bfe_u32 v3, v1, 2, 2")
    k("v_xor_b32 v3, v3, v2")
    k("v_lshlrev_b32 v3, 6, v3")
    k("v_and_b32 v4, 3, v1")
    k("v_lshl_add_u32 v3, v4, 4, v3")
    k("s_lshl_b32 s9, s31, 4")
    k("v_add_u32 v2, s9, v2")
    k("v_mul_u32_u24 v2, 3840, v2")
    k("s_lshl_b32 s9, s12, 8")
    k("v_add3_u32 v2, v2, v3, s9")
    for i in range(4):
        k(f"v_add_u32 v{VB+i}, {i*(4*3840-1024)}, v2")
    k("s_lshl_b32 s13, s31, 12")
    wsrd(k, 16, S * D * 2, WS_H)
    srd(k, 20, WQKVP, 640 * 3840)
    def dmaA(st):
        k(f"s_add_u32 m0, s13, {(st % QNS)*32768}")
        k(f"s_mov_b32 s14, {st*128}")
        for i in range(4):
            k(f"buffer_load_dwordx4 v{VA+i}, s[16:19], s14 offen offset:{i*1024} sc1 lds")
    def dmaB(st):
        k(f"s_add_u32 m0, s13, {(st % QNS)*32768 + 16384}")
        k(f"s_mov_b32 s14, {st*64*3840}")
        for i in range(4):
            k(f"buffer_load_dwordx4 v{VB+i}, s[20:23], s14 offen offset:{i*1024}{' nt' if os.environ.get('NT5') else ''} lds")
    L = Loader(k, 10, QNS, dmaA, dmaB, 4, 4)
    k("s_cmp_ge_u32 s12, 15")
    k("s_cbranch_scc1 P2L_NOTILE")
    L.preloadB()
    if not os.environ.get("NO_WPF"):
        k("s_and_b32 s9, s11, 3")
        k("s_mul_i32 s9, s9, 224")
        k("s_mul_i32 s10, s31, 56")
        k("s_add_u32 s9, s9, s10")
        k("v_add_u32 v16, s9, v1")
        k("v_lshrrev_b32 v17, 1, v16")
        k("v_add_u32 v17, 192, v17")
        k("v_mul_u32_u24 v17, 3840, v17")
        k("v_and_b32 v16, 1, v16")
        k("v_lshl_add_u32 v17, v16, 7, v17")
        k("s_lshl_b32 s9, s12, 8")
        k("v_add_u32 v17, s9, v17")
        k("v_cmp_gt_u32 vcc, 56, v1")
        k("v_mov_b32 v16, 0x7ffffff0")
        k("v_cndmask_b32 v17, v16, v17, vcc")
        k("buffer_load_dword v231, v17, s[20:23], 0 offen")
    k.label("P2L_NOTILE")
    if os.environ.get("RAWTOUCH"):
        k("s_cmp_eq_u32 s8, 4")
        k(f"s_cselect_b32 s44, s{WGP}, s{WUP_}")
        k(f"s_cselect_b32 s45, s{WGP+1}, s{WUP_+1}")
        k("s_cmp_eq_u32 s8, 6")
        k(f"s_cselect_b32 s44, s{WOP_}, s44")
        k(f"s_cselect_b32 s45, s{WOP_+1}, s45")
        k("s_cselect_b32 s9, 25, 60")
        k(f"s_mov_b32 s46, {640*3072}")
        k(f"s_cselect_b32 s46, {640*1280}, s46")
        k("s_cmp_eq_u32 s8, 7")
        k(f"s_cselect_b32 s44, s{WDP_}, s44")
        k(f"s_cselect_b32 s45, s{WDP_+1}, s45")
        k("s_mov_b32 s47, 0x00020000")
        k("s_mul_i32 s10, s2, s9")
        k("v_add_u32 v16, s10, v1")
        k("v_lshlrev_b32 v16, 7, v16")
        k("v_cmp_gt_u32 vcc, s9, v1")
        k("v_mov_b32 v17, 0x7ffffff0")
        k("v_cndmask_b32 v16, v17, v16, vcc")
        k("buffer_load_dword v230, v16, s[44:47], 0 offen")
    phase2_tables(k)
    k("s_barrier                        ; B_b")
    k(f"v_mov_b32 v16, {CTL}")
    k("ds_read_b32 v17, v16")
    k("s_waitcnt lgkmcnt(0)")
    k(f"v_readfirstlane_b32 s{NONCE}, v17")
    k("s_barrier                        ; B_c")
    k("s_cmp_ge_u32 s12, 15")
    k("s_cbranch_scc1 P2_SPARE")
    k("s_cmp_lg_u32 s8, 4")
    k("s_cbranch_scc1 P2L_GO")
    poll_range(k, "P2L_H", FL_H, lambda: k("s_lshl_b32 s9, s11, 4"), 16)
    k.label("P2L_GO")
    k("s_barrier                        ; B_d")
    mark(k, 2)
    BE = not os.environ.get("NO_BE")
    L.run(tail=(None if BE else (lambda: wjob_issue(k))), prefetch=apf_loader(k, WS_H, S * D * 2, lambda: k("s_lshl_b32 s9, s11, 7"), 1280, 7, 1, 9, lambda: k("s_and_b32 s9, s12, 7"), 144, 17, 229))
    mark(k, 20)
    if BE:
        k("s_barrier")
        wjob_issue(k)
    wjob_compute(k, "P2LJ")
    k("s_branch P3_START")

def last_arriver_flag(k, tag, lds_word, last, base, idx_sgpr, v=20):
    k(f"v_mov_b32 v{v}, {lds_word}")
    k(f"v_mov_b32 v{v+1}, 1")
    k("s_mov_b64 exec, 1")
    k(f"ds_add_rtn_u32 v{v+2}, v{v}, v{v+1}")
    k("s_waitcnt lgkmcnt(0)")
    k(f"v_readfirstlane_b32 s9, v{v+2}")
    k("s_mov_b64 exec, -1")
    k(f"s_cmp_lg_u32 s9, {last}")
    k(f"s_cbranch_scc1 {tag}_NL")
    set_flag(k, base, idx_sgpr, v)
    k.label(f"{tag}_NL")

def phase2_spare(k):
    k.label("P2_SPARE")
    k("s_cmp_lg_u32 s8, 4")
    k("s_cbranch_scc1 P2S_FLAG")
    k("s_cmp_ge_u32 s11, 4")
    k("s_cbranch_scc1 P2S_FLAG")
    poll_all(k, "P2S_ALLH", FL_H, 20)
    k("s_add_u32 s9, s11, 2")
    k("s_mul_i32 s9, s9, 2560")
    wsrd(k, 16, 4 * 3840 * 4, WS_MODP)
    wsrd(k, 20, 6 * 640 * 4, WS_MODV)
    for i in range(3):
        k(f"v_add_u32 v2, {64*i}, v1")
        k(f"v_lshlrev_b32 v{3+i}, 4, v2")
        if i == 2:
            k("v_cmp_gt_u32 vcc, 160, v2")
            k("v_mov_b32 v6, 0x7ffffff0")
            k(f"v_cndmask_b32 v{3+i}, v6, v{3+i}, vcc")
        for q in range(4):
            k(f"s_add_u32 s10, s9, {q*15360}")
            k(f"buffer_load_dwordx4 v[{8+16*i+4*q}:{11+16*i+4*q}], v{3+i}, s[16:19], s10 offen sc1")
    k("s_waitcnt vmcnt(0)")
    for i in range(3):
        B = 8 + 16 * i
        for r in range(4):
            k(f"v_add_f32 v{B+r}, v{B+r}, v{B+4+r}")
            k(f"v_add_f32 v{B+8+r}, v{B+8+r}, v{B+12+r}")
        for r in range(4): k(f"v_add_f32 v{B+r}, v{B+r}, v{B+8+r}")
        for r in range(4): bf16_round_f32(k, B + r, B + r, 60)
    k("s_cmp_lg_u32 s11, 2")
    k("s_cbranch_scc1 P2S_NOONE")
    for i in range(3):
        B = 8 + 16 * i
        for r in range(4): k(f"v_add_f32 v{B+r}, 1.0, v{B+r}")
        for r in range(4): bf16_round_f32(k, B + r, B + r, 60)
    k.label("P2S_NOONE")
    for i in range(3):
        k(f"buffer_store_dwordx4 v[{8+16*i}:{11+16*i}], v{3+i}, s[20:23], s9 offen sc1")
    k("s_waitcnt vmcnt(0)")
    set_flag(k, FL_M, 11)
    k.label("P2S_FLAG")
    wjob_issue(k)
    wjob_compute(k, "P2SJ")
    k("s_branch P3_START")

QA = dict(AF=40, BF=48, ACC=80, RA=212, RB=220, EA=176, GA=192)
def phase2_setup(k):
    RA, RB, EA, GA = QA["RA"], QA["RB"], QA["EA"], QA["GA"]
    k.label("P2_SETUP")
    qkv_ids(k)
    k("s_cmp_ge_u32 s12, 15")
    k("s_cbranch_scc1 P2_SETUP_END")
    k("v_and_b32 v55, 31, v1")
    k("v_lshrrev_b32 v54, 5, v1")
    k("v_bfe_u32 v52, v55, 1, 3")
    k("v_lshlrev_b32 v55, 7, v55")
    k("s_lshl_b32 s10, s8, 12")
    k("v_add_u32 v55, s10, v55")
    for ks in range(4):
        k(f"v_add_u32 v53, {2*ks}, v54")
        k("v_xor_b32 v53, v53, v52")
        k(f"v_lshl_add_u32 v{RA+ks}, v53, 4, v55")
        k(f"v_add_u32 v{RA+4+ks}, 65536, v{RA+ks}")
    k("v_lshrrev_b32 v55, 5, v1")
    k("v_bfe_u32 v54, v1, 2, 2")
    k("v_lshl_add_u32 v55, v55, 3, v54")
    k("v_lshlrev_b32 v55, 8, v55")
    k("v_bfe_u32 v52, v1, 4, 1")
    k("v_lshl_add_u32 v55, v52, 5, v55")
    k("v_and_b32 v52, 3, v1")
    k("v_lshl_add_u32 v55, v52, 3, v55")
    k("v_add_u32 v55, 16384, v55")
    for nt in range(4):
        k(f"v_xor_b32 v52, {nt}, v54")
        k(f"v_lshl_add_u32 v{RB+nt}, v52, 6, v55")
        k(f"v_add_u32 v{RB+4+nt}, 65536, v{RB+nt}")
    k("s_cmp_ge_u32 s12, 10")
    k("s_cbranch_scc1 P2S_V")
    k("s_cmp_ge_u32 s12, 5")
    k("s_cbranch_scc1 P2S_K")
    k(f"s_mov_b32 s16, {64*1280}")
    k("s_movk_i32 s17, 1280")
    k("s_lshl_b32 s10, s12, 5")
    k(f"s_mov_b32 s41, {hex(f2u(1.4426950408889634 / (20 ** 0.5)))}")
    k("s_branch P2S_QK")
    k.label("P2S_K")
    k(f"s_mov_b32 s16, {KV_HEAD}")
    k(f"s_movk_i32 s17, {KV_TILE}")
    k("s_sub_u32 s10, s12, 5")
    k("s_lshl_b32 s10, s10, 5")
    k("s_mov_b32 s41, 1.0")
    k.label("P2S_QK")
    k("s_lshl_b32 s42, s11, 2")
    k("s_add_u32 s42, s42, s8")
    k("s_mul_i32 s42, s42, s17")
    k("s_lshl_b32 s43, s8, 14")
    k("s_add_u32 s43, s43, 65536")
    k("s_branch P2_SETUP_END")
    k.label("P2S_V")
    k("s_lshl_b32 s42, s11, 2")
    k("s_add_u32 s42, s42, s8")
    k(f"s_mul_i32 s42, s42, {KV_TILE}")
    k("s_add_u32 s42, s42, 1280")
    k.label("P2_SETUP_END")
    k("s_lshr_b32 s14, s2, 2")
    k("s_and_b32 s13, s2, 3")

TBL = 144384
def phase2_tables(k):
    k("s_cmp_ge_u32 s12, 15")
    k("s_cbranch_scc1 P2T_END")
    k("v_lshlrev_b32 v30, 4, v1")
    k(f"v_add_u32 v30, {TBL}, v30        ; lane*16")
    k("s_cmp_ge_u32 s12, 10")
    k("s_cbranch_scc1 P2T_V")
    k("s_cmp_ge_u32 s12, 5")
    k("s_cselect_b32 s10, 5, 0")
    k(f"s_cselect_b32 s44, {KV_HEAD}, 0")
    k(f"s_cselect_b32 s45, 0, {64*1280}")
    k("s_or_b32 s44, s44, s45")
    k("s_sub_u32 s10, s12, s10")
    k("s_lshl_b32 s10, s10, 5")
    k(f"s_mul_hi_u32 s35, s10, {(1<<32)//5+1}")
    k("v_and_b32 v25, 31, v1")
    k("v_lshrrev_b32 v24, 5, v1")
    k("v_add_u32 v24, s10, v24")
    k("v_lshlrev_b32 v26, 4, v25")
    k("v_lshlrev_b32 v27, 3, v25")
    k("v_add_u32 v27, 1024, v27")
    for n in range(4):
        k("s_lshl_b32 s9, s31, 3")
        k(f"s_add_u32 s9, s9, {2*n}")
        k("v_add_u32 v18, s9, v24")
        k("v_mul_u32_u24 v19, 205, v18")
        k("v_lshrrev_b32 v19, 10, v19")
        k("v_mad_i32_i24 v20, v19, -5, v18")
        k("v_lshrrev_b32 v21, 1, v20")
        k("v_lshl_add_u32 v21, v21, 9, v26")
        k("v_and_b32 v22, 1, v20")
        k("v_lshl_add_u32 v21, v22, 3, v21")
        k("v_cmp_eq_u32 vcc, 4, v20")
        k("v_subrev_u32 v19, s35, v19")
        k("v_cndmask_b32 v21, v21, v27, vcc")
        k("v_mul_u32_u24 v19, 1280, v19")
        k(f"v_add_u32 v{32+n}, v21, v19")
    k("s_lshl_b32 s9, s31, 10")
    k("v_add_u32 v31, s9, v30")
    k("ds_write_b128 v31, v[32:35]")
    for m in range(3):
        k("s_mul_i32 s9, s31, 3")
        k(f"s_add_u32 s9, s9, {m}")
        k("s_lshl_b32 s14, s9, 6")
        k("v_add_u32 v18, s14, v1")
        k("v_mul_u32_u24 v19, 52429, v18")
        k("v_lshrrev_b32 v19, 22, v19          ; hh = c / 80")
        k("v_mul_u32_u24 v20, 80, v19")
        k("v_sub_u32 v20, v18, v20             ; w = c % 80")
        k("v_lshrrev_b32 v21, 5, v20")
        k("v_lshlrev_b32 v21, 1, v21")
        k("v_add_u32 v19, s35, v19             ; head")
        k("v_mad_u32_u24 v22, v19, 5, v21")
        k("v_cmp_gt_u32 vcc, 4, v21")
        k("v_addc_co_u32 v23, vcc, 0, v22, vcc")
        k("v_subrev_u32 v22, s10, v22")
        k("v_subrev_u32 v23, s10, v23")
        k("v_max_u32 v22, v22, v23")
        k("v_cmp_gt_u32 vcc, 32, v22")
        k("v_mul_lo_u32 v19, s44, v19")
        k("v_lshl_add_u32 v19, v20, 4, v19")
        k("v_mov_b32 v22, 0x7ffffff0")
        k("v_cndmask_b32 v19, v22, v19, vcc")
        k("s_add_u32 s9, s9, 16")
        k("s_lshr_b32 s14, s9, 2")
        k("s_lshl_b32 s14, s14, 10")
        k("s_and_b32 s9, s9, 3")
        k("s_lshl_b32 s9, s9, 2")
        k("s_add_u32 s9, s9, s14")
        k("v_add_u32 v31, s9, v30")
        k("ds_write_b32 v31, v19")
    k("s_cmp_lg_u32 s31, 3")
    k("s_cbranch_scc1 P2T_END")
    k("v_lshrrev_b32 v18, 5, v1            ; side")
    k("v_lshlrev_b32 v19, 5, v18")
    k("v_add_u32 v19, s10, v19")
    k("v_add_u32 v19, -1, v19")
    k("v_max_i32 v20, 0, v19")
    k("v_mul_u32_u24 v21, 205, v20")
    k("v_lshrrev_b32 v21, 10, v21          ; head")
    k("v_mad_i32_i24 v22, v21, -5, v20     ; dq")
    k("v_and_b32 v23, 5, v22")
    k("v_cmp_eq_u32 vcc, 0, v23")
    k("v_cmp_le_i32 s[62:63], 0, v19")
    k("s_and_b64 vcc, vcc, s[62:63]")
    k("v_lshrrev_b32 v22, 1, v22")
    k("v_lshlrev_b32 v22, 9, v22           ; half*512")
    k("v_and_b32 v23, 31, v1")
    k("v_lshl_add_u32 v22, v23, 4, v22     ; + token*16")
    k("v_xor_b32 v23, 1, v18")
    k("v_lshl_add_u32 v22, v23, 3, v22")
    k("v_subrev_u32 v23, s35, v21")
    k("v_max_i32 v23, 0, v23")
    k("v_mul_u32_u24 v23, 1280, v23")
    k("v_add_u32 v23, v23, v22")
    k("v_mul_lo_u32 v21, s44, v21")
    k("v_add_u32 v21, v21, v22")
    k("v_mov_b32 v22, 0x7ffffff0")
    k("v_cndmask_b32 v21, v22, v21, vcc")
    k(f"v_add_u32 v31, {6*1024 + 8}, v30")
    k("ds_write_b32 v31, v21")
    k("ds_write_b32 v31, v23 offset:4")
    k("s_branch P2T_END")
    k.label("P2T_V")
    k("v_and_b32 v25, 31, v1")
    k("v_lshrrev_b32 v24, 5, v1")
    k(f"v_mul_u32_u24 v24, {VSEG}, v24")
    k("s_sub_u32 s10, s12, 10")
    k("s_lshl_b32 s10, s10, 7")
    k("s_lshl_b32 s9, s31, 5")
    k("s_add_u32 s10, s10, s9")
    k("v_add_u32 v18, s10, v25")
    k("v_mul_u32_u24 v19, 3277, v18")
    k("v_lshrrev_b32 v19, 16, v19")
    k("v_mul_u32_u24 v20, 20, v19")
    k("v_sub_u32 v20, v18, v20")
    k(f"s_mov_b32 s10, {KV_HEAD}")
    k("v_mul_lo_u32 v19, s10, v19")
    k("v_lshlrev_b32 v20, 4, v20")
    k("v_add3_u32 v19, v19, v20, v24")
    k("s_lshl_b32 s9, s31, 2")
    k("v_add_u32 v31, s9, v30")
    k("ds_write_b32 v31, v19")
    k.label("P2T_END")
    k("s_waitcnt lgkmcnt(0)")

def phase2_compute(k):
    AF, BF, ACC, RA, RB, EA, GA = (QA[x] for x in ("AF", "BF", "ACC", "RA", "RB", "EA", "GA"))
    k.label("P2_START")
    if os.environ.get("PRIO_C"): k("s_setprio 1")
    k("s_cmp_ge_u32 s12, 15")
    k("s_cbranch_scc1 P3_START")
    def reads(step):
        st, ks = divmod(step, 4); slot = st % QNS; sb = step & 1
        bs, off = slot >> 1, (slot & 1) * 32768
        a = f"ds_read_b128 v[{AF+4*sb}:{AF+4*sb+3}], v{RA+4*bs+ks} offset:{off}"
        out = []
        for nt in range(4):
            d = BF + (sb * 4 + nt) * 4
            g = [f"ds_read_b64_tr_b16 v[{d+2*j}:{d+2*j+1}], v{RB+4*bs+nt} offset:{off + (16*ks+4*j)*256}" for j in range(2)]
            out.append(([a] if nt == 0 else []) + g)
        return out
    def mf(swap):
        def f(step, nt):
            sb = step & 1; a = AF + 4 * sb; b = BF + (sb * 4 + nt) * 4; d = ACC + 16 * nt
            c = "0" if step == 0 else None
            return [mfma32(d, a, b, c) if swap else mfma32(d, b, a, c)]
        return f
    k("v_lshlrev_b32 v2, 4, v1")
    k(f"v_add_u32 v2, {TBL}, v2")
    for g in range(7): k(f"ds_read_b128 v[{EA+4*g}:{EA+4*g+3}], v2 offset:{1024*g}")
    k("s_waitcnt lgkmcnt(0)")
    k("s_cmp_ge_u32 s12, 10")
    k("s_cbranch_scc1 P2_V")
    for r in range(16): k(f"v_add_u32 v{EA+r}, s43, v{EA+r}")
    k("s_cmp_ge_u32 s12, 5")
    k("s_cbranch_scc1 P2_K")
    wsrd(k, 24, 32 * 64 * 1280, WS_Q)
    k("s_branch P2_QK")
    k.label("P2_K")
    wsrd(k, 24, 32 * KV_HEAD, WS_KV)
    k.label("P2_QK")
    k("s_barrier                        ; B_d")
    def qapf():
        if APF: apf_rows(k, WS_H, S * D * 2, lambda: k("s_lshl_b32 s9, s11, 7"), 1280, 7, 0, 10, lambda: k("s_and_b32 s9, s12, 7"), 160, 28, 229)
    qapf()
    compute_loop(k, 10, 4, reads, mf(False), 0, stamp=False)
    mark(k, 3)
    k("v_mov_b32 v2, s41")
    k("v_mov_b32 v3, s41")
    for nt in range(4):
        for j in range(4):
            a_ = ACC + 16 * nt + 4 * j
            t = 28 + 2 * (j % 4)
            k(f"v_pk_mul_f32 v[{a_}:{a_+1}], v[{a_}:{a_+1}], v[2:3]")
            k(f"v_pk_mul_f32 v[{a_+2}:{a_+3}], v[{a_+2}:{a_+3}], v[2:3]")
            k(f"v_cvt_pk_bf16_f32 v{t}, v{a_}, v{a_+1}")
            k(f"v_cvt_pk_bf16_f32 v{t+1}, v{a_+2}, v{a_+3}")
            k(f"ds_write_b64 v{EA+4*nt+j}, v[{t}:{t+1}]")
    k("v_lshlrev_b32 v2, 4, v1")
    k("v_add_u32 v2, s43, v2")
    k(f"v_add_u32 v3, s43, v{GA+11}")
    k("s_waitcnt lgkmcnt(0)")
    for i in range(10): k(f"ds_read_b128 v[{ACC+4*i}:{ACC+4*i+3}], v2 offset:{1024*i}")
    k(f"ds_read_b64 v[{ACC+40}:{ACC+41}], v3")
    for i in range(10):
        k(f"s_waitcnt lgkmcnt({10-i})")
        k(f"buffer_store_dwordx4 v[{ACC+4*i}:{ACC+4*i+3}], v{GA+i}, s[24:27], s42 offen sc1")
    k("s_waitcnt lgkmcnt(0)")
    k(f"buffer_store_dwordx2 v[{ACC+40}:{ACC+41}], v{GA+10}, s[24:27], s42 offen sc1")
    k("s_branch P2_DONE")
    k.label("P2_V")
    wsrd(k, 24, 32 * KV_HEAD, WS_KV)
    k("s_barrier                        ; B_d")
    qapf()
    compute_loop(k, 10, 4, reads, mf(True), 0, stamp=False)
    mark(k, 3)
    for nt in range(4):
        for m in range(2):
            a_ = ACC + 16 * nt + 8 * m
            t = 28 + 4 * m
            for q in range(4):
                k(f"v_cvt_pk_bf16_f32 v{t+q}, v{a_+2*q}, v{a_+2*q+1}")
            k(f"buffer_store_dwordx4 v[{t}:{t+3}], v{EA+nt}, s[24:27], s42 offen offset:{2*VSEG*m} sc1")
    k.label("P2_DONE")
    if not os.environ.get("NO_BE") and not os.environ.get("BE2"): k("s_barrier                        ; B_e")
    if os.environ.get("QDIAG"): mark(k, 31)
    k("s_waitcnt vmcnt(0)")
    if os.environ.get("BE2"): k("s_barrier")
    k("s_lshl_b32 s34, s12, 4")
    k("s_add_u32 s34, s34, s11")
    mark(k, 19)
    last_arriver_flag(k, "P2C", CTL + 4, 3, FL_QKV, 34)
    k("s_branch P3_START")

def phase3(k):
    from k_attn2 import STAGE, Q1, Q2, KA, KB, VF, SS, PP, OO, AK, AKB, AV, VDMA
    vm = VM(k)
    FLAG = CTL + 12
    k.label("P3_START")
    if os.environ.get("PRIO_A"):
        k("s_setprio 0")
        k("s_cmp_lt_u32 s8, 4")
        k("s_cbranch_scc1 P3_PRIO")
        k("s_setprio 1")
        k.label("P3_PRIO")
    elif os.environ.get("PRIO_C"): k("s_setprio 0")
    k("s_and_b32 s11, s2, 7")
    k("s_lshl_b32 s11, s11, 2")
    k("s_bfe_u32 s12, s2, 0x20003")
    k("s_add_u32 s11, s11, s12          ; head")
    k("s_lshr_b32 s12, s2, 5")
    k(f"s_mul_i32 s9, s11, {KV_HEAD}")
    k("s_lshl_b32 s13, s8, 10")
    k("s_add_u32 s9, s9, s13")
    k("v_lshlrev_b32 v4, 4, v1")
    k(f"v_add_u32 v{VDMA}, s9, v4")
    k("v_and_b32 v2, 31, v1")
    k("s_lshl_b32 s9, s12, 3")
    k("s_add_u32 s9, s9, s8")
    k("s_mul_i32 s9, s9, 1280")
    k("s_mul_i32 s10, s11, 81920")
    k("s_add_u32 s9, s9, s10")
    k("v_add_u32 v10, s9, v4")
    k("v_lshlrev_b32 v5, 3, v2")
    k("v_add_u32 v5, s9, v5")
    k("v_lshrrev_b32 v3, 5, v1          ; half")
    for sl in range(3):
        k(f"v_lshlrev_b32 v{AK+sl}, 4, v1")
        if sl: k(f"v_add_u32 v{AK+sl}, {sl*STAGE}, v{AK+sl}")
        k(f"v_lshlrev_b32 v{AKB+sl}, 3, v2")
        k(f"v_add_u32 v{AKB+sl}, {sl*STAGE + 1024}, v{AKB+sl}")
        k(f"v_mul_u32_u24 v{AV+sl}, {VSEG}, v3")
        k(f"v_lshl_add_u32 v{AV+sl}, v2, 4, v{AV+sl}")
        k(f"v_add_u32 v{AV+sl}, {sl*STAGE + 1280}, v{AV+sl}")
    k("s_lshl_b32 s9, s12, 8")
    k("s_lshl_b32 s10, s8, 5")
    k("s_add_u32 s9, s9, s10")
    k("v_add_u32 v4, s9, v2             ; token")
    k("v_mul_u32_u24 v4, 1280, v4")
    k("s_mul_i32 s9, s11, 40")
    k("v_add_u32 v4, s9, v4")
    k("v_lshl_add_u32 v11, v3, 3, v4")
    k("s_mul_i32 s9, s8, 160")
    k("s_mul_i32 s10, s11, 81920")
    k("s_lshl_b32 s15, s12, 9")
    k("s_add_u32 s10, s10, s15")
    for i in range(3):
        k(f"v_add_u32 v6, {64*i}, v1")
        k("v_add_u32 v6, s9, v6")
        k("v_lshrrev_b32 v7, 5, v6")
        k("v_and_b32 v8, 31, v6")
        k("v_lshlrev_b32 v7, 12, v7")
        k("v_lshl_add_u32 v7, v8, 4, v7")
        k(f"v_add_u32 v{128+i}, s10, v7")
    k("v_cmp_gt_u32 vcc, 32, v1")
    k("v_mov_b32 v6, 0x7ffffff0")
    k("v_cndmask_b32 v130, v6, v130, vcc")
    for r in range(16): k(f"v_mov_b32 v{OO+r}, 0")
    wsrd(k, 16, 32 * KV_HEAD, WS_KV)
    wsrd(k, 20, S * D * 2, WS_Q)
    wsrd(k, 24, S * D * 2, WS_O)
    k("s_cmp_lg_u32 s8, 4")
    k("s_cbranch_scc1 P3_GO")
    k("s_mul_i32 s9, s11, 20")
    k("s_lshr_b32 s10, s9, 7")
    k("s_add_u32 s9, s9, 19")
    k("s_lshr_b32 s9, s9, 7")
    k("v_bfe_u32 v20, v1, 4, 1")
    k("s_sub_u32 s15, s9, s10")
    k("v_mul_u32_u24 v20, s15, v20")
    k("v_add_u32 v20, s10, v20")
    k("v_lshrrev_b32 v21, 5, v1")
    k("v_mul_u32_u24 v21, 5, v21")
    k("v_add3_u32 v20, v20, v21, 5")
    k("v_and_b32 v21, 15, v1")
    k("v_lshl_add_u32 v20, v20, 4, v21")
    k("v_lshlrev_b32 v20, 7, v20")
    k(f"v_add_u32 v20, {FL_QKV}, v20")
    flag_srd(k)
    poll(k, "P3_KV", 20, "-1", 21)
    k("v_bfe_u32 v20, v1, 1, 1")
    k("v_mul_u32_u24 v20, s15, v20")
    k("v_add_u32 v20, s10, v20")
    k("v_and_b32 v21, 1, v1")
    k("s_lshl_b32 s9, s12, 1")
    k("v_add_u32 v21, s9, v21")
    k("v_lshl_add_u32 v20, v20, 4, v21")
    k("v_lshlrev_b32 v20, 7, v20")
    k(f"v_add_u32 v20, {FL_QKV}, v20")
    poll(k, "P3_Q", 20, "0xf", 21)
    mark(k, 24)
    k.label("P3_GO")
    k("s_barrier                        ; B_g")
    mark(k, 4)
    def dma_item(st, slot, i):
        L = [f"s_add_u32 m0, s13, {slot*STAGE + 8192*i}", f"s_mov_b32 s14, {st*STAGE + 8192*i}"]
        return L, f"buffer_load_dwordx4 v{VDMA}, s[16:19], s14 offen sc1 lds"
    def emit_dma(st, slot, i):
        L, ld = dma_item(st, slot, i)
        for l in L: k(l)
        vm.issue(ld, ("kv", st, i))
    def emit_stage_first(st, slot):
        L, ld = dma_item(st, slot, 5)
        lab = f"ATT_NP_{st}"
        k("s_cmp_ge_u32 s8, 4")
        k(f"s_cbranch_scc1 {lab}")
        for l in L: k(l)
        k(ld)
        k.label(lab)
    vm.issue(f"buffer_load_dwordx4 v[{Q1}:{Q1+3}], v10, s[20:23], 0 offen sc1", "q")
    vm.issue(f"buffer_load_dwordx2 v[{Q2}:{Q2+1}], v5, s[20:23], 0 offen offset:1024 sc1", "q")
    emit_stage_first(0, 0)
    for i in range(5): emit_dma(0, 0, i)
    vm.wait({"q", ("kv", 0, 0), ("kv", 0, 1)})
    k("v_cmp_gt_u32 vcc, 32, v1")
    k(f"v_cndmask_b32 v{Q2}, 0, v{Q2}, vcc")
    k(f"v_cndmask_b32 v{Q2+1}, 0, v{Q2+1}, vcc")
    k("s_barrier")
    mark(k, 5)
    def rdK(t):
        st, tt = divmod(t, 16); sl = st % 3; b = t & 1
        return [f"ds_read_b128 v[{KA+4*b}:{KA+4*b+3}], v{AK+sl} offset:{tt*KV_TILE}",
                f"ds_read_b64 v[{KB+2*b}:{KB+2*b+1}], v{AKB+sl} offset:{tt*KV_TILE}"]
    def rdV(t):
        st, tt = divmod(t, 16); sl = st % 3; b = t & 1
        return [f"ds_read_b128 v[{VF+8*b+4*m}:{VF+8*b+4*m+3}], v{AV+sl} offset:{tt*KV_TILE + 2*VSEG*m}" for m in range(2)]
    def M1(t): b = t & 1; return m16(SS + 16 * b, KA + 4 * b, Q1, "0")
    def M2(t): b = t & 1; d = SS + 16 * b; return m8(d, KB + 2 * b, Q2, f"v[{d}:{d+15}]")
    def PV(t, m): b = t & 1; return m16(OO, VF + 8 * b + 4 * m, PP + 4 * m, f"v[{OO}:{OO+15}]")
    NTL = 64
    bg = {}
    def put(t, f): bg.setdefault(t, []).append(f)
    def stage_items(st, t0, step):
        slot = st % 3
        put(t0, lambda: emit_stage_first(st, slot))
        for i in range(5): put(t0 + step * i, (lambda i=i: emit_dma(st, slot, i)))
    stage_items(1, 0, 2); stage_items(2, 14, 1); stage_items(3, 30, 2)
    def wd_addr():
        k("s_lshl_b32 s9, s2, 9")
        k("v_add_u32 v118, s9, v0")
        k("v_lshlrev_b32 v119, 4, v118")
        srd(k, 36, WDP_, 1536 * 1280)
        vm.issue("buffer_load_dwordx4 v[120:123], v119, s[36:39], 0 offen" + NTM, "wd")
    def wd_dst():
        divconst(k, 124, 118, 80, 9, 131072)
        k("v_mul_u32_u24 v125, 80, v124")
        k("v_sub_u32 v125, v118, v125")
        divconst(k, 126, 125, 10, 9, 80)
        k("v_mul_u32_u24 v127, 10, v126")
        k("v_sub_u32 v125, v125, v127")
        k("v_and_b32 v127, 0xfffffff3, v124")
        k("v_bfe_u32 v119, v124, 2, 1")
        k("v_lshl_or_b32 v127, v119, 3, v127")
        k("v_bfe_u32 v119, v124, 3, 1")
        k("v_lshl_or_b32 v127, v119, 2, v127")
        k(f"s_mov_b32 s9, {1536*160}")
        k("v_mul_lo_u32 v126, s9, v126")
        k("v_mul_u32_u24 v127, 160, v127")
        k("v_lshlrev_b32 v125, 4, v125")
        k("v_add3_u32 v119, v126, v125, v127")
        k("s_mov_b32 s9, 122880")
        k("v_cmp_gt_u32 vcc, s9, v118")
        k("v_mov_b32 v124, 0x7ffffff0")
        k("v_cndmask_b32 v119, v124, v119, vcc")
        wsrd(k, 36, 8 * 1536 * 160, WS_WDP)
    put(15, wd_addr); put(20, wd_dst)
    put(31, lambda: vm.issue("buffer_store_dwordx4 v[120:123], v119, s[36:39], 0 offen sc1", "wdst"))
    def only_job_waves(tag, f):
        def g():
            k("s_cmp_lt_u32 s8, 4")
            k(f"s_cbranch_scc1 P3_J{tag}")
            f()
            k.label(f"P3_J{tag}")
        return g
    put(5, only_job_waves("a", lambda: wjob_store_w(k)))
    put(6, only_job_waves("b", lambda: wjob_store_rest(k)))
    def job_flag():
        k("s_cmp_lg_u32 s8, 4")
        k("s_cbranch_scc1 P3_NOTF")
        set_flag(k, FL_T, 2, 188)
        k.label("P3_NOTF")
    put(15, job_flag)
    def only_wave(w, tag, f):
        def g():
            k(f"s_cmp_lg_u32 s8, {w}")
            k(f"s_cbranch_scc1 P3_W{tag}")
            f()
            k.label(f"P3_W{tag}")
        return g
    put(55, only_wave(1, "ta", lambda: check_all_issue(k, FL_T, 132)))
    def tfin():
        k("s_waitcnt vmcnt(0)")
        check_all_finish(k, "P3_TALL", FL_T, 132)
    put(61, only_wave(1, "tb", tfin))
    def pf_lines(off, nbytes, base_fn, per, vtag):
        def f():
            wsrd(k, 40, nbytes, off)
            base_fn()
            k("s_lshr_b32 s10, s2, 3")
            k(f"s_mul_i32 s10, s10, {per}")
            k("s_add_u32 s9, s9, s10")
            k("v_add_u32 v118, s9, v0")
            k("v_lshlrev_b32 v118, 7, v118")
            k(f"v_cmp_gt_u32 vcc, {per}, v0")
            k("v_mov_b32 v124, 0x7ffffff0")
            k("v_cndmask_b32 v118, v124, v118, vcc")
            vm.issue(f"buffer_load_dword v{vtag}, v118, s[40:43], 0 offen", "pf")
        return f
    if os.environ.get("PRETOUCH"):
        def pretouch():
            wsrd(k, 40, S * D * 2, WS_X1)
            k("s_mul_i32 s9, s2, 80")
            k("v_add_u32 v118, s9, v0")
            k("v_lshlrev_b32 v118, 7, v118")
            k("v_cmp_gt_u32 vcc, 80, v0")
            k("v_mov_b32 v124, 0x7ffffff0")
            k("v_cndmask_b32 v118, v124, v118, vcc")
            vm.issue("buffer_load_dword v229, v118, s[40:43], 0 offen", "pf")
        put(35, pretouch)
    if not os.environ.get("NO_WPF"):
        put(49, pf_lines(WS_WOP, 8 * 640 * 160, lambda: k("s_mov_b32 s9, 0"), 200, 231))
        def upbase():
            k("s_bfe_u32 s9, s2, 0x20001")
            k("s_mul_i32 s9, s9, 7680")
        put(53, pf_lines(WS_WUP, 16 * 10 * 24576, upbase, 240, 230))
    SEQ = os.environ.get("ATT_SEQ", "W0 M1 RKa RKb e0 e1 e2 c0 e3 P1 RV0 RV1 e4 c1 e5 e6 M2 c2 e7 e8 c3 e9 e10 P0 BG c4 e11 e12 c5 e13 e14 e15 c6 c7")
    for r in rdK(0) + rdK(1) + rdV(0): k(r)
    k("s_waitcnt lgkmcnt(4)")
    k(M1(0)); k(M2(0))
    for t in range(NTL):
        s = SS + 16 * (t & 1)
        st, tt = divmod(t, 16)
        if t == 3:
            vm.wait({("kv", 0, i) for i in range(5)})
            k("s_barrier")
        if tt == 14 and st + 1 < 4:
            k("s_waitcnt vmcnt(0)")
            k("s_barrier")
        have_next = t + 1 < NTL
        rk = rdK(t + 2) if t + 2 < NTL else []
        rv = rdV(t + 1) if have_next else []
        nrd = len(rk) + len(rv)
        for tok in SEQ.split():
            if tok[0] == "e": i = int(tok[1:]); k(f"v_exp_f32 v{s+i}, v{s+i}")
            elif tok[0] == "c": q = int(tok[1:]); k(f"v_cvt_pk_bf16_f32 v{PP+q}, v{s+2*q}, v{s+2*q+1}")
            elif tok == "W2":
                if have_next: k("s_waitcnt lgkmcnt(2)")
            elif tok == "W0": k("s_waitcnt lgkmcnt(0)")
            elif tok == "M1":
                if have_next: k(M1(t + 1))
            elif tok == "M2":
                if have_next: k(M2(t + 1))
            elif tok == "RKa":
                if rk: k(rk[0])
            elif tok == "RKb":
                if rk: k(rk[1])
            elif tok == "RV0":
                if rv: k(rv[0])
            elif tok == "RV1":
                if rv: k(rv[1])
            elif tok == "WV": k(f"s_waitcnt lgkmcnt({nrd})")
            elif tok == "BG":
                for f in bg.get(t, []): f()
            elif tok == "P0": k(PV(t, 0))
            elif tok == "P1":
                if t > 0: k(PV(t - 1, 1))
    k(PV(NTL - 1, 1))
    mark(k, 6)
    def finish(check):
        k(f"v_mov_b32 v2, v{OO+8}")
        k(f"v_mov_b32 v3, v{OO+8}")
        k("v_permlane32_swap_b32 v2, v3")
        if check:
            k("s_mov_b32 s9, 0x21800000         ; 2^-60")
            k("s_mov_b32 s10, 0x5d800000        ; 2^60")
            k("v_cmp_le_f32 vcc, s9, v3")
            k("v_cmp_ge_f32 s[28:29], s10, v3")
            k("s_and_b64 s[28:29], s[28:29], vcc")
            k("s_movk_i32 s9, 0x207")
            for r in range(8):
                k(f"v_cmp_class_f32 vcc, v{OO+r}, s9")
                k("s_andn2_b64 s[28:29], s[28:29], vcc")
            k("s_mov_b32 s34, -1")
            k("s_mov_b32 s35, 0")
            for r in range(8, 12):
                k(f"v_cmp_class_f32 vcc, v{OO+r}, s9")
                k("s_and_b64 vcc, vcc, s[34:35]")
                k("s_andn2_b64 s[28:29], s[28:29], vcc")
            k("s_cmp_eq_u64 s[28:29], -1")
            k("s_cbranch_scc1 ATT_OK")
            k("v_mov_b32 v2, 1")
            k(f"v_mov_b32 v5, {FLAG}")
            k("ds_write_b32 v5, v2")
            k.label("ATT_OK")
            k("s_waitcnt lgkmcnt(0)")
            k("s_barrier")
            k(f"v_mov_b32 v5, {FLAG}")
            k("ds_read_b32 v2, v5")
            k("s_waitcnt lgkmcnt(0)")
            k("v_readfirstlane_b32 s9, v2")
            k("s_cmp_lg_u32 s9, 0")
            k("s_cbranch_scc1 ATT_SLOW")
        k("v_rcp_f32 v3, v3")
        for r in range(12): k(f"v_mul_f32 v{OO+r}, v{OO+r}, v3")
        for q in range(6): k(f"v_cvt_pk_bf16_f32 v{PP+q}, v{OO+2*q}, v{OO+2*q+1}")
        k("v_and_b32 v4, 31, v1")
        k("s_lshl_b32 s9, s8, 5")
        k("v_add_u32 v4, s9, v4")
        k("v_lshlrev_b32 v4, 1, v4")
        k("v_lshrrev_b32 v5, 5, v1")
        k("v_lshl_add_u32 v4, v5, 11, v4")
        for q in range(4):
            d = 8 * (q >> 1) + 2 * (q & 1)
            k(f"ds_write_b16 v4, v{PP+q} offset:{d*512}")
            k(f"ds_write_b16_d16_hi v4, v{PP+q} offset:{(d+1)*512}")
        k("s_mov_b32 exec_hi, 0")
        for q in range(4, 6):
            d = 16 + 2 * (q - 4)
            k(f"ds_write_b16 v4, v{PP+q} offset:{d*512}")
            k(f"ds_write_b16_d16_hi v4, v{PP+q} offset:{(d+1)*512}")
        k("s_mov_b64 exec, -1")
        k("s_waitcnt lgkmcnt(0)")
        k("s_branch P4_STAGED")
    finish(True)
    k.label("ATT_SLOW")
    k("s_waitcnt vmcnt(0)")
    for r in range(16): k(f"v_mov_b32 v{OO+r}, 0")
    k("v_mov_b32 v2, 0xff7fffff")
    k("s_mov_b32 s15, 0")
    k.label("ATT_SLOW_STAGE")
    k("s_barrier")
    k(f"s_mul_i32 s10, s15, {STAGE}")
    for i in range(5):
        k(f"s_add_u32 m0, s13, {8192*i}")
        k(f"s_add_u32 s14, s10, {8192*i}")
        k(f"buffer_load_dwordx4 v{VDMA}, s[16:19], s14 offen sc1 lds")
    k("s_cmp_ge_u32 s8, 4")
    k("s_cbranch_scc1 ATT_SLOW_NP")
    k(f"s_add_u32 m0, s13, {8192*5}")
    k(f"s_add_u32 s14, s10, {8192*5}")
    k(f"buffer_load_dwordx4 v{VDMA}, s[16:19], s14 offen sc1 lds")
    k.label("ATT_SLOW_NP")
    k("s_waitcnt vmcnt(0)")
    k("s_barrier")
    k(f"v_mov_b32 v5, v{AK}")
    k(f"v_mov_b32 v6, v{AKB}")
    k(f"v_mov_b32 v7, v{AV}")
    k("s_mov_b32 s9, 0")
    k.label("ATT_SLOW_TILE")
    k(f"ds_read_b128 v[{KA}:{KA+3}], v5")
    k(f"ds_read_b64 v[{KB}:{KB+1}], v6")
    k(f"ds_read_b128 v[{VF}:{VF+3}], v7")
    k(f"ds_read_b128 v[{VF+4}:{VF+7}], v7 offset:{2*VSEG}")
    k("s_waitcnt lgkmcnt(0)")
    k(m16(SS, KA, Q1, "0"))
    k(m8(SS, KB, Q2, f"v[{SS}:{SS+15}]"))
    k(f"v_add_u32 v5, {KV_TILE}, v5")
    k(f"v_add_u32 v6, {KV_TILE}, v6")
    k(f"v_add_u32 v7, {KV_TILE}, v7")
    k(f"v_max_f32 v108, v{SS}, v{SS+1}")
    for r in range(2, 16): k(f"v_max_f32 v108, v108, v{SS+r}")
    k("v_mov_b32 v109, v108")
    k("v_permlane32_swap_b32 v108, v109")
    k("v_max_f32 v108, v108, v109")
    k("v_max_f32 v108, v108, v2")
    k("v_sub_f32 v109, v2, v108")
    k("v_exp_f32 v109, v109")
    k("v_mov_b32 v2, v108")
    for r in range(16): k(f"v_sub_f32 v{SS+r}, v{SS+r}, v108")
    for r in range(16): k(f"v_exp_f32 v{SS+r}, v{SS+r}")
    for r in range(16): k(f"v_mul_f32 v{OO+r}, v{OO+r}, v109")
    for q in range(8): k(f"v_cvt_pk_bf16_f32 v{PP+q}, v{SS+2*q}, v{SS+2*q+1}")
    k(m16(OO, VF, PP, f"v[{OO}:{OO+15}]"))
    k(m16(OO, VF + 4, PP + 4, f"v[{OO}:{OO+15}]"))
    k("s_add_u32 s9, s9, 1")
    k("s_cmp_lt_u32 s9, 16")
    k("s_cbranch_scc1 ATT_SLOW_TILE")
    k("s_add_u32 s15, s15, 1")
    k("s_cmp_lt_u32 s15, 4")
    k("s_cbranch_scc1 ATT_SLOW_STAGE")
    k("s_barrier")
    finish(False)

def narrow_ids(k):
    k("s_and_b32 s3, s2, 7")
    k("s_lshr_b32 s13, s2, 3")
    k("s_lshl_b32 s14, s3, 2")
    k("s_and_b32 s15, s13, 3")
    k("s_add_u32 s11, s14, s15")
    k("s_lshr_b32 s12, s13, 2")
    k("s_and_b32 s28, s31, 1")
    k("s_lshr_b32 s29, s31, 1           ; k half")
    k("s_lshl_b32 s9, s11, 6")
    k("s_lshl_b32 s10, s28, 5")
    k("s_add_u32 s30, s9, s10")

RESL, GTL = 147456, 157696
def narrow_res_dma(k, resid_is_input, gate_idx):
    if resid_is_input: srd(k, 24, XP, S * D * 2)
    else: wsrd(k, 24, S * D * 2, WS_X1)
    wsrd(k, 36, 6 * 640 * 4, WS_MODV)
    k("v_and_b32 v16, 255, v0")
    k("s_lshl_b32 s9, s11, 6")
    k("s_mul_i32 s10, s12, 160")
    for i in range(3):
        k(f"v_add_u32 v17, {256*i}, v16")
        k("v_mul_u32_u24 v18, 6554, v17")
        k("v_lshrrev_b32 v18, 16, v18        ; row")
        k("v_mul_u32_u24 v19, 10, v18")
        k("v_sub_u32 v19, v17, v19           ; chunk")
        k("v_add_u32 v18, s9, v18")
        k("v_mul_u32_u24 v18, 1280, v18")
        k("v_lshl_add_u32 v18, v19, 4, v18")
        k("v_add_u32 v18, s10, v18")
        if i == 2:
            k("v_cmp_gt_u32 vcc, 640, v17")
            k("v_mov_b32 v19, 0x7ffffff0")
            k("v_cndmask_b32 v18, v19, v18, vcc")
        k("s_lshl_b32 s14, s31, 10")
        k(f"s_add_u32 m0, s14, {RESL + 4096*i}")
        if i == 2:
            k("s_cmp_ge_u32 s31, 2")
            k("s_cbranch_scc1 NRD_SKIP%d" % gate_idx)
        k("buffer_load_dwordx4 v18, s[24:27], 0 offen sc1" + (" nt" if (os.environ.get("NT4") and resid_is_input) else "") + " lds")
        if i == 2: k.label("NRD_SKIP%d" % gate_idx)
    k("s_cmp_lg_u32 s31, 3")
    k("s_cbranch_scc1 NRD_NG%d" % gate_idx)
    k("v_lshlrev_b32 v18, 4, v1")
    k("s_mul_i32 s14, s12, 320")
    k(f"s_add_u32 s14, s14, {gate_idx*2560}")
    k(f"s_mov_b32 m0, {GTL}")
    k("s_mov_b32 exec_lo, 0xfffff")
    k("s_mov_b32 exec_hi, 0")
    k("buffer_load_dwordx4 v18, s[36:39], s14 offen sc1 lds")
    k("s_mov_b64 exec, -1")
    k.label("NRD_NG%d" % gate_idx)

def narrow_loader_setup(k, Kdim, a_off, b_off, transposed=False):
    KH = Kdim // 2; NST = KH // 64; lda = Kdim * 2
    VA, VB, NS = 8, 12, 4
    if transposed:
        k("v_lshrrev_b32 v2, 3, v1")
        k("v_bfe_u32 v3, v1, 4, 1            ; k bit 1")
        k("v_and_b32 v4, 7, v1")
        k(f"s_mul_i32 s34, s29, {KH}")
        k("s_lshl_b32 s9, s28, 5")
        k("s_add_u32 s34, s34, s9")
        k("v_add_u32 v2, s34, v2")
        k("v_lshlrev_b32 v2, 12, v2")
        k("s_lshl_b32 s9, s11, 7")
        k("v_add_u32 v2, s9, v2")
        for i in range(4):
            k(f"v_or_b32 v5, {(i&1)*2}, v3")
            k("v_lshlrev_b32 v5, 1, v5")
            k("v_xor_b32 v5, v5, v4")
            k("v_lshlrev_b32 v5, 4, v5")
            k(f"v_add_u32 v5, {i*8*4096 - i*1024}, v5")
            k(f"v_add_u32 v{VA+i}, v2, v5")
    else:
        k(f"s_mul_i32 s34, s29, {KH*2}")
        a_dma_rows32(k, VA, 30, lda, 34)
    k("v_lshlrev_b32 v2, 4, v1")
    k(f"s_mul_i32 s9, s12, {Kdim*160}")
    k(f"s_mul_i32 s10, s29, {KH*160}")
    k("s_add_u32 s9, s9, s10")
    k("s_mul_i32 s10, s28, 5120")
    k("s_add_u32 s9, s9, s10")
    k(f"v_add_u32 v{VB}, s9, v2")
    k(f"v_add_u32 v{VB+1}, 4096, v{VB}")
    k("s_lshl_b32 s13, s31, 12")
    k("s_mul_i32 s15, s29, 10240")
    k("s_mul_i32 s10, s28, 5120")
    k("s_add_u32 s15, s15, s10")
    wsrd(k, 16, S * Kdim * 2, a_off)
    wsrd(k, 20, 8 * Kdim * 160, b_off)
    def dmaA(st):
        k(f"s_add_u32 m0, s13, {(st % NS)*16384}")
        k(f"s_mov_b32 s14, {st*64*4096 if transposed else st*128}")
        for i in range(4):
            k(f"buffer_load_dwordx4 v{VA+i}, s[16:19], s14 offen offset:{i*1024} sc1 lds")
    def dmaB(st):
        slot = st % NS
        k(f"s_add_u32 m0, s15, {65536 + slot*20480}")
        k(f"s_mov_b32 s14, {st*10240}")
        for i in range(4):
            k(f"buffer_load_dwordx4 v{VB}, s[20:23], s14 offen offset:{i*1024} sc1 lds")
        k(f"s_add_u32 m0, s15, {65536 + slot*20480 + 4096}")
        k("s_nop 0")
        k(f"buffer_load_dwordx4 v{VB+1}, s[20:23], s14 offen sc1 lds")
    return Loader(k, NST, NS, dmaA, dmaB, 4, 5)

def narrow_compute(k, tag, Kdim, resid_is_input, gate_idx, final, pre_barrier):
    KH = Kdim // 2; NST = KH // 64; NS = 4
    RA, RB, AF, BF, ACC, RES, GT = 4, 6, 12, 28, 68, 108, 120
    k("v_and_b32 v2, 15, v1")
    k("v_lshrrev_b32 v3, 4, v1          ; g")
    k("v_lshrrev_b32 v10, 1, v2")
    k("v_lshlrev_b32 v2, 7, v2")
    k("s_lshl_b32 s13, s8, 12")
    k("v_add_u32 v2, s13, v2")
    if final:
        for ks in range(2):
            k(f"v_add_u32 v11, {4*ks}, v3")
            k("v_xor_b32 v11, v11, v10")
            k(f"v_lshl_add_u32 v{RA+ks}, v11, 4, v2")
    else:
        k("v_bfe_u32 v10, v1, 2, 2           ; r4")
        k("v_lshl_add_u32 v2, v3, 3, v10")
        k("v_lshlrev_b32 v2, 7, v2")
        k("v_and_b32 v11, 3, v1")
        k("v_lshl_add_u32 v2, v11, 3, v2")
        k("s_lshl_b32 s9, s29, 13")
        k("v_add_u32 v2, s9, v2")
        k("v_lshrrev_b32 v10, 1, v10         ; k bit 1")
        k("v_and_b32 v11, 1, v3")
        k("v_lshl_or_b32 v10, v11, 1, v10    ; s")
        for mb in range(2):
            k("s_lshl_b32 s9, s28, 1")
            k(f"s_add_u32 s9, s9, {mb}")
            k("v_xor_b32 v11, s9, v10")
            k(f"v_lshl_add_u32 v{RA+mb}, v11, 5, v2")
    k("v_lshrrev_b32 v2, 5, v1")
    k("v_lshlrev_b32 v2, 4, v2")
    k("v_bfe_u32 v10, v1, 4, 1")
    k("v_lshl_add_u32 v2, v10, 2, v2")
    k("v_bfe_u32 v10, v1, 2, 2")
    k("v_add_u32 v2, v2, v10")
    k("v_mul_u32_u24 v2, 160, v2")
    k("v_and_b32 v10, 3, v1")
    k("v_lshl_add_u32 v2, v10, 3, v2")
    k("s_mul_i32 s10, s29, 10240")
    k("s_add_u32 s10, s10, 65536")
    k(f"v_add_u32 v{RB}, s10, v2")
    k(f"v_add_u32 v{RB+1}, 40960, v{RB}")
    k("v_and_b32 v2, 15, v1")
    k("s_lshl_b32 s10, s29, 4")
    k("s_add_u32 s10, s10, s30")
    k("v_add_u32 v2, s10, v2")
    k("v_mul_u32_u24 v8, 1280, v2")
    k("s_mul_i32 s10, s12, 160")
    k("v_lshl_add_u32 v8, v3, 3, v8")
    k("v_add_u32 v8, s10, v8")
    k("s_mul_i32 s10, s12, 320")
    k("v_lshlrev_b32 v9, 4, v3")
    k("v_add_u32 v9, s10, v9")
    if final: srd(k, 32, OUTP, S * D * 2)
    else: wsrd(k, 32, S * D * 2, WS_X1)
    XL, XG = 144, 148
    EXB = 0 if final else 16384
    k("v_lshlrev_b32 v10, 4, v1")
    k("s_mul_i32 s9, s8, 5120")
    k(f"s_add_u32 s9, s9, {EXB}")
    k("v_add_u32 v151, s9, v10")
    k("s_xor_b32 s10, s8, 2")
    k("s_mul_i32 s10, s10, 5120")
    k(f"s_add_u32 s10, s10, {EXB}")
    k("v_add_u32 v152, s10, v10")
    k("v_and_b32 v10, 15, v1")
    k("s_lshl_b32 s10, s29, 4")
    k("s_lshl_b32 s9, s28, 5")
    k("s_add_u32 s10, s10, s9")
    k("v_add_u32 v11, s10, v10")
    k("v_mul_u32_u24 v11, 160, v11")
    k("v_lshrrev_b32 v140, 4, v1")
    k("v_lshl_add_u32 v11, v140, 3, v11")
    k(f"v_add_u32 v153, {RESL}, v11")
    k("v_lshlrev_b32 v140, 4, v140")
    k(f"v_add_u32 v154, {GTL}, v140")
    k("s_lshl_b32 s10, s29, 4")
    k("s_lshl_b32 s9, s28, 5")
    k("s_add_u32 s10, s10, s9")
    k("v_add_u32 v11, s10, v10")
    k("v_lshlrev_b32 v155, 3, v11")
    k("s_lshl_b32 s9, s11, 12")
    k("s_lshl_b32 s10, s12, 9")
    k("s_add_u32 s9, s9, s10")
    k("v_add_u32 v155, s9, v155")
    k("s_mul_i32 s9, s8, 3072")
    k(f"s_add_u32 s9, s9, {EXB + 20480}")
    k("s_lshl_b32 s10, s29, 4")
    k("s_add_u32 s10, s10, s30")
    k("s_mul_i32 s40, s12, 160")
    for i in range(3):
        k(f"v_add_u32 v10, {64*i}, v1")
        k("v_mul_u32_u24 v11, 6554, v10")
        k("v_lshrrev_b32 v11, 16, v11        ; row")
        k("v_mul_u32_u24 v140, 10, v11")
        k("v_sub_u32 v140, v10, v140         ; chunk")
        k("v_lshlrev_b32 v140, 4, v140")
        k("v_mul_u32_u24 v141, 176, v11")
        k(f"v_add3_u32 v{XL+i}, v141, v140, s9")
        k("v_add_u32 v11, s10, v11")
        k("v_mul_u32_u24 v11, 1280, v11")
        k(f"v_add3_u32 v{XG+i}, v11, v140, s40")
    k("v_cmp_gt_u32 vcc, 32, v1")
    k("v_mov_b32 v10, 0x7ffffff0")
    k(f"v_cndmask_b32 v{XG+2}, v10, v{XG+2}, vcc")
    k("v_and_b32 v10, 15, v1")
    k("v_mul_u32_u24 v10, 176, v10")
    k("v_lshrrev_b32 v11, 4, v1")
    k("v_lshlrev_b32 v11, 3, v11")
    k("v_add3_u32 v147, v10, v11, s9")
    pre_barrier()
    if APF: apf_rows(k, WS_G if final else WS_O, S * Kdim * 2, lambda: k("s_lshl_b32 s9, s11, 6"), Kdim * 2, 6, 0, NST,
                     lambda: k("s_mov_b32 s9, s12"), 128 * NST // 8, 10, 229, khalf=KH * 2)
    def reads(step):
        st, ks = divmod(step, 2); slot = st % NS; sb = step & 1
        if final:
            a = [f"ds_read_b128 v[{AF+(sb*2+mb)*4}:{AF+(sb*2+mb)*4+3}], v{RA+ks} offset:{slot*16384 + mb*2048}" for mb in range(2)]
        else:
            a = [f"ds_read_b64_tr_b16 v[{AF+(sb*2+mb)*4+2*j}:{AF+(sb*2+mb)*4+2*j+1}], v{RA+mb} offset:{slot*16384 + (32*ks+4*j)*128}" for mb in range(2) for j in range(2)]
        out = []
        for nt in range(5):
            d = BF + (sb * 5 + nt) * 4
            g = [f"ds_read_b64_tr_b16 v[{d+2*j}:{d+2*j+1}], v{RB+(slot>>1)} offset:{(slot&1)*20480 + (32*ks+8*j)*160 + nt*32}" for j in range(2)]
            out.append((a if nt == 0 else []) + g)
        return out
    def mf(step, nt):
        sb = step & 1
        return [mfma16(ACC + (nt * 2 + mb) * 4, BF + (sb * 5 + nt) * 4, AF + (sb * 2 + mb) * 4, "0" if step == 0 else None) for mb in range(2)]
    compute_loop(k, NST, 2, reads, mf, 0, stamp=False, hooks={-1: lambda: mark(k, 21 if final else 23)})
    mark(k, 9 if not final else 15)
    k(f"s_cmp_eq_u32 s29, 0")
    k(f"s_cbranch_scc1 {tag}_KH0")
    for nt in range(5):
        d = ACC + (nt * 2 + 0) * 4
        k(f"ds_write_b128 v151, v[{d}:{d+3}] offset:{1024*nt}")
    for nt in range(5):
        for r in range(0, 4, 2): k(f"v_pk_mov_b32 v[{ACC+(nt*2)*4+r}:{ACC+(nt*2)*4+r+1}], v[{ACC+(nt*2+1)*4+r}:{ACC+(nt*2+1)*4+r+1}], v[{ACC+(nt*2+1)*4+r}:{ACC+(nt*2+1)*4+r+1}] op_sel:[0,1]")
    k(f"s_branch {tag}_JOIN")
    k.label(f"{tag}_KH0")
    for nt in range(5):
        d = ACC + (nt * 2 + 1) * 4
        k(f"ds_write_b128 v151, v[{d}:{d+3}] offset:{1024*nt}")
    k.label(f"{tag}_JOIN")
    for nt in range(5):
        k(f"ds_read_b64 v[{RES+2*nt}:{RES+2*nt+1}], v153 offset:{32*nt}")
        k(f"ds_read_b128 v[{GT+4*nt}:{GT+4*nt+3}], v154 offset:{64*nt}")
    k("s_waitcnt lgkmcnt(10)")
    k("s_barrier")
    for nt in range(5):
        k(f"ds_read_b128 v[{BF+4*nt}:{BF+4*nt+3}], v152 offset:{1024*nt}")
    st_sc = "" if final else " sc1"
    PKD = 12
    for nt in range(5):
        d = ACC + nt * 8
        k(f"s_waitcnt lgkmcnt({4 - nt + (nt > 0) * min(nt, 1) * nt})" if False else f"s_waitcnt lgkmcnt({4 - nt + nt})" if False else f"s_waitcnt lgkmcnt(4)")
        for r in range(0, 4, 2): k(f"v_pk_add_f32 v[{d+r}:{d+r+1}], v[{d+r}:{d+r+1}], v[{BF+4*nt+r}:{BF+4*nt+r+1}]")
        k(f"v_lshlrev_b32 v22, 16, v{RES+2*nt}")
        k(f"v_and_b32 v23, 0xffff0000, v{RES+2*nt}")
        k(f"v_lshlrev_b32 v24, 16, v{RES+2*nt+1}")
        k(f"v_and_b32 v25, 0xffff0000, v{RES+2*nt+1}")
        for r in range(0, 4, 2): k(f"v_pk_fma_f32 v[{22+r}:{23+r}], v[{d+r}:{d+r+1}], v[{GT+4*nt+r}:{GT+4*nt+r+1}], v[{22+r}:{23+r}]")
        k(f"v_cvt_pk_bf16_f32 v{PKD+2*nt}, v22, v23")
        k(f"v_cvt_pk_bf16_f32 v{PKD+2*nt+1}, v24, v25")
        k(f"ds_write_b64 v147, v[{PKD+2*nt}:{PKD+2*nt+1}] offset:{32*nt}")
    k("s_waitcnt lgkmcnt(0)")
    for i in range(3): k(f"ds_read_b128 v[{BF+4*i}:{BF+4*i+3}], v{144+i}")
    for i in range(3):
        k(f"s_waitcnt lgkmcnt({2-i})")
        k(f"buffer_store_dwordx4 v[{BF+4*i}:{BF+4*i+3}], v{148+i}, s[32:35], 0 offen{st_sc}")
    if not final:
        for nt in range(5):
            t = PKD + 2 * nt
            k(f"v_lshlrev_b32 v22, 16, v{t}")
            k(f"v_and_b32 v23, 0xffff0000, v{t}")
            k(f"v_lshlrev_b32 v24, 16, v{t+1}")
            k(f"v_and_b32 v25, 0xffff0000, v{t+1}")
            if nt == 0:
                k("v_pk_add_f32 v[26:27], v[22:23], v[24:25]")
                k("v_pk_mul_f32 v[44:45], v[22:23], v[22:23]")
            else:
                k("v_pk_add_f32 v[26:27], v[26:27], v[22:23]")
                k("v_pk_fma_f32 v[44:45], v[22:23], v[22:23], v[44:45]")
                k("v_pk_add_f32 v[26:27], v[26:27], v[24:25]")
            k("v_pk_fma_f32 v[44:45], v[24:25], v[24:25], v[44:45]")
        k("v_add_f32 v26, v26, v27")
        k("v_add_f32 v27, v44, v45")
        for sw in ("v_permlane32_swap_b32", "v_permlane16_swap_b32"):
            k("v_mov_b32 v44, v26"); k("v_mov_b32 v45, v27")
            k(f"{sw} v26, v44"); k(f"{sw} v27, v45")
            k("v_add_f32 v26, v26, v44"); k("v_add_f32 v27, v27, v45")
        wsrd(k, 24, 2048 * 64, WS_STAT)
        k("s_mov_b64 exec, 0xffff")
        k("buffer_store_dwordx2 v[26:27], v155, s[24:27], 0 offen sc1")
        k("s_mov_b64 exec, -1")

def up_ids(k):
    k("s_and_b32 s3, s2, 7")
    k("s_lshr_b32 s13, s2, 3")
    k("s_and_b32 s14, s3, 1")
    k("s_lshl_b32 s14, s14, 3")
    k("s_and_b32 s15, s13, 7")
    k("s_add_u32 s11, s14, s15")
    k("s_lshr_b32 s14, s3, 1")
    k("s_lshl_b32 s14, s14, 2")
    k("s_lshr_b32 s15, s13, 3")
    k("s_add_u32 s12, s14, s15")

def up_loader_setup(k):
    VA, VB, NS = 8, 12, 4
    k("s_lshl_b32 s9, s11, 7")
    k("s_lshl_b32 s10, s31, 5")
    k("s_add_u32 s9, s9, s10")
    a_dma_rows32(k, VA, 9, 1280)
    k("v_lshlrev_b32 v2, 4, v1")
    k("s_mul_i32 s9, s31, 6144")
    k(f"s_mul_i32 s10, s12, {10*24576}")
    k("s_add_u32 s9, s9, s10")
    k(f"v_add_u32 v{VB}, s9, v2")
    k(f"v_add_u32 v{VB+1}, 4096, v{VB}")
    k("s_lshl_b32 s13, s31, 12")
    k("s_mul_i32 s15, s31, 6144")
    wsrd(k, 16, S * D * 2, WS_X1)
    wsrd(k, 20, 16 * 10 * 24576, WS_WUP)
    def dmaA(st):
        k(f"s_add_u32 m0, s13, {(st % NS)*16384}")
        k(f"s_mov_b32 s14, {st*128}")
        for i in range(4):
            k(f"buffer_load_dwordx4 v{VA+i}, s[16:19], s14 offen offset:{i*1024} sc1 lds")
    def dmaB(st):
        slot = st % NS
        k(f"s_add_u32 m0, s15, {65536 + slot*24576}")
        k(f"s_mov_b32 s14, {st*24576}")
        for i in range(4):
            k(f"buffer_load_dwordx4 v{VB}, s[20:23], s14 offen offset:{i*1024} sc1 lds")
        k(f"s_add_u32 m0, s15, {65536 + slot*24576 + 4096}")
        k("s_nop 0")
        for i in range(2):
            k(f"buffer_load_dwordx4 v{VB+1}, s[20:23], s14 offen offset:{i*1024} sc1 lds")
    return Loader(k, 10, NS, dmaA, dmaB, 4, 6)

def up_compute(k, pre_barrier):
    AF, BF, ACC, RA, RB, NS = 16, 24, 72, 4, 8, 4
    k("v_and_b32 v2, 31, v1")
    k("v_lshrrev_b32 v3, 5, v1")
    k("v_bfe_u32 v14, v2, 1, 3")
    k("v_lshlrev_b32 v2, 7, v2")
    k("s_lshl_b32 s10, s8, 12")
    k("v_add_u32 v2, s10, v2")
    for ks in range(4):
        k(f"v_add_u32 v15, {2*ks}, v3")
        k("v_xor_b32 v15, v15, v14")
        k(f"v_lshl_add_u32 v{RA+ks}, v15, 4, v2")
    k("v_lshrrev_b32 v2, 5, v1")
    k("v_bfe_u32 v3, v1, 2, 2")
    k("v_lshl_add_u32 v2, v2, 3, v3")
    k("v_mul_u32_u24 v2, 192, v2")
    k("v_bfe_u32 v14, v1, 4, 1")
    k("v_lshl_add_u32 v2, v14, 5, v2")
    k("v_and_b32 v14, 3, v1")
    k("v_lshl_add_u32 v2, v14, 3, v2")
    k(f"v_add_u32 v{RB}, 65536, v2")
    k(f"v_add_u32 v{RB+1}, {65536+49152}, v2")
    k("v_and_b32 v2, 31, v1")
    k("s_lshl_b32 s9, s11, 7")
    k("s_lshl_b32 s10, s8, 5")
    k("s_add_u32 s9, s9, s10")
    k("v_add_u32 v2, s9, v2")
    k("v_lshlrev_b32 v2, 6, v2")
    wsrd(k, 44, 2048 * 64, WS_STAT)
    GST, GL, GG = 131072, 200, 206
    k("s_mul_i32 s9, s8, 6656")
    k(f"s_add_u32 s9, s9, {GST}")
    k("s_lshl_b32 s10, s11, 7")
    k("s_lshl_b32 s34, s8, 5")
    k("s_add_u32 s10, s10, s34")
    k("s_mul_i32 s34, s12, 192")
    for i in range(6):
        k(f"v_add_u32 v14, {64*i}, v1")
        k("v_mul_u32_u24 v15, 5462, v14")
        k("v_lshrrev_b32 v15, 16, v15        ; row")
        k("v_mul_u32_u24 v16, 12, v15")
        k("v_sub_u32 v16, v14, v16           ; chunk")
        k("v_lshlrev_b32 v16, 4, v16")
        k("v_mul_u32_u24 v17, 208, v15")
        k(f"v_add3_u32 v{GL+i}, v17, v16, s9")
        k("v_add_u32 v15, s10, v15")
        k("v_mul_u32_u24 v15, 3072, v15")
        k(f"v_add3_u32 v{GG+i}, v15, v16, s34")
    k("v_and_b32 v14, 31, v1")
    k("v_mul_u32_u24 v14, 208, v14")
    k("v_lshrrev_b32 v15, 5, v1")
    k("v_lshlrev_b32 v15, 4, v15")
    k("v_add3_u32 v212, v14, v15, s9")
    pre_barrier()
    STT = 168
    def reads(step):
        st, ks = divmod(step, 4); slot = st % NS; sb = step & 1
        a = f"ds_read_b128 v[{AF+4*sb}:{AF+4*sb+3}], v{RA+ks} offset:{slot*16384}"
        out = []
        for nt in range(6):
            d = BF + (sb * 6 + nt) * 4
            off = (slot & 1) * 24576 + (nt // 3) * 12288 + (nt % 3) * 64
            g = [f"ds_read_b64_tr_b16 v[{d+2*j}:{d+2*j+1}], v{RB+(slot>>1)} offset:{off + (16*ks+4*j)*192}" for j in range(2)]
            out.append(([a] if nt == 0 else []) + g)
        return out
    def mf(step, nt):
        sb = step & 1
        return [mfma32(ACC + 16 * nt, BF + (sb * 6 + nt) * 4, AF + 4 * sb, "0" if step == 0 else None)]
    compute_loop(k, 10, 4, reads, mf, 0, stamp=False, hooks={-1: lambda: mark(k, 22)})
    mark(k, 12)
    k("s_barrier")
    k("v_and_b32 v2, 31, v1")
    k("s_and_b32 s9, s8, 1")
    k("s_lshl_b32 s9, s9, 8              ; (w & 1)*32 rows*8 B")
    k("s_lshr_b32 s10, s8, 1")
    k("s_lshl_b32 s10, s10, 12           ; (w >> 1)*4096")
    k("s_add_u32 s9, s9, s10")
    k("v_lshlrev_b32 v2, 3, v2")
    k("v_add_u32 v2, s9, v2")
    k("v_add_u32 v2, 36864, v2")
    for q in range(8): k(f"ds_read_b64 v[{STT+2*q}:{STT+2*q+1}], v2 offset:{512*q}")
    k("s_waitcnt lgkmcnt(0)")
    k(f"v_add_f32 v10, v{STT}, v{STT+2}")
    k(f"v_add_f32 v11, v{STT+1}, v{STT+3}")
    for q in range(2, 8):
        k(f"v_add_f32 v10, v10, v{STT+2*q}")
        k(f"v_add_f32 v11, v11, v{STT+2*q+1}")
    k(f"s_mov_b32 s9, {hex(f2u(1.0/640))}")
    k("v_mul_f32 v10, s9, v10            ; mean")
    k("v_mul_f32 v13, v10, v10")
    k("v_fma_f32 v11, v11, s9, -v13      ; variance")
    k("v_max_f32 v11, 0, v11")
    k("v_add_f32 v11, 0x3727c5ac, v11")
    k("v_rsq_f32 v11, v11")
    k("s_nop 0")
    k("v_mul_f32 v13, v10, v11")
    k("v_sub_f32 v12, 0, v13")
    k("v_mov_b32 v13, v12")
    k("v_mov_b32 v10, v11")
    k("v_lshrrev_b32 v14, 5, v1")
    k("v_lshlrev_b32 v14, 4, v14")
    k("v_add_u32 v14, 32768, v14")
    wsrd(k, 24, S * F * 2, WS_G)
    k("v_and_b32 v2, 31, v1")
    k("s_lshl_b32 s9, s11, 7")
    k("s_lshl_b32 s10, s8, 5")
    k("s_add_u32 s9, s9, s10")
    k("v_add_u32 v2, s9, v2")
    k("v_mul_u32_u24 v2, 3072, v2")
    k("v_lshrrev_b32 v3, 5, v1")
    k("v_lshlrev_b32 v3, 4, v3")
    k("s_mul_i32 s9, s12, 192")
    k("v_add3_u32 v2, v2, v3, s9")
    c1 = -2.0 * 0.7978845608028654 * 1.4426950408889634
    c2 = c1 * 0.044715
    for r, c in ((4, c1), (5, c1), (6, c2), (7, c2), (8, 1.0), (9, 1.0)): k(f"v_mov_b32 v{r}, {hex(f2u(c))}")
    pk = lambda r: f"v[{r}:{r+1}]"
    U0, U1 = 40, 168
    def ut_reads(slot, off):
        U = (U0, U1)[slot]
        for mat in range(2):
            for jj in range(2):
                k(f"ds_read_b128 v[{U+8*mat+4*jj}:{U+8*mat+4*jj+3}], v14 offset:{mat*384 + off + 32*jj}")
                k(f"ds_read_b128 v[{U+16+8*mat+4*jj}:{U+16+8*mat+4*jj+3}], v14 offset:{768 + mat*384 + off + 32*jj}")
    if os.environ.get("UPDIAG"): mark(k, 25)
    def group(jp, g, nxt_slot, nxt_off, woff):
        U = (U0, U1)[jp]
        u = g + 48
        T = 16 + 8 * jp
        if nxt_off is not None: ut_reads(nxt_slot, nxt_off)
        k(f"s_waitcnt lgkmcnt({8 if nxt_off is not None else 0})")
        for mat in range(2):
            for r in range(0, 8, 2):
                k(f"v_pk_fma_f32 {pk(U+16+8*mat+r)}, {pk(U+8*mat+r)}, v[12:13], {pk(U+16+8*mat+r)}")
        for mat in range(2):
            base = g if mat == 0 else u
            for r in range(0, 8, 2):
                k(f"v_pk_fma_f32 {pk(base+r)}, {pk(base+r)}, v[10:11], {pk(U+16+8*mat+r)}")
        for r in range(0, 8, 2): k(f"v_pk_mul_f32 {pk(T+r)}, {pk(g+r)}, {pk(g+r)}")
        for r in range(0, 8, 2): k(f"v_pk_fma_f32 {pk(T+r)}, {pk(T+r)}, v[6:7], v[4:5]")
        for r in range(0, 8, 2): k(f"v_pk_mul_f32 {pk(T+r)}, {pk(T+r)}, {pk(g+r)}")
        for r in range(8): k(f"v_exp_f32 v{T+r}, v{T+r}")
        for r in range(0, 8, 2): k(f"v_pk_mul_f32 {pk(g+r)}, {pk(g+r)}, {pk(u+r)}")
        for r in range(0, 8, 2): k(f"v_pk_add_f32 {pk(T+r)}, {pk(T+r)}, v[8:9]")
        for r in range(8): k(f"v_rcp_f32 v{T+r}, v{T+r}")
        for r in range(0, 8, 2): k(f"v_pk_mul_f32 {pk(T+r)}, {pk(T+r)}, {pk(g+r)}")
        t = 32 + 4 * jp
        for q in range(4): k(f"v_cvt_pk_bf16_f32 v{t+q}, v{T+2*q}, v{T+2*q+1}")
        k(f"v_permlane32_swap_b32 v{t}, v{t+2}")
        k(f"v_permlane32_swap_b32 v{t+1}, v{t+3}")
        k(f"ds_write_b128 v212, v[{t}:{t+3}] offset:{woff}")
    ut_reads(0, 0)
    if os.environ.get("EPI_LOOP"):
        k("s_mov_b32 s34, 3")
        k.label("UP_EPI")
        for jp in range(2): group(jp, ACC + 8 * jp, 1 - jp, 64 * (jp + 1), 32 * jp)
        for base in (ACC, ACC + 48):
            for r in range(0, 32, 2): k(f"v_pk_mov_b32 {pk(base+r)}, {pk(base+16+r)}, {pk(base+16+r)} op_sel:[0,1]")
        k("v_add_u32 v14, 128, v14")
        k("v_add_u32 v212, 64, v212")
        k("s_sub_u32 s34, s34, 1")
        k("s_cmp_lg_u32 s34, 0")
        k("s_cbranch_scc1 UP_EPI")
    else:
        for grp in range(6):
            nt, jp = divmod(grp, 2)
            group(jp, ACC + 16 * nt + 8 * jp, 1 - jp, (64 * (grp + 1) if grp < 5 else None), 64 * nt + 32 * jp)
    if os.environ.get("UPDIAG"): mark(k, 28)
    k("s_waitcnt lgkmcnt(0)")
    for i in range(6): k(f"ds_read_b128 v[{ACC+4*i}:{ACC+4*i+3}], v{200+i}")
    for i in range(6):
        k(f"s_waitcnt lgkmcnt({5-i})")
        k(f"buffer_store_dwordx4 v[{ACC+4*i}:{ACC+4*i+3}], v{206+i}, s[24:27], 0 offen sc1")

def phases456(k):
    k.label("P4_STAGED")
    from k_attn2 import SS
    k("s_waitcnt vmcnt(0)")
    k("s_barrier")
    mark(k, 7)
    narrow_ids(k)
    k("s_cmp_ge_u32 s8, 4")
    k("s_cbranch_scc1 P4_LOADER")
    k("v_lshlrev_b32 v5, 4, v1")
    k("s_mul_i32 s9, s8, 2560")
    k("v_add_u32 v5, s9, v5")
    for i in range(3): k(f"ds_read_b128 v[{SS+4*i}:{SS+4*i+3}], v5 offset:{1024*i}")
    for i in range(3):
        k(f"s_waitcnt lgkmcnt({2-i})")
        k(f"buffer_store_dwordx4 v[{SS+4*i}:{SS+4*i+3}], v{128+i}, s[24:27], 0 offen sc1")
    if not os.environ.get("NO_BH2"): k("s_barrier")
    if not os.environ.get("LDIAG") and not os.environ.get("P0DIAG") and not os.environ.get("UPDIAG"): mark(k, 25)
    k("s_waitcnt vmcnt(0)")
    if not os.environ.get("LDIAG") and not os.environ.get("P0DIAG") and not os.environ.get("UPDIAG"): mark(k, 26)
    last_arriver_flag(k, "P3O", CTL + 16, 3, FL_O, 2)
    k("s_branch P4_COMPUTE")
    k.label("P4_LOADER")
    if os.environ.get("PRIO_A") or os.environ.get("PRIO_C"): k("s_setprio 0")
    if not os.environ.get("NO_BH2"): k("s_barrier                        ; B_h2")
    L = narrow_loader_setup(k, 640, WS_O, WS_WOP, transposed=True)
    L.preloadB()
    narrow_res_dma(k, True, 2)
    k("s_cmp_lg_u32 s8, 4")
    k("s_cbranch_scc1 P4L_GO")
    poll_range(k, "P4L_O", FL_O, lambda: k("s_lshl_b32 s9, s3, 5"), 32)
    k.label("P4L_GO")
    k("s_barrier                        ; B_i")
    mark(k, 8)
    L.run(prefetch=apf_loader(k, WS_O, S * 640 * 2, lambda: k("s_lshl_b32 s9, s11, 6"), 1280, 6, 1, 4, lambda: k("s_mov_b32 s9, s12"), 64, 17, 229, khalf=640))
    k("s_barrier")
    k("s_lshr_b32 s35, s11, 1")
    k("s_lshl_b32 s35, s35, 4")
    k("s_and_b32 s36, s11, 1")
    k("s_lshl_b32 s36, s36, 3")
    k("s_add_u32 s35, s35, s36")
    k("s_add_u32 s35, s35, s12")
    up_ids(k)
    L = up_loader_setup(k)
    if os.environ.get("BJ0"): k("s_barrier")
    L.preloadB()
    k("s_barrier")
    k("s_cmp_lg_u32 s8, 4")
    k("s_cbranch_scc1 P5L_GO")
    set_flag(k, FL_X1, 35)
    poll_range(k, "P5L_X", FL_X1, lambda: k("s_lshl_b32 s9, s11, 4"), 16)
    k.label("P5L_GO")
    k("s_barrier                        ; B_k")
    mark(k, 11)

    def ut_issue():
        wsrd(k, 24, 16 * 384 * 4, WS_UT)
        k("v_lshlrev_b32 v2, 4, v1")
        k("s_mul_i32 s14, s12, 1536")
        k("s_and_b32 s9, s31, 1")
        k("s_lshl_b32 s9, s9, 10")
        k("s_add_u32 s14, s14, s9")
        k("s_add_u32 m0, s9, 32768")
        k("s_nop 0")
        k("buffer_load_dwordx4 v2, s[24:27], s14 offen sc1 lds")
        wsrd(k, 24, 2048 * 64, WS_STAT)
        k("s_lshl_b32 s14, s11, 13")
        k("s_lshl_b32 s9, s31, 11")
        k("s_add_u32 s14, s14, s9")
        k("s_add_u32 m0, s9, 36864")
        k("s_nop 0")
        k("buffer_load_dwordx4 v2, s[24:27], s14 offen sc1 lds")
        k("buffer_load_dwordx4 v2, s[24:27], s14 offen offset:1024 sc1 lds")
        n = 0
        if os.environ.get("WDPF"):
            wsrd(k, 52, 8 * 1536 * 160, WS_WDP)
            k("s_lshr_b32 s9, s2, 3")
            k("s_mul_i32 s9, s9, 480")
            k("v_and_b32 v20, 255, v0")
            for i in range(2):
                k(f"v_add_u32 v21, {256*i}, v20")
                k("v_add_u32 v22, s9, v21")
                k("v_lshlrev_b32 v22, 7, v22")
                if i:
                    k("v_cmp_gt_u32 vcc, 480, v21")
                    k("v_mov_b32 v23, 0x7ffffff0")
                    k("v_cndmask_b32 v22, v23, v22, vcc")
                k(f"buffer_load_dword v{228+i}, v22, s[52:55], 0 offen")
                n += 1
        npf.append(n)
        return 3 + n
    npf = []
    def o_issue():
        k("s_cmp_lg_u32 s8, 5")
        k("s_cbranch_scc1 P5L_OA")
        check_all_issue(k, FL_O, 24)
        k.label("P5L_OA")
        return 0
    def o_fin():
        k("s_cmp_lg_u32 s8, 5")
        k("s_cbranch_scc1 P5L_OB")
        k("s_waitcnt vmcnt(0)")
        check_all_finish(k, "P5L_OALL", FL_O, 24)
        k.label("P5L_OB")
        return ut_issue()
    L.run(after_barrier={2: o_issue, 8: o_fin}, prefetch=None)
    k(f"s_waitcnt vmcnt({npf[0]})")
    k("s_barrier                        ; u', t landed")
    k("s_lshl_b32 s35, s11, 4")
    k("s_add_u32 s35, s35, s12")
    narrow_ids(k)
    if os.environ.get("LATE_PRE"): k("s_barrier")
    L = narrow_loader_setup(k, 1536, WS_G, WS_WDP)
    if os.environ.get("BL0"): k("s_barrier")
    L.preloadB()
    if not os.environ.get("LATE_PRE"): k("s_barrier")
    k("s_cmp_lg_u32 s8, 4")
    k("s_cbranch_scc1 P6L_GO")
    set_flag(k, FL_G, 35)
    def gfirst():
        k("s_lshr_b32 s9, s11, 1")
        k("s_lshl_b32 s9, s9, 4")
    poll_range(k, "P6L_G", FL_G, gfirst, 16)
    k.label("P6L_GO")
    k("s_barrier                        ; B_m")
    mark(k, 14)
    def down_res():
        narrow_res_dma(k, False, 5)
        return 0
    L.run(after_barrier={2: down_res}, prefetch=apf_loader(k, WS_G, S * 1536 * 2, lambda: k("s_lshl_b32 s9, s11, 6"), 3072, 6, 1, 11, lambda: k("s_mov_b32 s9, s12"), 176, 17, 229, khalf=1536))
    k("s_barrier")
    k("s_branch F_END")
    k.label("P4_COMPUTE")
    if os.environ.get("PRIO_C"): k("s_setprio 1")
    narrow_compute(k, "P4C", 640, True, 2, False, lambda: k("s_barrier                        ; B_i"))
    if os.environ.get("BJ0"): k("s_barrier                        ; B_j0")
    if not os.environ.get("P0DIAG") and not os.environ.get("UPDIAG"): mark(k, 29)
    k("s_waitcnt vmcnt(0)")
    if not os.environ.get("P0DIAG"): mark(k, 30)
    k("s_barrier                        ; B_j")
    mark(k, 10)
    up_ids(k)
    up_compute(k, lambda: k("s_barrier                        ; B_k"))
    if os.environ.get("BL0"): k("s_barrier                        ; B_l0")
    if os.environ.get("UPDIAG"): mark(k, 29)
    if not os.environ.get("LDIAG") and not os.environ.get("P0DIAG") and not os.environ.get("UPDIAG"): mark(k, 27)
    k("s_waitcnt vmcnt(0)")
    if not os.environ.get("P0DIAG") and not os.environ.get("UPDIAG"): mark(k, 28)
    k("s_barrier                        ; B_l")
    mark(k, 13)
    narrow_ids(k)
    narrow_compute(k, "P6C", 1536, False, 5, True, lambda: k("s_barrier                        ; B_m"))

def gen_fused():
    k = K()
    k("s_cmp_ge_u32 s2, 256")
    k("s_cbranch_scc1 F_END")
    k(f"s_load_dwordx8 s[64:71], s[0:1], 0")
    k(f"s_load_dwordx8 s[72:79], s[0:1], 32")
    k(f"s_load_dwordx8 s[80:87], s[0:1], 64")
    k("v_and_b32 v1, 63, v0")
    k("v_lshrrev_b32 v2, 6, v0")
    k("s_nop 0")
    k("v_readfirstlane_b32 s8, v2       ; wave")
    k("s_and_b32 s31, s8, 3")
    phase01(k)
    phase2_loader(k)
    phase2_spare(k)
    phase2_compute(k)
    phase3(k)
    phases456(k)
    k.label("F_END")
    k("s_endpgm")
    k.fix_hazards()
    return NAME, header(NAME) + k.text() + descriptor(NAME, 232), (256, 512, 163840)

if __name__ == "__main__":
    import sys
    HEAD = open("adaLN_cond__mha_block__geglu_ffn__prompt.s.ref").read().split("; Override launch")[0]
    n, t, (g, b, l) = gen_fused()
    s = HEAD + f"; @launch grid=({g},1,1) block=({b},1,1) lds={l}\n" + '.amdgcn_target "amdgcn-amd-amdhsa--gfx950"\n' + t
    out = sys.argv[1] if len(sys.argv) > 1 else "fused.s"
    open(out, "w").write(s)
    print("wrote", out, len(s))
```
